```python
import torch

def _softmax(x, axis=-1):
    return torch.softmax(x, dim=axis)
def _gelu(x):
    return torch.nn.functional.gelu(x, approximate="tanh")
def _silu(x):
    return torch.nn.functional.silu(x)
def _sigmoid(x):
    return torch.sigmoid(x)
def _layernorm(x, axis=-1, eps=1e-5):
    m = x.mean(dim=axis, keepdim=True)
    v = x.var(dim=axis, keepdim=True, unbiased=False)
    return (x - m) / torch.sqrt(v + eps)
def _scatter_add(tgt, idx, src, axis=0):
    return tgt.clone().index_add_(axis, idx, src)
def _segment_sum(src, seg, n):
    out = torch.zeros((n,) + src.shape[1:], dtype=src.dtype)
    return out.index_add_(0, seg, src)
def _pad(x, pw):
    flat = tuple(v for pair in reversed(pw) for v in pair)
    return torch.nn.functional.pad(x, flat)

kernel_name = 'interleave_layers__spectral_gfnet__mha_block__prompt'

def setup_inputs():

    _w = (lambda a: (lambda t: t.to(torch.bfloat16) if t.is_floating_point() else t)(torch.as_tensor(a)))
    def _A_setup():
        B, S, D = 1, 2048, 640
        Df = D // 2 + 1
        return {
            "x": _w((lambda *s: torch.randn(*s, dtype=torch.bfloat16) * 0.05)(B, S, D)),
            "w_r": _w((lambda *s: torch.randn(*s, dtype=torch.bfloat16) * 1.6)(S, Df) * 0.02),
            "w_i": _w((lambda *s: torch.randn(*s, dtype=torch.bfloat16) * 1.6)(S, Df) * 0.02),
        }
    _A_in = _A_setup()

    def _B_setup():
        B, S, D, H = 1, 2048, 640, 32
        return {
            "x": _w((lambda *s: torch.randn(*s, dtype=torch.bfloat16) * 0.05)(B, S, D)),
            "wqkv": _w((lambda *s: torch.randn(*s, dtype=torch.bfloat16) * 0.05)(D, 3 * D)),
            "wo": _w((lambda *s: torch.randn(*s, dtype=torch.bfloat16) * 0.05)(D, D)),
        }
    _B_in = _B_setup()

    return {
        "A_x": _A_in["x"],
        "A_w_r": _A_in["w_r"],
        "A_w_i": _A_in["w_i"],
        "B_x": _B_in["x"],
        "B_wqkv": _B_in["wqkv"],
        "B_wo": _B_in["wo"],
    }

def reference(A_x, A_w_r, A_w_i, B_x, B_wqkv, B_wo):
    def _A_ref(x, w_r, w_i):
        B, S, D = x.shape
        X = (lambda x, axes=(-2,-1): torch.fft.rfft2(x.float(), dim=axes))(x, axes=(-2, -1))
        W = w_r + 1j * w_i
        X = X * W
        y = (lambda x, s, axes=(-2,-1): torch.fft.irfft2(x, s=s, dim=axes).to(torch.bfloat16))(X, (S, D), axes=(-2, -1))
        return y

    def _B_ref(x, wqkv, wo):
        B, S, D = x.shape
        H = 32
        Dh = D // H
        qkv = (lambda x, *d: x.permute(*d))((x @ wqkv).reshape(B, S, 3, H, Dh), 2, 0, 3, 1, 4)
        q, k, v = qkv[0], qkv[1], qkv[2]
        scores = torch.einsum("bhqd,bhkd->bhqk", q, k) * (Dh ** -0.5)
        p = _softmax(scores, axis=-1)
        o = torch.einsum("bhqk,bhkd->bhqd", p, v)
        return (lambda x, *d: x.permute(*d))(o, 0, 2, 1, 3).reshape(B, S, D) @ wo

    x = A_x
    x = x + _A_ref(_layernorm(x, axis=-1), A_w_r, A_w_i)
    x = x + _B_ref(_layernorm(x, axis=-1), B_wqkv, B_wo)
    x = x + _A_ref(_layernorm(x, axis=-1), A_w_r, A_w_i)
    x = x + _B_ref(_layernorm(x, axis=-1), B_wqkv, B_wo)
    return x
```

```python
import re

TRANS = ("v_exp_f32", "v_log_f32", "v_rcp_f32", "v_rsq_f32", "v_sqrt_f32", "v_sin_f32", "v_cos_f32")
REG_RE = re.compile(r"^(-?)(abs\()?([vsa])(?:(\d+)|\[(\d+):(\d+)\])\)?$")


def vr(b, n=1):
    return f"v{b}" if n == 1 else f"v[{b}:{b+n-1}]"


def sr(b, n=1):
    return f"s{b}" if n == 1 else f"s[{b}:{b+n-1}]"


def regs_of(op):
    op = op.strip()
    if op == "vcc":
        return {("s", 106), ("s", 107)}
    if op in ("vcc_lo", "vcc_hi"):
        return {("s", 106 + (op == "vcc_hi"))}
    if op == "exec":
        return {("s", 126), ("s", 127)}
    if op in ("exec_lo", "exec_hi"):
        return {("s", 126 + (op == "exec_hi"))}
    if op == "m0":
        return {("s", 124)}
    m = REG_RE.match(op)
    if not m:
        return set()
    k = m.group(3)
    if m.group(4) is not None:
        return {(k, int(m.group(4)))}
    return {(k, i) for i in range(int(m.group(5)), int(m.group(6)) + 1)}


class Ins:
    def __init__(self, text):
        self.text = text
        t = text.split(";")[0].strip()
        self.label = t[:-1] if t.endswith(":") else None
        self.directive = t.startswith(".") and not self.label
        self.empty = (t == "")
        self.mn = ""
        self.w = set()
        self.r = set()
        self.ops = []
        self.cls = "none"
        self.states = 0
        if self.label or self.directive or self.empty:
            return
        parts = t.split(None, 1)
        mn = self.mn = parts[0]
        rest = parts[1] if len(parts) > 1 else ""
        ops = split_ops(rest)
        self.mods = ""
        if ops:
            last = ops[-1].split(None, 1)
            ops[-1] = last[0]
            self.mods = last[1] if len(last) > 1 else ""
        self.ops = ops
        R = [regs_of(o) for o in ops]
        allr = set().union(*R) if R else set()
        self.states = 1
        if mn == "s_nop":
            self.states = int(ops[0], 0) + 1
            self.cls = "salu"
        elif mn.startswith("v_mfma") or mn.startswith("v_smfmac"):
            self.cls = "mfma"
            self.w = R[0]
            self.a = R[1]
            self.b = R[2]
            if mn.startswith("v_smfmac"):
                self.c = R[0]
                self.a = self.a | R[3]
            else:
                self.c = R[3]
            self.r = self.a | self.b | self.c
            self.passes = 16 if "_2b_" in mn else (8 if "32x32" in mn else 4)
        elif mn.startswith("v_"):
            self.cls = "valu"
            self.trans = mn.replace("_e32", "").replace("_e64", "") in TRANS
            self.dpp = any(k in self.mods for k in ("row_", "quad_perm", "wave_"))
            self.w = set(R[0])
            self.r = set().union(*R[1:]) if len(R) > 1 else set()
            if mn.startswith("v_cmpx"):
                self.w |= regs_of("exec")
            if "_co_" in mn:
                self.w |= R[1]
                self.r = set().union(*R[2:])
            if mn.startswith("v_permlane") and "swap" in mn:
                self.w = R[0] | R[1]
                self.r = R[0] | R[1]
            if mn.startswith(("v_fmac", "v_dot2c", "v_pk_fmac", "v_writelane")) or self.dpp:
                self.r |= R[0]
        elif mn.startswith(("buffer_", "global_")):
            self.cls = "vmem"
            self.lds = " lds" in " " + self.mods or "load_lds" in mn
            if "load" in mn and not self.lds:
                self.w = R[0]
                self.r = set().union(*R[1:])
            elif "atomic" in mn and "sc0" in self.mods:
                self.w = R[0]
                self.r = allr
            else:
                self.r = allr
            self.widestore = ("store" in mn and ("x4" in mn or "x3" in mn))
            if self.widestore:
                self.data = R[0] if mn.startswith("buffer_") else R[1]
        elif mn.startswith("ds_"):
            self.cls = "ds"
            if "read" in mn or "permute" in mn or "swizzle" in mn or "_rtn" in mn:
                self.w = R[0]
                self.r = set().union(*R[1:])
            else:
                self.r = allr
        elif mn.startswith("s_"):
            self.cls = "salu"
            if mn.startswith(("s_cmp", "s_cbranch", "s_branch", "s_waitcnt", "s_barrier", "s_sleep", "s_setprio", "s_endpgm", "s_bitcmp", "s_setpc")):
                self.r = allr
            else:
                self.w = R[0] if R else set()
                self.r = set().union(*R[1:]) if len(R) > 1 else set()
                if "saveexec" in mn:
                    self.w |= regs_of("exec")
        else:
            raise ValueError("unknown instruction " + text)


def split_ops(s):
    out, depth, cur = [], 0, ""
    for ch in s:
        if ch in "[(":
            depth += 1
        if ch in "])":
            depth -= 1
        if ch == "," and depth == 0:
            out.append(cur.strip())
            cur = ""
        else:
            cur += ch
    if cur.strip():
        out.append(cur.strip())
    return out


def vonly(s):
    return {x for x in s if x[0] in "va"}


def sonly(s):
    return {x for x in s if x[0] == "s"}


EXEC = {("s", 126), ("s", 127)}
VCC = {("s", 106), ("s", 107)}
M0 = {("s", 124)}


def need(p, c):
    n = 0
    if p.cls == "mfma":
        k = {4: 0, 8: 1, 16: 2}[p.passes]
        if c.cls == "mfma":
            if p.w & (c.a | c.b):
                n = max(n, (8, 12, 20)[k])
            if p.w & c.c:
                if not (p.w == c.c and p.passes == c.passes):
                    n = max(n, (6, 10, 18)[k])
            elif p.w & c.w:
                n = max(n, (6, 10, 18)[k])
        elif c.cls in ("valu", "vmem", "ds"):
            if p.w & (c.r | c.w):
                n = max(n, (8, 12, 20)[k])
            if c.cls == "valu" and (p.c & c.w):
                n = max(n, (3, 7, 15)[k])
    elif p.cls == "valu":
        pv, ps = vonly(p.w), sonly(p.w)
        if c.cls == "mfma":
            if pv & c.r:
                n = max(n, 3 if p.mn.startswith("v_dot") else 2)
            if ps & EXEC:
                n = max(n, 4)
        elif c.cls == "valu":
            if p.trans and not c.trans and pv & c.r:
                n = max(n, 1)
            if p.mn.startswith("v_dot") and pv & (c.r | c.w):
                same_c = (c.mn == p.mn and not (pv & (regs_of(c.ops[1]) | regs_of(c.ops[2]))))
                if not same_c:
                    n = max(n, 3)
            if (c.dpp or c.mn.startswith("v_permlane")) and pv & c.r:
                n = max(n, 2)
            if c.mn.startswith(("v_readlane", "v_readfirstlane")) and pv & c.r:
                n = max(n, 1)
            if ps & sonly(c.r):
                n = max(n, 4 if c.mn.startswith(("v_readlane", "v_writelane")) else 2)
            if ps & EXEC:
                if c.dpp:
                    n = max(n, 5)
                if c.mn.startswith(("v_readlane", "v_readfirstlane", "v_writelane", "v_permlane")):
                    n = max(n, 4)
            if "op_sel" in p.mods and not p.mn.startswith("v_pk") and pv & (c.r | c.w):
                n = max(n, 1)
            if "dst_sel" in p.mods and pv & (c.r | c.w):
                n = max(n, 1)
        elif c.cls == "vmem":
            if ps & sonly(c.r):
                n = max(n, 5)
            if p.mn.startswith("v_dot") and pv & c.r:
                n = max(n, 3)
        elif c.cls == "ds":
            if p.mn.startswith("v_dot") and pv & c.r:
                n = max(n, 3)
        elif c.cls == "salu":
            if c.mn in ("s_cbranch_vccz", "s_cbranch_vccnz") and ps & VCC:
                n = max(n, 5)
            if c.mn in ("s_cbranch_execz", "s_cbranch_execnz") and ps & EXEC:
                n = max(n, 5)
            if ps & sonly(c.r):
                n = max(n, 1)
    elif p.cls == "vmem":
        if p.widestore and c.cls in ("valu", "mfma", "ds", "vmem") and p.data & c.w:
            n = max(n, 2)
    elif p.cls == "salu":
        if p.w & M0 and c.cls == "vmem" and c.lds:
            n = max(n, 1)
    return n


WINDOW = 22


class Asm:
    def __init__(self):
        self.items = []
        self.nlab = 0

    def __call__(self, text):
        for line in text.split("\n"):
            line = line.strip()
            m = re.match(r"^v_cndmask_b32 (\S+), (0x[0-9a-f]+), (.*)$", line)
            if m:
                self.items.append(Ins(f"v_mov_b32 v255, {m.group(2)}"))
                line = f"v_cndmask_b32 {m.group(1)}, v255, {m.group(3)}"
            if line:
                self.items.append(Ins(line))

    def lab(self, name="L"):
        self.nlab += 1
        return f"{name}_{self.nlab}"

    def _deficit(self, hist, c):
        d, dist = 0, 0
        for p in reversed(hist):
            d = max(d, need(p, c) - dist)
            dist += p.states
            if dist >= WINDOW:
                break
        return d

    def finalize(self):
        out, hist, self.padded = [], [], 0
        for it in self.items:
            if it.states == 0:
                out.append(it)
                continue
            d = self._deficit(hist, it)
            while d > 0:
                k = min(d, 16)
                nop = Ins(f"s_nop {k-1}")
                out.append(nop)
                hist.append(nop)
                self.padded += k
                d -= k
            out.append(it)
            hist.append(it)
            if it.mn in ("s_branch", "s_endpgm", "s_setpc_b64"):
                hist = []
            hist = hist[-WINDOW:]
        changed = True
        while changed:
            changed = False
            pos = {it.label: i for i, it in enumerate(out) if it.label}
            for i, it in enumerate(out):
                if not (it.mn.startswith("s_cbranch") or it.mn == "s_branch"):
                    continue
                h = [x for x in out[max(0, i - 3 * WINDOW):i + 1] if x.states][-WINDOW:]
                j, dist, worst = pos[it.ops[0]], 0, 0
                base = list(h)
                while j < len(out) and dist < WINDOW:
                    c = out[j]
                    if c.states:
                        dd, acc = 0, dist
                        for p in reversed(base):
                            dd = max(dd, need(p, c) - acc)
                            acc += p.states
                            if acc >= WINDOW:
                                break
                        worst = max(worst, dd)
                        dist += c.states
                        if c.mn in ("s_branch", "s_endpgm"):
                            break
                    j += 1
                if worst > 0:
                    out.insert(i, Ins(f"s_nop {min(worst,16)-1}"))
                    self.padded += worst
                    changed = True
                    break
        return "\n".join((it.text if it.label or it.directive else "    " + it.text) for it in out) + "\n"
```

```python
from asmlib import *

VFR = 672
TILE = 1024 + 2 * VFR
K2OFF = 4 * TILE
HEADB = K2OFF + 1024
CHUNK = 2 * HEADB
SLOT0 = 163840 - 3 * CHUNK
SLOT_ORDER = (1, 2, 0)


class AR:
    Q1 = 8
    Q2 = 12
    IDX = 16
    KA = 17
    VA = 18
    DMA = 19
    NEGM = 20
    O = 36
    S = 52
    K1 = 100
    K2 = 108
    V = 120
    END = 144


def slot_off(c):
    return SLOT_ORDER[c % 3] * CHUNK


def tile_off(n):
    return slot_off(n // 4) + (n % 4) * TILE


def rd_k(n):
    r = [f"ds_read_b128 {vr(AR.K1+4*(n%2),4)}, {vr(AR.KA)} offset:{tile_off(n)}"]
    if n % 4 == 0:
        r.append(f"ds_read_b128 {vr(AR.K2+4*((n//4)%3),4)}, {vr(AR.KA)} offset:{slot_off(n//4)+K2OFF}")
    return r


def rd_v(n):
    b = n % 3
    return [f"ds_read_b128 {vr(AR.V+8*b+4*i,4)}, {vr(AR.VA)} offset:{tile_off(n)+i*VFR}" for i in range(2)]


def qk1(n):
    return f"v_mfma_f32_32x32x16_bf16 {vr(AR.S+16*(n%3),16)}, {vr(AR.K1+4*(n%2),4)}, {vr(AR.Q1,4)}, {vr(AR.NEGM,16)}"


def qk2(n):
    s = vr(AR.S + 16 * (n % 3), 16)
    k = AR.K2 + 4 * ((n // 4) % 3) + 2 * ((n % 4) // 2)
    return f"v_mfma_f32_32x32x8_bf16 {s}, {vr(k,2)}, {vr(AR.Q2+2*(n%2),2)}, {s}"


def pv(n, h):
    return f"v_smfmac_f32_32x32x32_bf16 {vr(AR.O,16)}, {vr(AR.V+8*(n%3)+4*h,4)}, {vr(AR.S+16*(n%3)+8*h,8)}, {vr(AR.IDX)}"


def ex(n, i):
    r = vr(AR.S + 16 * (n % 3) + i)
    return f"v_exp_f32 {r}, {r}"


def iteration(a, n, nt, boundary=None, first=False, hooks=None, kpos=0):
    hooks = hooks or {}
    has_next = n + 1 < nt
    rk = rd_k(n + 2) if n + 2 < nt else []
    rv = rd_v(n + 2) if n + 2 < nt else []

    def hk(k):
        for x in hooks.get(k, []):
            a(x)
        if k == kpos:
            for r in rk:
                a(r)
    if has_next:
        a(qk1(n + 1))
    if boundary:
        boundary()
    hk(0)
    for i in range(0, 4):
        a(ex(n, i))
    if has_next:
        a(qk2(n + 1))
    hk(1)
    for i in range(4, 8):
        a(ex(n, i))
    if not first:
        a(pv(n - 1, 1))
    hk(2)
    for r in rv:
        a(r)
    for i in range(8, 12):
        a(ex(n, i))
    a(pv(n, 0))
    a(f"s_waitcnt lgkmcnt({len(rv)})")
    hk(3)
    for i in range(12, 16):
        a(ex(n, i))


def setup_addr(a, vl, s_hh, tmp):
    a(f"v_lshlrev_b32 {vr(AR.DMA)}, 4, {vr(vl)}")
    a(f"v_add_u32 {vr(AR.KA)}, {s_hh}, {vr(AR.DMA)}")
    a(f"v_add_u32 {vr(AR.KA)}, {SLOT0}, {vr(AR.KA)}")
    t0, t1 = vr(tmp), vr(tmp + 1)
    a(f"v_and_b32 {t0}, 31, {vr(vl)}")
    a(f"v_cmp_gt_u32 vcc, 28, {t0}")
    a(f"v_min_u32 {t0}, 20, {t0}")
    a(f"v_cndmask_b32 {t0}, 4, {t0}, vcc")
    a(f"v_lshrrev_b32 {t1}, 5, {vr(vl)}")
    a(f"v_mul_u32_u24 {t1}, 21, {t1}")
    a(f"v_add_lshl_u32 {t0}, {t0}, {t1}, 4")
    a(f"v_add_u32 {vr(AR.VA)}, {s_hh}, {t0}")
    a(f"v_add_u32 {vr(AR.VA)}, {SLOT0+1024}, {vr(AR.VA)}")
    a(f"v_mov_b32 {vr(AR.IDX)}, 0xdddd")
```

```python
import attn as A

NFLAG = 13
FLAGS = 0
FSTRIDE = 32768
STAMP = 0x80000
SQ0 = 0xC0000
XSZ = 2621440
X0 = 0x100000
SS0 = X0 + 4 * XSZ
WF = SS0 + 2 * 65536
WQ = WF + XSZ
WOH = WQ + XSZ
FT = WOH + 819200
WOT = FT + 819200
KV0 = WOT + 819200
KVSZ = 256 * A.CHUNK
OM0 = KV0 + 2 * KVSZ
OXOFF = 16 * 131072
OSZ = XSZ
WSEND = OM0 + 2 * OSZ
```

```python
import math, struct, sys
from asmlib import *
import attn as A
from attn import AR
from layout import *

NAME = "interleave_layers__spectral_gfnet__mha_block__prompt"


def fbits(x):
    return "0x%08x" % struct.unpack("<I", struct.pack("<f", x))[0]


WS, SX, SWF, SWQ, SWO, SOUT, SDBG = "s[20:23]", "s[24:27]", "s[28:31]", "s[36:39]", "s[40:43]", "s[44:47]", "s[48:51]"
sB, sWV, sX, sR, sT, sG, sHALF, sCB, sLAYER, sCB0, sTB0 = "s2", "s3", "s52", "s53", "s54", "s55", "s56", "s57", "s58", "s59", "s60"
sXA, sXB, sKV, sO, sSS, sFL, sSTAMP = "s61", "s62", "s63", "s64", "s65", "s66", "s67"
vTID, vL, vN, vG, vL16 = "v0", "v1", "v2", "v3", "v4"

AMP = math.sqrt(2.0 / 640)
QS = 20 ** -0.5 * math.log2(math.e)
SPIN = 1 << 16

XS, FI, EP, TRS = 0, 81920, 133120, 147456
EPSS = EP + 80 * 144
GA, GB, GLO, GHI = 164, 52, 144, 112


class Gen:
    def __init__(self, stop=99, stamps=False):
        self.a = Asm()
        self.stop = stop
        self.stamps = stamps
        self.nstamp = 0

    def stamp(self, k):
        if not self.stamps:
            return
        a = self.a
        l = a.lab("Lst")
        a(f"""s_cmp_lg_u32 {sWV}, 0
        s_cbranch_scc1 {l}
        s_memrealtime s[90:91]
        s_memtime s[96:97]
        s_mul_i32 s92, {sLAYER}, 64
        s_add_u32 s92, s92, {sSTAMP}
        s_waitcnt lgkmcnt(0)
        v_mov_b32 v6, s90
        v_mov_b32 v7, 0
        s_mov_b64 s[94:95], exec
        s_mov_b64 exec, 1
        buffer_store_dword v6, v7, {WS}, s92 offen offset:{4*k}
        v_mov_b32 v6, s96
        buffer_store_dword v6, v7, {WS}, s92 offen offset:{128+4*k}
        s_mov_b64 exec, s[94:95]
        {l}:""")

    def prologue(self):
        a = self.a
        a(f"""s_cmp_ge_u32 {sB}, 256
        s_cbranch_scc1 Lend
        s_load_dwordx16 s[4:19], s[0:1], 0
        s_load_dwordx2 s[20:21], s[0:1], 64
        v_lshrrev_b32 v5, 6, v0
        v_and_b32 {vL}, 63, v0
        v_readfirstlane_b32 {sWV}, v5
        v_and_b32 {vN}, 15, v0
        v_lshrrev_b32 {vG}, 4, {vL}
        v_lshlrev_b32 {vL16}, 4, {vL}
        s_and_b32 {sX}, {sB}, 7
        s_lshr_b32 {sR}, {sB}, 3
        s_and_b32 s70, {sX}, 3
        s_lshl_b32 s70, s70, 2
        s_and_b32 s71, {sR}, 3
        s_add_u32 {sT}, s70, s71
        s_lshr_b32 {sHALF}, {sX}, 2
        s_lshr_b32 {sCB}, {sR}, 2
        s_lshl_b32 s70, {sHALF}, 3
        s_add_u32 {sG}, s70, {sCB}
        s_add_u32 s70, {sR}, {sX}
        s_and_b32 {sCB0}, s70, 7
        s_lshl_b32 s70, {sX}, 2
        s_lshr_b32 s71, {sR}, 3
        s_add_u32 {sTB0}, s70, s71
        s_mov_b32 {sLAYER}, 0
        s_lshl_b32 {sSTAMP}, {sB}, 8
        s_add_u32 {sSTAMP}, {sSTAMP}, {STAMP}
        s_mov_b32 s22, {WSEND}
        s_mov_b32 s23, 0x20000
        s_mov_b32 s26, {XSZ}
        s_mov_b32 s27, 0x20000
        s_mov_b32 s30, {2048*642}
        s_mov_b32 s31, 0x20000
        s_mov_b32 s38, {640*3840}
        s_mov_b32 s39, 0x20000
        s_mov_b32 s42, {640*1280}
        s_mov_b32 s43, 0x20000
        s_mov_b32 s46, {XSZ}
        s_mov_b32 s47, 0x20000
        s_mov_b32 s50, 256
        s_mov_b32 s51, 0x20000
        s_waitcnt lgkmcnt(0)
        s_mov_b64 s[24:25], s[4:5]
        s_cmp_lt_u32 {sB}, 128
        s_cselect_b32 s28, s6, s8
        s_cselect_b32 s29, s7, s9
        s_mov_b64 s[36:37], s[12:13]
        s_mov_b64 s[40:41], s[14:15]
        s_mov_b64 s[44:45], s[16:17]
        s_mov_b64 s[48:49], s[18:19]""")
        self.stamp(0)
        l = a.lab("Lz")
        a(f"""s_cmp_lg_u32 {sWV}, 7
        s_cbranch_scc1 {l}
        v_lshlrev_b32 v5, 15, {vL}
        s_lshl_b32 s70, {sB}, 7
        v_mov_b32 v8, 0
        v_mov_b32 v9, 0
        s_mov_b64 exec, {(1<<NFLAG)-1}
        buffer_store_dwordx2 v[8:9], v5, {WS}, s70 offen sc1
        s_and_b32 s70, {sB}, 1
        s_lshl_b32 s70, s70, 7
        v_mov_b32 v9, 1
        s_mov_b64 exec, 1
        s_waitcnt vmcnt(0)
        buffer_atomic_add v9, v8, {SDBG}, s70 offen sc1
        s_mov_b64 exec, -1
        {l}:""")

    def poll(self, srd, vaddr, soff, mask, target):
        a = self.a
        lp, dn = a.lab("Lp"), a.lab("Ld")
        a(f"""s_mov_b32 s88, {SPIN}
        s_mov_b32 exec_lo, {mask & 0xffffffff}
        s_mov_b32 exec_hi, {mask >> 32}
        {lp}:
        buffer_load_dword v6, {vaddr}, {srd}, {soff} offen sc1
        s_sub_u32 s88, s88, 1
        s_cbranch_scc1 {dn}
        s_waitcnt vmcnt(0)
        v_cmpx_gt_u32 vcc, {target}, v6
        s_cbranch_execnz {lp}
        {dn}:
        s_waitcnt vmcnt(0)
        s_mov_b64 exec, -1""")

    def handshake(self):
        a = self.a
        a(f"v_lshlrev_b32 v5, 7, {vL}")
        a("s_movk_i32 s89, 128")
        self.poll(SDBG, "v5", "0", 3, "s89")

    def signal(self, k, wave=0):
        a = self.a
        l = a.lab("Lsg")
        a(f"""s_cmp_lg_u32 {sWV}, {wave}
        s_cbranch_scc1 {l}
        s_lshl_b32 s70, {sB}, 7
        s_add_u32 s70, s70, {sFL}
        v_mov_b32 v6, 1
        v_mov_b32 v7, {k*FSTRIDE}
        s_mov_b64 exec, 1
        buffer_store_dword v6, v7, {WS}, s70 offen sc1
        s_mov_b64 exec, -1
        {l}:""")

    def gbar(self, k):
        a = self.a
        a("s_waitcnt vmcnt(0) lgkmcnt(0)\ns_barrier")
        self.signal(k)
        a(f"""v_lshlrev_b32 v5, 7, {vL}
        s_lshl_b32 s70, {sWV}, 12
        s_add_u32 s70, s70, {sFL}
        s_add_u32 s70, s70, {k*FSTRIDE}""")
        self.poll(WS, "v5", "s70", 0xffffffff, "1")
        a("s_barrier")

    def dma_rows(self, srd, rg, s_rh, s_base):
        a = self.a
        a(f"""s_and_b32 s72, {sWV}, 1
        s_lshl_b32 s72, s72, 3
        v_add_u32 v5, s72, {vG}
        v_xor_b32 v5, v5, {vN}
        v_mul_u32_u24 v6, {rg}, {vG}
        v_lshl_add_u32 v8, v5, 4, v6
        v_xor_b32 v5, 4, v5
        v_lshl_add_u32 v9, v5, 4, v6
        v_add_u32 v9, {s_rh}, v9
        s_lshl_b32 s72, {sWV}, 11""")
        for blk in range(5):
            for h in range(2):
                a(f"s_add_u32 m0, s72, {XS + blk*(16384-256) + h*1024}")
                a(f"buffer_load_dwordx4 v{8+h}, {srd}, {s_base} offen offset:{blk*256} lds")

    def read_rows_frags(self):
        a = self.a
        a(f"""s_lshl_b32 s72, {sWV}, 12
        v_xor_b32 v5, {vG}, {vN}
        v_lshlrev_b32 v5, 4, v5
        v_lshl_add_u32 v5, {vN}, 8, v5
        v_add_u32 v8, s72, v5""")
        for c in range(1, 4):
            a(f"v_xor_b32 v{8+c}, {64*c}, v8")
        for ks in range(20):
            if ks == 16:
                for c in range(4):
                    a(f"v_add_u32 v{12+c}, 0x10000, v{8+c}")
            if ks < 16:
                a(f"ds_read_b128 {vr(GA+4*ks,4)}, v{8+ks%4} offset:{XS+(ks//4)*16384}")
            else:
                a(f"ds_read_b128 {vr(GA+4*ks,4)}, v{12+ks%4} offset:{XS}")

    def gen_F(self, s_cb):
        a = self.a
        lp = a.lab("Lf")
        a(f"""s_mov_b32 s72, {sWV}
        s_mul_i32 s73, {s_cb}, 80
        v_add_u32 v10, s73, {vN}
        v_lshlrev_b32 v11, 3, {vG}
        s_mov_b32 s77, {fbits(1/640)}
        {lp}:
        s_mul_i32 s74, s72, 205
        s_lshr_b32 s74, s74, 10
        s_mul_i32 s75, s74, 5
        s_sub_u32 s75, s72, s75
        s_lshl_b32 s75, s75, 4
        s_lshl_b32 s74, s74, 5
        v_add_u32 v12, s75, v10
        v_add_u32 v13, s74, v11
        v_lshrrev_b32 v14, 1, v12
        v_and_b32 v15, 1, v12
        v_cmp_ne_u32 vcc, 0, v12
        v_cndmask_b32 v14, 0x140, v14, vcc
        v_cmp_ne_u32 vcc, 1, v12
        v_cndmask_b32 v15, 0, v15, vcc
        v_mul_u32_u24 v13, v13, v14
        v_mad_u32_u24 v13, v15, s78, v13
        v_cvt_f32_u32 v14, v14
        v_cvt_f32_u32 v13, v13
        v_mul_f32 v14, s77, v14
        v_mul_f32 v16, s77, v13""".replace("{lp}", lp))
        for e in range(1, 8):
            a(f"v_add_f32 v{16+e}, v{15+e}, v14")
        for e in range(8):
            a(f"v_cos_f32 v{16+e}, v{16+e}")
        a(f"s_lshl_b32 s74, s72, 10\nv_add_u32 v12, s74, {vL16}")
        for e in range(4):
            a(f"v_cvt_pk_bf16_f32 v{24+e}, v{16+2*e}, v{17+2*e}")
        a(f"""v_add_u32 v12, {FI}, v12
        s_add_u32 s72, s72, 8
        s_cmp_lt_u32 s72, 50
        ds_write_b128 v12, v[24:27]
        s_cbranch_scc1 {lp}""")

    def gcore(self, base, nks, dual, swap, init, await_a=None):
        a = self.a
        a(f"v_add_u32 v8, {base}, {vL16}")
        if nks > 12:
            a(f"v_add_u32 v9, {base+61440}, {vL16}")

        def rd(ks, ct):
            reg, off = ("v8", ks * 5120) if ks < 12 else ("v9", (ks - 12) * 5120)
            return f"ds_read_b128 {vr(GB+20*(ks%3)+4*ct,4)}, {reg} offset:{off+ct*1024}"

        def mf(acc, ka, ks, ct, first):
            x, y = vr(GA + 4 * ka, 4), vr(GB + 20 * (ks % 3) + 4 * ct, 4)
            if swap:
                x, y = y, x
            d = vr(acc + 4 * ct, 4)
            return f"v_mfma_f32_16x16x32_bf16 {d}, {x}, {y}, {'0' if first else d}"
        for ks in range(2):
            for ct in range(5):
                a(rd(ks, ct))
        for ks in range(nks):
            w = f"lgkmcnt({5 if ks + 1 < nks else 0})"
            if await_a:
                w = f"vmcnt({await_a(ks)}) " + w
            a("s_waitcnt " + w)
            for ct in range(5):
                a(mf(GLO, ks, ks, ct, ks == 0 and not init))
                if ks + 2 < nks:
                    a(rd(ks + 2, ct))
                if dual:
                    a(mf(GHI, ks + 10, ks, ct, ks == 0))

    def combine_dual_lane(self, s_cb):
        a = self.a
        a(f"""v_mov_b32 v8, {fbits(AMP)}
        v_lshlrev_b32 v5, 30, {vN}
        v_and_b32 v5, 0x80000000, v5
        v_xor_b32 v10, v5, v8
        s_cmp_eq_u32 {s_cb}, 0
        s_cselect_b32 s72, 2, 0
        v_cmp_le_u32 vcc, s72, {vN}
        v_cndmask_b32 v12, {fbits(AMP/math.sqrt(2))}, v8, vcc
        v_xor_b32 v14, v5, v12""")
        for ct in range(5):
            p, q = (12, 14) if ct == 0 else (8, 10)
            for h in range(2):
                lo, hi = vr(GLO + 4 * ct + 2 * h, 2), vr(GHI + 4 * ct + 2 * h, 2)
                a(f"v_pk_mul_f32 {lo}, {lo}, {vr(p,2)} op_sel_hi:[1,0]")
                a(f"v_pk_fma_f32 {lo}, {hi}, {vr(q,2)}, {lo} op_sel_hi:[1,0,1]")

    def ep_write(self, s_cb, ss):
        a = self.a
        a(f"""v_mul_u32_u24 v5, 144, {vN}
        v_lshl_add_u32 v5, {vG}, 3, v5
        s_lshl_b32 s72, {sWV}, 5
        s_add_u32 s72, s72, {EP}
        v_add_u32 v5, s72, v5""")
        for ct in range(5):
            a(f"v_cvt_pk_bf16_f32 v{16+2*ct}, v{GLO+4*ct}, v{GLO+4*ct+1}")
            a(f"v_cvt_pk_bf16_f32 v{17+2*ct}, v{GLO+4*ct+2}, v{GLO+4*ct+3}")
            a(f"ds_write_b64 v5, {vr(16+2*ct,2)} offset:{ct*16*144}")
        if not ss:
            return
        a(f"""s_cmp_eq_u32 {s_cb}, 0
        s_cselect_b32 s72, 1, 99
        v_cmp_ne_u32 vcc, s72, {vN}""")
        for r in range(4):
            a(f"v_cndmask_b32 v{GLO+r}, 0, v{GLO+r}, vcc")
        for h in range(2):
            a(f"v_pk_mul_f32 {vr(28+2*h,2)}, {vr(GLO+2*h,2)}, {vr(GLO+2*h,2)}")
        for ct in range(1, 5):
            for h in range(2):
                x = vr(GLO + 4 * ct + 2 * h, 2)
                a(f"v_pk_fma_f32 {vr(28+2*h,2)}, {x}, {x}, {vr(28+2*h,2)}")
        for sh in (8, 4, 2, 1):
            for r in range(4):
                a(f"v_add_f32 v{28+r}, v{28+r}, v{28+r} row_ror:{sh} row_mask:0xf bank_mask:0xf")
        a(f"""s_lshl_b32 s72, {sWV}, 6
        s_add_u32 s72, s72, {EPSS}
        v_add_u32 v5, s72, {vL}
        s_mov_b32 exec_lo, 0x00010001
        s_mov_b32 exec_hi, 0x00010001
        ds_write_b128 v5, v[28:31]
        s_mov_b64 exec, -1""")

    def ep_store_x(self, s_dst, s_ss):
        a = self.a
        l1, l2 = a.lab("Le"), a.lab("Le")
        a(f"""s_movk_i32 s79, 144
        v_lshrrev_b32 v5, 3, {vTID}
        v_and_b32 v6, 7, {vTID}
        v_lshlrev_b32 v6, 4, v6
        v_mad_u32_u24 v7, v5, s79, v6
        v_lshl_add_u32 v5, v5, 8, v6
        v_add_u32 v7, {EP}, v7
        ds_read_b128 v[8:11], v7
        s_cmp_gt_u32 {sWV}, 1
        s_cbranch_scc1 {l1}
        ds_read_b128 v[12:15], v7 offset:{64*144}
        v_add_u32 v6, 0x4000, v5
        s_waitcnt lgkmcnt(0)
        buffer_store_dwordx4 v[12:15], v6, {WS}, {s_dst} offen sc1
        {l1}:
        s_cmp_lg_u32 {sWV}, 2
        s_cbranch_scc1 {l2}
        v_add_u32 v6, {EPSS}, {vL16}
        s_mov_b64 exec, 0xffff
        ds_read_b128 v[12:15], v6
        s_waitcnt lgkmcnt(0)
        buffer_store_dwordx4 v[12:15], {vL16}, {WS}, {s_ss} offen sc1
        s_mov_b64 exec, -1
        {l2}:
        s_waitcnt lgkmcnt(0)
        buffer_store_dwordx4 v[8:11], v5, {WS}, {s_dst} offen sc1""")

    def wf_loads(self):
        a = self.a
        a(f"""s_bfe_u32 s72, {sB}, 0x20005
        s_bfe_u32 s73, {sB}, 0x10004
        s_bfe_u32 s74, {sB}, 0x20002
        s_and_b32 s75, {sB}, 3
        s_and_b32 s76, s72, 1
        s_lshl_b32 s76, s76, 5
        s_lshl_b32 s80, s73, 4
        s_add_u32 s76, s76, s80
        s_lshr_b32 s80, s72, 1
        s_add_u32 s76, s76, s80
        s_lshl_b32 s80, s74, 9
        s_add_u32 s76, s76, s80
        s_mul_i32 s76, s76, 642
        v_lshrrev_b32 v5, 3, {vL}
        v_mul_u32_u24 v5, 1284, v5
        v_add_u32 v5, s76, v5
        s_mul_i32 s75, s75, 80
        s_sub_u32 s80, {sWV}, 4
        s_lshl_b32 s80, s80, 3
        s_add_u32 s75, s75, s80
        v_and_b32 v6, 7, {vL}
        v_add_u32 v6, s75, v6
        v_lshl_add_u32 v213, v6, 1, v5
        v_cmp_ne_u32 vcc, 0, v6
        v_cndmask_b32 v6, 0x140, v6, vcc
        v_lshl_add_u32 v212, v6, 1, v5""")
        skip = a.lab("Lw")
        for rnd in range(3):
            if rnd == 2:
                a(f"s_cmp_gt_u32 {sWV}, 5\ns_cbranch_scc1 {skip}")
            for e in range(8):
                a(f"s_mov_b32 s80, {e*64*642}")
                a(f"buffer_load_ushort v{216+8*rnd+e}, v{212 if rnd == 0 else 213}, {SWF}, s80 offen offset:{64*rnd}")
        a(f"{skip}:")

    def wf_stores(self):
        a = self.a
        a(f"""s_bfe_u32 s72, {sB}, 0x20005
        s_lshl_b32 s72, s72, 11
        s_lshr_b32 s73, {sB}, 7
        s_lshl_b32 s73, s73, 10
        s_add_u32 s72, s72, s73
        s_bfe_u32 s73, {sB}, 0x20002
        s_lshl_b32 s73, s73, 8
        s_add_u32 s72, s72, s73
        s_bfe_u32 s73, {sB}, 0x10004
        s_lshl_b32 s73, s73, 7
        s_add_u32 s72, s72, s73
        s_and_b32 s73, {sB}, 3
        s_mul_i32 s73, s73, 80
        s_sub_u32 s74, {sWV}, 4
        s_lshl_b32 s75, s74, 3
        s_add_u32 s73, s73, s75
        s_lshl_b32 s73, s73, 13
        s_add_u32 s72, s72, s73
        s_add_u32 s72, s72, {WF}
        s_mul_i32 s74, s74, 3072
        s_add_u32 s74, s74, {TRS}
        v_lshrrev_b32 v5, 3, {vL}
        v_and_b32 v6, 7, {vL}
        v_lshlrev_b32 v8, 4, v5
        v_lshl_add_u32 v8, v6, 7, v8
        v_add_u32 v8, s74, v8
        v_add_u32 v9, s74, {vL16}
        v_lshlrev_b32 v10, 4, v6
        v_lshl_add_u32 v10, v5, 13, v10""")
        for i in range(12):
            a(f"v_lshl_or_b32 v{200+i}, v{217+2*i}, 16, v{216+2*i}")
        for rnd in range(3):
            a(f"ds_write_b128 v8, {vr(200+4*rnd,4)} offset:{1024*rnd}")
        a("s_waitcnt lgkmcnt(0)")
        for rnd in range(3):
            a(f"ds_read_b128 {vr(200+4*rnd,4)}, v9 offset:{1024*rnd}")
        skip = a.lab("Lw")
        a("s_waitcnt lgkmcnt(0)")
        for rnd in range(3):
            if rnd == 2:
                a(f"s_cmp_gt_u32 {sWV}, 5\ns_cbranch_scc1 {skip}")
            a(f"buffer_store_dwordx4 {vr(200+4*rnd,4)}, v10, {WS}, s72 offen sc1")
            a(f"s_add_u32 s72, s72, {32*8192}")
        a(f"{skip}:")

    def wq_dma(self):
        a = self.a
        a(f"""v_lshrrev_b32 v5, 3, {vL}
        v_bfe_u32 v6, {vL}, 4, 1
        s_and_b32 s72, {sWV}, 1
        s_lshl_b32 s72, s72, 1
        v_or_b32 v6, s72, v6
        v_lshlrev_b32 v6, 1, v6
        v_and_b32 v7, 7, {vL}
        v_xor_b32 v6, v6, v7
        v_mul_u32_u24 v5, 3840, v5
        v_lshl_add_u32 v5, v6, 4, v5
        s_mul_i32 s72, {sWV}, {8*3840}
        s_lshl_b32 s73, {sTB0}, 7
        s_add_u32 s72, s72, s73
        s_lshl_b32 s73, {sWV}, 10""")
        for it in range(10):
            a(f"s_add_u32 m0, s73, {XS + it*8192}")
            a(f"buffer_load_dwordx4 v5, {SWQ}, s72 offen lds")
            a(f"s_add_u32 s72, s72, {64*3840}")

    def phase0(self):
        a = self.a
        a(f"""s_movk_i32 s78, 160
        s_mov_b32 {sFL}, {FLAGS}
        s_lshr_b32 s80, {sTB0}, 1
        s_and_b32 s81, {sTB0}, 1
        s_and_b32 s82, s80, 7
        s_lshl_b32 s82, s82, 8
        s_lshr_b32 s83, s80, 3
        s_lshl_b32 s83, s83, 4
        s_add_u32 s82, s82, s83
        s_lshl_b32 s83, s81, 3
        s_add_u32 s82, s82, s83
        s_add_u32 s82, s82, {sWV}
        s_mul_i32 s82, s82, 1280
        s_mov_b32 s83, {128*1280}
        s_mul_i32 s84, s80, 163840
        s_mul_i32 s85, {sCB0}, 20480
        s_add_u32 s84, s84, s85
        s_lshl_b32 s85, s81, 7
        s_add_u32 s84, s84, s85
        s_add_u32 s84, s84, {X0}
        s_lshl_b32 s85, s80, 12
        s_lshl_b32 s86, {sCB0}, 9
        s_add_u32 s85, s85, s86
        s_lshl_b32 s86, s81, 8
        s_add_u32 s85, s85, s86
        s_add_u32 s85, s85, {SS0}""")
        self.dma_rows(SX, 32 * 1280, "s83", "s82")
        l1, l2, l3, l4, l5 = (a.lab("Lq") for _ in range(5))
        a(f"s_cmp_lt_u32 {sWV}, 4\ns_cbranch_scc1 {l1}")
        self.wf_loads()
        a(f"{l1}:")
        self.gen_F(sCB0)
        a("s_waitcnt vmcnt(0) lgkmcnt(0)\ns_barrier")
        self.stamp(1)
        a(f"s_cmp_ge_u32 {sWV}, 4\ns_cbranch_scc1 {l2}")
        self.read_rows_frags()
        a(f"{l2}:\ns_waitcnt lgkmcnt(0)\ns_barrier")
        a(f"s_cmp_ge_u32 {sTB0}, 30\ns_cbranch_scc1 {l5}")
        self.wq_dma()
        a(f"{l5}:")
        a(f"s_cmp_ge_u32 {sWV}, 4\ns_cbranch_scc1 {l3}")
        self.gcore(FI, 10, True, False, False)
        self.combine_dual_lane(sCB0)
        self.ep_write(sCB0, True)
        a(f"s_branch {l4}\n{l3}:")
        self.wf_stores()
        a(f"{l4}:\ns_waitcnt lgkmcnt(0)\ns_barrier")
        self.ep_store_x("s84", "s85")
        self.stamp(2)

    def job_wq(self):
        a = self.a
        end = a.lab("Lb")
        a("s_waitcnt vmcnt(0)\ns_barrier")
        a(f"s_cmp_ge_u32 {sTB0}, 30\ns_cbranch_scc1 {end}")
        a(f"s_cmp_ge_u32 {sWV}, 4\ns_cbranch_scc1 {end}")
        a(f"""v_bfe_u32 v5, {vL}, 2, 2
        v_lshl_add_u32 v6, {vG}, 3, v5
        v_lshlrev_b32 v6, 7, v6
        v_lshrrev_b32 v5, 1, v5
        v_and_b32 v7, 1, {vG}
        v_lshl_add_u32 v5, v7, 1, v5
        v_xor_b32 v5, {sWV}, v5
        v_lshl_add_u32 v6, v5, 5, v6
        v_and_b32 v5, 3, {vL}
        v_lshl_add_u32 v8, v5, 3, v6
        v_add_u32 v9, 0xa000, v8""")
        for ks in range(20):
            for i in range(2):
                reg, off = ("v8", ks * 4096) if ks < 10 else ("v9", (ks - 10) * 4096)
                a(f"ds_read_b64_tr_b16 {vr(GA+4*ks+2*i,2)}, {reg} offset:{XS+off+i*512}")
        self.gcore(FI, 10, True, True, False)
        a(f"""s_lshl_b32 s72, {sTB0}, 6
        s_lshl_b32 s73, {sWV}, 4
        s_add_u32 s72, s72, s73
        v_add_u32 v5, s72, {vN}
        s_cmp_ge_u32 {sTB0}, 10
        s_cselect_b32 s74, 1, 0
        s_cmp_ge_u32 {sTB0}, 20
        s_cselect_b32 s74, 2, s74
        s_mul_i32 s73, s74, 640
        v_subrev_u32 v5, s73, v5
        v_mul_u32_u24 v6, 3277, v5
        v_lshrrev_b32 v6, 16, v6
        v_mul_u32_u24 v7, 20, v6
        v_sub_u32 v7, v5, v7
        v_lshrrev_b32 v8, 1, v6
        s_mov_b32 s73, 163840
        v_mul_lo_u32 v8, v8, s73
        v_and_b32 v6, 1, v6
        v_lshl_add_u32 v8, v6, 11, v8
        s_lshl_b32 s75, s74, 4
        v_add_u32 v9, s75, v7
        v_bfe_u32 v10, v7, 1, 1
        v_and_b32 v11, 1, v7
        v_lshl_add_u32 v10, v10, 2, v11
        s_lshl_b32 s75, s74, 1
        s_add_u32 s75, s75, 64
        v_add_u32 v10, s75, v10
        v_cmp_gt_u32 vcc, 16, v7
        v_cndmask_b32 v9, v10, v9, vcc
        v_add_u32 v10, 72, v7
        s_cmp_eq_u32 s74, 2
        s_cselect_b64 vcc, -1, 0
        v_cndmask_b32 v9, v9, v10, vcc
        v_lshl_add_u32 v8, v9, 4, v8
        v_lshrrev_b32 v5, 1, {vG}
        v_lshl_add_u32 v8, v5, 9, v8
        v_and_b32 v5, 1, {vG}
        v_lshl_add_u32 v8, v5, 12, v8
        s_cmp_eq_u32 s74, 0
        s_cselect_b32 s75, {fbits(AMP*QS)}, s87
        s_mul_i32 s72, {sCB0}, 20480
        s_add_u32 s72, s72, {WQ}
        v_mov_b32 v10, s75""".replace("s_cmp_eq_u32 s74, 0", f"s_mov_b32 s87, {fbits(AMP)}\ns_cmp_eq_u32 s74, 0"))
        for ct in range(5):
            lo, hi = GLO + 4 * ct, GHI + 4 * ct
            a(f"v_pk_add_f32 {vr(lo,2)}, {vr(lo,2)}, {vr(hi,2)}")
            a(f"v_pk_add_f32 {vr(lo+2,2)}, {vr(lo+2,2)}, {vr(hi+2,2)} neg_lo:[0,1] neg_hi:[0,1]")
            for h in range(2):
                a(f"v_pk_mul_f32 {vr(lo+2*h,2)}, {vr(lo+2*h,2)}, v[10:11] op_sel_hi:[1,0]")
        a(f"""s_cmp_eq_u32 {sCB0}, 0
        s_cselect_b32 s73, 16, 0
        v_cmp_le_u32 vcc, s73, {vL}
        v_mul_f32 v5, {fbits(1/math.sqrt(2))}, v{GLO}
        v_cndmask_b32 v{GLO}, v5, v{GLO}, vcc
        v_cndmask_b32 v{GLO+1}, 0, v{GLO+1}, vcc""")
        for ct in range(5):
            a(f"v_cvt_pk_bf16_f32 v{16+2*ct}, v{GLO+4*ct}, v{GLO+4*ct+1}")
            a(f"v_cvt_pk_bf16_f32 v{17+2*ct}, v{GLO+4*ct+2}, v{GLO+4*ct+3}")
        for p in range(3):
            a(f"v_permlane16_swap_b32 v{16+4*p}, v{18+4*p}")
            a(f"v_permlane16_swap_b32 v{17+4*p}, v{19+4*p}")
            if p == 2:
                a("s_mov_b32 exec_lo, 0xffff\ns_mov_b32 exec_hi, 0xffff")
            a(f"buffer_store_dwordx4 {vr(16+4*p,4)}, v8, {WS}, s72 offen sc1")
            a("s_add_u32 s72, s72, 8192")
        a(f"s_mov_b64 exec, -1\n{end}:")

    def jobs_idle(self):
        a = self.a
        l0, l1, l2, l3 = (a.lab("Lc") for _ in range(4))
        a(f"""s_sub_u32 s80, {sR}, 12
        s_cmp_ge_u32 {sR}, 24
        s_cselect_b32 s80, {sX}, s80
        s_cmp_ge_u32 s80, 10
        s_cbranch_scc1 {l0}
        s_lshl_b32 s81, s80, 1
        s_lshr_b32 s82, {sWV}, 2
        s_add_u32 s81, s81, s82
        s_and_b32 s82, {sWV}, 3
        s_lshl_b32 s83, s81, 1
        s_lshr_b32 s84, s82, 1
        s_add_u32 s83, s83, s84
        s_mul_i32 s83, s83, 20
        s_and_b32 s84, s82, 1
        s_lshl_b32 s84, s84, 2
        s_add_u32 s83, s83, s84
        s_sub_u32 s84, s81, 16
        s_lshl_b32 s84, s84, 3
        s_lshl_b32 s85, s82, 1
        s_add_u32 s84, s84, s85
        s_mul_i32 s84, s84, 20
        s_add_u32 s84, s84, 16
        s_cmp_lt_u32 s80, 8
        s_cselect_b32 s82, s83, s84
        s_cselect_b32 s83, 8, 20
        s_mul_i32 s82, s82, 1280
        s_mul_i32 s83, s83, 1280""")
        self.dma_rows(SWO, 1280, "s83", "s82")
        a("s_waitcnt vmcnt(0)\ns_barrier")
        a(f"s_cmp_ge_u32 {sWV}, 4\ns_cbranch_scc1 {l1}")
        self.read_rows_frags()
        self.gcore(FI, 10, True, False, False)
        self.combine_dual_lane(sCB0)
        self.ep_write(sCB0, False)
        a(f"{l1}:\ns_waitcnt lgkmcnt(0)\ns_barrier")
        a(f"""s_mul_i32 s81, {sCB0}, 102400
        s_mul_i32 s82, s80, 10240
        s_add_u32 s81, s81, s82
        s_add_u32 s81, s81, {WOH}
        v_mul_u32_u24 v5, 144, {vN}
        v_lshl_add_u32 v5, {vG}, 4, v5
        s_mov_b32 s82, {sWV}
        {l2}:
        s_cmp_ge_u32 s82, 5
        s_cselect_b32 s83, {64 - 5*16*144}, 0
        s_mul_i32 s84, s82, {16*144}
        s_add_u32 s83, s83, s84
        s_add_u32 s83, s83, {EP}
        v_add_u32 v6, s83, v5
        ds_read_b128 v[8:11], v6
        s_lshl_b32 s84, s82, 10
        s_add_u32 s84, s84, s81
        s_add_u32 s82, s82, 8
        s_cmp_lt_u32 s82, 10
        s_waitcnt lgkmcnt(0)
        buffer_store_dwordx4 v[8:11], {vL16}, {WS}, s84 offen sc1
        s_cbranch_scc1 {l2}
        {l0}:
        s_sub_u32 s80, {sR}, 20
        s_lshl_b32 s80, s80, 3
        s_add_u32 s80, s80, {sX}
        s_lshl_b32 s80, s80, 3
        s_add_u32 s80, s80, {sWV}
        s_mov_b32 s77, {fbits(1/640)}
        {l3}:
        s_mul_i32 s81, s80, 656
        s_lshr_b32 s81, s81, 16
        s_mul_i32 s82, s81, 100
        s_sub_u32 s82, s80, s82
        s_mul_i32 s83, s82, 205
        s_lshr_b32 s83, s83, 10
        s_mul_i32 s84, s83, 5
        s_sub_u32 s84, s82, s84
        s_mul_i32 s81, s81, 80
        s_lshl_b32 s84, s84, 4
        s_add_u32 s81, s81, s84
        v_add_u32 v8, s81, {vN}
        s_mul_i32 s84, s83, 40
        s_sub_u32 s85, s83, 16
        s_mul_i32 s85, s85, 160
        s_add_u32 s85, s85, 16
        s_cmp_lt_u32 s83, 16
        s_cselect_b32 s84, s84, s85
        s_cselect_b32 s85, 8, 20
        s_cselect_b64 vcc, -1, 0
        v_lshrrev_b32 v5, 1, {vG}
        v_mul_u32_u24 v5, 20, v5
        v_and_b32 v6, 1, {vG}
        v_lshl_add_u32 v5, v6, 2, v5
        v_mul_u32_u24 v6, 40, {vG}
        v_cndmask_b32 v5, v6, v5, vcc
        v_mul_u32_u24 v5, 1280, v5
        v_lshl_add_u32 v5, v8, 1, v5
        s_mul_i32 s84, s84, 1280
        s_mul_i32 s85, s85, 1280
        s_add_u32 s85, s85, s84""")
        for e in range(8):
            a(f"buffer_load_ushort v{32+e}, v5, {SWO}, {'s84' if e < 4 else 's85'} offen offset:{1280*(e%4)}")
        a(f"""v_and_b32 v5, 1, {vG}
        v_lshrrev_b32 v6, 1, {vG}
        v_lshlrev_b32 v5, 3, v5
        v_lshl_add_u32 v5, v6, 2, v5
        s_lshl_b32 s84, s83, 4
        v_add_u32 v5, s84, v5
        v_cmp_ne_u32 vcc, 0, v5
        v_cndmask_b32 v12, 0x140, v5, vcc""")
        for e in range(1, 4):
            a(f"v_add_u32 v{12+e}, {e}, v5")
        for e in range(4):
            a(f"v_mul_u32_u24 v{12+e}, v{12+e}, v8")
            a(f"v_cvt_f32_u32 v{12+e}, v{12+e}")
            a(f"v_mul_f32 v{12+e}, s77, v{12+e}")
            a(f"v_fract_f32 v{12+e}, v{12+e}")
            a(f"v_cos_f32 v{16+2*e}, v{12+e}")
            a(f"v_sin_f32 v{17+2*e}, -v{12+e}")
        a(f"""v_mul_f32 v5, {fbits(1/math.sqrt(2))}, v16
        v_cndmask_b32 v16, v5, v16, vcc
        v_cndmask_b32 v17, {fbits(1/math.sqrt(2))}, v17, vcc""")
        for e in range(4):
            a(f"v_cvt_pk_bf16_f32 v{24+e}, v{16+2*e}, v{17+2*e}")
        a(f"""s_lshl_b32 s84, s80, 10
        s_add_u32 s85, s84, {FT}
        s_add_u32 s84, s84, {WOT}
        buffer_store_dwordx4 v[24:27], {vL16}, {WS}, s85 offen sc1
        s_waitcnt vmcnt(1)
        v_lshl_or_b32 v28, v33, 16, v32
        v_lshl_or_b32 v29, v35, 16, v34
        v_lshl_or_b32 v30, v37, 16, v36
        v_lshl_or_b32 v31, v39, 16, v38
        buffer_store_dwordx4 v[28:31], {vL16}, {WS}, s84 offen sc1
        s_add_u32 s80, s80, 768
        s_cmp_lt_u32 s80, 800
        s_waitcnt vmcnt(0)
        s_cbranch_scc1 {l3}""")

    CL = 81920
    RS, ZS, EX = 18432, 26624, 43008
    C1, S1, N1, C2, S2, N2, S4E, C4O, S4O = 16, 20, 24, 28, 36, 44, 52, 60, 68
    T1C, T1S, T2C, T2S, WRAW, WR, WI = 76, 84, 92, 100, 108, 116, 124
    URAW, R0, R1, RS0, RS1, DR, DI, TR, TI, BR, BI, AF = 132, 140, 148, 156, 164, 172, 180, 188, 196, 204, 208, 212

    def col_consts(self):
        a = self.a
        CL = self.CL
        skip = a.lab("Lk")
        a(f"""s_cmp_ge_u32 {sWV}, 6
        s_cbranch_scc1 {skip}
        v_and_b32 v5, 31, {vL}
        v_lshrrev_b32 v6, 5, {vL}
        v_lshl_add_u32 v7, v5, 1, v6
        s_lshl_b32 s72, {sWV}, 3
        v_mul_u32_u24 v8, s72, v7
        s_sub_u32 s73, {sWV}, 4
        s_lshl_b32 s73, s73, 5
        v_lshl_add_u32 v9, v6, 4, s73
        v_add_u32 v9, 1, v9
        v_mul_u32_u24 v9, v9, v5
        v_lshlrev_b32 v10, 1, v5
        s_cmp_lt_u32 {sWV}, 4
        s_cselect_b64 vcc, -1, 0
        v_cndmask_b32 v8, v9, v8, vcc
        v_cndmask_b32 v7, v10, v7, vcc
        v_cvt_f32_u32 v8, v8
        v_cvt_f32_u32 v7, v7
        v_mul_f32 v16, {fbits(1/64)}, v8
        v_mul_f32 v7, {fbits(1/64)}, v7""")
        for e in range(1, 8):
            a(f"v_add_f32 v{16+e}, v{15+e}, v7")
        for e in range(8):
            a(f"v_sin_f32 v{24+e}, v{16+e}")
            a(f"v_cos_f32 v{16+e}, v{16+e}")
        a(f"v_lshlrev_b32 v5, 4, {vTID}\nv_add_u32 v5, {CL}, v5")
        for e in range(4):
            a(f"v_cvt_pk_bf16_f32 v{32+e}, v{16+2*e}, v{17+2*e}")
            a(f"v_cvt_pk_bf16_f32 v{36+e}, v{24+2*e}, v{25+2*e}")
            a(f"v_xor_b32 v{40+e}, 0x80008000, v{36+e}")
        for p in range(3):
            a(f"ds_write_b128 v5, {vr(32+4*p,4)} offset:{6144*p}")
        a(f"""{skip}:
        s_bfe_u32 s72, {sWV}, 0x10001
        s_and_b32 s73, {sWV}, 1
        s_lshl_b32 s74, s73, 5
        s_add_u32 s74, s74, s72
        v_lshl_add_u32 v5, {vN}, 1, s74
        v_cvt_f32_u32 v5, v5
        v_mul_f32 v5, {fbits(1/2048)}, v5
        v_lshlrev_b32 v6, 3, {vG}
        v_cvt_f32_u32 v7, v6
        v_mul_f32 v{self.T1C}, v7, v5""")
        for e in range(1, 8):
            a(f"v_add_f32 v{self.T1C+e}, v{self.T1C+e-1}, v5")
        for e in range(8):
            a(f"v_sin_f32 v{self.T1S+e}, -v{self.T1C+e}")
            a(f"v_cos_f32 v{self.T1C+e}, v{self.T1C+e}")
        a(f"""v_add_u32 v6, s74, v6
        v_cvt_f32_u32 v6, v6
        v_lshrrev_b32 v7, 2, {vN}
        v_and_b32 v8, 3, {vN}
        v_lshl_add_u32 v8, v7, 3, v8
        v_cvt_f32_u32 v7, v8
        v_mul_f32 v9, {fbits(1/2048)}, v7
        v_add_f32 v10, {fbits(4/2048)}, v9""")
        for t in range(2):
            a(f"v_mul_f32 v{self.T2C+4*t}, v6, v{9+t}")
            a(f"v_add_f32 v{9+t}, v{9+t}, v{9+t}")
            for r in range(1, 4):
                a(f"v_add_f32 v{self.T2C+4*t+r}, v{self.T2C+4*t+r-1}, v{9+t}")
        for e in range(8):
            a(f"v_sin_f32 v{self.T2S+e}, v{self.T2C+e}")
            a(f"v_cos_f32 v{self.T2C+e}, v{self.T2C+e}")
        a(f"""s_waitcnt lgkmcnt(0)
        s_barrier
        s_and_b32 s74, {sWV}, 3
        s_lshl_b32 s74, s74, 8
        s_add_u32 s74, s74, {CL}
        v_lshlrev_b32 v5, 10, {vG}
        v_lshl_add_u32 v6, {vN}, 4, v5
        v_add_u32 v6, s74, v6
        v_lshl_add_u32 v5, v8, 4, v5
        v_add_u32 v5, {CL}, v5
        s_mul_i32 s75, s73, 6144
        s_sub_u32 s75, 12288, s75
        v_add_u32 v7, s75, v5
        v_lshlrev_b32 v9, 9, {vG}
        v_lshl_add_u32 v9, v8, 4, v9
        v_add_u32 v9, {CL+4096}, v9
        v_add_u32 v10, s75, v9""")
        for p, r in enumerate((self.C1, self.S1, self.N1)):
            a(f"ds_read_b128 {vr(r,4)}, v6 offset:{6144*p}")
        for t in range(2):
            for p, r in enumerate((self.C2, self.S2, self.N2)):
                a(f"ds_read_b128 {vr(r+4*t,4)}, v5 offset:{6144*p+64*t}")
            a(f"ds_read_b128 {vr(self.S4E+4*t,4)}, v7 offset:{64*t}")
            a(f"ds_read_b128 {vr(self.C4O+4*t,4)}, v9 offset:{64*t}")
            a(f"ds_read_b128 {vr(self.S4O+4*t,4)}, v10 offset:{64*t}")

    def unpack(self, dst, src, n):
        for i in range(n):
            self.a(f"v_lshlrev_b32 v{dst+2*i}, 16, v{src+i}")
            self.a(f"v_and_b32 v{dst+2*i+1}, 0xffff0000, v{src+i}")

    def cmul_pack(self, c, s):
        a = self.a
        for h in range(4):
            dr, di, tr, ti = (vr(x + 2 * h, 2) for x in (self.DR, self.DI, self.TR, self.TI))
            cc, ss = vr(c + 2 * h, 2), vr(s + 2 * h, 2)
            a(f"v_pk_mul_f32 {tr}, {dr}, {cc}")
            a(f"v_pk_mul_f32 {ti}, {di}, {cc}")
            a(f"v_pk_fma_f32 {tr}, {di}, {ss}, {tr} neg_lo:[1,0,0] neg_hi:[1,0,0]")
            a(f"v_pk_fma_f32 {ti}, {dr}, {ss}, {ti}")
        for h in range(4):
            a(f"v_cvt_pk_bf16_f32 v{self.BR+h}, v{self.TR+2*h}, v{self.TR+2*h+1}")
            a(f"v_cvt_pk_bf16_f32 v{self.BI+h}, v{self.TI+2*h}, v{self.TI+2*h+1}")

    def mm(self, d, x, y, first):
        self.a(f"v_mfma_f32_16x16x32_bf16 {vr(d,4)}, {vr(x,4)}, {vr(y,4)}, {'0' if first else vr(d,4)}")

    def col_main(self):
        a = self.a
        CL = self.CL
        nz = a.lab("Lnz")
        a(f"""s_mul_i32 s80, {sX}, 20
        s_add_u32 s80, s80, {sR}
        s_lshl_b32 s80, s80, 1
        s_lshr_b32 s81, {sWV}, 2
        s_add_u32 s80, s80, s81
        s_bfe_u32 s72, {sWV}, 0x10001
        s_and_b32 s73, {sWV}, 1
        s_lshl_b32 s82, s80, 1
        s_add_u32 s82, s82, s73
        s_lshl_b32 s83, s82, 8
        s_mul_i32 s84, s72, {8*163840}
        s_add_u32 s83, s83, s84
        s_add_u32 s84, s83, {sXA}
        s_add_u32 s85, s84, {4*163840}
        s_mov_b32 s74, 163840
        v_mul_lo_u32 v11, {vG}, s74
        v_lshl_add_u32 v11, {vN}, 4, v11
        v_lshrrev_b32 v5, 5, {vTID}
        v_and_b32 v6, 31, {vTID}
        v_lshlrev_b32 v6, 4, v6
        v_lshl_add_u32 v5, v5, 12, v6
        s_lshl_b32 s86, s80, 13
        s_and_b32 s74, {sWV}, 3
        s_lshl_b32 s74, s74, 11
        s_add_u32 s86, s86, s74
        s_add_u32 s86, s86, {WF}""")
        for cb in range(8):
            a(f"buffer_load_dwordx4 {vr(self.TR+4*cb,4)}, v5, {WS}, {sSS} offen offset:{512*cb} sc1")
        a(f"""buffer_load_dwordx4 {vr(self.URAW,4)}, v11, {WS}, s84 offen sc1
        buffer_load_dwordx4 {vr(self.URAW+4,4)}, v11, {WS}, s85 offen sc1
        buffer_load_dwordx4 {vr(self.WRAW,4)}, {vL16}, {WS}, s86 offen sc1
        buffer_load_dwordx4 {vr(self.WRAW+4,4)}, {vL16}, {WS}, s86 offen offset:1024 sc1
        v_lshlrev_b32 v12, 4, {vTID}
        v_add_u32 v12, {CL+self.RS}, v12
        s_lshl_b32 s74, s72, 12
        s_add_u32 s74, s74, {CL+self.RS}
        v_lshlrev_b32 v13, 9, {vG}
        v_lshl_add_u32 v13, {vN}, 5, v13
        v_add_u32 v13, s74, v13
        s_lshl_b32 s75, s81, 13
        s_lshl_b32 s74, s73, 11
        s_add_u32 s74, s74, s75
        s_lshl_b32 s76, s72, 7
        s_add_u32 s74, s74, s76
        s_add_u32 s74, s74, {CL+self.ZS}
        v_bfe_u32 v5, {vN}, 2, 1
        v_lshlrev_b32 v5, 10, v5
        v_lshl_add_u32 v5, {vG}, 8, v5
        v_lshrrev_b32 v6, 3, {vN}
        v_lshl_add_u32 v5, v6, 6, v5
        v_and_b32 v6, 3, {vN}
        v_lshl_add_u32 v5, v6, 4, v5
        v_add_u32 v14, s74, v5
        s_lshl_b32 s74, s72, 12
        s_add_u32 s74, s74, s75
        s_add_u32 s74, s74, {CL}
        v_add_u32 v15, s74, {vL16}
        s_lshl_b32 s76, s73, 9
        s_add_u32 s74, s74, s76
        v_lshrrev_b32 v5, 3, {vN}
        v_lshlrev_b32 v5, 10, v5
        v_lshl_add_u32 v5, v6, 4, v5
        v_bfe_u32 v6, {vN}, 2, 1
        v_lshl_add_u32 v5, v6, 7, v5
        v_lshrrev_b32 v6, 1, {vG}
        v_lshl_add_u32 v5, v6, 8, v5
        v_and_b32 v6, 1, {vG}
        v_lshl_add_u32 v5, v6, 3, v5
        v_add_u32 v8, s74, v5
        s_lshl_b32 s74, s72, 10
        s_add_u32 s74, s74, s75
        s_lshl_b32 s76, s73, 11
        s_add_u32 s74, s74, s76
        v_add_u32 v9, s74, {vL16}
        v_xor_b32 v10, 0x800, v9
        v_add_u32 v9, {CL}, v9
        v_add_u32 v10, {CL}, v10
        s_mov_b32 s76, {fbits(1/640)}
        v_mov_b32 v7, {fbits(1e-5)}
        s_waitcnt vmcnt(4)""")
        T = self.TR
        for st in (16, 8, 4):
            for i in range(0, st, 2):
                a(f"v_pk_add_f32 {vr(T+i,2)}, {vr(T+i,2)}, {vr(T+st+i,2)}")
        for i in range(4):
            a(f"v_fma_f32 v{T+i}, v{T+i}, s76, v7")
        for i in range(4):
            a(f"v_rsq_f32 v{T+i}, v{T+i}")
        a(f"s_nop 0\nds_write_b128 v12, {vr(T,4)}\ns_waitcnt vmcnt(2)")
        self.unpack(self.R0, self.URAW, 8)
        a("s_waitcnt lgkmcnt(0)\ns_barrier")
        for i in range(4):
            a(f"ds_read_b128 {vr(self.RS0+4*i,4)}, v13 offset:{(i//2)*2048+(i%2)*16}")
        a("s_waitcnt vmcnt(0)")
        self.unpack(self.WR, self.WRAW, 8)
        a(f"""s_mov_b32 s87, {fbits(1/2048)}
        s_waitcnt lgkmcnt(0)
        s_cmp_lg_u32 s82, 1
        s_cbranch_scc1 {nz}
        s_mov_b32 s87, 0""")
        for i in range(16):
            a(f"v_mov_b32 v{self.RS0+i}, 0")
        a(f"{nz}:")
        for h in range(4):
            p, r0, r1, x1 = vr(self.DR + 2 * h, 2), vr(self.RS0 + 2 * h, 2), vr(self.RS1 + 2 * h, 2), vr(self.R1 + 2 * h, 2)
            a(f"v_pk_mul_f32 {p}, {vr(self.R0+2*h,2)}, {r0}")
            a(f"v_pk_fma_f32 {vr(self.TR+2*h,2)}, {x1}, {r1}, {p}")
            a(f"v_pk_fma_f32 {vr(self.TI+2*h,2)}, {x1}, {r1}, {p} neg_lo:[1,0,0] neg_hi:[1,0,0]")
        for h in range(4):
            a(f"v_cvt_pk_bf16_f32 v{self.BR+h}, v{self.TR+2*h}, v{self.TR+2*h+1}")
            a(f"v_cvt_pk_bf16_f32 v{self.BI+h}, v{self.TI+2*h}, v{self.TI+2*h+1}")
        a(f"""ds_write_b128 v14, {vr(self.BR,4)}
        ds_write_b128 v14, {vr(self.BI,4)} offset:4096
        s_waitcnt lgkmcnt(0)
        s_barrier""")
        AF, DR, DI, BR, BI = self.AF, self.DR, self.DI, self.BR, self.BI
        for i in range(4):
            a(f"ds_read_b128 {vr(AF+4*i,4)}, v15 offset:{self.ZS+1024*i}")
        a("s_waitcnt lgkmcnt(2)")
        for t in range(2):
            self.mm(DR + 4 * t, AF + 4 * t, self.C1, True)
            self.mm(DI + 4 * t, AF + 4 * t, self.N1, True)
        a("s_waitcnt lgkmcnt(0)")
        for t in range(2):
            self.mm(DR + 4 * t, AF + 8 + 4 * t, self.S1, False)
            self.mm(DI + 4 * t, AF + 8 + 4 * t, self.C1, False)
        self.cmul_pack(self.T1C, self.T1S)
        for t in range(2):
            self.mm(DR + 4 * t, self.C2 + 4 * t, BR, True)
            self.mm(DI + 4 * t, self.N2 + 4 * t, BR, True)
        for t in range(2):
            self.mm(DR + 4 * t, self.S2 + 4 * t, BI, False)
            self.mm(DI + 4 * t, self.C2 + 4 * t, BI, False)
        self.cmul_pack(self.WR, self.WI)
        for t in range(2):
            self.mm(DR + 4 * t, BR, self.C2 + 4 * t, True)
            self.mm(DI + 4 * t, BR, self.S2 + 4 * t, True)
        for t in range(2):
            self.mm(DR + 4 * t, BI, self.N2 + 4 * t, False)
            self.mm(DI + 4 * t, BI, self.C2 + 4 * t, False)
        self.cmul_pack(self.T2C, self.T2S)
        for t in range(2):
            a(f"ds_write_b64 v8, {vr(BR+2*t,2)} offset:{self.EX+64*t}")
            a(f"ds_write_b64 v8, {vr(BI+2*t,2)} offset:{self.EX+2048+64*t}")
        a("s_waitcnt lgkmcnt(0)\ns_barrier")
        for p in range(2):
            a(f"ds_read_b128 {vr(AF+8*p,4)}, v9 offset:{self.EX+4096*p}")
        for p in range(2):
            a(f"ds_read_b128 {vr(AF+8*p+4,4)}, v10 offset:{self.EX+4096*p}")
        a(f"""s_add_u32 s84, s83, {sXB}
        s_add_u32 s85, s84, {4*163840}
        v_mov_b32 v6, s87
        s_waitcnt lgkmcnt(2)""")
        for t in range(2):
            self.mm(DR + 4 * t, self.C2 + 4 * t, AF, True)
            self.mm(DI + 4 * t, self.C4O + 4 * t, AF + 8, True)
        a("s_waitcnt lgkmcnt(0)")
        for t in range(2):
            self.mm(DR + 4 * t, self.S4E + 4 * t, AF + 4, False)
            self.mm(DI + 4 * t, self.S4O + 4 * t, AF + 12, False)
        for h in range(4):
            e, o, tr, ti = (vr(x + 2 * h, 2) for x in (DR, DI, self.TR, self.TI))
            a(f"v_pk_add_f32 {tr}, {e}, {o}")
            a(f"v_pk_add_f32 {ti}, {e}, {o} neg_lo:[0,1] neg_hi:[0,1]")
            a(f"v_pk_fma_f32 {tr}, {tr}, v[6:7], {vr(self.R0+2*h,2)} op_sel_hi:[1,0,1]")
            a(f"v_pk_fma_f32 {ti}, {ti}, v[6:7], {vr(self.R1+2*h,2)} op_sel_hi:[1,0,1]")
        for h in range(4):
            a(f"v_cvt_pk_bf16_f32 v{BR+h}, v{self.TR+2*h}, v{self.TR+2*h+1}")
        a(f"buffer_store_dwordx4 {vr(BR,4)}, v11, {WS}, s84 offen sc1")
        for h in range(4):
            a(f"v_cvt_pk_bf16_f32 v{BI+h}, v{self.TI+2*h}, v{self.TI+2*h+1}")
        a(f"buffer_store_dwordx4 {vr(BI,4)}, v11, {WS}, s85 offen sc1")

    XR = 81920
    VSCR = 81920
    NRM = 98304
    QACC, QW, QX, QSS, QDM = 52, 84, 100, 108, 110

    def qkv_setup(self):
        a = self.a
        XR = self.XR
        a(f"""s_and_b32 s72, {sWV}, 3
        s_lshl_b32 s73, s72, 12
        s_mul_i32 s74, {sT}, 163840
        s_add_u32 s74, s74, {sXB}
        s_mul_i32 s75, {sG}, 163840
        s_add_u32 s75, s75, {WQ}
        s_cmp_lt_u32 {sWV}, 4
        s_cselect_b32 s80, s74, s75
        s_cselect_b32 s81, {XR}, 0
        s_cselect_b64 vcc, -1, 0
        s_add_u32 s80, s80, s73
        s_add_u32 s81, s81, s73
        s_and_b32 s74, {sWV}, 1
        s_lshl_b32 s74, s74, 1
        v_lshlrev_b32 v5, 2, {vG}
        v_xor_b32 v5, s74, v5
        v_xor_b32 v5, v5, {vL}
        v_lshlrev_b32 v5, 4, v5
        v_cndmask_b32 v{self.QDM}, {vL16}, v5, vcc
        s_lshr_b32 s74, {sWV}, 2
        s_lshl_b32 s74, s74, 11
        v_add_u32 v112, s74, {vL16}
        v_add_u32 v113, 0xa000, v112
        v_bfe_u32 v5, {vL}, 2, 2
        v_lshrrev_b32 v6, 5, {vL}
        v_lshl_add_u32 v6, v6, 3, v5
        v_lshlrev_b32 v6, 8, v6
        v_and_b32 v7, 3, {vL}
        v_lshl_add_u32 v6, v7, 3, v6
        v_xor_b32 v7, s72, v5
        v_lshl_add_u32 v6, v7, 6, v6
        v_and_b32 v7, 1, {vG}
        v_lshl_add_u32 v6, v7, 5, v6
        v_add_u32 v114, {XR}, v6
        v_xor_b32 v115, 32, v114
        v_add_u32 v116, 0xa000, v114
        v_add_u32 v117, 0xa000, v115
        v_lshrrev_b32 v6, 1, {vG}
        v_lshl_add_u32 v6, v6, 3, v5
        v_lshlrev_b32 v6, 8, v6
        v_lshl_add_u32 v6, v7, 12, v6
        s_lshl_b32 s74, {sHALF}, 2
        s_add_u32 s74, s74, s72
        v_lshlrev_b32 v5, 1, v5
        v_xor_b32 v5, v5, v7
        v_xor_b32 v5, s74, v5
        v_lshl_add_u32 v6, v5, 5, v6
        v_and_b32 v7, 3, {vL}
        v_lshl_add_u32 v6, v7, 3, v6
        v_add_u32 v118, {XR}, v6
        v_add_u32 v119, 0xa000, v118
        v_mov_b32 v120, 0xffff
        v_cmp_gt_u32 vcc, 32, {vL}
        v_cndmask_b32 v120, -1, v120, vcc
        s_cmp_lt_u32 {sWV}, 4
        s_cselect_b32 s82, {sLAYER}, 0""")

    def qkv_dma(self, q):
        a = self.a
        a(f"s_add_u32 m0, s81, {(q%5)*16384}")
        a(f"s_add_u32 s83, s80, {q*16384}")
        for i in range(4):
            a(f"buffer_load_dwordx4 v{self.QDM}, {WS}, s83 offen offset:{1024*i} sc1 lds")

    def qkv_main(self):
        a = self.a

        def reads(k):
            kk, b = k % 20, k % 2
            hi, off = kk // 10, (kk % 10) * 4096
            for mt in range(2):
                a(f"ds_read_b128 {vr(self.QW+8*b+4*mt,4)}, v{112+hi} offset:{off+1024*mt}")
            for i in range(2):
                a(f"ds_read_b64_tr_b16 {vr(self.QX+4*b+2*i,2)}, v{114+2*hi+k%2} offset:{off+1024*i}")

        def extra(q):
            l = a.lab("Lx")
            a(f"s_cmp_eq_u32 s82, 0\ns_cbranch_scc1 {l}")
            for j in range(2):
                kk = (4 * q + 2 * j) % 20
                hi, off = kk // 10, (kk % 10) * 4096
                for i in range(2):
                    a(f"ds_read_b64_tr_b16 {vr(GA+4*(2*q+j)+2*i,2)}, v{118+hi} offset:{off+1024*i}")
            a(f"{l}:")
        a("s_waitcnt vmcnt(16)\ns_barrier")
        reads(0)
        for k in range(40):
            q, b = k // 4, k % 2
            if k % 4 == 3:
                extra(q)
                if q < 9:
                    a(f"s_waitcnt vmcnt({4*(min(q+4,9)-(q+1))}) lgkmcnt(0)\ns_barrier")
                    reads(k + 1)
                    if q + 5 < 10:
                        self.qkv_dma(q + 5)
                else:
                    a("s_waitcnt lgkmcnt(0)")
            else:
                reads(k + 1)
                a("s_waitcnt lgkmcnt(4)")
            x = self.QX + 4 * b
            if k == 0:
                a(f"v_and_b32 v{x}, v120, v{x}")
            for mt in range(2):
                d = vr(self.QACC + 16 * mt, 16)
                a(f"v_mfma_f32_32x32x16_bf16 {d}, {vr(self.QW+8*b+4*mt,4)}, {vr(x,4)}, {'0' if k == 0 else d}")
                for i in range(2):
                    s = f"v{self.QSS+i}"
                    a(f"v_dot2_f32_bf16 {s}, v{x+2*mt+i}, v{x+2*mt+i}, {'0' if (k == 0 and mt == 0) else s}")

    def halves_sum(self, r, t):
        a = self.a
        a(f"v_mov_b32 v{t}, v{r}\nv_permlane32_swap_b32 v{t}, v{r}\nv_add_f32 v{r}, v{r}, v{t}")

    def qkv_epilogue(self):
        a = self.a
        P0, P1 = self.QACC, self.QACC + 16
        KR, K2R, VR = 84, 88, 90
        own = A.SLOT0 + A.slot_off(0)
        a(f"""v_add_f32 v{self.QSS}, v{self.QSS}, v{self.QSS+1}
        s_mov_b32 s76, {fbits(1/640)}
        v_mov_b32 v7, {fbits(1e-5)}""")
        self.halves_sum(self.QSS, 5)
        a(f"""v_fma_f32 v6, v{self.QSS}, s76, v7
        v_rsq_f32 v6, v6
        s_lshr_b32 s72, {sWV}, 2
        s_mul_i32 s84, s72, {A.HEADB}
        s_and_b32 s73, {sWV}, 3
        s_mul_i32 s74, s73, {A.TILE}""")
        for h in range(16):
            r = vr(P0 + 2 * h, 2)
            a(f"v_pk_mul_f32 {r}, {r}, v[6:7] op_sel_hi:[1,0]")
        for h in range(6):
            a(f"v_cvt_pk_bf16_f32 v{VR+h}, v{P1+4+2*h}, v{P1+5+2*h}")
        a(f"""v_cmp_gt_u32 vcc, 32, {vL}
        v_mov_b32 v5, 0x3f803f80
        s_mul_i32 s75, {sWV}, 1536
        s_add_u32 s75, s75, {self.VSCR}
        v_cndmask_b32 v{VR+4}, v5, v{VR+4}, vcc
        v_cndmask_b32 v{VR+5}, v5, v{VR+5}, vcc
        v_and_b32 v5, 31, {vL}
        v_lshrrev_b32 v6, 5, {vL}
        v_lshl_add_u32 v7, v5, 1, v6
        v_mul_u32_u24 v7, 24, v7
        v_add_u32 v7, s75, v7""")
        for i in range(3):
            a(f"ds_write_b64 v7, {vr(VR+2*i,2)} offset:{8*i}")
        for h in range(4):
            a(f"v_cvt_pk_bf16_f32 v{KR+h}, v{P0+8+2*h}, v{P0+9+2*h}")
            a(f"v_cvt_pk_bf16_f32 v{AR.Q1+h}, v{P0+2*h}, v{P0+1+2*h}")
        a(f"""v_cvt_pk_bf16_f32 v{K2R}, v{P1+2}, v{P1+3}
        v_cvt_pk_bf16_f32 v{AR.Q2}, v{P1}, v{P1+1}
        v_mov_b32 v{AR.Q2+1}, 0
        v_mov_b32 v{AR.Q2+2}, 0
        v_bfe_u32 v7, {vL}, 2, 2
        v_lshl_add_u32 v7, v6, 3, v7
        v_mul_u32_u24 v7, 48, v7
        v_mov_b32 v{AR.Q2+3}, v{AR.Q2}
        v_bfe_u32 v96, {vL}, 4, 1
        v_and_b32 v97, 3, {vL}
        v_lshl_add_u32 v96, v96, 2, v97
        v_min_u32 v96, 5, v96
        v_and_b32 v97, 1, v96
        v_mul_u32_u24 v97, 24, v97
        v_lshrrev_b32 v96, 1, v96
        v_lshl_add_u32 v96, v96, 3, v97
        v_add3_u32 v7, v7, v96, s75
        s_add_u32 s75, s84, {own}
        v_add_u32 v96, s75, {vL16}
        s_lshl_b32 s76, s73, 2
        v_add_u32 v97, s76, v96
        v_add_u32 v96, s74, v96
        s_waitcnt lgkmcnt(0)""")
        for i in range(4):
            a(f"ds_read_b64_tr_b16 {vr(100+2*i,2)}, v7 offset:{(i//2)*768+(i%2)*192}")
        a(f"""ds_write_b128 v96, {vr(KR,4)}
        ds_write_b32 v97, v{K2R} offset:{A.K2OFF}
        v_mul_u32_u24 v6, 21, v6
        v_add_lshl_u32 v6, v6, v5, 4
        s_add_u32 s75, s75, s74
        v_add_u32 v6, s75, v6
        v_dot2_f32_bf16 v108, v{AR.Q2}, v{AR.Q2}, 0
        v_dot2_f32_bf16 v109, v{K2R}, v{K2R}, 0
        v_dot2_f32_bf16 v110, v{VR+4}, v{VR+4}, 0
        v_dot2_f32_bf16 v110, v{VR+5}, v{VR+5}, v110""")
        for h in range(4):
            a(f"v_dot2_f32_bf16 v108, v{AR.Q1+h}, v{AR.Q1+h}, v108")
            a(f"v_dot2_f32_bf16 v109, v{KR+h}, v{KR+h}, v109")
            a(f"v_dot2_f32_bf16 v110, v{VR+h}, v{VR+h}, v110")
        a(f"""s_mov_b32 exec_lo, 0x1fffff
        s_mov_b32 exec_hi, 0x1fffff
        s_waitcnt lgkmcnt(2)
        ds_write_b128 v6, v[100:103] offset:1024
        ds_write_b128 v6, v[104:107] offset:{1024+A.VFR}
        s_mov_b64 exec, -1
        v_mov_b32 v7, 0x7f800000
        v_cmp_gt_u32 vcc, {fbits(2.0**100)}, v110
        v_cndmask_b32 v109, v7, v109, vcc""")
        self.halves_sum(108, 5)
        self.halves_sum(109, 6)
        for sh in (8, 4, 2, 1):
            for r in (108, 109):
                a(f"v_max_u32 v{r}, v{r}, v{r} row_ror:{sh} row_mask:0xf bank_mask:0xf")
        a(f"""s_lshl_b32 s75, {sWV}, 4
        s_add_u32 s75, s75, {self.NRM}
        v_lshl_add_u32 v5, {vG}, 3, s75
        s_mov_b64 exec, 0x10001
        ds_write_b64 v5, v[108:109]
        s_mov_b64 exec, -1""")
        A.setup_addr(a, 1, "s84", 5)
        a(f"""s_mul_i32 s85, {sWV}, 3072
        s_min_u32 s85, s85, {A.CHUNK-3072}
        s_mul_i32 s86, {sG}, {16*A.CHUNK}
        s_add_u32 s86, s86, {sKV}
        s_add_u32 s86, s86, s85
        s_add_u32 s85, s85, {A.SLOT0}
        s_mul_i32 s72, {sT}, {A.CHUNK}
        s_add_u32 s72, s72, s86
        v_add_u32 v5, s85, {vL16}
        v_lshlrev_b32 v6, 3, {vN}
        v_add_u32 v6, {self.NRM}, v6
        s_waitcnt lgkmcnt(0)
        s_barrier""")
        for i in range(3):
            a(f"ds_read_b128 {vr(84+4*i,4)}, v5 offset:{A.slot_off(0)+1024*i}")
        a("ds_read_b64 v[108:109], v6")
        for i in range(3):
            a(f"s_waitcnt lgkmcnt({3-i})")
            a(f"buffer_store_dwordx4 {vr(84+4*i,4)}, {vL16}, {WS}, s72 offen offset:{1024*i} sc1")
        a("s_waitcnt lgkmcnt(0)")
        for sh in (8, 4, 2, 1):
            for r in (108, 109):
                a(f"v_max_u32 v{r}, v{r}, v{r} row_ror:{sh} row_mask:0xf bank_mask:0xf")

    def kv_sync(self, k):
        a = self.a
        l, lp, dn = a.lab("Lkv"), a.lab("Lp"), a.lab("Ld")
        a(f"""s_lshl_b32 s72, {sG}, 11
        s_add_u32 s72, s72, {sFL}
        s_add_u32 s72, s72, {k*FSTRIDE}
        s_waitcnt vmcnt(0)
        s_barrier
        s_cmp_lg_u32 {sWV}, 0
        s_cbranch_scc1 {l}
        s_lshl_b32 s73, {sT}, 7
        v_mov_b32 v6, 1
        v_mov_b32 v7, v109
        v_mov_b32 v5, s73
        s_mov_b64 exec, 1
        buffer_store_dwordx2 v[6:7], v5, {WS}, s72 offen sc1
        s_mov_b64 exec, -1
        {l}:
        v_lshlrev_b32 v5, 7, {vN}
        s_mov_b32 s88, {SPIN}
        s_mov_b64 exec, 0xffff
        {lp}:
        buffer_load_dwordx2 v[6:7], v5, {WS}, s72 offen sc1
        s_sub_u32 s88, s88, 1
        s_cbranch_scc1 {dn}
        s_waitcnt vmcnt(0)
        v_cmpx_gt_u32 vcc, 1, v6
        s_cbranch_execnz {lp}
        {dn}:
        s_waitcnt vmcnt(0)
        s_mov_b64 exec, 0xffff
        v_mul_f32 v7, v7, v108
        v_cmp_nge_f32 vcc, {fbits(3600.0)}, v7
        s_mov_b64 exec, -1
        s_cmp_eq_u64 vcc, 0
        s_cselect_b32 s87, 1, 0""")

    def image_dma(self, s_src, first, last):
        a = self.a
        lp, dn = a.lab("Li"), a.lab("Li")
        a(f"""s_add_u32 s72, {sWV}, {first}
        {lp}:
        s_cmp_ge_u32 s72, {last}
        s_cbranch_scc1 {dn}
        s_lshl_b32 s73, s72, 10
        s_mov_b32 m0, s73
        s_add_u32 s73, s73, {s_src}
        s_add_u32 s72, s72, 8
        buffer_load_dwordx4 {vL16}, {WS}, s73 offen sc1 lds
        s_branch {lp}
        {dn}:""")

    def att_dma(self, c):
        a = self.a
        a(f"s_mul_i32 s81, s80, {A.CHUNK}")
        a(f"s_add_u32 m0, s85, {A.slot_off(c)}")
        a("s_add_u32 s81, s81, s86")
        for i in range(3):
            a(f"buffer_load_dwordx4 {vr(AR.DMA)}, {WS}, s81 offen offset:{1024*i} sc1 lds")
        a("s_add_u32 s80, s80, 1\ns_and_b32 s80, s80, 15")

    def attention(self):
        a = self.a
        fast, lp, loop = a.lab("Lfast"), a.lab("Lmx"), a.lab("Latt")
        for i in range(16):
            a(f"v_mov_b32 v{AR.NEGM+i}, 0\nv_mov_b32 v{AR.O+i}, 0")
        a(f"""s_cmp_eq_u32 s87, 1
        s_cbranch_scc1 {fast}
        s_mov_b32 s80, 0
        v_mov_b32 v7, 0xff800000
        {lp}:
        s_barrier""")
        self.att_dma(0)
        a("s_waitcnt vmcnt(0)\ns_barrier")
        for n in range(4):
            for r in A.rd_k(n):
                a(r)
            a("s_waitcnt lgkmcnt(0)")
            a(A.qk1(n))
            a(A.qk2(n))
            s = AR.S + 16 * (n % 3)
            for i in range(8):
                a(f"v_max3_f32 v7, v7, v{s+2*i}, v{s+2*i+1}")
        a(f"""s_cmp_lg_u32 s80, 0
        s_cbranch_scc1 {lp}
        v_mov_b32 v6, v7
        v_permlane32_swap_b32 v6, v7
        v_max_f32 v7, v6, v7""")
        for i in range(16):
            a(f"v_sub_f32 v{AR.NEGM+i}, 0, v7")
        a(f"{fast}:\ns_barrier\ns_mov_b32 s80, {sT}")
        for c in range(3):
            self.att_dma(c)
        a("s_waitcnt vmcnt(6)\ns_barrier")
        self.stamp(8)
        NT = 64
        for r in A.rd_k(0) + A.rd_v(0) + A.rd_k(1) + A.rd_v(1):
            a(r)
        a("s_waitcnt lgkmcnt(5)")
        a(A.qk1(0))
        a(A.qk2(0))
        a("s_waitcnt lgkmcnt(2)")
        prio = ((0, 2), (1, 2), (1, 3))

        def bnd(c):
            def f():
                a(f"s_waitcnt vmcnt({3 if c < 14 else 0}) lgkmcnt(0)\ns_barrier\ns_setprio 3")
            return f

        def hooks(n):
            h = {}
            for lvl, (t, k) in zip((2, 1, 0), prio):
                if n % 4 == t:
                    h.setdefault(k, []).append(f"s_setprio {lvl}")
            c = (n - 2) // 4
            if 0 <= c < 13:
                if n % 4 == 2:
                    h.setdefault(2, []).extend([f"s_mul_i32 s81, s80, {A.CHUNK}", f"s_add_u32 m0, s85, {A.slot_off(c)}"])
                    h.setdefault(3, []).insert(0, "s_add_u32 s81, s81, s86")
                if n % 4 == 3:
                    h.setdefault(2, []).extend(["s_add_u32 s80, s80, 1", "s_and_b32 s80, s80, 15"])
                    for i in range(3):
                        h.setdefault(3, []).append(
                            f"buffer_load_dwordx4 {vr(AR.DMA)}, {WS}, s81 offen offset:{1024*i} sc1 lds")
            return h
        for n in range(0, 6):
            A.iteration(a, n, NT, bnd(0) if n % 4 == 2 else None, first=(n == 0), hooks=hooks(n), kpos=1)
        a(f"s_mov_b32 s82, 4\n.p2align 6\n{loop}:")
        for n in range(6, 18):
            h = hooks(n)
            if n == 17:
                h.setdefault(2, []).extend(["s_sub_u32 s82, s82, 1", "s_cmp_lg_u32 s82, 0"])
            A.iteration(a, n, NT, bnd(n // 4) if n % 4 == 2 else None, hooks=h, kpos=1)
        a(f"s_cbranch_scc1 {loop}")
        for n in range(54, 64):
            c = n // 4
            A.iteration(a, n, NT, bnd(c) if (n % 4 == 2 and c < 15) else None, hooks=hooks(n), kpos=1)
        a(A.pv(63, 1))
        O = AR.O
        a(f"""s_setprio 0
        s_lshl_b32 s72, {sT}, 5
        s_lshl_b32 s73, {sG}, 1
        s_add_u32 s72, s72, s73
        s_lshr_b32 s73, {sWV}, 2
        s_add_u32 s72, s72, s73
        s_and_b32 s73, {sWV}, 3
        s_lshl_b32 s74, s72, 12
        s_lshl_b32 s75, s73, 9
        s_add_u32 s74, s74, s75
        s_add_u32 s74, s74, {sO}
        s_lshl_b32 s75, s72, 10
        s_lshl_b32 s76, s73, 8
        s_add_u32 s75, s75, s76
        s_add_u32 s75, s75, {sO}
        s_add_u32 s75, s75, {OXOFF}
        v_lshrrev_b32 v5, 5, {vL}
        v_mul_u32_u24 v5, 1536, v5
        v_add_u32 v5, v5, {vL16}
        v_cmp_gt_u32 vcc, 32, {vL}
        v_cndmask_b32 v6, v{O+8}, v{O+12}, vcc
        v_rcp_f32 v6, v6
        v_lshlrev_b32 v16, 3, {vL}""")
        for h in range(6):
            a(f"v_pk_mul_f32 {vr(O+2*h,2)}, {vr(O+2*h,2)}, v[6:7] op_sel_hi:[1,0]")
        for h in range(6):
            a(f"v_cvt_pk_bf16_f32 v{8+h}, v{O+2*h}, v{O+2*h+1}")
        a(f"""buffer_store_dwordx4 v[8:11], v5, {WS}, s74 offen sc1
        s_mov_b32 exec_hi, 0
        buffer_store_dwordx2 v[12:13], v16, {WS}, s75 offen sc1
        s_mov_b64 exec, -1""")

    def o_loads(self):
        a = self.a
        a(f"""s_lshl_b32 s72, {sHALF}, 6
        s_lshl_b32 s73, {sWV}, 4
        s_add_u32 s72, s72, s73
        v_add_u32 v5, s72, {vN}
        v_lshlrev_b32 v6, 11, {vG}
        v_lshl_add_u32 v10, v5, 4, v6
        v_lshl_add_u32 v11, v5, 3, v6
        s_lshl_b32 s72, {sT}, 17
        s_add_u32 s72, s72, {sO}
        s_lshl_b32 s73, {sT}, 15
        s_add_u32 s73, s73, {sO}
        s_add_u32 s73, s73, {OXOFF}""")
        for ks in range(16):
            a(f"buffer_load_dwordx4 {vr(GA+4*ks,4)}, v10, {WS}, s72 offen sc1")
            a("s_add_u32 s72, s72, 8192")
        for ks in range(16, 20):
            for i in range(2):
                a(f"buffer_load_dwordx2 {vr(GA+4*ks+2*i,2)}, v11, {WS}, s73 offen offset:{1024*i} sc1")
            a("s_add_u32 s73, s73, 8192")

    @staticmethod
    def o_wait(ks):
        return (15 - ks) + 8 if ks < 16 else 2 * (19 - ks)

    def res_load(self):
        a = self.a
        a(f"""s_mul_i32 s72, {sT}, 163840
        s_mul_i32 s73, {sCB}, 20480
        s_add_u32 s72, s72, s73
        s_lshl_b32 s73, {sHALF}, 7
        s_add_u32 s72, s72, s73
        s_lshl_b32 s73, {sWV}, 5
        s_add_u32 s72, s72, s73
        s_add_u32 s72, s72, {sXB}
        v_lshlrev_b32 v5, 8, {vN}
        v_lshl_add_u32 v5, {vG}, 3, v5""")
        for ct in range(5):
            a(f"buffer_load_dwordx2 {vr(GA+2*ct,2)}, v5, {WS}, s72 offen sc1")
            a("s_add_u32 s72, s72, 4096")
        a("s_waitcnt vmcnt(0)")
        self.unpack(GLO, GA, 10)

    def final_store(self):
        a = self.a
        a(f"""s_mul_i32 s72, {sWV}, {16*176}
        s_add_u32 s72, s72, {EP}
        v_mul_u32_u24 v5, 176, {vN}
        v_lshl_add_u32 v5, {vG}, 3, v5
        v_add_u32 v5, s72, v5""")
        for ct in range(5):
            a(f"v_cvt_pk_bf16_f32 v{16+2*ct}, v{GLO+4*ct}, v{GLO+4*ct+1}")
            a(f"v_cvt_pk_bf16_f32 v{17+2*ct}, v{GLO+4*ct+2}, v{GLO+4*ct+3}")
            a(f"ds_write_b64 v5, {vr(16+2*ct,2)} offset:{ct*32}")
        a(f"""s_and_b32 s73, {sT}, 7
        s_lshl_b32 s73, s73, 8
        s_lshr_b32 s74, {sT}, 3
        s_lshl_b32 s74, s74, 4
        s_add_u32 s73, s73, s74
        s_lshl_b32 s74, {sHALF}, 3
        s_add_u32 s73, s73, s74
        s_lshl_b32 s74, {sWV}, 1
        s_add_u32 s73, s73, s74
        s_mul_i32 s73, s73, 1280
        s_mul_i32 s74, {sCB}, 160
        s_add_u32 s73, s73, s74
        s_movk_i32 s74, 176
        s_movk_i32 s75, 1280""")
        for i in range(3):
            a(f"""v_add_u32 v5, {64*i}, {vL}
            v_mul_u32_u24 v6, 205, v5
            v_lshrrev_b32 v6, 11, v6
            v_mul_u32_u24 v7, 10, v6
            v_sub_u32 v5, v5, v7
            v_lshlrev_b32 v5, 4, v5
            v_mad_u32_u24 v{8+i}, v6, s74, v5
            v_add_u32 v{8+i}, s72, v{8+i}
            v_and_b32 v7, 7, v6
            v_lshrrev_b32 v6, 3, v6
            v_lshl_add_u32 v6, v7, 5, v6
            v_mad_u32_u24 v{12+i}, v6, s75, v5""")
        a("s_waitcnt lgkmcnt(0)")
        for i in range(3):
            a(f"ds_read_b128 {vr(28+4*i,4)}, v{8+i}")
        for i in range(3):
            if i == 2:
                a("s_mov_b32 exec_hi, 0")
            a(f"s_waitcnt lgkmcnt({2-i})")
            a(f"buffer_store_dwordx4 {vr(28+4*i,4)}, v{12+i}, {SOUT}, s73 offen")

    def build(self):
        a = self.a
        self.prologue()
        self.phase0()
        self.job_wq()
        self.stamp(3)
        self.handshake()
        a(f"""s_mov_b32 {sXA}, {X0}
        s_mov_b32 {sXB}, {X0+XSZ}
        s_mov_b32 {sKV}, {KV0}
        s_mov_b32 {sO}, {OM0}
        s_mov_b32 {sSS}, {SS0}
        Llayer:""")
        self.gbar(0)
        self.stamp(4)
        idle, cdone = a.lab("Lidle"), a.lab("Lcd")
        a(f"s_cmp_ge_u32 {sR}, 20\ns_cbranch_scc1 {idle}")
        self.col_consts()
        self.col_main()
        a(f"s_branch {cdone}\n{idle}:\ns_cmp_lg_u32 {sLAYER}, 0\ns_cbranch_scc1 {cdone}")
        self.jobs_idle()
        a(f"{cdone}:")
        self.stamp(5)
        self.gbar(1)
        self.stamp(6)
        self.qkv_setup()
        for q in range(5):
            self.qkv_dma(q)
        self.qkv_main()
        self.qkv_epilogue()
        self.stamp(7)
        self.kv_sync(2)
        l0, l1, l2 = a.lab("Lm"), a.lab("Lm"), a.lab("Lm")
        a(f"s_cmp_eq_u32 {sLAYER}, 0\ns_cbranch_scc1 {l0}")
        a(f"s_mul_i32 s74, {sCB}, 102400\ns_add_u32 s74, s74, {FT}")
        self.image_dma("s74", 0, 100)
        a("s_waitcnt vmcnt(0)\ns_barrier")
        a(f"s_cmp_ge_u32 {sWV}, 4\ns_cbranch_scc1 {l1}")
        a("v_mov_b32 v244, v8\nv_mov_b32 v245, v9")
        self.gcore(0, 20, False, True, False)
        a(f"v_mov_b32 v8, v244\nv_mov_b32 v9, v245\nv_mov_b32 v6, {fbits(AMP)}")
        for h in range(10):
            a(f"v_pk_mul_f32 {vr(GLO+2*h,2)}, {vr(GLO+2*h,2)}, v[6:7] op_sel_hi:[1,0]")
        a(f"s_branch {l1}\n{l0}:\ns_cmp_ge_u32 {sWV}, 4\ns_cbranch_scc1 {l1}")
        self.res_load()
        a(f"{l1}:")
        self.attention()
        self.stamp(9)
        a(f"""s_cmp_eq_u32 {sLAYER}, 0
        s_cselect_b32 s74, {WOH}, s75
        s_mul_i32 s75, {sCB}, 102400
        s_add_u32 s74, s74, s75
        s_barrier""".replace("s_cmp_eq_u32", f"s_mov_b32 s75, {WOT}\ns_cmp_eq_u32"))
        self.image_dma("s74", 0, 100)
        self.gbar(3)
        self.stamp(10)
        last, l3 = a.lab("Llast"), a.lab("Lm")
        a(f"s_cmp_lg_u32 {sLAYER}, 0\ns_cbranch_scc1 {last}")
        a(f"s_cmp_ge_u32 {sWV}, 4\ns_cbranch_scc1 {l3}")
        self.o_loads()
        self.gcore(0, 20, False, False, True, self.o_wait)
        self.ep_write(sCB, True)
        a(f"""{l3}:
        s_mul_i32 s84, {sT}, 163840
        s_mul_i32 s85, {sCB}, 20480
        s_add_u32 s84, s84, s85
        s_lshl_b32 s85, {sHALF}, 7
        s_add_u32 s84, s84, s85
        s_add_u32 s84, s84, {X0+2*XSZ}
        s_lshl_b32 s85, {sT}, 12
        s_lshl_b32 s86, {sCB}, 9
        s_add_u32 s85, s85, s86
        s_lshl_b32 s86, {sHALF}, 8
        s_add_u32 s85, s85, s86
        s_add_u32 s85, s85, {SS0+65536}
        s_waitcnt lgkmcnt(0)
        s_barrier""")
        self.ep_store_x("s84", "s85")
        self.stamp(11)
        a(f"""s_mov_b32 {sLAYER}, 1
        s_mov_b32 {sXA}, {X0+2*XSZ}
        s_mov_b32 {sXB}, {X0+3*XSZ}
        s_mov_b32 {sKV}, {KV0+KVSZ}
        s_mov_b32 {sO}, {OM0+OSZ}
        s_mov_b32 {sSS}, {SS0+65536}
        s_mov_b32 {sFL}, {FLAGS+4*FSTRIDE}
        s_branch Llayer
        {last}:
        s_cmp_ge_u32 {sWV}, 4
        s_cbranch_scc1 Lend""")
        self.o_loads()
        self.gcore(0, 20, False, True, True, self.o_wait)
        self.final_store()
        if self.stamps:
            a("s_mov_b64 exec, -1\ns_waitcnt vmcnt(0)")
            self.stamp(11)
        a("Lend:\ns_endpgm")
        return a.finalize()


def wrap(body):
    ref = open("cdna_kernels/" + NAME + ".s.ref").read()
    head = ref[:ref.index("; @launch")]
    out = head + "; @launch grid=(256,1,1) block=(512,1,1) lds=163840\n"
    out += f""".amdgcn_target "amdgcn-amd-amdhsa--gfx950"
.text
.globl {NAME}_kernel
.p2align 8
.type {NAME}_kernel,@function
{NAME}_kernel:
"""
    out += body
    out += ref[ref.index(".section .rodata"):]
    return out


if __name__ == "__main__":
    stamps = "--stamps" in sys.argv
    path = sys.argv[1]
    g = Gen(stamps=stamps)
    txt = wrap(g.build())
    open(path, "w").write(txt)
    print("wrote", path, len(txt), "bytes; padded wait states", g.a.padded)
```

```python
from asmlib import *

VFR = 640
TILE = 1024 + 2 * VFR
K2OFF = 4 * TILE
HEADB = K2OFF + 1024
CHUNK = 2 * HEADB
SLOT0 = 163840 - 3 * CHUNK
SLOT_ORDER = (1, 2, 0)
VMASK = "s[4:5]"


class AR:
    Q1 = 8
    Q2 = 16
    IDX = 24
    KA = 25
    K2A = 26
    VA = 27
    O = 28
    S = 60
    K1 = 108
    K2 = 116
    V = 122
    END = 138


def slot_off(c):
    return SLOT_ORDER[c % 3] * CHUNK


def tile_off(m):
    return slot_off(m // 2) + (m % 2) * TILE


def rd_k(m):
    r = [f"ds_read_b128 {vr(AR.K1+4*(m%2),4)}, {vr(AR.KA)} offset:{tile_off(m)}"]
    if m % 2 == 0:
        r.append(f"ds_read_b64 {vr(AR.K2+2*((m//2)%3),2)}, {vr(AR.K2A)} offset:{slot_off(m//2)}")
    return r


def rd_v(m):
    r = [f"ds_read_b128 {vr(AR.V+8*(m%2)+4*i,4)}, {vr(AR.VA)} offset:{tile_off(m)+i*VFR}" for i in range(2)]
    return [f"s_mov_b64 exec, {VMASK}"] + r + ["s_mov_b64 exec, -1"]


def qk1(n, c="0"):
    m, q = n // 2, n % 2
    return f"v_mfma_f32_32x32x16_bf16 {vr(AR.S+16*(n%3),16)}, {vr(AR.K1+4*(m%2),4)}, {vr(AR.Q1+4*q,4)}, {c}"


def qk2(n):
    m, q = n // 2, n % 2
    s = vr(AR.S + 16 * (n % 3), 16)
    return f"v_mfma_f32_32x32x8_bf16 {s}, {vr(AR.K2+2*((m//2)%3),2)}, {vr(AR.Q2+4*q+2*(m%2),2)}, {s}"


def pv(n, h):
    m, q = n // 2, n % 2
    return (f"v_smfmac_f32_32x32x32_bf16 {vr(AR.O+16*q,16)}, {vr(AR.V+8*(m%2)+4*h,4)}, "
            f"{vr(AR.S+16*(n%3)+8*h,8)}, {vr(AR.IDX)}")


def ex(n, i):
    r = vr(AR.S + 16 * (n % 3) + i)
    return f"v_exp_f32 {r}, {r}"


def start(a, n):
    for r in rd_k(n // 2) + rd_v(n // 2):
        a(r)
    a("s_waitcnt lgkmcnt(2)")
    a(qk1(n))
    a(qk2(n))
    a("s_waitcnt lgkmcnt(0)")


def iteration(a, n, nt, boundary=None, first=False, hooks=None):
    hooks = hooks or {}
    has_next = n + 1 < nt
    fetch = n % 2 == 0 and n + 2 < nt

    def hk(k):
        for x in hooks.get(k, []):
            a(x)
    if has_next:
        a(qk1(n + 1))
    if boundary:
        boundary()
    hk(0)
    for i in range(0, 4):
        a(ex(n, i))
    if has_next:
        a(qk2(n + 1))
    hk(1)
    if fetch:
        for r in rd_k(n // 2 + 1):
            a(r)
    for i in range(4, 8):
        a(ex(n, i))
    if not first:
        a(pv(n - 1, 1))
    hk(2)
    if fetch:
        for r in rd_v(n // 2 + 1):
            a(r)
    for i in range(8, 12):
        a(ex(n, i))
    a(pv(n, 0))
    if fetch:
        a("s_waitcnt lgkmcnt(2)")
    elif n % 2 == 1 and has_next:
        a("s_waitcnt lgkmcnt(0)")
    hk(3)
    for i in range(12, 16):
        a(ex(n, i))


def setup_addr(a, vl, vl16, s_head, s_p, st, tmp):
    t0, t1 = vr(tmp), vr(tmp + 1)
    a(f"s_mul_i32 {st}, {s_p}, {2*TILE}")
    a(f"s_add_u32 {st}, {st}, {s_head}")
    a(f"s_add_u32 {st}, {st}, {SLOT0}")
    a(f"v_add_u32 {vr(AR.KA)}, {st}, {vl16}")
    a(f"v_and_b32 {t0}, 31, {vl}")
    a(f"v_lshrrev_b32 {t1}, 5, {vl}")
    a(f"v_cmp_ne_u32 vcc, 20, {t0}")
    a(f"v_mul_u32_u24 {t1}, 20, {t1}")
    a(f"v_add_lshl_u32 {t0}, {t0}, {t1}, 4")
    a(f"s_add_u32 {st}, {st}, 1024")
    a(f"v_add_u32 {vr(AR.VA)}, {st}, {t0}")
    a(f"v_mov_b32 {t1}, 0")
    a(f"v_cndmask_b32 {vr(AR.V)}, 0x3f803f80, {t1}, vcc")
    for i in range(1, 16):
        a(f"v_mov_b32 {vr(AR.V+i)}, {vr(AR.V)}")
    a("s_mov_b32 s4, 0xfffff\ns_mov_b32 s5, 0xfffff")
    a(f"s_lshl_b32 {st}, {s_p}, 9")
    a(f"s_add_u32 {st}, {st}, {s_head}")
    a(f"s_add_u32 {st}, {st}, {SLOT0+K2OFF}")
    a(f"v_lshl_add_u32 {vr(AR.K2A)}, {vl}, 3, {st}")
    a(f"v_mov_b32 {vr(AR.IDX)}, 0xdddd")
```

```python
import math, struct, sys
from asmlib import *
import attn as A
from attn import AR
from layout import *

NAME = "interleave_layers__spectral_gfnet__mha_block__prompt"


def fbits(x):
    return "0x%08x" % struct.unpack("<I", struct.pack("<f", x))[0]


WS, SX, SWF, SWQ, SWO, SOUT, SDBG = "s[20:23]", "s[24:27]", "s[28:31]", "s[36:39]", "s[40:43]", "s[44:47]", "s[48:51]"
sB, sWV, sX, sR, sT, sG, sHALF, sCB, sLAYER, sCB0, sTB0 = "s2", "s3", "s52", "s53", "s54", "s55", "s56", "s57", "s58", "s59", "s60"
sXA, sXB, sKV, sO, sSS, sFL, sSTAMP, sWM, sHI = "s61", "s62", "s63", "s64", "s65", "s66", "s67", "s68", "s69"
vTID, vL, vN, vG, vL16 = "v0", "v1", "v2", "v3", "v4"

AMP = math.sqrt(2.0 / 640)
QS = 20 ** -0.5 * math.log2(math.e)
SPIN = 1 << 16

XS, FI, EP, TB, TRS = 0, 81920, 133120, 145408, 157696
GA, GB, GLO, GHI = 164, 60, 144, 120
F_X, F_COL, F_KV, F_O, F_WQ, F_IMG = 0, 1, 2, 3, 8, 9


class Gen:
    def __init__(self, stamps=False, opts=()):
        self.opts = set(opts)
        self.a = Asm()
        self.stamps = stamps

    def stamp(self, k):
        if not self.stamps:
            return
        a = self.a
        l = a.lab("Lst")
        a(f"""s_cmp_lg_u32 {sWM}, 0
        s_cbranch_scc1 {l}
        s_memrealtime s[90:91]
        s_memtime s[96:97]
        s_mul_i32 s92, {sLAYER}, 128
        s_add_u32 s92, s92, {sSTAMP}
        s_waitcnt lgkmcnt(0)
        v_mov_b32 v252, s90
        v_mov_b32 v253, s96
        v_mov_b32 v254, 0
        s_mov_b64 s[94:95], exec
        s_mov_b64 exec, 1
        buffer_store_dwordx2 v[252:253], v254, {WS}, s92 offen offset:{8*k}
        s_mov_b64 exec, s[94:95]
        {l}:""")

    def if_lo(self, lab):
        self.a(f"s_cmp_lg_u32 {sHI}, 0\ns_cbranch_scc1 {lab}")

    def if_hi(self, lab):
        self.a(f"s_cmp_eq_u32 {sHI}, 0\ns_cbranch_scc1 {lab}")

    def prologue(self):
        a = self.a
        a(f"""s_cmp_ge_u32 {sB}, 256
        s_cbranch_scc1 Lend
        s_load_dwordx16 s[4:19], s[0:1], 0
        s_load_dwordx2 s[20:21], s[0:1], 64
        v_lshrrev_b32 v5, 6, v0
        v_and_b32 {vL}, 63, v0
        v_readfirstlane_b32 {sWV}, v5
        v_and_b32 {vN}, 15, v0
        v_lshrrev_b32 {vG}, 4, {vL}
        v_lshlrev_b32 {vL16}, 4, {vL}
        s_and_b32 {sX}, {sB}, 7
        s_lshr_b32 {sR}, {sB}, 3
        s_and_b32 s70, {sX}, 3
        s_lshl_b32 s70, s70, 2
        s_and_b32 s71, {sR}, 3
        s_add_u32 {sT}, s70, s71
        s_lshr_b32 {sHALF}, {sX}, 2
        s_lshr_b32 {sCB}, {sR}, 2
        s_lshl_b32 s70, {sHALF}, 3
        s_add_u32 {sG}, s70, {sCB}
        s_add_u32 s70, {sR}, {sX}
        s_and_b32 {sCB0}, s70, 7
        s_lshl_b32 s70, {sX}, 2
        s_lshr_b32 s71, {sR}, 3
        s_add_u32 {sTB0}, s70, s71
        s_mov_b32 {sLAYER}, 0
        s_and_b32 {sWM}, {sWV}, 3
        s_lshr_b32 {sHI}, {sWV}, 2
        s_lshl_b32 {sSTAMP}, {sB}, 1
        s_add_u32 {sSTAMP}, {sSTAMP}, {sHI}
        s_lshl_b32 {sSTAMP}, {sSTAMP}, 8
        s_add_u32 {sSTAMP}, {sSTAMP}, {STAMP}
        s_mov_b32 {sFL}, {FLAGS}
        s_mov_b32 s22, {WSEND}
        s_mov_b32 s23, 0x20000
        s_mov_b32 s26, {XSZ}
        s_mov_b32 s27, 0x20000
        s_mov_b32 s30, {2048*642}
        s_mov_b32 s31, 0x20000
        s_mov_b32 s38, {640*3840}
        s_mov_b32 s39, 0x20000
        s_mov_b32 s42, {640*1280}
        s_mov_b32 s43, 0x20000
        s_mov_b32 s46, {XSZ}
        s_mov_b32 s47, 0x20000
        s_mov_b32 s50, 256
        s_mov_b32 s51, 0x20000
        s_waitcnt lgkmcnt(0)
        s_mov_b64 s[24:25], s[4:5]
        s_cmp_lt_u32 {sB}, 128
        s_cselect_b32 s28, s6, s8
        s_cselect_b32 s29, s7, s9
        s_mov_b64 s[36:37], s[12:13]
        s_mov_b64 s[40:41], s[14:15]
        s_mov_b64 s[44:45], s[16:17]
        s_mov_b64 s[48:49], s[18:19]""")
        self.stamp(0)

    def poll(self, srd, vaddr, soff, nlanes, target="1", wide=False):
        a = self.a
        lp, dn = a.lab("Lp"), a.lab("Ld")
        mask = (1 << nlanes) - 1
        ld = "buffer_load_dwordx2 v[6:7]" if wide else "buffer_load_dword v6"
        a(f"""s_mov_b32 s88, {SPIN}
        s_mov_b32 exec_lo, {hex(mask & 0xffffffff)}
        s_mov_b32 exec_hi, {hex(mask >> 32)}
        {lp}:
        {ld}, {vaddr}, {srd}, {soff} offen sc1
        s_sub_u32 s88, s88, 1
        s_cbranch_scc1 {dn}
        s_waitcnt vmcnt(0)
        v_cmpx_gt_u32 vcc, {target}, v6
        s_cbranch_execnz {lp}
        {dn}:
        s_waitcnt vmcnt(0)
        s_mov_b64 exec, -1""")

    def signal(self, s_off, wave=0, payload=None):
        a = self.a
        l = a.lab("Lsg")
        a(f"""s_cmp_lg_u32 {sWV}, {wave}
        s_cbranch_scc1 {l}
        v_mov_b32 v6, 1
        v_mov_b32 v5, 0
        s_mov_b64 exec, 1""")
        if payload:
            a(f"v_mov_b32 v7, {payload}\nbuffer_store_dwordx2 v[6:7], v5, {WS}, {s_off} offen sc1")
        else:
            a(f"buffer_store_dword v6, v5, {WS}, {s_off} offen sc1")
        a(f"s_mov_b64 exec, -1\n{l}:")

    def gen_F(self):
        a = self.a
        a(f"""s_min_u32 s72, {sWV}, 4
        s_mul_i32 s73, {sCB0}, 80
        s_lshl_b32 s74, s72, 4
        s_add_u32 s73, s73, s74
        v_add_u32 v12, s73, {vN}
        v_lshrrev_b32 v14, 1, v12
        v_and_b32 v15, 1, v12
        v_cmp_ne_u32 vcc, 0, v12
        v_cndmask_b32 v14, 0x140, v14, vcc
        v_cmp_ne_u32 vcc, 1, v12
        v_cndmask_b32 v15, 0, v15, vcc
        v_cvt_f32_u32 v14, v14
        v_cvt_f32_u32 v15, v15
        v_lshlrev_b32 v13, 3, {vG}
        v_cvt_f32_u32 v13, v13
        v_mul_f32 v10, {fbits(1/640)}, v14
        v_mul_f32 v14, {fbits(1/20)}, v14
        v_mul_f32 v15, 0.25, v15
        v_fma_f32 v16, v13, v10, v15
        s_lshl_b32 s72, s72, 10
        s_add_u32 s72, s72, {FI}
        v_add_u32 v12, s72, {vL16}""".replace("0.25", fbits(0.25)))
        for e in range(1, 8):
            a(f"v_add_f32 v{16+e}, v{15+e}, v10")
        for h in range(4):
            a(f"v_pk_add_f32 {vr(24+2*h,2)}, {vr(16+2*h,2)}, v[14:15] op_sel_hi:[1,0]")
        a("v_cos_f32 v14, v14")
        for e in range(16):
            a(f"v_cos_f32 v{16+e}, v{16+e}")
        a("v_add_f32 v14, v14, v14")
        for ks in range(10):
            x, y, p = 16 + 8 * (ks % 2), 16 + 8 * ((ks + 1) % 2), 32 + 4 * (ks % 2)
            if ks >= 2:
                for h in range(4):
                    a(f"v_pk_fma_f32 {vr(x+2*h,2)}, {vr(y+2*h,2)}, v[14:15], {vr(x+2*h,2)} "
                      f"op_sel_hi:[1,0,1] neg_lo:[0,0,1] neg_hi:[0,0,1]")
            for h in range(4):
                a(f"v_cvt_pk_bf16_f32 v{p+h}, v{x+2*h}, v{x+2*h+1}")
            a(f"ds_write_b128 v12, {vr(p,4)} offset:{5120*ks}")

    def gcore(self, base, nks, dual, swap, init, await_a=None):
        a = self.a
        a(f"v_add_u32 v6, {base}, {vL16}")
        if nks > 12:
            a(f"v_add_u32 v7, {base+61440}, {vL16}")

        def rd(ks, ct):
            reg, off = ("v6", ks * 5120) if ks < 12 else ("v7", (ks - 12) * 5120)
            return f"ds_read_b128 {vr(GB+20*(ks%3)+4*ct,4)}, {reg} offset:{off+ct*1024}"

        def mf(acc, ka, ks, ct, first):
            x, y = vr(GA + 4 * ka, 4), vr(GB + 20 * (ks % 3) + 4 * ct, 4)
            if swap:
                x, y = y, x
            d = vr(acc + 4 * ct, 4)
            return f"v_mfma_f32_16x16x32_bf16 {d}, {x}, {y}, {'0' if first else d}"
        for ks in range(2):
            for ct in range(5):
                a(rd(ks, ct))
        for ks in range(nks):
            w = f"lgkmcnt({5 if ks + 1 < nks else 0})"
            if await_a:
                w = f"vmcnt({await_a(ks)}) " + w
            a("s_waitcnt " + w)
            for ct in range(5):
                a(mf(GLO, ks, ks, ct, ks == 0 and not init))
                if ks + 2 < nks:
                    a(rd(ks + 2, ct))
                if dual:
                    a(mf(GHI, ks + 10, ks, ct, ks == 0))

    def dual_setup(self, s_cb):
        a = self.a
        a(f"""v_mov_b32 v8, {fbits(AMP)}
        v_lshlrev_b32 v5, 30, {vN}
        v_and_b32 v5, 0x80000000, v5
        v_xor_b32 v10, v5, v8
        s_cmp_eq_u32 {s_cb}, 0
        s_cselect_b32 s72, 2, 0
        v_cmp_le_u32 vcc, s72, {vN}
        v_cndmask_b32 v12, {fbits(AMP/math.sqrt(2))}, v8, vcc
        v_xor_b32 v14, v5, v12""")

    def ep_setup(self):
        a = self.a
        a(f"""v_mul_u32_u24 v5, 144, {vN}
        v_lshl_add_u32 v5, {vG}, 3, v5
        s_lshl_b32 s72, {sWM}, 5
        s_add_u32 s72, s72, {EP}
        v_add_u32 v9, s72, v5""")

    def ep_write(self, dual):
        a = self.a
        for ct in range(5):
            if dual:
                p, q = (12, 14) if ct == 0 else (8, 10)
                for h in range(2):
                    lo, hi = vr(GLO + 4 * ct + 2 * h, 2), vr(GHI + 4 * ct + 2 * h, 2)
                    a(f"v_pk_mul_f32 {lo}, {lo}, {vr(p,2)} op_sel_hi:[1,0]")
                    a(f"v_pk_fma_f32 {lo}, {hi}, {vr(q,2)}, {lo} op_sel_hi:[1,0,1]")
            a(f"v_cvt_pk_bf16_f32 v{GB+2*ct}, v{GLO+4*ct}, v{GLO+4*ct+1}")
            a(f"v_cvt_pk_bf16_f32 v{GB+1+2*ct}, v{GLO+4*ct+2}, v{GLO+4*ct+3}")
            a(f"ds_write_b64 v9, {vr(GB+2*ct,2)} offset:{ct*16*144}")

    def ss_store(self, s_cb, s_ss):
        a = self.a
        R = GB + 16
        a(f"""s_cmp_eq_u32 {s_cb}, 0
        s_cselect_b32 s72, 1, 99
        v_cmp_ne_u32 vcc, s72, {vN}""")
        for h in range(2):
            x = vr(GLO + 4 + 2 * h, 2)
            a(f"v_pk_mul_f32 {vr(R+2*h,2)}, {x}, {x}")
        for r in range(4):
            a(f"v_cndmask_b32 v{GLO+r}, 0, v{GLO+r}, vcc")
        for ct in (2, 3, 4, 0):
            for h in range(2):
                x = vr(GLO + 4 * ct + 2 * h, 2)
                a(f"v_pk_fma_f32 {vr(R+2*h,2)}, {x}, {x}, {vr(R+2*h,2)}")
        for sh in (8, 4, 2, 1):
            for r in range(4):
                a(f"v_add_f32 v{R+r}, v{R+r}, v{R+r} row_ror:{sh} row_mask:0xf bank_mask:0xf")
        a(f"""s_lshl_b32 s72, {sWM}, 6
        s_add_u32 s72, s72, {s_ss}
        s_mov_b32 exec_lo, 0x00010001
        s_mov_b32 exec_hi, 0x00010001
        buffer_store_dwordx4 {vr(R,4)}, {vL}, {WS}, s72 offen sc1
        s_mov_b64 exec, -1""")

    def x_store_setup(self):
        a = self.a
        a(f"""s_movk_i32 s79, 144
        v_lshrrev_b32 v5, 3, {vTID}
        v_and_b32 v6, 7, {vTID}
        v_lshlrev_b32 v6, 4, v6
        v_mad_u32_u24 v16, v5, s79, v6
        v_lshl_add_u32 v17, v5, 8, v6
        v_add_u32 v16, {EP}, v16""")

    def x_store(self, s_dst):
        a = self.a
        l1 = a.lab("Le")
        R = GB + 24
        for i in range(3):
            a(f"ds_read_b128 {vr(R+4*i,4)}, v16 offset:{32*144*i}")
        a(f"s_add_u32 s72, {s_dst}, 8192\ns_add_u32 s73, {s_dst}, 16384")
        a(f"s_waitcnt lgkmcnt(2)\nbuffer_store_dwordx4 {vr(R,4)}, v17, {WS}, {s_dst} offen sc1")
        a(f"s_waitcnt lgkmcnt(1)\nbuffer_store_dwordx4 {vr(R+4,4)}, v17, {WS}, s72 offen sc1")
        a(f"""s_cmp_gt_u32 {sWV}, 1
        s_waitcnt lgkmcnt(0)
        s_cbranch_scc1 {l1}
        buffer_store_dwordx4 {vr(R+8,4)}, v17, {WS}, s73 offen sc1
        {l1}:""")

    def dma_rows(self, srd, rg, s_rh, s_base):
        a = self.a
        a(f"""s_and_b32 s72, {sWV}, 1
        s_lshl_b32 s72, s72, 3
        v_add_u32 v5, s72, {vG}
        v_xor_b32 v5, v5, {vN}
        v_mul_u32_u24 v6, {rg}, {vG}
        v_lshl_add_u32 v8, v5, 4, v6
        v_xor_b32 v5, 4, v5
        v_lshl_add_u32 v9, v5, 4, v6
        v_add_u32 v9, {s_rh}, v9
        s_lshl_b32 s72, {sWV}, 11""")
        for blk in range(5):
            for h in range(2):
                a(f"s_add_u32 m0, s72, {XS + blk*(16384-256) + h*1024}")
                a(f"buffer_load_dwordx4 v{8+h}, {srd}, {s_base} offen offset:{blk*256} lds")

    def read_rows_frags(self):
        a = self.a
        a(f"""s_lshl_b32 s72, {sWM}, 12
        v_xor_b32 v5, {vG}, {vN}
        v_lshlrev_b32 v5, 4, v5
        v_lshl_add_u32 v5, {vN}, 8, v5
        v_add_u32 v8, s72, v5""")
        for c in range(1, 4):
            a(f"v_xor_b32 v{8+c}, {64*c}, v8")
        for ks in range(20):
            if ks == 16:
                for c in range(4):
                    a(f"v_add_u32 v{12+c}, 0x10000, v{8+c}")
            if ks < 16:
                a(f"ds_read_b128 {vr(GA+4*ks,4)}, v{8+ks%4} offset:{XS+(ks//4)*16384}")
            else:
                a(f"ds_read_b128 {vr(GA+4*ks,4)}, v{12+ks%4} offset:{XS}")

    def wf_loads(self):
        a = self.a
        a(f"""s_bfe_u32 s72, {sB}, 0x20005
        s_bfe_u32 s73, {sB}, 0x10004
        s_bfe_u32 s74, {sB}, 0x20002
        s_and_b32 s75, {sB}, 3
        s_and_b32 s76, s72, 1
        s_lshl_b32 s76, s76, 5
        s_lshl_b32 s80, s73, 4
        s_add_u32 s76, s76, s80
        s_lshr_b32 s80, s72, 1
        s_add_u32 s76, s76, s80
        s_lshl_b32 s80, s74, 9
        s_add_u32 s76, s76, s80
        s_mul_i32 s76, s76, 642
        v_lshrrev_b32 v5, 3, {vL}
        v_mul_u32_u24 v5, 1284, v5
        v_add_u32 v5, s76, v5
        s_mul_i32 s75, s75, 80
        s_sub_u32 s80, {sWV}, 4
        s_lshl_b32 s80, s80, 3
        s_add_u32 s75, s75, s80
        v_and_b32 v6, 7, {vL}
        v_add_u32 v6, s75, v6
        v_lshl_add_u32 v213, v6, 1, v5
        v_cmp_ne_u32 vcc, 0, v6
        v_cndmask_b32 v6, 0x140, v6, vcc
        v_lshl_add_u32 v212, v6, 1, v5""")
        skip = a.lab("Lw")
        for rnd in range(3):
            if rnd == 2:
                a(f"s_cmp_gt_u32 {sWV}, 5\ns_cbranch_scc1 {skip}")
            for e in range(8):
                a(f"s_mov_b32 s80, {e*64*642}")
                a(f"buffer_load_ushort v{216+8*rnd+e}, v{212 if rnd == 0 else 213}, {SWF}, s80 offen offset:{64*rnd}")
        a(f"{skip}:")

    def wf_stores(self):
        a = self.a
        a(f"""s_bfe_u32 s72, {sB}, 0x20005
        s_lshl_b32 s72, s72, 11
        s_lshr_b32 s73, {sB}, 7
        s_lshl_b32 s73, s73, 10
        s_add_u32 s72, s72, s73
        s_bfe_u32 s73, {sB}, 0x20002
        s_lshl_b32 s73, s73, 8
        s_add_u32 s72, s72, s73
        s_bfe_u32 s73, {sB}, 0x10004
        s_lshl_b32 s73, s73, 7
        s_add_u32 s72, s72, s73
        s_and_b32 s73, {sB}, 3
        s_mul_i32 s73, s73, 80
        s_sub_u32 s74, {sWV}, 4
        s_lshl_b32 s75, s74, 3
        s_add_u32 s73, s73, s75
        s_lshl_b32 s73, s73, 13
        s_add_u32 s72, s72, s73
        s_add_u32 s72, s72, {WF}
        s_lshl_b32 s74, s74, 10
        s_add_u32 s74, s74, {TRS}
        v_lshrrev_b32 v5, 3, {vL}
        v_and_b32 v6, 7, {vL}
        v_lshlrev_b32 v8, 4, v5
        v_lshl_add_u32 v8, v6, 7, v8
        v_add_u32 v8, s74, v8
        v_add_u32 v9, s74, {vL16}
        v_lshlrev_b32 v10, 4, v6
        v_lshl_add_u32 v10, v5, 13, v10""")
        for i in range(12):
            a(f"v_lshl_or_b32 v{200+i}, v{217+2*i}, 16, v{216+2*i}")
        for rnd in range(3):
            a(f"ds_write_b128 v8, {vr(200+4*rnd,4)}")
            a(f"ds_read_b128 {vr(200+4*rnd,4)}, v9")
        skip = a.lab("Lw")
        a("s_waitcnt lgkmcnt(0)")
        for rnd in range(3):
            if rnd == 2:
                a(f"s_cmp_gt_u32 {sWV}, 5\ns_cbranch_scc1 {skip}")
            a(f"buffer_store_dwordx4 {vr(200+4*rnd,4)}, v10, {WS}, s72 offen sc1")
            a(f"s_add_u32 s72, s72, {32*8192}")
        a(f"{skip}:")

    def wq_dma(self):
        a = self.a
        a(f"""v_lshrrev_b32 v5, 3, {vL}
        v_bfe_u32 v6, {vL}, 4, 1
        s_and_b32 s72, {sWV}, 1
        s_lshl_b32 s72, s72, 1
        v_or_b32 v6, s72, v6
        v_lshlrev_b32 v6, 1, v6
        v_and_b32 v7, 7, {vL}
        v_xor_b32 v6, v6, v7
        v_mul_u32_u24 v5, 3840, v5
        v_lshl_add_u32 v5, v6, 4, v5
        s_mul_i32 s72, {sWM}, {8*3840}
        s_lshl_b32 s73, {sTB0}, 7
        s_add_u32 s72, s72, s73
        s_lshl_b32 s73, {sWM}, 10""")
        for it in range(20):
            a(f"s_add_u32 m0, s73, {XS + it*4096}")
            a(f"buffer_load_dwordx4 v5, {SWQ}, s72 offen lds")
            a(f"s_add_u32 s72, s72, {32*3840}")

    def phase0(self):
        a = self.a
        z1, z2, l1, l2, l3, l4, l5, l6, l7, l8 = (a.lab("Lq") for _ in range(10))
        a(f"""s_lshr_b32 s80, {sTB0}, 1
        s_and_b32 s81, {sTB0}, 1
        s_and_b32 s82, s80, 7
        s_lshl_b32 s82, s82, 8
        s_lshr_b32 s83, s80, 3
        s_lshl_b32 s83, s83, 4
        s_add_u32 s82, s82, s83
        s_lshl_b32 s83, s81, 3
        s_add_u32 s82, s82, s83
        s_add_u32 s82, s82, {sWV}
        s_mul_i32 s82, s82, 1280
        s_mov_b32 s83, {128*1280}
        s_cmp_lg_u32 {sWV}, 6
        s_cbranch_scc1 {z1}
        v_lshlrev_b32 v5, 15, {vL}
        s_lshl_b32 s70, {sB}, 7
        v_mov_b32 v18, 0
        v_mov_b32 v19, 0
        s_mov_b64 exec, {(1<<NFLAG)-1}
        buffer_store_dwordx2 v[18:19], v5, {WS}, s70 offen sc1
        s_mov_b64 exec, -1
        {z1}:""")
        self.dma_rows(SX, 32 * 1280, "s83", "s82")
        a(f"""s_mul_i32 s84, s80, 163840
        s_mul_i32 s85, {sCB0}, 20480
        s_add_u32 s84, s84, s85
        s_lshl_b32 s85, s81, 7
        s_add_u32 s84, s84, s85
        s_add_u32 s84, s84, {X0}
        s_lshl_b32 s85, s80, 12
        s_lshl_b32 s86, {sCB0}, 9
        s_add_u32 s85, s85, s86
        s_lshl_b32 s86, s81, 8
        s_add_u32 s85, s85, s86
        s_add_u32 s85, s85, {SS0}
        s_lshl_b32 s32, {sTB0}, 3
        s_add_u32 s32, s32, {sCB0}
        s_lshl_b32 s32, s32, 7""")
        self.if_hi(l1)
        self.wf_loads()
        a(f"""s_cmp_lg_u32 {sWV}, 6
        s_cbranch_scc1 {z2}
        s_and_b32 s70, {sB}, 1
        s_lshl_b32 s70, s70, 7
        s_waitcnt vmcnt(26)
        v_mov_b32 v18, 0
        v_mov_b32 v19, 1
        s_mov_b64 exec, 1
        buffer_atomic_add v19, v18, {SDBG}, s70 offen sc1
        s_mov_b64 exec, -1
        {z2}:
        s_cmp_lg_u32 {sWV}, 7
        s_cbranch_scc1 {l2}
        {l1}:""")
        self.gen_F()
        self.if_lo(l2)
        a(f"s_waitcnt vmcnt(0)\n{l2}:\ns_waitcnt vmcnt(16) lgkmcnt(0)\ns_barrier")
        self.stamp(1)
        self.if_lo(l3)
        self.read_rows_frags()
        self.dual_setup(sCB0)
        self.ep_setup()
        self.x_store_setup()
        a("s_waitcnt lgkmcnt(0)\ns_barrier")
        self.gcore(FI, 10, True, False, False)
        self.ep_write(True)
        a("s_waitcnt lgkmcnt(0)\ns_barrier")
        self.x_store("s84")
        self.ss_store(sCB0, "s85")
        a(f"s_branch {l4}\n{l3}:\ns_barrier")
        a(f"s_cmp_ge_u32 {sTB0}, 30\ns_cbranch_scc1 {l5}")
        self.wq_dma()
        a(f"s_waitcnt vmcnt(20)\ns_branch {l6}\n{l5}:\ns_waitcnt vmcnt(0)\n{l6}:")
        self.wf_stores()
        a(f"s_cmp_ge_u32 {sR}, 20\ns_cbranch_scc1 {l7}")
        self.col_tables()
        self.col_twiddles()
        a(f"{l7}:\ns_waitcnt lgkmcnt(0)\ns_barrier")
        a(f"s_cmp_lg_u32 {sWV}, 5\ns_cbranch_scc1 {l4}")
        a(f"v_lshlrev_b32 v5, 7, {vL}\ns_movk_i32 s89, 128")
        self.poll(SDBG, "v5", "0", 2, "s89")
        a(f"{l4}:")
        self.stamp(2)
        a("s_waitcnt vmcnt(0)\ns_barrier")
        self.signal("s32")
        self.stamp(3)
        self.if_hi(l8)
        self.job_wq()
        a(f"{l8}:")

    def job_wq(self):
        a = self.a
        end = a.lab("Lb")
        a(f"s_cmp_ge_u32 {sTB0}, 30\ns_cbranch_scc1 {end}")
        a(f"""v_bfe_u32 v5, {vL}, 2, 2
        v_lshl_add_u32 v6, {vG}, 3, v5
        v_lshlrev_b32 v6, 7, v6
        v_lshrrev_b32 v5, 1, v5
        v_and_b32 v7, 1, {vG}
        v_lshl_add_u32 v5, v7, 1, v5
        v_xor_b32 v5, {sWM}, v5
        v_lshl_add_u32 v6, v5, 5, v6
        v_and_b32 v5, 3, {vL}
        v_lshl_add_u32 v8, v5, 3, v6
        v_add_u32 v9, 0xa000, v8""")
        for ks in range(20):
            for i in range(2):
                reg, off = ("v8", ks * 4096) if ks < 10 else ("v9", (ks - 10) * 4096)
                a(f"ds_read_b64_tr_b16 {vr(GA+4*ks+2*i,2)}, {reg} offset:{XS+off+i*512}")
        a(f"""s_lshl_b32 s72, {sTB0}, 6
        s_lshl_b32 s73, {sWM}, 4
        s_add_u32 s72, s72, s73
        v_add_u32 v5, s72, {vN}
        s_cmp_ge_u32 {sTB0}, 10
        s_cselect_b32 s74, 1, 0
        s_cmp_ge_u32 {sTB0}, 20
        s_cselect_b32 s74, 2, s74
        s_mul_i32 s73, s74, 640
        v_subrev_u32 v5, s73, v5
        v_mul_u32_u24 v6, 3277, v5
        v_lshrrev_b32 v6, 16, v6
        v_mul_u32_u24 v7, 20, v6
        v_sub_u32 v7, v5, v7
        v_lshrrev_b32 v8, 1, v6
        s_mov_b32 s73, 163840
        v_mul_lo_u32 v8, v8, s73
        v_and_b32 v6, 1, v6
        v_lshl_add_u32 v8, v6, 11, v8
        s_lshl_b32 s75, s74, 4
        v_add_u32 v9, s75, v7
        v_bfe_u32 v10, v7, 1, 1
        v_and_b32 v11, 1, v7
        v_lshl_add_u32 v10, v10, 2, v11
        s_lshl_b32 s75, s74, 1
        s_add_u32 s75, s75, 64
        v_add_u32 v10, s75, v10
        v_cmp_gt_u32 vcc, 16, v7
        v_cndmask_b32 v9, v10, v9, vcc
        v_add_u32 v10, 72, v7
        s_cmp_eq_u32 s74, 2
        s_cselect_b64 vcc, -1, 0
        v_cndmask_b32 v9, v9, v10, vcc
        v_lshl_add_u32 v8, v9, 4, v8
        v_lshrrev_b32 v5, 1, {vG}
        v_lshl_add_u32 v8, v5, 9, v8
        v_and_b32 v5, 1, {vG}
        v_lshl_add_u32 v8, v5, 12, v8
        s_cmp_eq_u32 s74, 0
        s_cselect_b32 s75, {fbits(AMP*QS)}, s87
        s_mul_i32 s72, {sCB0}, 20480
        s_add_u32 s72, s72, {WQ}
        v_mov_b32 v10, s75""".replace("s_cmp_eq_u32 s74, 0", f"s_mov_b32 s87, {fbits(AMP)}\ns_cmp_eq_u32 s74, 0"))
        self.gcore(FI, 10, True, True, False)
        for ct in range(5):
            lo, hi = GLO + 4 * ct, GHI + 4 * ct
            a(f"v_pk_add_f32 {vr(lo,2)}, {vr(lo,2)}, {vr(hi,2)}")
            a(f"v_pk_add_f32 {vr(lo+2,2)}, {vr(lo+2,2)}, {vr(hi+2,2)} neg_lo:[0,1] neg_hi:[0,1]")
            for h in range(2):
                a(f"v_pk_mul_f32 {vr(lo+2*h,2)}, {vr(lo+2*h,2)}, v[10:11] op_sel_hi:[1,0]")
        a(f"""s_cmp_eq_u32 {sCB0}, 0
        s_cselect_b32 s73, 16, 0
        v_cmp_le_u32 vcc, s73, {vL}
        v_mul_f32 v5, {fbits(1/math.sqrt(2))}, v{GLO}
        v_cndmask_b32 v{GLO}, v5, v{GLO}, vcc
        v_cndmask_b32 v{GLO+1}, 0, v{GLO+1}, vcc""")
        for ct in range(5):
            a(f"v_cvt_pk_bf16_f32 v{GB+2*ct}, v{GLO+4*ct}, v{GLO+4*ct+1}")
            a(f"v_cvt_pk_bf16_f32 v{GB+1+2*ct}, v{GLO+4*ct+2}, v{GLO+4*ct+3}")
        for p in range(3):
            a(f"v_permlane16_swap_b32 v{GB+4*p}, v{GB+2+4*p}")
            a(f"v_permlane16_swap_b32 v{GB+1+4*p}, v{GB+3+4*p}")
            if p == 2:
                a("s_mov_b32 exec_lo, 0xffff\ns_mov_b32 exec_hi, 0xffff")
            a(f"buffer_store_dwordx4 {vr(GB+4*p,4)}, v8, {WS}, s72 offen sc1")
            a("s_add_u32 s72, s72, 8192")
        a(f"s_mov_b64 exec, -1\n{end}:")

    def jobs_idle(self):
        a = self.a
        l0, l1, l2, l3, l4 = (a.lab("Lc") for _ in range(5))
        self.if_lo(l4)
        a(f"""s_sub_u32 s80, {sR}, 20
        s_lshl_b32 s80, s80, 3
        s_add_u32 s80, s80, {sX}
        s_lshl_b32 s80, s80, 2
        s_add_u32 s80, s80, {sWV}
        s_mov_b32 s77, {fbits(1/640)}
        {l3}:
        s_mul_i32 s81, s80, 656
        s_lshr_b32 s81, s81, 16
        s_mul_i32 s82, s81, 100
        s_sub_u32 s82, s80, s82
        s_mul_i32 s83, s82, 205
        s_lshr_b32 s83, s83, 10
        s_mul_i32 s84, s83, 5
        s_sub_u32 s84, s82, s84
        s_mul_i32 s81, s81, 80
        s_lshl_b32 s84, s84, 4
        s_add_u32 s81, s81, s84
        v_add_u32 v8, s81, {vN}
        s_mul_i32 s84, s83, 40
        s_sub_u32 s85, s83, 16
        s_mul_i32 s85, s85, 160
        s_add_u32 s85, s85, 16
        s_cmp_lt_u32 s83, 16
        s_cselect_b32 s84, s84, s85
        s_cselect_b32 s85, 8, 20
        s_cselect_b64 vcc, -1, 0
        v_lshrrev_b32 v5, 1, {vG}
        v_mul_u32_u24 v5, 20, v5
        v_and_b32 v6, 1, {vG}
        v_lshl_add_u32 v5, v6, 2, v5
        v_mul_u32_u24 v6, 40, {vG}
        v_cndmask_b32 v5, v6, v5, vcc
        v_mul_u32_u24 v5, 1280, v5
        v_lshl_add_u32 v5, v8, 1, v5
        s_mul_i32 s84, s84, 1280
        s_mul_i32 s85, s85, 1280
        s_add_u32 s85, s85, s84""")
        for e in range(8):
            a(f"buffer_load_ushort v{32+e}, v5, {SWO}, {'s84' if e < 4 else 's85'} offen offset:{1280*(e%4)}")
        a(f"""v_and_b32 v5, 1, {vG}
        v_lshrrev_b32 v6, 1, {vG}
        v_lshlrev_b32 v5, 3, v5
        v_lshl_add_u32 v5, v6, 2, v5
        s_lshl_b32 s84, s83, 4
        v_add_u32 v5, s84, v5
        v_cmp_ne_u32 vcc, 0, v5
        v_cndmask_b32 v12, 0x140, v5, vcc""")
        for e in range(1, 4):
            a(f"v_add_u32 v{12+e}, {e}, v5")
        for e in range(4):
            a(f"v_mul_u32_u24 v{12+e}, v{12+e}, v8")
            a(f"v_cvt_f32_u32 v{12+e}, v{12+e}")
            a(f"v_mul_f32 v{12+e}, s77, v{12+e}")
            a(f"v_fract_f32 v{12+e}, v{12+e}")
            a(f"v_cos_f32 v{16+2*e}, v{12+e}")
            a(f"v_sin_f32 v{17+2*e}, -v{12+e}")
        a(f"""v_mul_f32 v5, {fbits(1/math.sqrt(2))}, v16
        v_cndmask_b32 v16, v5, v16, vcc
        v_cndmask_b32 v17, {fbits(1/math.sqrt(2))}, v17, vcc""")
        for e in range(4):
            a(f"v_cvt_pk_bf16_f32 v{24+e}, v{16+2*e}, v{17+2*e}")
        a(f"""s_lshl_b32 s84, s80, 10
        s_add_u32 s85, s84, {FT}
        s_add_u32 s84, s84, {WOT}
        buffer_store_dwordx4 v[24:27], {vL16}, {WS}, s85 offen sc1
        s_waitcnt vmcnt(1)
        v_lshl_or_b32 v28, v33, 16, v32
        v_lshl_or_b32 v29, v35, 16, v34
        v_lshl_or_b32 v30, v37, 16, v36
        v_lshl_or_b32 v31, v39, 16, v38
        buffer_store_dwordx4 v[28:31], {vL16}, {WS}, s84 offen sc1
        s_add_u32 s80, s80, 384
        s_cmp_lt_u32 s80, 800
        s_waitcnt vmcnt(0)
        s_cbranch_scc1 {l3}""")
        a(f"{l4}:\ns_waitcnt vmcnt(0) lgkmcnt(0)\ns_barrier")
        a(f"s_add_u32 s72, s32, {F_WQ*FSTRIDE}")
        self.signal("s72")
        a(f"""s_sub_u32 s80, {sR}, 12
        s_cmp_ge_u32 {sR}, 24
        s_cselect_b32 s80, {sX}, s80
        s_cmp_ge_u32 s80, 10
        s_cbranch_scc1 {l0}
        s_lshl_b32 s81, s80, 1
        s_lshr_b32 s82, {sWV}, 2
        s_add_u32 s81, s81, s82
        s_and_b32 s82, {sWV}, 3
        s_lshl_b32 s83, s81, 1
        s_lshr_b32 s84, s82, 1
        s_add_u32 s83, s83, s84
        s_mul_i32 s83, s83, 20
        s_and_b32 s84, s82, 1
        s_lshl_b32 s84, s84, 2
        s_add_u32 s83, s83, s84
        s_sub_u32 s84, s81, 16
        s_lshl_b32 s84, s84, 3
        s_lshl_b32 s85, s82, 1
        s_add_u32 s84, s84, s85
        s_mul_i32 s84, s84, 20
        s_add_u32 s84, s84, 16
        s_cmp_lt_u32 s80, 8
        s_cselect_b32 s82, s83, s84
        s_cselect_b32 s83, 8, 20
        s_mul_i32 s82, s82, 1280
        s_mul_i32 s83, s83, 1280""")
        self.dma_rows(SWO, 1280, "s83", "s82")
        a("s_waitcnt vmcnt(0)\ns_barrier")
        self.if_lo(l1)
        self.read_rows_frags()
        self.dual_setup(sCB0)
        self.ep_setup()
        self.gcore(FI, 10, True, False, False)
        self.ep_write(True)
        a(f"{l1}:\ns_waitcnt lgkmcnt(0)\ns_barrier")
        a(f"""s_mul_i32 s81, {sCB0}, 102400
        s_mul_i32 s82, s80, 10240
        s_add_u32 s81, s81, s82
        s_add_u32 s81, s81, {WOH}
        v_mul_u32_u24 v5, 144, {vN}
        v_lshl_add_u32 v5, {vG}, 4, v5
        s_mov_b32 s82, {sWV}
        {l2}:
        s_cmp_ge_u32 s82, 5
        s_cselect_b32 s83, {64 - 5*16*144}, 0
        s_mul_i32 s84, s82, {16*144}
        s_add_u32 s83, s83, s84
        s_add_u32 s83, s83, {EP}
        v_add_u32 v6, s83, v5
        ds_read_b128 v[8:11], v6
        s_lshl_b32 s84, s82, 10
        s_add_u32 s84, s84, s81
        s_add_u32 s82, s82, 8
        s_cmp_lt_u32 s82, 10
        s_waitcnt lgkmcnt(0)
        buffer_store_dwordx4 v[8:11], {vL16}, {WS}, s84 offen sc1
        s_cbranch_scc1 {l2}
        {l0}:""")

    def unpack(self, dst, src, n):
        for i in range(n):
            self.a(f"v_lshlrev_b32 v{dst+2*i}, 16, v{src+i}")
            self.a(f"v_and_b32 v{dst+2*i+1}, 0xffff0000, v{src+i}")

    def cmul_pack(self, c, s):
        a = self.a
        for h in range(4):
            dr, di, tr, ti = (vr(x + 2 * h, 2) for x in (self.DR, self.DI, self.TR, self.TI))
            cc, ss = vr(c + 2 * h, 2), vr(s + 2 * h, 2)
            a(f"v_pk_mul_f32 {tr}, {dr}, {cc}")
            a(f"v_pk_mul_f32 {ti}, {di}, {cc}")
            a(f"v_pk_fma_f32 {tr}, {di}, {ss}, {tr} neg_lo:[1,0,0] neg_hi:[1,0,0]")
            a(f"v_pk_fma_f32 {ti}, {dr}, {ss}, {ti}")
        for h in range(4):
            a(f"v_cvt_pk_bf16_f32 v{self.BR+h}, v{self.TR+2*h}, v{self.TR+2*h+1}")
            a(f"v_cvt_pk_bf16_f32 v{self.BI+h}, v{self.TI+2*h}, v{self.TI+2*h+1}")

    def mm(self, d, x, y, first):
        self.a(f"v_mfma_f32_16x16x32_bf16 {vr(d,4)}, {vr(x,4)}, {vr(y,4)}, {'0' if first else vr(d,4)}")

    RS, ZS, EX = EP, 81920, 98304
    T1C, T1S, T2C, T2S = 20, 28, 36, 44
    C1, S1, N1, C2, S2, N2, S4E, C4O, S4O = 52, 56, 60, 64, 72, 80, 88, 96, 104
    WRAW, WR, WI = 112, 120, 128
    URAW, R0, R1, RS0, RS1, DR, DI, TR, TI, BR, BI, AF = 136, 144, 152, 160, 168, 176, 184, 192, 200, 208, 212, 216

    def col_tables(self):
        a = self.a
        lp, dn = a.lab("Lk"), a.lab("Lk")
        a(f"""v_and_b32 v5, 31, {vL}
        v_lshrrev_b32 v6, 5, {vL}
        v_lshl_add_u32 v7, v5, 1, v6
        s_lshl_b32 s72, {sWM}, 3
        v_mul_u32_u24 v8, s72, v7
        s_lshl_b32 s73, {sWM}, 10
        s_add_u32 s73, s73, {TB}
        s_mov_b32 s74, {sWM}
        {lp}:
        v_cvt_f32_u32 v8, v8
        v_cvt_f32_u32 v7, v7
        v_mul_f32 v60, {fbits(1/64)}, v8
        v_mul_f32 v7, {fbits(1/64)}, v7""")
        for e in range(1, 8):
            a(f"v_add_f32 v{60+e}, v{59+e}, v7")
        for e in range(8):
            a(f"v_sin_f32 v{68+e}, v{60+e}")
            a(f"v_cos_f32 v{60+e}, v{60+e}")
        a(f"v_add_u32 v9, s73, {vL16}")
        for e in range(4):
            a(f"v_cvt_pk_bf16_f32 v{76+e}, v{60+2*e}, v{61+2*e}")
            a(f"v_cvt_pk_bf16_f32 v{80+e}, v{68+2*e}, v{69+2*e}")
        a(f"""ds_write_b128 v9, v[76:79]
        ds_write_b128 v9, v[80:83] offset:6144
        s_cmp_ge_u32 s74, 2
        s_cbranch_scc1 {dn}
        s_lshl_b32 s72, {sWM}, 5
        v_lshl_add_u32 v8, v6, 4, s72
        v_add_u32 v8, 1, v8
        v_mul_u32_u24 v8, v8, v5
        v_lshlrev_b32 v7, 1, v5
        s_add_u32 s73, s73, 4096
        s_mov_b32 s74, 2
        s_branch {lp}
        {dn}:""")

    def col_twiddles(self):
        a = self.a
        a(f"""s_lshr_b32 s72, {sWM}, 1
        s_and_b32 s73, {sWM}, 1
        s_lshl_b32 s74, s73, 5
        s_add_u32 s74, s74, s72
        v_lshl_add_u32 v5, {vN}, 1, s74
        v_cvt_f32_u32 v5, v5
        v_mul_f32 v5, {fbits(1/2048)}, v5
        v_lshlrev_b32 v6, 3, {vG}
        v_cvt_f32_u32 v7, v6
        v_mul_f32 v{self.T1C}, v7, v5""")
        for e in range(1, 8):
            a(f"v_add_f32 v{self.T1C+e}, v{self.T1C+e-1}, v5")
        for e in range(8):
            a(f"v_sin_f32 v{self.T1S+e}, -v{self.T1C+e}")
            a(f"v_cos_f32 v{self.T1C+e}, v{self.T1C+e}")
        a(f"""v_add_u32 v6, s74, v6
        v_cvt_f32_u32 v6, v6
        v_lshrrev_b32 v7, 2, {vN}
        v_and_b32 v8, 3, {vN}
        v_lshl_add_u32 v8, v7, 3, v8
        v_cvt_f32_u32 v7, v8
        v_mul_f32 v9, {fbits(1/2048)}, v7
        v_add_f32 v10, {fbits(4/2048)}, v9""")
        for t in range(2):
            a(f"v_mul_f32 v{self.T2C+4*t}, v6, v{9+t}")
            a(f"v_add_f32 v{9+t}, v{9+t}, v{9+t}")
            for r in range(1, 4):
                a(f"v_add_f32 v{self.T2C+4*t+r}, v{self.T2C+4*t+r-1}, v{9+t}")
        for e in range(8):
            a(f"v_sin_f32 v{self.T2S+e}, v{self.T2C+e}")
            a(f"v_cos_f32 v{self.T2C+e}, v{self.T2C+e}")

    def col_wload(self):
        a = self.a
        a(f"buffer_load_dwordx4 {vr(self.WRAW,4)}, {vL16}, {WS}, s86 offen sc1")
        a(f"buffer_load_dwordx4 {vr(self.WRAW+4,4)}, {vL16}, {WS}, s86 offen offset:1024 sc1")

    def col_prepare(self):
        a = self.a
        l0 = a.lab("Lk")
        a(f"""s_lshr_b32 s72, {sWM}, 1
        s_and_b32 s73, {sWM}, 1
        s_lshl_b32 s74, {sWM}, 8
        s_add_u32 s74, s74, {TB}
        v_lshrrev_b32 v7, 2, {vN}
        v_and_b32 v8, 3, {vN}
        v_lshl_add_u32 v7, v7, 3, v8
        v_lshlrev_b32 v5, 10, {vG}
        v_lshl_add_u32 v6, {vN}, 4, v5
        v_add_u32 v6, s74, v6
        v_lshl_add_u32 v5, v7, 4, v5
        v_add_u32 v5, {TB}, v5
        v_lshlrev_b32 v9, 9, {vG}
        v_lshl_add_u32 v9, v7, 4, v9
        v_add_u32 v9, {TB+4096}, v9
        ds_read_b128 {vr(self.S1,4)}, v6 offset:6144""")
        for t in range(2):
            a(f"ds_read_b128 {vr(self.S2+4*t,4)}, v5 offset:{6144+64*t}")
            a(f"ds_read_b128 {vr(self.S4O+4*t,4)}, v9 offset:{6144+64*t}")
        a(f"ds_read_b128 {vr(self.C1,4)}, v6")
        for t in range(2):
            a(f"ds_read_b128 {vr(self.C2+4*t,4)}, v5 offset:{64*t}")
            a(f"ds_read_b128 {vr(self.C4O+4*t,4)}, v9 offset:{64*t}")
        a(f"""s_mul_i32 s33, {sX}, 20
        s_add_u32 s33, s33, {sR}
        s_lshl_b32 s80, s33, 1
        s_add_u32 s80, s80, {sHI}
        s_lshl_b32 s82, s80, 1
        s_add_u32 s82, s82, s73
        s_lshl_b32 s83, s82, 8
        s_mul_i32 s84, s72, {8*163840}
        s_add_u32 s83, s83, s84
        s_add_u32 s84, s83, {sXA}
        s_add_u32 s85, s84, {4*163840}
        s_lshl_b32 s86, s80, 13
        s_lshl_b32 s74, {sWM}, 11
        s_add_u32 s86, s86, s74
        s_add_u32 s86, s86, {WF}
        s_cmp_eq_u32 {sLAYER}, 0
        s_cbranch_scc1 {l0}""")
        self.col_wload()
        a(f"""{l0}:
        s_mov_b32 s74, 163840
        v_mul_lo_u32 v11, {vG}, s74
        v_lshl_add_u32 v11, {vN}, 4, v11
        v_lshrrev_b32 v5, 5, {vTID}
        v_and_b32 v6, 31, {vTID}
        v_lshlrev_b32 v6, 4, v6
        v_lshl_add_u32 v16, v5, 12, v6
        v_lshlrev_b32 v12, 4, {vTID}
        v_add_u32 v12, {self.RS}, v12
        s_lshl_b32 s74, s72, 12
        s_add_u32 s74, s74, {self.RS}
        v_lshlrev_b32 v13, 9, {vG}
        v_lshl_add_u32 v13, {vN}, 5, v13
        v_add_u32 v13, s74, v13
        s_lshl_b32 s75, {sHI}, 13
        s_lshl_b32 s74, s73, 11
        s_add_u32 s74, s74, s75
        s_lshl_b32 s76, s72, 7
        s_add_u32 s74, s74, s76
        s_add_u32 s74, s74, {self.ZS}
        v_bfe_u32 v5, {vN}, 2, 1
        v_lshlrev_b32 v5, 10, v5
        v_lshl_add_u32 v5, {vG}, 8, v5
        v_lshrrev_b32 v6, 3, {vN}
        v_lshl_add_u32 v5, v6, 6, v5
        v_lshl_add_u32 v5, v8, 4, v5
        v_add_u32 v14, s74, v5
        s_lshl_b32 s74, s72, 12
        s_add_u32 s74, s74, s75
        s_add_u32 s74, s74, {self.ZS}
        v_add_u32 v15, s74, {vL16}
        s_lshl_b32 s76, s73, 9
        s_add_u32 s74, s74, s76
        v_lshlrev_b32 v5, 10, v6
        v_lshl_add_u32 v5, v8, 4, v5
        v_bfe_u32 v6, {vN}, 2, 1
        v_lshl_add_u32 v5, v6, 7, v5
        v_lshrrev_b32 v6, 1, {vG}
        v_lshl_add_u32 v5, v6, 8, v5
        v_and_b32 v6, 1, {vG}
        v_lshl_add_u32 v5, v6, 3, v5
        v_add_u32 v8, s74, v5
        s_lshl_b32 s74, s72, 10
        s_add_u32 s74, s74, s75
        s_lshl_b32 s76, s73, 11
        s_add_u32 s74, s74, s76
        s_add_u32 s74, s74, {self.EX}
        v_add_u32 v9, s74, {vL16}
        v_xor_b32 v10, 0x800, v9
        s_lshl_b32 s74, {sWV}, 5
        v_add_u32 v5, s74, {vL}
        s_lshl_b32 s74, s72, 7
        s_add_u32 s74, s74, {sX}
        v_lshl_add_u32 v6, {vN}, 3, s74
        v_cmp_gt_u32 vcc, 32, {vL}
        v_cndmask_b32 v5, v6, v5, vcc
        v_lshlrev_b32 v17, 7, v5
        s_mov_b32 s76, {fbits(1/640)}
        v_mov_b32 v18, {fbits(1e-5)}
        s_cmp_eq_u32 s73, 0
        s_cselect_b32 s75, 0x80008000, 0
        s_mov_b32 s74, 0x80008000
        s_mov_b32 s87, {fbits(1/2048)}
        s_waitcnt lgkmcnt(5)""")
        for i in range(4):
            a(f"v_xor_b32 v{self.N1+i}, s74, v{self.S1+i}")
        for i in range(8):
            a(f"v_xor_b32 v{self.N2+i}, s74, v{self.S2+i}")
            a(f"v_xor_b32 v{self.S4E+i}, s75, v{self.S2+i}")
            a(f"v_xor_b32 v{self.S4O+i}, s75, v{self.S4O+i}")

    def col_main(self):
        a = self.a
        nz, l1 = a.lab("Lnz"), a.lab("Lk")
        EXO = self.EX - self.ZS
        self.poll(WS, "v17", sFL, 48)
        self.stamp(4)
        for cb in range(8):
            a(f"buffer_load_dwordx4 {vr(self.TR+4*cb,4)}, v16, {WS}, {sSS} offen offset:{512*cb} sc1")
        a(f"""buffer_load_dwordx4 {vr(self.URAW,4)}, v11, {WS}, s84 offen sc1
        buffer_load_dwordx4 {vr(self.URAW+4,4)}, v11, {WS}, s85 offen sc1
        s_add_u32 s84, s83, {sXB}
        s_add_u32 s85, s84, {4*163840}""")
        T = self.TR
        for k in range(1, 8):
            a(f"s_waitcnt vmcnt({9-k})")
            for i in range(0, 4, 2):
                a(f"v_pk_add_f32 {vr(T+i,2)}, {vr(T+i,2)}, {vr(T+4*k+i,2)}")
        for i in range(4):
            a(f"v_fma_f32 v{T+i}, v{T+i}, s76, v18")
        for i in range(4):
            a(f"v_rsq_f32 v{T+i}, v{T+i}")
        a(f"s_nop 0\nds_write_b128 v12, {vr(T,4)}\ns_waitcnt lgkmcnt(0)\ns_barrier")
        for i in range(4):
            a(f"ds_read_b128 {vr(self.RS0+4*i,4)}, v13 offset:{(i//2)*2048+(i%2)*16}")
        a(f"s_waitcnt vmcnt(0)\ns_cmp_lg_u32 {sLAYER}, 0\ns_cbranch_scc1 {l1}")
        self.col_wload()
        a(f"s_add_u32 s72, s32, {F_WQ*FSTRIDE}")
        self.signal("s72")
        a(f"{l1}:")
        self.unpack(self.R0, self.URAW, 8)
        a(f"""s_cmp_lg_u32 s82, 1
        s_waitcnt lgkmcnt(0)
        s_cbranch_scc1 {nz}
        s_mov_b32 s87, 0""")
        for i in range(16):
            a(f"v_mov_b32 v{self.RS0+i}, 0")
        a(f"{nz}:")
        for h in range(4):
            p, r0, r1, x1 = vr(self.DR + 2 * h, 2), vr(self.RS0 + 2 * h, 2), vr(self.RS1 + 2 * h, 2), vr(self.R1 + 2 * h, 2)
            a(f"v_pk_mul_f32 {p}, {vr(self.R0+2*h,2)}, {r0}")
            a(f"v_pk_fma_f32 {vr(self.TR+2*h,2)}, {x1}, {r1}, {p}")
            a(f"v_pk_fma_f32 {vr(self.TI+2*h,2)}, {x1}, {r1}, {p} neg_lo:[1,0,0] neg_hi:[1,0,0]")
        for h in range(4):
            a(f"v_cvt_pk_bf16_f32 v{self.BR+h}, v{self.TR+2*h}, v{self.TR+2*h+1}")
        a(f"ds_write_b128 v14, {vr(self.BR,4)}")
        for h in range(4):
            a(f"v_cvt_pk_bf16_f32 v{self.BI+h}, v{self.TI+2*h}, v{self.TI+2*h+1}")
        a(f"ds_write_b128 v14, {vr(self.BI,4)} offset:4096\ns_waitcnt lgkmcnt(0)\ns_barrier")
        AF, DR, DI, BR, BI = self.AF, self.DR, self.DI, self.BR, self.BI
        for i in range(4):
            a(f"ds_read_b128 {vr(AF+4*i,4)}, v15 offset:{1024*i}")
        a("s_waitcnt lgkmcnt(2)")
        for t in range(2):
            self.mm(DR + 4 * t, AF + 4 * t, self.C1, True)
            self.mm(DI + 4 * t, AF + 4 * t, self.N1, True)
        a("s_waitcnt lgkmcnt(0)")
        for t in range(2):
            self.mm(DR + 4 * t, AF + 8 + 4 * t, self.S1, False)
            self.mm(DI + 4 * t, AF + 8 + 4 * t, self.C1, False)
        self.cmul_pack(self.T1C, self.T1S)
        for t in range(2):
            self.mm(DR + 4 * t, self.C2 + 4 * t, BR, True)
            self.mm(DI + 4 * t, self.N2 + 4 * t, BR, True)
        for t in range(2):
            self.mm(DR + 4 * t, self.S2 + 4 * t, BI, False)
            self.mm(DI + 4 * t, self.C2 + 4 * t, BI, False)
        a("s_waitcnt vmcnt(0)")
        self.unpack(self.WR, self.WRAW, 8)
        self.cmul_pack(self.WR, self.WI)
        for t in range(2):
            self.mm(DR + 4 * t, BR, self.C2 + 4 * t, True)
            self.mm(DI + 4 * t, BR, self.S2 + 4 * t, True)
        for t in range(2):
            self.mm(DR + 4 * t, BI, self.N2 + 4 * t, False)
            self.mm(DI + 4 * t, BI, self.C2 + 4 * t, False)
        self.cmul_pack(self.T2C, self.T2S)
        for t in range(2):
            a(f"ds_write_b64 v8, {vr(BR+2*t,2)} offset:{EXO+64*t}")
            a(f"ds_write_b64 v8, {vr(BI+2*t,2)} offset:{EXO+2048+64*t}")
        a("s_waitcnt lgkmcnt(0)\ns_barrier")
        for p in range(2):
            a(f"ds_read_b128 {vr(AF+8*p,4)}, v9 offset:{4096*p}")
        for p in range(2):
            a(f"ds_read_b128 {vr(AF+8*p+4,4)}, v10 offset:{4096*p}")
        a("v_mov_b32 v6, s87\ns_waitcnt lgkmcnt(2)")
        for t in range(2):
            self.mm(DR + 4 * t, self.C2 + 4 * t, AF, True)
            self.mm(DI + 4 * t, self.C4O + 4 * t, AF + 8, True)
        a("s_waitcnt lgkmcnt(0)")
        for t in range(2):
            self.mm(DR + 4 * t, self.S4E + 4 * t, AF + 4, False)
            self.mm(DI + 4 * t, self.S4O + 4 * t, AF + 12, False)
        for neg, t, r, b, so in (("", self.TR, self.R0, BR, "s84"), (" neg_lo:[0,1] neg_hi:[0,1]", self.TI, self.R1, BI, "s85")):
            for h in range(4):
                x = vr(t + 2 * h, 2)
                a(f"v_pk_add_f32 {x}, {vr(DR+2*h,2)}, {vr(DI+2*h,2)}{neg}")
                a(f"v_pk_fma_f32 {x}, {x}, v[6:7], {vr(r+2*h,2)} op_sel_hi:[1,0,1]")
            for h in range(4):
                a(f"v_cvt_pk_bf16_f32 v{b+h}, v{t+2*h}, v{t+2*h+1}")
            a(f"buffer_store_dwordx4 {vr(b,4)}, v11, {WS}, {so} offen sc1")

    XR = 81920
    QH, NRM, DEC, SSP, VSCR = 102400, 112640, 112768, 114688, 143360
    QACC, QF, QAD = 60, 124, 172

    def h_dma(self, voff, s_lds, s_src, q):
        a = self.a
        a(f"s_add_u32 m0, {s_lds}, {(q%5)*16384}")
        a(f"s_add_u32 s83, {s_src}, {q*16384}")
        for i in range(4):
            a(f"buffer_load_dwordx4 {voff}, {WS}, s83 offen offset:{1024*i} sc1 lds")

    def qkv_helper(self):
        a = self.a
        XR = self.XR
        a(f"""s_lshl_b32 s78, {sWM}, 12
        s_mul_i32 s79, {sG}, 163840
        s_add_u32 s79, s79, {WQ}
        s_add_u32 s79, s79, s78""")
        for q in range(5):
            self.h_dma(vL16, "s78", "s79", q)
        a(f"""s_mul_i32 s80, {sT}, 163840
        s_add_u32 s80, s80, {sXB}
        s_add_u32 s80, s80, s78
        s_add_u32 s81, s78, {XR}
        s_mul_i32 s82, {sCB}, 102400
        s_add_u32 s82, s82, {FT}
        s_add_u32 s82, s82, s78
        s_and_b32 s74, {sWM}, 1
        s_lshl_b32 s74, s74, 1
        v_lshlrev_b32 v5, 2, {vG}
        v_xor_b32 v5, s74, v5
        v_xor_b32 v5, v5, {vL}
        v_lshlrev_b32 v8, 4, v5
        v_add_u32 v9, s81, v8
        v_add_u32 v20, 0x8000, v9
        v_bfe_u32 v5, {vL}, 2, 2
        v_and_b32 v7, 1, {vG}
        v_lshrrev_b32 v6, 1, {vG}
        v_lshl_add_u32 v6, v6, 3, v5
        v_lshlrev_b32 v6, 8, v6
        v_lshl_add_u32 v6, v7, 12, v6
        s_lshl_b32 s74, {sHALF}, 2
        s_add_u32 s74, s74, {sWM}
        v_lshlrev_b32 v5, 1, v5
        v_xor_b32 v5, v5, v7
        v_xor_b32 v5, s74, v5
        v_lshl_add_u32 v6, v5, 5, v6
        v_and_b32 v7, 3, {vL}
        v_lshl_add_u32 v6, v7, 3, v6
        v_add_u32 v10, {XR}, v6
        v_add_u32 v11, 0xa000, v10
        s_cmp_eq_u32 {sWM}, 0
        s_cselect_b32 s74, 1, 99
        v_cmp_ne_u32 s[6:7], s74, {vG}
        v_lshrrev_b32 v5, 2, {vL}
        v_lshl_add_u32 v5, v5, 4, v7
        s_lshl_b32 s74, {sWM}, 2
        v_add_lshl_u32 v5, v5, s74, 7
        s_add_u32 s74, {sFL}, {F_COL*FSTRIDE}""")
        self.poll(WS, "v5", "s74", 40)
        self.stamp(6)
        for q in range(5):
            self.h_dma("v8", "s81", "s80", q)
        ACC, RAW, UN = 12, 28, 44
        for q in range(10):
            allow = 4 * (4 - q) + 8 * max(0, q + 2 - 4) if q <= 4 else 8 * (min(q + 2, 9) - q)
            if q >= 8:
                l = a.lab("Lh")
                a(f"s_cmp_lg_u32 {sLAYER}, 0\ns_cbranch_scc1 {l}\ns_waitcnt vmcnt({allow})\n{l}:")
                allow += 4 * (q - 7)
            a(f"s_waitcnt vmcnt({allow}) lgkmcnt(0)\ns_barrier")
            reg, off = ("v9", (q % 5) * 16384) if q % 5 < 2 else ("v20", (q % 5 - 2) * 16384)
            for i in range(4):
                a(f"ds_read_b128 {vr(RAW+4*i,4)}, {reg} offset:{off+1024*i}")
            if 2 <= q <= 6:
                self.h_dma("v8", "s81", "s80", q + 3)
                self.h_dma(vL16, "s78", "s79", q + 3)
            l = a.lab("Lh")
            a(f"s_cmp_eq_u32 {sLAYER}, 0\ns_waitcnt lgkmcnt(0)\ns_cbranch_scc1 {l}")
            for j in range(2):
                kk = (4 * q + 2 * j) % 20
                for i in range(2):
                    a(f"ds_read_b64_tr_b16 {vr(GA+4*(2*q+j)+2*i,2)}, v{10+kk//10} offset:{(kk%10)*4096+1024*i}")
            if q >= 7:
                self.h_dma(vL16, "s78", "s82", q - 7)
            a(f"{l}:")
            for i in range(4):
                if q == 0 and i == 0:
                    for r in range(4):
                        a(f"v_cndmask_b32 v{RAW+r}, 0, v{RAW+r}, s[6:7]")
                u = UN + 8 * (i % 2)
                self.unpack(u, RAW + 4 * i, 4)
                for h in range(4):
                    x, c = vr(u + 2 * h, 2), vr(ACC + 2 * h, 2)
                    if q == 0 and i == 0:
                        a(f"v_pk_mul_f32 {c}, {x}, {x}")
                    else:
                        a(f"v_pk_fma_f32 {c}, {x}, {x}, {c}")
        for i in range(4):
            a(f"v_permlane32_swap_b32 v{ACC+i}, v{ACC+4+i}")
        for i in range(4):
            a(f"v_add_f32 v{ACC+i}, v{ACC+i}, v{ACC+4+i}")
        for i in range(2):
            a(f"v_permlane16_swap_b32 v{ACC+i}, v{ACC+2+i}")
        a(f"""s_lshl_b32 s74, {sWM}, 9
        s_add_u32 s74, s74, {self.SSP}
        v_lshlrev_b32 v5, 5, {vN}
        v_lshl_add_u32 v5, {vG}, 3, v5
        v_add_u32 v5, s74, v5
        v_pk_add_f32 {vr(ACC,2)}, {vr(ACC,2)}, {vr(ACC+2,2)}
        ds_write_b64 v5, {vr(ACC,2)}
        s_waitcnt lgkmcnt(0)
        s_barrier""")
        l0, l1 = a.lab("Lh"), a.lab("Lh")
        a(f"s_cmp_eq_u32 {sLAYER}, 0\ns_cbranch_scc1 {l0}")
        for q in range(3, 6):
            a(f"s_add_u32 m0, s78, {q*16384}\ns_add_u32 s83, s82, {q*16384}")
            for i in range(4):
                a(f"buffer_load_dwordx4 {vL16}, {WS}, s83 offen offset:{1024*i} sc1 lds")
        a(f"""s_lshl_b32 s74, {sWM}, 10
        s_add_u32 m0, s74, 98304
        s_sub_u32 s83, s82, s78
        s_add_u32 s83, s83, m0
        buffer_load_dwordx4 {vL16}, {WS}, s83 offen sc1 lds
        s_branch {l1}
        {l0}:""")
        self.res_load()
        a(f"{l1}:")
        self.att_setup()
        a(f"""s_mul_i32 s72, {sWM}, 2560
        s_add_u32 s72, s72, {self.QH}
        v_add_u32 v5, s72, {vL16}
        v_lshl_add_u32 v6, {vL}, 3, s72
        s_barrier
        ds_read_b128 {vr(AR.Q1,4)}, v5
        ds_read_b128 {vr(AR.Q1+4,4)}, v5 offset:1024
        ds_read_b64 v[6:7], v6 offset:2048
        s_waitcnt lgkmcnt(0)""")
        for q in range(2):
            a(f"v_mov_b32 v{AR.Q2+4*q}, v{6+q}\nv_mov_b32 v{AR.Q2+4*q+3}, v{6+q}")

    def att_setup(self):
        a = self.a
        a(f"s_lshr_b32 s72, {sWM}, 1\ns_mul_i32 s84, s72, {A.HEADB}")
        A.setup_addr(a, vL, vL16, "s84", sHI, "s72", 5)
        a(f"""s_mul_i32 s85, {sWV}, 2560
        s_mul_i32 s86, {sG}, {16*A.CHUNK}
        s_add_u32 s86, s86, {sKV}
        s_add_u32 s86, s86, s85
        s_add_u32 s85, s85, {A.SLOT0}""")
        for q in range(2):
            a(f"v_mov_b32 v{AR.Q2+4*q+1}, 0\nv_mov_b32 v{AR.Q2+4*q+2}, 0")
        for i in range(32):
            a(f"v_mov_b32 v{AR.O+i}, 0")

    def qkv_compute(self):
        a = self.a
        XR, AD = self.XR, self.QAD
        own = A.SLOT0 + A.slot_off(0)
        EA = AD + 10
        a(f"""s_lshr_b32 s72, {sWM}, 1
        s_and_b32 s73, {sWM}, 1
        s_lshl_b32 s74, s72, 11
        v_add_u32 v{AD}, s74, {vL16}
        v_add_u32 v{AD+1}, 0xa000, v{AD}
        v_bfe_u32 v5, {vL}, 2, 2
        v_lshrrev_b32 v6, 5, {vL}
        v_lshl_add_u32 v6, v6, 3, v5
        v_mul_u32_u24 v{EA+1}, 48, v6
        v_lshlrev_b32 v6, 8, v6
        v_and_b32 v7, 3, {vL}
        v_lshl_add_u32 v6, v7, 3, v6
        s_lshl_b32 s74, s73, 1
        v_xor_b32 v7, s74, v5
        v_lshl_add_u32 v6, v7, 6, v6
        v_and_b32 v7, 1, {vG}
        v_lshl_add_u32 v6, v7, 5, v6
        v_add_u32 v{AD+2}, {XR}, v6""")
        for i in range(1, 4):
            a(f"v_xor_b32 v{AD+2+i}, {32*i}, v{AD+2}")
        for i in range(4):
            a(f"v_add_u32 v{AD+6+i}, 0xa000, v{AD+2+i}")
        a(f"""s_mul_i32 s75, {sWM}, 3072
        s_add_u32 s75, s75, {self.VSCR}
        v_and_b32 v5, 3, {vL}
        v_lshl_add_u32 v5, v7, 2, v5
        v_min_u32 v5, 4, v5
        v_and_b32 v6, 1, v5
        v_mul_u32_u24 v6, 24, v6
        v_lshrrev_b32 v5, 1, v5
        v_lshl_add_u32 v5, v5, 3, v6
        v_add3_u32 v{EA+1}, v{EA+1}, v5, s75
        v_and_b32 v5, 31, {vL}
        v_lshrrev_b32 v6, 5, {vL}
        v_lshl_add_u32 v7, v5, 1, v6
        v_mul_u32_u24 v7, 24, v7
        v_add_u32 v{EA}, s75, v7
        v_mul_u32_u24 v6, 20, v6
        v_add_lshl_u32 v{EA+2}, v6, v5, 4
        s_lshl_b32 s75, s73, 8
        s_add_u32 s75, s75, {self.SSP}
        v_lshl_add_u32 v{EA+3}, v5, 2, s75
        s_mul_i32 s76, s72, {A.HEADB}
        s_mul_i32 s77, s73, {2*A.TILE}
        s_add_u32 s77, s77, s76
        s_lshl_b32 s75, s73, 9
        s_add_u32 s76, s76, s75
        s_add_u32 s76, s76, {A.K2OFF}
        s_add_u32 s75, s77, {own}
        v_add_u32 v{EA+4}, s75, {vL16}
        v_add_u32 v{EA+5}, s75, v{EA+2}
        v_lshlrev_b32 v{EA+6}, 3, {vL}
        s_add_u32 s75, s76, {own}
        v_add_u32 v{EA+7}, s75, v{EA+6}
        s_lshl_b32 s75, {sG}, 4
        s_add_u32 s75, s75, {sT}
        s_mul_i32 s75, s75, {A.CHUNK}
        s_add_u32 s75, s75, {sKV}
        s_add_u32 s76, s76, s75
        s_add_u32 s77, s77, s75
        s_mul_i32 s75, {sWM}, 2560
        s_add_u32 s75, s75, {self.QH}
        v_add_u32 v{EA+8}, s75, {vL16}
        v_add_u32 v{EA+9}, s75, v{EA+6}
        s_mov_b32 s78, {fbits(1/640)}
        v_mov_b32 v{EA+10}, {fbits(1e-5)}
        s_barrier""")
        self.stamp(6)

        def reads(k):
            kk, f = k % 20, self.QF + 16 * (k % 3)
            hi, off = kk // 10, (kk % 10) * 4096
            r = []
            for j in range(2):
                r.append(f"ds_read_b128 {vr(f+4*j,4)}, v{AD+hi} offset:{off+1024*j}")
                for i in range(2):
                    r.append(f"ds_read_b64_tr_b16 {vr(f+8+4*j+2*i,2)}, v{AD+2+4*hi+2*j+k%2} offset:{off+1024*i}")
            return r
        for r in reads(0) + reads(1):
            a(r)
        SSR = 8
        for k in range(40):
            a(f"s_waitcnt lgkmcnt({6 if k < 39 else 0})")
            rr = reads(k + 2) if k + 2 < 40 else []
            if k == 39:
                rr = [f"ds_read_b32 v{SSR+4*nt+w}, v{EA+3} offset:{512*w+128*nt}" for nt in range(2) for w in range(4)]
            f = self.QF + 16 * (k % 3)
            per = (2, 2, 1, 1) if k < 39 else (4, 4, 0, 0)
            for j, (mt, nt) in enumerate(((0, 0), (1, 0), (1, 1), (0, 1))):
                d = vr(self.QACC + 32 * nt + 16 * mt, 16)
                a(f"v_mfma_f32_32x32x16_bf16 {d}, {vr(f+4*mt,4)}, {vr(f+8+4*nt,4)}, {'0' if k == 0 else d}")
                if j == 0 and (k == 39 or ((k + 2) % 4 == 0 and k + 2 < 40)):
                    a("s_barrier")
                for _ in range(per[j]):
                    if rr:
                        a(rr.pop(0))
        self.stamp(7)
        KR, K2R, VR, VT, RSD = 124, 132, 134, 148, 16
        a("s_waitcnt lgkmcnt(0)")
        for nt in range(2):
            s = SSR + 4 * nt
            a(f"v_pk_add_f32 {vr(s,2)}, {vr(s,2)}, {vr(s+2,2)}")
        for nt in range(2):
            a(f"v_add_f32 v{SSR+4*nt}, v{SSR+4*nt}, v{SSR+4*nt+1}")
        for nt in range(2):
            a(f"v_fma_f32 v{RSD+2*nt}, v{SSR+4*nt}, s78, v{EA+10}")
        for nt in range(2):
            a(f"v_rsq_f32 v{RSD+2*nt}, v{RSD+2*nt}")

        def sc(dst, src, n, nt):
            for h in range(n):
                r = vr(src + 2 * h, 2)
                a(f"v_pk_mul_f32 {r}, {r}, {vr(RSD+2*nt,2)} op_sel_hi:[1,0]")
            for h in range(n):
                a(f"v_cvt_pk_bf16_f32 v{dst+h}, v{src+2*h}, v{src+2*h+1}")
        for nt in range(2):
            P1 = self.QACC + 32 * nt + 16
            sc(VR + 6 * nt, P1 + 4, 6, nt)
            for i in range(3):
                a(f"ds_write_b64 v{EA}, {vr(VR+6*nt+2*i,2)} offset:{8*i+1536*nt}")
            for i in range(4):
                a(f"ds_read_b64_tr_b16 {vr(VT+8*nt+2*i,2)}, v{EA+1} offset:{(i//2)*768+(i%2)*192+1536*nt}")
        for nt in range(2):
            P0 = self.QACC + 32 * nt
            sc(KR + 4 * nt, P0 + 8, 4, nt)
            a(f"buffer_store_dwordx4 {vr(KR+4*nt,4)}, {vL16}, {WS}, s77 offen offset:{A.TILE*nt} sc1")
            sc(K2R + nt, P0 + 18, 1, nt)
        a(f"""buffer_store_dwordx2 {vr(K2R,2)}, v{EA+6}, {WS}, s76 offen sc1
        s_mov_b32 exec_lo, 0xfffff
        s_mov_b32 exec_hi, 0xfffff
        s_waitcnt lgkmcnt(0)""")
        for nt in range(2):
            for i in range(2):
                a(f"buffer_store_dwordx4 {vr(VT+8*nt+4*i,4)}, v{EA+2}, {WS}, s77 offen offset:{A.TILE*nt+1024+A.VFR*i} sc1")
        for nt in range(2):
            for i in range(2):
                a(f"ds_write_b128 v{EA+5}, {vr(VT+8*nt+4*i,4)} offset:{A.TILE*nt+1024+A.VFR*i}")
        a("s_mov_b64 exec, -1")
        for nt in range(2):
            a(f"ds_write_b128 v{EA+4}, {vr(KR+4*nt,4)} offset:{A.TILE*nt}")
        a(f"ds_write_b64 v{EA+7}, {vr(K2R,2)}")
        Q2T = 146
        for nt in range(2):
            P0 = self.QACC + 32 * nt
            sc(AR.Q1 + 4 * nt, P0, 4, nt)
            a(f"ds_write_b128 v{EA+8}, {vr(AR.Q1+4*nt,4)} offset:{1024*nt}")
            sc(Q2T + nt, P0 + 16, 1, nt)
        a(f"ds_write_b64 v{EA+9}, {vr(Q2T,2)} offset:2048")
        N = 164
        a(f"v_cmp_gt_u32 vcc, 32, {vL}")
        for nt in range(2):
            for h in (4, 5):
                a(f"v_cndmask_b32 v{VR+6*nt+h}, 0, v{VR+6*nt+h}, vcc")
        for nt in range(2):
            a(f"v_dot2_f32_bf16 v{N+2*nt}, v{Q2T+nt}, v{Q2T+nt}, 0")
            a(f"v_dot2_f32_bf16 v{N+2*nt+1}, v{K2R+nt}, v{K2R+nt}, 0")
        for h in range(4):
            for nt in range(2):
                a(f"v_dot2_f32_bf16 v{N+2*nt}, v{AR.Q1+4*nt+h}, v{AR.Q1+4*nt+h}, v{N+2*nt}")
                a(f"v_dot2_f32_bf16 v{N+2*nt+1}, v{KR+4*nt+h}, v{KR+4*nt+h}, v{N+2*nt+1}")
        for h in range(12):
            a(f"v_dot2_f32_bf16 v{N+4}, v{VR+h}, v{VR+h}, {'0' if h == 0 else 'v%d' % (N+4)}")
        for q in range(2):
            a(f"v_mov_b32 v{AR.Q2+4*q}, v{Q2T+q}\nv_mov_b32 v{AR.Q2+4*q+3}, v{Q2T+q}")
        a(f"""v_permlane32_swap_b32 v{N}, v{N+2}
        v_permlane32_swap_b32 v{N+1}, v{N+3}
        v_cmp_gt_u32 vcc, {fbits(2.0**100)}, v{N+4}
        v_pk_add_f32 {vr(N,2)}, {vr(N,2)}, {vr(N+2,2)}
        v_cndmask_b32 v{N+1}, 0x7f800000, v{N+1}, vcc""")
        for sh in (8, 4, 2, 1):
            for r in (N, N + 1):
                a(f"v_max_u32 v{r}, v{r}, v{r} row_ror:{sh} row_mask:0xf bank_mask:0xf")
        a(f"""s_lshl_b32 s75, {sWM}, 5
        s_add_u32 s75, s75, {self.NRM}
        v_lshl_add_u32 v5, {vG}, 3, s75
        s_mov_b32 exec_lo, 0x10001
        s_mov_b32 exec_hi, 0x10001
        ds_write_b64 v5, {vr(N,2)}
        s_mov_b64 exec, -1""")
        self.att_setup()
        a(f"""v_lshlrev_b32 v5, 3, {vN}
        v_add_u32 v5, {self.NRM}, v5
        s_waitcnt lgkmcnt(0)
        s_barrier
        ds_read_b64 {vr(N,2)}, v5
        s_waitcnt lgkmcnt(0)""")
        for sh in (8, 4, 2, 1):
            for r in (N, N + 1):
                a(f"v_max_u32 v{r}, v{r}, v{r} row_ror:{sh} row_mask:0xf bank_mask:0xf")

    def kv_dma(self):
        return [f"buffer_load_dwordx4 {vL16}, {WS}, s81 offen sc1 lds",
                f"buffer_load_dwordx4 {vL16}, {WS}, s81 offen offset:1024 sc1 lds",
                "s_mov_b32 exec_hi, 0",
                f"buffer_load_dwordx4 {vL16}, {WS}, s81 offen offset:2048 sc1 lds",
                "s_mov_b32 exec_hi, -1"]

    def att_dma(self, c):
        a = self.a
        a(f"s_mul_i32 s81, s80, {A.CHUNK}\ns_add_u32 m0, s85, {A.slot_off(c)}\ns_add_u32 s81, s81, s86")
        for x in self.kv_dma():
            a(x)
        a("s_add_u32 s80, s80, 1\ns_and_b32 s80, s80, 15")

    def att_slow(self):
        a = self.a
        M = 138
        for i in range(32):
            a(f"v_mov_b32 v{AR.O+i}, 0")
        a(f"v_mov_b32 v{M}, 0xff800000\nv_mov_b32 v{M+1}, 0xff800000\ns_waitcnt vmcnt(0)")
        for ps in range(2):
            lp = a.lab("Lsl")
            a(f"s_mov_b32 s80, 0\n{lp}:\ns_barrier")
            self.att_dma(0)
            a("s_waitcnt vmcnt(0)\ns_barrier")
            for n in range(4):
                if n % 2 == 0:
                    for r in A.rd_k(n // 2) + (A.rd_v(n // 2) if ps else []):
                        a(r)
                    a("s_waitcnt lgkmcnt(0)")
                a(A.qk1(n))
                a(A.qk2(n))
                s = AR.S + 16 * (n % 3)
                if ps == 0:
                    for i in range(8):
                        a(f"v_max3_f32 v{M+n%2}, v{M+n%2}, v{s+2*i}, v{s+2*i+1}")
                else:
                    for i in range(16):
                        a(f"v_sub_f32 v{s+i}, v{s+i}, v{M+n%2}")
                    for i in range(16):
                        a(A.ex(n, i))
                    a(A.pv(n, 0))
                    a(A.pv(n, 1))
            a(f"s_cmp_lg_u32 s80, 0\ns_cbranch_scc1 {lp}")
            if ps == 0:
                off = A.SLOT0 + A.slot_off(1)
                a(f"""v_lshlrev_b32 v5, 3, {vTID}
                v_xor_b32 v6, 0x800, v5
                v_add_u32 v5, {off}, v5
                v_add_u32 v6, {off}, v6
                ds_write_b64 v5, {vr(M,2)}
                s_waitcnt lgkmcnt(0)
                s_barrier
                ds_read_b64 {vr(M+2,2)}, v6
                s_waitcnt lgkmcnt(0)""")
                for q in range(2):
                    a(f"""v_max_f32 v{M+q}, v{M+q}, v{M+2+q}
                    v_mov_b32 v5, v{M+q}
                    v_permlane32_swap_b32 v5, v{M+q}
                    v_max_f32 v{M+q}, v5, v{M+q}""")
        for i in range(13):
            for x in self.img_piece(i):
                a(x)

    def img_piece(self, i):
        r = []
        if i % 4 == 0:
            r += [f"s_add_u32 m0, s8, {1024*i}", f"s_add_u32 s10, s9, {1024*i}"]
        ld = f"buffer_load_dwordx4 {vL16}, {WS}, s10 offen offset:{1024*(i%4)} sc1 lds"
        return r + (["s_mov_b32 exec_hi, 0", ld, "s_mov_b32 exec_hi, -1"] if i == 12 else [ld])

    def attention(self):
        a = self.a
        N = 164
        l0, l1, l2, l3, l4, l5, slow, done, loop = (a.lab("La") for _ in range(9))
        a(f"""s_lshl_b32 s11, {sG}, 11
        s_add_u32 s11, s11, {sFL}
        s_add_u32 s11, s11, {F_KV*FSTRIDE}
        s_lshl_b32 s12, {sT}, 7
        s_add_u32 s12, s12, s11
        s_mul_i32 s8, {sWV}, 12800
        s_mov_b32 s9, {WOT}
        s_cmp_eq_u32 {sLAYER}, 0
        s_cselect_b32 s9, {WOH}, s9
        s_mul_i32 s72, {sCB}, 102400
        s_add_u32 s9, s9, s72
        s_add_u32 s9, s9, s8""")
        self.stamp(8)
        A.start(a, 0)

        def publish():
            self.if_lo(l0)
            a(f"s_waitcnt vmcnt(0)\n{l0}:\ns_barrier")
            self.signal("s12", payload=f"v{N+1}")
        for n in range(4):
            A.iteration(a, n, 4, publish if n == 2 else None, first=(n == 0))
        a(A.pv(3, 1))
        self.stamp(9)
        self.if_lo(l1)
        a(f"s_barrier\nv_lshlrev_b32 v5, 7, {vL}\ns_cmp_lg_u32 {sLAYER}, 0\ns_cbranch_scc1 {l2}")
        a(f"s_mul_i32 s72, {sWM}, {24*128}\ns_add_u32 s72, s72, {F_IMG*FSTRIDE}")
        self.poll(WS, "v5", "s72", 24)
        a(f"{l2}:")
        self.poll(WS, "v5", "s11", 16, wide=True)
        a(f"""s_mul_i32 s72, {sWM}, 2560
        s_add_u32 s73, s85, s72
        s_add_u32 s74, s86, s72""")
        for c in (1, 2):
            a(f"""s_add_u32 s80, {sT}, {c}
            s_and_b32 s80, s80, 15
            s_mul_i32 s81, s80, {A.CHUNK}
            s_add_u32 m0, s73, {A.slot_off(c)}
            s_add_u32 s81, s81, s74""")
            for i in range(4):
                a(f"buffer_load_dwordx4 {vL16}, {WS}, s81 offen offset:{1024*i} sc1 lds")
            a(f"s_add_u32 m0, m0, 4096\ns_add_u32 s81, s81, 4096")
            a(f"buffer_load_dwordx4 {vL16}, {WS}, s81 offen sc1 lds")
        a(f"""s_mov_b64 exec, 0xffff
        v_mul_f32 v7, v7, v{N}
        v_cmp_nge_f32 vcc, {fbits(3600.0)}, v7
        s_mov_b64 exec, -1
        v_mov_b32 v5, {A.SLOT0 + A.slot_off(0)}
        v_mov_b32 v6, vcc_lo
        ds_write_b32 v5, v6
        s_waitcnt vmcnt(5)
        s_branch {l3}
        {l1}:
        s_waitcnt vmcnt(0)
        s_barrier
        s_cmp_lg_u32 {sLAYER}, 0
        s_cbranch_scc1 {l4}""")
        self.unpack(GLO, GA, 10)
        a(f"s_branch {l3}\n{l4}:")
        self.gcore(0, 20, False, True, False)
        a(f"v_mov_b32 v6, {fbits(AMP)}")
        for h in range(10):
            a(f"v_pk_mul_f32 {vr(GLO+2*h,2)}, {vr(GLO+2*h,2)}, v[6:7] op_sel_hi:[1,0]")
        a(f"""{l3}:
        v_mov_b32 v5, {A.SLOT0 + A.slot_off(0)}
        s_waitcnt lgkmcnt(0)
        s_barrier
        ds_read_b32 v6, v5""")
        self.stamp(10)
        A.start(a, 4)
        a(f"""v_readfirstlane_b32 s72, v6
        s_add_u32 s80, {sT}, 3
        s_and_b32 s80, s80, 15
        s_cmp_lg_u32 s72, 0
        s_cbranch_scc1 {slow}""")
        NT = 64
        prio = ((0, 2), (1, 2), (1, 3))

        def bnd(c):
            def f():
                cnt = {1: 6, 2: 10}.get(c, 3 if c < 14 else 0)
                a(f"s_waitcnt vmcnt({cnt}) lgkmcnt(0)\ns_barrier\ns_setprio 3")
            return f

        def kvhooks(h, at, c):
            h.setdefault(at, []).extend([f"s_mul_i32 s81, s80, {A.CHUNK}", f"s_add_u32 m0, s85, {A.slot_off(c)}"])
            h.setdefault(at + 1, []).extend(["s_add_u32 s81, s81, s86"] + self.kv_dma())

        def hooks(n):
            h = {}
            for lvl, (t, k) in zip((2, 1, 0), prio):
                if n % 4 == t:
                    h.setdefault(k, []).append(f"s_setprio {lvl}")
            c = (n - 2) // 4
            if n == 6:
                kvhooks(h, 2, 0)
            if n == 7 or (n % 4 == 0 and 8 <= n < 56):
                h.setdefault(0, []).extend(["s_add_u32 s80, s80, 1", "s_and_b32 s80, s80, 15"])
            if 1 <= c < 13 and n % 4 == 3:
                kvhooks(h, 2, c)
            img = {4: (0, 1, 2), 5: (3, 4, 5), 8: (6, 7, 8, 9), 9: (10, 11, 12)}.get(n, ())
            for j, i in enumerate(img):
                x = self.img_piece(i)
                if i == 6:
                    x = ["s_add_u32 m0, s8, 4096"] + x
                h.setdefault((0, 2, 3, 3)[j], []).extend(x)
            return h
        for n in range(4, 14):
            A.iteration(a, n, NT, bnd(n // 4) if n % 4 == 2 else None, first=(n == 4), hooks=hooks(n))
        a(f"s_mov_b32 s82, 3\n.p2align 6\n{loop}:")
        for n in range(14, 26):
            h = hooks(n)
            if n == 25:
                h.setdefault(2, []).extend(["s_sub_u32 s82, s82, 1", "s_cmp_lg_u32 s82, 0"])
            A.iteration(a, n, NT, bnd(n // 4) if n % 4 == 2 else None, hooks=h)
        a(f"s_cbranch_scc1 {loop}")
        for n in range(50, 64):
            c = n // 4
            A.iteration(a, n, NT, bnd(c) if (n % 4 == 2 and c < 15) else None, hooks=hooks(n))
        a(A.pv(63, 1))
        a(f"{done}:")
        self.slow_labels = (slow, done)
        O, R, X = AR.O, AR.S, AR.S + 16
        l6, l7, l8, l9 = (a.lab("La") for _ in range(4))
        a(f"""s_setprio 0
        s_mul_i32 s72, {sWM}, 3072
        s_add_u32 s72, s72, {A.SLOT0}
        v_add_u32 v5, s72, {vL16}
        s_lshl_b32 s72, {sT}, 5
        s_lshl_b32 s73, {sG}, 1
        s_add_u32 s72, s72, s73
        s_lshr_b32 s73, {sWM}, 1
        s_add_u32 s72, s72, s73
        s_and_b32 s73, {sWM}, 1
        s_lshl_b32 s73, s73, 1
        s_add_u32 s73, s73, {sHI}
        s_lshl_b32 s74, s72, 12
        s_lshl_b32 s75, s73, 9
        s_add_u32 s74, s74, s75
        s_add_u32 s74, s74, {sO}
        s_lshl_b32 s75, s72, 10
        s_lshl_b32 s76, s73, 8
        s_add_u32 s75, s75, s76
        s_add_u32 s75, s75, {sO}
        s_add_u32 s75, s75, {OXOFF}""")
        self.if_lo(l6)
        for p, (skip, nxt) in enumerate(((l6, l7), (None, None))):
            for i in range(3):
                a(f"ds_write_b128 v5, {vr(O+16*(1-p)+4*i,4)} offset:{2*A.CHUNK*p+1024*i}")
            a("s_waitcnt lgkmcnt(0)\ns_barrier")
            for i in range(3):
                a(f"ds_read_b128 {vr(X+4*i,4)}, v5 offset:{2*A.CHUNK*(1-p)+1024*i}")
            a(f"v_lshrrev_b32 v5, 5, {vL}\nv_mul_u32_u24 v5, 1536, v5\ns_waitcnt lgkmcnt(0)")
            for h in (4, 5, 0, 1, 2, 3):
                a(f"v_pk_add_f32 {vr(R+2*h,2)}, {vr(O+16*p+2*h,2)}, {vr(X+2*h,2)}")
            if skip:
                a(f"s_branch {nxt}\n{skip}:")
        a(f"""{l7}:
        v_mov_b32 v6, v{R+8}
        v_mov_b32 v7, v{R+8}
        v_add_u32 v5, v5, {vL16}
        v_lshlrev_b32 v16, 3, {vL}
        v_permlane32_swap_b32 v7, v6
        v_rcp_f32 v6, v6""")
        for h in range(4):
            a(f"v_pk_mul_f32 {vr(R+2*h,2)}, {vr(R+2*h,2)}, v[6:7] op_sel_hi:[1,0]")
        for h in range(4):
            a(f"v_cvt_pk_bf16_f32 v{8+h}, v{R+2*h}, v{R+2*h+1}")
        a(f"buffer_store_dwordx4 v[8:11], v5, {WS}, s74 offen sc1")
        for h in range(4, 6):
            a(f"v_pk_mul_f32 {vr(R+2*h,2)}, {vr(R+2*h,2)}, v[6:7] op_sel_hi:[1,0]")
        for h in range(4, 6):
            a(f"v_cvt_pk_bf16_f32 v{8+h}, v{R+2*h}, v{R+2*h+1}")
        a(f"""s_mov_b32 exec_hi, 0
        buffer_store_dwordx2 v[12:13], v16, {WS}, s75 offen sc1
        s_mov_b64 exec, -1""")

    def o_loads(self):
        a = self.a
        a(f"""s_lshl_b32 s72, {sHALF}, 6
        s_lshl_b32 s73, {sWM}, 4
        s_add_u32 s72, s72, s73
        v_add_u32 v5, s72, {vN}
        v_lshlrev_b32 v6, 11, {vG}
        v_lshl_add_u32 v10, v5, 4, v6
        v_lshl_add_u32 v11, v5, 3, v6
        s_lshl_b32 s72, {sT}, 17
        s_add_u32 s72, s72, {sO}
        s_lshl_b32 s73, {sT}, 15
        s_add_u32 s73, s73, {sO}
        s_add_u32 s73, s73, {OXOFF}
        v_lshlrev_b32 v5, 7, {vL}""")
        self.poll(WS, "v5", "s34", 16)
        self.stamp(12)
        for ks in range(16):
            a(f"buffer_load_dwordx4 {vr(GA+4*ks,4)}, v10, {WS}, s72 offen sc1")
            a("s_add_u32 s72, s72, 8192")
        for ks in range(16, 20):
            for i in range(2):
                a(f"buffer_load_dwordx2 {vr(GA+4*ks+2*i,2)}, v11, {WS}, s73 offen offset:{1024*i} sc1")
            a("s_add_u32 s73, s73, 8192")

    @staticmethod
    def o_wait(ks):
        return (15 - ks) + 8 if ks < 16 else 2 * (19 - ks)

    def res_load(self):
        a = self.a
        a(f"""s_mul_i32 s72, {sT}, 163840
        s_mul_i32 s73, {sCB}, 20480
        s_add_u32 s72, s72, s73
        s_lshl_b32 s73, {sHALF}, 7
        s_add_u32 s72, s72, s73
        s_lshl_b32 s73, {sWM}, 5
        s_add_u32 s72, s72, s73
        s_add_u32 s72, s72, {sXB}
        v_lshlrev_b32 v5, 8, {vN}
        v_lshl_add_u32 v5, {vG}, 3, v5""")
        for ct in range(5):
            a(f"buffer_load_dwordx2 {vr(GA+2*ct,2)}, v5, {WS}, s72 offen sc1")
            a("s_add_u32 s72, s72, 4096")

    def final_store(self):
        a = self.a
        a(f"""s_mul_i32 s72, {sWM}, {16*176}
        s_add_u32 s72, s72, {EP}
        v_mul_u32_u24 v5, 176, {vN}
        v_lshl_add_u32 v5, {vG}, 3, v5
        v_add_u32 v5, s72, v5""")
        for ct in range(5):
            a(f"v_cvt_pk_bf16_f32 v{16+2*ct}, v{GLO+4*ct}, v{GLO+4*ct+1}")
            a(f"v_cvt_pk_bf16_f32 v{17+2*ct}, v{GLO+4*ct+2}, v{GLO+4*ct+3}")
            a(f"ds_write_b64 v5, {vr(16+2*ct,2)} offset:{ct*32}")
        a(f"""s_and_b32 s73, {sT}, 7
        s_lshl_b32 s73, s73, 8
        s_lshr_b32 s74, {sT}, 3
        s_lshl_b32 s74, s74, 4
        s_add_u32 s73, s73, s74
        s_lshl_b32 s74, {sHALF}, 3
        s_add_u32 s73, s73, s74
        s_lshl_b32 s74, {sWM}, 1
        s_add_u32 s73, s73, s74
        s_mul_i32 s73, s73, 1280
        s_mul_i32 s74, {sCB}, 160
        s_add_u32 s73, s73, s74
        s_movk_i32 s74, 176
        s_movk_i32 s75, 1280""")
        for i in range(3):
            a(f"""v_add_u32 v5, {64*i}, {vL}
            v_mul_u32_u24 v6, 205, v5
            v_lshrrev_b32 v6, 11, v6
            v_mul_u32_u24 v7, 10, v6
            v_sub_u32 v5, v5, v7
            v_lshlrev_b32 v5, 4, v5
            v_mad_u32_u24 v{8+i}, v6, s74, v5
            v_add_u32 v{8+i}, s72, v{8+i}
            v_and_b32 v7, 7, v6
            v_lshrrev_b32 v6, 3, v6
            v_lshl_add_u32 v6, v7, 5, v6
            v_mad_u32_u24 v{12+i}, v6, s75, v5""")
        a("s_waitcnt lgkmcnt(0)")
        for i in range(3):
            a(f"ds_read_b128 {vr(28+4*i,4)}, v{8+i}")
        for i in range(3):
            if i == 2:
                a("s_mov_b32 exec_hi, 0")
            a(f"s_waitcnt lgkmcnt({2-i})")
            a(f"buffer_store_dwordx4 {vr(28+4*i,4)}, v{12+i}, {SOUT}, s73 offen")

    def build(self):
        a = self.a
        self.prologue()
        self.phase0()
        a(f"""s_mov_b32 {sXA}, {X0}
        s_mov_b32 {sXB}, {X0+XSZ}
        s_mov_b32 {sKV}, {KV0}
        s_mov_b32 {sO}, {OM0}
        s_mov_b32 {sSS}, {SS0}
        Llayer:""")
        idle, cdone, l0, l1, l2, l3, l4, l5, l6, l7, l8, last = (a.lab("Lm") for _ in range(12))
        a(f"s_cmp_ge_u32 {sR}, 20\ns_cbranch_scc1 {idle}")
        a(f"s_cmp_gt_u32 {sHI}, {sLAYER}\ns_cbranch_scc1 {l0}")
        self.col_twiddles()
        a(f"{l0}:")
        self.col_prepare()
        self.col_main()
        a(f"""s_lshl_b32 s33, s33, 7
        s_add_u32 s33, s33, {sFL}
        s_add_u32 s33, s33, {F_COL*FSTRIDE}
        s_branch {cdone}
        {idle}:
        s_sub_u32 s33, {sB}, 160
        s_lshl_b32 s33, s33, 7
        s_add_u32 s33, s33, {F_IMG*FSTRIDE}
        s_cmp_lg_u32 {sLAYER}, 0
        s_cbranch_scc1 {l1}""")
        self.jobs_idle()
        a(f"{cdone}:")
        self.stamp(5)
        a(f"s_cmp_le_u32 {sHI}, {sLAYER}\ns_cbranch_scc1 {l2}")
        a(f"v_lshlrev_b32 v5, 7, {vL}\ns_mul_i32 s72, {sWM}, {60*128}\ns_add_u32 s72, s72, {F_WQ*FSTRIDE}")
        self.poll(WS, "v5", "s72", 60)
        a(f"{l2}:\ns_waitcnt vmcnt(0) lgkmcnt(0)\ns_barrier")
        self.signal("s33")
        a(f"{l1}:")
        self.if_lo(l3)
        self.qkv_compute()
        a(f"s_branch {l4}\n{l3}:")
        self.qkv_helper()
        a(f"{l4}:")
        self.attention()
        self.stamp(11)
        a(f"""s_lshl_b32 s34, {sT}, 11
        s_lshl_b32 s35, {sG}, 7
        s_add_u32 s35, s35, s34
        s_add_u32 s34, s34, {sFL}
        s_add_u32 s34, s34, {F_O*FSTRIDE}
        s_add_u32 s72, s35, {sFL}
        s_add_u32 s72, s72, {F_O*FSTRIDE}
        s_waitcnt vmcnt(0)
        s_barrier""")
        self.signal("s72")
        a(f"s_cmp_lg_u32 {sLAYER}, 0\ns_cbranch_scc1 {last}")
        self.if_lo(l5)
        a(f"s_cmp_ge_u32 {sR}, 20\ns_cbranch_scc1 {l6}")
        self.col_tables()
        a(f"{l6}:")
        self.x_store_setup()
        a(f"""s_mul_i32 s84, {sT}, 163840
        s_mul_i32 s85, {sCB}, 20480
        s_add_u32 s84, s84, s85
        s_lshl_b32 s85, {sHALF}, 7
        s_add_u32 s84, s84, s85
        s_add_u32 s84, s84, {X0+2*XSZ}
        s_waitcnt lgkmcnt(0)
        s_barrier""")
        self.x_store("s84")
        a(f"s_branch {l7}\n{l5}:")
        self.ep_setup()
        self.o_loads()
        self.gcore(0, 20, False, False, True, self.o_wait)
        self.ep_write(False)
        a(f"""s_lshl_b32 s85, {sT}, 12
        s_lshl_b32 s86, {sCB}, 9
        s_add_u32 s85, s85, s86
        s_lshl_b32 s86, {sHALF}, 8
        s_add_u32 s85, s85, s86
        s_add_u32 s85, s85, {SS0+65536}
        s_waitcnt lgkmcnt(0)
        s_barrier""")
        self.ss_store(sCB, "s85")
        a(f"{l7}:")
        self.stamp(13)
        a(f"""s_mov_b32 {sLAYER}, 1
        s_mov_b32 {sXA}, {X0+2*XSZ}
        s_mov_b32 {sXB}, {X0+3*XSZ}
        s_mov_b32 {sKV}, {KV0+KVSZ}
        s_mov_b32 {sO}, {OM0+OSZ}
        s_mov_b32 {sSS}, {SS0+65536}
        s_mov_b32 {sFL}, {FLAGS+4*FSTRIDE}
        s_add_u32 s72, s35, {sFL}
        s_waitcnt vmcnt(0)
        s_barrier""")
        self.signal("s72")
        a(f"s_branch Llayer\n{last}:")
        self.if_hi("Lend")
        self.o_loads()
        self.gcore(0, 20, False, True, True, self.o_wait)
        self.final_store()
        if self.stamps:
            a("s_mov_b64 exec, -1\ns_waitcnt vmcnt(0)")
            self.stamp(13)
        a("Lend:\ns_endpgm")
        slow, done = self.slow_labels
        a(f"{slow}:")
        self.att_slow()
        a(f"s_branch {done}")
        return a.finalize()


def wrap(body):
    ref = open("cdna_kernels/" + NAME + ".s.ref").read()
    head = ref[:ref.index("; @launch")]
    out = head + "; @launch grid=(256,1,1) block=(512,1,1) lds=163840\n"
    out += f""".amdgcn_target "amdgcn-amd-amdhsa--gfx950"
.text
.globl {NAME}_kernel
.p2align 8
.type {NAME}_kernel,@function
{NAME}_kernel:
"""
    out += body
    out += ref[ref.index(".section .rodata"):]
    return out


if __name__ == "__main__":
    stamps = "--stamps" in sys.argv
    path = sys.argv[1]
    opts = [x[2:] for x in sys.argv[2:] if x.startswith("--")]
    g = Gen(stamps=stamps, opts=opts)
    txt = wrap(g.build())
    if "nosc1lds" in opts:
        txt = txt.replace(" sc1 lds", " lds")
    open(path, "w").write(txt)
    print("wrote", path, len(txt), "bytes; padded wait states", g.a.padded)
```

```python
from asmlib import *

VFR = 640
TILE = 1024 + 2 * VFR
K2OFF = 4 * TILE
HEADB = K2OFF + 1024
CHUNK = 2 * HEADB
SLOT0 = 163840 - 3 * CHUNK
SLOT_ORDER = (1, 2, 0)
VMASK = "s[4:5]"


class AR:
    Q1 = 8
    Q2 = 16
    IDX = 24
    KA = 25
    K2A = 26
    VA = 27
    O = 28
    S = 60
    K1 = 108
    K2 = 116
    V = 124
    END = 140


def slot_off(c):
    return SLOT_ORDER[c % 3] * CHUNK


def tile_off(m):
    return slot_off(m // 2) + (m % 2) * TILE


def rd_k(m):
    r = [f"ds_read_b128 {vr(AR.K1+4*(m%2),4)}, {vr(AR.KA)} offset:{tile_off(m)}"]
    if m % 2 == 0:
        r.append(f"ds_read_b64 {vr(AR.K2+2*((m//2)%3),2)}, {vr(AR.K2A)} offset:{slot_off(m//2)}")
    return r


def rd_v(m):
    r = [f"ds_read_b128 {vr(AR.V+8*(m%2)+4*i,4)}, {vr(AR.VA)} offset:{tile_off(m)+i*VFR}" for i in range(2)]
    return [f"s_mov_b64 exec, {VMASK}"] + r + ["s_mov_b64 exec, -1"]


def qk1(n, c="0"):
    m, q = n // 2, n % 2
    return f"v_mfma_f32_32x32x16_bf16 {vr(AR.S+16*(n%3),16)}, {vr(AR.K1+4*(m%2),4)}, {vr(AR.Q1+4*q,4)}, {c}"


def qk2(n):
    m, q = n // 2, n % 2
    s = vr(AR.S + 16 * (n % 3), 16)
    return f"v_mfma_f32_32x32x8_bf16 {s}, {vr(AR.K2+2*((m//2)%3),2)}, {vr(AR.Q2+4*q+2*(m%2),2)}, {s}"


def pv(n, h):
    m, q = n // 2, n % 2
    return (f"v_smfmac_f32_32x32x32_bf16 {vr(AR.O+16*q,16)}, {vr(AR.V+8*(m%2)+4*h,4)}, "
            f"{vr(AR.S+16*(n%3)+8*h,8)}, {vr(AR.IDX)}")


def ex(n, i):
    r = vr(AR.S + 16 * (n % 3) + i)
    return f"v_exp_f32 {r}, {r}"


def start(a, n):
    for r in rd_k(n // 2) + rd_v(n // 2):
        a(r)
    a("s_waitcnt lgkmcnt(2)")
    a(qk1(n))
    a(qk2(n))
    a("s_waitcnt lgkmcnt(0)")


def iteration(a, n, nt, boundary=None, first=False, hooks=None, vlate=False):
    hooks = hooks or {}
    has_next = n + 1 < nt
    fetch = n % 2 == 0 and n + 2 < nt

    def hk(k):
        for x in hooks.get(k, []):
            a(x)
    if has_next:
        a(qk1(n + 1))
    if boundary:
        boundary()
    hk(0)
    for i in range(0, 4):
        a(ex(n, i))
    if has_next:
        a(qk2(n + 1))
    if vlate and n % 2 == 0 and not boundary and not first:
        a("s_waitcnt lgkmcnt(0)")
    hk(1)
    if fetch:
        for r in rd_k(n // 2 + 1):
            a(r)
    for i in range(4, 8):
        a(ex(n, i))
    if not first:
        a(pv(n - 1, 1))
    if (fetch and not vlate) or (vlate and n % 2 == 1 and has_next):
        for r in rd_v(n // 2 + 1):
            a(r)
    hk(2)
    for i in range(8, 12):
        a(ex(n, i))
    a(pv(n, 0))
    if vlate:
        if fetch:
            a("s_waitcnt lgkmcnt(0)")
    elif fetch:
        a("s_waitcnt lgkmcnt(2)")
    elif n % 2 == 1 and has_next:
        a("s_waitcnt lgkmcnt(0)")
    hk(3)
    for i in range(12, 16):
        a(ex(n, i))


def setup_addr(a, vl, vl16, s_head, s_p, st, tmp):
    t0, t1 = vr(tmp), vr(tmp + 1)
    a(f"s_mul_i32 {st}, {s_p}, {2*TILE}")
    a(f"s_add_u32 {st}, {st}, {s_head}")
    a(f"s_add_u32 {st}, {st}, {SLOT0}")
    a(f"v_add_u32 {vr(AR.KA)}, {st}, {vl16}")
    a(f"v_and_b32 {t0}, 31, {vl}")
    a(f"v_lshrrev_b32 {t1}, 5, {vl}")
    a(f"v_cmp_ne_u32 vcc, 20, {t0}")
    a(f"v_mul_u32_u24 {t1}, 20, {t1}")
    a(f"v_add_lshl_u32 {t0}, {t0}, {t1}, 4")
    a(f"s_add_u32 {st}, {st}, 1024")
    a(f"v_add_u32 {vr(AR.VA)}, {st}, {t0}")
    a(f"v_mov_b32 {t1}, 0")
    a(f"v_cndmask_b32 {vr(AR.V)}, 0x3f803f80, {t1}, vcc")
    for i in range(1, 16):
        a(f"v_mov_b32 {vr(AR.V+i)}, {vr(AR.V)}")
    a("s_mov_b32 s4, 0xfffff\ns_mov_b32 s5, 0xfffff")
    a(f"s_lshl_b32 {st}, {s_p}, 9")
    a(f"s_add_u32 {st}, {st}, {s_head}")
    a(f"s_add_u32 {st}, {st}, {SLOT0+K2OFF}")
    a(f"v_lshl_add_u32 {vr(AR.K2A)}, {vl}, 3, {st}")
    a(f"v_mov_b32 {vr(AR.IDX)}, 0xdddd")
```

```python
import math, struct, sys
from asmlib import *
import attn as A
from attn import AR
from layout import *

NAME = "interleave_layers__spectral_gfnet__mha_block__prompt"


def fbits(x):
    return "0x%08x" % struct.unpack("<I", struct.pack("<f", x))[0]


WS, SX, SWF, SWQ, SWO, SOUT, SDBG = "s[20:23]", "s[24:27]", "s[28:31]", "s[36:39]", "s[40:43]", "s[44:47]", "s[48:51]"
sB, sWV, sX, sR, sT, sG, sHALF, sCB, sLAYER, sCB0, sTB0 = "s2", "s3", "s52", "s53", "s54", "s55", "s56", "s57", "s58", "s59", "s60"
sXA, sXB, sKV, sO, sSS, sFL, sSTAMP, sWM, sHI = "s61", "s62", "s63", "s64", "s65", "s66", "s67", "s68", "s69"
vTID, vL, vN, vG, vL16 = "v0", "v1", "v2", "v3", "v4"

AMP = math.sqrt(2.0 / 640)
QS = 20 ** -0.5 * math.log2(math.e)
SPIN = 1 << 16

XS, FI, EP, TB, TRS = 0, 81920, 133120, 145408, 157696
GA, GB, GLO, GHI = 164, 60, 144, 120
F_X, F_COL, F_KV, F_O, F_WQ, F_IMG = 0, 1, 2, 3, 8, 9


class Gen:
    def __init__(self, stamps=False, opts=()):
        self.opts = set(opts)
        self.a = Asm()
        self.stamps = stamps
        self.stamp_init = False
        self.stw = next((int(o[3:]) for o in self.opts if o.startswith("stw")), 0)
        self.pub = next((int(o[3:]) for o in self.opts if o.startswith("pub")), 1)

    def stamp(self, k):
        if not self.stamps:
            return
        a = self.a
        if k == 0 and not self.stamp_init:
            self.stamp_init = True
            a("v_mov_b32 v252, -1\nv_mov_b32 v253, -1")
        a(f"""s_memrealtime s[90:91]
        s_memtime s[96:97]
        s_mov_b32 s93, m0
        s_mul_i32 s92, {sLAYER}, 16
        s_bitset0_b32 s92, 31
        s_waitcnt lgkmcnt(0)
        s_cselect_b32 s91, 1, 0
        s_add_u32 m0, s92, {k}
        s_cmp_lg_u32 s91, 0
        v_writelane_b32 v252, s90, m0
        v_writelane_b32 v253, s96, m0
        s_mov_b32 m0, s93""")

    def stamp_dump(self):
        if not self.stamps:
            return
        a = self.a
        l = a.lab("Lst")
        a(f"""s_cmp_lg_u32 {sWM}, {self.stw}
        s_cbranch_scc1 {l}
        s_mov_b64 exec, -1
        v_lshlrev_b32 v254, 3, {vL}
        s_mov_b32 exec_hi, 0
        buffer_store_dwordx2 v[252:253], v254, {WS}, {sSTAMP} offen
        {l}:""")

    def fstamp(self, grp, k):
        if "fine" + grp in self.opts:
            self.stamp(k)

    def if_lo(self, lab):
        self.a(f"s_cmp_lg_u32 {sHI}, 0\ns_cbranch_scc1 {lab}")

    def if_hi(self, lab):
        self.a(f"s_cmp_eq_u32 {sHI}, 0\ns_cbranch_scc1 {lab}")

    def prologue(self):
        a = self.a
        a(f"""s_cmp_ge_u32 {sB}, 256
        s_cbranch_scc1 Lend
        s_load_dwordx16 s[4:19], s[0:1], 0
        s_load_dwordx2 s[20:21], s[0:1], 64
        v_lshrrev_b32 v5, 6, v0
        v_and_b32 {vL}, 63, v0
        v_readfirstlane_b32 {sWV}, v5
        v_and_b32 {vN}, 15, v0
        v_lshrrev_b32 {vG}, 4, {vL}
        v_lshlrev_b32 {vL16}, 4, {vL}
        s_and_b32 {sX}, {sB}, 7
        s_lshr_b32 {sR}, {sB}, 3
        s_and_b32 s70, {sX}, 3
        s_lshl_b32 s70, s70, 2
        s_and_b32 s71, {sR}, 3
        s_add_u32 {sT}, s70, s71
        s_lshr_b32 {sHALF}, {sX}, 2
        s_lshr_b32 {sCB}, {sR}, 2
        s_lshl_b32 s70, {sHALF}, 3
        s_add_u32 {sG}, s70, {sCB}
        s_add_u32 s70, {sR}, {sX}
        s_and_b32 {sCB0}, s70, 7
        s_lshl_b32 s70, {sX}, 2
        s_lshr_b32 s71, {sR}, 3
        s_add_u32 {sTB0}, s70, s71
        s_mov_b32 {sLAYER}, 0
        s_and_b32 {sWM}, {sWV}, 3
        s_lshr_b32 {sHI}, {sWV}, 2
        s_lshl_b32 {sSTAMP}, {sB}, 1
        s_add_u32 {sSTAMP}, {sSTAMP}, {sHI}
        s_lshl_b32 {sSTAMP}, {sSTAMP}, 8
        s_add_u32 {sSTAMP}, {sSTAMP}, {STAMP}
        s_mov_b32 {sFL}, {FLAGS}
        s_mov_b32 s22, {WSEND}
        s_mov_b32 s23, 0x20000
        s_mov_b32 s26, {XSZ}
        s_mov_b32 s27, 0x20000
        s_mov_b32 s30, {2048*642}
        s_mov_b32 s31, 0x20000
        s_mov_b32 s38, {640*3840}
        s_mov_b32 s39, 0x20000
        s_mov_b32 s42, {640*1280}
        s_mov_b32 s43, 0x20000
        s_mov_b32 s46, {XSZ}
        s_mov_b32 s47, 0x20000
        s_mov_b32 s50, 256
        s_mov_b32 s51, 0x20000
        s_waitcnt lgkmcnt(0)
        s_mov_b64 s[24:25], s[4:5]
        s_cmp_lt_u32 {sX}, 4
        s_cselect_b32 s28, s6, s8
        s_cselect_b32 s29, s7, s9
        s_mov_b64 s[36:37], s[12:13]
        s_mov_b64 s[40:41], s[14:15]
        s_mov_b64 s[44:45], s[16:17]
        s_mov_b64 s[48:49], s[18:19]""")
        self.stamp(0)

    def poll(self, srd, vaddr, soff, nlanes, target="1", wide=False):
        a = self.a
        lp, dn = a.lab("Lp"), a.lab("Ld")
        mask = (1 << nlanes) - 1
        ld = "buffer_load_dwordx2 v[6:7]" if wide else "buffer_load_dword v6"
        a(f"""s_mov_b32 s88, {SPIN}
        s_mov_b32 exec_lo, {hex(mask & 0xffffffff)}
        s_mov_b32 exec_hi, {hex(mask >> 32)}
        {lp}:
        {ld}, {vaddr}, {srd}, {soff} offen sc1
        s_sub_u32 s88, s88, 1
        s_cbranch_scc1 {dn}
        s_waitcnt vmcnt(0)
        v_cmpx_gt_u32 vcc, {target}, v6
        s_cbranch_execnz {lp}
        {dn}:
        s_waitcnt vmcnt(0)
        s_mov_b64 exec, -1""")

    def signal(self, s_off, wave=0, payload=None):
        a = self.a
        l = a.lab("Lsg")
        a(f"""s_cmp_lg_u32 {sWV}, {wave}
        s_cbranch_scc1 {l}
        v_mov_b32 v6, 1
        v_mov_b32 v5, 0
        s_mov_b64 exec, 1""")
        if payload:
            a(f"v_mov_b32 v7, {payload}\nbuffer_store_dwordx2 v[6:7], v5, {WS}, {s_off} offen sc1")
        else:
            a(f"buffer_store_dword v6, v5, {WS}, {s_off} offen sc1")
        a(f"s_mov_b64 exec, -1\n{l}:")

    def gen_F(self, s_ct):
        a = self.a
        a(f"""s_mov_b32 s72, {s_ct}
        s_mul_i32 s73, {sCB0}, 80
        s_lshl_b32 s74, s72, 4
        s_add_u32 s73, s73, s74
        v_add_u32 v12, s73, {vN}
        v_lshrrev_b32 v14, 1, v12
        v_and_b32 v15, 1, v12
        v_cmp_ne_u32 vcc, 0, v12
        v_cndmask_b32 v14, 0x140, v14, vcc
        v_cmp_ne_u32 vcc, 1, v12
        v_cndmask_b32 v15, 0, v15, vcc
        v_cvt_f32_u32 v14, v14
        v_cvt_f32_u32 v15, v15
        v_lshlrev_b32 v13, 3, {vG}
        v_cvt_f32_u32 v13, v13
        v_mul_f32 v10, {fbits(1/640)}, v14
        v_mul_f32 v14, {fbits(1/20)}, v14
        v_mul_f32 v15, 0.25, v15
        v_fma_f32 v16, v13, v10, v15
        s_lshl_b32 s72, s72, 10
        s_add_u32 s72, s72, {FI}
        v_add_u32 v12, s72, {vL16}""".replace("0.25", fbits(0.25)))
        for e in range(1, 8):
            a(f"v_add_f32 v{16+e}, v{15+e}, v10")
        for h in range(4):
            a(f"v_pk_add_f32 {vr(24+2*h,2)}, {vr(16+2*h,2)}, v[14:15] op_sel_hi:[1,0]")
        a("v_cos_f32 v14, v14")
        for e in range(16):
            a(f"v_cos_f32 v{16+e}, v{16+e}")
        a("v_add_f32 v14, v14, v14")
        for ks in range(10):
            x, y, p = 16 + 8 * (ks % 2), 16 + 8 * ((ks + 1) % 2), 32 + 4 * (ks % 2)
            if ks >= 2:
                for h in range(4):
                    a(f"v_pk_fma_f32 {vr(x+2*h,2)}, {vr(y+2*h,2)}, v[14:15], {vr(x+2*h,2)} "
                      f"op_sel_hi:[1,0,1] neg_lo:[0,0,1] neg_hi:[0,0,1]")
            for h in range(4):
                a(f"v_cvt_pk_bf16_f32 v{p+h}, v{x+2*h}, v{x+2*h+1}")
            a(f"ds_write_b128 v12, {vr(p,4)} offset:{5120*ks}")

    def gcore(self, base, nks, dual, swap, init, await_a=None, hook=None):
        a = self.a
        a(f"v_add_u32 v6, {base}, {vL16}")
        if nks > 12:
            a(f"v_add_u32 v7, {base+61440}, {vL16}")

        def rd(ks, ct):
            reg, off = ("v6", ks * 5120) if ks < 12 else ("v7", (ks - 12) * 5120)
            return f"ds_read_b128 {vr(GB+20*(ks%3)+4*ct,4)}, {reg} offset:{off+ct*1024}"

        def mf(acc, ka, ks, ct, first):
            x, y = vr(GA + 4 * ka, 4), vr(GB + 20 * (ks % 3) + 4 * ct, 4)
            if swap:
                x, y = y, x
            d = vr(acc + 4 * ct, 4)
            return f"v_mfma_f32_16x16x32_bf16 {d}, {x}, {y}, {'0' if first else d}"
        for ks in range(2):
            for ct in range(5):
                a(rd(ks, ct))
        for ks in range(nks):
            w = f"lgkmcnt({5 if ks + 1 < nks else 0})"
            if await_a:
                w = f"vmcnt({await_a(ks)}) " + w
            a("s_waitcnt " + w)
            if hook and hook[0] == ks:
                a(hook[1])
            for ct in range(5):
                a(mf(GLO, ks, ks, ct, ks == 0 and not init))
                if ks + 2 < nks:
                    a(rd(ks + 2, ct))
                if dual:
                    a(mf(GHI, ks + 10, ks, ct, ks == 0))

    def dual_setup(self, s_cb):
        a = self.a
        a(f"""v_mov_b32 v8, {fbits(AMP)}
        v_lshlrev_b32 v5, 30, {vN}
        v_and_b32 v5, 0x80000000, v5
        v_xor_b32 v10, v5, v8
        s_cmp_eq_u32 {s_cb}, 0
        s_cselect_b32 s72, 2, 0
        v_cmp_le_u32 vcc, s72, {vN}
        v_cndmask_b32 v12, {fbits(AMP/math.sqrt(2))}, v8, vcc
        v_xor_b32 v14, v5, v12""")

    def ep_setup(self):
        a = self.a
        a(f"""v_mul_u32_u24 v5, 144, {vN}
        v_lshl_add_u32 v5, {vG}, 3, v5
        s_lshl_b32 s72, {sWM}, 5
        s_add_u32 s72, s72, {EP}
        v_add_u32 v9, s72, v5""")

    def ep_write(self, dual):
        a = self.a
        for ct in range(5):
            if dual:
                p, q = (12, 14) if ct == 0 else (8, 10)
                for h in range(2):
                    lo, hi = vr(GLO + 4 * ct + 2 * h, 2), vr(GHI + 4 * ct + 2 * h, 2)
                    a(f"v_pk_mul_f32 {lo}, {lo}, {vr(p,2)} op_sel_hi:[1,0]")
                    a(f"v_pk_fma_f32 {lo}, {hi}, {vr(q,2)}, {lo} op_sel_hi:[1,0,1]")
            a(f"v_cvt_pk_bf16_f32 v{GB+2*ct}, v{GLO+4*ct}, v{GLO+4*ct+1}")
            a(f"v_cvt_pk_bf16_f32 v{GB+1+2*ct}, v{GLO+4*ct+2}, v{GLO+4*ct+3}")
            a(f"ds_write_b64 v9, {vr(GB+2*ct,2)} offset:{ct*16*144}")

    def ss_store(self, s_cb, s_ss):
        a = self.a
        R = GB + 16
        a(f"""s_cmp_eq_u32 {s_cb}, 0
        s_cselect_b32 s72, 1, 99
        v_cmp_ne_u32 vcc, s72, {vN}""")
        for h in range(2):
            x = vr(GLO + 4 + 2 * h, 2)
            a(f"v_pk_mul_f32 {vr(R+2*h,2)}, {x}, {x}")
        for r in range(4):
            a(f"v_cndmask_b32 v{GLO+r}, 0, v{GLO+r}, vcc")
        for ct in (2, 3, 4, 0):
            for h in range(2):
                x = vr(GLO + 4 * ct + 2 * h, 2)
                a(f"v_pk_fma_f32 {vr(R+2*h,2)}, {x}, {x}, {vr(R+2*h,2)}")
        for sh in (8, 4, 2, 1):
            for r in range(4):
                a(f"v_add_f32 v{R+r}, v{R+r}, v{R+r} row_ror:{sh} row_mask:0xf bank_mask:0xf")
        a(f"""s_lshl_b32 s72, {sWM}, 6
        s_add_u32 s72, s72, {s_ss}
        s_mov_b32 exec_lo, 0x00010001
        s_mov_b32 exec_hi, 0x00010001
        buffer_store_dwordx4 {vr(R,4)}, {vL}, {WS}, s72 offen sc1
        s_mov_b64 exec, -1""")

    def x_store_setup(self):
        a = self.a
        a(f"""s_movk_i32 s79, 144
        v_lshrrev_b32 v5, 3, {vTID}
        v_and_b32 v6, 7, {vTID}
        v_lshlrev_b32 v6, 4, v6
        v_mad_u32_u24 v16, v5, s79, v6
        v_lshl_add_u32 v17, v5, 8, v6
        v_add_u32 v16, {EP}, v16""")

    def x_store(self, s_dst):
        a = self.a
        l1 = a.lab("Le")
        R = GB + 24
        for i in range(3):
            a(f"ds_read_b128 {vr(R+4*i,4)}, v16 offset:{32*144*i}")
        a(f"s_add_u32 s72, {s_dst}, 8192\ns_add_u32 s73, {s_dst}, 16384")
        a(f"s_waitcnt lgkmcnt(2)\nbuffer_store_dwordx4 {vr(R,4)}, v17, {WS}, {s_dst} offen sc1")
        a(f"s_waitcnt lgkmcnt(1)\nbuffer_store_dwordx4 {vr(R+4,4)}, v17, {WS}, s72 offen sc1")
        a(f"""s_cmp_gt_u32 {sWV}, 1
        s_waitcnt lgkmcnt(0)
        s_cbranch_scc1 {l1}
        buffer_store_dwordx4 {vr(R+8,4)}, v17, {WS}, s73 offen sc1
        {l1}:""")

    def dma_rows(self, srd, rg, s_rh, s_base, s_set):
        a = self.a
        a(f"""s_and_b32 s72, {s_set}, 1
        s_lshl_b32 s72, s72, 3
        v_add_u32 v5, s72, {vG}
        v_xor_b32 v5, v5, {vN}
        v_mul_u32_u24 v6, {rg}, {vG}
        v_lshl_add_u32 v8, v5, 4, v6
        v_xor_b32 v5, 4, v5
        v_lshl_add_u32 v9, v5, 4, v6
        v_add_u32 v9, {s_rh}, v9
        s_lshl_b32 s72, {s_set}, 11""")
        for blk in range(5):
            for h in range(2):
                a(f"s_add_u32 m0, s72, {XS + blk*(16384-256) + h*1024}")
                a(f"buffer_load_dwordx4 v{8+h}, {srd}, {s_base} offen offset:{blk*256} lds")

    def read_rows_frags(self):
        a = self.a
        a(f"""s_lshl_b32 s72, {sWM}, 12
        v_xor_b32 v5, {vG}, {vN}
        v_lshlrev_b32 v5, 4, v5
        v_lshl_add_u32 v5, {vN}, 8, v5
        v_add_u32 v8, s72, v5""")
        for c in range(1, 4):
            a(f"v_xor_b32 v{8+c}, {64*c}, v8")
        for ks in range(20):
            if ks == 16:
                for c in range(4):
                    a(f"v_add_u32 v{12+c}, 0x10000, v{8+c}")
            if ks < 16:
                a(f"ds_read_b128 {vr(GA+4*ks,4)}, v{8+ks%4} offset:{XS+(ks//4)*16384}")
            else:
                a(f"ds_read_b128 {vr(GA+4*ks,4)}, v{12+ks%4} offset:{XS}")

    def wf_setup(self):
        a = self.a
        a(f"""s_lshl_b32 s19, {sX}, 5
        s_add_u32 s19, s19, {sR}
        s_bfe_u32 s72, s19, 0x20005
        s_and_b32 s76, s72, 1
        s_lshl_b32 s76, s76, 5
        s_and_b32 s73, s19, 16
        s_add_u32 s76, s76, s73
        s_lshr_b32 s73, s72, 1
        s_add_u32 s76, s76, s73
        s_and_b32 s73, s19, 12
        s_lshl_b32 s73, s73, 7
        s_add_u32 s76, s76, s73
        s_mul_i32 s76, s76, 642
        s_and_b32 s75, s19, 3
        s_mul_i32 s75, s75, 160
        s_lshl_b32 s73, {sWM}, 4
        s_add_u32 s13, s75, s73
        s_and_b32 s73, s72, 2
        s_add_u32 s13, s13, s73
        s_add_u32 s76, s76, s13
        v_lshrrev_b32 v5, 3, {vL}
        v_and_b32 v6, 7, {vL}
        v_lshl_add_u32 v5, v6, 5, v5
        v_mul_u32_u24 v213, 1284, v5
        s_mov_b32 s18, s76""")

    def wf_loads(self):
        a = self.a
        skip = a.lab("Lw")
        a(f"""buffer_load_dwordx4 v[200:203], v213, {SWF}, s18 offen
        buffer_load_dwordx4 v[204:207], v213, {SWF}, s18 offen offset:64
        s_cmp_gt_u32 {sWM}, 1
        s_cbranch_scc1 {skip}
        buffer_load_dwordx4 v[208:211], v213, {SWF}, s18 offen offset:128
        s_cmp_lg_u32 s13, 0
        s_cbranch_scc1 {skip}
        buffer_load_ushort v212, v213, {SWF}, s18 offen offset:640
        {skip}:""")

    def wf_setup2(self):
        a = self.a
        a(f"""s_bfe_u32 s72, s19, 0x20005
        s_lshl_b32 s72, s72, 11
        s_lshr_b32 s73, s19, 7
        s_lshl_b32 s73, s73, 10
        s_add_u32 s72, s72, s73
        s_bfe_u32 s73, s19, 0x20002
        s_lshl_b32 s73, s73, 8
        s_add_u32 s72, s72, s73
        s_bfe_u32 s73, s19, 0x10004
        s_lshl_b32 s73, s73, 7
        s_add_u32 s72, s72, s73
        s_add_u32 s72, s72, {WF}
        s_lshl_b32 s74, {sWM}, 10
        s_add_u32 s74, s74, {TRS}
        v_lshrrev_b32 v5, 3, {vL}
        v_and_b32 v6, 7, {vL}
        v_xor_b32 v7, v5, v6
        v_lshl_add_u32 v7, v7, 4, s74
        v_lshl_add_u32 v8, v6, 7, v7
        v_lshl_add_u32 v13, v5, 7, v7
        v_add_u32 v9, s74, {vL16}
        v_lshlrev_b32 v10, 4, v6
        s_lshr_b32 s73, s13, 1
        v_add_u32 v5, s73, v5
        v_cmp_ne_u32 vcc, 0x100, v5
        v_lshl_add_u32 v10, v5, 13, v10
        v_subrev_u32 v12, {320*8192}, v10
        v_cndmask_b32 v12, v12, v10, vcc
        v_add_u32 v12, {64*8192}, v12""")
        a(f"""v_bfe_u32 v5, {vL}, 1, 1
        v_lshl_add_u32 v5, {vG}, 1, v5
        v_bfe_u32 v6, {vL}, 2, 2
        v_lshl_add_u32 v5, v5, 3, v6
        v_and_b32 v6, 1, {vL}
        v_lshlrev_b32 v6, 3, v6
        v_lshl_add_u32 v5, v5, 4, v6
        v_add_u32 v11, s74, v5
        s_mov_b32 s17, s72""")

    def wf_stores(self):
        a = self.a
        nop = a.lab("Lw")
        a(f"""s_cmp_lg_u32 s13, 0
        s_cbranch_scc1 {nop}
        v_and_b32 v200, 0xffff0000, v200
        v_or_b32 v200, v200, v212
        {nop}:""")
        for rnd in range(3):
            a(f"ds_write_b128 v9, {vr(200+4*rnd,4)}")
            for i in range(2):
                a(f"ds_read_b64_tr_b16 {vr(200+4*rnd+2*i,2)}, v11 offset:{64*i}")
        for rnd in range(3):
            a(f"s_waitcnt lgkmcnt({(6, 5, 4)[rnd]})")
            a(f"ds_write_b128 v8, {vr(200+4*rnd,4)}")
            a(f"ds_read_b128 {vr(200+4*rnd,4)}, v13")
        skip = a.lab("Lw")
        a("s_waitcnt lgkmcnt(0)")
        self.fstamp("0", 19)
        for rnd in range(3):
            if rnd == 2:
                a(f"s_cmp_gt_u32 {sWV}, 5\ns_cbranch_scc1 {skip}")
            a(f"buffer_store_dwordx4 {vr(200+4*rnd,4)}, {'v12' if rnd == 2 else 'v10'}, {WS}, {'s74' if rnd == 1 else 's17'} offen sc1")
            a(f"s_add_u32 s74, s17, {32*8192}")
        a(f"{skip}:")

    def wq_setup(self):
        a = self.a
        a(f"""v_lshrrev_b32 v5, 3, {vL}
        v_bfe_u32 v6, {vL}, 4, 1
        s_and_b32 s72, {sWV}, 1
        s_lshl_b32 s72, s72, 1
        v_or_b32 v6, s72, v6
        v_lshlrev_b32 v6, 1, v6
        v_and_b32 v7, 7, {vL}
        v_xor_b32 v6, v6, v7
        v_mul_u32_u24 v5, 3840, v5
        v_lshl_add_u32 v14, v6, 4, v5
        s_mul_i32 s72, {sWM}, {8*3840}
        s_lshl_b32 s73, {sTB0}, 7
        s_add_u32 s72, s72, s73
        s_lshl_b32 s73, {sWM}, 10""")

    def wq_dma(self, first, last):
        a = self.a
        for it in range(first, last):
            a(f"s_add_u32 m0, s73, {XS + it*4096}")
            a(f"buffer_load_dwordx4 v14, {SWQ}, s72 offen lds")
            a(f"s_add_u32 s72, s72, {32*3840}")

    def arrive(self, last, s_flag):
        a = self.a
        l = a.lab("Lar")
        a(f"""v_mov_b32 v5, {TRS+4096}
        v_mov_b32 v6, 1
        s_mov_b64 exec, 1
        ds_add_rtn_u32 v7, v5, v6
        v_mov_b32 v5, 0
        s_waitcnt lgkmcnt(0)
        v_cmpx_eq_u32 vcc, {last}, v7
        s_cbranch_execz {l}
        buffer_store_dword v6, v5, {WS}, {s_flag} offen sc1
        {l}:
        s_mov_b64 exec, -1""")

    def half_sync(self, slot):
        a = self.a
        lp = a.lab("Lhs")
        a(f"""v_mov_b32 v5, {TRS+4096+4*slot}
        v_mov_b32 v6, 1
        s_mov_b64 exec, 1
        ds_add_u32 v5, v6
        {lp}:
        ds_read_b32 v6, v5
        s_waitcnt lgkmcnt(0)
        v_cmp_gt_u32 vcc, 4, v6
        s_cbranch_vccnz {lp}
        s_mov_b64 exec, -1""")

    def phase0(self):
        a = self.a
        z0, z1, z2, z3, z4, z5, l1, l2, l3, l5, l6, l7, l8, l9, l10 = (a.lab("Lq") for _ in range(15))
        a(f"s_lshr_b32 s80, {sTB0}, 1\ns_and_b32 s81, {sTB0}, 1")
        self.if_hi(z0)
        a(f"""s_cmp_lg_u32 {sWV}, 6
        s_cbranch_scc1 {z1}
        v_lshlrev_b32 v5, 15, {vL}
        s_lshl_b32 s70, {sB}, 7
        v_mov_b32 v16, 0
        v_mov_b32 v17, 0
        v_mov_b32 v18, 0
        v_mov_b32 v19, 0
        v_mov_b32 v6, {TRS+4096}
        s_lshl_b32 s71, {sB}, 10
        s_add_u32 s71, s71, {SQ0}
        buffer_store_dwordx4 v[16:19], {vL16}, {WS}, s71 offen sc1
        s_mov_b64 exec, {(1<<NFLAG)-1}
        buffer_store_dwordx2 v[18:19], v5, {WS}, s70 offen sc1
        ds_write_b128 v6, v[16:19]
        s_mov_b64 exec, -1
        {z1}:
        s_and_b32 s82, s80, 7
        s_lshl_b32 s82, s82, 8
        s_lshr_b32 s83, s80, 3
        s_lshl_b32 s83, s83, 4
        s_add_u32 s82, s82, s83
        s_lshl_b32 s83, s81, 3
        s_add_u32 s15, s82, s83
        s_mov_b32 s83, {128*1280}
        s_add_u32 s14, {sWM}, {sCB0}
        s_mov_b32 s16, 0
        {z2}:
        s_and_b32 s14, s14, 7
        s_add_u32 s82, s15, s14
        s_mul_i32 s82, s82, 1280""")
        self.dma_rows(SX, 32 * 1280, "s83", "s82", "s14")
        a(f"""s_add_u32 s14, s14, 4
        s_xor_b32 s16, s16, 1
        s_cbranch_scc1 {z2}""")
        self.wf_setup()
        self.fstamp("0", 14)
        a(f"""s_barrier
        s_cmp_lg_u32 {sWV}, 6
        s_cbranch_scc1 {z3}
        s_and_b32 s70, {sB}, 1
        s_lshl_b32 s70, s70, 7
        v_mov_b32 v18, 0
        v_mov_b32 v19, 1
        s_mov_b64 exec, 1
        s_waitcnt vmcnt(20)
        buffer_atomic_add v19, v18, {SDBG}, s70 offen sc1
        s_mov_b64 exec, -1
        {z3}:
        s_mul_i32 s72, {sCB0}, 80
        s_mul_i32 s73, {sWM}, 20
        s_add_u32 s72, s72, s73
        s_mul_i32 s72, s72, 3840
        s_lshl_b32 s73, {sTB0}, 7
        s_add_u32 s72, s72, s73
        v_mul_u32_u24 v5, 3840, {vL}
        s_mov_b64 exec, 0xfffff
        buffer_load_dword v250, v5, {SWQ}, s72 offen
        s_mov_b64 exec, -1""")
        self.wf_loads()
        a(f"""s_branch {l9}
        {z0}:
        s_cmp_lg_u32 {sWV}, 3
        s_cbranch_scc1 {z4}
        s_getpc_b64 s[72:73]
        Lpc:
        s_mul_i32 s74, {sR}, ((Lend-Lpc)/4096)*128
        s_add_u32 s72, s72, s74
        s_addc_u32 s73, s73, 0
        v_lshlrev_b32 v6, 7, {vL}
        v_mov_b32 v7, s73
        v_add_co_u32 v6, vcc, s72, v6
        v_addc_co_u32 v7, vcc, 0, v7, vcc
        s_bfm_b64 exec, (Lend-Lpc)/4096, 0
        global_load_dword v250, v[6:7], off
        s_mov_b64 exec, -1
        {z4}:
        s_mov_b32 s15, {sWV}
        {z5}:""")
        self.gen_F("s15")
        a(f"""s_add_u32 s15, s15, 4
        s_cmp_eq_u32 s15, 4
        s_cbranch_scc1 {z5}
        s_cmp_ge_u32 {sR}, 20
        s_cbranch_scc1 {l9}
        s_cmp_eq_u32 {sWV}, 0
        s_cbranch_scc1 {l9}
        s_sub_u32 s15, {sWV}, 1""")
        self.col_tables("s15", 3)
        a(f"""{l9}:
        s_mul_i32 s84, s80, 163840
        s_mul_i32 s85, {sCB0}, 20480
        s_add_u32 s84, s84, s85
        s_lshl_b32 s85, s81, 7
        s_add_u32 s84, s84, s85
        s_add_u32 s84, s84, {X0}
        s_lshl_b32 s85, s80, 12
        s_lshl_b32 s86, {sCB0}, 9
        s_add_u32 s85, s85, s86
        s_lshl_b32 s86, s81, 8
        s_add_u32 s85, s85, s86
        s_add_u32 s85, s85, {SS0}
        s_lshl_b32 s32, {sTB0}, 3
        s_add_u32 s32, s32, {sCB0}
        s_lshl_b32 s32, s32, 7
        s_cmp_ge_u32 {sR}, 20
        s_cbranch_scc1 {l7}""")
        self.col_twiddles()
        a(f"{l7}:")
        self.fstamp("0", 15)
        self.if_lo(l3)
        a("s_waitcnt lgkmcnt(0)\ns_barrier\ns_barrier")
        self.stamp(1)
        self.read_rows_frags()
        self.dual_setup(sCB0)
        self.ep_setup()
        self.x_store_setup()
        a("s_waitcnt lgkmcnt(0)\ns_barrier")
        self.fstamp("0", 16)
        a(f"v_and_b32 v18, 1, {vL}\nv_lshlrev_b32 v18, 7, v18\ns_movk_i32 s89, 128")
        self.gcore(FI, 10, True, False, False)
        self.fstamp("0", 17)
        self.ep_write(True)
        self.fstamp("0", 18)
        self.half_sync(1)
        self.fstamp("0", 19)
        self.x_store("s84")
        self.ss_store(sCB0, "s85")
        self.stamp(2)
        self.poll(SDBG, "v18", "0", 2, "s89")
        self.arrive(7, "s32")
        self.stamp(3)
        a(f"s_branch {l8}\n{l3}:")
        a(f"""s_cmp_lg_u32 {sWV}, 7
        s_cbranch_scc1 {l1}
        s_waitcnt vmcnt(3)
        {l1}:
        s_waitcnt vmcnt(4) lgkmcnt(0)
        s_barrier""")
        self.stamp(1)
        self.wf_setup2()
        self.wq_setup()
        a("s_barrier")
        self.wq_dma(0, 6)
        a("s_waitcnt vmcnt(6)")
        self.fstamp("0", 16)
        self.wf_stores()
        self.wq_dma(6, 20)
        self.fstamp("0", 17)
        self.job_wq_setup()
        a(f"v_lshlrev_b32 v18, 7, {vL}\ns_movk_i32 s89, 128")
        self.poll(SDBG, "v18", "0", 2, "s89")
        self.arrive(7, "s32")
        self.fstamp("0", 18)
        self.half_sync(2)
        self.stamp(2)
        self.job_wq()
        self.stamp(3)
        a(f"{l8}:")

    def job_wq_setup(self):
        a = self.a
        a(f"""v_bfe_u32 v5, {vL}, 2, 2
        v_lshl_add_u32 v6, {vG}, 3, v5
        v_lshlrev_b32 v6, 7, v6
        v_lshrrev_b32 v5, 1, v5
        v_and_b32 v7, 1, {vG}
        v_lshl_add_u32 v5, v7, 1, v5
        v_xor_b32 v5, {sWM}, v5
        v_lshl_add_u32 v6, v5, 5, v6
        v_and_b32 v5, 3, {vL}
        v_lshl_add_u32 v12, v5, 3, v6
        v_add_u32 v13, 0xa000, v12""")
        a(f"""s_lshl_b32 s72, {sTB0}, 6
        s_lshl_b32 s73, {sWM}, 4
        s_add_u32 s72, s72, s73
        v_add_u32 v5, s72, {vN}
        s_cmp_ge_u32 {sTB0}, 10
        s_cselect_b32 s74, 1, 0
        s_cmp_ge_u32 {sTB0}, 20
        s_cselect_b32 s74, 2, s74
        s_mul_i32 s73, s74, 640
        v_subrev_u32 v5, s73, v5
        v_mul_u32_u24 v6, 3277, v5
        v_lshrrev_b32 v6, 16, v6
        v_mul_u32_u24 v7, 20, v6
        v_sub_u32 v7, v5, v7
        v_lshrrev_b32 v8, 1, v6
        s_mov_b32 s73, 163840
        v_mul_lo_u32 v8, v8, s73
        v_and_b32 v6, 1, v6
        v_lshl_add_u32 v8, v6, 11, v8
        s_lshl_b32 s75, s74, 4
        v_add_u32 v9, s75, v7
        s_lshl_b32 s75, s74, 2
        s_add_u32 s75, s75, 48
        v_add_u32 v10, s75, v7
        v_cmp_gt_u32 vcc, 16, v7
        v_cndmask_b32 v9, v10, v9, vcc
        v_add_u32 v10, 72, v7
        s_cmp_eq_u32 s74, 2
        s_cselect_b64 vcc, -1, 0
        v_cndmask_b32 v9, v9, v10, vcc
        v_lshl_add_u32 v8, v9, 4, v8
        v_lshrrev_b32 v5, 1, {vG}
        v_lshl_add_u32 v8, v5, 9, v8
        v_and_b32 v5, 1, {vG}
        v_lshl_add_u32 v8, v5, 12, v8
        s_cmp_eq_u32 s74, 0
        s_cselect_b32 s75, {fbits(AMP*QS)}, s87
        s_mul_i32 s72, {sCB0}, 20480
        s_add_u32 s72, s72, {WQ}
        v_mov_b32 v10, s75""".replace("s_cmp_eq_u32 s74, 0", f"s_mov_b32 s87, {fbits(AMP)}\ns_cmp_eq_u32 s74, 0"))

    def job_wq(self):
        a = self.a
        end = a.lab("Lb")
        a(f"s_cmp_ge_u32 {sTB0}, 30\ns_cbranch_scc1 {end}")
        for ks in range(20):
            for i in range(2):
                reg, off = ("v12", ks * 4096) if ks < 10 else ("v13", (ks - 10) * 4096)
                a(f"ds_read_b64_tr_b16 {vr(GA+4*ks+2*i,2)}, {reg} offset:{XS+off+i*512}")
        self.gcore(FI, 10, True, True, False)
        for ct in range(5):
            lo, hi = GLO + 4 * ct, GHI + 4 * ct
            a(f"v_pk_add_f32 {vr(lo,2)}, {vr(lo,2)}, {vr(hi,2)}")
            a(f"v_pk_add_f32 {vr(lo+2,2)}, {vr(lo+2,2)}, {vr(hi+2,2)} neg_lo:[0,1] neg_hi:[0,1]")
            for h in range(2):
                a(f"v_pk_mul_f32 {vr(lo+2*h,2)}, {vr(lo+2*h,2)}, v[10:11] op_sel_hi:[1,0]")
        a(f"""s_cmp_eq_u32 {sCB0}, 0
        s_cselect_b32 s73, 16, 0
        v_cmp_le_u32 vcc, s73, {vL}
        v_mul_f32 v5, {fbits(1/math.sqrt(2))}, v{GLO}
        v_cndmask_b32 v{GLO}, v5, v{GLO}, vcc
        v_cndmask_b32 v{GLO+1}, 0, v{GLO+1}, vcc""")
        for ct in range(5):
            a(f"v_cvt_pk_bf16_f32 v{GB+2*ct}, v{GLO+4*ct}, v{GLO+4*ct+1}")
            a(f"v_cvt_pk_bf16_f32 v{GB+1+2*ct}, v{GLO+4*ct+2}, v{GLO+4*ct+3}")
        for p in range(3):
            a(f"v_permlane16_swap_b32 v{GB+4*p}, v{GB+2+4*p}")
            a(f"v_permlane16_swap_b32 v{GB+1+4*p}, v{GB+3+4*p}")
            if p == 2:
                a("s_mov_b32 exec_lo, 0xffff\ns_mov_b32 exec_hi, 0xffff")
            a(f"buffer_store_dwordx4 {vr(GB+4*p,4)}, v8, {WS}, s72 offen sc1")
            a("s_add_u32 s72, s72, 8192")
        a(f"s_mov_b64 exec, -1\n{end}:")

    def jobs_idle(self):
        a = self.a
        l0, l1, l2, l3, l4 = (a.lab("Lc") for _ in range(5))
        self.if_lo(l4)
        a(f"""s_sub_u32 s80, {sR}, 20
        s_lshl_b32 s80, s80, 3
        s_add_u32 s80, s80, {sX}
        s_lshl_b32 s80, s80, 2
        s_add_u32 s80, s80, {sWV}
        s_mov_b32 s77, {fbits(1/640)}
        {l3}:
        s_mul_i32 s81, s80, 656
        s_lshr_b32 s81, s81, 16
        s_mul_i32 s82, s81, 100
        s_sub_u32 s82, s80, s82
        s_mul_i32 s83, s82, 205
        s_lshr_b32 s83, s83, 10
        s_mul_i32 s84, s83, 5
        s_sub_u32 s84, s82, s84
        s_mul_i32 s81, s81, 80
        s_lshl_b32 s84, s84, 4
        s_add_u32 s81, s81, s84
        v_add_u32 v8, s81, {vN}
        s_mul_i32 s84, s83, 40
        s_sub_u32 s85, s83, 16
        s_mul_i32 s85, s85, 160
        s_add_u32 s85, s85, 16
        s_cmp_lt_u32 s83, 16
        s_cselect_b32 s84, s84, s85
        s_cselect_b32 s85, 8, 20
        s_cselect_b64 vcc, -1, 0
        v_lshrrev_b32 v5, 1, {vG}
        v_mul_u32_u24 v5, 20, v5
        v_and_b32 v6, 1, {vG}
        v_lshl_add_u32 v5, v6, 2, v5
        v_mul_u32_u24 v6, 40, {vG}
        v_cndmask_b32 v5, v6, v5, vcc
        v_mul_u32_u24 v5, 1280, v5
        v_lshl_add_u32 v5, v8, 1, v5
        s_mul_i32 s84, s84, 1280
        s_mul_i32 s85, s85, 1280
        s_add_u32 s85, s85, s84""")
        for e in range(8):
            a(f"buffer_load_ushort v{32+e}, v5, {SWO}, {'s84' if e < 4 else 's85'} offen offset:{1280*(e%4)}")
        a(f"""v_and_b32 v5, 1, {vG}
        v_lshrrev_b32 v6, 1, {vG}
        v_lshlrev_b32 v5, 3, v5
        v_lshl_add_u32 v5, v6, 2, v5
        s_lshl_b32 s84, s83, 4
        v_add_u32 v5, s84, v5
        v_cmp_ne_u32 vcc, 0, v5
        v_cndmask_b32 v12, 0x140, v5, vcc""")
        for e in range(1, 4):
            a(f"v_add_u32 v{12+e}, {e}, v5")
        for e in range(4):
            a(f"v_mul_u32_u24 v{12+e}, v{12+e}, v8")
            a(f"v_cvt_f32_u32 v{12+e}, v{12+e}")
            a(f"v_mul_f32 v{12+e}, s77, v{12+e}")
            a(f"v_fract_f32 v{12+e}, v{12+e}")
            a(f"v_cos_f32 v{16+2*e}, v{12+e}")
            a(f"v_sin_f32 v{17+2*e}, -v{12+e}")
        a(f"""v_mul_f32 v5, {fbits(1/math.sqrt(2))}, v16
        v_cndmask_b32 v16, v5, v16, vcc
        v_cndmask_b32 v17, {fbits(1/math.sqrt(2))}, v17, vcc""")
        for e in range(4):
            a(f"v_cvt_pk_bf16_f32 v{24+e}, v{16+2*e}, v{17+2*e}")
        a(f"""s_lshl_b32 s84, s80, 10
        s_add_u32 s85, s84, {FT}
        s_add_u32 s84, s84, {WOT}
        buffer_store_dwordx4 v[24:27], {vL16}, {WS}, s85 offen sc1
        s_waitcnt vmcnt(1)
        v_lshl_or_b32 v28, v33, 16, v32
        v_lshl_or_b32 v29, v35, 16, v34
        v_lshl_or_b32 v30, v37, 16, v36
        v_lshl_or_b32 v31, v39, 16, v38
        buffer_store_dwordx4 v[28:31], {vL16}, {WS}, s84 offen sc1
        s_add_u32 s80, s80, 384
        s_cmp_lt_u32 s80, 800
        s_waitcnt vmcnt(0)
        s_cbranch_scc1 {l3}""")
        a(f"{l4}:\ns_waitcnt vmcnt(0) lgkmcnt(0)\ns_barrier")
        a(f"s_add_u32 s72, s32, {F_WQ*FSTRIDE}")
        self.signal("s72")
        a(f"""s_sub_u32 s80, {sR}, 12
        s_cmp_ge_u32 {sR}, 24
        s_cselect_b32 s80, {sX}, s80
        s_cmp_ge_u32 s80, 10
        s_cbranch_scc1 {l0}
        s_lshl_b32 s81, s80, 1
        s_lshr_b32 s82, {sWV}, 2
        s_add_u32 s81, s81, s82
        s_and_b32 s82, {sWV}, 3
        s_lshl_b32 s83, s81, 1
        s_lshr_b32 s84, s82, 1
        s_add_u32 s83, s83, s84
        s_mul_i32 s83, s83, 20
        s_and_b32 s84, s82, 1
        s_lshl_b32 s84, s84, 2
        s_add_u32 s83, s83, s84
        s_sub_u32 s84, s81, 16
        s_lshl_b32 s84, s84, 3
        s_lshl_b32 s85, s82, 1
        s_add_u32 s84, s84, s85
        s_mul_i32 s84, s84, 20
        s_add_u32 s84, s84, 16
        s_cmp_lt_u32 s80, 8
        s_cselect_b32 s82, s83, s84
        s_cselect_b32 s83, 8, 20
        s_mul_i32 s82, s82, 1280
        s_mul_i32 s83, s83, 1280""")
        self.dma_rows(SWO, 1280, "s83", "s82", sWV)
        a("s_waitcnt vmcnt(0)\ns_barrier")
        self.if_lo(l1)
        self.read_rows_frags()
        self.dual_setup(sCB0)
        self.ep_setup()
        self.gcore(FI, 10, True, False, False)
        self.ep_write(True)
        a(f"{l1}:\ns_waitcnt lgkmcnt(0)\ns_barrier")
        a(f"""s_mul_i32 s81, {sCB0}, 102400
        s_mul_i32 s82, s80, 10240
        s_add_u32 s81, s81, s82
        s_add_u32 s81, s81, {WOH}
        v_mul_u32_u24 v5, 144, {vN}
        v_lshl_add_u32 v5, {vG}, 4, v5
        s_mov_b32 s82, {sWV}
        {l2}:
        s_cmp_ge_u32 s82, 5
        s_cselect_b32 s83, {64 - 5*16*144}, 0
        s_mul_i32 s84, s82, {16*144}
        s_add_u32 s83, s83, s84
        s_add_u32 s83, s83, {EP}
        v_add_u32 v6, s83, v5
        ds_read_b128 v[8:11], v6
        s_lshl_b32 s84, s82, 10
        s_add_u32 s84, s84, s81
        s_add_u32 s82, s82, 8
        s_cmp_lt_u32 s82, 10
        s_waitcnt lgkmcnt(0)
        buffer_store_dwordx4 v[8:11], {vL16}, {WS}, s84 offen sc1
        s_cbranch_scc1 {l2}
        {l0}:""")

    def unpack(self, dst, src, n):
        for i in range(n):
            self.a(f"v_lshlrev_b32 v{dst+2*i}, 16, v{src+i}")
            self.a(f"v_and_b32 v{dst+2*i+1}, 0xffff0000, v{src+i}")

    def cmul_pack(self, c, s):
        a = self.a
        for h in range(4):
            dr, di, tr, ti = (vr(x + 2 * h, 2) for x in (self.DR, self.DI, self.TR, self.TI))
            cc, ss = vr(c + 2 * h, 2), vr(s + 2 * h, 2)
            a(f"v_pk_mul_f32 {tr}, {dr}, {cc}")
            a(f"v_pk_mul_f32 {ti}, {di}, {cc}")
            a(f"v_pk_fma_f32 {tr}, {di}, {ss}, {tr} neg_lo:[1,0,0] neg_hi:[1,0,0]")
            a(f"v_pk_fma_f32 {ti}, {dr}, {ss}, {ti}")
        for h in range(4):
            a(f"v_cvt_pk_bf16_f32 v{self.BR+h}, v{self.TR+2*h}, v{self.TR+2*h+1}")
            a(f"v_cvt_pk_bf16_f32 v{self.BI+h}, v{self.TI+2*h}, v{self.TI+2*h+1}")

    def mm(self, d, x, y, first):
        self.a(f"v_mfma_f32_16x16x32_bf16 {vr(d,4)}, {vr(x,4)}, {vr(y,4)}, {'0' if first else vr(d,4)}")

    RS, ZS, EX = EP, 81920, 98304
    T1C, T1S, T2C, T2S = 20, 28, 36, 44
    C1, S1, N1, C2, S2, N2, S4E, C4O, S4O = 52, 56, 60, 64, 72, 80, 88, 96, 104
    WRAW, WR, WI = 112, 120, 128
    URAW, R0, R1, RS0, RS1, DR, DI, TR, TI, BR, BI, AF = 136, 144, 152, 160, 168, 176, 184, 192, 200, 208, 212, 216

    def col_tables(self, s_first, step):
        a = self.a
        lp = a.lab("Lk")
        a(f"""v_and_b32 v5, 31, {vL}
        v_lshrrev_b32 v6, 5, {vL}
        s_mov_b32 s74, {s_first}
        {lp}:
        v_lshl_add_u32 v7, v5, 1, v6
        s_lshl_b32 s72, s74, 3
        v_mul_u32_u24 v8, s72, v7
        s_lshl_b32 s72, s74, 5
        s_sub_u32 s72, s72, 127
        v_lshl_add_u32 v9, v6, 4, s72
        v_mul_u32_u24 v9, v9, v5
        v_lshlrev_b32 v10, 1, v5
        s_cmp_lt_u32 s74, 4
        s_cselect_b64 vcc, -1, 0
        v_cndmask_b32 v8, v9, v8, vcc
        v_cndmask_b32 v7, v10, v7, vcc
        v_cvt_f32_u32 v8, v8
        v_cvt_f32_u32 v7, v7
        v_mul_f32 v60, {fbits(1/64)}, v8
        v_mul_f32 v7, {fbits(1/64)}, v7
        s_lshl_b32 s73, s74, 10
        s_add_u32 s73, s73, {TB}""")
        for e in range(1, 8):
            a(f"v_add_f32 v{60+e}, v{59+e}, v7")
        for e in range(8):
            a(f"v_sin_f32 v{68+e}, v{60+e}")
            a(f"v_cos_f32 v{60+e}, v{60+e}")
        a(f"v_add_u32 v9, s73, {vL16}")
        for e in range(4):
            a(f"v_cvt_pk_bf16_f32 v{76+e}, v{60+2*e}, v{61+2*e}")
            a(f"v_cvt_pk_bf16_f32 v{80+e}, v{68+2*e}, v{69+2*e}")
        a(f"""s_add_u32 s74, s74, {step}
        s_cmp_lt_u32 s74, 6
        ds_write_b128 v9, v[76:79]
        ds_write_b128 v9, v[80:83] offset:6144
        s_cbranch_scc1 {lp}""")

    def col_twiddles(self):
        a = self.a
        a(f"""s_lshr_b32 s72, {sWM}, 1
        s_and_b32 s73, {sWM}, 1
        s_lshl_b32 s74, s73, 5
        s_add_u32 s74, s74, s72
        v_lshl_add_u32 v5, {vN}, 1, s74
        v_cvt_f32_u32 v5, v5
        v_mul_f32 v5, {fbits(1/2048)}, v5
        v_lshlrev_b32 v6, 3, {vG}
        v_cvt_f32_u32 v7, v6
        v_mul_f32 v{self.T1C}, v7, v5""")
        for e in range(1, 8):
            a(f"v_add_f32 v{self.T1C+e}, v{self.T1C+e-1}, v5")
        for e in range(8):
            a(f"v_sin_f32 v{self.T1S+e}, -v{self.T1C+e}")
            a(f"v_cos_f32 v{self.T1C+e}, v{self.T1C+e}")
        a(f"""v_add_u32 v6, s74, v6
        v_cvt_f32_u32 v6, v6
        v_lshrrev_b32 v7, 2, {vN}
        v_and_b32 v8, 3, {vN}
        v_lshl_add_u32 v8, v7, 3, v8
        v_cvt_f32_u32 v7, v8
        v_mul_f32 v9, {fbits(1/2048)}, v7
        v_add_f32 v10, {fbits(4/2048)}, v9""")
        for t in range(2):
            a(f"v_mul_f32 v{self.T2C+4*t}, v6, v{9+t}")
            a(f"v_add_f32 v{9+t}, v{9+t}, v{9+t}")
            for r in range(1, 4):
                a(f"v_add_f32 v{self.T2C+4*t+r}, v{self.T2C+4*t+r-1}, v{9+t}")
        for e in range(8):
            a(f"v_sin_f32 v{self.T2S+e}, v{self.T2C+e}")
            a(f"v_cos_f32 v{self.T2C+e}, v{self.T2C+e}")

    def col_wload(self):
        a = self.a
        a(f"buffer_load_dwordx4 {vr(self.WRAW,4)}, {vL16}, {WS}, s86 offen sc1")
        a(f"buffer_load_dwordx4 {vr(self.WRAW+4,4)}, {vL16}, {WS}, s86 offen offset:1024 sc1")

    def col_prepare(self):
        a = self.a
        l0 = a.lab("Lk")
        a(f"""s_lshr_b32 s72, {sWM}, 1
        s_and_b32 s73, {sWM}, 1
        s_lshl_b32 s74, {sWM}, 8
        s_add_u32 s74, s74, {TB}
        v_lshrrev_b32 v7, 2, {vN}
        v_and_b32 v8, 3, {vN}
        v_lshl_add_u32 v7, v7, 3, v8
        v_lshlrev_b32 v5, 10, {vG}
        v_lshl_add_u32 v6, {vN}, 4, v5
        v_add_u32 v6, s74, v6
        v_lshl_add_u32 v5, v7, 4, v5
        v_add_u32 v5, {TB}, v5
        v_lshlrev_b32 v9, 9, {vG}
        v_lshl_add_u32 v9, v7, 4, v9
        v_add_u32 v9, {TB+4096}, v9
        ds_read_b128 {vr(self.S1,4)}, v6 offset:6144""")
        for t in range(2):
            a(f"ds_read_b128 {vr(self.S2+4*t,4)}, v5 offset:{6144+64*t}")
            a(f"ds_read_b128 {vr(self.S4O+4*t,4)}, v9 offset:{6144+64*t}")
        a(f"ds_read_b128 {vr(self.C1,4)}, v6")
        for t in range(2):
            a(f"ds_read_b128 {vr(self.C2+4*t,4)}, v5 offset:{64*t}")
            a(f"ds_read_b128 {vr(self.C4O+4*t,4)}, v9 offset:{64*t}")
        a(f"""s_mul_i32 s33, {sX}, 20
        s_add_u32 s33, s33, {sR}
        s_lshl_b32 s80, s33, 1
        s_add_u32 s80, s80, {sHI}
        s_lshl_b32 s82, s80, 1
        s_add_u32 s82, s82, s73
        s_lshl_b32 s83, s82, 8
        s_mul_i32 s84, s72, {8*163840}
        s_add_u32 s83, s83, s84
        s_add_u32 s84, s83, {sXA}
        s_add_u32 s85, s84, {4*163840}
        s_lshl_b32 s86, s80, 13
        s_lshl_b32 s74, {sWM}, 11
        s_add_u32 s86, s86, s74
        s_add_u32 s86, s86, {WF}
        s_cmp_eq_u32 {sLAYER}, 0
        s_cbranch_scc1 {l0}""")
        self.col_wload()
        a(f"""{l0}:
        s_mov_b32 s74, 163840
        v_mul_lo_u32 v11, {vG}, s74
        v_lshl_add_u32 v11, {vN}, 4, v11
        v_lshrrev_b32 v5, 5, {vTID}
        v_and_b32 v6, 31, {vTID}
        v_lshlrev_b32 v6, 4, v6
        v_lshl_add_u32 v16, v5, 12, v6
        v_lshlrev_b32 v12, 4, {vTID}
        v_add_u32 v12, {self.RS}, v12
        s_lshl_b32 s74, s72, 12
        s_add_u32 s74, s74, {self.RS}
        v_lshlrev_b32 v13, 9, {vG}
        v_lshl_add_u32 v13, {vN}, 5, v13
        v_add_u32 v13, s74, v13
        s_lshl_b32 s75, {sHI}, 13
        s_lshl_b32 s74, s73, 11
        s_add_u32 s74, s74, s75
        s_lshl_b32 s76, s72, 7
        s_add_u32 s74, s74, s76
        s_add_u32 s74, s74, {self.ZS}
        v_bfe_u32 v5, {vN}, 2, 1
        v_lshlrev_b32 v5, 10, v5
        v_lshl_add_u32 v5, {vG}, 8, v5
        v_lshrrev_b32 v6, 3, {vN}
        v_lshl_add_u32 v5, v6, 6, v5
        v_lshl_add_u32 v5, v8, 4, v5
        v_add_u32 v14, s74, v5
        s_lshl_b32 s74, s72, 12
        s_add_u32 s74, s74, s75
        s_add_u32 s74, s74, {self.ZS}
        v_add_u32 v15, s74, {vL16}
        s_lshl_b32 s76, s73, 9
        s_add_u32 s74, s74, s76
        v_lshlrev_b32 v5, 10, v6
        v_lshl_add_u32 v5, v8, 4, v5
        v_bfe_u32 v6, {vN}, 2, 1
        v_lshl_add_u32 v5, v6, 7, v5
        v_lshrrev_b32 v6, 1, {vG}
        v_lshl_add_u32 v5, v6, 8, v5
        v_and_b32 v6, 1, {vG}
        v_lshl_add_u32 v5, v6, 3, v5
        v_add_u32 v8, s74, v5
        s_lshl_b32 s74, s72, 10
        s_add_u32 s74, s74, s75
        s_lshl_b32 s76, s73, 11
        s_add_u32 s74, s74, s76
        s_add_u32 s74, s74, {self.EX}
        v_add_u32 v9, s74, {vL16}
        v_xor_b32 v10, 0x800, v9
        s_lshl_b32 s74, {sWV}, 5
        v_add_u32 v5, s74, {vL}
        s_lshl_b32 s74, s72, 7
        s_add_u32 s74, s74, {sX}
        v_lshl_add_u32 v6, {vN}, 3, s74
        v_cmp_gt_u32 vcc, 32, {vL}
        v_cndmask_b32 v5, v6, v5, vcc
        v_lshlrev_b32 v17, 7, v5
        v_writelane_b32 v17, s32, 48
        s_mov_b32 s76, {fbits(1/640)}
        v_mov_b32 v18, {fbits(1e-5)}
        s_cmp_eq_u32 s73, 0
        s_cselect_b32 s75, 0x80008000, 0
        s_mov_b32 s74, 0x80008000
        s_mov_b32 s87, {fbits(1/2048)}
        s_waitcnt lgkmcnt(5)""")
        for i in range(4):
            a(f"v_xor_b32 v{self.N1+i}, s74, v{self.S1+i}")
        for i in range(8):
            a(f"v_xor_b32 v{self.N2+i}, s74, v{self.S2+i}")
            a(f"v_xor_b32 v{self.S4E+i}, s75, v{self.S2+i}")
            a(f"v_xor_b32 v{self.S4O+i}, s75, v{self.S4O+i}")

    def col_main(self):
        a = self.a
        nz, l1 = a.lab("Lnz"), a.lab("Lk")
        EXO = self.EX - self.ZS
        self.poll(WS, "v17", sFL, 49)
        self.stamp(4)
        for cb in range(8):
            a(f"buffer_load_dwordx4 {vr(self.TR+4*cb,4)}, v16, {WS}, {sSS} offen offset:{512*cb} sc1")
        a(f"""buffer_load_dwordx4 {vr(self.URAW,4)}, v11, {WS}, s84 offen sc1
        buffer_load_dwordx4 {vr(self.URAW+4,4)}, v11, {WS}, s85 offen sc1
        s_add_u32 s84, s83, {sXB}
        s_add_u32 s85, s84, {4*163840}""")
        T = self.TR
        for k in range(1, 8):
            a(f"s_waitcnt vmcnt({9-k})")
            for i in range(0, 4, 2):
                a(f"v_pk_add_f32 {vr(T+i,2)}, {vr(T+i,2)}, {vr(T+4*k+i,2)}")
        for i in range(4):
            a(f"v_fma_f32 v{T+i}, v{T+i}, s76, v18")
        for i in range(4):
            a(f"v_rsq_f32 v{T+i}, v{T+i}")
        self.fstamp("c", 0)
        a(f"s_nop 0\nds_write_b128 v12, {vr(T,4)}\ns_waitcnt lgkmcnt(0)\ns_barrier")
        self.fstamp("c", 1)
        for i in range(4):
            a(f"ds_read_b128 {vr(self.RS0+4*i,4)}, v13 offset:{(i//2)*2048+(i%2)*16}")
        a(f"s_waitcnt vmcnt(0)\ns_cmp_lg_u32 {sLAYER}, 0\ns_cbranch_scc1 {l1}")
        self.col_wload()
        a(f"s_add_u32 s72, s32, {F_WQ*FSTRIDE}")
        self.signal("s72")
        a(f"{l1}:")
        self.unpack(self.R0, self.URAW, 8)
        a(f"""s_cmp_lg_u32 s82, 1
        s_waitcnt lgkmcnt(0)
        s_cbranch_scc1 {nz}
        s_mov_b32 s87, 0""")
        for i in range(16):
            a(f"v_mov_b32 v{self.RS0+i}, 0")
        a(f"{nz}:")
        for h in range(4):
            p, r0, r1, x1 = vr(self.DR + 2 * h, 2), vr(self.RS0 + 2 * h, 2), vr(self.RS1 + 2 * h, 2), vr(self.R1 + 2 * h, 2)
            a(f"v_pk_mul_f32 {p}, {vr(self.R0+2*h,2)}, {r0}")
            a(f"v_pk_fma_f32 {vr(self.TR+2*h,2)}, {x1}, {r1}, {p}")
            a(f"v_pk_fma_f32 {vr(self.TI+2*h,2)}, {x1}, {r1}, {p} neg_lo:[1,0,0] neg_hi:[1,0,0]")
        for h in range(4):
            a(f"v_cvt_pk_bf16_f32 v{self.BR+h}, v{self.TR+2*h}, v{self.TR+2*h+1}")
        a(f"ds_write_b128 v14, {vr(self.BR,4)}")
        for h in range(4):
            a(f"v_cvt_pk_bf16_f32 v{self.BI+h}, v{self.TI+2*h}, v{self.TI+2*h+1}")
        a(f"ds_write_b128 v14, {vr(self.BI,4)} offset:4096\ns_waitcnt lgkmcnt(0)\ns_barrier")
        AF, DR, DI, BR, BI = self.AF, self.DR, self.DI, self.BR, self.BI
        self.fstamp("c", 2)
        for i in range(4):
            a(f"ds_read_b128 {vr(AF+4*i,4)}, v15 offset:{1024*i}")
        a("s_waitcnt lgkmcnt(2)")
        for t in range(2):
            self.mm(DR + 4 * t, AF + 4 * t, self.C1, True)
            self.mm(DI + 4 * t, AF + 4 * t, self.N1, True)
        a("s_waitcnt lgkmcnt(0)")
        for t in range(2):
            self.mm(DR + 4 * t, AF + 8 + 4 * t, self.S1, False)
            self.mm(DI + 4 * t, AF + 8 + 4 * t, self.C1, False)
        self.cmul_pack(self.T1C, self.T1S)
        for t in range(2):
            self.mm(DR + 4 * t, self.C2 + 4 * t, BR, True)
            self.mm(DI + 4 * t, self.N2 + 4 * t, BR, True)
        for t in range(2):
            self.mm(DR + 4 * t, self.S2 + 4 * t, BI, False)
            self.mm(DI + 4 * t, self.C2 + 4 * t, BI, False)
        a("s_waitcnt vmcnt(0)")
        self.fstamp("c", 3)
        self.unpack(self.WR, self.WRAW, 8)
        self.cmul_pack(self.WR, self.WI)
        for t in range(2):
            self.mm(DR + 4 * t, BR, self.C2 + 4 * t, True)
            self.mm(DI + 4 * t, BR, self.S2 + 4 * t, True)
        for t in range(2):
            self.mm(DR + 4 * t, BI, self.N2 + 4 * t, False)
            self.mm(DI + 4 * t, BI, self.C2 + 4 * t, False)
        self.cmul_pack(self.T2C, self.T2S)
        for t in range(2):
            a(f"ds_write_b64 v8, {vr(BR+2*t,2)} offset:{EXO+64*t}")
            a(f"ds_write_b64 v8, {vr(BI+2*t,2)} offset:{EXO+2048+64*t}")
        self.fstamp("c", 14)
        a("s_waitcnt lgkmcnt(0)\ns_barrier")
        self.fstamp("c", 15)
        for p in range(2):
            a(f"ds_read_b128 {vr(AF+8*p,4)}, v9 offset:{4096*p}")
        for p in range(2):
            a(f"ds_read_b128 {vr(AF+8*p+4,4)}, v10 offset:{4096*p}")
        a("v_mov_b32 v6, s87\ns_waitcnt lgkmcnt(2)")
        for t in range(2):
            self.mm(DR + 4 * t, self.C2 + 4 * t, AF, True)
            self.mm(DI + 4 * t, self.C4O + 4 * t, AF + 8, True)
        a("s_waitcnt lgkmcnt(0)")
        for t in range(2):
            self.mm(DR + 4 * t, self.S4E + 4 * t, AF + 4, False)
            self.mm(DI + 4 * t, self.S4O + 4 * t, AF + 12, False)
        for neg, t, r, b, so in (("", self.TR, self.R0, BR, "s84"), (" neg_lo:[0,1] neg_hi:[0,1]", self.TI, self.R1, BI, "s85")):
            for h in range(4):
                x = vr(t + 2 * h, 2)
                a(f"v_pk_add_f32 {x}, {vr(DR+2*h,2)}, {vr(DI+2*h,2)}{neg}")
                a(f"v_pk_fma_f32 {x}, {x}, v[6:7], {vr(r+2*h,2)} op_sel_hi:[1,0,1]")
            for h in range(4):
                a(f"v_cvt_pk_bf16_f32 v{b+h}, v{t+2*h}, v{t+2*h+1}")
            a(f"buffer_store_dwordx4 {vr(b,4)}, v11, {WS}, {so} offen sc1")

    XR = 81920
    NREG = 216
    QH, NRM, DEC, SSP, VSCR = 102400, 112640, 112768, 114688, 143360
    QACC, QF, QAD = 60, 144, 192

    def h_dma(self, voff, s_lds, s_src, q):
        a = self.a
        a(f"s_add_u32 m0, {s_lds}, {(q%5)*16384}")
        a(f"s_add_u32 s83, {s_src}, {q*16384}")
        for i in range(4):
            a(f"buffer_load_dwordx4 {voff}, {WS}, s83 offen offset:{1024*i} sc1 lds")

    def qkv_helper(self):
        a = self.a
        XR = self.XR
        a(f"""s_lshl_b32 s78, {sWM}, 12
        s_mul_i32 s79, {sG}, 163840
        s_add_u32 s79, s79, {WQ}
        s_add_u32 s79, s79, s78""")
        for q in range(5):
            self.h_dma(vL16, "s78", "s79", q)
        self.att_setup()
        a(f"""s_mul_i32 s80, {sT}, 163840
        s_add_u32 s80, s80, {sXB}
        s_add_u32 s80, s80, s78
        s_add_u32 s81, s78, {XR}
        s_mul_i32 s82, {sCB}, 102400
        s_add_u32 s82, s82, {FT}
        s_add_u32 s82, s82, s78
        s_and_b32 s74, {sWM}, 1
        s_lshl_b32 s74, s74, 1
        v_lshlrev_b32 v5, 2, {vG}
        v_xor_b32 v5, s74, v5
        v_xor_b32 v5, v5, {vL}
        v_lshlrev_b32 v8, 4, v5
        v_bfe_u32 v5, {vL}, 2, 2
        v_and_b32 v7, 1, {vG}
        v_lshrrev_b32 v6, 1, {vG}
        v_lshl_add_u32 v6, v6, 3, v5
        v_lshlrev_b32 v6, 8, v6
        v_lshl_add_u32 v6, v7, 12, v6
        s_lshl_b32 s74, {sHALF}, 2
        s_add_u32 s74, s74, {sWM}
        v_lshlrev_b32 v5, 1, v5
        v_xor_b32 v5, v5, v7
        v_xor_b32 v5, s74, v5
        v_lshl_add_u32 v6, v5, 5, v6
        v_and_b32 v7, 3, {vL}
        v_lshl_add_u32 v6, v7, 3, v6
        v_add_u32 v10, {XR}, v6
        v_add_u32 v11, 0xa000, v10
        s_cmp_eq_u32 {sG}, 0
        s_cselect_b32 s74, 1, 99
        v_cmp_ne_u32 s[6:7], s74, {vG}
        v_lshrrev_b32 v5, 2, {vL}
        v_lshl_add_u32 v5, v5, 4, v7
        s_lshl_b32 s74, {sWM}, 2
        v_add_u32 v5, s74, v5
        s_mul_i32 s74, {sG}, 10
        s_sub_u32 s74, s74, 40
        v_add_u32 v6, s74, {vL}
        v_cmp_gt_u32 vcc, 40, {vL}
        v_cndmask_b32 v5, v6, v5, vcc
        v_lshlrev_b32 v5, 7, v5
        s_lshl_b32 s15, {sLAYER}, 17
        s_lshl_b32 s74, {sT}, 13
        s_add_u32 s15, s15, s74
        s_add_u32 s15, s15, {SQ0}
        s_mul_i32 s16, {sG}, 10240
        s_add_u32 s16, s16, s80
        s_mov_b32 s17, 0xffff0000
        v_lshlrev_b32 v9, 5, {vN}
        v_lshl_add_u32 v9, {vG}, 3, v9
        s_add_u32 s74, {sFL}, {F_COL*FSTRIDE}""")
        self.poll(WS, "v5", "s74", 50)
        self.stamp(6)
        ACC, RAW, UN = 140, 60, 100
        l = a.lab("Lh")
        self.h_dma("v8", "s81", "s80", 0)
        a(f"s_cmp_lg_u32 {sWM}, 0\ns_cbranch_scc1 {l}")
        for i in range(10):
            a(f"buffer_load_dwordx4 {vr(RAW+4*i,4)}, {vL16}, {WS}, s16 offen offset:{1024*(i%4)} sc1")
            if i % 4 == 3:
                a("s_add_u32 s16, s16, 4096")
        a(f"{l}:")
        for q in range(1, 5):
            self.h_dma("v8", "s81", "s80", q)
        for q in range(10):
            allow = 4 * (4 - q) + 8 * max(0, q + 2 - 4) if q <= 4 else 8 * (min(q + 2, 9) - q)
            a(f"s_waitcnt vmcnt({allow}) lgkmcnt(0)\ns_barrier")
            if q < 2:
                l = a.lab("Lh")
                a(f"s_cmp_lg_u32 {sWM}, 0\ns_cbranch_scc1 {l}")
                for i in range(5 * q, 5 * q + 5):
                    if i == 0:
                        for r in range(4):
                            a(f"v_cndmask_b32 v{RAW+r}, 0, v{RAW+r}, s[6:7]")
                    for r in range(4):
                        a(f"v_lshlrev_b32 v{UN+2*r}, 16, v{RAW+4*i+r}\nv_and_b32 v{UN+2*r+1}, s17, v{RAW+4*i+r}")
                    for h in range(8):
                        a(f"{'v_mul_f32' if i == 0 else 'v_fmac_f32'} v{ACC+h}, v{UN+h}, v{UN+h}")
                a(f"{l}:")
            if q == 2:
                l = a.lab("Lh")
                a(f"s_cmp_lg_u32 {sWM}, 0\ns_cbranch_scc1 {l}")
                for i in range(4):
                    a(f"v_permlane32_swap_b32 v{ACC+i}, v{ACC+4+i}")
                for i in range(4):
                    a(f"v_add_f32 v{ACC+i}, v{ACC+i}, v{ACC+4+i}")
                a(f"s_lshl_b32 s74, {sG}, 9\ns_add_u32 s74, s74, s15")
                for i in range(2):
                    a(f"v_permlane16_swap_b32 v{ACC+i}, v{ACC+2+i}")
                for i in range(2):
                    a(f"v_add_f32 v{ACC+i}, v{ACC+i}, v{ACC+2+i}")
                for i in range(2):
                    a(f"v_or_b32 v{ACC+i}, 1, v{ACC+i}")
                a(f"buffer_store_dwordx2 {vr(ACC,2)}, v9, {WS}, s74 offen sc1\n{l}:")
            if 2 <= q <= 6:
                self.h_dma("v8", "s81", "s80", q + 3)
                self.h_dma(vL16, "s78", "s79", q + 3)
            l = a.lab("Lh")
            a(f"s_cmp_eq_u32 {sLAYER}, 0\ns_cbranch_scc1 {l}")
            for j in range(2):
                kk = (4 * q + 2 * j) % 20
                for i in range(2):
                    a(f"ds_read_b64_tr_b16 {vr(GA+4*(2*q+j)+2*i,2)}, v{10+kk//10} offset:{(kk%10)*4096+1024*i}")
            if q in (7, 8):
                self.h_dma(vL16, "s78", "s82", q - 7)
            a(f"{l}:")
            if q == 8:
                a(f"s_lshl_b32 s74, {sWM}, 11\ns_add_u32 s15, s15, s74\ns_mov_b32 s88, {SPIN}")
                for i in range(2):
                    a(f"buffer_load_dwordx4 {vr(RAW+4*i,4)}, {vL16}, {WS}, s15 offen offset:{1024*i} sc1")
        lp, dn = a.lab("Lh"), a.lab("Lh")
        a(f"""{lp}:
        v_min3_u32 v5, v{RAW}, v{RAW+1}, v{RAW+2}
        v_min3_u32 v5, v5, v{RAW+3}, v{RAW+4}
        v_min3_u32 v5, v5, v{RAW+5}, v{RAW+6}
        v_min_u32 v5, v5, v{RAW+7}
        v_cmp_eq_u32 vcc, 0, v5
        s_cbranch_vccz {dn}""")
        for i in range(2):
            a(f"buffer_load_dwordx4 {vr(RAW+4*i,4)}, {vL16}, {WS}, s15 offen offset:{1024*i} sc1")
        a(f"""s_sub_u32 s88, s88, 1
        s_waitcnt vmcnt(0)
        s_cbranch_scc0 {lp}
        {dn}:""")
        for i in range(4):
            a(f"v_add_f32 v{RAW+i}, v{RAW+i}, v{RAW+4+i}")
        a(f"""s_lshl_b32 s74, {sWM}, 9
        s_add_u32 s74, s74, {self.SSP}
        v_and_b32 v5, 31, {vL}
        v_lshrrev_b32 v6, 5, {vL}
        v_permlane32_swap_b32 v{RAW}, v{RAW+2}
        v_permlane32_swap_b32 v{RAW+1}, v{RAW+3}
        v_lshl_add_u32 v5, v5, 1, v6
        v_lshl_add_u32 v5, v5, 3, s74
        v_add_f32 v{RAW}, v{RAW}, v{RAW+2}
        v_add_f32 v{RAW+1}, v{RAW+1}, v{RAW+3}
        ds_write_b64 v5, {vr(RAW,2)}""")
        a("s_waitcnt lgkmcnt(0)\ns_barrier")
        l0, l1 = a.lab("Lh"), a.lab("Lh")
        a(f"s_cmp_eq_u32 {sLAYER}, 0\ns_cbranch_scc1 {l0}")
        for q in range(2, 6):
            a(f"s_add_u32 m0, s78, {q*16384}\ns_add_u32 s83, s82, {q*16384}")
            for i in range(4):
                a(f"buffer_load_dwordx4 {vL16}, {WS}, s83 offen offset:{1024*i} sc1 lds")
        a(f"""s_lshl_b32 s74, {sWM}, 10
        s_add_u32 m0, s74, 98304
        s_sub_u32 s83, s82, s78
        s_add_u32 s83, s83, m0
        buffer_load_dwordx4 {vL16}, {WS}, s83 offen sc1 lds
        s_branch {l1}
        {l0}:""")
        self.res_load()
        a(f"{l1}:")
        a(f"""s_mul_i32 s72, {sWM}, 2560
        s_add_u32 s72, s72, {self.QH}
        v_add_u32 v5, s72, {vL16}
        v_lshl_add_u32 v6, {vL}, 3, s72
        s_barrier
        ds_read_b128 {vr(AR.Q1,4)}, v5
        ds_read_b128 {vr(AR.Q1+4,4)}, v5 offset:1024
        ds_read_b64 v[6:7], v6 offset:2048
        s_waitcnt lgkmcnt(0)""")
        for j in range(4):
            a(f"v_mov_b32 v{AR.Q2+6*(j//2)+j%2}, v{6+j%2}")
        self.q2_spread()

    def q2_spread(self):
        for i in range(4):
            self.a(f"v_permlane32_swap_b32 v{AR.Q2+i}, v{AR.Q2+4+i}")

    def att_setup(self):
        a = self.a
        a(f"s_lshr_b32 s72, {sWM}, 1\ns_mul_i32 s84, s72, {A.HEADB}")
        A.setup_addr(a, vL, vL16, "s84", sHI, "s72", 5)
        a(f"""s_mul_i32 s85, {sWV}, 2560
        s_mul_i32 s86, {sG}, {16*A.CHUNK}
        s_add_u32 s86, s86, {sKV}
        s_add_u32 s86, s86, s85
        s_add_u32 s85, s85, {A.SLOT0}""")
        for i in range(2, 6):
            a(f"v_mov_b32 v{AR.Q2+i}, 0")
        for i in range(32):
            a(f"v_mov_b32 v{AR.O+i}, 0")

    def qkv_compute(self):
        a = self.a
        XR, AD = self.XR, self.QAD
        own = A.SLOT0 + A.slot_off(0)
        EA = AD + 10
        self.att_setup()
        a(f"""s_lshr_b32 s72, {sWM}, 1
        s_and_b32 s73, {sWM}, 1
        s_lshl_b32 s74, s72, 11
        v_add_u32 v{AD}, s74, {vL16}
        v_add_u32 v{AD+1}, 0xa000, v{AD}
        v_bfe_u32 v5, {vL}, 2, 2
        v_lshrrev_b32 v6, 5, {vL}
        v_lshl_add_u32 v6, v6, 3, v5
        v_mul_u32_u24 v{EA+1}, 48, v6
        v_lshlrev_b32 v6, 8, v6
        v_and_b32 v7, 3, {vL}
        v_lshl_add_u32 v6, v7, 3, v6
        s_lshl_b32 s74, s73, 1
        v_xor_b32 v7, s74, v5
        v_lshl_add_u32 v6, v7, 6, v6
        v_and_b32 v7, 1, {vG}
        v_lshl_add_u32 v6, v7, 5, v6
        v_add_u32 v{AD+2}, {XR}, v6""")
        for i in range(1, 4):
            a(f"v_xor_b32 v{AD+2+i}, {32*i}, v{AD+2}")
        for i in range(4):
            a(f"v_add_u32 v{AD+6+i}, 0xa000, v{AD+2+i}")
        a(f"""s_mul_i32 s75, {sWM}, 3072
        s_add_u32 s75, s75, {self.VSCR}
        v_and_b32 v5, 3, {vL}
        v_lshl_add_u32 v5, v7, 2, v5
        v_min_u32 v5, 4, v5
        v_and_b32 v6, 1, v5
        v_mul_u32_u24 v6, 24, v6
        v_lshrrev_b32 v5, 1, v5
        v_lshl_add_u32 v5, v5, 3, v6
        v_add3_u32 v{EA+1}, v{EA+1}, v5, s75
        v_and_b32 v5, 31, {vL}
        v_lshrrev_b32 v6, 5, {vL}
        v_lshl_add_u32 v7, v5, 1, v6
        v_mul_u32_u24 v7, 24, v7
        v_add_u32 v{EA}, s75, v7
        v_mul_u32_u24 v6, 20, v6
        v_add_lshl_u32 v{EA+2}, v6, v5, 4
        s_lshl_b32 s75, s73, 8
        s_add_u32 s75, s75, {self.SSP}
        v_lshl_add_u32 v{EA+3}, v5, 2, s75
        s_mul_i32 s76, s72, {A.HEADB}
        s_mul_i32 s77, s73, {2*A.TILE}
        s_add_u32 s77, s77, s76
        s_lshl_b32 s75, s73, 9
        s_add_u32 s76, s76, s75
        s_add_u32 s76, s76, {A.K2OFF}
        s_add_u32 s75, s77, {own}
        v_add_u32 v{EA+4}, s75, {vL16}
        v_add_u32 v{EA+5}, s75, v{EA+2}
        v_lshlrev_b32 v{EA+6}, 3, {vL}
        s_add_u32 s75, s76, {own}
        v_add_u32 v{EA+7}, s75, v{EA+6}
        s_lshl_b32 s75, {sG}, 4
        s_add_u32 s75, s75, {sT}
        s_mul_i32 s75, s75, {A.CHUNK}
        s_add_u32 s75, s75, {sKV}
        s_add_u32 s76, s76, s75
        s_add_u32 s77, s77, s75
        s_mul_i32 s75, {sWM}, 2560
        s_add_u32 s75, s75, {self.QH}
        v_add_u32 v{EA+8}, s75, {vL16}
        v_add_u32 v{EA+9}, s75, v{EA+6}
        s_mov_b32 s78, {fbits(1/640)}
        v_mov_b32 v{EA+10}, {fbits(1e-5)}
        s_lshl_b32 s75, {sWM}, 5
        s_add_u32 s75, s75, {self.NRM}
        v_lshl_add_u32 v{EA+11}, {vG}, 3, s75
        v_lshlrev_b32 v5, 3, {vN}
        v_add_u32 v{EA+12}, {self.NRM}, v5
        s_barrier""")
        self.stamp(6)

        def reads(k):
            kk, f = k % 20, self.QF + 16 * (k % 3)
            hi, off = kk // 10, (kk % 10) * 4096
            r = []
            for j in range(2):
                r.append(f"ds_read_b128 {vr(f+4*j,4)}, v{AD+hi} offset:{off+1024*j}")
                for i in range(2):
                    r.append(f"ds_read_b64_tr_b16 {vr(f+8+4*j+2*i,2)}, v{AD+2+4*hi+2*j+k%2} offset:{off+1024*i}")
            return r
        for r in reads(0) + reads(1):
            a(r)
        SSR = 8
        for k in range(40):
            a(f"s_waitcnt lgkmcnt({6 if k < 39 else 0})")
            rr = reads(k + 2) if k + 2 < 40 else []
            if k == 39:
                rr = [f"ds_read_b32 v{SSR+4*nt+w}, v{EA+3} offset:{512*w+128*nt}" for nt in range(2) for w in range(4)]
            f = self.QF + 16 * (k % 3)
            per = (2, 2, 1, 1) if k < 39 else (4, 4, 0, 0)
            for j, (mt, nt) in enumerate(((0, 0), (1, 0), (1, 1), (0, 1))):
                d = vr(self.QACC + 32 * nt + 16 * mt, 16)
                a(f"v_mfma_f32_32x32x16_bf16 {d}, {vr(f+4*mt,4)}, {vr(f+8+4*nt,4)}, {'0' if k == 0 else d}")
                if j == 0 and (k == 39 or ((k + 2) % 4 == 0 and k + 2 < 40)):
                    a("s_barrier")
                for _ in range(per[j]):
                    if rr:
                        a(rr.pop(0))
        self.stamp(7)
        KR, K2R, VR, Q2T, VT, RSD, N, W = 144, 152, 154, 166, 168, 220, self.NREG, 224
        a("s_waitcnt lgkmcnt(0)")
        for nt in range(2):
            s = SSR + 4 * nt
            a(f"v_pk_add_f32 {vr(s,2)}, {vr(s,2)}, {vr(s+2,2)}")
        for nt in range(2):
            a(f"v_add_f32 v{SSR+4*nt}, v{SSR+4*nt}, v{SSR+4*nt+1}")
        for nt in range(2):
            a(f"v_fma_f32 v{RSD+2*nt}, v{SSR+4*nt}, s78, v{EA+10}")
        for nt in range(2):
            a(f"v_rsq_f32 v{RSD+2*nt}, v{RSD+2*nt}")

        def sc(dst, src, n, nt):
            for h in range(n):
                r = vr(src + 2 * h, 2)
                a(f"v_pk_mul_f32 {r}, {r}, {vr(RSD+2*nt,2)} op_sel_hi:[1,0]")
            for h in range(n):
                a(f"v_cvt_pk_bf16_f32 v{dst+h}, v{src+2*h}, v{src+2*h+1}")

        def sq(acc, srcs):
            for j, r in enumerate(srcs):
                if j == 0:
                    a(f"v_pk_mul_f32 {vr(acc,2)}, {vr(r,2)}, {vr(r,2)}")
                else:
                    a(f"v_pk_fma_f32 {vr(acc,2)}, {vr(r,2)}, {vr(r,2)}, {vr(acc,2)}")
        PB = [self.QACC + 32 * nt for nt in range(2)]
        for nt in range(2):
            sc(VR + 6 * nt, PB[nt] + 20, 6, nt)
            for i in range(3):
                a(f"ds_write_b64 v{EA}, {vr(VR+6*nt+2*i,2)} offset:{8*i+1536*nt}")
            for i in range(4):
                a(f"ds_read_b64_tr_b16 {vr(VT+8*nt+2*i,2)}, v{EA+1} offset:{(i//2)*768+(i%2)*192+1536*nt}")
        for nt in range(2):
            sc(KR + 4 * nt, PB[nt] + 8, 4, nt)
            a(f"buffer_store_dwordx4 {vr(KR+4*nt,4)}, {vL16}, {WS}, s77 offen offset:{A.TILE*nt} sc1")
            sc((Q2T, K2R)[nt], PB[nt] + 16, 2, nt)
        for i in range(2):
            a(f"v_permlane32_swap_b32 v{Q2T+i}, v{K2R+i}")
        a(f"""buffer_store_dwordx2 {vr(K2R,2)}, v{EA+6}, {WS}, s76 offen sc1
        s_mov_b64 exec, {A.VMASK}
        s_waitcnt lgkmcnt(0)""")
        for nt in range(2):
            for i in range(2):
                a(f"buffer_store_dwordx4 {vr(VT+8*nt+4*i,4)}, v{EA+2}, {WS}, s77 offen offset:{A.TILE*nt+1024+A.VFR*i} sc1")
        for nt in range(2):
            for i in range(2):
                a(f"ds_write_b128 v{EA+5}, {vr(VT+8*nt+4*i,4)} offset:{A.TILE*nt+1024+A.VFR*i}")
        a("s_mov_b64 exec, -1")
        for nt in range(2):
            sc(AR.Q1 + 4 * nt, PB[nt], 4, nt)
            a(f"ds_write_b128 v{EA+4}, {vr(KR+4*nt,4)} offset:{A.TILE*nt}")
            a(f"ds_write_b128 v{EA+8}, {vr(AR.Q1+4*nt,4)} offset:{1024*nt}")
        a(f"ds_write_b64 v{EA+7}, {vr(K2R,2)}")
        a(f"ds_write_b64 v{EA+9}, {vr(Q2T,2)} offset:2048")
        for nt in range(2):
            sq(W + 4 * nt, [PB[nt] + 2 * h for h in (0, 1, 2, 3)])
            sq(W + 4 * nt + 2, [PB[nt] + 2 * h for h in (4, 5, 6, 7)])
        for half, ex in enumerate(("exec_hi", "exec_lo")):
            a(f"s_mov_b32 {ex}, 0")
            for nt in range(2):
                for h in (8, 9):
                    r, c = vr(PB[nt] + 2 * h, 2), vr(W + 4 * nt + 2 * half, 2)
                    a(f"v_pk_fma_f32 {c}, {r}, {r}, {c}")
            a(f"s_mov_b32 {ex}, -1")
        for j in range(4):
            a(f"v_add_f32 v{N+j}, v{W+2*j}, v{W+2*j+1}")
        a(f"v_max3_f32 v{W}, abs(v{PB[0]+20}), abs(v{PB[0]+21}), abs(v{PB[1]+20})")
        rest = [PB[1] + 21] + [PB[nt] + h for nt in range(2) for h in range(22, 28)]
        rest.append(rest[-1])
        for j in range(0, len(rest), 2):
            a(f"v_max3_f32 v{W}, v{W}, abs(v{rest[j]}), abs(v{rest[j+1]})")
        a(f"v_permlane32_swap_b32 v{N}, v{N+2}\nv_permlane32_swap_b32 v{N+1}, v{N+3}\ns_mov_b32 exec_hi, 0")
        for nt in range(2):
            for h in (28, 30):
                a(f"v_max3_f32 v{W}, v{W}, abs(v{PB[nt]+h}), abs(v{PB[nt]+h+1})")
        a(f"""s_mov_b32 exec_hi, -1
        v_pk_add_f32 {vr(N,2)}, {vr(N,2)}, {vr(N+2,2)}
        v_cmp_gt_f32 vcc, {fbits(2.0**50)}, v{W}
        v_cndmask_b32 v{N+1}, 0x7f800000, v{N+1}, vcc""")
        for j, sh in enumerate((8, 4, 2, 1)):
            a(f"v_mov_b32 v{AR.Q2+6*(j//2)+j%2}, v{Q2T+j%2}")
            for r in (N, N + 1):
                a(f"v_max_u32 v{r}, v{r}, v{r} row_ror:{sh} row_mask:0xf bank_mask:0xf")
        a(f"""s_mov_b32 exec_lo, 0x10001
        s_mov_b32 exec_hi, 0x10001
        ds_write_b64 v{EA+11}, {vr(N,2)}
        s_mov_b64 exec, -1""")
        self.q2_spread()
        a(f"""s_waitcnt lgkmcnt(0)
        s_barrier
        ds_read_b64 {vr(N,2)}, v{EA+12}""")

    def kv_dma(self):
        return [f"buffer_load_dwordx4 {vL16}, {WS}, s81 offen sc1 lds",
                f"buffer_load_dwordx4 {vL16}, {WS}, s81 offen offset:1024 sc1 lds",
                "s_mov_b32 exec_hi, 0",
                f"buffer_load_dwordx4 {vL16}, {WS}, s81 offen offset:2048 sc1 lds",
                "s_mov_b32 exec_hi, -1"]

    def att_dma(self, c):
        a = self.a
        a(f"s_mul_i32 s81, s80, {A.CHUNK}\ns_add_u32 m0, s85, {A.slot_off(c)}\ns_add_u32 s81, s81, s86")
        for x in self.kv_dma():
            a(x)
        a("s_add_u32 s80, s80, 1\ns_and_b32 s80, s80, 15")

    def att_slow(self):
        a = self.a
        M = 140
        for i in range(32):
            a(f"v_mov_b32 v{AR.O+i}, 0")
        a(f"v_mov_b32 v{M}, 0xff800000\nv_mov_b32 v{M+1}, 0xff800000\ns_waitcnt vmcnt(0)")
        for ps in range(2):
            lp = a.lab("Lsl")
            a(f"s_mov_b32 s80, 0\n{lp}:\ns_barrier")
            self.att_dma(0)
            a("s_waitcnt vmcnt(0)\ns_barrier")
            for n in range(4):
                if n % 2 == 0:
                    for r in A.rd_k(n // 2) + (A.rd_v(n // 2) if ps else []):
                        a(r)
                    a("s_waitcnt lgkmcnt(0)")
                a(A.qk1(n))
                a(A.qk2(n))
                s = AR.S + 16 * (n % 3)
                if ps == 0:
                    for i in range(8):
                        a(f"v_max3_f32 v{M+n%2}, v{M+n%2}, v{s+2*i}, v{s+2*i+1}")
                else:
                    for i in range(16):
                        a(f"v_sub_f32 v{s+i}, v{s+i}, v{M+n%2}")
                    for i in range(16):
                        a(A.ex(n, i))
                    a(A.pv(n, 0))
                    a(A.pv(n, 1))
            a(f"s_cmp_lg_u32 s80, 0\ns_cbranch_scc1 {lp}")
            if ps == 0:
                off = A.SLOT0 + A.slot_off(1)
                a(f"""v_lshlrev_b32 v5, 3, {vTID}
                v_xor_b32 v6, 0x800, v5
                v_add_u32 v5, {off}, v5
                v_add_u32 v6, {off}, v6
                ds_write_b64 v5, {vr(M,2)}
                s_waitcnt lgkmcnt(0)
                s_barrier
                ds_read_b64 {vr(M+2,2)}, v6
                s_waitcnt lgkmcnt(0)""")
                for q in range(2):
                    a(f"""v_max_f32 v{M+q}, v{M+q}, v{M+2+q}
                    v_mov_b32 v5, v{M+q}
                    v_permlane32_swap_b32 v5, v{M+q}
                    v_max_f32 v{M+q}, v5, v{M+q}""")
        for i in range(13):
            for x in self.img_piece(i):
                a(x)

    def img_piece(self, i):
        r = []
        if i % 4 == 0:
            r += [f"s_add_u32 m0, s8, {1024*i}", f"s_add_u32 s10, s9, {1024*i}"]
        ld = f"buffer_load_dwordx4 {vL16}, {WS}, s10 offen offset:{1024*(i%4)} sc1 lds"
        return r + (["s_mov_b32 exec_hi, 0", ld, "s_mov_b32 exec_hi, -1"] if i == 12 else [ld])

    def attention(self):
        a = self.a
        N = self.NREG
        l0, l1, l2, l3, l4, l5, slow, done, loop = (a.lab("La") for _ in range(9))
        a(f"""s_lshl_b32 s11, {sG}, 11
        s_add_u32 s11, s11, {sFL}
        s_add_u32 s11, s11, {F_KV*FSTRIDE}
        s_lshl_b32 s12, {sT}, 7
        s_add_u32 s12, s12, s11
        s_mul_i32 s8, {sWV}, 12800
        s_mov_b32 s9, {WOT}
        s_cmp_eq_u32 {sLAYER}, 0
        s_cselect_b32 s9, {WOH}, s9
        s_mul_i32 s72, {sCB}, 102400
        s_add_u32 s9, s9, s72
        s_add_u32 s9, s9, s8""")
        self.stamp(8)
        a("s_setprio 0")
        A.start(a, 0)

        def publish():
            self.if_lo(l0)
            for sh in (8, 4, 2, 1):
                for r in (N, N + 1):
                    a(f"v_max_u32 v{r}, v{r}, v{r} row_ror:{sh} row_mask:0xf bank_mask:0xf")
            a(f"s_waitcnt vmcnt(0)\n{l0}:\ns_barrier")
            self.signal("s12", payload=f"v{N+1}")
        for n in range(4):
            A.iteration(a, n, 4, publish if n == self.pub else None, first=(n == 0))
        a(A.pv(3, 1))
        self.stamp(9)
        self.if_lo(l1)
        a(f"s_barrier\nv_lshlrev_b32 v5, 7, {vL}\ns_cmp_lg_u32 {sLAYER}, 0\ns_cbranch_scc1 {l2}")
        a(f"s_mul_i32 s72, {sWM}, {24*128}\ns_add_u32 s72, s72, {F_IMG*FSTRIDE}")
        self.poll(WS, "v5", "s72", 24)
        a(f"{l2}:")
        self.poll(WS, "v5", "s11", 16, wide=True)
        a(f"""s_mul_i32 s72, {sWM}, 2560
        s_add_u32 s73, s85, s72
        s_add_u32 s74, s86, s72
        s_movk_i32 s75, 2560""")
        for c in (1, 2):
            a(f"""s_add_u32 s80, {sT}, {c}
            s_and_b32 s80, s80, 15
            s_mul_i32 s81, s80, {A.CHUNK}
            s_add_u32 m0, s73, {A.slot_off(c)}
            s_add_u32 s81, s81, s74""")
            for i in range(4):
                a(f"buffer_load_dwordx4 {vL16}, {WS}, s81 offen offset:{1024*i} sc1 lds")
            a(f"s_add_u32 m0, m0, 4096\ns_add_u32 s81, s81, 4096")
            a(f"buffer_load_dwordx4 {vL16}, {WS}, s81 offen sc1 lds")
        a(f"""s_mov_b64 exec, 0xffff
        v_mul_f32 v7, v7, v{N}
        v_cmp_nge_f32 vcc, {fbits(3600.0)}, v7
        s_mov_b64 exec, -1
        v_mov_b32 v5, {A.SLOT0 + A.slot_off(0)}
        v_mov_b32 v6, vcc_lo
        v_mad_u32_u24 v5, {vL}, s75, v5
        s_mov_b64 exec, 0xff
        ds_write_b32 v5, v6
        s_mov_b64 exec, -1
        s_waitcnt vmcnt(5)
        s_branch {l3}
        {l1}:
        s_waitcnt vmcnt(0)
        s_barrier
        s_cmp_lg_u32 {sLAYER}, 0
        s_cbranch_scc1 {l4}""")
        self.unpack(GLO, GA, 10)
        a(f"s_branch {l3}\n{l4}:")
        self.gcore(0, 20, False, True, False)
        a(f"v_mov_b32 v6, {fbits(AMP)}")
        for h in range(10):
            a(f"v_pk_mul_f32 {vr(GLO+2*h,2)}, {vr(GLO+2*h,2)}, v[6:7] op_sel_hi:[1,0]")
        a(f"""{l3}:
        v_mov_b32 v5, s85
        s_add_u32 s80, {sT}, 3
        s_and_b32 s80, s80, 15
        s_waitcnt lgkmcnt(0)
        s_barrier
        ds_read_b32 v6, v5 offset:{A.slot_off(0)}""")
        self.stamp(10)
        A.start(a, 4)
        self.att_dma(0)
        a(f"""v_readfirstlane_b32 s72, v6
        s_cmp_lg_u32 s72, 0
        s_cbranch_scc1 {slow}""")
        NT = 64
        prio = ((0, 0), (1, 0), (1, 3))

        def bnd(c):
            def f():
                cnt = {1: 9, 2: 16}.get(c, 3 if c < 14 else 0)
                a(f"s_waitcnt vmcnt({cnt}) lgkmcnt(0)\ns_barrier\ns_setprio 3")
            return f

        def hooks(n):
            h = {}

            def add(k, xs):
                h.setdefault(k, []).extend(xs)
            for lvl, (t, k) in zip((2, 1, 0), prio):
                if n % 4 == t:
                    add(k, [f"s_setprio {lvl}"])
            c = (n - 2) // 4
            d = self.kv_dma()
            if 1 <= c < 13:
                if n % 4 == 2:
                    add(2, [f"s_mul_i32 s81, s80, {A.CHUNK}", f"s_add_u32 m0, s85, {A.slot_off(c)}"])
                    add(3, ["s_add_u32 s81, s81, s86"])
                if n % 4 == 3:
                    add(0, d[:1])
                    add(2, ["s_add_u32 s80, s80, 1", "s_and_b32 s80, s80, 15"] + d[1:2])
                    add(3, d[2:])
            img = {4: (0, 1, 2), 5: (3, 4, 5), 8: (6, 7, 8, 9), 9: (10, 11, 12)}.get(n, ())
            for j, i in enumerate(img):
                x = self.img_piece(i)
                if i == 6:
                    x = ["s_add_u32 m0, s8, 4096"] + x
                add((0, 2, 3, 3)[j], x)
            return h
        for n in range(4, 14):
            A.iteration(a, n, NT, bnd(n // 4) if n % 4 == 2 else None, first=(n == 4), hooks=hooks(n))
        a(f"s_mov_b32 s82, 3\n.p2align 6\n{loop}:")
        for n in range(14, 26):
            h = hooks(n)
            if n == 25:
                h.setdefault(2, []).extend(["s_sub_u32 s82, s82, 1", "s_cmp_lg_u32 s82, 0"])
            A.iteration(a, n, NT, bnd(n // 4) if n % 4 == 2 else None, hooks=h)
        a(f"s_cbranch_scc1 {loop}")
        for n in range(50, 64):
            c = n // 4
            A.iteration(a, n, NT, bnd(c) if (n % 4 == 2 and c < 15) else None, hooks=hooks(n))
        a(A.pv(63, 1))
        a(f"{done}:")
        self.slow_labels = (slow, done)
        O, R, X = AR.O, AR.S, AR.S + 16
        l6, l7, l8, l9 = (a.lab("La") for _ in range(4))
        a(f"""s_setprio 0
        s_mul_i32 s72, {sWM}, 3072
        s_add_u32 s72, s72, {A.SLOT0}
        v_add_u32 v5, s72, {vL16}
        s_lshl_b32 s72, {sT}, 5
        s_lshl_b32 s73, {sG}, 1
        s_add_u32 s72, s72, s73
        s_lshr_b32 s73, {sWM}, 1
        s_add_u32 s72, s72, s73
        s_and_b32 s73, {sWM}, 1
        s_lshl_b32 s73, s73, 1
        s_add_u32 s73, s73, {sHI}
        s_lshl_b32 s74, s72, 12
        s_lshl_b32 s75, s73, 9
        s_add_u32 s74, s74, s75
        s_add_u32 s74, s74, {sO}
        s_lshl_b32 s75, s72, 10
        s_lshl_b32 s76, s73, 8
        s_add_u32 s75, s75, s76
        s_add_u32 s75, s75, {sO}
        s_add_u32 s75, s75, {OXOFF}""")
        self.if_lo(l6)
        for p, (skip, nxt) in enumerate(((l6, l7), (None, None))):
            for i in range(3):
                a(f"ds_write_b128 v5, {vr(O+16*(1-p)+4*i,4)} offset:{2*A.CHUNK*p+1024*i}")
            a("s_waitcnt lgkmcnt(0)\ns_barrier")
            for i in range(3):
                a(f"ds_read_b128 {vr(X+4*i,4)}, v5 offset:{2*A.CHUNK*(1-p)+1024*i}")
            a(f"v_lshrrev_b32 v5, 5, {vL}\nv_mul_u32_u24 v5, 1536, v5\ns_waitcnt lgkmcnt(0)")
            for h in (4, 5, 0, 1, 2, 3):
                a(f"v_pk_add_f32 {vr(R+2*h,2)}, {vr(O+16*p+2*h,2)}, {vr(X+2*h,2)}")
            if skip:
                a(f"s_branch {nxt}\n{skip}:")
        a(f"""{l7}:
        v_mov_b32 v6, v{R+8}
        v_mov_b32 v7, v{R+8}
        v_add_u32 v5, v5, {vL16}
        v_lshlrev_b32 v16, 3, {vL}
        v_permlane32_swap_b32 v7, v6
        v_rcp_f32 v6, v6""")
        for h in range(4):
            a(f"v_pk_mul_f32 {vr(R+2*h,2)}, {vr(R+2*h,2)}, v[6:7] op_sel_hi:[1,0]")
        for h in range(4):
            a(f"v_cvt_pk_bf16_f32 v{8+h}, v{R+2*h}, v{R+2*h+1}")
        a(f"buffer_store_dwordx4 v[8:11], v5, {WS}, s74 offen sc1")
        for h in range(4, 6):
            a(f"v_pk_mul_f32 {vr(R+2*h,2)}, {vr(R+2*h,2)}, v[6:7] op_sel_hi:[1,0]")
        for h in range(4, 6):
            a(f"v_cvt_pk_bf16_f32 v{8+h}, v{R+2*h}, v{R+2*h+1}")
        a(f"""s_mov_b32 exec_hi, 0
        buffer_store_dwordx2 v[12:13], v16, {WS}, s75 offen sc1
        s_mov_b64 exec, -1""")

    def o_loads(self):
        a = self.a
        a(f"""s_lshl_b32 s72, {sHALF}, 6
        s_lshl_b32 s73, {sWM}, 4
        s_add_u32 s72, s72, s73
        v_add_u32 v5, s72, {vN}
        v_lshlrev_b32 v6, 11, {vG}
        v_lshl_add_u32 v10, v5, 4, v6
        v_lshl_add_u32 v11, v5, 3, v6
        s_lshl_b32 s72, {sT}, 17
        s_add_u32 s72, s72, {sO}
        s_lshl_b32 s73, {sT}, 15
        s_add_u32 s73, s73, {sO}
        s_add_u32 s73, s73, {OXOFF}
        v_lshlrev_b32 v5, 7, {vL}""")
        self.poll(WS, "v5", "s34", 16)
        self.stamp(12)
        for ks in range(16):
            a(f"buffer_load_dwordx4 {vr(GA+4*ks,4)}, v10, {WS}, s72 offen sc1")
            a("s_add_u32 s72, s72, 8192")
        for ks in range(16, 20):
            for i in range(2):
                a(f"buffer_load_dwordx2 {vr(GA+4*ks+2*i,2)}, v11, {WS}, s73 offen offset:{1024*i} sc1")
            a("s_add_u32 s73, s73, 8192")

    @staticmethod
    def o_wait(ks):
        return (15 - ks) + 8 if ks < 16 else 2 * (19 - ks)

    def res_load(self):
        a = self.a
        a(f"""s_mul_i32 s72, {sT}, 163840
        s_mul_i32 s73, {sCB}, 20480
        s_add_u32 s72, s72, s73
        s_lshl_b32 s73, {sHALF}, 7
        s_add_u32 s72, s72, s73
        s_lshl_b32 s73, {sWM}, 5
        s_add_u32 s72, s72, s73
        s_add_u32 s72, s72, {sXB}
        v_lshlrev_b32 v5, 8, {vN}
        v_lshl_add_u32 v5, {vG}, 3, v5""")
        for ct in range(5):
            a(f"buffer_load_dwordx2 {vr(GA+2*ct,2)}, v5, {WS}, s72 offen sc1")
            a("s_add_u32 s72, s72, 4096")

    def final_store(self):
        a = self.a
        a(f"""s_mul_i32 s72, {sWM}, {16*176}
        s_add_u32 s72, s72, {EP}
        v_mul_u32_u24 v5, 176, {vN}
        v_lshl_add_u32 v5, {vG}, 3, v5
        v_add_u32 v5, s72, v5""")
        for ct in range(5):
            a(f"v_cvt_pk_bf16_f32 v{16+2*ct}, v{GLO+4*ct}, v{GLO+4*ct+1}")
            a(f"v_cvt_pk_bf16_f32 v{17+2*ct}, v{GLO+4*ct+2}, v{GLO+4*ct+3}")
            a(f"ds_write_b64 v5, {vr(16+2*ct,2)} offset:{ct*32}")
        a(f"""s_and_b32 s73, {sT}, 7
        s_lshl_b32 s73, s73, 8
        s_lshr_b32 s74, {sT}, 3
        s_lshl_b32 s74, s74, 4
        s_add_u32 s73, s73, s74
        s_lshl_b32 s74, {sHALF}, 3
        s_add_u32 s73, s73, s74
        s_lshl_b32 s74, {sWM}, 1
        s_add_u32 s73, s73, s74
        s_mul_i32 s73, s73, 1280
        s_mul_i32 s74, {sCB}, 160
        s_add_u32 s73, s73, s74
        s_movk_i32 s74, 176
        s_movk_i32 s75, 1280""")
        for i in range(3):
            a(f"""v_add_u32 v5, {64*i}, {vL}
            v_mul_u32_u24 v6, 205, v5
            v_lshrrev_b32 v6, 11, v6
            v_mul_u32_u24 v7, 10, v6
            v_sub_u32 v5, v5, v7
            v_lshlrev_b32 v5, 4, v5
            v_mad_u32_u24 v{8+i}, v6, s74, v5
            v_add_u32 v{8+i}, s72, v{8+i}
            v_and_b32 v7, 7, v6
            v_lshrrev_b32 v6, 3, v6
            v_lshl_add_u32 v6, v7, 5, v6
            v_mad_u32_u24 v{12+i}, v6, s75, v5""")
        a("s_waitcnt lgkmcnt(0)")
        for i in range(3):
            a(f"ds_read_b128 {vr(28+4*i,4)}, v{8+i}")
        for i in range(3):
            if i == 2:
                a("s_mov_b32 exec_hi, 0")
            a(f"s_waitcnt lgkmcnt({2-i})")
            a(f"buffer_store_dwordx4 {vr(28+4*i,4)}, v{12+i}, {SOUT}, s73 offen")

    def build(self):
        a = self.a
        self.prologue()
        self.phase0()
        a(f"""s_mov_b32 {sXA}, {X0}
        s_mov_b32 {sXB}, {X0+XSZ}
        s_mov_b32 {sKV}, {KV0}
        s_mov_b32 {sO}, {OM0}
        s_mov_b32 {sSS}, {SS0}
        Llayer:""")
        idle, cdone, l0, l1, l2, l3, l4, l5, l6, l7, l8, last = (a.lab("Lm") for _ in range(12))
        a(f"s_cmp_ge_u32 {sR}, 20\ns_cbranch_scc1 {idle}")
        a(f"s_cmp_eq_u32 {sLAYER}, 0\ns_cbranch_scc1 {l0}")
        self.col_twiddles()
        a(f"{l0}:")
        self.col_prepare()
        self.col_main()
        a(f"""s_lshl_b32 s33, s33, 7
        s_add_u32 s33, s33, {sFL}
        s_add_u32 s33, s33, {F_COL*FSTRIDE}
        s_branch {cdone}
        {idle}:
        s_sub_u32 s33, {sB}, 160
        s_lshl_b32 s33, s33, 7
        s_add_u32 s33, s33, {F_IMG*FSTRIDE}
        s_cmp_lg_u32 {sLAYER}, 0
        s_cbranch_scc1 {l1}""")
        self.jobs_idle()
        a(f"{cdone}:")
        self.stamp(5)
        a(f"s_cmp_le_u32 {sHI}, {sLAYER}\ns_cbranch_scc1 {l2}")
        a(f"v_lshlrev_b32 v5, 7, {vL}\ns_mul_i32 s72, {sWM}, {60*128}\ns_add_u32 s72, s72, {F_WQ*FSTRIDE}")
        self.poll(WS, "v5", "s72", 60)
        a(f"{l2}:\ns_waitcnt vmcnt(0) lgkmcnt(0)\ns_barrier")
        self.signal("s33")
        a(f"{l1}:")
        self.if_lo(l3)
        self.qkv_compute()
        a(f"s_branch {l4}\n{l3}:")
        self.qkv_helper()
        a(f"{l4}:")
        self.attention()
        self.stamp(11)
        a(f"""s_lshl_b32 s34, {sT}, 11
        s_lshl_b32 s35, {sG}, 7
        s_add_u32 s35, s35, s34
        s_add_u32 s34, s34, {sFL}
        s_add_u32 s34, s34, {F_O*FSTRIDE}
        s_add_u32 s72, s35, {sFL}
        s_add_u32 s72, s72, {F_O*FSTRIDE}
        s_waitcnt vmcnt(0)
        s_barrier""")
        self.signal("s72")
        a(f"s_cmp_lg_u32 {sLAYER}, 0\ns_cbranch_scc1 {last}")
        self.if_lo(l5)
        a(f"s_cmp_ge_u32 {sR}, 20\ns_cbranch_scc1 {l6}")
        self.col_tables(sWM, 4)
        a(f"{l6}:")
        self.x_store_setup()
        a(f"""s_mul_i32 s84, {sT}, 163840
        s_mul_i32 s85, {sCB}, 20480
        s_add_u32 s84, s84, s85
        s_lshl_b32 s85, {sHALF}, 7
        s_add_u32 s84, s84, s85
        s_add_u32 s84, s84, {X0+2*XSZ}
        s_waitcnt lgkmcnt(0)
        s_barrier""")
        self.x_store("s84")
        a(f"s_branch {l7}\n{l5}:")
        self.ep_setup()
        self.o_loads()
        self.gcore(0, 20, False, False, True, self.o_wait)
        self.ep_write(False)
        a(f"""s_lshl_b32 s85, {sT}, 12
        s_lshl_b32 s86, {sCB}, 9
        s_add_u32 s85, s85, s86
        s_lshl_b32 s86, {sHALF}, 8
        s_add_u32 s85, s85, s86
        s_add_u32 s85, s85, {SS0+65536}
        s_waitcnt lgkmcnt(0)
        s_barrier""")
        self.ss_store(sCB, "s85")
        a(f"{l7}:")
        self.stamp(13)
        a(f"""s_mov_b32 {sLAYER}, 1
        s_mov_b32 {sXA}, {X0+2*XSZ}
        s_mov_b32 {sXB}, {X0+3*XSZ}
        s_mov_b32 {sKV}, {KV0+KVSZ}
        s_mov_b32 {sO}, {OM0+OSZ}
        s_mov_b32 {sSS}, {SS0+65536}
        s_mov_b32 {sFL}, {FLAGS+4*FSTRIDE}
        s_add_u32 s72, s35, {sFL}
        s_mov_b32 s32, s35
        s_waitcnt vmcnt(0)
        s_barrier""")
        self.signal("s72")
        a(f"s_branch Llayer\n{last}:")
        self.if_hi("Lfin")
        self.o_loads()
        self.gcore(0, 20, False, True, True, self.o_wait)
        self.final_store()
        if self.stamps:
            a("s_mov_b64 exec, -1\ns_waitcnt vmcnt(0)")
            self.stamp(13)
        a("Lfin:")
        self.stamp_dump()
        a("Lend:\ns_endpgm")
        slow, done = self.slow_labels
        a(f"{slow}:")
        self.att_slow()
        a(f"s_branch {done}")
        return a.finalize()


def wrap(body):
    ref = open("cdna_kernels/" + NAME + ".s.ref").read()
    head = ref[:ref.index("; @launch")]
    out = head + "; @launch grid=(256,1,1) block=(512,1,1) lds=163840\n"
    out += f""".amdgcn_target "amdgcn-amd-amdhsa--gfx950"
.text
.globl {NAME}_kernel
.p2align 8
.type {NAME}_kernel,@function
{NAME}_kernel:
"""
    out += body
    out += ref[ref.index(".section .rodata"):]
    return out


if __name__ == "__main__":
    stamps = "--stamps" in sys.argv
    path = sys.argv[1]
    opts = [x[2:] for x in sys.argv[2:] if x.startswith("--")]
    g = Gen(stamps=stamps, opts=opts)
    txt = wrap(g.build())
    if "nosc1lds" in opts:
        txt = txt.replace(" sc1 lds", " lds")
    open(path, "w").write(txt)
    print("wrote", path, len(txt), "bytes; padded wait states", g.a.padded)
```

```python
import math, struct, sys
from asmlib import *
import attn as A
from attn import AR
from layout import *

NAME = "interleave_layers__spectral_gfnet__mha_block__prompt"


def fbits(x):
    return "0x%08x" % struct.unpack("<I", struct.pack("<f", x))[0]


WS, SX, SWF, SWQ, SWO, SOUT, SDBG = "s[20:23]", "s[24:27]", "s[28:31]", "s[36:39]", "s[40:43]", "s[44:47]", "s[48:51]"
sB, sWV, sX, sR, sT, sG, sHALF, sCB, sLAYER, sCB0, sTB0 = "s2", "s3", "s52", "s53", "s54", "s55", "s56", "s57", "s58", "s59", "s60"
sXA, sXB, sKV, sO, sSS, sFL, sSTAMP, sWM, sHI = "s61", "s62", "s63", "s64", "s65", "s66", "s67", "s68", "s69"
vTID, vL, vN, vG, vL16 = "v0", "v1", "v2", "v3", "v4"

AMP = math.sqrt(2.0 / 640)
QS = 20 ** -0.5 * math.log2(math.e)
SPIN = 1 << 16

XS, FI, EP, TB, TRS = 0, 81920, 133120, 145408, 157696
GA, GB, GLO, GHI = 164, 60, 144, 120
F_X, F_COL, F_KV, F_O, F_WQ, F_IMG = 0, 1, 2, 3, 8, 9


class Gen:
    def __init__(self, stamps=False, opts=()):
        self.opts = set(opts)
        self.a = Asm()
        self.stamps = stamps
        self.stamp_init = False
        self.probe = next((int(o[5:]) for o in self.opts if o.startswith("probe")), None)
        self.stw = next((int(o[3:]) for o in self.opts if o.startswith("stw")), 0)
        self.pub = next((int(o[3:]) for o in self.opts if o.startswith("pub")), 1)

    def stamp(self, k):
        if self.probe is not None and k == self.probe % 16:
            l = self.a.lab("Lpb")
            self.a(f"""s_cselect_b32 s91, 1, 0
            s_cmp_lg_u32 {sLAYER}, {self.probe//16}
            s_cbranch_scc1 {l}
            s_memrealtime s[98:99]
            s_waitcnt lgkmcnt(0)
            {l}:
            s_cmp_lg_u32 s91, 0""")
        if not self.stamps:
            return
        a = self.a
        if k == 0 and not self.stamp_init:
            self.stamp_init = True
            a("v_mov_b32 v252, -1\nv_mov_b32 v253, -1")
        a(f"""s_memrealtime s[90:91]
        s_memtime s[96:97]
        s_mov_b32 s93, m0
        s_mul_i32 s92, {sLAYER}, 16
        s_bitset0_b32 s92, 31
        s_waitcnt lgkmcnt(0)
        s_cselect_b32 s91, 1, 0
        s_add_u32 m0, s92, {k}
        s_cmp_lg_u32 s91, 0
        v_writelane_b32 v252, s90, m0
        v_writelane_b32 v253, s96, m0
        s_mov_b32 m0, s93""")

    def stamp_dump(self):
        if not self.stamps:
            return
        a = self.a
        l = a.lab("Lst")
        a(f"""s_cmp_lg_u32 {sWM}, {self.stw}
        s_cbranch_scc1 {l}
        s_mov_b64 exec, -1
        v_lshlrev_b32 v254, 3, {vL}
        s_mov_b32 exec_hi, 0
        buffer_store_dwordx2 v[252:253], v254, {WS}, {sSTAMP} offen
        {l}:""")

    def fstamp(self, grp, k):
        if "fine" + grp in self.opts:
            self.stamp(k)

    def if_lo(self, lab):
        self.a(f"s_cmp_lg_u32 {sHI}, 0\ns_cbranch_scc1 {lab}")

    def if_hi(self, lab):
        self.a(f"s_cmp_eq_u32 {sHI}, 0\ns_cbranch_scc1 {lab}")

    def prologue(self):
        a = self.a
        a(f"""s_cmp_ge_u32 {sB}, 256
        s_cbranch_scc1 Lend
        {"s_memrealtime s[100:101]" if self.probe is not None else ""}
        {"s_memrealtime s[98:99]" if self.probe is not None else ""}
        s_load_dwordx16 s[4:19], s[0:1], 0
        s_load_dwordx2 s[20:21], s[0:1], 64
        v_lshrrev_b32 v5, 6, v0
        v_and_b32 {vL}, 63, v0
        v_readfirstlane_b32 {sWV}, v5
        v_and_b32 {vN}, 15, v0
        v_lshrrev_b32 {vG}, 4, {vL}
        v_lshlrev_b32 {vL16}, 4, {vL}
        s_and_b32 {sX}, {sB}, 7
        s_lshr_b32 {sR}, {sB}, 3
        s_and_b32 s70, {sX}, 3
        s_lshl_b32 s70, s70, 2
        s_and_b32 s71, {sR}, 3
        s_add_u32 {sT}, s70, s71
        s_lshr_b32 {sHALF}, {sX}, 2
        s_lshr_b32 {sCB}, {sR}, 2
        s_lshl_b32 s70, {sHALF}, 3
        s_add_u32 {sG}, s70, {sCB}
        s_add_u32 s70, {sR}, {sX}
        s_and_b32 {sCB0}, s70, 7
        s_lshl_b32 s70, {sX}, 2
        s_lshr_b32 s71, {sR}, 3
        s_add_u32 {sTB0}, s70, s71
        s_mov_b32 {sLAYER}, 0
        s_and_b32 {sWM}, {sWV}, 3
        s_lshr_b32 {sHI}, {sWV}, 2
        s_lshl_b32 {sSTAMP}, {sB}, 1
        s_add_u32 {sSTAMP}, {sSTAMP}, {sHI}
        s_lshl_b32 {sSTAMP}, {sSTAMP}, 8
        s_add_u32 {sSTAMP}, {sSTAMP}, {STAMP}
        s_mov_b32 {sFL}, {FLAGS}
        s_mov_b32 s22, {WSEND}
        s_mov_b32 s23, 0x20000
        s_mov_b32 s26, {XSZ}
        s_mov_b32 s27, 0x20000
        s_mov_b32 s30, {2048*642}
        s_mov_b32 s31, 0x20000
        s_mov_b32 s38, {640*3840}
        s_mov_b32 s39, 0x20000
        s_mov_b32 s42, {640*1280}
        s_mov_b32 s43, 0x20000
        s_mov_b32 s46, {XSZ}
        s_mov_b32 s47, 0x20000
        s_mov_b32 s50, 256
        s_mov_b32 s51, 0x20000
        s_waitcnt lgkmcnt(0)
        s_mov_b64 s[24:25], s[4:5]
        s_cmp_lt_u32 {sX}, 4
        s_cselect_b32 s28, s6, s8
        s_cselect_b32 s29, s7, s9
        s_mov_b64 s[36:37], s[12:13]
        s_mov_b64 s[40:41], s[14:15]
        s_mov_b64 s[44:45], s[16:17]
        s_mov_b64 s[48:49], s[18:19]""")
        self.stamp(0)

    def poll(self, srd, vaddr, soff, nlanes, target="1", wide=False):
        a = self.a
        lp, dn = a.lab("Lp"), a.lab("Ld")
        mask = (1 << nlanes) - 1
        ld = "buffer_load_dwordx2 v[6:7]" if wide else "buffer_load_dword v6"
        a(f"""s_mov_b32 s88, {SPIN}
        s_mov_b32 exec_lo, {hex(mask & 0xffffffff)}
        s_mov_b32 exec_hi, {hex(mask >> 32)}
        {lp}:
        {ld}, {vaddr}, {srd}, {soff} offen sc1
        s_sub_u32 s88, s88, 1
        s_cbranch_scc1 {dn}
        s_waitcnt vmcnt(0)
        v_cmpx_gt_u32 vcc, {target}, v6
        s_cbranch_execnz {lp}
        {dn}:
        s_waitcnt vmcnt(0)
        s_mov_b64 exec, -1""")

    def signal(self, s_off, wave=0, payload=None):
        a = self.a
        l = a.lab("Lsg")
        a(f"""s_cmp_lg_u32 {sWV}, {wave}
        s_cbranch_scc1 {l}
        v_mov_b32 v6, 1
        v_mov_b32 v5, 0
        s_mov_b64 exec, 1""")
        if payload:
            a(f"v_mov_b32 v7, {payload}\nbuffer_store_dwordx2 v[6:7], v5, {WS}, {s_off} offen sc1")
        else:
            a(f"buffer_store_dword v6, v5, {WS}, {s_off} offen sc1")
        a(f"s_mov_b64 exec, -1\n{l}:")

    def gen_F(self, s_ct):
        a = self.a
        a(f"""s_mov_b32 s72, {s_ct}
        s_mul_i32 s73, {sCB0}, 80
        s_lshl_b32 s74, s72, 4
        s_add_u32 s73, s73, s74
        v_add_u32 v12, s73, {vN}
        v_lshrrev_b32 v14, 1, v12
        v_and_b32 v15, 1, v12
        v_cmp_ne_u32 vcc, 0, v12
        v_cndmask_b32 v14, 0x140, v14, vcc
        v_cmp_ne_u32 vcc, 1, v12
        v_cndmask_b32 v15, 0, v15, vcc
        v_cvt_f32_u32 v14, v14
        v_cvt_f32_u32 v15, v15
        v_lshlrev_b32 v13, 3, {vG}
        v_cvt_f32_u32 v13, v13
        v_mul_f32 v10, {fbits(1/640)}, v14
        v_mul_f32 v14, {fbits(1/20)}, v14
        v_mul_f32 v15, 0.25, v15
        v_fma_f32 v16, v13, v10, v15
        s_lshl_b32 s72, s72, 10
        s_add_u32 s72, s72, {FI}
        v_add_u32 v12, s72, {vL16}""".replace("0.25", fbits(0.25)))
        for e in range(1, 8):
            a(f"v_add_f32 v{16+e}, v{15+e}, v10")
        for h in range(4):
            a(f"v_pk_add_f32 {vr(24+2*h,2)}, {vr(16+2*h,2)}, v[14:15] op_sel_hi:[1,0]")
        a("v_cos_f32 v14, v14")
        for e in range(16):
            a(f"v_cos_f32 v{16+e}, v{16+e}")
        a("v_add_f32 v14, v14, v14")
        for ks in range(10):
            x, y, p = 16 + 8 * (ks % 2), 16 + 8 * ((ks + 1) % 2), 32 + 4 * (ks % 2)
            if ks >= 2:
                for h in range(4):
                    a(f"v_pk_fma_f32 {vr(x+2*h,2)}, {vr(y+2*h,2)}, v[14:15], {vr(x+2*h,2)} "
                      f"op_sel_hi:[1,0,1] neg_lo:[0,0,1] neg_hi:[0,0,1]")
            for h in range(4):
                a(f"v_cvt_pk_bf16_f32 v{p+h}, v{x+2*h}, v{x+2*h+1}")
            a(f"ds_write_b128 v12, {vr(p,4)} offset:{5120*ks}")

    def gcore(self, base, nks, dual, swap, init, await_a=None, hook=None):
        a = self.a
        a(f"v_add_u32 v6, {base}, {vL16}")
        if nks > 12:
            a(f"v_add_u32 v7, {base+61440}, {vL16}")

        def rd(ks, ct):
            reg, off = ("v6", ks * 5120) if ks < 12 else ("v7", (ks - 12) * 5120)
            return f"ds_read_b128 {vr(GB+20*(ks%3)+4*ct,4)}, {reg} offset:{off+ct*1024}"

        def mf(acc, ka, ks, ct, first):
            x, y = vr(GA + 4 * ka, 4), vr(GB + 20 * (ks % 3) + 4 * ct, 4)
            if swap:
                x, y = y, x
            d = vr(acc + 4 * ct, 4)
            return f"v_mfma_f32_16x16x32_bf16 {d}, {x}, {y}, {'0' if first else d}"
        for ks in range(2):
            for ct in range(5):
                a(rd(ks, ct))
        for ks in range(nks):
            w = f"lgkmcnt({5 if ks + 1 < nks else 0})"
            if await_a:
                w = f"vmcnt({await_a(ks)}) " + w
            a("s_waitcnt " + w)
            if hook and hook[0] == ks:
                a(hook[1])
            for ct in range(5):
                a(mf(GLO, ks, ks, ct, ks == 0 and not init))
                if ks + 2 < nks:
                    a(rd(ks + 2, ct))
                if dual:
                    a(mf(GHI, ks + 10, ks, ct, ks == 0))

    def dual_setup(self, s_cb):
        a = self.a
        a(f"""v_mov_b32 v8, {fbits(AMP)}
        v_lshlrev_b32 v5, 30, {vN}
        v_and_b32 v5, 0x80000000, v5
        v_xor_b32 v10, v5, v8
        s_cmp_eq_u32 {s_cb}, 0
        s_cselect_b32 s72, 2, 0
        v_cmp_le_u32 vcc, s72, {vN}
        v_cndmask_b32 v12, {fbits(AMP/math.sqrt(2))}, v8, vcc
        v_xor_b32 v14, v5, v12""")

    def ep_setup(self):
        a = self.a
        a(f"""v_mul_u32_u24 v5, 144, {vN}
        v_lshl_add_u32 v5, {vG}, 3, v5
        s_lshl_b32 s72, {sWM}, 5
        s_add_u32 s72, s72, {EP}
        v_add_u32 v9, s72, v5""")

    def ep_write(self, dual):
        a = self.a
        for ct in range(5):
            if dual:
                p, q = (12, 14) if ct == 0 else (8, 10)
                for h in range(2):
                    lo, hi = vr(GLO + 4 * ct + 2 * h, 2), vr(GHI + 4 * ct + 2 * h, 2)
                    a(f"v_pk_mul_f32 {lo}, {lo}, {vr(p,2)} op_sel_hi:[1,0]")
                    a(f"v_pk_fma_f32 {lo}, {hi}, {vr(q,2)}, {lo} op_sel_hi:[1,0,1]")
            a(f"v_cvt_pk_bf16_f32 v{GB+2*ct}, v{GLO+4*ct}, v{GLO+4*ct+1}")
            a(f"v_cvt_pk_bf16_f32 v{GB+1+2*ct}, v{GLO+4*ct+2}, v{GLO+4*ct+3}")
            a(f"ds_write_b64 v9, {vr(GB+2*ct,2)} offset:{ct*16*144}")

    def ss_store(self, s_cb, s_ss):
        a = self.a
        R = GB + 16
        a(f"""s_cmp_eq_u32 {s_cb}, 0
        s_cselect_b32 s72, 1, 99
        v_cmp_ne_u32 vcc, s72, {vN}""")
        for h in range(2):
            x = vr(GLO + 4 + 2 * h, 2)
            a(f"v_pk_mul_f32 {vr(R+2*h,2)}, {x}, {x}")
        for r in range(4):
            a(f"v_cndmask_b32 v{GLO+r}, 0, v{GLO+r}, vcc")
        for ct in (2, 3, 4, 0):
            for h in range(2):
                x = vr(GLO + 4 * ct + 2 * h, 2)
                a(f"v_pk_fma_f32 {vr(R+2*h,2)}, {x}, {x}, {vr(R+2*h,2)}")
        for sh in (8, 4, 2, 1):
            for r in range(4):
                a(f"v_add_f32 v{R+r}, v{R+r}, v{R+r} row_ror:{sh} row_mask:0xf bank_mask:0xf")
        a(f"""s_lshl_b32 s72, {sWM}, 6
        s_add_u32 s72, s72, {s_ss}
        s_mov_b32 exec_lo, 0x00010001
        s_mov_b32 exec_hi, 0x00010001
        buffer_store_dwordx4 {vr(R,4)}, {vL}, {WS}, s72 offen sc1
        s_mov_b64 exec, -1""")

    def x_store_setup(self):
        a = self.a
        a(f"""s_movk_i32 s79, 144
        v_lshrrev_b32 v5, 3, {vTID}
        v_and_b32 v6, 7, {vTID}
        v_lshlrev_b32 v6, 4, v6
        v_mad_u32_u24 v16, v5, s79, v6
        v_lshl_add_u32 v17, v5, 8, v6
        v_add_u32 v16, {EP}, v16""")

    def x_store(self, s_dst):
        a = self.a
        l1 = a.lab("Le")
        R = GB + 24
        for i in range(3):
            a(f"ds_read_b128 {vr(R+4*i,4)}, v16 offset:{32*144*i}")
        a(f"s_add_u32 s72, {s_dst}, 8192\ns_add_u32 s73, {s_dst}, 16384")
        a(f"s_waitcnt lgkmcnt(2)\nbuffer_store_dwordx4 {vr(R,4)}, v17, {WS}, {s_dst} offen sc1")
        a(f"s_waitcnt lgkmcnt(1)\nbuffer_store_dwordx4 {vr(R+4,4)}, v17, {WS}, s72 offen sc1")
        a(f"""s_cmp_gt_u32 {sWV}, 1
        s_waitcnt lgkmcnt(0)
        s_cbranch_scc1 {l1}
        buffer_store_dwordx4 {vr(R+8,4)}, v17, {WS}, s73 offen sc1
        {l1}:""")

    def dma_rows(self, srd, rg, s_rh, s_base, s_set):
        a = self.a
        a(f"""s_and_b32 s72, {s_set}, 1
        s_lshl_b32 s72, s72, 3
        v_add_u32 v5, s72, {vG}
        v_xor_b32 v5, v5, {vN}
        v_mul_u32_u24 v6, {rg}, {vG}
        v_lshl_add_u32 v8, v5, 4, v6
        v_xor_b32 v5, 4, v5
        v_lshl_add_u32 v9, v5, 4, v6
        v_add_u32 v9, {s_rh}, v9
        s_lshl_b32 s72, {s_set}, 11""")
        for blk in range(5):
            for h in range(2):
                a(f"s_add_u32 m0, s72, {XS + blk*(16384-256) + h*1024}")
                a(f"buffer_load_dwordx4 v{8+h}, {srd}, {s_base} offen offset:{blk*256} lds")

    def read_rows_frags(self):
        a = self.a
        a(f"""s_lshl_b32 s72, {sWM}, 12
        v_xor_b32 v5, {vG}, {vN}
        v_lshlrev_b32 v5, 4, v5
        v_lshl_add_u32 v5, {vN}, 8, v5
        v_add_u32 v8, s72, v5""")
        for c in range(1, 4):
            a(f"v_xor_b32 v{8+c}, {64*c}, v8")
        for ks in range(20):
            if ks == 16:
                for c in range(4):
                    a(f"v_add_u32 v{12+c}, 0x10000, v{8+c}")
            if ks < 16:
                a(f"ds_read_b128 {vr(GA+4*ks,4)}, v{8+ks%4} offset:{XS+(ks//4)*16384}")
            else:
                a(f"ds_read_b128 {vr(GA+4*ks,4)}, v{12+ks%4} offset:{XS}")

    def wf_setup(self):
        a = self.a
        a(f"""s_lshl_b32 s19, {sX}, 5
        s_add_u32 s19, s19, {sR}
        s_bfe_u32 s72, s19, 0x20005
        s_and_b32 s76, s72, 1
        s_lshl_b32 s76, s76, 5
        s_and_b32 s73, s19, 16
        s_add_u32 s76, s76, s73
        s_lshr_b32 s73, s72, 1
        s_add_u32 s76, s76, s73
        s_and_b32 s73, s19, 12
        s_lshl_b32 s73, s73, 7
        s_add_u32 s76, s76, s73
        s_mul_i32 s76, s76, 642
        s_and_b32 s75, s19, 3
        s_mul_i32 s75, s75, 160
        s_lshl_b32 s73, {sWM}, 4
        s_add_u32 s13, s75, s73
        s_and_b32 s73, s72, 2
        s_add_u32 s13, s13, s73
        s_add_u32 s76, s76, s13
        v_lshrrev_b32 v5, 3, {vL}
        v_and_b32 v6, 7, {vL}
        v_lshl_add_u32 v5, v6, 5, v5
        v_mul_u32_u24 v213, 1284, v5
        s_mov_b32 s18, s76""")

    def wf_loads(self):
        a = self.a
        skip = a.lab("Lw")
        a(f"""buffer_load_dwordx4 v[200:203], v213, {SWF}, s18 offen
        buffer_load_dwordx4 v[204:207], v213, {SWF}, s18 offen offset:64
        s_cmp_gt_u32 {sWM}, 1
        s_cbranch_scc1 {skip}
        buffer_load_dwordx4 v[208:211], v213, {SWF}, s18 offen offset:128
        s_cmp_lg_u32 s13, 0
        s_cbranch_scc1 {skip}
        buffer_load_ushort v212, v213, {SWF}, s18 offen offset:640
        {skip}:""")

    def wf_setup2(self):
        a = self.a
        a(f"""s_bfe_u32 s72, s19, 0x20005
        s_lshl_b32 s72, s72, 11
        s_lshr_b32 s73, s19, 7
        s_lshl_b32 s73, s73, 10
        s_add_u32 s72, s72, s73
        s_bfe_u32 s73, s19, 0x20002
        s_lshl_b32 s73, s73, 8
        s_add_u32 s72, s72, s73
        s_bfe_u32 s73, s19, 0x10004
        s_lshl_b32 s73, s73, 7
        s_add_u32 s72, s72, s73
        s_add_u32 s72, s72, {WF}
        s_lshl_b32 s74, {sWM}, 10
        s_add_u32 s74, s74, {TRS}
        v_lshrrev_b32 v5, 3, {vL}
        v_and_b32 v6, 7, {vL}
        v_xor_b32 v7, v5, v6
        v_lshl_add_u32 v7, v7, 4, s74
        v_lshl_add_u32 v8, v6, 7, v7
        v_lshl_add_u32 v13, v5, 7, v7
        v_add_u32 v9, s74, {vL16}
        v_lshlrev_b32 v10, 4, v6
        s_lshr_b32 s73, s13, 1
        v_add_u32 v5, s73, v5
        v_cmp_ne_u32 vcc, 0x100, v5
        v_lshl_add_u32 v10, v5, 13, v10
        v_subrev_u32 v12, {320*8192}, v10
        v_cndmask_b32 v12, v12, v10, vcc
        v_add_u32 v12, {64*8192}, v12""")
        a(f"""v_bfe_u32 v5, {vL}, 1, 1
        v_lshl_add_u32 v5, {vG}, 1, v5
        v_bfe_u32 v6, {vL}, 2, 2
        v_lshl_add_u32 v5, v5, 3, v6
        v_and_b32 v6, 1, {vL}
        v_lshlrev_b32 v6, 3, v6
        v_lshl_add_u32 v5, v5, 4, v6
        v_add_u32 v11, s74, v5
        s_mov_b32 s17, s72""")

    def wf_stores(self):
        a = self.a
        nop = a.lab("Lw")
        a(f"""s_cmp_lg_u32 s13, 0
        s_cbranch_scc1 {nop}
        v_and_b32 v200, 0xffff0000, v200
        v_or_b32 v200, v200, v212
        {nop}:""")
        for rnd in range(3):
            a(f"ds_write_b128 v9, {vr(200+4*rnd,4)}")
            for i in range(2):
                a(f"ds_read_b64_tr_b16 {vr(200+4*rnd+2*i,2)}, v11 offset:{64*i}")
        for rnd in range(3):
            a(f"s_waitcnt lgkmcnt({(6, 5, 4)[rnd]})")
            a(f"ds_write_b128 v8, {vr(200+4*rnd,4)}")
            a(f"ds_read_b128 {vr(200+4*rnd,4)}, v13")
        skip = a.lab("Lw")
        a("s_waitcnt lgkmcnt(0)")
        self.fstamp("0", 19)
        for rnd in range(3):
            if rnd == 2:
                a(f"s_cmp_gt_u32 {sWV}, 5\ns_cbranch_scc1 {skip}")
            a(f"buffer_store_dwordx4 {vr(200+4*rnd,4)}, {'v12' if rnd == 2 else 'v10'}, {WS}, {'s74' if rnd == 1 else 's17'} offen sc1")
            a(f"s_add_u32 s74, s17, {32*8192}")
        a(f"{skip}:")

    def wq_setup(self):
        a = self.a
        a(f"""v_lshrrev_b32 v5, 3, {vL}
        v_bfe_u32 v6, {vL}, 4, 1
        s_and_b32 s72, {sWV}, 1
        s_lshl_b32 s72, s72, 1
        v_or_b32 v6, s72, v6
        v_lshlrev_b32 v6, 1, v6
        v_and_b32 v7, 7, {vL}
        v_xor_b32 v6, v6, v7
        v_mul_u32_u24 v5, 3840, v5
        v_lshl_add_u32 v14, v6, 4, v5
        s_mul_i32 s72, {sWM}, {8*3840}
        s_lshl_b32 s73, {sTB0}, 7
        s_add_u32 s72, s72, s73
        s_lshl_b32 s73, {sWM}, 10""")

    def wq_dma(self, first, last):
        a = self.a
        for it in range(first, last):
            a(f"s_add_u32 m0, s73, {XS + it*4096}")
            a(f"buffer_load_dwordx4 v14, {SWQ}, s72 offen lds")
            a(f"s_add_u32 s72, s72, {32*3840}")

    def arrive(self, last, s_flag):
        a = self.a
        l = a.lab("Lar")
        a(f"""v_mov_b32 v5, {TRS+4096}
        v_mov_b32 v6, 1
        s_mov_b64 exec, 1
        ds_add_rtn_u32 v7, v5, v6
        v_mov_b32 v5, 0
        s_waitcnt lgkmcnt(0)
        v_cmpx_eq_u32 vcc, {last}, v7
        s_cbranch_execz {l}
        buffer_store_dword v6, v5, {WS}, {s_flag} offen sc1
        {l}:
        s_mov_b64 exec, -1""")

    def half_sync(self, slot):
        a = self.a
        lp = a.lab("Lhs")
        a(f"""v_mov_b32 v5, {TRS+4096+4*slot}
        v_mov_b32 v6, 1
        s_mov_b64 exec, 1
        ds_add_u32 v5, v6
        {lp}:
        ds_read_b32 v6, v5
        s_waitcnt lgkmcnt(0)
        v_cmp_gt_u32 vcc, 4, v6
        s_cbranch_vccnz {lp}
        s_mov_b64 exec, -1""")

    def phase0(self):
        a = self.a
        z0, z1, z2, z3, z4, z5, l1, l2, l3, l5, l6, l7, l8, l9, l10 = (a.lab("Lq") for _ in range(15))
        a(f"s_lshr_b32 s80, {sTB0}, 1\ns_and_b32 s81, {sTB0}, 1")
        self.if_hi(z0)
        a(f"""s_cmp_lg_u32 {sWV}, 6
        s_cbranch_scc1 {z1}
        v_lshlrev_b32 v5, 15, {vL}
        s_lshl_b32 s70, {sB}, 7
        v_mov_b32 v16, 0
        v_mov_b32 v17, 0
        v_mov_b32 v18, 0
        v_mov_b32 v19, 0
        v_mov_b32 v6, {TRS+4096}
        s_lshl_b32 s71, {sB}, 10
        s_add_u32 s71, s71, {SQ0}
        buffer_store_dwordx4 v[16:19], {vL16}, {WS}, s71 offen sc1
        s_mov_b64 exec, {(1<<NFLAG)-1}
        buffer_store_dwordx2 v[18:19], v5, {WS}, s70 offen sc1
        ds_write_b128 v6, v[16:19]
        s_mov_b64 exec, -1
        {z1}:
        s_and_b32 s82, s80, 7
        s_lshl_b32 s82, s82, 8
        s_lshr_b32 s83, s80, 3
        s_lshl_b32 s83, s83, 4
        s_add_u32 s82, s82, s83
        s_lshl_b32 s83, s81, 3
        s_add_u32 s15, s82, s83
        s_mov_b32 s83, {128*1280}
        s_add_u32 s14, {sWM}, {sCB0}
        s_mov_b32 s16, 0
        {z2}:
        s_and_b32 s14, s14, 7
        s_add_u32 s82, s15, s14
        s_mul_i32 s82, s82, 1280""")
        self.dma_rows(SX, 32 * 1280, "s83", "s82", "s14")
        a(f"""s_add_u32 s14, s14, 4
        s_xor_b32 s16, s16, 1
        s_cbranch_scc1 {z2}""")
        self.wf_setup()
        self.fstamp("0", 14)
        a(f"""s_barrier
        s_cmp_lg_u32 {sWV}, 6
        s_cbranch_scc1 {z3}
        s_and_b32 s70, {sB}, 1
        s_lshl_b32 s70, s70, 7
        v_mov_b32 v18, 0
        v_mov_b32 v19, 1
        s_mov_b64 exec, 1
        s_waitcnt vmcnt(20)
        buffer_atomic_add v19, v18, {SDBG}, s70 offen sc1
        s_mov_b64 exec, -1
        {z3}:
        s_mul_i32 s72, {sCB0}, 80
        s_mul_i32 s73, {sWM}, 20
        s_add_u32 s72, s72, s73
        s_mul_i32 s72, s72, 3840
        s_lshl_b32 s73, {sTB0}, 7
        s_add_u32 s72, s72, s73
        v_mul_u32_u24 v5, 3840, {vL}
        s_mov_b64 exec, 0xfffff
        buffer_load_dword v250, v5, {SWQ}, s72 offen
        s_mov_b64 exec, -1""")
        self.wf_loads()
        a(f"""s_branch {l9}
        {z0}:
        s_cmp_lg_u32 {sWV}, 3
        s_cbranch_scc1 {z4}
        s_getpc_b64 s[72:73]
        Lpc:
        s_mul_i32 s74, {sR}, ((Lend-Lpc)/4096)*128
        s_add_u32 s72, s72, s74
        s_addc_u32 s73, s73, 0
        v_lshlrev_b32 v6, 7, {vL}
        v_mov_b32 v7, s73
        v_add_co_u32 v6, vcc, s72, v6
        v_addc_co_u32 v7, vcc, 0, v7, vcc
        s_bfm_b64 exec, (Lend-Lpc)/4096, 0
        global_load_dword v250, v[6:7], off
        s_mov_b64 exec, -1
        {z4}:
        s_mov_b32 s15, {sWV}
        {z5}:""")
        self.gen_F("s15")
        a(f"""s_add_u32 s15, s15, 4
        s_cmp_eq_u32 s15, 4
        s_cbranch_scc1 {z5}
        s_cmp_ge_u32 {sR}, 20
        s_cbranch_scc1 {l9}
        s_cmp_eq_u32 {sWV}, 0
        s_cbranch_scc1 {l9}
        s_sub_u32 s15, {sWV}, 1""")
        self.col_tables("s15", 3)
        a(f"""{l9}:
        s_mul_i32 s84, s80, 163840
        s_mul_i32 s85, {sCB0}, 20480
        s_add_u32 s84, s84, s85
        s_lshl_b32 s85, s81, 7
        s_add_u32 s84, s84, s85
        s_add_u32 s84, s84, {X0}
        s_lshl_b32 s85, s80, 12
        s_lshl_b32 s86, {sCB0}, 9
        s_add_u32 s85, s85, s86
        s_lshl_b32 s86, s81, 8
        s_add_u32 s85, s85, s86
        s_add_u32 s85, s85, {SS0}
        s_lshl_b32 s32, {sTB0}, 3
        s_add_u32 s32, s32, {sCB0}
        s_lshl_b32 s32, s32, 7
        s_cmp_ge_u32 {sR}, 20
        s_cbranch_scc1 {l7}""")
        self.col_twiddles()
        a(f"{l7}:")
        self.fstamp("0", 15)
        self.if_lo(l3)
        a("s_waitcnt lgkmcnt(0)\ns_barrier\ns_barrier")
        self.stamp(1)
        self.read_rows_frags()
        self.dual_setup(sCB0)
        self.ep_setup()
        self.x_store_setup()
        a("s_waitcnt lgkmcnt(0)\ns_barrier")
        self.fstamp("0", 16)
        a(f"v_and_b32 v18, 1, {vL}\nv_lshlrev_b32 v18, 7, v18\ns_movk_i32 s89, 128")
        self.gcore(FI, 10, True, False, False)
        self.fstamp("0", 17)
        self.ep_write(True)
        self.fstamp("0", 18)
        self.half_sync(1)
        self.fstamp("0", 19)
        self.x_store("s84")
        self.ss_store(sCB0, "s85")
        self.stamp(2)
        self.poll(SDBG, "v18", "0", 2, "s89")
        self.arrive(7, "s32")
        self.stamp(3)
        a(f"s_branch {l8}\n{l3}:")
        a(f"""s_cmp_lg_u32 {sWV}, 7
        s_cbranch_scc1 {l1}
        s_waitcnt vmcnt(3)
        {l1}:
        s_waitcnt vmcnt(4) lgkmcnt(0)
        s_barrier""")
        self.stamp(1)
        self.wf_setup2()
        self.wq_setup()
        a("s_barrier")
        self.wq_dma(0, 6)
        a("s_waitcnt vmcnt(6)")
        self.fstamp("0", 16)
        self.wf_stores()
        self.wq_dma(6, 20)
        self.fstamp("0", 17)
        self.job_wq_setup()
        a(f"v_lshlrev_b32 v18, 7, {vL}\ns_movk_i32 s89, 128")
        self.poll(SDBG, "v18", "0", 2, "s89")
        self.arrive(7, "s32")
        self.fstamp("0", 18)
        self.half_sync(2)
        self.stamp(2)
        self.job_wq()
        self.stamp(3)
        a(f"{l8}:")

    def job_wq_setup(self):
        a = self.a
        a(f"""v_bfe_u32 v5, {vL}, 2, 2
        v_lshl_add_u32 v6, {vG}, 3, v5
        v_lshlrev_b32 v6, 7, v6
        v_lshrrev_b32 v5, 1, v5
        v_and_b32 v7, 1, {vG}
        v_lshl_add_u32 v5, v7, 1, v5
        v_xor_b32 v5, {sWM}, v5
        v_lshl_add_u32 v6, v5, 5, v6
        v_and_b32 v5, 3, {vL}
        v_lshl_add_u32 v12, v5, 3, v6
        v_add_u32 v13, 0xa000, v12""")
        a(f"""s_lshl_b32 s72, {sTB0}, 6
        s_lshl_b32 s73, {sWM}, 4
        s_add_u32 s72, s72, s73
        v_add_u32 v5, s72, {vN}
        s_cmp_ge_u32 {sTB0}, 10
        s_cselect_b32 s74, 1, 0
        s_cmp_ge_u32 {sTB0}, 20
        s_cselect_b32 s74, 2, s74
        s_mul_i32 s73, s74, 640
        v_subrev_u32 v5, s73, v5
        v_mul_u32_u24 v6, 3277, v5
        v_lshrrev_b32 v6, 16, v6
        v_mul_u32_u24 v7, 20, v6
        v_sub_u32 v7, v5, v7
        v_lshrrev_b32 v8, 1, v6
        s_mov_b32 s73, 163840
        v_mul_lo_u32 v8, v8, s73
        v_and_b32 v6, 1, v6
        v_lshl_add_u32 v8, v6, 11, v8
        s_lshl_b32 s75, s74, 4
        v_add_u32 v9, s75, v7
        s_lshl_b32 s75, s74, 2
        s_add_u32 s75, s75, 48
        v_add_u32 v10, s75, v7
        v_cmp_gt_u32 vcc, 16, v7
        v_cndmask_b32 v9, v10, v9, vcc
        v_add_u32 v10, 72, v7
        s_cmp_eq_u32 s74, 2
        s_cselect_b64 vcc, -1, 0
        v_cndmask_b32 v9, v9, v10, vcc
        v_lshl_add_u32 v8, v9, 4, v8
        v_lshrrev_b32 v5, 1, {vG}
        v_lshl_add_u32 v8, v5, 9, v8
        v_and_b32 v5, 1, {vG}
        v_lshl_add_u32 v8, v5, 12, v8
        s_cmp_eq_u32 s74, 0
        s_cselect_b32 s75, {fbits(AMP*QS)}, s87
        s_mul_i32 s72, {sCB0}, 20480
        s_add_u32 s72, s72, {WQ}
        v_mov_b32 v10, s75""".replace("s_cmp_eq_u32 s74, 0", f"s_mov_b32 s87, {fbits(AMP)}\ns_cmp_eq_u32 s74, 0"))

    def job_wq(self):
        a = self.a
        end = a.lab("Lb")
        a(f"s_cmp_ge_u32 {sTB0}, 30\ns_cbranch_scc1 {end}")
        for ks in range(20):
            for i in range(2):
                reg, off = ("v12", ks * 4096) if ks < 10 else ("v13", (ks - 10) * 4096)
                a(f"ds_read_b64_tr_b16 {vr(GA+4*ks+2*i,2)}, {reg} offset:{XS+off+i*512}")
        self.gcore(FI, 10, True, True, False)
        for ct in range(5):
            lo, hi = GLO + 4 * ct, GHI + 4 * ct
            a(f"v_pk_add_f32 {vr(lo,2)}, {vr(lo,2)}, {vr(hi,2)}")
            a(f"v_pk_add_f32 {vr(lo+2,2)}, {vr(lo+2,2)}, {vr(hi+2,2)} neg_lo:[0,1] neg_hi:[0,1]")
            for h in range(2):
                a(f"v_pk_mul_f32 {vr(lo+2*h,2)}, {vr(lo+2*h,2)}, v[10:11] op_sel_hi:[1,0]")
        a(f"""s_cmp_eq_u32 {sCB0}, 0
        s_cselect_b32 s73, 16, 0
        v_cmp_le_u32 vcc, s73, {vL}
        v_mul_f32 v5, {fbits(1/math.sqrt(2))}, v{GLO}
        v_cndmask_b32 v{GLO}, v5, v{GLO}, vcc
        v_cndmask_b32 v{GLO+1}, 0, v{GLO+1}, vcc""")
        for ct in range(5):
            a(f"v_cvt_pk_bf16_f32 v{GB+2*ct}, v{GLO+4*ct}, v{GLO+4*ct+1}")
            a(f"v_cvt_pk_bf16_f32 v{GB+1+2*ct}, v{GLO+4*ct+2}, v{GLO+4*ct+3}")
        for p in range(3):
            a(f"v_permlane16_swap_b32 v{GB+4*p}, v{GB+2+4*p}")
            a(f"v_permlane16_swap_b32 v{GB+1+4*p}, v{GB+3+4*p}")
            if p == 2:
                a("s_mov_b32 exec_lo, 0xffff\ns_mov_b32 exec_hi, 0xffff")
            a(f"buffer_store_dwordx4 {vr(GB+4*p,4)}, v8, {WS}, s72 offen sc1")
            a("s_add_u32 s72, s72, 8192")
        a(f"s_mov_b64 exec, -1\n{end}:")

    def jobs_idle(self):
        a = self.a
        l0, l1, l2, l3, l4 = (a.lab("Lc") for _ in range(5))
        self.if_lo(l4)
        a(f"""s_sub_u32 s80, {sR}, 20
        s_lshl_b32 s80, s80, 3
        s_add_u32 s80, s80, {sX}
        s_lshl_b32 s80, s80, 2
        s_add_u32 s80, s80, {sWV}
        s_mov_b32 s77, {fbits(1/640)}
        {l3}:
        s_mul_i32 s81, s80, 656
        s_lshr_b32 s81, s81, 16
        s_mul_i32 s82, s81, 100
        s_sub_u32 s82, s80, s82
        s_mul_i32 s83, s82, 205
        s_lshr_b32 s83, s83, 10
        s_mul_i32 s84, s83, 5
        s_sub_u32 s84, s82, s84
        s_mul_i32 s81, s81, 80
        s_lshl_b32 s84, s84, 4
        s_add_u32 s81, s81, s84
        v_add_u32 v8, s81, {vN}
        s_mul_i32 s84, s83, 40
        s_sub_u32 s85, s83, 16
        s_mul_i32 s85, s85, 160
        s_add_u32 s85, s85, 16
        s_cmp_lt_u32 s83, 16
        s_cselect_b32 s84, s84, s85
        s_cselect_b32 s85, 8, 20
        s_cselect_b64 vcc, -1, 0
        v_lshrrev_b32 v5, 1, {vG}
        v_mul_u32_u24 v5, 20, v5
        v_and_b32 v6, 1, {vG}
        v_lshl_add_u32 v5, v6, 2, v5
        v_mul_u32_u24 v6, 40, {vG}
        v_cndmask_b32 v5, v6, v5, vcc
        v_mul_u32_u24 v5, 1280, v5
        v_lshl_add_u32 v5, v8, 1, v5
        s_mul_i32 s84, s84, 1280
        s_mul_i32 s85, s85, 1280
        s_add_u32 s85, s85, s84""")
        for e in range(8):
            a(f"buffer_load_ushort v{32+e}, v5, {SWO}, {'s84' if e < 4 else 's85'} offen offset:{1280*(e%4)}")
        a(f"""v_and_b32 v5, 1, {vG}
        v_lshrrev_b32 v6, 1, {vG}
        v_lshlrev_b32 v5, 3, v5
        v_lshl_add_u32 v5, v6, 2, v5
        s_lshl_b32 s84, s83, 4
        v_add_u32 v5, s84, v5
        v_cmp_ne_u32 vcc, 0, v5
        v_cndmask_b32 v12, 0x140, v5, vcc""")
        for e in range(1, 4):
            a(f"v_add_u32 v{12+e}, {e}, v5")
        for e in range(4):
            a(f"v_mul_u32_u24 v{12+e}, v{12+e}, v8")
            a(f"v_cvt_f32_u32 v{12+e}, v{12+e}")
            a(f"v_mul_f32 v{12+e}, s77, v{12+e}")
            a(f"v_fract_f32 v{12+e}, v{12+e}")
            a(f"v_cos_f32 v{16+2*e}, v{12+e}")
            a(f"v_sin_f32 v{17+2*e}, -v{12+e}")
        a(f"""v_mul_f32 v5, {fbits(1/math.sqrt(2))}, v16
        v_cndmask_b32 v16, v5, v16, vcc
        v_cndmask_b32 v17, {fbits(1/math.sqrt(2))}, v17, vcc""")
        for e in range(4):
            a(f"v_cvt_pk_bf16_f32 v{24+e}, v{16+2*e}, v{17+2*e}")
        a(f"""s_lshl_b32 s84, s80, 10
        s_add_u32 s85, s84, {FT}
        s_add_u32 s84, s84, {WOT}
        buffer_store_dwordx4 v[24:27], {vL16}, {WS}, s85 offen sc1
        s_waitcnt vmcnt(1)
        v_lshl_or_b32 v28, v33, 16, v32
        v_lshl_or_b32 v29, v35, 16, v34
        v_lshl_or_b32 v30, v37, 16, v36
        v_lshl_or_b32 v31, v39, 16, v38
        buffer_store_dwordx4 v[28:31], {vL16}, {WS}, s84 offen sc1
        s_add_u32 s80, s80, 384
        s_cmp_lt_u32 s80, 800
        s_waitcnt vmcnt(0)
        s_cbranch_scc1 {l3}""")
        a(f"{l4}:\ns_waitcnt vmcnt(0) lgkmcnt(0)\ns_barrier")
        a(f"s_add_u32 s72, s32, {F_WQ*FSTRIDE}")
        self.signal("s72")
        a(f"""s_sub_u32 s80, {sR}, 12
        s_cmp_ge_u32 {sR}, 24
        s_cselect_b32 s80, {sX}, s80
        s_cmp_ge_u32 s80, 10
        s_cbranch_scc1 {l0}
        s_lshl_b32 s81, s80, 1
        s_lshr_b32 s82, {sWV}, 2
        s_add_u32 s81, s81, s82
        s_and_b32 s82, {sWV}, 3
        s_lshl_b32 s83, s81, 1
        s_lshr_b32 s84, s82, 1
        s_add_u32 s83, s83, s84
        s_mul_i32 s83, s83, 20
        s_and_b32 s84, s82, 1
        s_lshl_b32 s84, s84, 2
        s_add_u32 s83, s83, s84
        s_sub_u32 s84, s81, 16
        s_lshl_b32 s84, s84, 3
        s_lshl_b32 s85, s82, 1
        s_add_u32 s84, s84, s85
        s_mul_i32 s84, s84, 20
        s_add_u32 s84, s84, 16
        s_cmp_lt_u32 s80, 8
        s_cselect_b32 s82, s83, s84
        s_cselect_b32 s83, 8, 20
        s_mul_i32 s82, s82, 1280
        s_mul_i32 s83, s83, 1280""")
        self.dma_rows(SWO, 1280, "s83", "s82", sWV)
        a("s_waitcnt vmcnt(0)\ns_barrier")
        self.if_lo(l1)
        self.read_rows_frags()
        self.dual_setup(sCB0)
        self.ep_setup()
        self.gcore(FI, 10, True, False, False)
        self.ep_write(True)
        a(f"{l1}:\ns_waitcnt lgkmcnt(0)\ns_barrier")
        a(f"""s_mul_i32 s81, {sCB0}, 102400
        s_mul_i32 s82, s80, 10240
        s_add_u32 s81, s81, s82
        s_add_u32 s81, s81, {WOH}
        v_mul_u32_u24 v5, 144, {vN}
        v_lshl_add_u32 v5, {vG}, 4, v5
        s_mov_b32 s82, {sWV}
        {l2}:
        s_cmp_ge_u32 s82, 5
        s_cselect_b32 s83, {64 - 5*16*144}, 0
        s_mul_i32 s84, s82, {16*144}
        s_add_u32 s83, s83, s84
        s_add_u32 s83, s83, {EP}
        v_add_u32 v6, s83, v5
        ds_read_b128 v[8:11], v6
        s_lshl_b32 s84, s82, 10
        s_add_u32 s84, s84, s81
        s_add_u32 s82, s82, 8
        s_cmp_lt_u32 s82, 10
        s_waitcnt lgkmcnt(0)
        buffer_store_dwordx4 v[8:11], {vL16}, {WS}, s84 offen sc1
        s_cbranch_scc1 {l2}
        {l0}:""")

    def unpack(self, dst, src, n):
        for i in range(n):
            self.a(f"v_lshlrev_b32 v{dst+2*i}, 16, v{src+i}")
            self.a(f"v_and_b32 v{dst+2*i+1}, 0xffff0000, v{src+i}")

    def cmul_pack(self, c, s):
        a = self.a
        for h in range(4):
            dr, di, tr, ti = (vr(x + 2 * h, 2) for x in (self.DR, self.DI, self.TR, self.TI))
            cc, ss = vr(c + 2 * h, 2), vr(s + 2 * h, 2)
            a(f"v_pk_mul_f32 {tr}, {dr}, {cc}")
            a(f"v_pk_mul_f32 {ti}, {di}, {cc}")
            a(f"v_pk_fma_f32 {tr}, {di}, {ss}, {tr} neg_lo:[1,0,0] neg_hi:[1,0,0]")
            a(f"v_pk_fma_f32 {ti}, {dr}, {ss}, {ti}")
        for h in range(4):
            a(f"v_cvt_pk_bf16_f32 v{self.BR+h}, v{self.TR+2*h}, v{self.TR+2*h+1}")
            a(f"v_cvt_pk_bf16_f32 v{self.BI+h}, v{self.TI+2*h}, v{self.TI+2*h+1}")

    def mm(self, d, x, y, first):
        self.a(f"v_mfma_f32_16x16x32_bf16 {vr(d,4)}, {vr(x,4)}, {vr(y,4)}, {'0' if first else vr(d,4)}")

    RS, ZS, EX = EP, 81920, 98304
    T1C, T1S, T2C, T2S = 20, 28, 36, 44
    C1, S1, N1, C2, S2, N2, S4E, C4O, S4O = 52, 56, 60, 64, 72, 80, 88, 96, 104
    WRAW, WR, WI = 112, 120, 128
    URAW, R0, R1, RS0, RS1, DR, DI, TR, TI, BR, BI, AF = 136, 144, 152, 160, 168, 176, 184, 192, 200, 208, 212, 216

    def col_tables(self, s_first, step):
        a = self.a
        lp = a.lab("Lk")
        a(f"""v_and_b32 v5, 31, {vL}
        v_lshrrev_b32 v6, 5, {vL}
        s_mov_b32 s74, {s_first}
        {lp}:
        v_lshl_add_u32 v7, v5, 1, v6
        s_lshl_b32 s72, s74, 3
        v_mul_u32_u24 v8, s72, v7
        s_lshl_b32 s72, s74, 5
        s_sub_u32 s72, s72, 127
        v_lshl_add_u32 v9, v6, 4, s72
        v_mul_u32_u24 v9, v9, v5
        v_lshlrev_b32 v10, 1, v5
        s_cmp_lt_u32 s74, 4
        s_cselect_b64 vcc, -1, 0
        v_cndmask_b32 v8, v9, v8, vcc
        v_cndmask_b32 v7, v10, v7, vcc
        v_cvt_f32_u32 v8, v8
        v_cvt_f32_u32 v7, v7
        v_mul_f32 v60, {fbits(1/64)}, v8
        v_mul_f32 v7, {fbits(1/64)}, v7
        s_lshl_b32 s73, s74, 10
        s_add_u32 s73, s73, {TB}""")
        for e in range(1, 8):
            a(f"v_add_f32 v{60+e}, v{59+e}, v7")
        for e in range(8):
            a(f"v_sin_f32 v{68+e}, v{60+e}")
            a(f"v_cos_f32 v{60+e}, v{60+e}")
        a(f"v_add_u32 v9, s73, {vL16}")
        for e in range(4):
            a(f"v_cvt_pk_bf16_f32 v{76+e}, v{60+2*e}, v{61+2*e}")
            a(f"v_cvt_pk_bf16_f32 v{80+e}, v{68+2*e}, v{69+2*e}")
        a(f"""s_add_u32 s74, s74, {step}
        s_cmp_lt_u32 s74, 6
        ds_write_b128 v9, v[76:79]
        ds_write_b128 v9, v[80:83] offset:6144
        s_cbranch_scc1 {lp}""")

    def col_twiddles(self):
        a = self.a
        a(f"""s_lshr_b32 s72, {sWM}, 1
        s_and_b32 s73, {sWM}, 1
        s_lshl_b32 s74, s73, 5
        s_add_u32 s74, s74, s72
        v_lshl_add_u32 v5, {vN}, 1, s74
        v_cvt_f32_u32 v5, v5
        v_mul_f32 v5, {fbits(1/2048)}, v5
        v_lshlrev_b32 v6, 3, {vG}
        v_cvt_f32_u32 v7, v6
        v_mul_f32 v{self.T1C}, v7, v5""")
        for e in range(1, 8):
            a(f"v_add_f32 v{self.T1C+e}, v{self.T1C+e-1}, v5")
        for e in range(8):
            a(f"v_sin_f32 v{self.T1S+e}, -v{self.T1C+e}")
            a(f"v_cos_f32 v{self.T1C+e}, v{self.T1C+e}")
        a(f"""v_add_u32 v6, s74, v6
        v_cvt_f32_u32 v6, v6
        v_lshrrev_b32 v7, 2, {vN}
        v_and_b32 v8, 3, {vN}
        v_lshl_add_u32 v8, v7, 3, v8
        v_cvt_f32_u32 v7, v8
        v_mul_f32 v9, {fbits(1/2048)}, v7
        v_add_f32 v10, {fbits(4/2048)}, v9""")
        for t in range(2):
            a(f"v_mul_f32 v{self.T2C+4*t}, v6, v{9+t}")
            a(f"v_add_f32 v{9+t}, v{9+t}, v{9+t}")
            for r in range(1, 4):
                a(f"v_add_f32 v{self.T2C+4*t+r}, v{self.T2C+4*t+r-1}, v{9+t}")
        for e in range(8):
            a(f"v_sin_f32 v{self.T2S+e}, v{self.T2C+e}")
            a(f"v_cos_f32 v{self.T2C+e}, v{self.T2C+e}")

    def col_wload(self):
        a = self.a
        a(f"buffer_load_dwordx4 {vr(self.WRAW,4)}, {vL16}, {WS}, s86 offen sc1")
        a(f"buffer_load_dwordx4 {vr(self.WRAW+4,4)}, {vL16}, {WS}, s86 offen offset:1024 sc1")

    def col_prepare(self):
        a = self.a
        l0 = a.lab("Lk")
        a(f"""s_lshr_b32 s72, {sWM}, 1
        s_and_b32 s73, {sWM}, 1
        s_lshl_b32 s74, {sWM}, 8
        s_add_u32 s74, s74, {TB}
        v_lshrrev_b32 v7, 2, {vN}
        v_and_b32 v8, 3, {vN}
        v_lshl_add_u32 v7, v7, 3, v8
        v_lshlrev_b32 v5, 10, {vG}
        v_lshl_add_u32 v6, {vN}, 4, v5
        v_add_u32 v6, s74, v6
        v_lshl_add_u32 v5, v7, 4, v5
        v_add_u32 v5, {TB}, v5
        v_lshlrev_b32 v9, 9, {vG}
        v_lshl_add_u32 v9, v7, 4, v9
        v_add_u32 v9, {TB+4096}, v9
        ds_read_b128 {vr(self.S1,4)}, v6 offset:6144""")
        for t in range(2):
            a(f"ds_read_b128 {vr(self.S2+4*t,4)}, v5 offset:{6144+64*t}")
            a(f"ds_read_b128 {vr(self.S4O+4*t,4)}, v9 offset:{6144+64*t}")
        a(f"ds_read_b128 {vr(self.C1,4)}, v6")
        for t in range(2):
            a(f"ds_read_b128 {vr(self.C2+4*t,4)}, v5 offset:{64*t}")
            a(f"ds_read_b128 {vr(self.C4O+4*t,4)}, v9 offset:{64*t}")
        a(f"""s_mul_i32 s33, {sX}, 20
        s_add_u32 s33, s33, {sR}
        s_lshl_b32 s80, s33, 1
        s_add_u32 s80, s80, {sHI}
        s_lshl_b32 s82, s80, 1
        s_add_u32 s82, s82, s73
        s_lshl_b32 s83, s82, 8
        s_mul_i32 s84, s72, {8*163840}
        s_add_u32 s83, s83, s84
        s_add_u32 s84, s83, {sXA}
        s_add_u32 s85, s84, {4*163840}
        s_lshl_b32 s86, s80, 13
        s_lshl_b32 s74, {sWM}, 11
        s_add_u32 s86, s86, s74
        s_add_u32 s86, s86, {WF}
        s_cmp_eq_u32 {sLAYER}, 0
        s_cbranch_scc1 {l0}""")
        self.col_wload()
        a(f"""{l0}:
        s_mov_b32 s74, 163840
        v_mul_lo_u32 v11, {vG}, s74
        v_lshl_add_u32 v11, {vN}, 4, v11
        v_lshrrev_b32 v5, 5, {vTID}
        v_and_b32 v6, 31, {vTID}
        v_lshlrev_b32 v6, 4, v6
        v_lshl_add_u32 v16, v5, 12, v6
        v_lshlrev_b32 v12, 4, {vTID}
        v_add_u32 v12, {self.RS}, v12
        s_lshl_b32 s74, s72, 12
        s_add_u32 s74, s74, {self.RS}
        v_lshlrev_b32 v13, 9, {vG}
        v_lshl_add_u32 v13, {vN}, 5, v13
        v_add_u32 v13, s74, v13
        s_lshl_b32 s75, {sHI}, 13
        s_lshl_b32 s74, s73, 11
        s_add_u32 s74, s74, s75
        s_lshl_b32 s76, s72, 7
        s_add_u32 s74, s74, s76
        s_add_u32 s74, s74, {self.ZS}
        v_bfe_u32 v5, {vN}, 2, 1
        v_lshlrev_b32 v5, 10, v5
        v_lshl_add_u32 v5, {vG}, 8, v5
        v_lshrrev_b32 v6, 3, {vN}
        v_lshl_add_u32 v5, v6, 6, v5
        v_lshl_add_u32 v5, v8, 4, v5
        v_add_u32 v14, s74, v5
        s_lshl_b32 s74, s72, 12
        s_add_u32 s74, s74, s75
        s_add_u32 s74, s74, {self.ZS}
        v_add_u32 v15, s74, {vL16}
        s_lshl_b32 s76, s73, 9
        s_add_u32 s74, s74, s76
        v_lshlrev_b32 v5, 10, v6
        v_lshl_add_u32 v5, v8, 4, v5
        v_bfe_u32 v6, {vN}, 2, 1
        v_lshl_add_u32 v5, v6, 7, v5
        v_lshrrev_b32 v6, 1, {vG}
        v_lshl_add_u32 v5, v6, 8, v5
        v_and_b32 v6, 1, {vG}
        v_lshl_add_u32 v5, v6, 3, v5
        v_add_u32 v8, s74, v5
        s_lshl_b32 s74, s72, 10
        s_add_u32 s74, s74, s75
        s_lshl_b32 s76, s73, 11
        s_add_u32 s74, s74, s76
        s_add_u32 s74, s74, {self.EX}
        v_add_u32 v9, s74, {vL16}
        v_xor_b32 v10, 0x800, v9
        s_lshl_b32 s74, {sWV}, 5
        v_add_u32 v5, s74, {vL}
        s_lshl_b32 s74, s72, 7
        s_add_u32 s74, s74, {sX}
        v_lshl_add_u32 v6, {vN}, 3, s74
        v_cmp_gt_u32 vcc, 32, {vL}
        v_cndmask_b32 v5, v6, v5, vcc
        v_lshlrev_b32 v17, 7, v5
        v_writelane_b32 v17, s32, 48
        s_mov_b32 s76, {fbits(1/640)}
        v_mov_b32 v18, {fbits(1e-5)}
        s_cmp_eq_u32 s73, 0
        s_cselect_b32 s75, 0x80008000, 0
        s_mov_b32 s74, 0x80008000
        s_mov_b32 s87, {fbits(1/2048)}
        s_waitcnt lgkmcnt(5)""")
        for i in range(4):
            a(f"v_xor_b32 v{self.N1+i}, s74, v{self.S1+i}")
        for i in range(8):
            a(f"v_xor_b32 v{self.N2+i}, s74, v{self.S2+i}")
            a(f"v_xor_b32 v{self.S4E+i}, s75, v{self.S2+i}")
            a(f"v_xor_b32 v{self.S4O+i}, s75, v{self.S4O+i}")

    def col_main(self):
        a = self.a
        nz, l1 = a.lab("Lnz"), a.lab("Lk")
        EXO = self.EX - self.ZS
        self.poll(WS, "v17", sFL, 49)
        self.stamp(4)
        for cb in range(8):
            a(f"buffer_load_dwordx4 {vr(self.TR+4*cb,4)}, v16, {WS}, {sSS} offen offset:{512*cb} sc1")
        a(f"""buffer_load_dwordx4 {vr(self.URAW,4)}, v11, {WS}, s84 offen sc1
        buffer_load_dwordx4 {vr(self.URAW+4,4)}, v11, {WS}, s85 offen sc1
        s_add_u32 s84, s83, {sXB}
        s_add_u32 s85, s84, {4*163840}""")
        T = self.TR
        for k in range(1, 8):
            a(f"s_waitcnt vmcnt({9-k})")
            for i in range(0, 4, 2):
                a(f"v_pk_add_f32 {vr(T+i,2)}, {vr(T+i,2)}, {vr(T+4*k+i,2)}")
        for i in range(4):
            a(f"v_fma_f32 v{T+i}, v{T+i}, s76, v18")
        for i in range(4):
            a(f"v_rsq_f32 v{T+i}, v{T+i}")
        self.fstamp("c", 0)
        a(f"s_nop 0\nds_write_b128 v12, {vr(T,4)}\ns_waitcnt lgkmcnt(0)\ns_barrier")
        self.fstamp("c", 1)
        for i in range(4):
            a(f"ds_read_b128 {vr(self.RS0+4*i,4)}, v13 offset:{(i//2)*2048+(i%2)*16}")
        a(f"s_waitcnt vmcnt(0)\ns_cmp_lg_u32 {sLAYER}, 0\ns_cbranch_scc1 {l1}")
        self.col_wload()
        a(f"s_add_u32 s72, s32, {F_WQ*FSTRIDE}")
        self.signal("s72")
        a(f"{l1}:")
        self.unpack(self.R0, self.URAW, 8)
        a(f"""s_cmp_lg_u32 s82, 1
        s_waitcnt lgkmcnt(0)
        s_cbranch_scc1 {nz}
        s_mov_b32 s87, 0""")
        for i in range(16):
            a(f"v_mov_b32 v{self.RS0+i}, 0")
        a(f"{nz}:")
        for h in range(4):
            p, r0, r1, x1 = vr(self.DR + 2 * h, 2), vr(self.RS0 + 2 * h, 2), vr(self.RS1 + 2 * h, 2), vr(self.R1 + 2 * h, 2)
            a(f"v_pk_mul_f32 {p}, {vr(self.R0+2*h,2)}, {r0}")
            a(f"v_pk_fma_f32 {vr(self.TR+2*h,2)}, {x1}, {r1}, {p}")
            a(f"v_pk_fma_f32 {vr(self.TI+2*h,2)}, {x1}, {r1}, {p} neg_lo:[1,0,0] neg_hi:[1,0,0]")
        for h in range(4):
            a(f"v_cvt_pk_bf16_f32 v{self.BR+h}, v{self.TR+2*h}, v{self.TR+2*h+1}")
        a(f"ds_write_b128 v14, {vr(self.BR,4)}")
        for h in range(4):
            a(f"v_cvt_pk_bf16_f32 v{self.BI+h}, v{self.TI+2*h}, v{self.TI+2*h+1}")
        a(f"ds_write_b128 v14, {vr(self.BI,4)} offset:4096\ns_waitcnt lgkmcnt(0)\ns_barrier")
        AF, DR, DI, BR, BI = self.AF, self.DR, self.DI, self.BR, self.BI
        self.fstamp("c", 2)
        for i in range(4):
            a(f"ds_read_b128 {vr(AF+4*i,4)}, v15 offset:{1024*i}")
        a("s_waitcnt lgkmcnt(2)")
        for t in range(2):
            self.mm(DR + 4 * t, AF + 4 * t, self.C1, True)
            self.mm(DI + 4 * t, AF + 4 * t, self.N1, True)
        a("s_waitcnt lgkmcnt(0)")
        for t in range(2):
            self.mm(DR + 4 * t, AF + 8 + 4 * t, self.S1, False)
            self.mm(DI + 4 * t, AF + 8 + 4 * t, self.C1, False)
        self.cmul_pack(self.T1C, self.T1S)
        for t in range(2):
            self.mm(DR + 4 * t, self.C2 + 4 * t, BR, True)
            self.mm(DI + 4 * t, self.N2 + 4 * t, BR, True)
        for t in range(2):
            self.mm(DR + 4 * t, self.S2 + 4 * t, BI, False)
            self.mm(DI + 4 * t, self.C2 + 4 * t, BI, False)
        a("s_waitcnt vmcnt(0)")
        self.fstamp("c", 3)
        self.unpack(self.WR, self.WRAW, 8)
        self.cmul_pack(self.WR, self.WI)
        for t in range(2):
            self.mm(DR + 4 * t, BR, self.C2 + 4 * t, True)
            self.mm(DI + 4 * t, BR, self.S2 + 4 * t, True)
        for t in range(2):
            self.mm(DR + 4 * t, BI, self.N2 + 4 * t, False)
            self.mm(DI + 4 * t, BI, self.C2 + 4 * t, False)
        self.cmul_pack(self.T2C, self.T2S)
        for t in range(2):
            a(f"ds_write_b64 v8, {vr(BR+2*t,2)} offset:{EXO+64*t}")
            a(f"ds_write_b64 v8, {vr(BI+2*t,2)} offset:{EXO+2048+64*t}")
        self.fstamp("c", 14)
        a("s_waitcnt lgkmcnt(0)\ns_barrier")
        self.fstamp("c", 15)
        for p in range(2):
            a(f"ds_read_b128 {vr(AF+8*p,4)}, v9 offset:{4096*p}")
        for p in range(2):
            a(f"ds_read_b128 {vr(AF+8*p+4,4)}, v10 offset:{4096*p}")
        a("v_mov_b32 v6, s87\ns_waitcnt lgkmcnt(2)")
        for t in range(2):
            self.mm(DR + 4 * t, self.C2 + 4 * t, AF, True)
            self.mm(DI + 4 * t, self.C4O + 4 * t, AF + 8, True)
        a("s_waitcnt lgkmcnt(0)")
        for t in range(2):
            self.mm(DR + 4 * t, self.S4E + 4 * t, AF + 4, False)
            self.mm(DI + 4 * t, self.S4O + 4 * t, AF + 12, False)
        for neg, t, r, b, so in (("", self.TR, self.R0, BR, "s84"), (" neg_lo:[0,1] neg_hi:[0,1]", self.TI, self.R1, BI, "s85")):
            for h in range(4):
                x = vr(t + 2 * h, 2)
                a(f"v_pk_add_f32 {x}, {vr(DR+2*h,2)}, {vr(DI+2*h,2)}{neg}")
                a(f"v_pk_fma_f32 {x}, {x}, v[6:7], {vr(r+2*h,2)} op_sel_hi:[1,0,1]")
            for h in range(4):
                a(f"v_cvt_pk_bf16_f32 v{b+h}, v{t+2*h}, v{t+2*h+1}")
            a(f"buffer_store_dwordx4 {vr(b,4)}, v11, {WS}, {so} offen sc1")

    XR = 81920
    NREG = 216
    QH, NRM, DEC, SSP, VSCR = 102400, 112640, 112768, 114688, 143360
    QACC, QF, QAD = 60, 144, 192

    def h_dma(self, voff, s_lds, s_src, q):
        a = self.a
        a(f"s_add_u32 m0, {s_lds}, {(q%5)*16384}")
        a(f"s_add_u32 s83, {s_src}, {q*16384}")
        for i in range(4):
            a(f"buffer_load_dwordx4 {voff}, {WS}, s83 offen offset:{1024*i} sc1 lds")

    def qkv_helper(self):
        a = self.a
        XR = self.XR
        a(f"""s_lshl_b32 s78, {sWM}, 12
        s_mul_i32 s79, {sG}, 163840
        s_add_u32 s79, s79, {WQ}
        s_add_u32 s79, s79, s78""")
        for q in range(5):
            self.h_dma(vL16, "s78", "s79", q)
        self.att_setup()
        a(f"""s_mul_i32 s80, {sT}, 163840
        s_add_u32 s80, s80, {sXB}
        s_add_u32 s80, s80, s78
        s_add_u32 s81, s78, {XR}
        s_mul_i32 s82, {sCB}, 102400
        s_add_u32 s82, s82, {FT}
        s_add_u32 s82, s82, s78
        s_and_b32 s74, {sWM}, 1
        s_lshl_b32 s74, s74, 1
        v_lshlrev_b32 v5, 2, {vG}
        v_xor_b32 v5, s74, v5
        v_xor_b32 v5, v5, {vL}
        v_lshlrev_b32 v8, 4, v5
        v_bfe_u32 v5, {vL}, 2, 2
        v_and_b32 v7, 1, {vG}
        v_lshrrev_b32 v6, 1, {vG}
        v_lshl_add_u32 v6, v6, 3, v5
        v_lshlrev_b32 v6, 8, v6
        v_lshl_add_u32 v6, v7, 12, v6
        s_lshl_b32 s74, {sHALF}, 2
        s_add_u32 s74, s74, {sWM}
        v_lshlrev_b32 v5, 1, v5
        v_xor_b32 v5, v5, v7
        v_xor_b32 v5, s74, v5
        v_lshl_add_u32 v6, v5, 5, v6
        v_and_b32 v7, 3, {vL}
        v_lshl_add_u32 v6, v7, 3, v6
        v_add_u32 v10, {XR}, v6
        v_add_u32 v11, 0xa000, v10
        s_cmp_eq_u32 {sG}, 0
        s_cselect_b32 s74, 1, 99
        v_cmp_ne_u32 s[6:7], s74, {vG}
        v_lshrrev_b32 v5, 2, {vL}
        v_lshl_add_u32 v5, v5, 4, v7
        s_lshl_b32 s74, {sWM}, 2
        v_add_u32 v5, s74, v5
        s_mul_i32 s74, {sG}, 10
        s_sub_u32 s74, s74, 40
        v_add_u32 v6, s74, {vL}
        v_cmp_gt_u32 vcc, 40, {vL}
        v_cndmask_b32 v5, v6, v5, vcc
        v_lshlrev_b32 v5, 7, v5
        s_lshl_b32 s15, {sLAYER}, 17
        s_lshl_b32 s74, {sT}, 13
        s_add_u32 s15, s15, s74
        s_add_u32 s15, s15, {SQ0}
        s_mul_i32 s16, {sG}, 10240
        s_add_u32 s16, s16, s80
        s_mov_b32 s17, 0xffff0000
        v_lshlrev_b32 v9, 5, {vN}
        v_lshl_add_u32 v9, {vG}, 3, v9
        s_add_u32 s74, {sFL}, {F_COL*FSTRIDE}""")
        self.poll(WS, "v5", "s74", 50)
        self.stamp(6)
        ACC, RAW, UN = 140, 60, 100
        l = a.lab("Lh")
        self.h_dma("v8", "s81", "s80", 0)
        a(f"s_cmp_lg_u32 {sWM}, 0\ns_cbranch_scc1 {l}")
        for i in range(10):
            a(f"buffer_load_dwordx4 {vr(RAW+4*i,4)}, {vL16}, {WS}, s16 offen offset:{1024*(i%4)} sc1")
            if i % 4 == 3:
                a("s_add_u32 s16, s16, 4096")
        a(f"{l}:")
        for q in range(1, 5):
            self.h_dma("v8", "s81", "s80", q)
        for q in range(10):
            allow = 4 * (4 - q) + 8 * max(0, q + 2 - 4) if q <= 4 else 8 * (min(q + 2, 9) - q)
            a(f"s_waitcnt vmcnt({allow}) lgkmcnt(0)\ns_barrier")
            if q < 2:
                l = a.lab("Lh")
                a(f"s_cmp_lg_u32 {sWM}, 0\ns_cbranch_scc1 {l}")
                for i in range(5 * q, 5 * q + 5):
                    if i == 0:
                        for r in range(4):
                            a(f"v_cndmask_b32 v{RAW+r}, 0, v{RAW+r}, s[6:7]")
                    for r in range(4):
                        a(f"v_lshlrev_b32 v{UN+2*r}, 16, v{RAW+4*i+r}\nv_and_b32 v{UN+2*r+1}, s17, v{RAW+4*i+r}")
                    for h in range(8):
                        a(f"{'v_mul_f32' if i == 0 else 'v_fmac_f32'} v{ACC+h}, v{UN+h}, v{UN+h}")
                a(f"{l}:")
            if q == 2:
                l = a.lab("Lh")
                a(f"s_cmp_lg_u32 {sWM}, 0\ns_cbranch_scc1 {l}")
                for i in range(4):
                    a(f"v_permlane32_swap_b32 v{ACC+i}, v{ACC+4+i}")
                for i in range(4):
                    a(f"v_add_f32 v{ACC+i}, v{ACC+i}, v{ACC+4+i}")
                a(f"s_lshl_b32 s74, {sG}, 9\ns_add_u32 s74, s74, s15")
                for i in range(2):
                    a(f"v_permlane16_swap_b32 v{ACC+i}, v{ACC+2+i}")
                for i in range(2):
                    a(f"v_add_f32 v{ACC+i}, v{ACC+i}, v{ACC+2+i}")
                for i in range(2):
                    a(f"v_or_b32 v{ACC+i}, 1, v{ACC+i}")
                a(f"buffer_store_dwordx2 {vr(ACC,2)}, v9, {WS}, s74 offen sc1\n{l}:")
            if 2 <= q <= 6:
                self.h_dma("v8", "s81", "s80", q + 3)
                self.h_dma(vL16, "s78", "s79", q + 3)
            l = a.lab("Lh")
            a(f"s_cmp_eq_u32 {sLAYER}, 0\ns_cbranch_scc1 {l}")
            for j in range(2):
                kk = (4 * q + 2 * j) % 20
                for i in range(2):
                    a(f"ds_read_b64_tr_b16 {vr(GA+4*(2*q+j)+2*i,2)}, v{10+kk//10} offset:{(kk%10)*4096+1024*i}")
            if q in (7, 8):
                self.h_dma(vL16, "s78", "s82", q - 7)
            a(f"{l}:")
            if q == 8:
                a(f"s_lshl_b32 s74, {sWM}, 11\ns_add_u32 s15, s15, s74\ns_mov_b32 s88, {SPIN}")
                for i in range(2):
                    a(f"buffer_load_dwordx4 {vr(RAW+4*i,4)}, {vL16}, {WS}, s15 offen offset:{1024*i} sc1")
        lp, dn = a.lab("Lh"), a.lab("Lh")
        a(f"""{lp}:
        v_min3_u32 v5, v{RAW}, v{RAW+1}, v{RAW+2}
        v_min3_u32 v5, v5, v{RAW+3}, v{RAW+4}
        v_min3_u32 v5, v5, v{RAW+5}, v{RAW+6}
        v_min_u32 v5, v5, v{RAW+7}
        v_cmp_eq_u32 vcc, 0, v5
        s_cbranch_vccz {dn}""")
        for i in range(2):
            a(f"buffer_load_dwordx4 {vr(RAW+4*i,4)}, {vL16}, {WS}, s15 offen offset:{1024*i} sc1")
        a(f"""s_sub_u32 s88, s88, 1
        s_waitcnt vmcnt(0)
        s_cbranch_scc0 {lp}
        {dn}:""")
        for i in range(4):
            a(f"v_add_f32 v{RAW+i}, v{RAW+i}, v{RAW+4+i}")
        a(f"""s_lshl_b32 s74, {sWM}, 9
        s_add_u32 s74, s74, {self.SSP}
        v_and_b32 v5, 31, {vL}
        v_lshrrev_b32 v6, 5, {vL}
        v_permlane32_swap_b32 v{RAW}, v{RAW+2}
        v_permlane32_swap_b32 v{RAW+1}, v{RAW+3}
        v_lshl_add_u32 v5, v5, 1, v6
        v_lshl_add_u32 v5, v5, 3, s74
        v_add_f32 v{RAW}, v{RAW}, v{RAW+2}
        v_add_f32 v{RAW+1}, v{RAW+1}, v{RAW+3}
        ds_write_b64 v5, {vr(RAW,2)}""")
        a("s_waitcnt lgkmcnt(0)\ns_barrier")
        l0, l1 = a.lab("Lh"), a.lab("Lh")
        a(f"s_cmp_eq_u32 {sLAYER}, 0\ns_cbranch_scc1 {l0}")
        for q in range(2, 6):
            a(f"s_add_u32 m0, s78, {q*16384}\ns_add_u32 s83, s82, {q*16384}")
            for i in range(4):
                a(f"buffer_load_dwordx4 {vL16}, {WS}, s83 offen offset:{1024*i} sc1 lds")
        a(f"""s_lshl_b32 s74, {sWM}, 10
        s_add_u32 m0, s74, 98304
        s_sub_u32 s83, s82, s78
        s_add_u32 s83, s83, m0
        buffer_load_dwordx4 {vL16}, {WS}, s83 offen sc1 lds
        s_branch {l1}
        {l0}:""")
        self.res_load()
        a(f"{l1}:")
        a(f"""s_mul_i32 s72, {sWM}, 2560
        s_add_u32 s72, s72, {self.QH}
        v_add_u32 v5, s72, {vL16}
        v_lshl_add_u32 v6, {vL}, 3, s72
        s_barrier
        ds_read_b128 {vr(AR.Q1,4)}, v5
        ds_read_b128 {vr(AR.Q1+4,4)}, v5 offset:1024
        ds_read_b64 v[6:7], v6 offset:2048
        s_waitcnt lgkmcnt(0)""")
        for j in range(4):
            a(f"v_mov_b32 v{AR.Q2+6*(j//2)+j%2}, v{6+j%2}")
        self.q2_spread()

    def q2_spread(self):
        for i in range(4):
            self.a(f"v_permlane32_swap_b32 v{AR.Q2+i}, v{AR.Q2+4+i}")

    def att_setup(self):
        a = self.a
        a(f"s_lshr_b32 s72, {sWM}, 1\ns_mul_i32 s84, s72, {A.HEADB}")
        A.setup_addr(a, vL, vL16, "s84", sHI, "s72", 5)
        a(f"""s_mul_i32 s85, {sWV}, 2560
        s_mul_i32 s86, {sG}, {16*A.CHUNK}
        s_add_u32 s86, s86, {sKV}
        s_add_u32 s86, s86, s85
        s_add_u32 s85, s85, {A.SLOT0}""")
        for i in range(2, 6):
            a(f"v_mov_b32 v{AR.Q2+i}, 0")
        for i in range(32):
            a(f"v_mov_b32 v{AR.O+i}, 0")

    def qkv_compute(self):
        a = self.a
        XR, AD = self.XR, self.QAD
        own = A.SLOT0 + A.slot_off(0)
        EA = AD + 10
        self.att_setup()
        a(f"""s_lshr_b32 s72, {sWM}, 1
        s_and_b32 s73, {sWM}, 1
        s_lshl_b32 s74, s72, 11
        v_add_u32 v{AD}, s74, {vL16}
        v_add_u32 v{AD+1}, 0xa000, v{AD}
        v_bfe_u32 v5, {vL}, 2, 2
        v_lshrrev_b32 v6, 5, {vL}
        v_lshl_add_u32 v6, v6, 3, v5
        v_mul_u32_u24 v{EA+1}, 48, v6
        v_lshlrev_b32 v6, 8, v6
        v_and_b32 v7, 3, {vL}
        v_lshl_add_u32 v6, v7, 3, v6
        s_lshl_b32 s74, s73, 1
        v_xor_b32 v7, s74, v5
        v_lshl_add_u32 v6, v7, 6, v6
        v_and_b32 v7, 1, {vG}
        v_lshl_add_u32 v6, v7, 5, v6
        v_add_u32 v{AD+2}, {XR}, v6""")
        for i in range(1, 4):
            a(f"v_xor_b32 v{AD+2+i}, {32*i}, v{AD+2}")
        for i in range(4):
            a(f"v_add_u32 v{AD+6+i}, 0xa000, v{AD+2+i}")
        a(f"""s_mul_i32 s75, {sWM}, 3072
        s_add_u32 s75, s75, {self.VSCR}
        v_and_b32 v5, 3, {vL}
        v_lshl_add_u32 v5, v7, 2, v5
        v_min_u32 v5, 4, v5
        v_and_b32 v6, 1, v5
        v_mul_u32_u24 v6, 24, v6
        v_lshrrev_b32 v5, 1, v5
        v_lshl_add_u32 v5, v5, 3, v6
        v_add3_u32 v{EA+1}, v{EA+1}, v5, s75
        v_and_b32 v5, 31, {vL}
        v_lshrrev_b32 v6, 5, {vL}
        v_lshl_add_u32 v7, v5, 1, v6
        v_mul_u32_u24 v7, 24, v7
        v_add_u32 v{EA}, s75, v7
        v_mul_u32_u24 v6, 20, v6
        v_add_lshl_u32 v{EA+2}, v6, v5, 4
        s_lshl_b32 s75, s73, 8
        s_add_u32 s75, s75, {self.SSP}
        v_lshl_add_u32 v{EA+3}, v5, 2, s75
        s_mul_i32 s76, s72, {A.HEADB}
        s_mul_i32 s77, s73, {2*A.TILE}
        s_add_u32 s77, s77, s76
        s_lshl_b32 s75, s73, 9
        s_add_u32 s76, s76, s75
        s_add_u32 s76, s76, {A.K2OFF}
        s_add_u32 s75, s77, {own}
        v_add_u32 v{EA+4}, s75, {vL16}
        v_add_u32 v{EA+5}, s75, v{EA+2}
        v_lshlrev_b32 v{EA+6}, 3, {vL}
        s_add_u32 s75, s76, {own}
        v_add_u32 v{EA+7}, s75, v{EA+6}
        s_lshl_b32 s75, {sG}, 4
        s_add_u32 s75, s75, {sT}
        s_mul_i32 s75, s75, {A.CHUNK}
        s_add_u32 s75, s75, {sKV}
        s_add_u32 s76, s76, s75
        s_add_u32 s77, s77, s75
        s_mul_i32 s75, {sWM}, 2560
        s_add_u32 s75, s75, {self.QH}
        v_add_u32 v{EA+8}, s75, {vL16}
        v_add_u32 v{EA+9}, s75, v{EA+6}
        s_mov_b32 s78, {fbits(1/640)}
        v_mov_b32 v{EA+10}, {fbits(1e-5)}
        s_lshl_b32 s75, {sWM}, 5
        s_add_u32 s75, s75, {self.NRM}
        v_lshl_add_u32 v{EA+11}, {vG}, 3, s75
        v_lshlrev_b32 v5, 3, {vN}
        v_add_u32 v{EA+12}, {self.NRM}, v5
        s_barrier""")
        self.stamp(6)

        def reads(k):
            kk, f = k % 20, self.QF + 16 * (k % 3)
            hi, off = kk // 10, (kk % 10) * 4096
            r = []
            for j in range(2):
                r.append(f"ds_read_b128 {vr(f+4*j,4)}, v{AD+hi} offset:{off+1024*j}")
                for i in range(2):
                    r.append(f"ds_read_b64_tr_b16 {vr(f+8+4*j+2*i,2)}, v{AD+2+4*hi+2*j+k%2} offset:{off+1024*i}")
            return r
        for r in reads(0) + reads(1):
            a(r)
        SSR = 8
        for k in range(40):
            a(f"s_waitcnt lgkmcnt({6 if k < 39 else 0})")
            rr = reads(k + 2) if k + 2 < 40 else []
            if k == 39:
                rr = [f"ds_read_b32 v{SSR+4*nt+w}, v{EA+3} offset:{512*w+128*nt}" for nt in range(2) for w in range(4)]
            f = self.QF + 16 * (k % 3)
            per = (2, 2, 1, 1) if k < 39 else (4, 4, 0, 0)
            for j, (mt, nt) in enumerate(((0, 0), (1, 0), (1, 1), (0, 1))):
                d = vr(self.QACC + 32 * nt + 16 * mt, 16)
                a(f"v_mfma_f32_32x32x16_bf16 {d}, {vr(f+4*mt,4)}, {vr(f+8+4*nt,4)}, {'0' if k == 0 else d}")
                if j == 0 and (k == 39 or ((k + 2) % 4 == 0 and k + 2 < 40)):
                    a("s_barrier")
                for _ in range(per[j]):
                    if rr:
                        a(rr.pop(0))
        self.stamp(7)
        KR, K2R, VR, Q2T, VT, RSD, N, W = 144, 152, 154, 166, 168, 220, self.NREG, 224
        a("s_waitcnt lgkmcnt(0)")
        for nt in range(2):
            s = SSR + 4 * nt
            a(f"v_pk_add_f32 {vr(s,2)}, {vr(s,2)}, {vr(s+2,2)}")
        for nt in range(2):
            a(f"v_add_f32 v{SSR+4*nt}, v{SSR+4*nt}, v{SSR+4*nt+1}")
        for nt in range(2):
            a(f"v_fma_f32 v{RSD+2*nt}, v{SSR+4*nt}, s78, v{EA+10}")
        for nt in range(2):
            a(f"v_rsq_f32 v{RSD+2*nt}, v{RSD+2*nt}")

        def sc(dst, src, n, nt):
            for h in range(n):
                r = vr(src + 2 * h, 2)
                a(f"v_pk_mul_f32 {r}, {r}, {vr(RSD+2*nt,2)} op_sel_hi:[1,0]")
            for h in range(n):
                a(f"v_cvt_pk_bf16_f32 v{dst+h}, v{src+2*h}, v{src+2*h+1}")

        def sq(acc, srcs):
            for j, r in enumerate(srcs):
                if j == 0:
                    a(f"v_pk_mul_f32 {vr(acc,2)}, {vr(r,2)}, {vr(r,2)}")
                else:
                    a(f"v_pk_fma_f32 {vr(acc,2)}, {vr(r,2)}, {vr(r,2)}, {vr(acc,2)}")
        PB = [self.QACC + 32 * nt for nt in range(2)]
        for nt in range(2):
            sc(VR + 6 * nt, PB[nt] + 20, 6, nt)
            for i in range(3):
                a(f"ds_write_b64 v{EA}, {vr(VR+6*nt+2*i,2)} offset:{8*i+1536*nt}")
            for i in range(4):
                a(f"ds_read_b64_tr_b16 {vr(VT+8*nt+2*i,2)}, v{EA+1} offset:{(i//2)*768+(i%2)*192+1536*nt}")
        for nt in range(2):
            sc(KR + 4 * nt, PB[nt] + 8, 4, nt)
            a(f"buffer_store_dwordx4 {vr(KR+4*nt,4)}, {vL16}, {WS}, s77 offen offset:{A.TILE*nt} sc1")
            sc((Q2T, K2R)[nt], PB[nt] + 16, 2, nt)
        for i in range(2):
            a(f"v_permlane32_swap_b32 v{Q2T+i}, v{K2R+i}")
        a(f"""buffer_store_dwordx2 {vr(K2R,2)}, v{EA+6}, {WS}, s76 offen sc1
        s_mov_b64 exec, {A.VMASK}
        s_waitcnt lgkmcnt(0)""")
        for nt in range(2):
            for i in range(2):
                a(f"buffer_store_dwordx4 {vr(VT+8*nt+4*i,4)}, v{EA+2}, {WS}, s77 offen offset:{A.TILE*nt+1024+A.VFR*i} sc1")
        for nt in range(2):
            for i in range(2):
                a(f"ds_write_b128 v{EA+5}, {vr(VT+8*nt+4*i,4)} offset:{A.TILE*nt+1024+A.VFR*i}")
        a("s_mov_b64 exec, -1")
        for nt in range(2):
            sc(AR.Q1 + 4 * nt, PB[nt], 4, nt)
            a(f"ds_write_b128 v{EA+4}, {vr(KR+4*nt,4)} offset:{A.TILE*nt}")
            a(f"ds_write_b128 v{EA+8}, {vr(AR.Q1+4*nt,4)} offset:{1024*nt}")
        a(f"ds_write_b64 v{EA+7}, {vr(K2R,2)}")
        a(f"ds_write_b64 v{EA+9}, {vr(Q2T,2)} offset:2048")
        for nt in range(2):
            sq(W + 4 * nt, [PB[nt] + 2 * h for h in (0, 1, 2, 3)])
            sq(W + 4 * nt + 2, [PB[nt] + 2 * h for h in (4, 5, 6, 7)])
        for half, ex in enumerate(("exec_hi", "exec_lo")):
            a(f"s_mov_b32 {ex}, 0")
            for nt in range(2):
                for h in (8, 9):
                    r, c = vr(PB[nt] + 2 * h, 2), vr(W + 4 * nt + 2 * half, 2)
                    a(f"v_pk_fma_f32 {c}, {r}, {r}, {c}")
            a(f"s_mov_b32 {ex}, -1")
        for j in range(4):
            a(f"v_add_f32 v{N+j}, v{W+2*j}, v{W+2*j+1}")
        a(f"v_max3_f32 v{W}, abs(v{PB[0]+20}), abs(v{PB[0]+21}), abs(v{PB[1]+20})")
        rest = [PB[1] + 21] + [PB[nt] + h for nt in range(2) for h in range(22, 28)]
        rest.append(rest[-1])
        for j in range(0, len(rest), 2):
            a(f"v_max3_f32 v{W}, v{W}, abs(v{rest[j]}), abs(v{rest[j+1]})")
        a(f"v_permlane32_swap_b32 v{N}, v{N+2}\nv_permlane32_swap_b32 v{N+1}, v{N+3}\ns_mov_b32 exec_hi, 0")
        for nt in range(2):
            for h in (28, 30):
                a(f"v_max3_f32 v{W}, v{W}, abs(v{PB[nt]+h}), abs(v{PB[nt]+h+1})")
        a(f"""s_mov_b32 exec_hi, -1
        v_pk_add_f32 {vr(N,2)}, {vr(N,2)}, {vr(N+2,2)}
        v_cmp_gt_f32 vcc, {fbits(2.0**50)}, v{W}
        v_cndmask_b32 v{N+1}, 0x7f800000, v{N+1}, vcc""")
        for j, sh in enumerate((8, 4, 2, 1)):
            a(f"v_mov_b32 v{AR.Q2+6*(j//2)+j%2}, v{Q2T+j%2}")
            for r in (N, N + 1):
                a(f"v_max_u32 v{r}, v{r}, v{r} row_ror:{sh} row_mask:0xf bank_mask:0xf")
        a(f"""s_mov_b32 exec_lo, 0x10001
        s_mov_b32 exec_hi, 0x10001
        ds_write_b64 v{EA+11}, {vr(N,2)}
        s_mov_b64 exec, -1""")
        self.q2_spread()
        a(f"""s_waitcnt lgkmcnt(0)
        s_barrier
        ds_read_b64 {vr(N,2)}, v{EA+12}""")

    def kv_dma(self):
        return [f"buffer_load_dwordx4 {vL16}, {WS}, s81 offen sc1 lds",
                f"buffer_load_dwordx4 {vL16}, {WS}, s81 offen offset:1024 sc1 lds",
                "s_mov_b32 exec_hi, 0",
                f"buffer_load_dwordx4 {vL16}, {WS}, s81 offen offset:2048 sc1 lds",
                "s_mov_b32 exec_hi, -1"]

    def att_dma(self, c):
        a = self.a
        a(f"s_mul_i32 s81, s80, {A.CHUNK}\ns_add_u32 m0, s85, {A.slot_off(c)}\ns_add_u32 s81, s81, s86")
        for x in self.kv_dma():
            a(x)
        a("s_add_u32 s80, s80, 1\ns_and_b32 s80, s80, 15")

    def att_slow(self):
        a = self.a
        M = 140
        for i in range(32):
            a(f"v_mov_b32 v{AR.O+i}, 0")
        a(f"v_mov_b32 v{M}, 0xff800000\nv_mov_b32 v{M+1}, 0xff800000\ns_waitcnt vmcnt(0)")
        for ps in range(2):
            lp = a.lab("Lsl")
            a(f"s_mov_b32 s80, 0\n{lp}:\ns_barrier")
            self.att_dma(0)
            a("s_waitcnt vmcnt(0)\ns_barrier")
            for n in range(4):
                if n % 2 == 0:
                    for r in A.rd_k(n // 2) + (A.rd_v(n // 2) if ps else []):
                        a(r)
                    a("s_waitcnt lgkmcnt(0)")
                a(A.qk1(n))
                a(A.qk2(n))
                s = AR.S + 16 * (n % 3)
                if ps == 0:
                    for i in range(8):
                        a(f"v_max3_f32 v{M+n%2}, v{M+n%2}, v{s+2*i}, v{s+2*i+1}")
                else:
                    for i in range(16):
                        a(f"v_sub_f32 v{s+i}, v{s+i}, v{M+n%2}")
                    for i in range(16):
                        a(A.ex(n, i))
                    a(A.pv(n, 0))
                    a(A.pv(n, 1))
            a(f"s_cmp_lg_u32 s80, 0\ns_cbranch_scc1 {lp}")
            if ps == 0:
                off = A.SLOT0 + A.slot_off(1)
                a(f"""v_lshlrev_b32 v5, 3, {vTID}
                v_xor_b32 v6, 0x800, v5
                v_add_u32 v5, {off}, v5
                v_add_u32 v6, {off}, v6
                ds_write_b64 v5, {vr(M,2)}
                s_waitcnt lgkmcnt(0)
                s_barrier
                ds_read_b64 {vr(M+2,2)}, v6
                s_waitcnt lgkmcnt(0)""")
                for q in range(2):
                    a(f"""v_max_f32 v{M+q}, v{M+q}, v{M+2+q}
                    v_mov_b32 v5, v{M+q}
                    v_permlane32_swap_b32 v5, v{M+q}
                    v_max_f32 v{M+q}, v5, v{M+q}""")
        for i in range(13):
            for x in self.img_piece(i):
                a(x)

    def img_piece(self, i):
        r = []
        if i % 4 == 0:
            r += [f"s_add_u32 m0, s8, {1024*i}", f"s_add_u32 s10, s9, {1024*i}"]
        ld = f"buffer_load_dwordx4 {vL16}, {WS}, s10 offen offset:{1024*(i%4)} sc1 lds"
        return r + (["s_mov_b32 exec_hi, 0", ld, "s_mov_b32 exec_hi, -1"] if i == 12 else [ld])

    def attention(self):
        a = self.a
        N = self.NREG
        l0, l1, l2, l3, l4, l5, slow, done, loop = (a.lab("La") for _ in range(9))
        a(f"""s_lshl_b32 s11, {sG}, 11
        s_add_u32 s11, s11, {sFL}
        s_add_u32 s11, s11, {F_KV*FSTRIDE}
        s_lshl_b32 s12, {sT}, 7
        s_add_u32 s12, s12, s11
        s_mul_i32 s8, {sWV}, 12800
        s_mov_b32 s9, {WOT}
        s_cmp_eq_u32 {sLAYER}, 0
        s_cselect_b32 s9, {WOH}, s9
        s_mul_i32 s72, {sCB}, 102400
        s_add_u32 s9, s9, s72
        s_add_u32 s9, s9, s8""")
        self.stamp(8)
        a("s_setprio 0")
        A.start(a, 0)

        def publish():
            self.if_lo(l0)
            for sh in (8, 4, 2, 1):
                for r in (N, N + 1):
                    a(f"v_max_u32 v{r}, v{r}, v{r} row_ror:{sh} row_mask:0xf bank_mask:0xf")
            a(f"s_waitcnt vmcnt(0)\n{l0}:\ns_barrier")
            self.signal("s12", payload=f"v{N+1}")
        for n in range(4):
            A.iteration(a, n, 4, publish if n == self.pub else None, first=(n == 0))
        a(A.pv(3, 1))
        self.stamp(9)
        self.if_lo(l1)
        a(f"s_barrier\nv_lshlrev_b32 v5, 7, {vL}\ns_cmp_lg_u32 {sLAYER}, 0\ns_cbranch_scc1 {l2}")
        a(f"s_mul_i32 s72, {sWM}, {24*128}\ns_add_u32 s72, s72, {F_IMG*FSTRIDE}")
        self.poll(WS, "v5", "s72", 24)
        a(f"{l2}:")
        self.poll(WS, "v5", "s11", 16, wide=True)
        a(f"""s_mul_i32 s72, {sWM}, 2560
        s_add_u32 s73, s85, s72
        s_add_u32 s74, s86, s72
        s_movk_i32 s75, 2560""")
        for c in (1, 2):
            a(f"""s_add_u32 s80, {sT}, {c}
            s_and_b32 s80, s80, 15
            s_mul_i32 s81, s80, {A.CHUNK}
            s_add_u32 m0, s73, {A.slot_off(c)}
            s_add_u32 s81, s81, s74""")
            for i in range(4):
                a(f"buffer_load_dwordx4 {vL16}, {WS}, s81 offen offset:{1024*i} sc1 lds")
            a(f"s_add_u32 m0, m0, 4096\ns_add_u32 s81, s81, 4096")
            a(f"buffer_load_dwordx4 {vL16}, {WS}, s81 offen sc1 lds")
        a(f"""s_mov_b64 exec, 0xffff
        v_mul_f32 v7, v7, v{N}
        v_cmp_nge_f32 vcc, {fbits(3600.0)}, v7
        s_mov_b64 exec, -1
        v_mov_b32 v5, {A.SLOT0 + A.slot_off(0)}
        v_mov_b32 v6, vcc_lo
        v_mad_u32_u24 v5, {vL}, s75, v5
        s_mov_b64 exec, 0xff
        ds_write_b32 v5, v6
        s_mov_b64 exec, -1
        s_waitcnt vmcnt(5)
        s_branch {l3}
        {l1}:
        s_waitcnt vmcnt(0)
        s_barrier
        s_cmp_lg_u32 {sLAYER}, 0
        s_cbranch_scc1 {l4}""")
        self.unpack(GLO, GA, 10)
        a(f"s_branch {l3}\n{l4}:")
        self.gcore(0, 20, False, True, False)
        a(f"v_mov_b32 v6, {fbits(AMP)}")
        for h in range(10):
            a(f"v_pk_mul_f32 {vr(GLO+2*h,2)}, {vr(GLO+2*h,2)}, v[6:7] op_sel_hi:[1,0]")
        a(f"""{l3}:
        v_mov_b32 v5, s85
        s_add_u32 s80, {sT}, 3
        s_and_b32 s80, s80, 15
        s_waitcnt lgkmcnt(0)
        s_barrier
        ds_read_b32 v6, v5 offset:{A.slot_off(0)}""")
        self.stamp(10)
        A.start(a, 4)
        self.att_dma(0)
        a(f"""v_readfirstlane_b32 s72, v6
        s_cmp_lg_u32 s72, 0
        s_cbranch_scc1 {slow}""")
        NT = 64
        prio = ((0, 0), (1, 0), (1, 3))

        def bnd(c):
            def f():
                cnt = {1: 9, 2: 16}.get(c, 3 if c < 14 else 0)
                a(f"s_waitcnt vmcnt({cnt}) lgkmcnt(0)\ns_barrier\ns_setprio 3")
            return f

        def hooks(n):
            h = {}

            def add(k, xs):
                h.setdefault(k, []).extend(xs)
            for lvl, (t, k) in zip((2, 1, 0), prio):
                if n % 4 == t:
                    add(k, [f"s_setprio {lvl}"])
            c = (n - 2) // 4
            d = self.kv_dma()
            if 1 <= c < 13:
                if n % 4 == 2:
                    add(2, [f"s_mul_i32 s81, s80, {A.CHUNK}", f"s_add_u32 m0, s85, {A.slot_off(c)}"])
                    add(3, ["s_add_u32 s81, s81, s86"])
                if n % 4 == 3:
                    add(0, d[:1])
                    add(2, ["s_add_u32 s80, s80, 1", "s_and_b32 s80, s80, 15"] + d[1:2])
                    add(3, d[2:])
            img = {4: (0, 1, 2), 5: (3, 4, 5), 8: (6, 7, 8, 9), 9: (10, 11, 12)}.get(n, ())
            for j, i in enumerate(img):
                x = self.img_piece(i)
                if i == 6:
                    x = ["s_add_u32 m0, s8, 4096"] + x
                add((0, 2, 3, 3)[j], x)
            return h
        for n in range(4, 14):
            A.iteration(a, n, NT, bnd(n // 4) if n % 4 == 2 else None, first=(n == 4), hooks=hooks(n))
        a(f"s_mov_b32 s82, 3\n.p2align 6\n{loop}:")
        for n in range(14, 26):
            h = hooks(n)
            if n == 25:
                h.setdefault(2, []).extend(["s_sub_u32 s82, s82, 1", "s_cmp_lg_u32 s82, 0"])
            A.iteration(a, n, NT, bnd(n // 4) if n % 4 == 2 else None, hooks=h)
        a(f"s_cbranch_scc1 {loop}")
        for n in range(50, 64):
            c = n // 4
            A.iteration(a, n, NT, bnd(c) if (n % 4 == 2 and c < 15) else None, hooks=hooks(n))
        a(A.pv(63, 1))
        a(f"{done}:")
        self.slow_labels = (slow, done)
        O, R, X = AR.O, AR.S, AR.S + 16
        l6, l7, l8, l9 = (a.lab("La") for _ in range(4))
        a(f"""s_setprio 0
        s_mul_i32 s72, {sWM}, 3072
        s_add_u32 s72, s72, {A.SLOT0}
        v_add_u32 v5, s72, {vL16}
        s_lshl_b32 s72, {sT}, 5
        s_lshl_b32 s73, {sG}, 1
        s_add_u32 s72, s72, s73
        s_lshr_b32 s73, {sWM}, 1
        s_add_u32 s72, s72, s73
        s_and_b32 s73, {sWM}, 1
        s_lshl_b32 s73, s73, 1
        s_add_u32 s73, s73, {sHI}
        s_lshl_b32 s74, s72, 12
        s_lshl_b32 s75, s73, 9
        s_add_u32 s74, s74, s75
        s_add_u32 s74, s74, {sO}
        s_lshl_b32 s75, s72, 10
        s_lshl_b32 s76, s73, 8
        s_add_u32 s75, s75, s76
        s_add_u32 s75, s75, {sO}
        s_add_u32 s75, s75, {OXOFF}""")
        self.if_lo(l6)
        for p, (skip, nxt) in enumerate(((l6, l7), (None, None))):
            for i in range(3):
                a(f"ds_write_b128 v5, {vr(O+16*(1-p)+4*i,4)} offset:{2*A.CHUNK*p+1024*i}")
            a("s_waitcnt lgkmcnt(0)\ns_barrier")
            for i in range(3):
                a(f"ds_read_b128 {vr(X+4*i,4)}, v5 offset:{2*A.CHUNK*(1-p)+1024*i}")
            a(f"v_lshrrev_b32 v5, 5, {vL}\nv_mul_u32_u24 v5, 1536, v5\ns_waitcnt lgkmcnt(0)")
            for h in (4, 5, 0, 1, 2, 3):
                a(f"v_pk_add_f32 {vr(R+2*h,2)}, {vr(O+16*p+2*h,2)}, {vr(X+2*h,2)}")
            if skip:
                a(f"s_branch {nxt}\n{skip}:")
        a(f"""{l7}:
        v_mov_b32 v6, v{R+8}
        v_mov_b32 v7, v{R+8}
        v_add_u32 v5, v5, {vL16}
        v_lshlrev_b32 v16, 3, {vL}
        v_permlane32_swap_b32 v7, v6
        v_rcp_f32 v6, v6""")
        for h in range(4):
            a(f"v_pk_mul_f32 {vr(R+2*h,2)}, {vr(R+2*h,2)}, v[6:7] op_sel_hi:[1,0]")
        for h in range(4):
            a(f"v_cvt_pk_bf16_f32 v{8+h}, v{R+2*h}, v{R+2*h+1}")
        a(f"buffer_store_dwordx4 v[8:11], v5, {WS}, s74 offen sc1")
        for h in range(4, 6):
            a(f"v_pk_mul_f32 {vr(R+2*h,2)}, {vr(R+2*h,2)}, v[6:7] op_sel_hi:[1,0]")
        for h in range(4, 6):
            a(f"v_cvt_pk_bf16_f32 v{8+h}, v{R+2*h}, v{R+2*h+1}")
        a(f"""s_mov_b32 exec_hi, 0
        buffer_store_dwordx2 v[12:13], v16, {WS}, s75 offen sc1
        s_mov_b64 exec, -1""")

    def o_loads(self):
        a = self.a
        a(f"""s_lshl_b32 s72, {sHALF}, 6
        s_lshl_b32 s73, {sWM}, 4
        s_add_u32 s72, s72, s73
        v_add_u32 v5, s72, {vN}
        v_lshlrev_b32 v6, 11, {vG}
        v_lshl_add_u32 v10, v5, 4, v6
        v_lshl_add_u32 v11, v5, 3, v6
        s_lshl_b32 s72, {sT}, 17
        s_add_u32 s72, s72, {sO}
        s_lshl_b32 s73, {sT}, 15
        s_add_u32 s73, s73, {sO}
        s_add_u32 s73, s73, {OXOFF}
        v_lshlrev_b32 v5, 7, {vL}""")
        self.poll(WS, "v5", "s34", 16)
        self.stamp(12)
        for ks in range(16):
            a(f"buffer_load_dwordx4 {vr(GA+4*ks,4)}, v10, {WS}, s72 offen sc1")
            a("s_add_u32 s72, s72, 8192")
        for ks in range(16, 20):
            for i in range(2):
                a(f"buffer_load_dwordx2 {vr(GA+4*ks+2*i,2)}, v11, {WS}, s73 offen offset:{1024*i} sc1")
            a("s_add_u32 s73, s73, 8192")

    @staticmethod
    def o_wait(ks):
        return (15 - ks) + 8 if ks < 16 else 2 * (19 - ks)

    def res_load(self):
        a = self.a
        a(f"""s_mul_i32 s72, {sT}, 163840
        s_mul_i32 s73, {sCB}, 20480
        s_add_u32 s72, s72, s73
        s_lshl_b32 s73, {sHALF}, 7
        s_add_u32 s72, s72, s73
        s_lshl_b32 s73, {sWM}, 5
        s_add_u32 s72, s72, s73
        s_add_u32 s72, s72, {sXB}
        v_lshlrev_b32 v5, 8, {vN}
        v_lshl_add_u32 v5, {vG}, 3, v5""")
        for ct in range(5):
            a(f"buffer_load_dwordx2 {vr(GA+2*ct,2)}, v5, {WS}, s72 offen sc1")
            a("s_add_u32 s72, s72, 4096")

    def final_store(self):
        a = self.a
        a(f"""s_mul_i32 s72, {sWM}, {16*176}
        s_add_u32 s72, s72, {EP}
        v_mul_u32_u24 v5, 176, {vN}
        v_lshl_add_u32 v5, {vG}, 3, v5
        v_add_u32 v5, s72, v5""")
        for ct in range(5):
            a(f"v_cvt_pk_bf16_f32 v{16+2*ct}, v{GLO+4*ct}, v{GLO+4*ct+1}")
            a(f"v_cvt_pk_bf16_f32 v{17+2*ct}, v{GLO+4*ct+2}, v{GLO+4*ct+3}")
            a(f"ds_write_b64 v5, {vr(16+2*ct,2)} offset:{ct*32}")
        a(f"""s_and_b32 s73, {sT}, 7
        s_lshl_b32 s73, s73, 8
        s_lshr_b32 s74, {sT}, 3
        s_lshl_b32 s74, s74, 4
        s_add_u32 s73, s73, s74
        s_lshl_b32 s74, {sHALF}, 3
        s_add_u32 s73, s73, s74
        s_lshl_b32 s74, {sWM}, 1
        s_add_u32 s73, s73, s74
        s_mul_i32 s73, s73, 1280
        s_mul_i32 s74, {sCB}, 160
        s_add_u32 s73, s73, s74
        s_movk_i32 s74, 176
        s_movk_i32 s75, 1280""")
        for i in range(3):
            a(f"""v_add_u32 v5, {64*i}, {vL}
            v_mul_u32_u24 v6, 205, v5
            v_lshrrev_b32 v6, 11, v6
            v_mul_u32_u24 v7, 10, v6
            v_sub_u32 v5, v5, v7
            v_lshlrev_b32 v5, 4, v5
            v_mad_u32_u24 v{8+i}, v6, s74, v5
            v_add_u32 v{8+i}, s72, v{8+i}
            v_and_b32 v7, 7, v6
            v_lshrrev_b32 v6, 3, v6
            v_lshl_add_u32 v6, v7, 5, v6
            v_mad_u32_u24 v{12+i}, v6, s75, v5""")
        a("s_waitcnt lgkmcnt(0)")
        for i in range(3):
            a(f"ds_read_b128 {vr(28+4*i,4)}, v{8+i}")
        for i in range(3):
            if i == 2:
                a("s_mov_b32 exec_hi, 0")
            a(f"s_waitcnt lgkmcnt({2-i})")
            a(f"buffer_store_dwordx4 {vr(28+4*i,4)}, v{12+i}, {SOUT}, s73 offen")

    def build(self):
        a = self.a
        self.prologue()
        self.phase0()
        a(f"""s_mov_b32 {sXA}, {X0}
        s_mov_b32 {sXB}, {X0+XSZ}
        s_mov_b32 {sKV}, {KV0}
        s_mov_b32 {sO}, {OM0}
        s_mov_b32 {sSS}, {SS0}
        Llayer:""")
        idle, cdone, l0, l1, l2, l3, l4, l5, l6, l7, l8, last = (a.lab("Lm") for _ in range(12))
        a(f"s_cmp_ge_u32 {sR}, 20\ns_cbranch_scc1 {idle}")
        a(f"s_cmp_eq_u32 {sLAYER}, 0\ns_cbranch_scc1 {l0}")
        self.col_twiddles()
        a(f"{l0}:")
        self.col_prepare()
        self.col_main()
        a(f"""s_lshl_b32 s33, s33, 7
        s_add_u32 s33, s33, {sFL}
        s_add_u32 s33, s33, {F_COL*FSTRIDE}
        s_branch {cdone}
        {idle}:
        s_sub_u32 s33, {sB}, 160
        s_lshl_b32 s33, s33, 7
        s_add_u32 s33, s33, {F_IMG*FSTRIDE}
        s_cmp_lg_u32 {sLAYER}, 0
        s_cbranch_scc1 {l1}""")
        self.jobs_idle()
        a(f"{cdone}:")
        self.stamp(5)
        a(f"s_cmp_le_u32 {sHI}, {sLAYER}\ns_cbranch_scc1 {l2}")
        a(f"v_lshlrev_b32 v5, 7, {vL}\ns_mul_i32 s72, {sWM}, {60*128}\ns_add_u32 s72, s72, {F_WQ*FSTRIDE}")
        self.poll(WS, "v5", "s72", 60)
        a(f"{l2}:\ns_waitcnt vmcnt(0) lgkmcnt(0)\ns_barrier")
        self.signal("s33")
        a(f"{l1}:")
        self.if_lo(l3)
        self.qkv_compute()
        a(f"s_branch {l4}\n{l3}:")
        self.qkv_helper()
        a(f"{l4}:")
        self.attention()
        self.stamp(11)
        a(f"""s_lshl_b32 s34, {sT}, 11
        s_lshl_b32 s35, {sG}, 7
        s_add_u32 s35, s35, s34
        s_add_u32 s34, s34, {sFL}
        s_add_u32 s34, s34, {F_O*FSTRIDE}
        s_add_u32 s72, s35, {sFL}
        s_add_u32 s72, s72, {F_O*FSTRIDE}
        s_waitcnt vmcnt(0)
        s_barrier""")
        self.signal("s72")
        a(f"s_cmp_lg_u32 {sLAYER}, 0\ns_cbranch_scc1 {last}")
        self.if_lo(l5)
        a(f"s_cmp_ge_u32 {sR}, 20\ns_cbranch_scc1 {l6}")
        self.col_tables(sWM, 4)
        a(f"{l6}:")
        self.x_store_setup()
        a(f"""s_mul_i32 s84, {sT}, 163840
        s_mul_i32 s85, {sCB}, 20480
        s_add_u32 s84, s84, s85
        s_lshl_b32 s85, {sHALF}, 7
        s_add_u32 s84, s84, s85
        s_add_u32 s84, s84, {X0+2*XSZ}
        s_waitcnt lgkmcnt(0)
        s_barrier""")
        self.x_store("s84")
        a(f"s_branch {l7}\n{l5}:")
        self.ep_setup()
        self.o_loads()
        self.gcore(0, 20, False, False, True, self.o_wait)
        self.ep_write(False)
        a(f"""s_lshl_b32 s85, {sT}, 12
        s_lshl_b32 s86, {sCB}, 9
        s_add_u32 s85, s85, s86
        s_lshl_b32 s86, {sHALF}, 8
        s_add_u32 s85, s85, s86
        s_add_u32 s85, s85, {SS0+65536}
        s_waitcnt lgkmcnt(0)
        s_barrier""")
        self.ss_store(sCB, "s85")
        a(f"{l7}:")
        self.stamp(13)
        a(f"""s_mov_b32 {sLAYER}, 1
        s_mov_b32 {sXA}, {X0+2*XSZ}
        s_mov_b32 {sXB}, {X0+3*XSZ}
        s_mov_b32 {sKV}, {KV0+KVSZ}
        s_mov_b32 {sO}, {OM0+OSZ}
        s_mov_b32 {sSS}, {SS0+65536}
        s_mov_b32 {sFL}, {FLAGS+4*FSTRIDE}
        s_add_u32 s72, s35, {sFL}
        s_mov_b32 s32, s35
        s_waitcnt vmcnt(0)
        s_barrier""")
        self.signal("s72")
        a(f"s_branch Llayer\n{last}:")
        self.if_hi("Lfin")
        self.o_loads()
        self.gcore(0, 20, False, True, True, self.o_wait)
        self.final_store()
        if self.stamps or self.probe is not None:
            a("s_mov_b64 exec, -1\ns_waitcnt vmcnt(0)")
            self.stamp(13)
        if self.probe is not None:
            a("""s_memrealtime s[90:91]
            s_sub_u32 s98, s98, s100
            Lspin:
            s_memrealtime s[92:93]
            s_waitcnt lgkmcnt(0)
            s_sub_u32 s92, s92, s90
            s_cmp_lt_u32 s92, s98
            s_cbranch_scc1 Lspin""")
        a("Lfin:")
        self.stamp_dump()
        a("Lend:\ns_endpgm")
        slow, done = self.slow_labels
        a(f"{slow}:")
        self.att_slow()
        a(f"s_branch {done}")
        return a.finalize()


def wrap(body):
    ref = open("cdna_kernels/" + NAME + ".s.ref").read()
    head = ref[:ref.index("; @launch")]
    out = head + "; @launch grid=(256,1,1) block=(512,1,1) lds=163840\n"
    out += f""".amdgcn_target "amdgcn-amd-amdhsa--gfx950"
.text
.globl {NAME}_kernel
.p2align 8
.type {NAME}_kernel,@function
{NAME}_kernel:
"""
    out += body
    out += ref[ref.index(".section .rodata"):]
    return out


if __name__ == "__main__":
    stamps = "--stamps" in sys.argv
    path = sys.argv[1]
    opts = [x[2:] for x in sys.argv[2:] if x.startswith("--")]
    g = Gen(stamps=stamps, opts=opts)
    txt = wrap(g.build())
    if "nosc1lds" in opts:
        txt = txt.replace(" sc1 lds", " lds")
    open(path, "w").write(txt)
    print("wrote", path, len(txt), "bytes; padded wait states", g.a.padded)
```

```python
import math, struct, sys
from asmlib import *
import attn as A
from attn import AR
from layout import *

NAME = "interleave_layers__spectral_gfnet__mha_block__prompt"


def fbits(x):
    return "0x%08x" % struct.unpack("<I", struct.pack("<f", x))[0]


WS, SX, SWF, SWQ, SWO, SOUT, SDBG = "s[20:23]", "s[24:27]", "s[28:31]", "s[36:39]", "s[40:43]", "s[44:47]", "s[48:51]"
sB, sWV, sX, sR, sT, sG, sHALF, sCB, sLAYER, sCB0, sTB0 = "s2", "s3", "s52", "s53", "s54", "s55", "s56", "s57", "s58", "s59", "s60"
sXA, sXB, sKV, sO, sSS, sFL, sSTAMP, sWM, sHI = "s61", "s62", "s63", "s64", "s65", "s66", "s67", "s68", "s69"
vTID, vL, vN, vG, vL16 = "v0", "v1", "v2", "v3", "v4"

AMP = math.sqrt(2.0 / 640)
QS = 20 ** -0.5 * math.log2(math.e)
SPIN = 1 << 16

XS, FI, EP, TB, TRS = 0, 81920, 133120, 145408, 157696
GA, GB, GLO, GHI = 164, 60, 144, 120
F_X, F_COL, F_KV, F_O, F_WQ, F_IMG, F_KMAX = 0, 1, 2, 3, 8, 9, 11
sSH, sREP = "s32", "s33"


class Gen:
    def __init__(self, stamps=False, opts=()):
        self.opts = set(opts)
        self.a = Asm()
        self.stamps = stamps
        self.stamp_init = False
        self.cold = []
        self.probe = next((int(o[5:]) for o in self.opts if o.startswith("probe")), None)
        self.stw = next((int(o[3:]) for o in self.opts if o.startswith("stw")), 0)
        self.pub = next((int(o[3:]) for o in self.opts if o.startswith("pub")), 1)

    def stamp(self, k):
        if self.probe is not None and k == self.probe % 16:
            l = self.a.lab("Lpb")
            self.a(f"""s_cselect_b32 s91, 1, 0
            s_cmp_lg_u32 {sLAYER}, {self.probe//16}
            s_cbranch_scc1 {l}
            s_memrealtime s[98:99]
            s_waitcnt lgkmcnt(0)
            {l}:
            s_cmp_lg_u32 s91, 0""")
        if not self.stamps:
            return
        a = self.a
        if k == 0 and not self.stamp_init:
            self.stamp_init = True
            a("v_mov_b32 v252, -1\nv_mov_b32 v253, -1")
        a(f"""s_memrealtime s[90:91]
        s_memtime s[96:97]
        s_mov_b32 s93, m0
        s_mul_i32 s92, {sLAYER}, 16
        s_bitset0_b32 s92, 31
        s_waitcnt lgkmcnt(0)
        s_cselect_b32 s91, 1, 0
        s_add_u32 m0, s92, {k}
        s_cmp_lg_u32 s91, 0
        v_writelane_b32 v252, s90, m0
        v_writelane_b32 v253, s96, m0
        s_mov_b32 m0, s93""")

    def stamp_dump(self):
        if not self.stamps:
            return
        a = self.a
        l = a.lab("Lst")
        a(f"""s_cmp_lg_u32 {sWM}, {self.stw}
        s_cbranch_scc1 {l}
        s_mov_b64 exec, -1
        v_lshlrev_b32 v254, 3, {vL}
        s_getreg_b32 s90, hwreg(HW_REG_XCC_ID)
        s_getreg_b32 s91, hwreg(HW_REG_HW_ID)
        v_writelane_b32 v252, s90, 32
        v_writelane_b32 v253, s91, 32
        s_mov_b32 exec_hi, 1
        buffer_store_dwordx2 v[252:253], v254, {WS}, {sSTAMP} offen
        {l}:""")

    def fstamp(self, grp, k):
        if "fine" + grp in self.opts:
            self.stamp(k)

    def if_lo(self, lab):
        self.a(f"s_cmp_lg_u32 {sHI}, 0\ns_cbranch_scc1 {lab}")

    def if_hi(self, lab):
        self.a(f"s_cmp_eq_u32 {sHI}, 0\ns_cbranch_scc1 {lab}")

    def prologue(self):
        a = self.a
        a(f"""s_cmp_ge_u32 {sB}, 256
        s_cbranch_scc1 Lend
        {"s_memrealtime s[100:101]" if self.probe is not None else ""}
        {"s_memrealtime s[98:99]" if self.probe is not None else ""}
        s_load_dwordx16 s[4:19], s[0:1], 0
        s_load_dwordx2 s[20:21], s[0:1], 64
        v_lshrrev_b32 v5, 6, v0
        v_and_b32 {vL}, 63, v0
        v_readfirstlane_b32 {sWV}, v5
        v_and_b32 {vN}, 15, v0
        v_lshrrev_b32 {vG}, 4, {vL}
        v_lshlrev_b32 {vL16}, 4, {vL}
        v_mov_b32 v11, 0
        v_mov_b32 v16, 0
        s_and_b32 {sX}, {sB}, 7
        s_lshr_b32 {sR}, {sB}, 3
        s_and_b32 s70, {sX}, 3
        s_lshl_b32 s70, s70, 2
        s_and_b32 s71, {sR}, 3
        s_add_u32 {sT}, s70, s71
        s_lshr_b32 {sHALF}, {sX}, 2
        s_lshr_b32 {sCB}, {sR}, 2
        s_lshl_b32 s70, {sHALF}, 3
        s_add_u32 {sG}, s70, {sCB}
        s_add_u32 s70, {sR}, {sX}
        s_and_b32 {sCB0}, s70, 7
        s_lshl_b32 s70, {sX}, 2
        s_lshr_b32 s71, {sR}, 3
        s_add_u32 {sTB0}, s70, s71
        s_mov_b32 {sLAYER}, 0
        s_and_b32 {sWM}, {sWV}, 3
        s_lshr_b32 {sHI}, {sWV}, 2
        s_lshl_b32 {sSTAMP}, {sB}, 1
        s_add_u32 {sSTAMP}, {sSTAMP}, {sHI}
        s_lshl_b32 {sSTAMP}, {sSTAMP}, 9
        s_add_u32 {sSTAMP}, {sSTAMP}, {STAMP}
        s_mov_b32 {sFL}, {FLAGS}
        s_and_b32 {sSH}, {sB}, 15
        s_lshl_b32 {sREP}, {sSH}, 11
        s_lshl_b32 {sSH}, {sSH}, 7
        s_mov_b32 s22, {WSEND}
        s_mov_b32 s23, 0x20000
        s_mov_b32 s26, {XSZ}
        s_mov_b32 s27, 0x20000
        s_mov_b32 s30, {2048*642}
        s_mov_b32 s31, 0x20000
        s_mov_b32 s38, {640*3840}
        s_mov_b32 s39, 0x20000
        s_mov_b32 s42, {640*1280}
        s_mov_b32 s43, 0x20000
        s_mov_b32 s46, {XSZ}
        s_mov_b32 s47, 0x20000
        s_mov_b32 s50, 256
        s_mov_b32 s51, 0x20000
        s_waitcnt lgkmcnt(0)
        s_mov_b64 s[24:25], s[4:5]
        s_cmp_lt_u32 {sX}, 4
        s_cselect_b32 s28, s6, s8
        s_cselect_b32 s29, s7, s9
        s_mov_b64 s[36:37], s[12:13]
        s_mov_b64 s[40:41], s[14:15]
        s_mov_b64 s[44:45], s[16:17]
        s_mov_b64 s[48:49], s[18:19]""")
        self.stamp(0)

    def poll(self, srd, vaddr, soff, nlanes, target, atomic=True):
        a = self.a
        lp, dn = a.lab("Lp"), a.lab("Ld")
        if atomic:
            ld = f"v_mov_b32 v6, 0\nbuffer_atomic_add v6, {vaddr}, {srd}, {soff} offen sc0 sc1"
        else:
            ld = f"buffer_load_dword v6, {vaddr}, {srd}, {soff} offen sc1"
        a(f"""s_mov_b32 s88, {SPIN}
        s_mov_b64 exec, {hex((1 << nlanes) - 1)}
        {lp}:
        {ld}
        s_sub_u32 s88, s88, 1
        s_cbranch_scc1 {dn}
        s_waitcnt vmcnt(0)
        v_cmpx_gt_u32 vcc, {target}, v6
        s_cbranch_execnz {lp}
        {dn}:
        s_waitcnt vmcnt(0)
        s_mov_b64 exec, -1""")

    def wait_lines(self, s_off, nlanes, target):
        self.a(f"v_lshlrev_b32 v5, 7, {vL}")
        self.poll(WS, "v5", s_off, nlanes, target)

    def push(self, s_off, shift, wave=None):
        a = self.a
        l = a.lab("Lsg")
        if wave is not None:
            a(f"s_cmp_lg_u32 {sWV}, {wave}\ns_cbranch_scc1 {l}")
        a(f"""v_lshlrev_b32 v5, {shift}, {vL}
        v_mov_b32 v6, 1
        s_mov_b64 exec, 0xffff
        buffer_atomic_add v6, v5, {WS}, {s_off} offen sc1
        s_mov_b64 exec, -1
        {l}:""")

    def gen_F(self, s_ct):
        a = self.a
        a(f"""s_mov_b32 s72, {s_ct}
        s_mul_i32 s73, {sCB0}, 80
        s_lshl_b32 s74, s72, 4
        s_add_u32 s73, s73, s74
        v_add_u32 v12, s73, {vN}
        v_lshrrev_b32 v14, 1, v12
        v_and_b32 v15, 1, v12
        v_cmp_ne_u32 vcc, 0, v12
        v_cndmask_b32 v14, 0x140, v14, vcc
        v_cmp_ne_u32 vcc, 1, v12
        v_cndmask_b32 v15, 0, v15, vcc
        v_cvt_f32_u32 v14, v14
        v_cvt_f32_u32 v15, v15
        v_lshlrev_b32 v13, 3, {vG}
        v_cvt_f32_u32 v13, v13
        v_mul_f32 v10, {fbits(1/640)}, v14
        v_mul_f32 v14, {fbits(1/20)}, v14
        v_mul_f32 v15, 0.25, v15
        v_fma_f32 v16, v13, v10, v15
        s_lshl_b32 s72, s72, 10
        s_add_u32 s72, s72, {FI}
        v_add_u32 v12, s72, {vL16}""".replace("0.25", fbits(0.25)))
        for e in range(1, 8):
            a(f"v_add_f32 v{16+e}, v{15+e}, v10")
        for h in range(4):
            a(f"v_pk_add_f32 {vr(24+2*h,2)}, {vr(16+2*h,2)}, v[14:15] op_sel_hi:[1,0]")
        a("v_cos_f32 v14, v14")
        for e in range(16):
            a(f"v_cos_f32 v{16+e}, v{16+e}")
        a("v_add_f32 v14, v14, v14")
        for ks in range(10):
            x, y, p = 16 + 8 * (ks % 2), 16 + 8 * ((ks + 1) % 2), 32 + 4 * (ks % 2)
            if ks >= 2:
                for h in range(4):
                    a(f"v_pk_fma_f32 {vr(x+2*h,2)}, {vr(y+2*h,2)}, v[14:15], {vr(x+2*h,2)} "
                      f"op_sel_hi:[1,0,1] neg_lo:[0,0,1] neg_hi:[0,0,1]")
            for h in range(4):
                a(f"v_cvt_pk_bf16_f32 v{p+h}, v{x+2*h}, v{x+2*h+1}")
            a(f"ds_write_b128 v12, {vr(p,4)} offset:{5120*ks}")

    def gcore(self, base, nks, dual, swap, init, await_a=None, hook=None):
        a = self.a
        a(f"v_add_u32 v6, {base}, {vL16}")
        if nks > 12:
            a(f"v_add_u32 v7, {base+61440}, {vL16}")

        def rd(ks, ct):
            reg, off = ("v6", ks * 5120) if ks < 12 else ("v7", (ks - 12) * 5120)
            return f"ds_read_b128 {vr(GB+20*(ks%3)+4*ct,4)}, {reg} offset:{off+ct*1024}"

        def mf(acc, ka, ks, ct, first):
            x, y = vr(GA + 4 * ka, 4), vr(GB + 20 * (ks % 3) + 4 * ct, 4)
            if swap:
                x, y = y, x
            d = vr(acc + 4 * ct, 4)
            return f"v_mfma_f32_16x16x32_bf16 {d}, {x}, {y}, {'0' if first else d}"
        for ks in range(2):
            for ct in range(5):
                a(rd(ks, ct))
        for ks in range(nks):
            w = f"lgkmcnt({5 if ks + 1 < nks else 0})"
            if await_a:
                w = f"vmcnt({await_a(ks)}) " + w
            a("s_waitcnt " + w)
            if hook and hook[0] == ks:
                hook[1]()
            for ct in range(5):
                a(mf(GLO, ks, ks, ct, ks == 0 and not init))
                if ks + 2 < nks:
                    a(rd(ks + 2, ct))
                if dual:
                    a(mf(GHI, ks + 10, ks, ct, ks == 0))

    def dual_setup(self, s_cb):
        a = self.a
        a(f"""v_mov_b32 v52, {fbits(AMP)}
        v_lshlrev_b32 v5, 30, {vN}
        v_and_b32 v5, 0x80000000, v5
        v_xor_b32 v54, v5, v52
        s_cmp_eq_u32 {s_cb}, 0
        s_cselect_b32 s72, 2, 0
        v_cmp_le_u32 vcc, s72, {vN}
        v_cndmask_b32 v56, {fbits(AMP/math.sqrt(2))}, v52, vcc
        v_xor_b32 v58, v5, v56""")

    def ep_setup(self):
        a = self.a
        a(f"""v_mul_u32_u24 v5, 144, {vN}
        v_lshl_add_u32 v5, {vG}, 3, v5
        s_lshl_b32 s72, {sWM}, 5
        s_add_u32 s72, s72, {EP}
        v_add_u32 v140, s72, v5""")

    def ep_write(self, dual):
        a = self.a
        for ct in range(5):
            if dual:
                p, q = (56, 58) if ct == 0 else (52, 54)
                for h in range(2):
                    lo, hi = vr(GLO + 4 * ct + 2 * h, 2), vr(GHI + 4 * ct + 2 * h, 2)
                    a(f"v_pk_mul_f32 {lo}, {lo}, {vr(p,2)} op_sel_hi:[1,0]")
                    a(f"v_pk_fma_f32 {lo}, {hi}, {vr(q,2)}, {lo} op_sel_hi:[1,0,1]")
            a(f"v_cvt_pk_bf16_f32 v{GB+2*ct}, v{GLO+4*ct}, v{GLO+4*ct+1}")
            a(f"v_cvt_pk_bf16_f32 v{GB+1+2*ct}, v{GLO+4*ct+2}, v{GLO+4*ct+3}")
            self.clean(GB + 2 * ct, 2)
            a(f"ds_write_b64 v140, {vr(GB+2*ct,2)} offset:{ct*16*144}")

    def ss_store(self, s_cb, s_ss):
        a = self.a
        R = GB + 16
        a(f"""s_cmp_eq_u32 {s_cb}, 0
        s_cselect_b32 s72, 1, 99
        v_cmp_ne_u32 vcc, s72, {vN}""")
        for h in range(2):
            x = vr(GLO + 4 + 2 * h, 2)
            a(f"v_pk_mul_f32 {vr(R+2*h,2)}, {x}, {x}")
        for r in range(4):
            a(f"v_cndmask_b32 v{GLO+r}, 0, v{GLO+r}, vcc")
        for ct in (2, 3, 4, 0):
            for h in range(2):
                x = vr(GLO + 4 * ct + 2 * h, 2)
                a(f"v_pk_fma_f32 {vr(R+2*h,2)}, {x}, {x}, {vr(R+2*h,2)}")
        for sh in (8, 4, 2, 1):
            for r in range(4):
                a(f"v_add_f32 v{R+r}, v{R+r}, v{R+r} row_ror:{sh} row_mask:0xf bank_mask:0xf")
        for r in range(4):
            a(f"v_or_b32 v{R+r}, 1, v{R+r}")
        a(f"""s_lshl_b32 s72, {sWM}, 6
        s_add_u32 s72, s72, {s_ss}
        s_mov_b32 exec_lo, 0x00010001
        s_mov_b32 exec_hi, 0x00010001
        buffer_store_dwordx4 {vr(R,4)}, {vL}, {WS}, s72 offen sc1
        s_mov_b64 exec, -1""")

    def x_store_setup(self):
        a = self.a
        a(f"""s_movk_i32 s79, 144
        v_lshrrev_b32 v5, 3, {vTID}
        v_and_b32 v6, 7, {vTID}
        v_lshlrev_b32 v6, 4, v6
        v_mad_u32_u24 v141, v5, s79, v6
        v_lshl_add_u32 v142, v5, 8, v6
        v_add_u32 v141, {EP}, v141""")

    def x_store(self, s_dst):
        a = self.a
        l1 = a.lab("Le")
        R = GB + 24
        for i in range(3):
            a(f"ds_read_b128 {vr(R+4*i,4)}, v141 offset:{32*144*i}")
        a(f"s_add_u32 s72, {s_dst}, 8192\ns_add_u32 s73, {s_dst}, 16384")
        a(f"s_waitcnt lgkmcnt(2)\nbuffer_store_dwordx4 {vr(R,4)}, v142, {WS}, {s_dst} offen sc1")
        a(f"s_waitcnt lgkmcnt(1)\nbuffer_store_dwordx4 {vr(R+4,4)}, v142, {WS}, s72 offen sc1")
        a(f"""s_cmp_gt_u32 {sWV}, 1
        s_waitcnt lgkmcnt(0)
        s_cbranch_scc1 {l1}
        buffer_store_dwordx4 {vr(R+8,4)}, v142, {WS}, s73 offen sc1
        {l1}:""")

    def dma_rows(self, srd, rg, s_rh, s_base, s_set):
        a = self.a
        a(f"""s_and_b32 s72, {s_set}, 1
        s_lshl_b32 s72, s72, 3
        v_add_u32 v5, s72, {vG}
        v_xor_b32 v5, v5, {vN}
        v_mul_u32_u24 v6, {rg}, {vG}
        v_lshl_add_u32 v8, v5, 4, v6
        v_xor_b32 v5, 4, v5
        v_lshl_add_u32 v9, v5, 4, v6
        v_add_u32 v9, {s_rh}, v9
        s_lshl_b32 s72, {s_set}, 11""")
        for blk in range(5):
            for h in range(2):
                a(f"s_add_u32 m0, s72, {XS + blk*(16384-256) + h*1024}")
                a(f"buffer_load_dwordx4 v{8+h}, {srd}, {s_base} offen offset:{blk*256} lds")

    def read_rows_frags(self):
        a = self.a
        a(f"""s_lshl_b32 s72, {sWM}, 12
        v_xor_b32 v5, {vG}, {vN}
        v_lshlrev_b32 v5, 4, v5
        v_lshl_add_u32 v5, {vN}, 8, v5
        v_add_u32 v60, s72, v5""")
        for c in range(1, 4):
            a(f"v_xor_b32 v{60+c}, {64*c}, v60")
        for ks in range(20):
            if ks == 16:
                for c in range(4):
                    a(f"v_add_u32 v{64+c}, 0x10000, v{60+c}")
            if ks < 16:
                a(f"ds_read_b128 {vr(GA+4*ks,4)}, v{60+ks%4} offset:{XS+(ks//4)*16384}")
            else:
                a(f"ds_read_b128 {vr(GA+4*ks,4)}, v{64+ks%4} offset:{XS}")

    def wf_setup(self):
        a = self.a
        a(f"""s_lshl_b32 s19, {sX}, 5
        s_add_u32 s19, s19, {sR}
        s_bfe_u32 s72, s19, 0x20005
        s_and_b32 s76, s72, 1
        s_lshl_b32 s76, s76, 5
        s_and_b32 s73, s19, 16
        s_add_u32 s76, s76, s73
        s_lshr_b32 s73, s72, 1
        s_add_u32 s76, s76, s73
        s_and_b32 s73, s19, 12
        s_lshl_b32 s73, s73, 7
        s_add_u32 s76, s76, s73
        s_mul_i32 s76, s76, 642
        s_and_b32 s75, s19, 3
        s_mul_i32 s75, s75, 160
        s_lshl_b32 s73, {sWM}, 4
        s_add_u32 s13, s75, s73
        s_and_b32 s73, s72, 2
        s_add_u32 s13, s13, s73
        s_add_u32 s76, s76, s13
        v_lshrrev_b32 v5, 3, {vL}
        v_and_b32 v6, 7, {vL}
        v_lshl_add_u32 v5, v6, 5, v5
        v_mul_u32_u24 v244, 1284, v5
        s_mov_b32 s18, s76""")

    def wf_loads(self):
        a = self.a
        skip = a.lab("Lw")
        a(f"""buffer_load_dwordx4 v[164:167], v244, {SWF}, s18 offen
        buffer_load_dwordx4 v[168:171], v244, {SWF}, s18 offen offset:64
        s_cmp_gt_u32 {sWM}, 1
        s_cbranch_scc1 {skip}
        buffer_load_dwordx4 v[172:175], v244, {SWF}, s18 offen offset:128
        s_cmp_lg_u32 s13, 0
        s_cbranch_scc1 {skip}
        buffer_load_ushort v176, v244, {SWF}, s18 offen offset:640
        {skip}:""")

    def wf_setup2(self):
        a = self.a
        a(f"""s_bfe_u32 s72, s19, 0x20005
        s_lshl_b32 s72, s72, 11
        s_lshr_b32 s73, s19, 7
        s_lshl_b32 s73, s73, 10
        s_add_u32 s72, s72, s73
        s_bfe_u32 s73, s19, 0x20002
        s_lshl_b32 s73, s73, 8
        s_add_u32 s72, s72, s73
        s_bfe_u32 s73, s19, 0x10004
        s_lshl_b32 s73, s73, 7
        s_add_u32 s72, s72, s73
        s_add_u32 s72, s72, {WF}
        s_lshl_b32 s74, {sWM}, 10
        s_add_u32 s74, s74, {TRS}
        v_lshrrev_b32 v5, 3, {vL}
        v_and_b32 v6, 7, {vL}
        v_xor_b32 v7, v5, v6
        v_lshl_add_u32 v7, v7, 4, s74
        v_lshl_add_u32 v245, v6, 7, v7
        v_lshl_add_u32 v250, v5, 7, v7
        v_add_u32 v246, s74, {vL16}
        v_lshlrev_b32 v247, 4, v6
        s_lshr_b32 s73, s13, 1
        v_add_u32 v5, s73, v5
        v_cmp_ne_u32 vcc, 0x100, v5
        v_lshl_add_u32 v247, v5, 13, v247
        v_subrev_u32 v249, {320*8192}, v247
        v_cndmask_b32 v249, v249, v247, vcc
        v_add_u32 v249, {64*8192}, v249""")
        a(f"""v_bfe_u32 v5, {vL}, 1, 1
        v_lshl_add_u32 v5, {vG}, 1, v5
        v_bfe_u32 v6, {vL}, 2, 2
        v_lshl_add_u32 v5, v5, 3, v6
        v_and_b32 v6, 1, {vL}
        v_lshlrev_b32 v6, 3, v6
        v_lshl_add_u32 v5, v5, 4, v6
        v_add_u32 v248, s74, v5
        s_mov_b32 s17, s72""")

    def wf_stores(self):
        a = self.a
        nop = a.lab("Lw")
        a(f"""s_cmp_lg_u32 s13, 0
        s_cbranch_scc1 {nop}
        v_and_b32 v164, 0xffff0000, v164
        v_or_b32 v164, v164, v176
        {nop}:""")
        for rnd in range(3):
            a(f"ds_write_b128 v246, {vr(164+4*rnd,4)}")
            for i in range(2):
                a(f"ds_read_b64_tr_b16 {vr(164+4*rnd+2*i,2)}, v248 offset:{64*i}")
        for rnd in range(3):
            a(f"s_waitcnt lgkmcnt({(6, 5, 4)[rnd]})")
            a(f"ds_write_b128 v245, {vr(164+4*rnd,4)}")
            a(f"ds_read_b128 {vr(164+4*rnd,4)}, v250")
        skip = a.lab("Lw")
        a("s_waitcnt lgkmcnt(0)")
        for rnd in range(3):
            if rnd == 2:
                a(f"s_cmp_gt_u32 {sWM}, 1\ns_cbranch_scc1 {skip}")
            a(f"buffer_store_dwordx4 {vr(164+4*rnd,4)}, {'v249' if rnd == 2 else 'v247'}, {WS}, {'s74' if rnd == 1 else 's17'} offen sc1")
            a(f"s_add_u32 s74, s17, {32*8192}")
        a(f"{skip}:")

    def wq_setup(self):
        a = self.a
        a(f"""v_lshrrev_b32 v5, 3, {vL}
        v_bfe_u32 v6, {vL}, 4, 1
        s_and_b32 s72, {sWV}, 1
        s_lshl_b32 s72, s72, 1
        v_or_b32 v6, s72, v6
        v_lshlrev_b32 v6, 1, v6
        v_and_b32 v7, 7, {vL}
        v_xor_b32 v6, v6, v7
        v_mul_u32_u24 v5, 3840, v5
        v_lshl_add_u32 v58, v6, 4, v5
        s_mul_i32 s72, {sWM}, {8*3840}
        s_lshl_b32 s73, {sTB0}, 7
        s_add_u32 s72, s72, s73
        s_lshl_b32 s73, {sWM}, 10""")

    def wq_dma(self, first, last):
        a = self.a
        for it in range(first, last):
            a(f"s_add_u32 m0, s73, {XS + it*4096}")
            a(f"buffer_load_dwordx4 v58, {SWQ}, s72 offen lds")
            a(f"s_add_u32 s72, s72, {32*3840}")

    def arrive(self, last, s_off, slot=0):
        a = self.a
        l = a.lab("Lar")
        a(f"""v_mov_b32 v5, {TRS+4096+4*slot}
        v_mov_b32 v6, 1
        s_mov_b64 exec, 1
        ds_add_rtn_u32 v7, v5, v6
        s_waitcnt lgkmcnt(0)
        v_cmp_eq_u32 vcc, {last}, v7
        s_mov_b64 exec, -1
        s_cbranch_vccz {l}""")
        self.push(s_off, 11)
        a(f"{l}:")

    def fill(self, bases, r):
        a = self.a
        for i in range(4):
            a(f"v_mov_b32 v{r+i}, -1")
        a(f"s_mul_i32 s72, {sB}, 10240\ns_mul_i32 s73, {sWM}, 2560\ns_add_u32 s72, s72, s73")
        for base in bases:
            a(f"s_add_u32 s73, s72, {base}")
            for i in range(3):
                if i == 2:
                    a("s_mov_b32 exec_hi, 0")
                a(f"buffer_store_dwordx4 {vr(r,4)}, {vL16}, {WS}, s73 offen offset:{1024*i} sc1")
            a("s_mov_b32 exec_hi, -1")

    def clean(self, r, n):
        for i in range(n):
            self.a(f"v_min_u32 v{r+i}, -2, v{r+i}")

    def umax(self, dst, regs):
        out, regs = [], list(regs)
        out.append(f"v_max3_u32 v{dst}, v{regs[0]}, v{regs[1]}, v{regs[2]}")
        regs = regs[3:]
        while regs:
            if len(regs) == 1:
                out.append(f"v_max_u32 v{dst}, v{dst}, v{regs[0]}")
            else:
                out.append(f"v_max3_u32 v{dst}, v{dst}, v{regs[0]}, v{regs[1]}")
            regs = regs[2:]
        return out

    def half_sync(self, slot, add=True):
        a = self.a
        lp = a.lab("Lhs")
        a(f"""v_mov_b32 v5, {TRS+4096+4*slot}
        v_mov_b32 v6, 1
        s_mov_b64 exec, 1
        {"ds_add_u32 v5, v6" if add else ""}
        {lp}:
        ds_read_b32 v6, v5
        s_waitcnt lgkmcnt(0)
        v_cmp_gt_u32 vcc, 4, v6
        s_cbranch_vccnz {lp}
        s_mov_b64 exec, -1""")

    def phase0(self):
        a = self.a
        z0, z1, z2, z3, z4, z5, l1, l2, l3, l5, l6, l7, l8, l9, l10 = (a.lab("Lq") for _ in range(15))
        a(f"s_lshr_b32 s80, {sTB0}, 1\ns_and_b32 s81, {sTB0}, 1")
        dest = f"""s_mul_i32 s84, s80, 163840
        s_mul_i32 s85, {sCB0}, 20480
        s_add_u32 s84, s84, s85
        s_lshl_b32 s85, s81, 7
        s_add_u32 s84, s84, s85
        s_add_u32 s84, s84, {X0}
        s_lshl_b32 s85, s80, 12
        s_lshl_b32 s86, {sCB0}, 9
        s_add_u32 s85, s85, s86
        s_lshl_b32 s86, s81, 8
        s_add_u32 s85, s85, s86
        s_add_u32 s85, s85, {SS0}"""
        self.if_hi(z0)
        a(f"""s_and_b32 s82, s80, 7
        s_lshl_b32 s82, s82, 8
        s_lshr_b32 s83, s80, 3
        s_lshl_b32 s83, s83, 4
        s_add_u32 s82, s82, s83
        s_lshl_b32 s83, s81, 3
        s_add_u32 s15, s82, s83
        s_mov_b32 s83, {128*1280}
        s_add_u32 s14, {sWM}, {sCB0}
        s_mov_b32 s16, 0
        {z2}:
        s_and_b32 s14, s14, 7
        s_add_u32 s82, s15, s14
        s_mul_i32 s82, s82, 1280""")
        self.dma_rows(SX, 32 * 1280, "s83", "s82", "s14")
        a(f"""s_add_u32 s14, s14, 4
        s_xor_b32 s16, s16, 1
        s_cbranch_scc1 {z2}""")
        self.fstamp("0", 14)
        a(f"""s_barrier
        s_mul_i32 s72, {sCB0}, 80
        s_mul_i32 s73, {sWM}, 20
        s_add_u32 s72, s72, s73
        s_mul_i32 s72, s72, 3840
        s_lshl_b32 s73, {sTB0}, 7
        s_add_u32 s72, s72, s73
        v_mul_u32_u24 v5, 3840, {vL}
        s_mov_b64 exec, 0xfffff
        buffer_load_dword v251, v5, {SWQ}, s72 offen
        s_mov_b64 exec, -1""")
        a(f"""s_branch {l9}
        {z0}:
        s_cmp_lg_u32 {sWV}, 3
        s_cbranch_scc1 {z4}
        {dest}
        s_lshl_b32 s70, {sB}, 7
        v_lshrrev_b32 v5, 2, {vL}
        v_and_b32 v6, 3, {vL}
        v_lshlrev_b32 v6, 4, v6
        v_lshl_add_u32 v5, v5, 15, v6
        v_mov_b32 v60, 0
        v_mov_b32 v61, 0
        v_mov_b32 v62, 0
        v_mov_b32 v63, 0
        v_mov_b32 v6, {TRS+4096}
        s_lshl_b32 s71, {sB}, 10
        s_add_u32 s71, s71, {SQ0}
        buffer_store_dwordx4 v[60:63], {vL16}, {WS}, s71 offen sc1
        s_bfm_b64 exec, {4*NFLAG}, 0
        buffer_store_dwordx4 v[60:63], v5, {WS}, s70 offen sc1
        s_lshl_b32 s71, {sB}, 8
        s_add_u32 s71, s71, {SS0+65536}
        s_mov_b64 exec, 0xffff
        buffer_store_dwordx4 v[60:63], {vL16}, {WS}, s71 offen sc1
        buffer_store_dwordx4 v[60:63], {vL16}, {WS}, s85 offen sc1
        ds_write_b128 v6, v[60:63]
        ds_write_b128 v6, v[60:63] offset:16
        s_mov_b64 exec, -1
        s_getpc_b64 s[72:73]
        Lpc:
        s_mul_i32 s74, {sR}, ((Lend-Lpc)/4096)*128
        s_add_u32 s72, s72, s74
        s_addc_u32 s73, s73, 0
        v_lshlrev_b32 v6, 7, {vL}
        v_mov_b32 v7, s73
        v_add_co_u32 v6, vcc, s72, v6
        v_addc_co_u32 v7, vcc, 0, v7, vcc
        s_bfm_b64 exec, (Lend-Lpc)/4096, 0
        global_load_dword v251, v[6:7], off
        s_mov_b64 exec, -1
        {z4}:""")
        a(f"s_mov_b32 s15, {sWV}\n{z5}:")
        self.gen_F("s15")
        a(f"""s_add_u32 s15, s15, 4
        s_cmp_eq_u32 s15, 4
        s_cbranch_scc1 {z5}
        s_cmp_ge_u32 {sR}, 20
        s_cbranch_scc1 {l9}
        s_cmp_eq_u32 {sWV}, 0
        s_cbranch_scc1 {l9}
        s_sub_u32 s15, {sWV}, 1""")
        self.col_tables("s15", 3)
        a(f"""{l9}:
        {dest}
        """)
        self.fstamp("0", 15)
        self.if_lo(l3)
        self.col_early()
        a(f"""s_cmp_lg_u32 {sWV}, 3
        s_cbranch_scc1 {z3}
        s_and_b32 s70, {sB}, 1
        s_lshl_b32 s70, s70, 7
        v_mov_b32 v60, 0
        v_mov_b32 v61, 1
        s_mov_b64 exec, 1
        s_waitcnt vmcnt(1)
        buffer_atomic_add v61, v60, {SDBG}, s70 offen sc1
        s_mov_b64 exec, -1
        {z3}:
        s_barrier""")
        self.wf_setup()
        self.wf_setup2()
        a("s_waitcnt lgkmcnt(0)\ns_barrier")
        self.stamp(1)
        self.read_rows_frags()
        self.dual_setup(sCB0)
        self.ep_setup()
        self.x_store_setup()
        a("s_waitcnt lgkmcnt(0)\ns_barrier")
        self.fstamp("0", 16)
        a(f"v_lshlrev_b32 v143, 7, {vL}\ns_movk_i32 s89, 128")
        wfk = next((int(o[3:]) for o in self.opts if o.startswith("wfk")), 5)
        self.gcore(FI, 10, True, False, False, hook=(wfk, self.wf_loads))
        self.fstamp("0", 17)
        self.ep_write(True)
        self.fstamp("0", 18)
        self.half_sync(1)
        self.x_store("s84")
        self.ss_store(sCB0, "s85")
        self.fstamp("0", 19)
        lw = a.lab("Lq")
        a(f"s_cmp_lt_u32 {sWV}, 2\ns_cbranch_scc1 {lw}\ns_waitcnt vmcnt(3)\n{lw}:\ns_waitcnt vmcnt(4)")
        self.wf_stores()
        self.stamp(2)
        self.poll(SDBG, "v143", "0", 2, "s89", atomic=False)
        self.arrive(3, sSH)
        self.half_sync(3)
        self.stamp(3)
        a(f"s_branch {l8}\n{l3}:")
        a("s_waitcnt vmcnt(1)\ns_barrier")
        self.stamp(1)
        self.wq_setup()
        a("s_barrier")
        self.wq_dma(0, 20)
        self.fstamp("0", 17)
        self.job_wq_setup()
        a("s_mov_b32 s78, s72")
        self.col_early()
        a("s_mov_b32 s72, s78")
        a("s_waitcnt vmcnt(0)")
        self.fstamp("0", 18)
        self.half_sync(2)
        self.stamp(2)
        self.job_wq()
        self.half_sync(3, add=False)
        self.stamp(3)
        a(f"{l8}:")

    def job_wq_setup(self):
        a = self.a
        a(f"""v_bfe_u32 v5, {vL}, 2, 2
        v_lshl_add_u32 v6, {vG}, 3, v5
        v_lshlrev_b32 v6, 7, v6
        v_lshrrev_b32 v5, 1, v5
        v_and_b32 v7, 1, {vG}
        v_lshl_add_u32 v5, v7, 1, v5
        v_xor_b32 v5, {sWM}, v5
        v_lshl_add_u32 v6, v5, 5, v6
        v_and_b32 v5, 3, {vL}
        v_lshl_add_u32 v56, v5, 3, v6
        v_add_u32 v57, 0xa000, v56""")
        a(f"""s_lshl_b32 s72, {sTB0}, 6
        s_lshl_b32 s73, {sWM}, 4
        s_add_u32 s72, s72, s73
        v_add_u32 v5, s72, {vN}
        s_cmp_ge_u32 {sTB0}, 10
        s_cselect_b32 s74, 1, 0
        s_cmp_ge_u32 {sTB0}, 20
        s_cselect_b32 s74, 2, s74
        s_mul_i32 s73, s74, 640
        v_subrev_u32 v5, s73, v5
        v_mul_u32_u24 v6, 3277, v5
        v_lshrrev_b32 v6, 16, v6
        v_mul_u32_u24 v7, 20, v6
        v_sub_u32 v7, v5, v7
        v_lshrrev_b32 v52, 1, v6
        s_mov_b32 s73, 163840
        v_mul_lo_u32 v52, v52, s73
        v_and_b32 v6, 1, v6
        v_lshl_add_u32 v52, v6, 11, v52
        s_lshl_b32 s75, s74, 4
        v_add_u32 v9, s75, v7
        s_lshl_b32 s75, s74, 2
        s_add_u32 s75, s75, 48
        v_add_u32 v10, s75, v7
        v_cmp_gt_u32 vcc, 16, v7
        v_cndmask_b32 v9, v10, v9, vcc
        v_add_u32 v10, 72, v7
        s_cmp_eq_u32 s74, 2
        s_cselect_b64 vcc, -1, 0
        v_cndmask_b32 v9, v9, v10, vcc
        v_lshl_add_u32 v52, v9, 4, v52
        v_lshrrev_b32 v5, 1, {vG}
        v_lshl_add_u32 v52, v5, 9, v52
        v_and_b32 v5, 1, {vG}
        v_lshl_add_u32 v52, v5, 12, v52
        s_cmp_eq_u32 s74, 0
        s_cselect_b32 s75, {fbits(AMP*QS)}, s87
        s_mul_i32 s72, {sCB0}, 20480
        s_add_u32 s72, s72, {WQ}
        v_mov_b32 v54, s75""".replace("s_cmp_eq_u32 s74, 0", f"s_mov_b32 s87, {fbits(AMP)}\ns_cmp_eq_u32 s74, 0"))

    def job_wq(self):
        a = self.a
        end = a.lab("Lb")
        for ks in range(20):
            for i in range(2):
                reg, off = ("v56", ks * 4096) if ks < 10 else ("v57", (ks - 10) * 4096)
                a(f"ds_read_b64_tr_b16 {vr(GA+4*ks+2*i,2)}, {reg} offset:{XS+off+i*512}")
        a(f"v_mov_b32 v5, {TRS+4096+16}\nv_mov_b32 v6, 1\ns_mov_b64 exec, 1\nds_add_u32 v5, v6\ns_mov_b64 exec, -1")
        a(f"s_cmp_ge_u32 {sTB0}, 30\ns_cbranch_scc1 {end}")
        self.gcore(FI, 10, True, True, False)
        for ct in range(5):
            lo, hi = GLO + 4 * ct, GHI + 4 * ct
            a(f"v_pk_add_f32 {vr(lo,2)}, {vr(lo,2)}, {vr(hi,2)}")
            a(f"v_pk_add_f32 {vr(lo+2,2)}, {vr(lo+2,2)}, {vr(hi+2,2)} neg_lo:[0,1] neg_hi:[0,1]")
            for h in range(2):
                a(f"v_pk_mul_f32 {vr(lo+2*h,2)}, {vr(lo+2*h,2)}, v[54:55] op_sel_hi:[1,0]")
        a(f"""s_cmp_eq_u32 {sCB0}, 0
        s_cselect_b32 s73, 16, 0
        v_cmp_le_u32 vcc, s73, {vL}
        v_mul_f32 v5, {fbits(1/math.sqrt(2))}, v{GLO}
        v_cndmask_b32 v{GLO}, v5, v{GLO}, vcc
        v_cndmask_b32 v{GLO+1}, 0, v{GLO+1}, vcc""")
        for ct in range(5):
            a(f"v_cvt_pk_bf16_f32 v{GB+2*ct}, v{GLO+4*ct}, v{GLO+4*ct+1}")
            a(f"v_cvt_pk_bf16_f32 v{GB+1+2*ct}, v{GLO+4*ct+2}, v{GLO+4*ct+3}")
        for p in range(3):
            a(f"v_permlane16_swap_b32 v{GB+4*p}, v{GB+2+4*p}")
            a(f"v_permlane16_swap_b32 v{GB+1+4*p}, v{GB+3+4*p}")
            if p == 2:
                a("s_mov_b32 exec_lo, 0xffff\ns_mov_b32 exec_hi, 0xffff")
            a(f"buffer_store_dwordx4 {vr(GB+4*p,4)}, v52, {WS}, s72 offen sc1")
            a("s_add_u32 s72, s72, 8192")
        a(f"s_mov_b64 exec, -1\n{end}:")

    def job_images(self):
        a = self.a
        l3 = a.lab("Lc")
        a(f"""s_sub_u32 s80, {sR}, 20
        s_lshl_b32 s80, s80, 3
        s_add_u32 s80, s80, {sX}
        s_lshl_b32 s80, s80, 3
        s_add_u32 s80, s80, {sWV}
        s_mov_b32 s77, {fbits(1/640)}
        {l3}:
        s_mul_i32 s81, s80, 656
        s_lshr_b32 s81, s81, 16
        s_mul_i32 s82, s81, 100
        s_sub_u32 s82, s80, s82
        s_mul_i32 s83, s82, 205
        s_lshr_b32 s83, s83, 10
        s_mul_i32 s84, s83, 5
        s_sub_u32 s84, s82, s84
        s_mul_i32 s81, s81, 80
        s_lshl_b32 s84, s84, 4
        s_add_u32 s81, s81, s84
        v_add_u32 v8, s81, {vN}
        s_mul_i32 s84, s83, 40
        s_sub_u32 s85, s83, 16
        s_mul_i32 s85, s85, 160
        s_add_u32 s85, s85, 16
        s_cmp_lt_u32 s83, 16
        s_cselect_b32 s84, s84, s85
        s_cselect_b32 s85, 8, 20
        s_cselect_b64 vcc, -1, 0
        v_lshrrev_b32 v5, 1, {vG}
        v_mul_u32_u24 v5, 20, v5
        v_and_b32 v6, 1, {vG}
        v_lshl_add_u32 v5, v6, 2, v5
        v_mul_u32_u24 v6, 40, {vG}
        v_cndmask_b32 v5, v6, v5, vcc
        v_mul_u32_u24 v5, 1280, v5
        v_lshl_add_u32 v5, v8, 1, v5
        s_mul_i32 s84, s84, 1280
        s_mul_i32 s85, s85, 1280
        s_add_u32 s85, s85, s84""")
        for e in range(8):
            a(f"buffer_load_ushort v{32+e}, v5, {SWO}, {'s84' if e < 4 else 's85'} offen offset:{1280*(e%4)}")
        a(f"""v_and_b32 v5, 1, {vG}
        v_lshrrev_b32 v6, 1, {vG}
        v_lshlrev_b32 v5, 3, v5
        v_lshl_add_u32 v5, v6, 2, v5
        s_lshl_b32 s84, s83, 4
        v_add_u32 v5, s84, v5
        v_cmp_ne_u32 vcc, 0, v5
        v_cndmask_b32 v12, 0x140, v5, vcc""")
        for e in range(1, 4):
            a(f"v_add_u32 v{12+e}, {e}, v5")
        for e in range(4):
            a(f"v_mul_u32_u24 v{12+e}, v{12+e}, v8")
            a(f"v_cvt_f32_u32 v{12+e}, v{12+e}")
            a(f"v_mul_f32 v{12+e}, s77, v{12+e}")
            a(f"v_fract_f32 v{12+e}, v{12+e}")
            a(f"v_cos_f32 v{16+2*e}, v{12+e}")
            a(f"v_sin_f32 v{17+2*e}, -v{12+e}")
        a(f"""v_mul_f32 v5, {fbits(1/math.sqrt(2))}, v16
        v_cndmask_b32 v16, v5, v16, vcc
        v_cndmask_b32 v17, {fbits(1/math.sqrt(2))}, v17, vcc""")
        for e in range(4):
            a(f"v_cvt_pk_bf16_f32 v{24+e}, v{16+2*e}, v{17+2*e}")
        a(f"""s_lshl_b32 s84, s80, 10
        s_add_u32 s85, s84, {FT}
        s_add_u32 s84, s84, {WOT}
        buffer_store_dwordx4 v[24:27], {vL16}, {WS}, s85 offen sc1
        s_waitcnt vmcnt(1)
        v_lshl_or_b32 v28, v33, 16, v32
        v_lshl_or_b32 v29, v35, 16, v34
        v_lshl_or_b32 v30, v37, 16, v36
        v_lshl_or_b32 v31, v39, 16, v38
        buffer_store_dwordx4 v[28:31], {vL16}, {WS}, s84 offen sc1
        s_add_u32 s80, s80, 768
        s_cmp_lt_u32 s80, 800
        s_waitcnt vmcnt(0)
        s_cbranch_scc1 {l3}""")

    def job_woh(self):
        a = self.a
        l0, l1, l2, l3, l4 = (a.lab("Lc") for _ in range(5))
        self.if_lo(l1)
        a(f"""s_sub_u32 s80, {sR}, 12
        s_cmp_ge_u32 {sR}, 24
        s_cselect_b32 s80, {sX}, s80
        s_cmp_ge_u32 s80, 10
        s_cbranch_scc1 {l0}""")
        self.half_sync(4, add=False)
        a(f"""s_mov_b32 s14, {sWV}
        {l3}:
        s_lshl_b32 s81, s80, 1
        s_lshr_b32 s82, s14, 2
        s_add_u32 s81, s81, s82
        s_and_b32 s82, s14, 3
        s_lshl_b32 s83, s81, 1
        s_lshr_b32 s84, s82, 1
        s_add_u32 s83, s83, s84
        s_mul_i32 s83, s83, 20
        s_and_b32 s84, s82, 1
        s_lshl_b32 s84, s84, 2
        s_add_u32 s83, s83, s84
        s_sub_u32 s84, s81, 16
        s_lshl_b32 s84, s84, 3
        s_lshl_b32 s85, s82, 1
        s_add_u32 s84, s84, s85
        s_mul_i32 s84, s84, 20
        s_add_u32 s84, s84, 16
        s_cmp_lt_u32 s80, 8
        s_cselect_b32 s82, s83, s84
        s_cselect_b32 s83, 8, 20
        s_mul_i32 s82, s82, 1280
        s_mul_i32 s83, s83, 1280""")
        self.dma_rows(SWO, 1280, "s83", "s82", "s14")
        a(f"s_add_u32 s14, s14, 4\ns_cmp_lt_u32 s14, 8\ns_cbranch_scc1 {l3}\ns_waitcnt vmcnt(0)")
        self.half_sync(5)
        self.read_rows_frags()
        self.gcore(FI, 10, True, False, False)
        self.ep_write(True)
        self.half_sync(6)
        a(f"""s_mul_i32 s81, {sCB0}, 102400
        s_mul_i32 s82, s80, 10240
        s_add_u32 s81, s81, s82
        s_add_u32 s81, s81, {WOH}
        v_mul_u32_u24 v5, 144, {vN}
        v_lshl_add_u32 v5, {vG}, 4, v5
        s_mov_b32 s82, {sWV}
        {l2}:
        s_cmp_ge_u32 s82, 5
        s_cselect_b32 s83, {64 - 5*16*144}, 0
        s_mul_i32 s84, s82, {16*144}
        s_add_u32 s83, s83, s84
        s_add_u32 s83, s83, {EP}
        v_add_u32 v6, s83, v5
        ds_read_b128 v[8:11], v6
        s_lshl_b32 s84, s82, 10
        s_add_u32 s84, s84, s81
        s_add_u32 s82, s82, 4
        s_cmp_lt_u32 s82, 10
        s_waitcnt lgkmcnt(0)
        buffer_store_dwordx4 v[8:11], {vL16}, {WS}, s84 offen sc1
        s_cbranch_scc1 {l2}
        {l0}:""")
        a(f"s_branch {l4}\n{l1}:\ns_add_u32 s72, {sSH}, {F_WQ*FSTRIDE}\ns_waitcnt vmcnt(0)")
        self.arrive(3, "s72", 7)
        a(f"{l4}:")

    def unpack(self, dst, src, n):
        for i in range(n):
            self.a(f"v_lshlrev_b32 v{dst+2*i}, 16, v{src+i}")
            self.a(f"v_and_b32 v{dst+2*i+1}, 0xffff0000, v{src+i}")

    def cmul_pack(self, c, s):
        a = self.a
        for e in range(8 if "plain" in self.opts else 0):
            dr, di, tr, ti = (f"v{x+e}" for x in (self.DR, self.DI, self.TR, self.TI))
            a(f"v_mul_f32 {tr}, {dr}, v{c+e}\nv_mul_f32 {ti}, {di}, v{c+e}")
            a(f"v_fma_f32 {tr}, -{di}, v{s+e}, {tr}\nv_fmac_f32 {ti}, {dr}, v{s+e}")
        for h in range(0 if "plain" in self.opts else 4):
            dr, di, tr, ti = (vr(x + 2 * h, 2) for x in (self.DR, self.DI, self.TR, self.TI))
            cc, ss = vr(c + 2 * h, 2), vr(s + 2 * h, 2)
            a(f"v_pk_mul_f32 {tr}, {dr}, {cc}")
            a(f"v_pk_mul_f32 {ti}, {di}, {cc}")
            a(f"v_pk_fma_f32 {tr}, {di}, {ss}, {tr} neg_lo:[1,0,0] neg_hi:[1,0,0]")
            a(f"v_pk_fma_f32 {ti}, {dr}, {ss}, {ti}")
        for h in range(4):
            a(f"v_cvt_pk_bf16_f32 v{self.BR+h}, v{self.TR+2*h}, v{self.TR+2*h+1}")
            a(f"v_cvt_pk_bf16_f32 v{self.BI+h}, v{self.TI+2*h}, v{self.TI+2*h+1}")

    def mm(self, d, x, y, first):
        self.a(f"v_mfma_f32_16x16x32_bf16 {vr(d,4)}, {vr(x,4)}, {vr(y,4)}, {'0' if first else vr(d,4)}")

    RS, ZS, EX = EP, 81920, 98304
    T1C, T1S, T2C, T2S = 20, 28, 36, 44
    C1, S1, N1, C2, S2, N2, S4E, C4O, S4O = 52, 56, 60, 64, 72, 80, 88, 96, 104
    WRAW, WR, WI = 112, 120, 128
    URAW, R0, R1, RS0, RS1, DR, DI, TR, TI, BR, BI, AF = 136, 144, 152, 160, 168, 176, 184, 192, 200, 208, 212, 216

    def col_tables(self, s_first, step):
        a = self.a
        lp = a.lab("Lk")
        a(f"""v_and_b32 v5, 31, {vL}
        v_lshrrev_b32 v6, 5, {vL}
        s_mov_b32 s74, {s_first}
        {lp}:
        v_lshl_add_u32 v7, v5, 1, v6
        s_lshl_b32 s72, s74, 3
        v_mul_u32_u24 v8, s72, v7
        s_lshl_b32 s72, s74, 5
        s_sub_u32 s72, s72, 127
        v_lshl_add_u32 v9, v6, 4, s72
        v_mul_u32_u24 v9, v9, v5
        v_lshlrev_b32 v10, 1, v5
        s_cmp_lt_u32 s74, 4
        s_cselect_b64 vcc, -1, 0
        v_cndmask_b32 v8, v9, v8, vcc
        v_cndmask_b32 v7, v10, v7, vcc
        v_cvt_f32_u32 v8, v8
        v_cvt_f32_u32 v7, v7
        v_mul_f32 v60, {fbits(1/64)}, v8
        v_mul_f32 v7, {fbits(1/64)}, v7
        s_lshl_b32 s73, s74, 10
        s_add_u32 s73, s73, {TB}""")
        for e in range(1, 8):
            a(f"v_add_f32 v{60+e}, v{59+e}, v7")
        for e in range(8):
            a(f"v_sin_f32 v{68+e}, v{60+e}")
            a(f"v_cos_f32 v{60+e}, v{60+e}")
        a(f"v_add_u32 v9, s73, {vL16}")
        for e in range(4):
            a(f"v_cvt_pk_bf16_f32 v{76+e}, v{60+2*e}, v{61+2*e}")
            a(f"v_cvt_pk_bf16_f32 v{80+e}, v{68+2*e}, v{69+2*e}")
        a(f"""s_add_u32 s74, s74, {step}
        s_cmp_lt_u32 s74, 6
        ds_write_b128 v9, v[76:79]
        ds_write_b128 v9, v[80:83] offset:6144
        s_cbranch_scc1 {lp}""")

    def col_twiddles(self):
        a = self.a
        a(f"""s_lshr_b32 s72, {sWM}, 1
        s_and_b32 s73, {sWM}, 1
        s_lshl_b32 s74, s73, 5
        s_add_u32 s74, s74, s72
        v_lshl_add_u32 v5, {vN}, 1, s74
        v_cvt_f32_u32 v5, v5
        v_mul_f32 v5, {fbits(1/2048)}, v5
        v_lshlrev_b32 v6, 3, {vG}
        v_cvt_f32_u32 v7, v6
        v_mul_f32 v{self.T1C}, v7, v5""")
        for e in range(1, 8):
            a(f"v_add_f32 v{self.T1C+e}, v{self.T1C+e-1}, v5")
        for e in range(8):
            a(f"v_sin_f32 v{self.T1S+e}, -v{self.T1C+e}")
            a(f"v_cos_f32 v{self.T1C+e}, v{self.T1C+e}")
        a(f"""v_add_u32 v6, s74, v6
        v_cvt_f32_u32 v6, v6
        v_lshrrev_b32 v7, 2, {vN}
        v_and_b32 v8, 3, {vN}
        v_lshl_add_u32 v8, v7, 3, v8
        v_cvt_f32_u32 v7, v8
        v_mul_f32 v9, {fbits(1/2048)}, v7
        v_add_f32 v10, {fbits(4/2048)}, v9""")
        for t in range(2):
            a(f"v_mul_f32 v{self.T2C+4*t}, v6, v{9+t}")
            a(f"v_add_f32 v{9+t}, v{9+t}, v{9+t}")
            for r in range(1, 4):
                a(f"v_add_f32 v{self.T2C+4*t+r}, v{self.T2C+4*t+r-1}, v{9+t}")
        for e in range(8):
            a(f"v_sin_f32 v{self.T2S+e}, v{self.T2C+e}")
            a(f"v_cos_f32 v{self.T2C+e}, v{self.T2C+e}")

    def pre_flags(self):
        self.a(f"""s_cmp_eq_u32 {sLAYER}, 0
        s_cselect_b32 s89, 16, 6
        s_cselect_b32 s72, 0, {2*FSTRIDE}
        s_add_u32 s72, s72, {F_WQ*FSTRIDE}
        s_add_u32 s72, s72, {sREP}
        s_lshl_b32 s73, {sWM}, 9
        s_add_u32 s72, s72, s73""")

    def col_wload(self):
        a = self.a
        a(f"buffer_load_dwordx4 {vr(self.WRAW,4)}, {vL16}, {WS}, s10 offen sc1")
        a(f"buffer_load_dwordx4 {vr(self.WRAW+4,4)}, {vL16}, {WS}, s10 offen offset:1024 sc1")

    def col_early(self):
        l = self.a.lab("Lk")
        self.a(f"s_cmp_ge_u32 {sR}, 20\ns_cbranch_scc1 {l}\ns_call_b64 s[70:71], Lcolearly\n{l}:")

    def col_early_body(self):
        a = self.a
        a("Lcolearly:\ns_nop 4")
        self.col_twiddles()
        a(f"""s_lshr_b32 s72, {sWM}, 1
        s_and_b32 s73, {sWM}, 1
        v_and_b32 v8, 3, {vN}
        s_mul_i32 s77, {sX}, 20
        s_add_u32 s77, s77, {sR}
        s_lshl_b32 s77, s77, 1
        s_add_u32 s77, s77, {sHI}
        s_lshl_b32 s4, s77, 1
        s_add_u32 s4, s4, s73
        s_lshl_b32 s5, s4, 8
        s_mul_i32 s74, s72, {8*163840}
        s_add_u32 s5, s5, s74
        s_lshl_b32 s10, s77, 13
        s_lshl_b32 s74, {sWM}, 11
        s_add_u32 s10, s10, s74
        s_add_u32 s10, s10, {WF}
        s_mov_b32 s74, 163840
        v_mul_lo_u32 v11, {vG}, s74
        v_lshl_add_u32 v11, {vN}, 4, v11
        v_lshrrev_b32 v5, 5, {vTID}
        v_and_b32 v6, 31, {vTID}
        v_lshlrev_b32 v6, 4, v6
        v_lshl_add_u32 v16, v5, 12, v6
        v_lshlrev_b32 v12, 4, {vTID}
        v_add_u32 v12, {self.RS}, v12
        s_lshl_b32 s74, s72, 12
        s_add_u32 s74, s74, {self.RS}
        v_lshlrev_b32 v13, 9, {vG}
        v_lshl_add_u32 v13, {vN}, 5, v13
        v_add_u32 v13, s74, v13
        s_lshl_b32 s75, {sHI}, 13
        s_lshl_b32 s74, s73, 11
        s_add_u32 s74, s74, s75
        s_lshl_b32 s76, s72, 7
        s_add_u32 s74, s74, s76
        s_add_u32 s74, s74, {self.ZS}
        v_bfe_u32 v5, {vN}, 2, 1
        v_lshlrev_b32 v5, 10, v5
        v_lshl_add_u32 v5, {vG}, 8, v5
        v_lshrrev_b32 v6, 3, {vN}
        v_lshl_add_u32 v5, v6, 6, v5
        v_lshl_add_u32 v5, v8, 4, v5
        v_add_u32 v14, s74, v5
        s_lshl_b32 s74, s72, 12
        s_add_u32 s74, s74, s75
        s_add_u32 s74, s74, {self.ZS}
        v_add_u32 v15, s74, {vL16}
        s_lshl_b32 s76, s73, 9
        s_add_u32 s74, s74, s76
        v_lshlrev_b32 v5, 10, v6
        v_lshl_add_u32 v5, v8, 4, v5
        v_bfe_u32 v6, {vN}, 2, 1
        v_lshl_add_u32 v5, v6, 7, v5
        v_lshrrev_b32 v6, 1, {vG}
        v_lshl_add_u32 v5, v6, 8, v5
        v_and_b32 v6, 1, {vG}
        v_lshl_add_u32 v5, v6, 3, v5
        v_add_u32 v8, s74, v5
        s_lshl_b32 s74, s72, 10
        s_add_u32 s74, s74, s75
        s_lshl_b32 s76, s73, 11
        s_add_u32 s74, s74, s76
        s_add_u32 s74, s74, {self.EX}
        v_add_u32 v9, s74, {vL16}
        v_xor_b32 v10, 0x800, v9
        v_mov_b32 v18, {fbits(1e-5)}
        s_nop 4
        s_setpc_b64 s[70:71]""")

    def col_consts(self):
        a = self.a
        a(f"""s_lshl_b32 s74, {sWM}, 8
        s_add_u32 s74, s74, {TB}
        v_lshrrev_b32 v7, 2, {vN}
        v_and_b32 v6, 3, {vN}
        v_lshl_add_u32 v7, v7, 3, v6
        v_lshlrev_b32 v5, 10, {vG}
        v_lshl_add_u32 v6, {vN}, 4, v5
        v_add_u32 v6, s74, v6
        v_lshl_add_u32 v5, v7, 4, v5
        v_add_u32 v5, {TB}, v5
        v_lshlrev_b32 v19, 9, {vG}
        v_lshl_add_u32 v19, v7, 4, v19
        v_add_u32 v19, {TB+4096}, v19
        ds_read_b128 {vr(self.S1,4)}, v6 offset:6144""")
        for t in range(2):
            a(f"ds_read_b128 {vr(self.S2+4*t,4)}, v5 offset:{6144+64*t}")
            a(f"ds_read_b128 {vr(self.S4O+4*t,4)}, v19 offset:{6144+64*t}")
        a(f"ds_read_b128 {vr(self.C1,4)}, v6")
        for t in range(2):
            a(f"ds_read_b128 {vr(self.C2+4*t,4)}, v5 offset:{64*t}")
            a(f"ds_read_b128 {vr(self.C4O+4*t,4)}, v19 offset:{64*t}")
        a(f"""s_bitcmp0_b32 {sWM}, 0
        s_cselect_b32 s75, 0x80008000, 0
        s_mov_b32 s74, 0x80008000
        s_mov_b32 s76, {fbits(1/640)}
        s_mov_b32 s87, {fbits(1/2048)}
        s_add_u32 s84, s5, {sXA}
        s_add_u32 s85, s84, {4*163840}
        s_add_u32 s82, s5, {sXB}
        s_add_u32 s83, s82, {4*163840}
        s_add_u32 s77, {sSS}, 32768
        s_waitcnt lgkmcnt(5)""")
        for i in range(4):
            a(f"v_xor_b32 v{self.N1+i}, s74, v{self.S1+i}")
        for i in range(8):
            a(f"v_xor_b32 v{self.N2+i}, s74, v{self.S2+i}")
            a(f"v_xor_b32 v{self.S4E+i}, s75, v{self.S2+i}")
            a(f"v_xor_b32 v{self.S4O+i}, s75, v{self.S4O+i}")

    def col_main(self):
        a = self.a
        nz, l1 = a.lab("Lnz"), a.lab("Lk")
        EXO = self.EX - self.ZS
        T, U = self.TR, self.URAW
        lp, dn, l2, l4, l5 = (a.lab("Lk") for _ in range(5))
        a(f"s_cmp_eq_u32 {sLAYER}, 0\ns_cbranch_scc1 {l4}")
        self.col_wload()
        self.if_hi(l2)
        a(f"s_mov_b32 s35, 1\ns_call_b64 s[70:71], Lwpre\ns_branch {l2}\n{l4}:")
        self.if_lo(l2)
        for i in range(4):
            a(f"v_mov_b32 v{T+i}, -1")
        for so in ("s82", "s83"):
            for i in range(2):
                a(f"buffer_store_dwordx4 {vr(T,4)}, v11, {WS}, {so} offen offset:{512*i} sc1")
        a(f"{l2}:\ns_lshl_b32 s72, {sWV}, 8\ns_add_u32 s72, s72, {sREP}\ns_add_u32 s72, s72, {sFL}")
        self.wait_lines("s72", 2, 16)
        a("s_barrier")
        self.fstamp("c", 0)
        a(f"s_mov_b32 s88, {SPIN}\n{lp}:")
        a(f"buffer_load_dwordx4 {vr(U,4)}, v11, {WS}, s84 offen sc1")
        a(f"buffer_load_dwordx4 {vr(U+4,4)}, v11, {WS}, s85 offen sc1")
        for k in range(8):
            a(f"buffer_load_dwordx4 {vr(T+4*k,4)}, v16, {WS}, {sSS} offen offset:{512*k} sc1")
        a("s_waitcnt vmcnt(8)")
        for x in self.umax(6, range(U, U + 8)):
            a(x)
        a("v_add_u32 v6, 1, v6")
        self.unpack(self.R0, U, 8)
        for k in range(8):
            a(f"s_waitcnt vmcnt({7-k})")
            a(f"v_min3_u32 v6, v{T+4*k}, v{T+4*k+1}, v6")
            a(f"v_min3_u32 v6, v{T+4*k+2}, v{T+4*k+3}, v6")
            if k:
                for i in range(0, 4, 2):
                    a(f"v_pk_add_f32 {vr(T+i,2)}, {vr(T+i,2)}, {vr(T+4*k+i,2)}")
        a("v_cmp_eq_u32 vcc, 0, v6")
        for i in range(4):
            a(f"v_fma_f32 v{T+i}, v{T+i}, s76, v18")
        for i in range(4):
            a(f"v_rsq_f32 v{T+i}, v{T+i}")
        a(f"""s_cbranch_vccz {dn}
        s_mov_b64 exec, vcc
        s_sub_u32 s88, s88, 1
        s_cbranch_scc0 {lp}
        {dn}:
        s_mov_b64 exec, -1
        ds_write_b128 v12, {vr(T,4)}
        s_cmp_lg_u32 {sLAYER}, 0
        s_cbranch_scc1 {l5}""")
        self.col_wload()
        a(f"s_add_u32 s72, {sSH}, {F_WQ*FSTRIDE}")
        self.push("s72", 11, wave=0)
        a(f"{l5}:")
        self.stamp(4)
        a("s_waitcnt lgkmcnt(0)\ns_barrier")
        self.fstamp("c", 1)
        for i in range(4):
            a(f"ds_read_b128 {vr(self.RS0+4*i,4)}, v13 offset:{(i//2)*2048+(i%2)*16}")
        a(f"""s_cmp_lg_u32 s4, 1
        s_waitcnt lgkmcnt(0)
        s_cbranch_scc1 {nz}
        s_mov_b32 s87, 0""")
        for i in range(16):
            a(f"v_mov_b32 v{self.RS0+i}, 0")
        a(f"{nz}:")
        for h in range(4):
            p, r0, r1, x1 = vr(self.DR + 2 * h, 2), vr(self.RS0 + 2 * h, 2), vr(self.RS1 + 2 * h, 2), vr(self.R1 + 2 * h, 2)
            a(f"v_pk_mul_f32 {p}, {vr(self.R0+2*h,2)}, {r0}")
            a(f"v_pk_fma_f32 {vr(self.TR+2*h,2)}, {x1}, {r1}, {p}")
            a(f"v_pk_fma_f32 {vr(self.TI+2*h,2)}, {x1}, {r1}, {p} neg_lo:[1,0,0] neg_hi:[1,0,0]")
        for h in range(4):
            a(f"v_cvt_pk_bf16_f32 v{self.BR+h}, v{self.TR+2*h}, v{self.TR+2*h+1}")
        a(f"ds_write_b128 v14, {vr(self.BR,4)}")
        for h in range(4):
            a(f"v_cvt_pk_bf16_f32 v{self.BI+h}, v{self.TI+2*h}, v{self.TI+2*h+1}")
        a(f"ds_write_b128 v14, {vr(self.BI,4)} offset:4096\ns_waitcnt lgkmcnt(0)\ns_barrier")
        AF, DR, DI, BR, BI = self.AF, self.DR, self.DI, self.BR, self.BI
        self.fstamp("c", 2)
        for i in range(4):
            a(f"ds_read_b128 {vr(AF+4*i,4)}, v15 offset:{1024*i}")
        a("s_waitcnt lgkmcnt(2)")
        for t in range(2):
            self.mm(DR + 4 * t, AF + 4 * t, self.C1, True)
            self.mm(DI + 4 * t, AF + 4 * t, self.N1, True)
        a("s_waitcnt lgkmcnt(0)")
        for t in range(2):
            self.mm(DR + 4 * t, AF + 8 + 4 * t, self.S1, False)
            self.mm(DI + 4 * t, AF + 8 + 4 * t, self.C1, False)
        self.cmul_pack(self.T1C, self.T1S)
        for t in range(2):
            self.mm(DR + 4 * t, self.C2 + 4 * t, BR, True)
            self.mm(DI + 4 * t, self.N2 + 4 * t, BR, True)
        for t in range(2):
            self.mm(DR + 4 * t, self.S2 + 4 * t, BI, False)
            self.mm(DI + 4 * t, self.C2 + 4 * t, BI, False)
        a("s_waitcnt vmcnt(0)")
        self.fstamp("c", 3)
        self.unpack(self.WR, self.WRAW, 8)
        self.cmul_pack(self.WR, self.WI)
        for t in range(2):
            self.mm(DR + 4 * t, BR, self.C2 + 4 * t, True)
            self.mm(DI + 4 * t, BR, self.S2 + 4 * t, True)
        for t in range(2):
            self.mm(DR + 4 * t, BI, self.N2 + 4 * t, False)
            self.mm(DI + 4 * t, BI, self.C2 + 4 * t, False)
        self.cmul_pack(self.T2C, self.T2S)
        for t in range(2):
            a(f"ds_write_b64 v8, {vr(BR+2*t,2)} offset:{EXO+64*t}")
            a(f"ds_write_b64 v8, {vr(BI+2*t,2)} offset:{EXO+2048+64*t}")
        self.fstamp("c", 14)
        l3 = a.lab("Lk")
        self.if_hi(l3)
        self.pre_flags()
        a(f"""v_lshlrev_b32 v5, 7, {vL}
        v_mov_b32 v19, 0
        s_mov_b64 exec, 15
        buffer_atomic_add v19, v5, {WS}, s72 offen sc0 sc1
        s_mov_b64 exec, -1
        {l3}:
        s_waitcnt lgkmcnt(0)
        s_barrier""")
        self.fstamp("c", 15)
        for p in range(2):
            a(f"ds_read_b128 {vr(AF+8*p,4)}, v9 offset:{4096*p}")
        for p in range(2):
            a(f"ds_read_b128 {vr(AF+8*p+4,4)}, v10 offset:{4096*p}")
        a("v_mov_b32 v6, s87\ns_waitcnt lgkmcnt(2)")
        for t in range(2):
            self.mm(DR + 4 * t, self.C2 + 4 * t, AF, True)
            self.mm(DI + 4 * t, self.C4O + 4 * t, AF + 8, True)
        a("s_waitcnt lgkmcnt(0)")
        for t in range(2):
            self.mm(DR + 4 * t, self.S4E + 4 * t, AF + 4, False)
            self.mm(DI + 4 * t, self.S4O + 4 * t, AF + 12, False)
        for neg, t, r, b, so in (("", self.TR, self.R0, BR, "s82"), (" neg_lo:[0,1] neg_hi:[0,1]", self.TI, self.R1, BI, "s83")):
            for h in range(4):
                x = vr(t + 2 * h, 2)
                a(f"v_pk_add_f32 {x}, {vr(DR+2*h,2)}, {vr(DI+2*h,2)}{neg}")
                a(f"v_pk_fma_f32 {x}, {x}, v[6:7], {vr(r+2*h,2)} op_sel_hi:[1,0,1]")
            for h in range(4):
                a(f"v_cvt_pk_bf16_f32 v{b+h}, v{t+2*h}, v{t+2*h+1}")
            self.clean(b, 4)
            a(f"buffer_store_dwordx4 {vr(b,4)}, v11, {WS}, {so} offen sc1")

    XR = 81920
    NREG = 244
    QH, NRM, DEC, SSP, VSCR = 102400, 112640, 112768, 114688, 143360
    QACC, QF, QAD = 60, 144, 192

    def h_dma(self, voff, s_lds, s_src, q):
        a = self.a
        a(f"s_add_u32 m0, {s_lds}, {(q%5)*16384}")
        a(f"s_add_u32 s83, {s_src}, {q*16384}")
        for i in range(4):
            a(f"buffer_load_dwordx4 {voff}, {WS}, s83 offen offset:{1024*i} sc1 lds")

    def w_prefetch_body(self):
        a = self.a
        a(f"""Lwpre:
        s_lshl_b32 s78, {sWM}, 12
        s_mul_i32 s79, {sG}, 163840
        s_add_u32 s79, s79, {WQ}
        s_add_u32 s79, s79, s78""")
        for q in range(5):
            a(f"s_add_u32 m0, s78, {q*16384}\ns_add_u32 s72, s79, {q*16384}")
            for i in range(4):
                a(f"buffer_load_dwordx4 {vL16}, {WS}, s72 offen offset:{1024*i} sc1 lds")
        a("s_setpc_b64 s[70:71]")

    def qkv_helper(self):
        a = self.a
        XR = self.XR
        lw = a.lab("Lh")
        a(f"s_cmp_eq_u32 s35, 1\ns_cbranch_scc1 {lw}\ns_call_b64 s[70:71], Lwpre\n{lw}:\ns_mov_b32 s35, 0")
        self.att_setup()
        a(f"""s_mul_i32 s80, {sT}, 163840
        s_add_u32 s80, s80, {sXB}
        s_add_u32 s80, s80, s78
        s_add_u32 s81, s78, {XR}
        s_mul_i32 s82, {sCB}, 102400
        s_add_u32 s82, s82, {FT}
        s_add_u32 s82, s82, s78
        s_and_b32 s74, {sWM}, 1
        s_lshl_b32 s74, s74, 1
        v_lshlrev_b32 v5, 2, {vG}
        v_xor_b32 v5, s74, v5
        v_xor_b32 v5, v5, {vL}
        v_lshlrev_b32 v8, 4, v5
        v_bfe_u32 v5, {vL}, 2, 2
        v_and_b32 v7, 1, {vG}
        v_lshrrev_b32 v6, 1, {vG}
        v_lshl_add_u32 v6, v6, 3, v5
        v_lshlrev_b32 v6, 8, v6
        v_lshl_add_u32 v6, v7, 12, v6
        s_lshl_b32 s74, {sHALF}, 2
        s_add_u32 s74, s74, {sWM}
        v_lshlrev_b32 v5, 1, v5
        v_xor_b32 v5, v5, v7
        v_xor_b32 v5, s74, v5
        v_lshl_add_u32 v6, v5, 5, v6
        v_and_b32 v7, 3, {vL}
        v_lshl_add_u32 v6, v7, 3, v6
        v_add_u32 v10, {XR}, v6
        v_add_u32 v11, 0xa000, v10
        s_or_b32 s74, {sG}, {sWM}
        s_cselect_b32 s74, 99, 1
        v_cmp_ne_u32 s[6:7], s74, {vG}
        s_lshl_b32 s15, {sLAYER}, 17
        s_lshl_b32 s74, {sT}, 13
        s_add_u32 s15, s15, s74
        s_add_u32 s15, s15, {SQ0}
        s_mul_i32 s16, {sWM}, 3
        s_min_u32 s16, s16, 7
        s_mul_i32 s74, {sG}, 10
        s_add_u32 s16, s16, s74
        s_lshl_b32 s16, s16, 10
        s_add_u32 s16, s16, s80
        s_sub_u32 s16, s16, s78
        s_mov_b32 s17, 0xffff0000
        v_lshlrev_b32 v9, 5, {vN}
        v_lshl_add_u32 v9, {vG}, 3, v9
        s_lshl_b32 s74, {sWM}, 9
        v_add_u32 v12, s74, v9
        s_add_u32 s74, s74, {sREP}
        s_add_u32 s74, s74, {sFL}
        s_add_u32 s74, s74, {F_COL*FSTRIDE}""")
        if "nogate" in self.opts:
            a("s_waitcnt vmcnt(0)")
        else:
            self.wait_lines("s74", 4, 10)
        self.stamp(6)
        ACC, RAW, UN, CK = 140, 60, 100, 76
        order = []

        def dma(tag, q):
            voff, lds, src = {"X": ("v8", "s81", "s80"), "W": (vL16, "s78", "s79")}[tag]
            r = [[f"buffer_load_dwordx4 {voff}, {WS}, s83 offen offset:{1024*i} sc1 lds"] for i in range(4)]
            r[0] = [f"s_add_u32 m0, {lds}, {(q%5)*16384}", f"s_add_u32 s83, {src}, {q*16384}"] + r[0]
            return [(f"{tag}{q}", x) for x in r]

        def emit(items):
            for tag, x in items:
                order.append(tag)
                for y in x:
                    a(y)

        def allow(*tags):
            last = max((i for i, t in enumerate(order) if t in tags), default=-1)
            return len(order) - 1 - last

        def sloads():
            return [("S", [f"buffer_load_dwordx4 {vr(RAW+4*i,4)}, {vL16}, {WS}, s16 offen offset:{1024*i} sc1"]) for i in range(3)]

        def piece(i):
            r = [f"v_cndmask_b32 v{RAW+k}, 0, v{RAW+k}, s[6:7]" for k in range(4)] if i == 0 else []
            for k in range(4):
                r += [f"v_lshlrev_b32 v{UN+2*k}, 16, v{RAW+4*i+k}", f"v_and_b32 v{UN+2*k+1}, s17, v{RAW+4*i+k}"]
            r += [f"{'v_mul_f32' if i == 0 else 'v_fmac_f32'} v{ACC+h}, v{UN+h}, v{UN+h}" for h in range(8)]
            if i == 2:
                r += [f"v_permlane32_swap_b32 v{ACC+k}, v{ACC+4+k}" for k in range(4)]
                r += [f"v_add_f32 v{ACC+k}, v{ACC+k}, v{ACC+4+k}" for k in range(4)]
                r += [f"v_permlane16_swap_b32 v{ACC+k}, v{ACC+2+k}" for k in range(2)]
                r += [f"v_add_f32 v{ACC+k}, v{ACC+k}, v{ACC+2+k}" for k in range(2)]
                r += [f"ds_write_b64 v12, {vr(ACC,2)} offset:16384"]
            return r

        def weave(items, valu):
            per = -(-len(valu) // max(1, len(items)))
            for it in items:
                emit([it])
                for x in valu[:per]:
                    a(x)
                valu = valu[per:]
        emit(dma("X", 0) + dma("X", 1) + sloads() + dma("X", 2))
        for q in range(10):
            n = allow(f"W{q}", f"X{q}", "Q", *(("S",) if q else ()))
            a(f"s_waitcnt vmcnt({n + (3 if q >= 8 else 0)}) lgkmcnt(0)\ns_barrier")
            if q in (1, 2, 3, 5, 7, 9):
                self.fstamp("q", {1: 0, 2: 1, 3: 2, 5: 3, 7: 14, 9: 15}[q])
            if q == 0:
                l = a.lab("Lh")
                a(f"s_cmp_lt_u32 {sR}, 20\ns_cbranch_scc1 {l}\ns_or_b32 s72, {sLAYER}, s14\ns_cbranch_scc1 {l}")
                a(f"s_add_u32 s72, {sSH}, {F_IMG*FSTRIDE}")
                self.push("s72", 11, wave=7)
                a(f"{l}:")
            if q == 1:
                bad, ok, lp = a.lab("Lbad"), a.lab("Lok"), a.lab("Lbad")
                chk = self.umax(5, range(RAW, RAW + 12)) + ["v_cmp_eq_u32 vcc, -1, v5"]
                for x in chk:
                    a(x)
                a(f"s_cbranch_vccnz {bad}\n{ok}:")
                body = [f"{bad}:", f"s_mov_b32 s88, {SPIN}", f"{lp}:"] + [x[0] for _, x in sloads()]
                body += ["s_sub_u32 s88, s88, 1", "s_waitcnt vmcnt(0)", f"s_cbranch_scc1 {ok}"] + chk + [f"s_cbranch_vccnz {lp}", f"s_branch {ok}"]
                self.cold.append("\n".join(body))
                l = a.lab("Lh")
                a(f"s_cmp_lg_u32 {sWM}, 2\ns_cbranch_scc1 {l}")
                for k in range(4, 12):
                    a(f"v_mov_b32 v{RAW+k}, 0")
                a(f"{l}:")
            if q == 3:
                l = a.lab("Lh")
                a(f"s_cmp_lg_u32 {sWM}, 0\ns_cbranch_scc1 {l}")
                for i in range(1, 4):
                    a(f"ds_read_b64 {vr(ACC+2*i,2)}, v12 offset:{16384+512*i}")
                a(f"s_lshl_b32 s74, {sG}, 9\ns_add_u32 s74, s74, s15\ns_waitcnt lgkmcnt(0)")
                for i in range(2):
                    a(f"v_add_f32 v{ACC+i}, v{ACC+i}, v{ACC+2+i}\nv_add_f32 v{ACC+4+i}, v{ACC+4+i}, v{ACC+6+i}")
                for i in range(2):
                    a(f"v_add_f32 v{ACC+i}, v{ACC+i}, v{ACC+4+i}")
                for i in range(2):
                    a(f"v_or_b32 v{ACC+i}, 1, v{ACC+i}")
                a(f"buffer_store_dwordx2 {vr(ACC,2)}, v9, {WS}, s74 offen sc1\n{l}:")
            if q <= 6:
                valu = piece(0) + piece(1) if q == 1 else (piece(2) if q == 2 else [])
                weave(dma("X", q + 3) + (dma("W", q + 3) if q >= 2 else []), valu)
            if q == 8:
                a(f"s_lshl_b32 s74, {sWM}, 11\ns_add_u32 s15, s15, s74\ns_mov_b32 s88, {SPIN}")
                emit([("Q", [f"buffer_load_dwordx4 {vr(RAW+4*i,4)}, {vL16}, {WS}, s15 offen offset:{1024*i} sc1"]) for i in range(2)])
            l = a.lab("Lh")
            a(f"s_cmp_eq_u32 {sLAYER}, 0\ns_cbranch_scc1 {l}")
            for j in range(2):
                kk = (4 * q + 2 * j) % 20
                for i in range(2):
                    a(f"ds_read_b64_tr_b16 {vr(GA+4*(2*q+j)+2*i,2)}, v{10+kk//10} offset:{(kk%10)*4096+1024*i}")
            if q in (7, 8):
                self.h_dma(vL16, "s78", "s82", q - 7)
                lj = a.lab("Lh")
                a(f"s_branch {lj}\n{l}:")
                self.fill([X0 + (q - 5) * XSZ], UN)
                l = lj
            a(f"{l}:")
        lp, dn = a.lab("Lh"), a.lab("Lh")
        a(f"""{lp}:
        v_min3_u32 v5, v{RAW}, v{RAW+1}, v{RAW+2}
        v_min3_u32 v5, v5, v{RAW+3}, v{RAW+4}
        v_min3_u32 v5, v5, v{RAW+5}, v{RAW+6}
        v_min_u32 v5, v5, v{RAW+7}
        v_cmp_eq_u32 vcc, 0, v5
        s_cbranch_vccz {dn}""")
        for i in range(2):
            a(f"buffer_load_dwordx4 {vr(RAW+4*i,4)}, {vL16}, {WS}, s15 offen offset:{1024*i} sc1")
        a(f"""s_sub_u32 s88, s88, 1
        s_waitcnt vmcnt(0)
        s_cbranch_scc0 {lp}
        {dn}:""")
        for i in range(4):
            a(f"v_add_f32 v{RAW+i}, v{RAW+i}, v{RAW+4+i}")
        a(f"""s_lshl_b32 s74, {sWM}, 9
        s_add_u32 s74, s74, {self.SSP}
        v_and_b32 v5, 31, {vL}
        v_lshrrev_b32 v6, 5, {vL}
        v_permlane32_swap_b32 v{RAW}, v{RAW+2}
        v_permlane32_swap_b32 v{RAW+1}, v{RAW+3}
        v_lshl_add_u32 v5, v5, 1, v6
        v_lshl_add_u32 v5, v5, 3, s74
        v_add_f32 v{RAW}, v{RAW}, v{RAW+2}
        v_add_f32 v{RAW+1}, v{RAW+1}, v{RAW+3}
        ds_write_b64 v5, {vr(RAW,2)}""")
        a("s_waitcnt lgkmcnt(0)\ns_barrier")
        l0, l1 = a.lab("Lh"), a.lab("Lh")
        a(f"s_cmp_eq_u32 {sLAYER}, 0\ns_cbranch_scc1 {l0}")
        for q in range(2, 6):
            a(f"s_add_u32 m0, s78, {q*16384}\ns_add_u32 s83, s82, {q*16384}")
            for i in range(4):
                a(f"buffer_load_dwordx4 {vL16}, {WS}, s83 offen offset:{1024*i} sc1 lds")
        a(f"""s_lshl_b32 s74, {sWM}, 10
        s_add_u32 m0, s74, 98304
        s_sub_u32 s83, s82, s78
        s_add_u32 s83, s83, m0
        buffer_load_dwordx4 {vL16}, {WS}, s83 offen sc1 lds
        s_branch {l1}
        {l0}:""")
        self.res_load()
        a(f"{l1}:")
        a(f"""s_mul_i32 s72, {sWM}, 2560
        s_add_u32 s72, s72, {self.QH}
        v_add_u32 v5, s72, {vL16}
        v_lshl_add_u32 v6, {vL}, 3, s72
        s_barrier
        ds_read_b128 {vr(AR.Q1,4)}, v5
        ds_read_b128 {vr(AR.Q1+4,4)}, v5 offset:1024
        ds_read_b64 v[6:7], v6 offset:2048
        v_lshlrev_b32 v5, 3, {vN}
        v_add_u32 v5, {self.NRM}, v5
        ds_read_b64 {vr(self.NREG,2)}, v5
        s_waitcnt lgkmcnt(1)""")
        for j in range(4):
            a(f"v_mov_b32 v{AR.Q2+6*(j//2)+j%2}, v{6+j%2}")
        self.q2_spread()

    def q2_spread(self):
        for i in range(4):
            self.a(f"v_permlane32_swap_b32 v{AR.Q2+i}, v{AR.Q2+4+i}")

    def att_setup(self):
        a = self.a
        a(f"s_lshr_b32 s72, {sWM}, 1\ns_mul_i32 s84, s72, {A.HEADB}")
        A.setup_addr(a, vL, vL16, "s84", sHI, "s72", 5)
        a(f"""s_mul_i32 s85, {sWV}, 2560
        s_mul_i32 s86, {sG}, {16*A.CHUNK}
        s_add_u32 s86, s86, {sKV}
        s_add_u32 s86, s86, s85
        s_add_u32 s85, s85, {A.SLOT0}""")
        for i in range(2, 6):
            a(f"v_mov_b32 v{AR.Q2+i}, 0")
        for i in range(32):
            a(f"v_mov_b32 v{AR.O+i}, 0")

    def qkv_compute(self):
        a = self.a
        XR, AD = self.XR, self.QAD
        own = A.SLOT0 + A.slot_off(0)
        EA = AD + 10
        self.att_setup()
        a(f"""s_lshr_b32 s72, {sWM}, 1
        s_and_b32 s73, {sWM}, 1
        s_lshl_b32 s74, s72, 11
        v_add_u32 v{AD}, s74, {vL16}
        v_add_u32 v{AD+1}, 0xa000, v{AD}
        v_bfe_u32 v5, {vL}, 2, 2
        v_lshrrev_b32 v6, 5, {vL}
        v_lshl_add_u32 v6, v6, 3, v5
        v_mul_u32_u24 v{EA+1}, 48, v6
        v_lshlrev_b32 v6, 8, v6
        v_and_b32 v7, 3, {vL}
        v_lshl_add_u32 v6, v7, 3, v6
        s_lshl_b32 s74, s73, 1
        v_xor_b32 v7, s74, v5
        v_lshl_add_u32 v6, v7, 6, v6
        v_and_b32 v7, 1, {vG}
        v_lshl_add_u32 v6, v7, 5, v6
        v_add_u32 v{AD+2}, {XR}, v6""")
        for i in range(1, 4):
            a(f"v_xor_b32 v{AD+2+i}, {32*i}, v{AD+2}")
        for i in range(4):
            a(f"v_add_u32 v{AD+6+i}, 0xa000, v{AD+2+i}")
        a(f"""s_mul_i32 s75, {sWM}, 3072
        s_add_u32 s75, s75, {self.VSCR}
        v_and_b32 v5, 3, {vL}
        v_lshl_add_u32 v5, v7, 2, v5
        v_min_u32 v5, 4, v5
        v_and_b32 v6, 1, v5
        v_mul_u32_u24 v6, 24, v6
        v_lshrrev_b32 v5, 1, v5
        v_lshl_add_u32 v5, v5, 3, v6
        v_add3_u32 v{EA+1}, v{EA+1}, v5, s75
        v_and_b32 v5, 31, {vL}
        v_lshrrev_b32 v6, 5, {vL}
        v_lshl_add_u32 v7, v5, 1, v6
        v_mul_u32_u24 v7, 24, v7
        v_add_u32 v{EA}, s75, v7
        v_mul_u32_u24 v6, 20, v6
        v_add_lshl_u32 v{EA+2}, v6, v5, 4
        s_lshl_b32 s75, s73, 8
        s_add_u32 s75, s75, {self.SSP}
        v_lshl_add_u32 v{EA+3}, v5, 2, s75
        s_mul_i32 s76, s72, {A.HEADB}
        s_mul_i32 s77, s73, {2*A.TILE}
        s_add_u32 s77, s77, s76
        s_lshl_b32 s75, s73, 9
        s_add_u32 s76, s76, s75
        s_add_u32 s76, s76, {A.K2OFF}
        s_add_u32 s75, s77, {own}
        v_add_u32 v{EA+4}, s75, {vL16}
        v_add_u32 v{EA+5}, s75, v{EA+2}
        v_lshlrev_b32 v{EA+6}, 3, {vL}
        s_add_u32 s75, s76, {own}
        v_add_u32 v{EA+7}, s75, v{EA+6}
        s_lshl_b32 s75, {sG}, 4
        s_add_u32 s75, s75, {sT}
        s_mul_i32 s75, s75, {A.CHUNK}
        s_add_u32 s75, s75, {sKV}
        s_add_u32 s76, s76, s75
        s_add_u32 s77, s77, s75
        s_mul_i32 s75, {sWM}, 2560
        s_add_u32 s75, s75, {self.QH}
        v_add_u32 v{EA+8}, s75, {vL16}
        v_add_u32 v{EA+9}, s75, v{EA+6}
        s_mov_b32 s78, {fbits(1/640)}
        v_mov_b32 v{EA+10}, {fbits(1e-5)}
        s_lshl_b32 s75, {sWM}, 5
        s_add_u32 s75, s75, {self.NRM}
        v_lshl_add_u32 v{EA+11}, {vG}, 3, s75
        v_lshlrev_b32 v5, 3, {vN}
        v_add_u32 v{EA+12}, {self.NRM}, v5
        v_lshlrev_b32 v{EA+13}, 2, {vG}
        s_lshl_b32 s79, {sG}, 4
        s_add_u32 s79, s79, {sT}
        s_lshl_b32 s79, s79, 7
        s_lshl_b32 s75, {sWM}, 4
        s_add_u32 s79, s79, s75
        s_lshl_b32 s75, {sLAYER}, 15
        s_add_u32 s79, s79, s75
        s_add_u32 s79, s79, {F_KMAX*FSTRIDE}
        s_waitcnt vmcnt(0)
        s_barrier""")
        self.stamp(6)

        def reads(k):
            kk, f = k % 20, self.QF + 16 * (k % 3)
            hi, off = kk // 10, (kk % 10) * 4096
            r = []
            for j in range(2):
                r.append(f"ds_read_b128 {vr(f+4*j,4)}, v{AD+hi} offset:{off+1024*j}")
                for i in range(2):
                    r.append(f"ds_read_b64_tr_b16 {vr(f+8+4*j+2*i,2)}, v{AD+2+4*hi+2*j+k%2} offset:{off+1024*i}")
            return r
        for r in reads(0) + reads(1):
            a(r)
        SSR = 8
        for k in range(40):
            a(f"s_waitcnt lgkmcnt({6 if k < 39 else 0})")
            rr = reads(k + 2) if k + 2 < 40 else []
            if k == 39:
                rr = [f"ds_read_b32 v{SSR+4*nt+w}, v{EA+3} offset:{512*w+128*nt}" for nt in range(2) for w in range(4)]
            f = self.QF + 16 * (k % 3)
            per = (2, 2, 1, 1) if k < 39 else (4, 4, 0, 0)
            for j, (mt, nt) in enumerate(((0, 0), (1, 0), (1, 1), (0, 1))):
                d = vr(self.QACC + 32 * nt + 16 * mt, 16)
                a(f"v_mfma_f32_32x32x16_bf16 {d}, {vr(f+4*mt,4)}, {vr(f+8+4*nt,4)}, {'0' if k == 0 else d}")
                if j == 0 and (k == 39 or ((k + 2) % 4 == 0 and k + 2 < 40)):
                    a("s_barrier")
                for _ in range(per[j]):
                    if rr:
                        a(rr.pop(0))
        self.stamp(7)
        KR, K2R, VR, Q2T, VT, RSD, N, W = 144, 152, 154, 166, 168, 220, self.NREG, 224
        a("s_waitcnt lgkmcnt(0)")
        for nt in range(2):
            s = SSR + 4 * nt
            a(f"v_pk_add_f32 {vr(s,2)}, {vr(s,2)}, {vr(s+2,2)}")
        for nt in range(2):
            a(f"v_add_f32 v{SSR+4*nt}, v{SSR+4*nt}, v{SSR+4*nt+1}")
        for nt in range(2):
            a(f"v_fma_f32 v{RSD+2*nt}, v{SSR+4*nt}, s78, v{EA+10}")
        for nt in range(2):
            a(f"v_rsq_f32 v{RSD+2*nt}, v{RSD+2*nt}")

        def sc(dst, src, n, nt):
            for h in range(n):
                r = vr(src + 2 * h, 2)
                a(f"v_pk_mul_f32 {r}, {r}, {vr(RSD+2*nt,2)} op_sel_hi:[1,0]")
            for h in range(n):
                a(f"v_cvt_pk_bf16_f32 v{dst+h}, v{src+2*h}, v{src+2*h+1}")

        def sq(acc, srcs):
            for j, r in enumerate(srcs):
                if j == 0:
                    a(f"v_pk_mul_f32 {vr(acc,2)}, {vr(r,2)}, {vr(r,2)}")
                else:
                    a(f"v_pk_fma_f32 {vr(acc,2)}, {vr(r,2)}, {vr(r,2)}, {vr(acc,2)}")
        PB = [self.QACC + 32 * nt for nt in range(2)]
        for nt in range(2):
            sc(VR + 6 * nt, PB[nt] + 20, 6, nt)
            for i in range(3):
                a(f"ds_write_b64 v{EA}, {vr(VR+6*nt+2*i,2)} offset:{8*i+1536*nt}")
            for i in range(4):
                a(f"ds_read_b64_tr_b16 {vr(VT+8*nt+2*i,2)}, v{EA+1} offset:{(i//2)*768+(i%2)*192+1536*nt}")
        for nt in range(2):
            sc(KR + 4 * nt, PB[nt] + 8, 4, nt)
            a(f"buffer_store_dwordx4 {vr(KR+4*nt,4)}, {vL16}, {WS}, s77 offen offset:{A.TILE*nt} sc1")
            sc((Q2T, K2R)[nt], PB[nt] + 16, 2, nt)
        for i in range(2):
            a(f"v_permlane32_swap_b32 v{Q2T+i}, v{K2R+i}")
        a(f"""buffer_store_dwordx2 {vr(K2R,2)}, v{EA+6}, {WS}, s76 offen sc1
        s_mov_b64 exec, {A.VMASK}
        s_waitcnt lgkmcnt(0)""")
        for nt in range(2):
            for i in range(2):
                a(f"buffer_store_dwordx4 {vr(VT+8*nt+4*i,4)}, v{EA+2}, {WS}, s77 offen offset:{A.TILE*nt+1024+A.VFR*i} sc1")
        for nt in range(2):
            for i in range(2):
                a(f"ds_write_b128 v{EA+5}, {vr(VT+8*nt+4*i,4)} offset:{A.TILE*nt+1024+A.VFR*i}")
        a("s_mov_b64 exec, -1")
        for nt in range(2):
            sc(AR.Q1 + 4 * nt, PB[nt], 4, nt)
            a(f"ds_write_b128 v{EA+4}, {vr(KR+4*nt,4)} offset:{A.TILE*nt}")
            a(f"ds_write_b128 v{EA+8}, {vr(AR.Q1+4*nt,4)} offset:{1024*nt}")
        a(f"ds_write_b64 v{EA+7}, {vr(K2R,2)}")
        a(f"ds_write_b64 v{EA+9}, {vr(Q2T,2)} offset:2048")
        for nt in range(2):
            sq(W + 4 * nt, [PB[nt] + 2 * h for h in (0, 1, 2, 3)])
            sq(W + 4 * nt + 2, [PB[nt] + 2 * h for h in (4, 5, 6, 7)])
        for half, ex in enumerate(("exec_hi", "exec_lo")):
            a(f"s_mov_b32 {ex}, 0")
            for nt in range(2):
                for h in (8, 9):
                    r, c = vr(PB[nt] + 2 * h, 2), vr(W + 4 * nt + 2 * half, 2)
                    a(f"v_pk_fma_f32 {c}, {r}, {r}, {c}")
            a(f"s_mov_b32 {ex}, -1")
        for j in range(4):
            a(f"v_add_f32 v{N+j}, v{W+2*j}, v{W+2*j+1}")
        a(f"v_max3_f32 v{W}, abs(v{PB[0]+20}), abs(v{PB[0]+21}), abs(v{PB[1]+20})")
        rest = [PB[1] + 21] + [PB[nt] + h for nt in range(2) for h in range(22, 28)]
        rest.append(rest[-1])
        for j in range(0, len(rest), 2):
            a(f"v_max3_f32 v{W}, v{W}, abs(v{rest[j]}), abs(v{rest[j+1]})")
        a(f"v_permlane32_swap_b32 v{N}, v{N+2}\nv_permlane32_swap_b32 v{N+1}, v{N+3}\ns_mov_b32 exec_hi, 0")
        for nt in range(2):
            for h in (28, 30):
                a(f"v_max3_f32 v{W}, v{W}, abs(v{PB[nt]+h}), abs(v{PB[nt]+h+1})")
        a(f"""s_mov_b32 exec_hi, -1
        v_pk_add_f32 {vr(N,2)}, {vr(N,2)}, {vr(N+2,2)}
        v_cmp_gt_f32 vcc, {fbits(2.0**50)}, v{W}
        v_cndmask_b32 v{N+1}, 0x7f800000, v{N+1}, vcc""")
        for j, sh in enumerate((8, 4, 2, 1)):
            a(f"v_mov_b32 v{AR.Q2+6*(j//2)+j%2}, v{Q2T+j%2}")
            for r in (N, N + 1):
                a(f"v_max_u32 v{r}, v{r}, v{r} row_ror:{sh} row_mask:0xf bank_mask:0xf")
        a(f"""s_mov_b32 exec_lo, 0x10001
        s_mov_b32 exec_hi, 0x10001
        ds_write_b64 v{EA+11}, {vr(N,2)}
        buffer_store_dword v{N+1}, v{EA+13}, {WS}, s79 offen sc1
        s_mov_b64 exec, -1""")
        self.q2_spread()
        a(f"""s_waitcnt lgkmcnt(0)
        s_barrier
        ds_read_b64 {vr(N,2)}, v{EA+12}""")

    def kv_dma(self):
        return [f"buffer_load_dwordx4 {vL16}, {WS}, s81 offen sc1 lds",
                f"buffer_load_dwordx4 {vL16}, {WS}, s81 offen offset:1024 sc1 lds",
                "s_mov_b32 exec_hi, 0",
                f"buffer_load_dwordx4 {vL16}, {WS}, s81 offen offset:2048 sc1 lds",
                "s_mov_b32 exec_hi, -1"]

    def att_dma(self, c):
        a = self.a
        a(f"s_mul_i32 s81, s80, {A.CHUNK}\ns_add_u32 m0, s85, {A.slot_off(c)}\ns_add_u32 s81, s81, s86")
        for x in self.kv_dma():
            a(x)
        a("s_add_u32 s80, s80, 1\ns_and_b32 s80, s80, 15")

    def att_slow(self):
        a = self.a
        M = 140
        for i in range(32):
            a(f"v_mov_b32 v{AR.O+i}, 0")
        a(f"v_mov_b32 v{M}, 0xff800000\nv_mov_b32 v{M+1}, 0xff800000\ns_waitcnt vmcnt(0)")
        for ps in range(2):
            lp = a.lab("Lsl")
            a(f"s_mov_b32 s80, 0\n{lp}:\ns_barrier")
            self.att_dma(0)
            a("s_waitcnt vmcnt(0)\ns_barrier")
            for n in range(4):
                if n % 2 == 0:
                    for r in A.rd_k(n // 2) + (A.rd_v(n // 2) if ps else []):
                        a(r)
                    a("s_waitcnt lgkmcnt(0)")
                a(A.qk1(n))
                a(A.qk2(n))
                s = AR.S + 16 * (n % 3)
                if ps == 0:
                    for i in range(8):
                        a(f"v_max3_f32 v{M+n%2}, v{M+n%2}, v{s+2*i}, v{s+2*i+1}")
                else:
                    for i in range(16):
                        a(f"v_sub_f32 v{s+i}, v{s+i}, v{M+n%2}")
                    for i in range(16):
                        a(A.ex(n, i))
                    a(A.pv(n, 0))
                    a(A.pv(n, 1))
            a(f"s_cmp_lg_u32 s80, 0\ns_cbranch_scc1 {lp}")
            if ps == 0:
                off = A.SLOT0 + A.slot_off(1)
                a(f"""v_lshlrev_b32 v5, 3, {vTID}
                v_xor_b32 v6, 0x800, v5
                v_add_u32 v5, {off}, v5
                v_add_u32 v6, {off}, v6
                ds_write_b64 v5, {vr(M,2)}
                s_waitcnt lgkmcnt(0)
                s_barrier
                ds_read_b64 {vr(M+2,2)}, v6
                s_waitcnt lgkmcnt(0)""")
                for q in range(2):
                    a(f"""v_max_f32 v{M+q}, v{M+q}, v{M+2+q}
                    v_mov_b32 v5, v{M+q}
                    v_permlane32_swap_b32 v5, v{M+q}
                    v_max_f32 v{M+q}, v5, v{M+q}""")
        for i in range(13):
            for x in self.img_piece(i):
                a(x)

    def img_piece(self, i):
        r = []
        if i % 4 == 0:
            r += [f"s_add_u32 m0, s8, {1024*i}", f"s_add_u32 s10, s9, {1024*i}"]
        ld = f"buffer_load_dwordx4 {vL16}, {WS}, s10 offen offset:{1024*(i%4)} sc1 lds"
        return r + (["s_mov_b32 exec_hi, 0", ld, "s_mov_b32 exec_hi, -1"] if i == 12 else [ld])

    def attention(self):
        a = self.a
        N = self.NREG
        l0, l1, l2, l3, l4, l5, slow, done, loop = (a.lab("La") for _ in range(9))
        a(f"""s_lshl_b32 s11, {sG}, 11
        s_add_u32 s11, s11, {sFL}
        s_add_u32 s11, s11, {F_KV*FSTRIDE}
        s_lshl_b32 s12, {sT}, 7
        s_add_u32 s12, s12, s11
        s_mul_i32 s8, {sWV}, 12800
        s_mov_b32 s9, {WOT}
        s_cmp_eq_u32 {sLAYER}, 0
        s_cselect_b32 s9, {WOH}, s9
        s_mul_i32 s72, {sCB}, 102400
        s_add_u32 s9, s9, s72
        s_add_u32 s9, s9, s8""")
        self.stamp(8)
        A.start(a, 0)
        redo, back, lo, li = (a.lab("Lredo") for _ in range(4))
        a(f"v_cmp_lt_u32 vcc, 0x7f800000, v{N}\ns_cbranch_vccnz {redo}\n{back}:")
        chk = "\n".join(self.umax(5, [5, 60, 61, 62, 63]))
        self.cold.append(f"""{redo}:
        s_cmp_lg_u32 s14, 0
        s_cbranch_scc1 {back}
        s_mov_b32 s14, 1
        s_mov_b32 s88, {SPIN >> 4}
        {lo}:
        s_mul_i32 s72, {sT}, 163840
        s_add_u32 s72, s72, {sXB}
        s_mul_i32 s73, {sWV}, 20480
        s_add_u32 s72, s72, s73
        s_add_u32 s73, s72, 20480
        v_mov_b32 v5, 0
        {li}:
        buffer_load_dwordx4 v[60:63], {vL16}, {WS}, s72 offen sc1
        s_add_u32 s72, s72, 1024
        s_cmp_lt_u32 s72, s73
        s_waitcnt vmcnt(0)
        {chk}
        s_cbranch_scc1 {li}
        v_cmp_eq_u32 vcc, -1, v5
        s_sub_u32 s88, s88, 1
        s_cselect_b64 vcc, 0, vcc
        s_cbranch_vccnz {lo}
        s_waitcnt lgkmcnt(0)
        s_barrier
        s_branch Lqkv""")

        def publish():
            lw = a.lab("La")
            a(f"s_and_b32 s72, {sHI}, {sLAYER}\ns_cbranch_scc1 {lw}\ns_waitcnt vmcnt(0)\n{lw}:\ns_barrier")
            self.push("s11", 7, wave=0)
        for n in range(4):
            A.iteration(a, n, 4, publish if n == self.pub else None, first=(n == 0))
        a(A.pv(3, 1))
        self.stamp(9)
        self.if_lo(l1)
        a("s_barrier")
        for sh in (8, 4, 2, 1):
            a(f"v_max_u32 v{N}, v{N}, v{N} row_ror:{sh} row_mask:0xf bank_mask:0xf")
        a(f"""v_lshrrev_b32 v5, 2, {vL}
        v_and_b32 v6, 3, {vL}
        v_lshlrev_b32 v6, 4, v6
        v_lshl_add_u32 v{N+1}, v5, 7, v6
        s_lshl_b32 s76, {sG}, 11
        s_lshl_b32 s75, {sLAYER}, 15
        s_add_u32 s76, s76, s75
        s_add_u32 s76, s76, {F_KMAX*FSTRIDE}""")
        self.wait_lines("s12", 1, 16)
        a(f"""s_mul_i32 s72, {sWM}, 2560
        s_add_u32 s73, s85, s72
        s_add_u32 s74, s86, s72
        s_movk_i32 s75, 2560""")
        for c in (1, 2):
            a(f"""s_add_u32 s80, {sT}, {c}
            s_and_b32 s80, s80, 15
            s_mul_i32 s81, s80, {A.CHUNK}
            s_add_u32 m0, s73, {A.slot_off(c)}
            s_add_u32 s81, s81, s74""")
            for i in range(4):
                a(f"buffer_load_dwordx4 {vL16}, {WS}, s81 offen offset:{1024*i} sc1 lds")
            a(f"s_add_u32 m0, m0, 4096\ns_add_u32 s81, s81, 4096")
            a(f"buffer_load_dwordx4 {vL16}, {WS}, s81 offen sc1 lds")
            if c == 1:
                a(f"buffer_load_dwordx4 v[140:143], v{N+1}, {WS}, s76 offen sc1")
        a(f"""s_waitcnt vmcnt(5)
        v_max3_u32 v7, v140, v141, v142
        v_max_u32 v7, v7, v143
        v_mul_f32 v7, v7, v{N}
        v_cmp_nge_f32 vcc, {fbits(3600.0)}, v7
        s_or_b32 s72, vcc_lo, vcc_hi
        v_mov_b32 v5, {A.SLOT0 + A.slot_off(0)}
        v_mov_b32 v6, s72
        v_mad_u32_u24 v5, {vL}, s75, v5
        s_mov_b64 exec, 0xff
        ds_write_b32 v5, v6
        s_mov_b64 exec, -1
        s_branch {l3}
        {l1}:
        s_waitcnt vmcnt(0)
        s_barrier
        s_cmp_lg_u32 {sLAYER}, 0
        s_cbranch_scc1 {l4}""")
        self.unpack(GLO, GA, 10)
        a(f"s_lshl_b32 s72, {sWM}, 9\ns_add_u32 s72, s72, {sREP}\ns_add_u32 s72, s72, {F_IMG*FSTRIDE}")
        self.wait_lines("s72", 4, 6)
        a(f"s_branch {l3}\n{l4}:")
        self.gcore(0, 20, False, True, False)
        a(f"v_mov_b32 v6, {fbits(AMP)}")
        for h in range(10):
            a(f"v_pk_mul_f32 {vr(GLO+2*h,2)}, {vr(GLO+2*h,2)}, v[6:7] op_sel_hi:[1,0]")
        a(f"""{l3}:
        v_mov_b32 v5, s85
        s_add_u32 s80, {sT}, 3
        s_and_b32 s80, s80, 15
        s_waitcnt lgkmcnt(0)
        s_barrier
        ds_read_b32 v6, v5 offset:{A.slot_off(0)}""")
        self.stamp(10)
        A.start(a, 4)
        self.att_dma(0)
        a(f"""v_readfirstlane_b32 s72, v6
        s_cmp_lg_u32 s72, 0
        s_cbranch_scc1 {slow}""")
        NT = 64
        prio = ((0, 0), (1, 0), (1, 3))

        def bnd(c):
            def f():
                cnt = {1: 9, 2: 16}.get(c, 3 if c < 14 else 0)
                a(f"s_waitcnt vmcnt({cnt}) lgkmcnt(0)\ns_barrier\ns_setprio 3")
            return f

        def hooks(n):
            h = {}

            def add(k, xs):
                h.setdefault(k, []).extend(xs)
            for lvl, (t, k) in zip((2, 1, 0), prio):
                if n % 4 == t:
                    add(k, [f"s_setprio {lvl}"])
            c = (n - 2) // 4
            d = self.kv_dma()
            if 1 <= c < 13:
                if n % 4 == 2:
                    add(2, [f"s_mul_i32 s81, s80, {A.CHUNK}", f"s_add_u32 m0, s85, {A.slot_off(c)}"])
                    add(3, ["s_add_u32 s81, s81, s86"])
                if n % 4 == 3:
                    add(0, d[:1])
                    add(2, ["s_add_u32 s80, s80, 1", "s_and_b32 s80, s80, 15"] + d[1:2])
                    add(3, d[2:])
            img = {4: (0, 1, 2), 5: (3, 4, 5), 8: (6, 7, 8, 9), 9: (10, 11, 12)}.get(n, ())
            for j, i in enumerate(img):
                x = self.img_piece(i)
                if i == 6:
                    x = ["s_add_u32 m0, s8, 4096"] + x
                add((0, 2, 3, 3)[j], x)
            return h
        for n in range(4, 14):
            A.iteration(a, n, NT, bnd(n // 4) if n % 4 == 2 else None, first=(n == 4), hooks=hooks(n))
        a(f"s_mov_b32 s82, 3\n.p2align 6\n{loop}:")
        for n in range(14, 26):
            h = hooks(n)
            if n == 25:
                h.setdefault(2, []).extend(["s_sub_u32 s82, s82, 1", "s_cmp_lg_u32 s82, 0"])
            A.iteration(a, n, NT, bnd(n // 4) if n % 4 == 2 else None, hooks=h)
        a(f"s_cbranch_scc1 {loop}")
        for n in range(50, 64):
            c = n // 4
            A.iteration(a, n, NT, bnd(c) if (n % 4 == 2 and c < 15) else None, hooks=hooks(n))
        a(A.pv(63, 1))
        a(f"{done}:")
        self.slow_labels = (slow, done)
        O, R, X = AR.O, AR.S, AR.S + 16
        l6, l7, l8, l9 = (a.lab("La") for _ in range(4))
        a(f"""s_setprio 0
        s_mul_i32 s72, {sWM}, 3072
        s_add_u32 s72, s72, {A.SLOT0}
        v_add_u32 v5, s72, {vL16}
        s_lshl_b32 s72, {sT}, 5
        s_lshl_b32 s73, {sG}, 1
        s_add_u32 s72, s72, s73
        s_lshr_b32 s73, {sWM}, 1
        s_add_u32 s72, s72, s73
        s_and_b32 s73, {sWM}, 1
        s_lshl_b32 s73, s73, 1
        s_add_u32 s73, s73, {sHI}
        s_lshl_b32 s74, s72, 12
        s_lshl_b32 s75, s73, 9
        s_add_u32 s74, s74, s75
        s_add_u32 s74, s74, {sO}
        s_lshl_b32 s75, s72, 10
        s_lshl_b32 s76, s73, 8
        s_add_u32 s75, s75, s76
        s_add_u32 s75, s75, {sO}
        s_add_u32 s75, s75, {OXOFF}""")
        self.if_lo(l6)
        for p, (skip, nxt) in enumerate(((l6, l7), (None, None))):
            for i in range(3):
                a(f"ds_write_b128 v5, {vr(O+16*(1-p)+4*i,4)} offset:{2*A.CHUNK*p+1024*i}")
            a("s_waitcnt lgkmcnt(0)\ns_barrier")
            for i in range(3):
                a(f"ds_read_b128 {vr(X+4*i,4)}, v5 offset:{2*A.CHUNK*(1-p)+1024*i}")
            a(f"v_lshrrev_b32 v5, 5, {vL}\nv_mul_u32_u24 v5, 1536, v5\ns_waitcnt lgkmcnt(0)")
            for h in (4, 5, 0, 1, 2, 3):
                a(f"v_pk_add_f32 {vr(R+2*h,2)}, {vr(O+16*p+2*h,2)}, {vr(X+2*h,2)}")
            if skip:
                a(f"s_branch {nxt}\n{skip}:")
        a(f"""{l7}:
        v_mov_b32 v6, v{R+8}
        v_mov_b32 v7, v{R+8}
        v_add_u32 v5, v5, {vL16}
        v_lshlrev_b32 v16, 3, {vL}
        v_permlane32_swap_b32 v7, v6
        v_rcp_f32 v6, v6""")
        for h in range(4):
            a(f"v_pk_mul_f32 {vr(R+2*h,2)}, {vr(R+2*h,2)}, v[6:7] op_sel_hi:[1,0]")
        for h in range(4):
            a(f"v_cvt_pk_bf16_f32 v{8+h}, v{R+2*h}, v{R+2*h+1}")
        a(f"buffer_store_dwordx4 v[8:11], v5, {WS}, s74 offen sc1")
        for h in range(4, 6):
            a(f"v_pk_mul_f32 {vr(R+2*h,2)}, {vr(R+2*h,2)}, v[6:7] op_sel_hi:[1,0]")
        for h in range(4, 6):
            a(f"v_cvt_pk_bf16_f32 v{8+h}, v{R+2*h}, v{R+2*h+1}")
        a(f"""s_mov_b32 exec_hi, 0
        buffer_store_dwordx2 v[12:13], v16, {WS}, s75 offen sc1
        s_mov_b64 exec, -1""")

    def o_loads(self):
        a = self.a
        a(f"""s_lshl_b32 s72, {sHALF}, 6
        s_lshl_b32 s73, {sWM}, 4
        s_add_u32 s72, s72, s73
        v_add_u32 v5, s72, {vN}
        v_lshlrev_b32 v6, 11, {vG}
        v_lshl_add_u32 v141, v5, 4, v6
        v_lshl_add_u32 v142, v5, 3, v6
        s_lshl_b32 s72, {sT}, 17
        s_add_u32 s72, s72, {sO}
        s_lshl_b32 s73, {sT}, 15
        s_add_u32 s73, s73, {sO}
        s_add_u32 s73, s73, {OXOFF}""")
        self.wait_lines("s34", 1, 16)
        self.stamp(12)
        for ks in range(16):
            a(f"buffer_load_dwordx4 {vr(GA+4*ks,4)}, v141, {WS}, s72 offen sc1")
            a("s_add_u32 s72, s72, 8192")
        for ks in range(16, 20):
            for i in range(2):
                a(f"buffer_load_dwordx2 {vr(GA+4*ks+2*i,2)}, v142, {WS}, s73 offen offset:{1024*i} sc1")
            a("s_add_u32 s73, s73, 8192")

    @staticmethod
    def o_wait(ks):
        return (15 - ks) + 8 if ks < 16 else 2 * (19 - ks)

    def res_load(self):
        a = self.a
        a(f"""s_mul_i32 s72, {sT}, 163840
        s_mul_i32 s73, {sCB}, 20480
        s_add_u32 s72, s72, s73
        s_lshl_b32 s73, {sHALF}, 7
        s_add_u32 s72, s72, s73
        s_lshl_b32 s73, {sWM}, 5
        s_add_u32 s72, s72, s73
        s_add_u32 s72, s72, {sXB}
        v_lshlrev_b32 v5, 8, {vN}
        v_lshl_add_u32 v5, {vG}, 3, v5""")
        for ct in range(5):
            a(f"buffer_load_dwordx2 {vr(GA+2*ct,2)}, v5, {WS}, s72 offen sc1")
            a("s_add_u32 s72, s72, 4096")

    def final_store(self):
        a = self.a
        a(f"""s_mul_i32 s72, {sWM}, {16*176}
        s_add_u32 s72, s72, {EP}
        v_mul_u32_u24 v5, 176, {vN}
        v_lshl_add_u32 v5, {vG}, 3, v5
        v_add_u32 v5, s72, v5""")
        for ct in range(5):
            a(f"v_cvt_pk_bf16_f32 v{16+2*ct}, v{GLO+4*ct}, v{GLO+4*ct+1}")
            a(f"v_cvt_pk_bf16_f32 v{17+2*ct}, v{GLO+4*ct+2}, v{GLO+4*ct+3}")
            a(f"ds_write_b64 v5, {vr(16+2*ct,2)} offset:{ct*32}")
        a(f"""s_and_b32 s73, {sT}, 7
        s_lshl_b32 s73, s73, 8
        s_lshr_b32 s74, {sT}, 3
        s_lshl_b32 s74, s74, 4
        s_add_u32 s73, s73, s74
        s_lshl_b32 s74, {sHALF}, 3
        s_add_u32 s73, s73, s74
        s_lshl_b32 s74, {sWM}, 1
        s_add_u32 s73, s73, s74
        s_mul_i32 s73, s73, 1280
        s_mul_i32 s74, {sCB}, 160
        s_add_u32 s73, s73, s74
        s_movk_i32 s74, 176
        s_movk_i32 s75, 1280""")
        for i in range(3):
            a(f"""v_add_u32 v5, {64*i}, {vL}
            v_mul_u32_u24 v6, 205, v5
            v_lshrrev_b32 v6, 11, v6
            v_mul_u32_u24 v7, 10, v6
            v_sub_u32 v5, v5, v7
            v_lshlrev_b32 v5, 4, v5
            v_mad_u32_u24 v{8+i}, v6, s74, v5
            v_add_u32 v{8+i}, s72, v{8+i}
            v_and_b32 v7, 7, v6
            v_lshrrev_b32 v6, 3, v6
            v_lshl_add_u32 v6, v7, 5, v6
            v_mad_u32_u24 v{12+i}, v6, s75, v5""")
        a("s_waitcnt lgkmcnt(0)")
        for i in range(3):
            a(f"ds_read_b128 {vr(28+4*i,4)}, v{8+i}")
        for i in range(3):
            if i == 2:
                a("s_mov_b32 exec_hi, 0")
            a(f"s_waitcnt lgkmcnt({2-i})")
            a(f"buffer_store_dwordx4 {vr(28+4*i,4)}, v{12+i}, {SOUT}, s73 offen")

    def build(self):
        a = self.a
        self.prologue()
        self.phase0()
        a(f"""s_mov_b32 {sXA}, {X0}
        s_mov_b32 {sXB}, {X0+XSZ}
        s_mov_b32 {sKV}, {KV0}
        s_mov_b32 {sO}, {OM0}
        s_mov_b32 {sSS}, {SS0}
        s_mov_b32 s35, 0
        Llayer:""")
        idle, cdone, l0, l1, l2, l3, l4, l5, l6, l7, l8, last = (a.lab("Lm") for _ in range(12))
        a(f"s_cmp_ge_u32 {sR}, 20\ns_cbranch_scc1 {idle}")
        self.col_consts()
        self.col_main()
        a(f"""s_branch {cdone}
        {idle}:
        s_cmp_lg_u32 {sLAYER}, 0
        s_cbranch_scc1 {l0}""")
        self.job_woh()
        a(f"s_branch {l1}\n{l0}:")
        self.job_images()
        a(f"s_add_u32 s72, {sSH}, {(F_IMG+1)*FSTRIDE}\ns_barrier")
        self.push("s72", 11, wave=0)
        a(f"{l1}:\nv_mov_b32 v19, 0\n{cdone}:")
        self.stamp(5)
        a(f"""s_waitcnt {"vmcnt(0) " if "drainc" in self.opts else ""}lgkmcnt(0)
        s_barrier
        s_cmp_ge_u32 {sR}, 20
        s_cbranch_scc1 {l8}
        s_mul_i32 s72, {sX}, 20
        s_add_u32 s72, s72, {sR}
        s_and_b32 s72, s72, 15
        s_lshl_b32 s72, s72, 7
        s_add_u32 s72, s72, {sFL}
        s_add_u32 s72, s72, {F_COL*FSTRIDE}""")
        self.push("s72", 11, wave=0)
        a(f"{l8}:")
        self.if_hi(l2)
        self.pre_flags()
        a(f"s_waitcnt vmcnt(2)\ns_mov_b64 exec, 15\nv_cmp_gt_u32 vcc, s89, v19\ns_mov_b64 exec, -1\ns_cbranch_vccz {l2}")
        self.wait_lines("s72", 4, "s89")
        a(f"{l2}:\ns_barrier\ns_mov_b32 s14, 0\nLqkv:")
        self.if_lo(l3)
        self.qkv_compute()
        a(f"s_branch {l4}\n{l3}:")
        self.qkv_helper()
        a(f"{l4}:")
        self.attention()
        self.stamp(11)
        a(f"""s_lshl_b32 s72, {sT}, 11
        s_add_u32 s72, s72, {sFL}
        s_add_u32 s72, s72, {F_O*FSTRIDE}
        s_lshl_b32 s34, {sG}, 7
        s_add_u32 s34, s34, s72
        s_waitcnt vmcnt(0)
        s_barrier""")
        self.push("s72", 7, wave=0)
        a(f"s_cmp_lg_u32 {sLAYER}, 0\ns_cbranch_scc1 {last}")
        self.if_lo(l5)
        a(f"s_cmp_ge_u32 {sR}, 20\ns_cbranch_scc1 {l6}")
        self.col_tables(sWM, 4)
        a(f"{l6}:")
        self.col_early()
        self.x_store_setup()
        a(f"""s_mul_i32 s84, {sT}, 163840
        s_mul_i32 s85, {sCB}, 20480
        s_add_u32 s84, s84, s85
        s_lshl_b32 s85, {sHALF}, 7
        s_add_u32 s84, s84, s85
        s_add_u32 s84, s84, {X0+2*XSZ}
        s_waitcnt lgkmcnt(0)
        s_barrier""")
        self.x_store("s84")
        a(f"s_branch {l7}\n{l5}:")
        self.col_early()
        self.ep_setup()
        self.o_loads()
        self.gcore(0, 20, False, False, True, self.o_wait)
        self.ep_write(False)
        a(f"""s_lshl_b32 s85, {sT}, 12
        s_lshl_b32 s86, {sCB}, 9
        s_add_u32 s85, s85, s86
        s_lshl_b32 s86, {sHALF}, 8
        s_add_u32 s85, s85, s86
        s_add_u32 s85, s85, {SS0+65536}
        s_waitcnt lgkmcnt(0)
        s_barrier""")
        self.ss_store(sCB, "s85")
        a(f"{l7}:")
        self.stamp(13)
        a(f"""s_mov_b32 {sLAYER}, 1
        s_mov_b32 {sXA}, {X0+2*XSZ}
        s_mov_b32 {sXB}, {X0+3*XSZ}
        s_mov_b32 {sKV}, {KV0+KVSZ}
        s_mov_b32 {sO}, {OM0+OSZ}
        s_mov_b32 {sSS}, {SS0+65536}
        s_mov_b32 {sFL}, {FLAGS+4*FSTRIDE}
        s_add_u32 s72, {sSH}, {sFL}
        {"s_waitcnt vmcnt(0)" if "drainx" in self.opts else ""}
        s_barrier""")
        self.push("s72", 11, wave=0)
        a(f"s_branch Llayer\n{last}:")
        self.if_hi("Lfin")
        self.o_loads()
        self.gcore(0, 20, False, True, True, self.o_wait)
        self.final_store()
        if self.stamps or self.probe is not None:
            a("s_mov_b64 exec, -1\ns_waitcnt vmcnt(0)")
            self.stamp(13)
        if self.probe is not None:
            a("""s_memrealtime s[90:91]
            s_sub_u32 s98, s98, s100
            Lspin:
            s_memrealtime s[92:93]
            s_waitcnt lgkmcnt(0)
            s_sub_u32 s92, s92, s90
            s_cmp_lt_u32 s92, s98
            s_cbranch_scc1 Lspin""")
        a("Lfin:")
        self.stamp_dump()
        a("s_endpgm")
        self.col_early_body()
        self.w_prefetch_body()
        a("Lend:\ns_endpgm")
        slow, done = self.slow_labels
        a(f"{slow}:")
        self.att_slow()
        a(f"s_branch {done}")
        for blk in self.cold:
            a(blk)
        return a.finalize()


def wrap(body):
    ref = open("cdna_kernels/" + NAME + ".s.ref").read()
    head = ref[:ref.index("; @launch")]
    out = head + "; @launch grid=(256,1,1) block=(512,1,1) lds=163840\n"
    out += f""".amdgcn_target "amdgcn-amd-amdhsa--gfx950"
.text
.globl {NAME}_kernel
.p2align 8
.type {NAME}_kernel,@function
{NAME}_kernel:
"""
    out += body
    out += ref[ref.index(".section .rodata"):]
    return out


if __name__ == "__main__":
    stamps = "--stamps" in sys.argv
    path = sys.argv[1]
    opts = [x[2:] for x in sys.argv[2:] if x.startswith("--")]
    g = Gen(stamps=stamps, opts=opts)
    txt = wrap(g.build())
    if "nosc1lds" in opts:
        txt = txt.replace(" sc1 lds", " lds")
    open(path, "w").write(txt)
    print("wrote", path, len(txt), "bytes; padded wait states", g.a.padded)
```

```python
import math, struct, sys
from asmlib import *
import attn as A
from attn import AR
from layout import *

NAME = "interleave_layers__spectral_gfnet__mha_block__prompt"


def fbits(x):
    return "0x%08x" % struct.unpack("<I", struct.pack("<f", x))[0]


WS, SX, SWF, SWQ, SWO, SOUT, SDBG = "s[20:23]", "s[24:27]", "s[28:31]", "s[36:39]", "s[40:43]", "s[44:47]", "s[48:51]"
sB, sWV, sX, sR, sT, sG, sHALF, sCB, sLAYER, sCB0, sTB0 = "s2", "s3", "s52", "s53", "s54", "s55", "s56", "s57", "s58", "s59", "s60"
sXA, sXB, sKV, sO, sSS, sFL, sSTAMP, sWM, sHI = "s61", "s62", "s63", "s64", "s65", "s66", "s67", "s68", "s69"
vTID, vL, vN, vG, vL16 = "v0", "v1", "v2", "v3", "v4"

AMP = math.sqrt(2.0 / 640)
QS = 20 ** -0.5 * math.log2(math.e)
SPIN = 1 << 16

XS, FI, EP, TB, TRS = 0, 81920, 133120, 145408, 157696
GA, GB, GLO, GHI = 164, 60, 144, 120
F_X, F_COL, F_KV, F_O, F_WQ, F_IMG, F_KMAX = 0, 1, 2, 3, 8, 9, 11
sSH, sREP = "s32", "s33"


class Gen:
    def __init__(self, stamps=False, opts=()):
        self.opts = set(opts)
        self.a = Asm()
        self.stamps = stamps
        self.stamp_init = False
        self.cold = []
        self.probe = next((int(o[5:]) for o in self.opts if o.startswith("probe")), None)
        self.stw = next((int(o[3:]) for o in self.opts if o.startswith("stw")), 0)
        self.pub = next((int(o[3:]) for o in self.opts if o.startswith("pub")), 1)

    def stamp(self, k):
        if self.probe is not None and k == self.probe % 16:
            l = self.a.lab("Lpb")
            self.a(f"""s_cselect_b32 s91, 1, 0
            s_cmp_lg_u32 {sLAYER}, {self.probe//16}
            s_cbranch_scc1 {l}
            s_memrealtime s[98:99]
            s_waitcnt lgkmcnt(0)
            {l}:
            s_cmp_lg_u32 s91, 0""")
        if not self.stamps:
            return
        a = self.a
        a(f"""s_memrealtime s[90:91]
        s_memtime s[96:97]
        s_mov_b32 s93, m0
        s_mul_i32 s92, {sLAYER}, 16
        s_bitset0_b32 s92, 31
        s_waitcnt lgkmcnt(0)
        s_cselect_b32 s91, 1, 0
        s_add_u32 m0, s92, {k}
        s_cmp_lg_u32 s91, 0
        v_writelane_b32 v252, s90, m0
        v_writelane_b32 v253, s96, m0
        s_mov_b32 m0, s93""")

    def stamp_dump(self):
        if not self.stamps:
            return
        a = self.a
        l = a.lab("Lst")
        a(f"""s_cmp_lg_u32 {sWM}, {self.stw}
        s_cbranch_scc1 {l}
        s_mov_b64 exec, -1
        v_lshlrev_b32 v254, 3, {vL}
        s_getreg_b32 s90, hwreg(HW_REG_XCC_ID)
        s_getreg_b32 s91, hwreg(HW_REG_HW_ID)
        v_writelane_b32 v252, s90, 32
        v_writelane_b32 v253, s91, 32
        s_mov_b32 exec_hi, 1
        buffer_store_dwordx2 v[252:253], v254, {WS}, {sSTAMP} offen
        {l}:""")

    def fstamp(self, grp, k):
        if "fine" + grp in self.opts:
            self.stamp(k)

    def if_lo(self, lab):
        self.a(f"s_cmp_lg_u32 {sHI}, 0\ns_cbranch_scc1 {lab}")

    def if_hi(self, lab):
        self.a(f"s_cmp_eq_u32 {sHI}, 0\ns_cbranch_scc1 {lab}")

    def prologue(self):
        a = self.a
        l0, l1, lp = a.lab("Lp"), a.lab("Lp"), a.lab("Lp")
        a(f"""s_cmp_ge_u32 {sB}, 256
        s_cbranch_scc1 Lend
        {"s_memrealtime s[100:101]" if self.probe is not None else ""}
        {"s_memrealtime s[98:99]" if self.probe is not None else ""}
        {"s_memrealtime s[90:91]" if self.stamps else ""}
        {"s_memtime s[96:97]" if self.stamps else ""}
        s_load_dwordx16 s[4:19], s[0:1], 0
        s_load_dwordx2 s[20:21], s[0:1], 64
        s_getpc_b64 s[72:73]
        Lpc:
        s_lshr_b32 {sR}, {sB}, 3
        v_lshlrev_b32 v6, 5, v0
        v_add_lshl_u32 v6, v6, {sR}, 7
        v_cmp_gt_u32 vcc, Lend-Lpc, v6
        s_and_saveexec_b64 s[74:75], vcc
        s_cbranch_execz {l0}
        v_mov_b32 v7, s73
        v_add_co_u32 v6, vcc, s72, v6
        v_addc_co_u32 v7, vcc, 0, v7, vcc
        global_load_dword v251, v[6:7], off
        {l0}:
        s_mov_b64 exec, s[74:75]
        v_lshrrev_b32 v5, 6, v0
        v_and_b32 {vL}, 63, v0
        v_readfirstlane_b32 {sWV}, v5
        v_and_b32 {vN}, 15, v0
        v_lshrrev_b32 {vG}, 4, {vL}
        s_and_b32 {sX}, {sB}, 7
        s_add_u32 s70, {sR}, {sX}
        s_and_b32 {sCB0}, s70, 7
        s_lshl_b32 s70, {sX}, 2
        s_lshr_b32 s71, {sR}, 3
        s_add_u32 {sTB0}, s70, s71
        s_lshr_b32 s80, {sTB0}, 1
        s_and_b32 s81, {sTB0}, 1
        s_mov_b32 s26, {XSZ}
        s_mov_b32 s27, 0x20000
        s_lshr_b32 {sHI}, {sWV}, 2
        s_cbranch_scc0 {l1}
        s_and_b32 s82, s80, 7
        s_lshl_b32 s82, s82, 5
        s_lshr_b32 s83, s80, 3
        s_lshl_b32 s83, s83, 1
        s_add_u32 s82, s82, s83
        s_add_u32 s82, s82, s81
        s_lshl_b32 s86, s82, 3
        s_add_u32 s84, {sWV}, {sCB0}
        s_and_b32 s84, s84, 7
        s_mov_b32 s85, 0""")
        self.dma_rows_setup(32 * 1280, 128 * 1280, "s84")
        a(f"""s_waitcnt lgkmcnt(0)
        s_mov_b64 s[24:25], s[4:5]
        {lp}:
        s_add_u32 s82, s86, s84
        s_mul_i32 s82, s82, 1280""")
        self.dma_rows_issue(SX, "s82", "s84")
        a(f"""s_xor_b32 s84, s84, 4
        s_xor_b32 s85, s85, 1
        s_cbranch_scc1 {lp}
        {l1}:
        v_lshlrev_b32 {vL16}, 4, {vL}
        v_mov_b32 v11, 0
        v_mov_b32 v16, 0
        s_and_b32 s70, {sX}, 3
        s_lshl_b32 s70, s70, 2
        s_and_b32 s71, {sR}, 3
        s_add_u32 {sT}, s70, s71
        s_lshr_b32 {sHALF}, {sX}, 2
        s_lshr_b32 {sCB}, {sR}, 2
        s_lshl_b32 s70, {sHALF}, 3
        s_add_u32 {sG}, s70, {sCB}
        s_mov_b32 {sLAYER}, 0
        s_and_b32 {sWM}, {sWV}, 3
        s_mov_b32 {sFL}, {FLAGS}
        s_and_b32 {sSH}, {sB}, 15
        s_lshl_b32 {sREP}, {sSH}, 11
        s_lshl_b32 {sSH}, {sSH}, 7
        s_mov_b32 s22, {WSEND}
        s_mov_b32 s23, 0x20000
        s_mov_b32 s30, {2048*642}
        s_mov_b32 s31, 0x20000
        s_mov_b32 s38, {640*3840}
        s_mov_b32 s39, 0x20000
        s_mov_b32 s42, {640*1280}
        s_mov_b32 s43, 0x20000
        s_mov_b32 s46, {XSZ}
        s_mov_b32 s47, 0x20000
        s_mov_b32 s50, 256
        s_mov_b32 s51, 0x20000
        s_waitcnt lgkmcnt(0)
        s_cmp_lt_u32 {sX}, 4
        s_cselect_b32 s28, s6, s8
        s_cselect_b32 s29, s7, s9
        s_mov_b64 s[36:37], s[12:13]
        s_mov_b64 s[40:41], s[14:15]
        s_mov_b64 s[44:45], s[16:17]
        s_mov_b64 s[48:49], s[18:19]""")
        if self.stamps:
            a(f"""s_lshl_b32 {sSTAMP}, {sB}, 1
            s_add_u32 {sSTAMP}, {sSTAMP}, {sHI}
            s_lshl_b32 {sSTAMP}, {sSTAMP}, 9
            s_add_u32 {sSTAMP}, {sSTAMP}, {STAMP}
            v_mov_b32 v252, -1
            v_mov_b32 v253, -1
            v_writelane_b32 v252, s90, 0
            v_writelane_b32 v253, s96, 0""")

    def poll(self, srd, vaddr, soff, nlanes, target, atomic=True):
        a = self.a
        lp, dn = a.lab("Lp"), a.lab("Ld")
        if atomic:
            ld = f"v_mov_b32 v6, 0\nbuffer_atomic_add v6, {vaddr}, {srd}, {soff} offen sc0 sc1"
        else:
            ld = f"buffer_load_dword v6, {vaddr}, {srd}, {soff} offen sc1"
        a(f"""s_mov_b32 s88, {SPIN}
        s_mov_b64 exec, {hex((1 << nlanes) - 1)}
        {lp}:
        {ld}
        s_sub_u32 s88, s88, 1
        s_cbranch_scc1 {dn}
        s_waitcnt vmcnt(0)
        v_cmpx_gt_u32 vcc, {target}, v6
        {f"s_cbranch_execnz {lp}" if atomic else f"s_cbranch_execz {dn}"}
        {"" if atomic else "s_sleep 12"}
        {"" if atomic else f"s_branch {lp}"}
        {dn}:
        s_waitcnt vmcnt(0)
        s_mov_b64 exec, -1""")

    def wait_lines(self, s_off, nlanes, target):
        self.a(f"v_lshlrev_b32 v5, 7, {vL}")
        self.poll(WS, "v5", s_off, nlanes, target)

    def push(self, s_off, shift, wave=None):
        a = self.a
        l = a.lab("Lsg")
        if wave is not None:
            a(f"s_cmp_lg_u32 {sWV}, {wave}\ns_cbranch_scc1 {l}")
        a(f"""v_lshlrev_b32 v5, {shift}, {vL}
        v_mov_b32 v6, 1
        s_mov_b64 exec, 0xffff
        buffer_atomic_add v6, v5, {WS}, {s_off} offen sc1
        s_mov_b64 exec, -1
        {l}:""")

    def gen_F(self, s_ct):
        a = self.a
        a(f"""s_mov_b32 s72, {s_ct}
        s_mul_i32 s73, {sCB0}, 80
        s_lshl_b32 s74, s72, 4
        s_add_u32 s73, s73, s74
        v_add_u32 v12, s73, {vN}
        v_lshrrev_b32 v14, 1, v12
        v_and_b32 v15, 1, v12
        v_cmp_ne_u32 vcc, 0, v12
        v_cndmask_b32 v14, 0x140, v14, vcc
        v_cmp_ne_u32 vcc, 1, v12
        v_cndmask_b32 v15, 0, v15, vcc
        v_cvt_f32_u32 v14, v14
        v_cvt_f32_u32 v15, v15
        v_lshlrev_b32 v13, 3, {vG}
        v_cvt_f32_u32 v13, v13
        v_mul_f32 v10, {fbits(1/640)}, v14
        v_mul_f32 v14, {fbits(1/20)}, v14
        v_mul_f32 v15, 0.25, v15
        v_fma_f32 v16, v13, v10, v15
        s_lshl_b32 s72, s72, 10
        s_add_u32 s72, s72, {FI}
        v_add_u32 v12, s72, {vL16}""".replace("0.25", fbits(0.25)))
        for e in range(1, 8):
            a(f"v_add_f32 v{16+e}, v{15+e}, v10")
        for h in range(4):
            a(f"v_pk_add_f32 {vr(24+2*h,2)}, {vr(16+2*h,2)}, v[14:15] op_sel_hi:[1,0]")
        a("v_cos_f32 v14, v14")
        for e in range(16):
            a(f"v_cos_f32 v{16+e}, v{16+e}")
        a("v_add_f32 v14, v14, v14")
        for ks in range(10):
            x, y, p = 16 + 8 * (ks % 2), 16 + 8 * ((ks + 1) % 2), 32 + 4 * (ks % 2)
            if ks >= 2:
                for h in range(4):
                    a(f"v_pk_fma_f32 {vr(x+2*h,2)}, {vr(y+2*h,2)}, v[14:15], {vr(x+2*h,2)} "
                      f"op_sel_hi:[1,0,1] neg_lo:[0,0,1] neg_hi:[0,0,1]")
            for h in range(4):
                a(f"v_cvt_pk_bf16_f32 v{p+h}, v{x+2*h}, v{x+2*h+1}")
            a(f"ds_write_b128 v12, {vr(p,4)} offset:{5120*ks}")

    def gcore(self, base, nks, dual, swap, init, await_a=None, hook=None):
        a = self.a
        a(f"v_add_u32 v6, {base}, {vL16}")
        if nks > 12:
            a(f"v_add_u32 v7, {base+61440}, {vL16}")

        def rd(ks, ct):
            reg, off = ("v6", ks * 5120) if ks < 12 else ("v7", (ks - 12) * 5120)
            return f"ds_read_b128 {vr(GB+20*(ks%3)+4*ct,4)}, {reg} offset:{off+ct*1024}"

        def mf(acc, ka, ks, ct, first):
            x, y = vr(GA + 4 * ka, 4), vr(GB + 20 * (ks % 3) + 4 * ct, 4)
            if swap:
                x, y = y, x
            d = vr(acc + 4 * ct, 4)
            return f"v_mfma_f32_16x16x32_bf16 {d}, {x}, {y}, {'0' if first else d}"
        for ks in range(2):
            for ct in range(5):
                a(rd(ks, ct))
        for ks in range(nks):
            w = f"lgkmcnt({5 if ks + 1 < nks else 0})"
            if await_a:
                w = f"vmcnt({await_a(ks)}) " + w
            a("s_waitcnt " + w)
            if hook and hook[0] == ks:
                hook[1]()
            for ct in range(5):
                a(mf(GLO, ks, ks, ct, ks == 0 and not init))
                if ks + 2 < nks:
                    a(rd(ks + 2, ct))
                if dual:
                    a(mf(GHI, ks + 10, ks, ct, ks == 0))

    def dual_setup(self, s_cb):
        a = self.a
        a(f"""v_mov_b32 v52, {fbits(AMP)}
        v_lshlrev_b32 v5, 30, {vN}
        v_and_b32 v5, 0x80000000, v5
        v_xor_b32 v54, v5, v52
        s_cmp_eq_u32 {s_cb}, 0
        s_cselect_b32 s72, 2, 0
        v_cmp_le_u32 vcc, s72, {vN}
        v_cndmask_b32 v56, {fbits(AMP/math.sqrt(2))}, v52, vcc
        v_xor_b32 v58, v5, v56""")

    def ep_setup(self):
        a = self.a
        a(f"""v_mul_u32_u24 v5, 144, {vN}
        v_lshl_add_u32 v5, {vG}, 3, v5
        s_lshl_b32 s72, {sWM}, 5
        s_add_u32 s72, s72, {EP}
        v_add_u32 v140, s72, v5""")

    def ep_write(self, dual):
        a = self.a
        for ct in range(5):
            if dual:
                p, q = (56, 58) if ct == 0 else (52, 54)
                for h in range(2):
                    lo, hi = vr(GLO + 4 * ct + 2 * h, 2), vr(GHI + 4 * ct + 2 * h, 2)
                    a(f"v_pk_mul_f32 {lo}, {lo}, {vr(p,2)} op_sel_hi:[1,0]")
                    a(f"v_pk_fma_f32 {lo}, {hi}, {vr(q,2)}, {lo} op_sel_hi:[1,0,1]")
            a(f"v_cvt_pk_bf16_f32 v{GB+2*ct}, v{GLO+4*ct}, v{GLO+4*ct+1}")
            a(f"v_cvt_pk_bf16_f32 v{GB+1+2*ct}, v{GLO+4*ct+2}, v{GLO+4*ct+3}")
            self.clean(GB + 2 * ct, 2)
            a(f"ds_write_b64 v140, {vr(GB+2*ct,2)} offset:{ct*16*144}")

    def ss_store(self, s_cb, s_ss):
        a = self.a
        R = GB + 16
        a(f"""s_cmp_eq_u32 {s_cb}, 0
        s_cselect_b32 s72, 1, 99
        v_cmp_ne_u32 vcc, s72, {vN}""")
        for h in range(2):
            x = vr(GLO + 4 + 2 * h, 2)
            a(f"v_pk_mul_f32 {vr(R+2*h,2)}, {x}, {x}")
        for r in range(4):
            a(f"v_cndmask_b32 v{GLO+r}, 0, v{GLO+r}, vcc")
        for ct in (2, 3, 4, 0):
            for h in range(2):
                x = vr(GLO + 4 * ct + 2 * h, 2)
                a(f"v_pk_fma_f32 {vr(R+2*h,2)}, {x}, {x}, {vr(R+2*h,2)}")
        for sh in (8, 4, 2, 1):
            for r in range(4):
                a(f"v_add_f32 v{R+r}, v{R+r}, v{R+r} row_ror:{sh} row_mask:0xf bank_mask:0xf")
        for r in range(4):
            a(f"v_or_b32 v{R+r}, 1, v{R+r}")
        a(f"""s_lshl_b32 s72, {sWM}, 6
        s_add_u32 s72, s72, {s_ss}
        s_mov_b32 exec_lo, 0x00010001
        s_mov_b32 exec_hi, 0x00010001
        buffer_store_dwordx4 {vr(R,4)}, {vL}, {WS}, s72 offen sc1
        s_mov_b64 exec, -1""")

    def x_store_setup(self):
        a = self.a
        a(f"""s_movk_i32 s79, 144
        v_lshrrev_b32 v5, 3, {vTID}
        v_and_b32 v6, 7, {vTID}
        v_lshlrev_b32 v6, 4, v6
        v_mad_u32_u24 v141, v5, s79, v6
        v_lshl_add_u32 v142, v5, 8, v6
        v_add_u32 v141, {EP}, v141""")

    def x_store(self, s_dst, fill=False):
        a = self.a
        l1 = a.lab("Le")
        R = GB + 24
        for i in range(3):
            if fill:
                for k in range(4):
                    a(f"v_mov_b32 v{R+4*i+k}, -1")
            else:
                a(f"ds_read_b128 {vr(R+4*i,4)}, v141 offset:{32*144*i}")
        a(f"s_add_u32 s72, {s_dst}, 8192\ns_add_u32 s73, {s_dst}, 16384")
        a(f"s_waitcnt lgkmcnt(2)\nbuffer_store_dwordx4 {vr(R,4)}, v142, {WS}, {s_dst} offen sc1")
        a(f"s_waitcnt lgkmcnt(1)\nbuffer_store_dwordx4 {vr(R+4,4)}, v142, {WS}, s72 offen sc1")
        a(f"""s_cmp_gt_u32 {sWV}, 1
        s_waitcnt lgkmcnt(0)
        s_cbranch_scc1 {l1}
        buffer_store_dwordx4 {vr(R+8,4)}, v142, {WS}, s73 offen sc1
        {l1}:""")

    def dma_rows(self, srd, rg, s_rh, s_base, s_set):
        self.dma_rows_setup(rg, s_rh, s_set)
        self.dma_rows_issue(srd, s_base, s_set)

    def dma_rows_setup(self, rg, s_rh, s_set):
        a = self.a
        a(f"""s_and_b32 s72, {s_set}, 1
        s_lshl_b32 s72, s72, 3
        v_add_u32 v5, s72, {vG}
        v_xor_b32 v5, v5, {vN}
        v_mul_u32_u24 v6, {rg}, {vG}
        v_lshl_add_u32 v8, v5, 4, v6
        v_xor_b32 v5, 4, v5
        v_lshl_add_u32 v9, v5, 4, v6
        v_add_u32 v9, {s_rh}, v9""")

    def dma_rows_issue(self, srd, s_base, s_set):
        a = self.a
        a(f"s_lshl_b32 s72, {s_set}, 11")
        for blk in range(5):
            for h in range(2):
                a(f"s_add_u32 m0, s72, {XS + blk*(16384-256) + h*1024}")
                a(f"buffer_load_dwordx4 v{8+h}, {srd}, {s_base} offen offset:{blk*256} lds")

    def read_rows_frags(self):
        a = self.a
        a(f"""s_lshl_b32 s72, {sWM}, 12
        v_xor_b32 v5, {vG}, {vN}
        v_lshlrev_b32 v5, 4, v5
        v_lshl_add_u32 v5, {vN}, 8, v5
        v_add_u32 v60, s72, v5""")
        for c in range(1, 4):
            a(f"v_xor_b32 v{60+c}, {64*c}, v60")
        for ks in range(20):
            if ks == 16:
                for c in range(4):
                    a(f"v_add_u32 v{64+c}, 0x10000, v{60+c}")
            if ks < 16:
                a(f"ds_read_b128 {vr(GA+4*ks,4)}, v{60+ks%4} offset:{XS+(ks//4)*16384}")
            else:
                a(f"ds_read_b128 {vr(GA+4*ks,4)}, v{64+ks%4} offset:{XS}")

    def wf_setup(self):
        a = self.a
        a(f"""s_lshl_b32 s19, {sX}, 5
        s_add_u32 s19, s19, {sR}
        s_bfe_u32 s72, s19, 0x20005
        s_and_b32 s76, s72, 1
        s_lshl_b32 s76, s76, 5
        s_and_b32 s73, s19, 16
        s_add_u32 s76, s76, s73
        s_lshr_b32 s73, s72, 1
        s_add_u32 s76, s76, s73
        s_and_b32 s73, s19, 12
        s_lshl_b32 s73, s73, 7
        s_add_u32 s76, s76, s73
        s_mul_i32 s76, s76, 642
        s_and_b32 s75, s19, 3
        s_mul_i32 s75, s75, 160
        s_lshl_b32 s73, {sWM}, 4
        s_add_u32 s13, s75, s73
        s_and_b32 s73, s72, 2
        s_add_u32 s13, s13, s73
        s_add_u32 s76, s76, s13
        v_lshrrev_b32 v5, 3, {vL}
        v_and_b32 v6, 7, {vL}
        v_lshl_add_u32 v5, v6, 5, v5
        v_mul_u32_u24 v244, 1284, v5
        s_mov_b32 s18, s76""")

    def wf_loads(self):
        a = self.a
        skip = a.lab("Lw")
        a(f"""buffer_load_dwordx4 v[164:167], v244, {SWF}, s18 offen
        buffer_load_dwordx4 v[168:171], v244, {SWF}, s18 offen offset:64
        s_cmp_gt_u32 {sWM}, 1
        s_cbranch_scc1 {skip}
        buffer_load_dwordx4 v[172:175], v244, {SWF}, s18 offen offset:128
        s_cmp_lg_u32 s13, 0
        s_cbranch_scc1 {skip}
        buffer_load_ushort v176, v244, {SWF}, s18 offen offset:640
        {skip}:""")

    def wf_setup2(self):
        a = self.a
        a(f"""s_bfe_u32 s72, s19, 0x20005
        s_lshl_b32 s72, s72, 11
        s_lshr_b32 s73, s19, 7
        s_lshl_b32 s73, s73, 10
        s_add_u32 s72, s72, s73
        s_bfe_u32 s73, s19, 0x20002
        s_lshl_b32 s73, s73, 8
        s_add_u32 s72, s72, s73
        s_bfe_u32 s73, s19, 0x10004
        s_lshl_b32 s73, s73, 7
        s_add_u32 s72, s72, s73
        s_add_u32 s72, s72, {WF}
        s_lshl_b32 s74, {sWM}, 10
        s_add_u32 s74, s74, {TRS}
        v_lshrrev_b32 v5, 3, {vL}
        v_and_b32 v6, 7, {vL}
        v_xor_b32 v7, v5, v6
        v_lshl_add_u32 v7, v7, 4, s74
        v_lshl_add_u32 v245, v6, 7, v7
        v_lshl_add_u32 v250, v5, 7, v7
        v_add_u32 v246, s74, {vL16}
        v_lshlrev_b32 v247, 4, v6
        s_lshr_b32 s73, s13, 1
        v_add_u32 v5, s73, v5
        v_cmp_ne_u32 vcc, 0x100, v5
        v_lshl_add_u32 v247, v5, 13, v247
        v_subrev_u32 v249, {320*8192}, v247
        v_cndmask_b32 v249, v249, v247, vcc
        v_add_u32 v249, {64*8192}, v249""")
        a(f"""v_bfe_u32 v5, {vL}, 1, 1
        v_lshl_add_u32 v5, {vG}, 1, v5
        v_bfe_u32 v6, {vL}, 2, 2
        v_lshl_add_u32 v5, v5, 3, v6
        v_and_b32 v6, 1, {vL}
        v_lshlrev_b32 v6, 3, v6
        v_lshl_add_u32 v5, v5, 4, v6
        v_add_u32 v248, s74, v5
        s_mov_b32 s17, s72""")

    def wf_stores(self):
        a = self.a
        nop = a.lab("Lw")
        a(f"""s_cmp_lg_u32 s13, 0
        s_cbranch_scc1 {nop}
        v_and_b32 v164, 0xffff0000, v164
        v_or_b32 v164, v164, v176
        {nop}:""")
        for rnd in range(3):
            a(f"ds_write_b128 v246, {vr(164+4*rnd,4)}")
            for i in range(2):
                a(f"ds_read_b64_tr_b16 {vr(164+4*rnd+2*i,2)}, v248 offset:{64*i}")
        for rnd in range(3):
            a(f"s_waitcnt lgkmcnt({(6, 5, 4)[rnd]})")
            a(f"ds_write_b128 v245, {vr(164+4*rnd,4)}")
            a(f"ds_read_b128 {vr(164+4*rnd,4)}, v250")
        skip = a.lab("Lw")
        a("s_waitcnt lgkmcnt(0)")
        for rnd in range(3):
            if rnd == 2:
                a(f"s_cmp_gt_u32 {sWM}, 1\ns_cbranch_scc1 {skip}")
            a(f"buffer_store_dwordx4 {vr(164+4*rnd,4)}, {'v249' if rnd == 2 else 'v247'}, {WS}, {'s74' if rnd == 1 else 's17'} offen sc1")
            a(f"s_add_u32 s74, s17, {32*8192}")
        a(f"{skip}:")

    def wq_setup(self):
        a = self.a
        a(f"""v_lshrrev_b32 v5, 3, {vL}
        v_bfe_u32 v6, {vL}, 4, 1
        s_and_b32 s72, {sWV}, 1
        s_lshl_b32 s72, s72, 1
        v_or_b32 v6, s72, v6
        v_lshlrev_b32 v6, 1, v6
        v_and_b32 v7, 7, {vL}
        v_xor_b32 v6, v6, v7
        v_mul_u32_u24 v5, 3840, v5
        v_lshl_add_u32 v58, v6, 4, v5
        s_mul_i32 s72, {sWM}, {8*3840}
        s_lshl_b32 s73, {sTB0}, 7
        s_add_u32 s72, s72, s73
        s_lshl_b32 s73, {sWM}, 10""")

    def wq_dma(self, first, last):
        a = self.a
        for it in range(first, last):
            a(f"s_add_u32 m0, s73, {XS + it*4096}")
            a(f"buffer_load_dwordx4 v58, {SWQ}, s72 offen lds")
            a(f"s_add_u32 s72, s72, {32*3840}")

    def arrive(self, last, s_off, slot=0):
        a = self.a
        l = a.lab("Lar")
        a(f"""v_mov_b32 v5, {TRS+4096+4*slot}
        v_mov_b32 v6, 1
        s_mov_b64 exec, 1
        ds_add_rtn_u32 v7, v5, v6
        s_waitcnt lgkmcnt(0)
        v_cmp_eq_u32 vcc, {last}, v7
        s_mov_b64 exec, -1
        s_cbranch_vccz {l}""")
        self.push(s_off, 11)
        a(f"{l}:")

    def fill_cols(self, s0, s1, r):
        a = self.a
        for i in range(4):
            a(f"v_mov_b32 v{r+i}, -1")
        for so in (s0, s1):
            for i in range(2):
                a(f"buffer_store_dwordx4 {vr(r,4)}, v11, {WS}, {so} offen offset:{512*i} sc1")

    def clean(self, r, n):
        for i in range(n):
            self.a(f"v_min_u32 v{r+i}, -2, v{r+i}")

    def umax(self, dst, regs):
        out, regs = [], list(regs)
        out.append(f"v_max3_u32 v{dst}, v{regs[0]}, v{regs[1]}, v{regs[2]}")
        regs = regs[3:]
        while regs:
            if len(regs) == 1:
                out.append(f"v_max_u32 v{dst}, v{dst}, v{regs[0]}")
            else:
                out.append(f"v_max3_u32 v{dst}, v{dst}, v{regs[0]}, v{regs[1]}")
            regs = regs[2:]
        return out

    def half_sync(self, slot, add=True):
        a = self.a
        lp = a.lab("Lhs")
        a(f"""v_mov_b32 v5, {TRS+4096+4*slot}
        v_mov_b32 v6, 1
        s_mov_b64 exec, 1
        {"ds_add_u32 v5, v6" if add else ""}
        {lp}:
        ds_read_b32 v6, v5
        s_waitcnt lgkmcnt(0)
        v_cmp_gt_u32 vcc, 4, v6
        s_cbranch_vccnz {lp}
        s_mov_b64 exec, -1""")

    def phase0(self):
        a = self.a
        z0, z1, z2, z3, z4, z5, l1, l2, l3, l5, l6, l7, l8, l9, l10 = (a.lab("Lq") for _ in range(15))
        dest = f"""s_mul_i32 s84, s80, 163840
        s_mul_i32 s85, {sCB0}, 20480
        s_add_u32 s84, s84, s85
        s_lshl_b32 s85, s81, 7
        s_add_u32 s84, s84, s85
        s_add_u32 s84, s84, {X0}
        s_lshl_b32 s85, s80, 12
        s_lshl_b32 s86, {sCB0}, 9
        s_add_u32 s85, s85, s86
        s_lshl_b32 s86, s81, 8
        s_add_u32 s85, s85, s86
        s_add_u32 s85, s85, {SS0}"""
        self.if_hi(z0)
        self.fstamp("0", 14)
        a(f"""s_mul_i32 s72, {sCB0}, 80
        s_mul_i32 s73, {sWM}, 20
        s_add_u32 s72, s72, s73
        s_mul_i32 s72, s72, 3840
        s_lshl_b32 s73, {sTB0}, 7
        s_add_u32 s72, s72, s73
        v_mul_u32_u24 v5, 3840, {vL}
        s_mov_b64 exec, 0xfffff
        s_waitcnt vmcnt(6)
        buffer_load_dword v251, v5, {SWQ}, s72 offen
        s_mov_b64 exec, -1""")
        self.fstamp("0", 15)
        a(f"""s_branch {l3}
        {z0}:
        s_cmp_lg_u32 {sWV}, 3
        s_cbranch_scc1 {z4}
        {dest}
        s_lshl_b32 s70, {sB}, 7
        v_lshrrev_b32 v5, 2, {vL}
        v_and_b32 v6, 3, {vL}
        v_lshlrev_b32 v6, 4, v6
        v_lshl_add_u32 v5, v5, 15, v6
        v_mov_b32 v60, 0
        v_mov_b32 v61, 0
        v_mov_b32 v62, 0
        v_mov_b32 v63, 0
        v_mov_b32 v6, {TRS+4096}
        s_lshl_b32 s71, {sB}, 10
        s_add_u32 s71, s71, {SQ0}
        buffer_store_dwordx4 v[60:63], {vL16}, {WS}, s71 offen sc1
        s_bfm_b64 exec, {4*NFLAG}, 0
        buffer_store_dwordx4 v[60:63], v5, {WS}, s70 offen sc1
        s_lshl_b32 s71, {sB}, 8
        s_add_u32 s71, s71, {SS0+65536}
        s_mov_b64 exec, 0xffff
        buffer_store_dwordx4 v[60:63], {vL16}, {WS}, s71 offen sc1
        buffer_store_dwordx4 v[60:63], {vL16}, {WS}, s85 offen sc1
        ds_write_b128 v6, v[60:63]
        ds_write_b128 v6, v[60:63] offset:16
        s_mov_b64 exec, -1
        {z4}:""")
        a(f"s_mov_b32 s15, {sWV}\n{z5}:")
        self.gen_F("s15")
        a(f"""s_add_u32 s15, s15, 4
        s_cmp_eq_u32 s15, 4
        s_cbranch_scc1 {z5}
        s_cmp_ge_u32 {sR}, 20
        s_cbranch_scc1 {l9}
        s_sub_u32 s15, {sWV}, 1
        s_cmp_ge_u32 s15, 2
        s_cbranch_scc1 {l9}""")
        self.col_tables("s15", 2)
        a(f"""{l9}:
        {dest}
        """)
        self.fstamp("0", 15)
        a(f"""s_cmp_lg_u32 {sWV}, 3
        s_cbranch_scc1 {z3}
        s_and_b32 s70, {sB}, 1
        s_lshl_b32 s70, s70, 7
        v_mov_b32 v60, 0
        v_mov_b32 v61, 1
        s_mov_b64 exec, 1
        s_waitcnt vmcnt(0)
        buffer_atomic_add v61, v60, {SDBG}, s70 offen sc1
        s_mov_b64 exec, -1
        {z3}:
        s_waitcnt lgkmcnt(0)
        s_barrier""")
        self.stamp(1)
        self.read_rows_frags()
        self.dual_setup(sCB0)
        self.ep_setup()
        self.x_store_setup()
        a("s_waitcnt lgkmcnt(0)\ns_barrier")
        self.fstamp("0", 16)
        a(f"v_lshlrev_b32 v143, 7, {vL}\ns_movk_i32 s89, 128")
        self.gcore(FI, 10, True, False, False)
        self.fstamp("0", 17)
        self.ep_write(True)
        self.fstamp("0", 18)
        self.half_sync(1)
        self.x_store("s84")
        self.ss_store(sCB0, "s85")
        self.fstamp("0", 19)
        self.fstamp("1", 19)
        self.wf_setup()
        lw, lh = a.lab("Lq"), a.lab("Lq")
        a(f"s_cmp_lg_u32 {sWV}, 3\ns_cbranch_scc1 {lh}")
        self.poll(SDBG, "v143", "0", 2, "s89", atomic=False)
        a(f"{lh}:")
        self.fstamp("1", 14)
        self.wf_loads()
        self.wf_setup2()
        self.fstamp("1", 15)
        a(f"s_cmp_lt_u32 {sWV}, 2\ns_cbranch_scc1 {lw}\ns_waitcnt vmcnt(2)\n{lw}:\ns_waitcnt vmcnt(3)")
        self.fstamp("1", 16)
        self.arrive(3, sSH)
        self.stamp(2)
        self.half_sync(3)
        self.col_early()
        a("s_waitcnt vmcnt(0)")
        self.fstamp("1", 17)
        self.wf_stores()
        self.stamp(3)
        a(f"s_branch {l8}\n{l3}:")
        a("s_waitcnt vmcnt(1)\ns_barrier")
        self.stamp(1)
        self.wf_setup()
        self.wq_setup()
        a("s_barrier")
        self.wq_dma(0, 20)
        lt, lu = a.lab("Lq"), a.lab("Lq")
        a(f"""s_cmp_eq_u32 {sWM}, 3
        s_cbranch_scc1 {lt}
        s_mul_i32 s73, {sWM}, 62
        s_add_u32 s73, s73, s18
        s_andn2_b32 s73, s73, 3
        buffer_load_dword v251, v244, {SWF}, s73 offen
        s_branch {lu}
        {lt}:
        s_mul_i32 s72, {sB}, 3200
        v_lshlrev_b32 v5, 7, {vL}
        s_bfm_b64 exec, 25, 0
        buffer_load_dword v251, v5, {SWO}, s72 offen
        s_mov_b64 exec, -1
        {lu}:""")
        self.fstamp("0", 17)
        self.job_wq_setup()
        a("s_mov_b32 s78, s72")
        self.col_early()
        a("s_mov_b32 s72, s78")
        a("s_waitcnt vmcnt(1)")
        self.fstamp("0", 18)
        self.half_sync(2)
        self.stamp(2)
        self.job_wq()
        self.half_sync(3, add=False)
        self.stamp(3)
        a(f"{l8}:")

    def job_wq_setup(self):
        a = self.a
        a(f"""v_bfe_u32 v5, {vL}, 2, 2
        v_lshl_add_u32 v6, {vG}, 3, v5
        v_lshlrev_b32 v6, 7, v6
        v_lshrrev_b32 v5, 1, v5
        v_and_b32 v7, 1, {vG}
        v_lshl_add_u32 v5, v7, 1, v5
        v_xor_b32 v5, {sWM}, v5
        v_lshl_add_u32 v6, v5, 5, v6
        v_and_b32 v5, 3, {vL}
        v_lshl_add_u32 v56, v5, 3, v6
        v_add_u32 v57, 0xa000, v56""")
        a(f"""s_lshl_b32 s72, {sTB0}, 6
        s_lshl_b32 s73, {sWM}, 4
        s_add_u32 s72, s72, s73
        v_add_u32 v5, s72, {vN}
        s_cmp_ge_u32 {sTB0}, 10
        s_cselect_b32 s74, 1, 0
        s_cmp_ge_u32 {sTB0}, 20
        s_cselect_b32 s74, 2, s74
        s_mul_i32 s73, s74, 640
        v_subrev_u32 v5, s73, v5
        v_mul_u32_u24 v6, 3277, v5
        v_lshrrev_b32 v6, 16, v6
        v_mul_u32_u24 v7, 20, v6
        v_sub_u32 v7, v5, v7
        v_lshrrev_b32 v52, 1, v6
        s_mov_b32 s73, 163840
        v_mul_lo_u32 v52, v52, s73
        v_and_b32 v6, 1, v6
        v_lshl_add_u32 v52, v6, 11, v52
        s_lshl_b32 s75, s74, 4
        v_add_u32 v53, s75, v7
        s_lshl_b32 s75, s74, 2
        s_add_u32 s75, s75, 48
        v_add_u32 v55, s75, v7
        v_cmp_gt_u32 vcc, 16, v7
        v_cndmask_b32 v53, v55, v53, vcc
        v_add_u32 v55, 72, v7
        s_cmp_eq_u32 s74, 2
        s_cselect_b64 vcc, -1, 0
        v_cndmask_b32 v53, v53, v55, vcc
        v_lshl_add_u32 v52, v53, 4, v52
        v_lshrrev_b32 v5, 1, {vG}
        v_lshl_add_u32 v52, v5, 9, v52
        v_and_b32 v5, 1, {vG}
        v_lshl_add_u32 v52, v5, 12, v52
        s_cmp_eq_u32 s74, 0
        s_cselect_b32 s75, {fbits(AMP*QS)}, s87
        s_mul_i32 s72, {sCB0}, 20480
        s_add_u32 s72, s72, {WQ}
        v_mov_b32 v54, s75""".replace("s_cmp_eq_u32 s74, 0", f"s_mov_b32 s87, {fbits(AMP)}\ns_cmp_eq_u32 s74, 0"))

    def job_wq(self):
        a = self.a
        end = a.lab("Lb")
        for ks in range(20):
            for i in range(2):
                reg, off = ("v56", ks * 4096) if ks < 10 else ("v57", (ks - 10) * 4096)
                a(f"ds_read_b64_tr_b16 {vr(GA+4*ks+2*i,2)}, {reg} offset:{XS+off+i*512}")
        a(f"v_mov_b32 v5, {TRS+4096+16}\nv_mov_b32 v6, 1\ns_mov_b64 exec, 1\nds_add_u32 v5, v6\ns_mov_b64 exec, -1")
        a(f"s_cmp_ge_u32 {sTB0}, 30\ns_cbranch_scc1 {end}")
        self.gcore(FI, 10, True, True, False)
        for ct in range(5):
            lo, hi = GLO + 4 * ct, GHI + 4 * ct
            a(f"v_pk_add_f32 {vr(lo,2)}, {vr(lo,2)}, {vr(hi,2)}")
            a(f"v_pk_add_f32 {vr(lo+2,2)}, {vr(lo+2,2)}, {vr(hi+2,2)} neg_lo:[0,1] neg_hi:[0,1]")
            for h in range(2):
                a(f"v_pk_mul_f32 {vr(lo+2*h,2)}, {vr(lo+2*h,2)}, v[54:55] op_sel_hi:[1,0]")
        a(f"""s_cmp_eq_u32 {sCB0}, 0
        s_cselect_b32 s73, 16, 0
        v_cmp_le_u32 vcc, s73, {vL}
        v_mul_f32 v5, {fbits(1/math.sqrt(2))}, v{GLO}
        v_cndmask_b32 v{GLO}, v5, v{GLO}, vcc
        v_cndmask_b32 v{GLO+1}, 0, v{GLO+1}, vcc""")
        for ct in range(5):
            a(f"v_cvt_pk_bf16_f32 v{GB+2*ct}, v{GLO+4*ct}, v{GLO+4*ct+1}")
            a(f"v_cvt_pk_bf16_f32 v{GB+1+2*ct}, v{GLO+4*ct+2}, v{GLO+4*ct+3}")
        for p in range(3):
            a(f"v_permlane16_swap_b32 v{GB+4*p}, v{GB+2+4*p}")
            a(f"v_permlane16_swap_b32 v{GB+1+4*p}, v{GB+3+4*p}")
            if p == 2:
                a("s_mov_b32 exec_lo, 0xffff\ns_mov_b32 exec_hi, 0xffff")
            a(f"buffer_store_dwordx4 {vr(GB+4*p,4)}, v52, {WS}, s72 offen sc1")
            a("s_add_u32 s72, s72, 8192")
        a(f"s_mov_b64 exec, -1\n{end}:")

    def job_images(self):
        a = self.a
        l3 = a.lab("Lc")
        a(f"""s_sub_u32 s80, {sR}, 20
        s_lshl_b32 s80, s80, 3
        s_add_u32 s80, s80, {sX}
        s_lshl_b32 s80, s80, 3
        s_add_u32 s80, s80, {sWV}
        s_mov_b32 s77, {fbits(1/640)}
        {l3}:
        s_mul_i32 s81, s80, 656
        s_lshr_b32 s81, s81, 16
        s_mul_i32 s82, s81, 100
        s_sub_u32 s82, s80, s82
        s_mul_i32 s83, s82, 205
        s_lshr_b32 s83, s83, 10
        s_mul_i32 s84, s83, 5
        s_sub_u32 s84, s82, s84
        s_mul_i32 s81, s81, 80
        s_lshl_b32 s84, s84, 4
        s_add_u32 s81, s81, s84
        v_add_u32 v8, s81, {vN}
        s_mul_i32 s84, s83, 40
        s_sub_u32 s85, s83, 16
        s_mul_i32 s85, s85, 160
        s_add_u32 s85, s85, 16
        s_cmp_lt_u32 s83, 16
        s_cselect_b32 s84, s84, s85
        s_cselect_b32 s85, 8, 20
        s_cselect_b64 vcc, -1, 0
        v_lshrrev_b32 v5, 1, {vG}
        v_mul_u32_u24 v5, 20, v5
        v_and_b32 v6, 1, {vG}
        v_lshl_add_u32 v5, v6, 2, v5
        v_mul_u32_u24 v6, 40, {vG}
        v_cndmask_b32 v5, v6, v5, vcc
        v_mul_u32_u24 v5, 1280, v5
        v_lshl_add_u32 v5, v8, 1, v5
        s_mul_i32 s84, s84, 1280
        s_mul_i32 s85, s85, 1280
        s_add_u32 s85, s85, s84""")
        for e in range(8):
            a(f"buffer_load_ushort v{32+e}, v5, {SWO}, {'s84' if e < 4 else 's85'} offen offset:{1280*(e%4)}")
        a(f"""v_and_b32 v5, 1, {vG}
        v_lshrrev_b32 v6, 1, {vG}
        v_lshlrev_b32 v5, 3, v5
        v_lshl_add_u32 v5, v6, 2, v5
        s_lshl_b32 s84, s83, 4
        v_add_u32 v5, s84, v5
        v_cmp_ne_u32 vcc, 0, v5
        v_cndmask_b32 v12, 0x140, v5, vcc""")
        for e in range(1, 4):
            a(f"v_add_u32 v{12+e}, {e}, v5")
        for e in range(4):
            a(f"v_mul_u32_u24 v{12+e}, v{12+e}, v8")
            a(f"v_cvt_f32_u32 v{12+e}, v{12+e}")
            a(f"v_mul_f32 v{12+e}, s77, v{12+e}")
            a(f"v_fract_f32 v{12+e}, v{12+e}")
            a(f"v_cos_f32 v{16+2*e}, v{12+e}")
            a(f"v_sin_f32 v{17+2*e}, -v{12+e}")
        a(f"""v_mul_f32 v5, {fbits(1/math.sqrt(2))}, v16
        v_cndmask_b32 v16, v5, v16, vcc
        v_cndmask_b32 v17, {fbits(1/math.sqrt(2))}, v17, vcc""")
        for e in range(4):
            a(f"v_cvt_pk_bf16_f32 v{24+e}, v{16+2*e}, v{17+2*e}")
        a(f"""s_lshl_b32 s84, s80, 10
        s_add_u32 s85, s84, {FT}
        s_add_u32 s84, s84, {WOT}
        buffer_store_dwordx4 v[24:27], {vL16}, {WS}, s85 offen sc1
        s_waitcnt vmcnt(1)
        v_lshl_or_b32 v28, v33, 16, v32
        v_lshl_or_b32 v29, v35, 16, v34
        v_lshl_or_b32 v30, v37, 16, v36
        v_lshl_or_b32 v31, v39, 16, v38
        buffer_store_dwordx4 v[28:31], {vL16}, {WS}, s84 offen sc1
        s_add_u32 s80, s80, 768
        s_cmp_lt_u32 s80, 800
        s_waitcnt vmcnt(0)
        s_cbranch_scc1 {l3}""")

    def job_woh(self):
        a = self.a
        l0, l1, l2, l3, l4 = (a.lab("Lc") for _ in range(5))
        self.wq_done()
        self.if_lo(l0)
        a(f"""s_sub_u32 s80, {sR}, 12
        s_cmp_ge_u32 {sR}, 24
        s_cselect_b32 s80, {sX}, s80
        s_cmp_ge_u32 s80, 10
        s_cbranch_scc1 {l0}""")
        self.half_sync(4, add=False)
        a(f"""s_mov_b32 s14, {sWV}
        {l3}:
        s_lshl_b32 s81, s80, 1
        s_lshr_b32 s82, s14, 2
        s_add_u32 s81, s81, s82
        s_and_b32 s82, s14, 3
        s_lshl_b32 s83, s81, 1
        s_lshr_b32 s84, s82, 1
        s_add_u32 s83, s83, s84
        s_mul_i32 s83, s83, 20
        s_and_b32 s84, s82, 1
        s_lshl_b32 s84, s84, 2
        s_add_u32 s83, s83, s84
        s_sub_u32 s84, s81, 16
        s_lshl_b32 s84, s84, 3
        s_lshl_b32 s85, s82, 1
        s_add_u32 s84, s84, s85
        s_mul_i32 s84, s84, 20
        s_add_u32 s84, s84, 16
        s_cmp_lt_u32 s80, 8
        s_cselect_b32 s82, s83, s84
        s_cselect_b32 s83, 8, 20
        s_mul_i32 s82, s82, 1280
        s_mul_i32 s83, s83, 1280""")
        self.dma_rows(SWO, 1280, "s83", "s82", "s14")
        a(f"s_add_u32 s14, s14, 4\ns_cmp_lt_u32 s14, 8\ns_cbranch_scc1 {l3}\ns_waitcnt vmcnt(0)")
        self.half_sync(5)
        self.read_rows_frags()
        self.gcore(FI, 10, True, False, False)
        self.ep_write(True)
        self.half_sync(6)
        a(f"""s_mul_i32 s81, {sCB0}, 102400
        s_mul_i32 s82, s80, 10240
        s_add_u32 s81, s81, s82
        s_add_u32 s81, s81, {WOH}
        v_mul_u32_u24 v5, 144, {vN}
        v_lshl_add_u32 v5, {vG}, 4, v5
        s_mov_b32 s82, {sWV}
        {l2}:
        s_cmp_ge_u32 s82, 5
        s_cselect_b32 s83, {64 - 5*16*144}, 0
        s_mul_i32 s84, s82, {16*144}
        s_add_u32 s83, s83, s84
        s_add_u32 s83, s83, {EP}
        v_add_u32 v6, s83, v5
        ds_read_b128 v[8:11], v6
        s_lshl_b32 s84, s82, 10
        s_add_u32 s84, s84, s81
        s_add_u32 s82, s82, 4
        s_cmp_lt_u32 s82, 10
        s_waitcnt lgkmcnt(0)
        buffer_store_dwordx4 v[8:11], {vL16}, {WS}, s84 offen sc1
        s_cbranch_scc1 {l2}
        {l0}:""")

    def wq_done(self):
        self.a(f"s_add_u32 s72, {sSH}, {F_WQ*FSTRIDE}\ns_waitcnt vmcnt(0)")
        self.arrive(7, "s72", 7)

    def unpack(self, dst, src, n):
        for i in range(n):
            self.a(f"v_lshlrev_b32 v{dst+2*i}, 16, v{src+i}")
            self.a(f"v_and_b32 v{dst+2*i+1}, 0xffff0000, v{src+i}")

    def cmul_pack(self, c, s):
        a = self.a
        for e in range(8 if "plain" in self.opts else 0):
            dr, di, tr, ti = (f"v{x+e}" for x in (self.DR, self.DI, self.TR, self.TI))
            a(f"v_mul_f32 {tr}, {dr}, v{c+e}\nv_mul_f32 {ti}, {di}, v{c+e}")
            a(f"v_fma_f32 {tr}, -{di}, v{s+e}, {tr}\nv_fmac_f32 {ti}, {dr}, v{s+e}")
        for h in range(0 if "plain" in self.opts else 4):
            dr, di, tr, ti = (vr(x + 2 * h, 2) for x in (self.DR, self.DI, self.TR, self.TI))
            cc, ss = vr(c + 2 * h, 2), vr(s + 2 * h, 2)
            a(f"v_pk_mul_f32 {tr}, {dr}, {cc}")
            a(f"v_pk_mul_f32 {ti}, {di}, {cc}")
            a(f"v_pk_fma_f32 {tr}, {di}, {ss}, {tr} neg_lo:[1,0,0] neg_hi:[1,0,0]")
            a(f"v_pk_fma_f32 {ti}, {dr}, {ss}, {ti}")
        for h in range(4):
            a(f"v_cvt_pk_bf16_f32 v{self.BR+h}, v{self.TR+2*h}, v{self.TR+2*h+1}")
            a(f"v_cvt_pk_bf16_f32 v{self.BI+h}, v{self.TI+2*h}, v{self.TI+2*h+1}")

    def mm(self, d, x, y, first):
        self.a(f"v_mfma_f32_16x16x32_bf16 {vr(d,4)}, {vr(x,4)}, {vr(y,4)}, {'0' if first else vr(d,4)}")

    RS, ZS, EX = EP, 81920, 98304
    T1C, T1S, T2C, T2S = 20, 28, 36, 44
    C1, S1, N1, C2, S2, N2, S4E, C4O, S4O = 52, 56, 60, 64, 72, 80, 88, 96, 104
    WRAW, WR, WI = 112, 120, 128
    URAW, R0, R1, RS0, RS1, DR, DI, TR, TI, BR, BI, AF = 136, 144, 152, 160, 168, 176, 184, 192, 200, 208, 212, 216

    def col_tables(self, s_first, step):
        a = self.a
        lp = a.lab("Lk")
        a(f"""v_and_b32 v5, 31, {vL}
        v_lshrrev_b32 v6, 5, {vL}
        s_mov_b32 s74, {s_first}
        {lp}:
        v_lshl_add_u32 v7, v5, 1, v6
        s_lshl_b32 s72, s74, 3
        v_mul_u32_u24 v8, s72, v7
        s_lshl_b32 s72, s74, 5
        s_sub_u32 s72, s72, 127
        v_lshl_add_u32 v9, v6, 4, s72
        v_mul_u32_u24 v9, v9, v5
        v_lshlrev_b32 v10, 1, v5
        s_cmp_lt_u32 s74, 4
        s_cselect_b64 vcc, -1, 0
        v_cndmask_b32 v8, v9, v8, vcc
        v_cndmask_b32 v7, v10, v7, vcc
        v_cvt_f32_u32 v8, v8
        v_cvt_f32_u32 v7, v7
        v_mul_f32 v60, {fbits(1/64)}, v8
        v_mul_f32 v7, {fbits(1/64)}, v7
        s_lshl_b32 s73, s74, 10
        s_add_u32 s73, s73, {TB}""")
        for e in range(1, 8):
            a(f"v_add_f32 v{60+e}, v{59+e}, v7")
        for e in range(8):
            a(f"v_sin_f32 v{68+e}, v{60+e}")
            a(f"v_cos_f32 v{60+e}, v{60+e}")
        a(f"v_add_u32 v9, s73, {vL16}")
        for e in range(4):
            a(f"v_cvt_pk_bf16_f32 v{76+e}, v{60+2*e}, v{61+2*e}")
            a(f"v_cvt_pk_bf16_f32 v{80+e}, v{68+2*e}, v{69+2*e}")
        a(f"""s_add_u32 s74, s74, {step}
        s_cmp_lt_u32 s74, 6
        ds_write_b128 v9, v[76:79]
        ds_write_b128 v9, v[80:83] offset:6144
        s_cbranch_scc1 {lp}""")

    def col_twiddles(self):
        a = self.a
        a(f"""s_lshr_b32 s72, {sWM}, 1
        s_and_b32 s73, {sWM}, 1
        s_lshl_b32 s74, s73, 5
        s_add_u32 s74, s74, s72
        v_lshl_add_u32 v5, {vN}, 1, s74
        v_cvt_f32_u32 v5, v5
        v_mul_f32 v5, {fbits(1/2048)}, v5
        v_lshlrev_b32 v6, 3, {vG}
        v_cvt_f32_u32 v7, v6
        v_mul_f32 v{self.T1C}, v7, v5""")
        for e in range(1, 8):
            a(f"v_add_f32 v{self.T1C+e}, v{self.T1C+e-1}, v5")
        for e in range(8):
            a(f"v_sin_f32 v{self.T1S+e}, -v{self.T1C+e}")
            a(f"v_cos_f32 v{self.T1C+e}, v{self.T1C+e}")
        a(f"""v_add_u32 v6, s74, v6
        v_cvt_f32_u32 v6, v6
        v_lshrrev_b32 v7, 2, {vN}
        v_and_b32 v8, 3, {vN}
        v_lshl_add_u32 v8, v7, 3, v8
        v_cvt_f32_u32 v7, v8
        v_mul_f32 v9, {fbits(1/2048)}, v7
        v_add_f32 v10, {fbits(4/2048)}, v9""")
        for t in range(2):
            a(f"v_mul_f32 v{self.T2C+4*t}, v6, v{9+t}")
            a(f"v_add_f32 v{9+t}, v{9+t}, v{9+t}")
            for r in range(1, 4):
                a(f"v_add_f32 v{self.T2C+4*t+r}, v{self.T2C+4*t+r-1}, v{9+t}")
        for e in range(8):
            a(f"v_sin_f32 v{self.T2S+e}, v{self.T2C+e}")
            a(f"v_cos_f32 v{self.T2C+e}, v{self.T2C+e}")

    def pre_flags(self):
        self.a(f"""s_cmp_eq_u32 {sLAYER}, 0
        s_cselect_b32 s89, 16, 6
        s_cselect_b32 s72, 0, {2*FSTRIDE}
        s_add_u32 s72, s72, {F_WQ*FSTRIDE}
        s_add_u32 s72, s72, {sREP}
        s_lshl_b32 s73, {sWM}, 9
        s_add_u32 s72, s72, s73""")

    def col_wload(self):
        a = self.a
        a(f"buffer_load_dwordx4 {vr(self.WRAW,4)}, {vL16}, {WS}, s10 offen sc1")
        a(f"buffer_load_dwordx4 {vr(self.WRAW+4,4)}, {vL16}, {WS}, s10 offen offset:1024 sc1")

    def col_early(self):
        l = self.a.lab("Lk")
        self.a(f"s_cmp_ge_u32 {sR}, 20\ns_cbranch_scc1 {l}\ns_call_b64 s[70:71], Lcolearly\n{l}:")

    def col_early_body(self):
        a = self.a
        a("Lcolearly:\ns_nop 4")
        self.col_twiddles()
        a(f"""s_lshr_b32 s72, {sWM}, 1
        s_and_b32 s73, {sWM}, 1
        v_and_b32 v8, 3, {vN}
        s_mul_i32 s77, {sX}, 20
        s_add_u32 s77, s77, {sR}
        s_lshl_b32 s77, s77, 1
        s_add_u32 s77, s77, {sHI}
        s_lshl_b32 s4, s77, 1
        s_add_u32 s4, s4, s73
        s_lshl_b32 s5, s4, 8
        s_mul_i32 s74, s72, {8*163840}
        s_add_u32 s5, s5, s74
        s_lshl_b32 s10, s77, 13
        s_lshl_b32 s74, {sWM}, 11
        s_add_u32 s10, s10, s74
        s_add_u32 s10, s10, {WF}
        s_mov_b32 s74, 163840
        v_mul_lo_u32 v11, {vG}, s74
        v_lshl_add_u32 v11, {vN}, 4, v11
        v_lshrrev_b32 v5, 5, {vTID}
        v_and_b32 v6, 31, {vTID}
        v_lshlrev_b32 v6, 4, v6
        v_lshl_add_u32 v16, v5, 12, v6
        v_lshlrev_b32 v12, 4, {vTID}
        v_add_u32 v12, {self.RS}, v12
        s_lshl_b32 s74, s72, 12
        s_add_u32 s74, s74, {self.RS}
        v_lshlrev_b32 v13, 9, {vG}
        v_lshl_add_u32 v13, {vN}, 5, v13
        v_add_u32 v13, s74, v13
        s_lshl_b32 s75, {sHI}, 13
        s_lshl_b32 s74, s73, 11
        s_add_u32 s74, s74, s75
        s_lshl_b32 s76, s72, 7
        s_add_u32 s74, s74, s76
        s_add_u32 s74, s74, {self.ZS}
        v_bfe_u32 v5, {vN}, 2, 1
        v_lshlrev_b32 v5, 10, v5
        v_lshl_add_u32 v5, {vG}, 8, v5
        v_lshrrev_b32 v6, 3, {vN}
        v_lshl_add_u32 v5, v6, 6, v5
        v_lshl_add_u32 v5, v8, 4, v5
        v_add_u32 v14, s74, v5
        s_lshl_b32 s74, s72, 12
        s_add_u32 s74, s74, s75
        s_add_u32 s74, s74, {self.ZS}
        v_add_u32 v15, s74, {vL16}
        s_lshl_b32 s76, s73, 9
        s_add_u32 s74, s74, s76
        v_lshlrev_b32 v5, 10, v6
        v_lshl_add_u32 v5, v8, 4, v5
        v_bfe_u32 v6, {vN}, 2, 1
        v_lshl_add_u32 v5, v6, 7, v5
        v_lshrrev_b32 v6, 1, {vG}
        v_lshl_add_u32 v5, v6, 8, v5
        v_and_b32 v6, 1, {vG}
        v_lshl_add_u32 v5, v6, 3, v5
        v_add_u32 v8, s74, v5
        s_lshl_b32 s74, s72, 10
        s_add_u32 s74, s74, s75
        s_lshl_b32 s76, s73, 11
        s_add_u32 s74, s74, s76
        s_add_u32 s74, s74, {self.EX}
        v_add_u32 v9, s74, {vL16}
        v_xor_b32 v10, 0x800, v9
        v_mov_b32 v18, {fbits(1e-5)}
        s_nop 4
        s_setpc_b64 s[70:71]""")

    def col_consts(self):
        a = self.a
        a(f"""s_lshl_b32 s74, {sWM}, 8
        s_add_u32 s74, s74, {TB}
        v_lshrrev_b32 v7, 2, {vN}
        v_and_b32 v6, 3, {vN}
        v_lshl_add_u32 v7, v7, 3, v6
        v_lshlrev_b32 v5, 10, {vG}
        v_lshl_add_u32 v6, {vN}, 4, v5
        v_add_u32 v6, s74, v6
        v_lshl_add_u32 v5, v7, 4, v5
        v_add_u32 v5, {TB}, v5
        v_lshlrev_b32 v19, 9, {vG}
        v_lshl_add_u32 v19, v7, 4, v19
        v_add_u32 v19, {TB+4096}, v19
        ds_read_b128 {vr(self.S1,4)}, v6 offset:6144""")
        for t in range(2):
            a(f"ds_read_b128 {vr(self.S2+4*t,4)}, v5 offset:{6144+64*t}")
            a(f"ds_read_b128 {vr(self.S4O+4*t,4)}, v19 offset:{6144+64*t}")
        a(f"ds_read_b128 {vr(self.C1,4)}, v6")
        for t in range(2):
            a(f"ds_read_b128 {vr(self.C2+4*t,4)}, v5 offset:{64*t}")
            a(f"ds_read_b128 {vr(self.C4O+4*t,4)}, v19 offset:{64*t}")
        a(f"""s_bitcmp0_b32 {sWM}, 0
        s_cselect_b32 s75, 0x80008000, 0
        s_mov_b32 s74, 0x80008000
        s_mov_b32 s76, {fbits(1/640)}
        s_mov_b32 s87, {fbits(1/2048)}
        s_add_u32 s84, s5, {sXA}
        s_add_u32 s85, s84, {4*163840}
        s_add_u32 s82, s5, {sXB}
        s_add_u32 s83, s82, {4*163840}
        s_add_u32 s77, {sSS}, 32768
        s_waitcnt lgkmcnt(5)""")
        for i in range(4):
            a(f"v_xor_b32 v{self.N1+i}, s74, v{self.S1+i}")
        for i in range(8):
            a(f"v_xor_b32 v{self.N2+i}, s74, v{self.S2+i}")
            a(f"v_xor_b32 v{self.S4E+i}, s75, v{self.S2+i}")
            a(f"v_xor_b32 v{self.S4O+i}, s75, v{self.S4O+i}")

    def wmid(self, j):
        a = self.a
        a(f"s_add_u32 m0, s80, {2048*j}\ns_add_u32 s72, s81, {2048*j}")
        for i in range(2):
            a(f"buffer_load_dwordx4 {vL16}, {WS}, s72 offen offset:{1024*i} sc1 lds")

    def col_main(self):
        a = self.a
        nz, l1 = a.lab("Lnz"), a.lab("Lk")
        EXO = self.EX - self.ZS
        T, U = self.TR, self.URAW
        lp, dn, l2, l4, l5 = (a.lab("Lk") for _ in range(5))
        a(f"""s_mov_b32 s35, 1
        s_lshl_b32 s78, {sWM}, 12
        s_mul_i32 s79, {sG}, 163840
        s_add_u32 s79, s79, {WQ}
        s_mul_i32 s80, {sWV}, 10240
        s_add_u32 s81, s79, s80
        s_add_u32 s79, s79, s78
        s_cmp_lg_u32 {sLAYER}, 0
        s_cbranch_scc1 {l2}""")
        self.if_lo(l2)
        self.fill_cols("s82", "s83", T)
        a(f"""{l2}:
        s_lshl_b32 s72, {sWV}, 8
        s_add_u32 s72, s72, {sREP}
        s_add_u32 s73, s72, {F_WQ*FSTRIDE}
        s_add_u32 s72, s72, {sFL}""")
        self.wait_lines("s72", 2, 16)
        a(f"s_barrier\ns_cmp_lg_u32 {sLAYER}, 0\ns_cbranch_scc1 {l4}\ns_add_u32 s72, {sSH}, {F_WQ*FSTRIDE}")
        self.push("s72", 11, wave=0)
        a(f"v_lshlrev_b32 v5, 7, {vL}\n{l4}:")
        self.fstamp("c", 0)
        a(f"s_mov_b32 s88, {SPIN}\n{lp}:")
        a(f"buffer_load_dwordx4 {vr(U,4)}, v11, {WS}, s84 offen sc1")
        a(f"buffer_load_dwordx4 {vr(U+4,4)}, v11, {WS}, s85 offen sc1")
        for k in range(8):
            a(f"buffer_load_dwordx4 {vr(T+4*k,4)}, v16, {WS}, {sSS} offen offset:{512*k} sc1")
        a(f"""s_mov_b64 s[6:7], exec
        s_mov_b64 exec, 3
        v_mov_b32 v19, 0
        buffer_atomic_add v19, v5, {WS}, s73 offen sc0 sc1
        s_mov_b64 exec, s[6:7]
        s_waitcnt vmcnt(9)""")
        for x in self.umax(6, range(U, U + 8)):
            a(x)
        a("v_add_u32 v6, 1, v6")
        self.unpack(self.R0, U, 8)
        for k in range(8):
            a(f"s_waitcnt vmcnt({8-k})")
            a(f"v_min3_u32 v6, v{T+4*k}, v{T+4*k+1}, v6")
            a(f"v_min3_u32 v6, v{T+4*k+2}, v{T+4*k+3}, v6")
            if k:
                for i in range(0, 4, 2):
                    a(f"v_pk_add_f32 {vr(T+i,2)}, {vr(T+i,2)}, {vr(T+4*k+i,2)}")
        a("v_cmp_eq_u32 vcc, 0, v6")
        for i in range(4):
            a(f"v_fma_f32 v{T+i}, v{T+i}, s76, v18")
        for i in range(4):
            a(f"v_rsq_f32 v{T+i}, v{T+i}")
        a(f"""s_cbranch_vccz {dn}
        s_mov_b64 exec, vcc
        s_waitcnt vmcnt(0)
        s_sub_u32 s88, s88, 1
        s_cbranch_scc0 {lp}
        {dn}:
        s_mov_b64 exec, -1
        ds_write_b128 v12, {vr(T,4)}""")
        a(f"s_waitcnt vmcnt(0)\ns_mov_b64 exec, 3\nv_cmp_gt_u32 vcc, 16, v19\ns_mov_b64 exec, -1\ns_cbranch_vccz {l5}")
        self.poll(WS, "v5", "s73", 2, 16)
        a(f"{l5}:")
        self.stamp(4)
        a("s_waitcnt lgkmcnt(0)\ns_barrier")
        self.fstamp("c", 1)
        for i in range(4):
            a(f"ds_read_b128 {vr(self.RS0+4*i,4)}, v13 offset:{(i//2)*2048+(i%2)*16}")
        self.col_wload()
        self.wmid(0)
        a(f"""s_cmp_lg_u32 s4, 1
        s_waitcnt lgkmcnt(0)
        s_cbranch_scc1 {nz}
        s_mov_b32 s87, 0""")
        for i in range(16):
            a(f"v_mov_b32 v{self.RS0+i}, 0")
        a(f"{nz}:")
        for h in range(4):
            p, r0, r1, x1 = vr(self.DR + 2 * h, 2), vr(self.RS0 + 2 * h, 2), vr(self.RS1 + 2 * h, 2), vr(self.R1 + 2 * h, 2)
            a(f"v_pk_mul_f32 {p}, {vr(self.R0+2*h,2)}, {r0}")
            a(f"v_pk_fma_f32 {vr(self.TR+2*h,2)}, {x1}, {r1}, {p}")
            a(f"v_pk_fma_f32 {vr(self.TI+2*h,2)}, {x1}, {r1}, {p} neg_lo:[1,0,0] neg_hi:[1,0,0]")
        for h in range(4):
            a(f"v_cvt_pk_bf16_f32 v{self.BR+h}, v{self.TR+2*h}, v{self.TR+2*h+1}")
        a(f"ds_write_b128 v14, {vr(self.BR,4)}")
        for h in range(4):
            a(f"v_cvt_pk_bf16_f32 v{self.BI+h}, v{self.TI+2*h}, v{self.TI+2*h+1}")
        a(f"ds_write_b128 v14, {vr(self.BI,4)} offset:4096\ns_waitcnt lgkmcnt(0)\ns_barrier")
        AF, DR, DI, BR, BI = self.AF, self.DR, self.DI, self.BR, self.BI
        self.fstamp("c", 2)
        for i in range(4):
            a(f"ds_read_b128 {vr(AF+4*i,4)}, v15 offset:{1024*i}")
        self.wmid(1)
        a("s_waitcnt lgkmcnt(2)")
        for t in range(2):
            self.mm(DR + 4 * t, AF + 4 * t, self.C1, True)
            self.mm(DI + 4 * t, AF + 4 * t, self.N1, True)
        a("s_waitcnt lgkmcnt(0)")
        for t in range(2):
            self.mm(DR + 4 * t, AF + 8 + 4 * t, self.S1, False)
            self.mm(DI + 4 * t, AF + 8 + 4 * t, self.C1, False)
        self.wmid(2)
        self.cmul_pack(self.T1C, self.T1S)
        for t in range(2):
            self.mm(DR + 4 * t, self.C2 + 4 * t, BR, True)
            self.mm(DI + 4 * t, self.N2 + 4 * t, BR, True)
        for t in range(2):
            self.mm(DR + 4 * t, self.S2 + 4 * t, BI, False)
            self.mm(DI + 4 * t, self.C2 + 4 * t, BI, False)
        a("s_waitcnt vmcnt(6)")
        self.wmid(3)
        self.fstamp("c", 3)
        self.unpack(self.WR, self.WRAW, 8)
        self.cmul_pack(self.WR, self.WI)
        for t in range(2):
            self.mm(DR + 4 * t, BR, self.C2 + 4 * t, True)
            self.mm(DI + 4 * t, BR, self.S2 + 4 * t, True)
        for t in range(2):
            self.mm(DR + 4 * t, BI, self.N2 + 4 * t, False)
            self.mm(DI + 4 * t, BI, self.C2 + 4 * t, False)
        self.wmid(4)
        self.cmul_pack(self.T2C, self.T2S)
        for t in range(2):
            a(f"ds_write_b64 v8, {vr(BR+2*t,2)} offset:{EXO+64*t}")
            a(f"ds_write_b64 v8, {vr(BI+2*t,2)} offset:{EXO+2048+64*t}")
        self.fstamp("c", 14)
        l3 = a.lab("Lk")
        self.if_hi(l3)
        self.pre_flags()
        a(f"""v_lshlrev_b32 v5, 7, {vL}
        v_mov_b32 v19, 0
        s_mov_b64 exec, 15
        buffer_atomic_add v19, v5, {WS}, s72 offen sc0 sc1
        s_mov_b64 exec, -1
        {l3}:
        s_waitcnt lgkmcnt(0)
        s_barrier""")
        self.fstamp("c", 15)
        for p in range(2):
            a(f"ds_read_b128 {vr(AF+8*p,4)}, v9 offset:{4096*p}")
        for p in range(2):
            a(f"ds_read_b128 {vr(AF+8*p+4,4)}, v10 offset:{4096*p}")
        a("v_mov_b32 v6, s87\ns_waitcnt lgkmcnt(2)")
        for t in range(2):
            self.mm(DR + 4 * t, self.C2 + 4 * t, AF, True)
            self.mm(DI + 4 * t, self.C4O + 4 * t, AF + 8, True)
        a("s_waitcnt lgkmcnt(0)")
        for t in range(2):
            self.mm(DR + 4 * t, self.S4E + 4 * t, AF + 4, False)
            self.mm(DI + 4 * t, self.S4O + 4 * t, AF + 12, False)
        for neg, t, r, b, so in (("", self.TR, self.R0, BR, "s82"), (" neg_lo:[0,1] neg_hi:[0,1]", self.TI, self.R1, BI, "s83")):
            for h in range(4):
                x = vr(t + 2 * h, 2)
                a(f"v_pk_add_f32 {x}, {vr(DR+2*h,2)}, {vr(DI+2*h,2)}{neg}")
                a(f"v_pk_fma_f32 {x}, {x}, v[6:7], {vr(r+2*h,2)} op_sel_hi:[1,0,1]")
            for h in range(4):
                a(f"v_cvt_pk_bf16_f32 v{b+h}, v{t+2*h}, v{t+2*h+1}")
            self.clean(b, 4)
            a(f"buffer_store_dwordx4 {vr(b,4)}, v11, {WS}, {so} offen sc1")

    XR = 81920
    NREG = 244
    QH, NRM, DEC, SSP, VSCR = 102400, 112640, 112768, 114688, 143360
    QACC, QF, QAD = 60, 144, 192

    def h_dma(self, voff, s_lds, s_src, q):
        a = self.a
        a(f"s_add_u32 m0, {s_lds}, {(q%5)*16384}")
        a(f"s_add_u32 s83, {s_src}, {q*16384}")
        for i in range(4):
            a(f"buffer_load_dwordx4 {voff}, {WS}, s83 offen offset:{1024*i} sc1 lds")

    def w_prefetch(self):
        a = self.a
        a(f"""s_lshl_b32 s78, {sWM}, 12
        s_mul_i32 s79, {sG}, 163840
        s_add_u32 s79, s79, {WQ}
        s_add_u32 s79, s79, s78""")
        for q in range(5):
            a(f"s_add_u32 m0, s78, {q*16384}\ns_add_u32 s72, s79, {q*16384}")
            for i in range(4):
                a(f"buffer_load_dwordx4 {vL16}, {WS}, s72 offen offset:{1024*i} sc1 lds")

    def qkv_helper(self):
        a = self.a
        XR = self.XR
        lw = a.lab("Lh")
        a(f"s_cmp_eq_u32 s35, 1\ns_cbranch_scc1 {lw}")
        self.w_prefetch()
        a(f"{lw}:\ns_mov_b32 s35, 0")
        self.att_setup()
        a(f"""s_mul_i32 s80, {sT}, 163840
        s_add_u32 s80, s80, {sXB}
        s_add_u32 s80, s80, s78
        s_add_u32 s81, s78, {XR}
        s_mul_i32 s82, {sCB}, 102400
        s_add_u32 s82, s82, {FT}
        s_add_u32 s82, s82, s78
        s_and_b32 s74, {sWM}, 1
        s_lshl_b32 s74, s74, 1
        v_lshlrev_b32 v5, 2, {vG}
        v_xor_b32 v5, s74, v5
        v_xor_b32 v5, v5, {vL}
        v_lshlrev_b32 v8, 4, v5
        v_bfe_u32 v5, {vL}, 2, 2
        v_and_b32 v7, 1, {vG}
        v_lshrrev_b32 v6, 1, {vG}
        v_lshl_add_u32 v6, v6, 3, v5
        v_lshlrev_b32 v6, 8, v6
        v_lshl_add_u32 v6, v7, 12, v6
        s_lshl_b32 s74, {sHALF}, 2
        s_add_u32 s74, s74, {sWM}
        v_lshlrev_b32 v5, 1, v5
        v_xor_b32 v5, v5, v7
        v_xor_b32 v5, s74, v5
        v_lshl_add_u32 v6, v5, 5, v6
        v_and_b32 v7, 3, {vL}
        v_lshl_add_u32 v6, v7, 3, v6
        v_add_u32 v10, {XR}, v6
        v_add_u32 v11, 0xa000, v10
        s_or_b32 s74, {sG}, {sWM}
        s_cselect_b32 s74, 99, 1
        v_cmp_ne_u32 s[6:7], s74, {vG}
        s_lshl_b32 s15, {sLAYER}, 17
        s_lshl_b32 s74, {sT}, 13
        s_add_u32 s15, s15, s74
        s_add_u32 s15, s15, {SQ0}
        s_mul_i32 s16, {sWM}, 3
        s_min_u32 s16, s16, 7
        s_mul_i32 s74, {sG}, 10
        s_add_u32 s16, s16, s74
        s_lshl_b32 s16, s16, 10
        s_add_u32 s16, s16, s80
        s_sub_u32 s16, s16, s78
        s_mov_b32 s17, 0xffff0000
        v_lshlrev_b32 v9, 5, {vN}
        v_lshl_add_u32 v9, {vG}, 3, v9
        s_lshl_b32 s74, {sWM}, 9
        v_add_u32 v12, s74, v9
        s_add_u32 s74, s74, {sREP}
        s_add_u32 s74, s74, {sFL}
        s_add_u32 s74, s74, {F_COL*FSTRIDE}""")
        if "nogate" in self.opts:
            a("s_waitcnt vmcnt(0)")
        else:
            self.wait_lines("s74", 4, 10)
        self.stamp(6)
        ACC, RAW, UN, CK = 140, 60, 100, 76
        order = []

        def dma(tag, q):
            voff, lds, src = {"X": ("v8", "s81", "s80"), "W": (vL16, "s78", "s79")}[tag]
            r = [[f"buffer_load_dwordx4 {voff}, {WS}, s83 offen offset:{1024*i} sc1 lds"] for i in range(4)]
            r[0] = [f"s_add_u32 m0, {lds}, {(q%5)*16384}", f"s_add_u32 s83, {src}, {q*16384}"] + r[0]
            return [(f"{tag}{q}", x) for x in r]

        def emit(items):
            for tag, x in items:
                order.append(tag)
                for y in x:
                    a(y)

        def allow(*tags):
            last = max((i for i, t in enumerate(order) if t in tags), default=-1)
            return len(order) - 1 - last

        def sloads():
            return [("S", [f"buffer_load_dwordx4 {vr(RAW+4*i,4)}, {vL16}, {WS}, s16 offen offset:{1024*i} sc1"]) for i in range(3)]

        def piece(i):
            r = [f"v_cndmask_b32 v{RAW+k}, 0, v{RAW+k}, s[6:7]" for k in range(4)] if i == 0 else []
            for k in range(4):
                r += [f"v_lshlrev_b32 v{UN+2*k}, 16, v{RAW+4*i+k}", f"v_and_b32 v{UN+2*k+1}, s17, v{RAW+4*i+k}"]
            r += [f"{'v_mul_f32' if i == 0 else 'v_fmac_f32'} v{ACC+h}, v{UN+h}, v{UN+h}" for h in range(8)]
            if i == 2:
                r += [f"v_permlane32_swap_b32 v{ACC+k}, v{ACC+4+k}" for k in range(4)]
                r += [f"v_add_f32 v{ACC+k}, v{ACC+k}, v{ACC+4+k}" for k in range(4)]
                r += [f"v_permlane16_swap_b32 v{ACC+k}, v{ACC+2+k}" for k in range(2)]
                r += [f"v_add_f32 v{ACC+k}, v{ACC+k}, v{ACC+2+k}" for k in range(2)]
                r += [f"ds_write_b64 v12, {vr(ACC,2)} offset:32768"]
            return r

        def weave(items, valu):
            per = -(-len(valu) // max(1, len(items)))
            for it in items:
                emit([it])
                for x in valu[:per]:
                    a(x)
                valu = valu[per:]
        emit(dma("X", 0) + dma("X", 1) + dma("X", 2))
        for q in range(10):
            n = allow(f"W{q}", f"X{q}", "Q", *(("S",) if q >= 2 else ()))
            if q >= 8:
                l = a.lab("Lh")
                a(f"s_cmp_lg_u32 {sLAYER}, 0\ns_cbranch_scc1 {l}\ns_waitcnt vmcnt({n})\n{l}:")
                n += 4
            a(f"s_waitcnt vmcnt({n}) lgkmcnt(0)\ns_barrier")
            if q in (1, 2, 3, 5, 7, 9):
                self.fstamp("q", {1: 0, 2: 1, 3: 2, 5: 3, 7: 14, 9: 15}[q])
            if q == 0:
                l = a.lab("Lh")
                a(f"s_cmp_lt_u32 {sR}, 20\ns_cbranch_scc1 {l}\ns_or_b32 s72, {sLAYER}, s14\ns_cbranch_scc1 {l}")
                a(f"s_add_u32 s72, {sSH}, {F_IMG*FSTRIDE}")
                self.push("s72", 11, wave=7)
                a(f"{l}:")
                emit(sloads())
            if q == 2:
                bad, ok, lp = a.lab("Lbad"), a.lab("Lok"), a.lab("Lbad")
                chk = self.umax(5, range(RAW, RAW + 12)) + ["v_cmp_eq_u32 vcc, -1, v5"]
                for x in chk:
                    a(x)
                a(f"s_cbranch_vccnz {bad}\n{ok}:")
                body = [f"{bad}:", f"s_mov_b32 s88, {SPIN}", f"{lp}:"] + [x[0] for _, x in sloads()]
                body += ["s_sub_u32 s88, s88, 1", "s_waitcnt vmcnt(0)", f"s_cbranch_scc1 {ok}"] + chk + [f"s_cbranch_vccnz {lp}", f"s_branch {ok}"]
                self.cold.append("\n".join(body))
                l = a.lab("Lh")
                a(f"s_cmp_lg_u32 {sWM}, 2\ns_cbranch_scc1 {l}")
                for k in range(4, 12):
                    a(f"v_mov_b32 v{RAW+k}, 0")
                a(f"{l}:")
            if q == 4:
                l = a.lab("Lh")
                a(f"s_cmp_lg_u32 {sWM}, 0\ns_cbranch_scc1 {l}")
                for i in range(1, 4):
                    a(f"ds_read_b64 {vr(ACC+2*i,2)}, v12 offset:{32768+512*i}")
                a(f"s_lshl_b32 s74, {sG}, 9\ns_add_u32 s74, s74, s15\ns_waitcnt lgkmcnt(0)")
                for i in range(2):
                    a(f"v_add_f32 v{ACC+i}, v{ACC+i}, v{ACC+2+i}\nv_add_f32 v{ACC+4+i}, v{ACC+4+i}, v{ACC+6+i}")
                for i in range(2):
                    a(f"v_add_f32 v{ACC+i}, v{ACC+i}, v{ACC+4+i}")
                for i in range(2):
                    a(f"v_or_b32 v{ACC+i}, 1, v{ACC+i}")
                a(f"buffer_store_dwordx2 {vr(ACC,2)}, v9, {WS}, s74 offen sc1\n{l}:")
            if q <= 6:
                valu = piece(0) + piece(1) if q == 2 else (piece(2) if q == 3 else [])
                weave(dma("X", q + 3) + (dma("W", q + 3) if q >= 2 else []), valu)
            if q == 8:
                a(f"s_lshl_b32 s74, {sWM}, 11\ns_add_u32 s15, s15, s74\ns_mov_b32 s88, {SPIN}")
                emit([("Q", [f"buffer_load_dwordx4 {vr(RAW+4*i,4)}, {vL16}, {WS}, s15 offen offset:{1024*i} sc1"]) for i in range(2)])
            l = a.lab("Lh")
            a(f"s_cmp_eq_u32 {sLAYER}, 0\ns_cbranch_scc1 {l}")
            for j in range(2):
                kk = (4 * q + 2 * j) % 20
                for i in range(2):
                    a(f"ds_read_b64_tr_b16 {vr(GA+4*(2*q+j)+2*i,2)}, v{10+kk//10} offset:{(kk%10)*4096+1024*i}")
            if q in (7, 8):
                self.h_dma(vL16, "s78", "s82", q - 7)
            a(f"{l}:")
        lp, dn = a.lab("Lh"), a.lab("Lh")
        a(f"""{lp}:
        v_min3_u32 v5, v{RAW}, v{RAW+1}, v{RAW+2}
        v_min3_u32 v5, v5, v{RAW+3}, v{RAW+4}
        v_min3_u32 v5, v5, v{RAW+5}, v{RAW+6}
        v_min_u32 v5, v5, v{RAW+7}
        v_cmp_eq_u32 vcc, 0, v5
        s_cbranch_vccz {dn}""")
        for i in range(2):
            a(f"buffer_load_dwordx4 {vr(RAW+4*i,4)}, {vL16}, {WS}, s15 offen offset:{1024*i} sc1")
        a(f"""s_sub_u32 s88, s88, 1
        s_waitcnt vmcnt(0)
        s_cbranch_scc0 {lp}
        {dn}:""")
        for i in range(4):
            a(f"v_add_f32 v{RAW+i}, v{RAW+i}, v{RAW+4+i}")
        a(f"""s_lshl_b32 s74, {sWM}, 9
        s_add_u32 s74, s74, {self.SSP}
        v_and_b32 v5, 31, {vL}
        v_lshrrev_b32 v6, 5, {vL}
        v_permlane32_swap_b32 v{RAW}, v{RAW+2}
        v_permlane32_swap_b32 v{RAW+1}, v{RAW+3}
        v_lshl_add_u32 v5, v5, 1, v6
        v_lshl_add_u32 v5, v5, 3, s74
        v_add_f32 v{RAW}, v{RAW}, v{RAW+2}
        v_add_f32 v{RAW+1}, v{RAW+1}, v{RAW+3}
        ds_write_b64 v5, {vr(RAW,2)}""")
        a("s_waitcnt lgkmcnt(0)\ns_barrier")
        l0, l1 = a.lab("Lh"), a.lab("Lh")
        a(f"s_cmp_eq_u32 {sLAYER}, 0\ns_cbranch_scc1 {l0}")
        for q in range(2, 6):
            a(f"s_add_u32 m0, s78, {q*16384}\ns_add_u32 s83, s82, {q*16384}")
            for i in range(4):
                a(f"buffer_load_dwordx4 {vL16}, {WS}, s83 offen offset:{1024*i} sc1 lds")
        a(f"""s_lshl_b32 s74, {sWM}, 10
        s_add_u32 m0, s74, 98304
        s_sub_u32 s83, s82, s78
        s_add_u32 s83, s83, m0
        buffer_load_dwordx4 {vL16}, {WS}, s83 offen sc1 lds
        s_branch {l1}
        {l0}:""")
        self.res_load()
        a(f"{l1}:")
        a(f"""s_mul_i32 s72, {sWM}, 2560
        s_add_u32 s72, s72, {self.QH}
        v_add_u32 v5, s72, {vL16}
        v_lshl_add_u32 v6, {vL}, 3, s72
        s_barrier
        ds_read_b128 {vr(AR.Q1,4)}, v5
        ds_read_b128 {vr(AR.Q1+4,4)}, v5 offset:1024
        ds_read_b64 v[6:7], v6 offset:2048
        v_lshlrev_b32 v5, 3, {vN}
        v_add_u32 v5, {self.NRM}, v5
        ds_read_b64 {vr(self.NREG,2)}, v5
        s_waitcnt lgkmcnt(1)""")
        for j in range(4):
            a(f"v_mov_b32 v{AR.Q2+6*(j//2)+j%2}, v{6+j%2}")
        self.q2_spread()

    def q2_spread(self):
        for i in range(4):
            self.a(f"v_permlane32_swap_b32 v{AR.Q2+i}, v{AR.Q2+4+i}")

    def att_setup(self):
        a = self.a
        a(f"s_lshr_b32 s72, {sWM}, 1\ns_mul_i32 s84, s72, {A.HEADB}")
        A.setup_addr(a, vL, vL16, "s84", sHI, "s72", 5)
        a(f"""s_mul_i32 s85, {sWV}, 2560
        s_mul_i32 s86, {sG}, {16*A.CHUNK}
        s_add_u32 s86, s86, {sKV}
        s_add_u32 s86, s86, s85
        s_add_u32 s85, s85, {A.SLOT0}""")
        for i in range(2, 6):
            a(f"v_mov_b32 v{AR.Q2+i}, 0")
        for i in range(32):
            a(f"v_mov_b32 v{AR.O+i}, 0")

    def qkv_compute(self):
        a = self.a
        XR, AD = self.XR, self.QAD
        own = A.SLOT0 + A.slot_off(0)
        EA = AD + 10
        self.att_setup()
        a(f"""s_lshr_b32 s72, {sWM}, 1
        s_and_b32 s73, {sWM}, 1
        s_lshl_b32 s74, s72, 11
        v_add_u32 v{AD}, s74, {vL16}
        v_add_u32 v{AD+1}, 0xa000, v{AD}
        v_bfe_u32 v5, {vL}, 2, 2
        v_lshrrev_b32 v6, 5, {vL}
        v_lshl_add_u32 v6, v6, 3, v5
        v_mul_u32_u24 v{EA+1}, 48, v6
        v_lshlrev_b32 v6, 8, v6
        v_and_b32 v7, 3, {vL}
        v_lshl_add_u32 v6, v7, 3, v6
        s_lshl_b32 s74, s73, 1
        v_xor_b32 v7, s74, v5
        v_lshl_add_u32 v6, v7, 6, v6
        v_and_b32 v7, 1, {vG}
        v_lshl_add_u32 v6, v7, 5, v6
        v_add_u32 v{AD+2}, {XR}, v6""")
        for i in range(1, 4):
            a(f"v_xor_b32 v{AD+2+i}, {32*i}, v{AD+2}")
        for i in range(4):
            a(f"v_add_u32 v{AD+6+i}, 0xa000, v{AD+2+i}")
        a(f"""s_mul_i32 s75, {sWM}, 3072
        s_add_u32 s75, s75, {self.VSCR}
        v_and_b32 v5, 3, {vL}
        v_lshl_add_u32 v5, v7, 2, v5
        v_min_u32 v5, 4, v5
        v_and_b32 v6, 1, v5
        v_mul_u32_u24 v6, 24, v6
        v_lshrrev_b32 v5, 1, v5
        v_lshl_add_u32 v5, v5, 3, v6
        v_add3_u32 v{EA+1}, v{EA+1}, v5, s75
        v_and_b32 v5, 31, {vL}
        v_lshrrev_b32 v6, 5, {vL}
        v_lshl_add_u32 v7, v5, 1, v6
        v_mul_u32_u24 v7, 24, v7
        v_add_u32 v{EA}, s75, v7
        v_mul_u32_u24 v6, 20, v6
        v_add_lshl_u32 v{EA+2}, v6, v5, 4
        s_lshl_b32 s75, s73, 8
        s_add_u32 s75, s75, {self.SSP}
        v_lshl_add_u32 v{EA+3}, v5, 2, s75
        s_mul_i32 s76, s72, {A.HEADB}
        s_mul_i32 s77, s73, {2*A.TILE}
        s_add_u32 s77, s77, s76
        s_lshl_b32 s75, s73, 9
        s_add_u32 s76, s76, s75
        s_add_u32 s76, s76, {A.K2OFF}
        s_add_u32 s75, s77, {own}
        v_add_u32 v{EA+4}, s75, {vL16}
        v_add_u32 v{EA+5}, s75, v{EA+2}
        v_lshlrev_b32 v{EA+6}, 3, {vL}
        s_add_u32 s75, s76, {own}
        v_add_u32 v{EA+7}, s75, v{EA+6}
        s_lshl_b32 s75, {sG}, 4
        s_add_u32 s75, s75, {sT}
        s_mul_i32 s75, s75, {A.CHUNK}
        s_add_u32 s75, s75, {sKV}
        s_add_u32 s76, s76, s75
        s_add_u32 s77, s77, s75
        s_mul_i32 s75, {sWM}, 2560
        s_add_u32 s75, s75, {self.QH}
        v_add_u32 v{EA+8}, s75, {vL16}
        v_add_u32 v{EA+9}, s75, v{EA+6}
        s_mov_b32 s78, {fbits(1/640)}
        v_mov_b32 v{EA+10}, {fbits(1e-5)}
        s_lshl_b32 s75, {sWM}, 5
        s_add_u32 s75, s75, {self.NRM}
        v_lshl_add_u32 v{EA+11}, {vG}, 3, s75
        v_lshlrev_b32 v5, 3, {vN}
        v_add_u32 v{EA+12}, {self.NRM}, v5
        v_lshlrev_b32 v{EA+13}, 2, {vG}
        s_lshl_b32 s79, {sG}, 4
        s_add_u32 s79, s79, {sT}
        s_lshl_b32 s79, s79, 7
        s_lshl_b32 s75, {sWM}, 4
        s_add_u32 s79, s79, s75
        s_lshl_b32 s75, {sLAYER}, 15
        s_add_u32 s79, s79, s75
        s_add_u32 s79, s79, {F_KMAX*FSTRIDE}
        s_waitcnt vmcnt(0)
        s_barrier""")
        self.stamp(6)

        def reads(k):
            kk, f = k % 20, self.QF + 16 * (k % 3)
            hi, off = kk // 10, (kk % 10) * 4096
            r = []
            for j in range(2):
                r.append(f"ds_read_b128 {vr(f+4*j,4)}, v{AD+hi} offset:{off+1024*j}")
                for i in range(2):
                    r.append(f"ds_read_b64_tr_b16 {vr(f+8+4*j+2*i,2)}, v{AD+2+4*hi+2*j+k%2} offset:{off+1024*i}")
            return r
        for r in reads(0) + reads(1):
            a(r)
        SSR = 8
        for k in range(40):
            a(f"s_waitcnt lgkmcnt({6 if k < 39 else 0})")
            rr = reads(k + 2) if k + 2 < 40 else []
            if k == 39:
                rr = [f"ds_read_b32 v{SSR+4*nt+w}, v{EA+3} offset:{512*w+128*nt}" for nt in range(2) for w in range(4)]
            f = self.QF + 16 * (k % 3)
            per = (2, 2, 1, 1) if k < 39 else (4, 4, 0, 0)
            for j, (mt, nt) in enumerate(((0, 0), (1, 0), (1, 1), (0, 1))):
                d = vr(self.QACC + 32 * nt + 16 * mt, 16)
                a(f"v_mfma_f32_32x32x16_bf16 {d}, {vr(f+4*mt,4)}, {vr(f+8+4*nt,4)}, {'0' if k == 0 else d}")
                if j == 0 and (k == 39 or ((k + 2) % 4 == 0 and k + 2 < 40)):
                    a("s_barrier")
                for _ in range(per[j]):
                    if rr:
                        a(rr.pop(0))
        self.stamp(7)
        KR, K2R, VR, Q2T, VT, RSD, N, W = 144, 152, 154, 166, 168, 220, self.NREG, 224
        a("s_waitcnt lgkmcnt(0)")
        for nt in range(2):
            s = SSR + 4 * nt
            a(f"v_pk_add_f32 {vr(s,2)}, {vr(s,2)}, {vr(s+2,2)}")
        for nt in range(2):
            a(f"v_add_f32 v{SSR+4*nt}, v{SSR+4*nt}, v{SSR+4*nt+1}")
        for nt in range(2):
            a(f"v_fma_f32 v{RSD+2*nt}, v{SSR+4*nt}, s78, v{EA+10}")
        for nt in range(2):
            a(f"v_rsq_f32 v{RSD+2*nt}, v{RSD+2*nt}")

        def sc(dst, src, n, nt):
            for h in range(n):
                r = vr(src + 2 * h, 2)
                a(f"v_pk_mul_f32 {r}, {r}, {vr(RSD+2*nt,2)} op_sel_hi:[1,0]")
            for h in range(n):
                a(f"v_cvt_pk_bf16_f32 v{dst+h}, v{src+2*h}, v{src+2*h+1}")

        def sq(acc, srcs):
            for j, r in enumerate(srcs):
                if j == 0:
                    a(f"v_pk_mul_f32 {vr(acc,2)}, {vr(r,2)}, {vr(r,2)}")
                else:
                    a(f"v_pk_fma_f32 {vr(acc,2)}, {vr(r,2)}, {vr(r,2)}, {vr(acc,2)}")
        PB = [self.QACC + 32 * nt for nt in range(2)]
        for nt in range(2):
            sc(VR + 6 * nt, PB[nt] + 20, 6, nt)
            for i in range(3):
                a(f"ds_write_b64 v{EA}, {vr(VR+6*nt+2*i,2)} offset:{8*i+1536*nt}")
            for i in range(4):
                a(f"ds_read_b64_tr_b16 {vr(VT+8*nt+2*i,2)}, v{EA+1} offset:{(i//2)*768+(i%2)*192+1536*nt}")
        for nt in range(2):
            sc(KR + 4 * nt, PB[nt] + 8, 4, nt)
            a(f"buffer_store_dwordx4 {vr(KR+4*nt,4)}, {vL16}, {WS}, s77 offen offset:{A.TILE*nt} sc1")
            sc((Q2T, K2R)[nt], PB[nt] + 16, 2, nt)
        for i in range(2):
            a(f"v_permlane32_swap_b32 v{Q2T+i}, v{K2R+i}")
        a(f"""buffer_store_dwordx2 {vr(K2R,2)}, v{EA+6}, {WS}, s76 offen sc1
        s_mov_b64 exec, {A.VMASK}
        s_waitcnt lgkmcnt(0)""")
        for nt in range(2):
            for i in range(2):
                a(f"buffer_store_dwordx4 {vr(VT+8*nt+4*i,4)}, v{EA+2}, {WS}, s77 offen offset:{A.TILE*nt+1024+A.VFR*i} sc1")
        for nt in range(2):
            for i in range(2):
                a(f"ds_write_b128 v{EA+5}, {vr(VT+8*nt+4*i,4)} offset:{A.TILE*nt+1024+A.VFR*i}")
        a("s_mov_b64 exec, -1")
        for nt in range(2):
            sc(AR.Q1 + 4 * nt, PB[nt], 4, nt)
            a(f"ds_write_b128 v{EA+4}, {vr(KR+4*nt,4)} offset:{A.TILE*nt}")
            a(f"ds_write_b128 v{EA+8}, {vr(AR.Q1+4*nt,4)} offset:{1024*nt}")
        a(f"ds_write_b64 v{EA+7}, {vr(K2R,2)}")
        a(f"ds_write_b64 v{EA+9}, {vr(Q2T,2)} offset:2048")
        for nt in range(2):
            sq(W + 4 * nt, [PB[nt] + 2 * h for h in (0, 1, 2, 3)])
            sq(W + 4 * nt + 2, [PB[nt] + 2 * h for h in (4, 5, 6, 7)])
        for half, ex in enumerate(("exec_hi", "exec_lo")):
            a(f"s_mov_b32 {ex}, 0")
            for nt in range(2):
                for h in (8, 9):
                    r, c = vr(PB[nt] + 2 * h, 2), vr(W + 4 * nt + 2 * half, 2)
                    a(f"v_pk_fma_f32 {c}, {r}, {r}, {c}")
            a(f"s_mov_b32 {ex}, -1")
        for j in range(4):
            a(f"v_add_f32 v{N+j}, v{W+2*j}, v{W+2*j+1}")
        a(f"v_max3_f32 v{W}, abs(v{PB[0]+20}), abs(v{PB[0]+21}), abs(v{PB[1]+20})")
        rest = [PB[1] + 21] + [PB[nt] + h for nt in range(2) for h in range(22, 28)]
        rest.append(rest[-1])
        for j in range(0, len(rest), 2):
            a(f"v_max3_f32 v{W}, v{W}, abs(v{rest[j]}), abs(v{rest[j+1]})")
        a(f"v_permlane32_swap_b32 v{N}, v{N+2}\nv_permlane32_swap_b32 v{N+1}, v{N+3}\ns_mov_b32 exec_hi, 0")
        for nt in range(2):
            for h in (28, 30):
                a(f"v_max3_f32 v{W}, v{W}, abs(v{PB[nt]+h}), abs(v{PB[nt]+h+1})")
        a(f"""s_mov_b32 exec_hi, -1
        v_pk_add_f32 {vr(N,2)}, {vr(N,2)}, {vr(N+2,2)}
        v_cmp_gt_f32 vcc, {fbits(2.0**50)}, v{W}
        v_cndmask_b32 v{N+1}, 0x7f800000, v{N+1}, vcc""")
        for j, sh in enumerate((8, 4, 2, 1)):
            a(f"v_mov_b32 v{AR.Q2+6*(j//2)+j%2}, v{Q2T+j%2}")
            for r in (N, N + 1):
                a(f"v_max_u32 v{r}, v{r}, v{r} row_ror:{sh} row_mask:0xf bank_mask:0xf")
        a(f"""s_mov_b32 exec_lo, 0x10001
        s_mov_b32 exec_hi, 0x10001
        ds_write_b64 v{EA+11}, {vr(N,2)}
        buffer_store_dword v{N+1}, v{EA+13}, {WS}, s79 offen sc1
        s_mov_b64 exec, -1""")
        self.q2_spread()
        a(f"""s_waitcnt lgkmcnt(0)
        s_barrier
        ds_read_b64 {vr(N,2)}, v{EA+12}""")

    def kv_dma(self):
        return [f"buffer_load_dwordx4 {vL16}, {WS}, s81 offen sc1 lds",
                f"buffer_load_dwordx4 {vL16}, {WS}, s81 offen offset:1024 sc1 lds",
                "s_mov_b32 exec_hi, 0",
                f"buffer_load_dwordx4 {vL16}, {WS}, s81 offen offset:2048 sc1 lds",
                "s_mov_b32 exec_hi, -1"]

    def att_dma(self, c):
        a = self.a
        a(f"s_mul_i32 s81, s80, {A.CHUNK}\ns_add_u32 m0, s85, {A.slot_off(c)}\ns_add_u32 s81, s81, s86")
        for x in self.kv_dma():
            a(x)
        a("s_add_u32 s80, s80, 1\ns_and_b32 s80, s80, 15")

    def att_slow(self):
        a = self.a
        M = 140
        for i in range(32):
            a(f"v_mov_b32 v{AR.O+i}, 0")
        a(f"v_mov_b32 v{M}, 0xff800000\nv_mov_b32 v{M+1}, 0xff800000\ns_waitcnt vmcnt(0)")
        for ps in range(2):
            lp = a.lab("Lsl")
            a(f"s_mov_b32 s80, 0\n{lp}:\ns_barrier")
            self.att_dma(0)
            a("s_waitcnt vmcnt(0)\ns_barrier")
            for n in range(4):
                if n % 2 == 0:
                    for r in A.rd_k(n // 2) + (A.rd_v(n // 2) if ps else []):
                        a(r)
                    a("s_waitcnt lgkmcnt(0)")
                a(A.qk1(n))
                a(A.qk2(n))
                s = AR.S + 16 * (n % 3)
                if ps == 0:
                    for i in range(8):
                        a(f"v_max3_f32 v{M+n%2}, v{M+n%2}, v{s+2*i}, v{s+2*i+1}")
                else:
                    for i in range(16):
                        a(f"v_sub_f32 v{s+i}, v{s+i}, v{M+n%2}")
                    for i in range(16):
                        a(A.ex(n, i))
                    a(A.pv(n, 0))
                    a(A.pv(n, 1))
            a(f"s_cmp_lg_u32 s80, 0\ns_cbranch_scc1 {lp}")
            if ps == 0:
                off = A.SLOT0 + A.slot_off(1)
                a(f"""v_lshlrev_b32 v5, 3, {vTID}
                v_xor_b32 v6, 0x800, v5
                v_add_u32 v5, {off}, v5
                v_add_u32 v6, {off}, v6
                ds_write_b64 v5, {vr(M,2)}
                s_waitcnt lgkmcnt(0)
                s_barrier
                ds_read_b64 {vr(M+2,2)}, v6
                s_waitcnt lgkmcnt(0)""")
                for q in range(2):
                    a(f"""v_max_f32 v{M+q}, v{M+q}, v{M+2+q}
                    v_mov_b32 v5, v{M+q}
                    v_permlane32_swap_b32 v5, v{M+q}
                    v_max_f32 v{M+q}, v5, v{M+q}""")
        for i in range(13):
            for x in self.img_piece(i):
                a(x)

    def img_piece(self, i):
        r = []
        if i % 4 == 0:
            r += [f"s_add_u32 m0, s8, {1024*i}", f"s_add_u32 s10, s9, {1024*i}"]
        ld = f"buffer_load_dwordx4 {vL16}, {WS}, s10 offen offset:{1024*(i%4)} sc1 lds"
        return r + (["s_mov_b32 exec_hi, 0", ld, "s_mov_b32 exec_hi, -1"] if i == 12 else [ld])

    def attention(self):
        a = self.a
        N = self.NREG
        l0, l1, l2, l3, l4, l5, slow, done, loop = (a.lab("La") for _ in range(9))
        a(f"""s_lshl_b32 s11, {sG}, 11
        s_add_u32 s11, s11, {sFL}
        s_add_u32 s11, s11, {F_KV*FSTRIDE}
        s_lshl_b32 s12, {sT}, 7
        s_add_u32 s12, s12, s11
        s_mul_i32 s8, {sWV}, 12800
        s_mov_b32 s9, {WOT}
        s_cmp_eq_u32 {sLAYER}, 0
        s_cselect_b32 s9, {WOH}, s9
        s_mul_i32 s72, {sCB}, 102400
        s_add_u32 s9, s9, s72
        s_add_u32 s9, s9, s8""")
        self.stamp(8)
        A.start(a, 0)
        redo, back, lo, li = (a.lab("Lredo") for _ in range(4))
        a(f"v_cmp_lt_u32 vcc, 0x7f800000, v{N}\ns_cbranch_vccnz {redo}\n{back}:")
        chk = "\n".join(self.umax(5, [5, 60, 61, 62, 63]))
        self.cold.append(f"""{redo}:
        s_cmp_lg_u32 s14, 0
        s_cbranch_scc1 {back}
        s_mov_b32 s14, 1
        s_mov_b32 s88, {SPIN >> 4}
        {lo}:
        s_mul_i32 s72, {sT}, 163840
        s_add_u32 s72, s72, {sXB}
        s_mul_i32 s73, {sWV}, 20480
        s_add_u32 s72, s72, s73
        s_add_u32 s73, s72, 20480
        v_mov_b32 v5, 0
        {li}:
        buffer_load_dwordx4 v[60:63], {vL16}, {WS}, s72 offen sc1
        s_add_u32 s72, s72, 1024
        s_cmp_lt_u32 s72, s73
        s_waitcnt vmcnt(0)
        {chk}
        s_cbranch_scc1 {li}
        v_cmp_eq_u32 vcc, -1, v5
        s_sub_u32 s88, s88, 1
        s_cselect_b64 vcc, 0, vcc
        s_cbranch_vccnz {lo}
        s_waitcnt lgkmcnt(0)
        s_barrier
        s_branch Lqkv""")

        def publish():
            lw = a.lab("La")
            self.if_lo(lw)
            a(f"s_waitcnt vmcnt(0)\n{lw}:\ns_barrier")
            self.push("s11", 7, wave=0)
        for n in range(4):
            A.iteration(a, n, 4, publish if n == self.pub else None, first=(n == 0))
        a(A.pv(3, 1))
        self.stamp(9)
        self.if_lo(l1)
        a("s_barrier")
        for sh in (8, 4, 2, 1):
            a(f"v_max_u32 v{N}, v{N}, v{N} row_ror:{sh} row_mask:0xf bank_mask:0xf")
        a(f"""v_lshrrev_b32 v5, 2, {vL}
        v_and_b32 v6, 3, {vL}
        v_lshlrev_b32 v6, 4, v6
        v_lshl_add_u32 v{N+1}, v5, 7, v6
        s_lshl_b32 s76, {sG}, 11
        s_lshl_b32 s75, {sLAYER}, 15
        s_add_u32 s76, s76, s75
        s_add_u32 s76, s76, {F_KMAX*FSTRIDE}""")
        self.wait_lines("s12", 1, 16)
        a(f"""s_mul_i32 s72, {sWM}, 2560
        s_add_u32 s73, s85, s72
        s_add_u32 s74, s86, s72
        s_movk_i32 s75, 2560""")
        for c in (1, 2):
            a(f"""s_add_u32 s80, {sT}, {c}
            s_and_b32 s80, s80, 15
            s_mul_i32 s81, s80, {A.CHUNK}
            s_add_u32 m0, s73, {A.slot_off(c)}
            s_add_u32 s81, s81, s74""")
            for i in range(4):
                a(f"buffer_load_dwordx4 {vL16}, {WS}, s81 offen offset:{1024*i} sc1 lds")
            a(f"s_add_u32 m0, m0, 4096\ns_add_u32 s81, s81, 4096")
            a(f"buffer_load_dwordx4 {vL16}, {WS}, s81 offen sc1 lds")
            if c == 1:
                a(f"buffer_load_dwordx4 v[140:143], v{N+1}, {WS}, s76 offen sc1")
        a(f"""s_waitcnt vmcnt(5)
        v_max3_u32 v7, v140, v141, v142
        v_max_u32 v7, v7, v143
        v_mul_f32 v7, v7, v{N}
        v_cmp_nge_f32 vcc, {fbits(3600.0)}, v7
        s_or_b32 s72, vcc_lo, vcc_hi
        v_mov_b32 v5, {A.SLOT0 + A.slot_off(0)}
        v_mov_b32 v6, s72
        v_mad_u32_u24 v5, {vL}, s75, v5
        s_mov_b64 exec, 0xff
        ds_write_b32 v5, v6
        s_mov_b64 exec, -1
        s_branch {l3}
        {l1}:
        s_waitcnt vmcnt(0)
        s_barrier
        s_cmp_lg_u32 {sLAYER}, 0
        s_cbranch_scc1 {l4}""")
        self.unpack(GLO, GA, 10)
        a(f"s_lshl_b32 s72, {sWM}, 9\ns_add_u32 s72, s72, {sREP}\ns_add_u32 s72, s72, {F_IMG*FSTRIDE}")
        self.wait_lines("s72", 4, 6)
        a(f"s_branch {l3}\n{l4}:")
        self.gcore(0, 20, False, True, False)
        a(f"v_mov_b32 v6, {fbits(AMP)}")
        for h in range(10):
            a(f"v_pk_mul_f32 {vr(GLO+2*h,2)}, {vr(GLO+2*h,2)}, v[6:7] op_sel_hi:[1,0]")
        a(f"""{l3}:
        v_mov_b32 v5, s85
        s_add_u32 s80, {sT}, 3
        s_and_b32 s80, s80, 15
        s_waitcnt lgkmcnt(0)
        s_barrier
        ds_read_b32 v6, v5 offset:{A.slot_off(0)}""")
        self.stamp(10)
        A.start(a, 4)
        self.att_dma(0)
        a(f"""v_readfirstlane_b32 s72, v6
        s_cmp_lg_u32 s72, 0
        s_cbranch_scc1 {slow}""")
        NT = 64
        prio = ((0, 0), (1, 0), (1, 3))

        def bnd(c):
            def f():
                cnt = {1: 9, 2: 16}.get(c, 3 if c < 14 else 0)
                a(f"s_waitcnt vmcnt({cnt}) lgkmcnt(0)\ns_barrier\ns_setprio 3")
            return f

        def hooks(n):
            h = {}

            def add(k, xs):
                h.setdefault(k, []).extend(xs)
            for lvl, (t, k) in zip((2, 1, 0), prio):
                if n % 4 == t:
                    add(k, [f"s_setprio {lvl}"])
            c = (n - 2) // 4
            d = self.kv_dma()
            if 1 <= c < 13:
                if n % 4 == 2:
                    add(2, [f"s_mul_i32 s81, s80, {A.CHUNK}", f"s_add_u32 m0, s85, {A.slot_off(c)}"])
                    add(3, ["s_add_u32 s81, s81, s86"])
                if n % 4 == 3:
                    add(0, d[:1])
                    add(2, ["s_add_u32 s80, s80, 1", "s_and_b32 s80, s80, 15"] + d[1:2])
                    add(3, d[2:])
            img = {4: (0, 1, 2), 5: (3, 4, 5), 8: (6, 7, 8, 9), 9: (10, 11, 12)}.get(n, ())
            for j, i in enumerate(img):
                x = self.img_piece(i)
                if i == 6:
                    x = ["s_add_u32 m0, s8, 4096"] + x
                add((0, 2, 3, 3)[j], x)
            return h
        for n in range(4, 14):
            A.iteration(a, n, NT, bnd(n // 4) if n % 4 == 2 else None, first=(n == 4), hooks=hooks(n))
        a(f"s_mov_b32 s82, 3\n.p2align 6\n{loop}:")
        for n in range(14, 26):
            h = hooks(n)
            if n == 25:
                h.setdefault(2, []).extend(["s_sub_u32 s82, s82, 1", "s_cmp_lg_u32 s82, 0"])
            A.iteration(a, n, NT, bnd(n // 4) if n % 4 == 2 else None, hooks=h)
        a(f"s_cbranch_scc1 {loop}")
        for n in range(50, 64):
            c = n // 4
            A.iteration(a, n, NT, bnd(c) if (n % 4 == 2 and c < 15) else None, hooks=hooks(n))
        a(A.pv(63, 1))
        a(f"{done}:")
        self.slow_labels = (slow, done)
        O, R, X = AR.O, AR.S, AR.S + 16
        l6, l7, l8, l9 = (a.lab("La") for _ in range(4))
        a(f"""s_setprio 0
        s_mul_i32 s72, {sWM}, 3072
        s_add_u32 s72, s72, {A.SLOT0}
        v_add_u32 v5, s72, {vL16}
        s_lshl_b32 s72, {sT}, 5
        s_lshl_b32 s73, {sG}, 1
        s_add_u32 s72, s72, s73
        s_lshr_b32 s73, {sWM}, 1
        s_add_u32 s72, s72, s73
        s_and_b32 s73, {sWM}, 1
        s_lshl_b32 s73, s73, 1
        s_add_u32 s73, s73, {sHI}
        s_lshl_b32 s74, s72, 12
        s_lshl_b32 s75, s73, 9
        s_add_u32 s74, s74, s75
        s_add_u32 s74, s74, {sO}
        s_lshl_b32 s75, s72, 10
        s_lshl_b32 s76, s73, 8
        s_add_u32 s75, s75, s76
        s_add_u32 s75, s75, {sO}
        s_add_u32 s75, s75, {OXOFF}""")
        self.if_lo(l6)
        for p, (skip, nxt) in enumerate(((l6, l7), (None, None))):
            for i in range(3):
                a(f"ds_write_b128 v5, {vr(O+16*(1-p)+4*i,4)} offset:{2*A.CHUNK*p+1024*i}")
            a("s_waitcnt lgkmcnt(0)\ns_barrier")
            for i in range(3):
                a(f"ds_read_b128 {vr(X+4*i,4)}, v5 offset:{2*A.CHUNK*(1-p)+1024*i}")
            a(f"v_lshrrev_b32 v5, 5, {vL}\nv_mul_u32_u24 v5, 1536, v5\ns_waitcnt lgkmcnt(0)")
            for h in (4, 5, 0, 1, 2, 3):
                a(f"v_pk_add_f32 {vr(R+2*h,2)}, {vr(O+16*p+2*h,2)}, {vr(X+2*h,2)}")
            if skip:
                a(f"s_branch {nxt}\n{skip}:")
        a(f"""{l7}:
        v_mov_b32 v6, v{R+8}
        v_mov_b32 v7, v{R+8}
        v_add_u32 v5, v5, {vL16}
        v_lshlrev_b32 v16, 3, {vL}
        v_permlane32_swap_b32 v7, v6
        v_rcp_f32 v6, v6""")
        for h in range(4):
            a(f"v_pk_mul_f32 {vr(R+2*h,2)}, {vr(R+2*h,2)}, v[6:7] op_sel_hi:[1,0]")
        for h in range(4):
            a(f"v_cvt_pk_bf16_f32 v{8+h}, v{R+2*h}, v{R+2*h+1}")
        a(f"buffer_store_dwordx4 v[8:11], v5, {WS}, s74 offen sc1")
        for h in range(4, 6):
            a(f"v_pk_mul_f32 {vr(R+2*h,2)}, {vr(R+2*h,2)}, v[6:7] op_sel_hi:[1,0]")
        for h in range(4, 6):
            a(f"v_cvt_pk_bf16_f32 v{8+h}, v{R+2*h}, v{R+2*h+1}")
        a(f"""s_mov_b32 exec_hi, 0
        buffer_store_dwordx2 v[12:13], v16, {WS}, s75 offen sc1
        s_mov_b64 exec, -1""")

    def o_loads(self):
        a = self.a
        a(f"""s_lshl_b32 s72, {sHALF}, 6
        s_lshl_b32 s73, {sWM}, 4
        s_add_u32 s72, s72, s73
        v_add_u32 v5, s72, {vN}
        v_lshlrev_b32 v6, 11, {vG}
        v_lshl_add_u32 v141, v5, 4, v6
        v_lshl_add_u32 v142, v5, 3, v6
        s_lshl_b32 s72, {sT}, 17
        s_add_u32 s72, s72, {sO}
        s_lshl_b32 s73, {sT}, 15
        s_add_u32 s73, s73, {sO}
        s_add_u32 s73, s73, {OXOFF}""")
        self.wait_lines("s34", 1, 16)
        self.stamp(12)
        for ks in range(16):
            a(f"buffer_load_dwordx4 {vr(GA+4*ks,4)}, v141, {WS}, s72 offen sc1")
            a("s_add_u32 s72, s72, 8192")
        for ks in range(16, 20):
            for i in range(2):
                a(f"buffer_load_dwordx2 {vr(GA+4*ks+2*i,2)}, v142, {WS}, s73 offen offset:{1024*i} sc1")
            a("s_add_u32 s73, s73, 8192")

    @staticmethod
    def o_wait(ks):
        return (15 - ks) + 8 if ks < 16 else 2 * (19 - ks)

    def res_load(self):
        a = self.a
        a(f"""s_mul_i32 s72, {sT}, 163840
        s_mul_i32 s73, {sCB}, 20480
        s_add_u32 s72, s72, s73
        s_lshl_b32 s73, {sHALF}, 7
        s_add_u32 s72, s72, s73
        s_lshl_b32 s73, {sWM}, 5
        s_add_u32 s72, s72, s73
        s_add_u32 s72, s72, {sXB}
        v_lshlrev_b32 v5, 8, {vN}
        v_lshl_add_u32 v5, {vG}, 3, v5""")
        for ct in range(5):
            a(f"buffer_load_dwordx2 {vr(GA+2*ct,2)}, v5, {WS}, s72 offen sc1")
            a("s_add_u32 s72, s72, 4096")

    def final_store(self):
        a = self.a
        a(f"""s_mul_i32 s72, {sWM}, {16*176}
        s_add_u32 s72, s72, {EP}
        v_mul_u32_u24 v5, 176, {vN}
        v_lshl_add_u32 v5, {vG}, 3, v5
        v_add_u32 v5, s72, v5""")
        for ct in range(5):
            a(f"v_cvt_pk_bf16_f32 v{16+2*ct}, v{GLO+4*ct}, v{GLO+4*ct+1}")
            a(f"v_cvt_pk_bf16_f32 v{17+2*ct}, v{GLO+4*ct+2}, v{GLO+4*ct+3}")
            a(f"ds_write_b64 v5, {vr(16+2*ct,2)} offset:{ct*32}")
        a(f"""s_and_b32 s73, {sT}, 7
        s_lshl_b32 s73, s73, 8
        s_lshr_b32 s74, {sT}, 3
        s_lshl_b32 s74, s74, 4
        s_add_u32 s73, s73, s74
        s_lshl_b32 s74, {sHALF}, 3
        s_add_u32 s73, s73, s74
        s_lshl_b32 s74, {sWM}, 1
        s_add_u32 s73, s73, s74
        s_mul_i32 s73, s73, 1280
        s_mul_i32 s74, {sCB}, 160
        s_add_u32 s73, s73, s74
        s_movk_i32 s74, 176
        s_movk_i32 s75, 1280""")
        for i in range(3):
            a(f"""v_add_u32 v5, {64*i}, {vL}
            v_mul_u32_u24 v6, 205, v5
            v_lshrrev_b32 v6, 11, v6
            v_mul_u32_u24 v7, 10, v6
            v_sub_u32 v5, v5, v7
            v_lshlrev_b32 v5, 4, v5
            v_mad_u32_u24 v{8+i}, v6, s74, v5
            v_add_u32 v{8+i}, s72, v{8+i}
            v_and_b32 v7, 7, v6
            v_lshrrev_b32 v6, 3, v6
            v_lshl_add_u32 v6, v7, 5, v6
            v_mad_u32_u24 v{12+i}, v6, s75, v5""")
        a("s_waitcnt lgkmcnt(0)")
        for i in range(3):
            a(f"ds_read_b128 {vr(28+4*i,4)}, v{8+i}")
        for i in range(3):
            if i == 2:
                a("s_mov_b32 exec_hi, 0")
            a(f"s_waitcnt lgkmcnt({2-i})")
            a(f"buffer_store_dwordx4 {vr(28+4*i,4)}, v{12+i}, {SOUT}, s73 offen{' sc1' if 'osc1' in self.opts else (' nt' if 'ont' in self.opts else '')}")

    def build(self):
        a = self.a
        self.prologue()
        self.phase0()
        a(f"""s_mov_b32 {sXA}, {X0}
        s_mov_b32 {sXB}, {X0+XSZ}
        s_mov_b32 {sKV}, {KV0}
        s_mov_b32 {sO}, {OM0}
        s_mov_b32 {sSS}, {SS0}
        s_mov_b32 s35, 0
        Llayer:""")
        idle, cdone, l0, l1, l2, l3, l4, l5, l6, l7, l8, last = (a.lab("Lm") for _ in range(12))
        a(f"s_cmp_ge_u32 {sR}, 20\ns_cbranch_scc1 {idle}")
        self.col_consts()
        self.col_main()
        a(f"""s_branch {cdone}
        {idle}:
        s_cmp_lg_u32 {sLAYER}, 0
        s_cbranch_scc1 {l0}""")
        self.job_woh()
        a(f"s_branch {l1}\n{l0}:")
        self.job_images()
        a(f"s_add_u32 s72, {sSH}, {(F_IMG+1)*FSTRIDE}\ns_barrier")
        self.push("s72", 11, wave=0)
        a(f"{l1}:\nv_mov_b32 v19, 0\n{cdone}:")
        self.stamp(5)
        a(f"""s_waitcnt {"vmcnt(0) " if "drainc" in self.opts else ""}lgkmcnt(0)
        s_barrier
        s_cmp_ge_u32 {sR}, 20
        s_cbranch_scc1 {l8}
        s_mul_i32 s72, {sX}, 20
        s_add_u32 s72, s72, {sR}
        s_and_b32 s72, s72, 15
        s_lshl_b32 s72, s72, 7
        s_add_u32 s72, s72, {sFL}
        s_add_u32 s72, s72, {F_COL*FSTRIDE}""")
        self.push("s72", 11, wave=0)
        a(f"{l8}:")
        self.if_hi(l2)
        self.pre_flags()
        a(f"s_waitcnt vmcnt(2)\ns_mov_b64 exec, 15\nv_cmp_gt_u32 vcc, s89, v19\ns_mov_b64 exec, -1\ns_cbranch_vccz {l2}")
        self.wait_lines("s72", 4, "s89")
        a(f"{l2}:\ns_barrier\ns_mov_b32 s14, 0\nLqkv:")
        self.if_lo(l3)
        self.qkv_compute()
        a(f"s_branch {l4}\n{l3}:")
        self.qkv_helper()
        a(f"{l4}:")
        self.attention()
        self.stamp(11)
        a(f"""s_lshl_b32 s72, {sT}, 11
        s_add_u32 s72, s72, {sFL}
        s_add_u32 s72, s72, {F_O*FSTRIDE}
        s_lshl_b32 s34, {sG}, 7
        s_add_u32 s34, s34, s72
        s_waitcnt vmcnt(0)
        s_barrier""")
        self.push("s72", 7, wave=0)
        a(f"s_cmp_lg_u32 {sLAYER}, 0\ns_cbranch_scc1 {last}")
        self.if_lo(l5)
        self.x_store_setup()
        a(f"""s_mul_i32 s84, {sT}, 163840
        s_mul_i32 s85, {sCB}, 20480
        s_add_u32 s84, s84, s85
        s_lshl_b32 s85, {sHALF}, 7
        s_add_u32 s84, s84, s85
        s_add_u32 s84, s84, {X0+2*XSZ}""")
        self.x_store("s84", fill=True)
        a(f"s_cmp_ge_u32 {sR}, 20\ns_cbranch_scc1 {l6}")
        self.col_tables(sWM, 4)
        self.col_early()
        a(f"s_add_u32 s72, s5, {X0+3*XSZ}\ns_add_u32 s73, s72, {4*163840}")
        self.fill_cols("s72", "s73", 60)
        a(f"{l6}:\ns_waitcnt vmcnt(0) lgkmcnt(0)\ns_barrier")
        self.x_store("s84")
        a(f"s_branch {l7}\n{l5}:")
        self.col_early()
        self.ep_setup()
        self.o_loads()
        self.gcore(0, 20, False, False, True, self.o_wait)
        self.ep_write(False)
        a(f"""s_lshl_b32 s85, {sT}, 12
        s_lshl_b32 s86, {sCB}, 9
        s_add_u32 s85, s85, s86
        s_lshl_b32 s86, {sHALF}, 8
        s_add_u32 s85, s85, s86
        s_add_u32 s85, s85, {SS0+65536}
        s_waitcnt lgkmcnt(0)
        s_barrier""")
        self.ss_store(sCB, "s85")
        a(f"{l7}:")
        self.stamp(13)
        a(f"""s_mov_b32 {sLAYER}, 1
        s_mov_b32 {sXA}, {X0+2*XSZ}
        s_mov_b32 {sXB}, {X0+3*XSZ}
        s_mov_b32 {sKV}, {KV0+KVSZ}
        s_mov_b32 {sO}, {OM0+OSZ}
        s_mov_b32 {sSS}, {SS0+65536}
        s_mov_b32 {sFL}, {FLAGS+4*FSTRIDE}
        s_add_u32 s72, {sSH}, {sFL}
        {"s_waitcnt vmcnt(0)" if "drainx" in self.opts else ""}
        s_barrier""")
        self.push("s72", 11, wave=0)
        a(f"s_branch Llayer\n{last}:")
        self.if_hi("Lfin")
        self.o_loads()
        self.gcore(0, 20, False, True, True, self.o_wait)
        self.final_store()
        if self.stamps or self.probe is not None:
            a("s_mov_b64 exec, -1\ns_waitcnt vmcnt(0)")
            self.stamp(13)
        if self.probe is not None:
            a("""s_memrealtime s[90:91]
            s_sub_u32 s98, s98, s100
            Lspin:
            s_memrealtime s[92:93]
            s_waitcnt lgkmcnt(0)
            s_sub_u32 s92, s92, s90
            s_cmp_lt_u32 s92, s98
            s_cbranch_scc1 Lspin""")
        a("Lfin:")
        self.stamp_dump()
        a("s_endpgm")
        self.col_early_body()
        a("Lend:\ns_endpgm")
        slow, done = self.slow_labels
        a(f"{slow}:")
        self.att_slow()
        a(f"s_branch {done}")
        for blk in self.cold:
            a(blk)
        return a.finalize()


def wrap(body):
    ref = open("cdna_kernels/" + NAME + ".s.ref").read()
    head = ref[:ref.index("; @launch")]
    out = head + "; @launch grid=(256,1,1) block=(512,1,1) lds=163840\n"
    out += f""".amdgcn_target "amdgcn-amd-amdhsa--gfx950"
.text
.globl {NAME}_kernel
.p2align 8
.type {NAME}_kernel,@function
{NAME}_kernel:
"""
    out += body
    out += ref[ref.index(".section .rodata"):]
    return out


if __name__ == "__main__":
    stamps = "--stamps" in sys.argv
    path = sys.argv[1]
    opts = [x[2:] for x in sys.argv[2:] if x.startswith("--")]
    g = Gen(stamps=stamps, opts=opts)
    txt = wrap(g.build())
    if "nosc1lds" in opts:
        txt = txt.replace(" sc1 lds", " lds")
    open(path, "w").write(txt)
    print("wrote", path, len(txt), "bytes; padded wait states", g.a.padded)
```

```python
import math, struct, sys
from asmlib import *
import attn as A
from attn import AR
from layout import *

NAME = "interleave_layers__spectral_gfnet__mha_block__prompt"


def fbits(x):
    return "0x%08x" % struct.unpack("<I", struct.pack("<f", x))[0]


WS, SX, SWF, SWQ, SWO, SOUT, SDBG = "s[20:23]", "s[24:27]", "s[28:31]", "s[36:39]", "s[40:43]", "s[44:47]", "s[48:51]"
sB, sWV, sX, sR, sT, sG, sHALF, sCB, sLAYER, sCB0, sTB0 = "s2", "s3", "s52", "s53", "s54", "s55", "s56", "s57", "s58", "s59", "s60"
sXA, sXB, sKV, sO, sSS, sFL, sSTAMP, sWM, sHI = "s61", "s62", "s63", "s64", "s65", "s66", "s67", "s68", "s69"
vTID, vL, vN, vG, vL16 = "v0", "v1", "v2", "v3", "v4"

AMP = math.sqrt(2.0 / 640)
QS = 20 ** -0.5 * math.log2(math.e)
SPIN = 1 << 16

XS, FI, EP, TB, TRS = 0, 81920, 133120, 145408, 157696
GA, GB, GLO, GHI = 164, 60, 144, 120
F_X, F_COL, F_KV, F_O, F_WQ, F_IMG, F_KMAX = 0, 1, 2, 3, 8, 9, 11
sSH, sREP = "s32", "s33"


class Gen:
    def __init__(self, stamps=False, opts=()):
        self.opts = set(opts)
        self.a = Asm()
        self.stamps = stamps
        self.olead = next((int(o[2:]) for o in self.opts if o.startswith("ol")), 10)
        self.cold = []
        self.wg = next((int(o[2:]) for o in self.opts if o.startswith("wg")), 5)
        self.probe = next((int(o[5:]) for o in self.opts if o.startswith("probe")), None)
        self.stw = next((int(o[3:]) for o in self.opts if o.startswith("stw")), 0)
        self.pub = next((int(o[3:]) for o in self.opts if o.startswith("pub")), 1)

    def stamp(self, k):
        if self.probe is not None and k == self.probe % 16:
            l = self.a.lab("Lpb")
            self.a(f"""s_cselect_b32 s91, 1, 0
            s_cmp_lg_u32 {sLAYER}, {self.probe//16}
            s_cbranch_scc1 {l}
            s_memrealtime s[98:99]
            s_waitcnt lgkmcnt(0)
            {l}:
            s_cmp_lg_u32 s91, 0""")
        if not self.stamps:
            return
        a = self.a
        a(f"""s_memrealtime s[90:91]
        s_memtime s[96:97]
        s_mov_b32 s93, m0
        s_mul_i32 s92, {sLAYER}, 16
        s_bitset0_b32 s92, 31
        s_waitcnt lgkmcnt(0)
        s_cselect_b32 s91, 1, 0
        s_add_u32 m0, s92, {k}
        s_cmp_lg_u32 s91, 0
        v_writelane_b32 v252, s90, m0
        v_writelane_b32 v253, s96, m0
        s_mov_b32 m0, s93""")

    def stamp_dump(self):
        if not self.stamps:
            return
        a = self.a
        l = a.lab("Lst")
        a(f"""s_cmp_lg_u32 {sWM}, {self.stw}
        s_cbranch_scc1 {l}
        s_mov_b64 exec, -1
        v_lshlrev_b32 v254, 3, {vL}
        s_getreg_b32 s90, hwreg(HW_REG_XCC_ID)
        s_getreg_b32 s91, hwreg(HW_REG_HW_ID)
        v_writelane_b32 v252, s90, 32
        v_writelane_b32 v253, s91, 32
        s_mov_b32 exec_hi, 1
        buffer_store_dwordx2 v[252:253], v254, {WS}, {sSTAMP} offen
        {l}:""")

    def fstamp(self, grp, k):
        if "fine" + grp in self.opts:
            self.stamp(k)

    def if_lo(self, lab):
        self.a(f"s_cmp_lg_u32 {sHI}, 0\ns_cbranch_scc1 {lab}")

    def if_hi(self, lab):
        self.a(f"s_cmp_eq_u32 {sHI}, 0\ns_cbranch_scc1 {lab}")

    def prologue(self):
        a = self.a
        l0, l1, lp = a.lab("Lp"), a.lab("Lp"), a.lab("Lp")
        a(f"""s_cmp_ge_u32 {sB}, 256
        s_cbranch_scc1 Lend
        {"s_memrealtime s[100:101]" if self.probe is not None else ""}
        {"s_memrealtime s[98:99]" if self.probe is not None else ""}
        {"s_memrealtime s[90:91]" if self.stamps else ""}
        {"s_memtime s[96:97]" if self.stamps else ""}
        s_load_dwordx16 s[4:19], s[0:1], 0
        s_load_dwordx2 s[20:21], s[0:1], 64
        s_getpc_b64 s[72:73]
        Lpc:
        s_lshr_b32 {sR}, {sB}, 3
        v_lshlrev_b32 v6, 5, v0
        v_add_lshl_u32 v6, v6, {sR}, 7
        v_cmp_gt_u32 vcc, Lend-Lpc, v6
        s_and_saveexec_b64 s[74:75], vcc
        s_cbranch_execz {l0}
        v_mov_b32 v7, s73
        v_add_co_u32 v6, vcc, s72, v6
        v_addc_co_u32 v7, vcc, 0, v7, vcc
        global_load_dword v251, v[6:7], off
        {l0}:
        s_mov_b64 exec, s[74:75]
        v_lshrrev_b32 v5, 6, v0
        v_and_b32 {vL}, 63, v0
        v_readfirstlane_b32 {sWV}, v5
        v_and_b32 {vN}, 15, v0
        v_lshrrev_b32 {vG}, 4, {vL}
        s_and_b32 {sX}, {sB}, 7
        s_add_u32 s70, {sR}, {sX}
        s_and_b32 {sCB0}, s70, 7
        s_lshl_b32 s70, {sX}, 2
        s_lshr_b32 s71, {sR}, 3
        s_add_u32 {sTB0}, s70, s71
        s_lshr_b32 s80, {sTB0}, 1
        s_and_b32 s81, {sTB0}, 1
        s_mov_b32 s26, {XSZ}
        s_mov_b32 s27, 0x20000
        s_lshr_b32 {sHI}, {sWV}, 2
        s_cbranch_scc0 {l1}
        s_and_b32 s82, s80, 7
        s_lshl_b32 s82, s82, 5
        s_lshr_b32 s83, s80, 3
        s_lshl_b32 s83, s83, 1
        s_add_u32 s82, s82, s83
        s_add_u32 s82, s82, s81
        s_lshl_b32 s86, s82, 3
        s_add_u32 s84, {sWV}, {sCB0}
        s_and_b32 s84, s84, 7
        s_mov_b32 s85, 0""")
        self.dma_rows_setup(32 * 1280, 128 * 1280, "s84")
        a(f"""s_waitcnt lgkmcnt(0)
        s_mov_b64 s[24:25], s[4:5]
        {lp}:
        s_add_u32 s82, s86, s84
        s_mul_i32 s82, s82, 1280""")
        self.dma_rows_issue(SX, "s82", "s84")
        a(f"""s_xor_b32 s84, s84, 4
        s_xor_b32 s85, s85, 1
        s_cbranch_scc1 {lp}
        {l1}:
        v_lshlrev_b32 {vL16}, 4, {vL}
        v_mov_b32 v11, 0
        s_and_b32 s70, {sX}, 3
        s_lshl_b32 s70, s70, 2
        s_and_b32 s71, {sR}, 3
        s_add_u32 {sT}, s70, s71
        s_lshr_b32 {sHALF}, {sX}, 2
        s_lshr_b32 {sCB}, {sR}, 2
        s_lshl_b32 s70, {sHALF}, 3
        s_add_u32 {sG}, s70, {sCB}
        s_mov_b32 {sLAYER}, 0
        s_and_b32 {sWM}, {sWV}, 3
        s_mov_b32 {sFL}, {FLAGS}
        s_and_b32 {sSH}, {sB}, 15
        s_lshl_b32 {sREP}, {sSH}, 11
        s_lshl_b32 {sSH}, {sSH}, 7
        s_mov_b32 s22, {WSEND}
        s_mov_b32 s23, 0x20000
        s_mov_b32 s30, {2048*642}
        s_mov_b32 s31, 0x20000
        s_mov_b32 s38, {640*3840}
        s_mov_b32 s39, 0x20000
        s_mov_b32 s42, {640*1280}
        s_mov_b32 s43, 0x20000
        s_mov_b32 s46, {XSZ}
        s_mov_b32 s47, 0x20000
        s_mov_b32 s50, 256
        s_mov_b32 s51, 0x20000
        s_waitcnt lgkmcnt(0)
        s_cmp_lt_u32 {sX}, 4
        s_cselect_b32 s28, s6, s8
        s_cselect_b32 s29, s7, s9
        s_mov_b64 s[36:37], s[12:13]
        s_mov_b64 s[40:41], s[14:15]
        s_mov_b64 s[44:45], s[16:17]
        s_mov_b64 s[48:49], s[18:19]""")
        if self.stamps:
            a(f"""s_lshl_b32 {sSTAMP}, {sB}, 1
            s_add_u32 {sSTAMP}, {sSTAMP}, {sHI}
            s_lshl_b32 {sSTAMP}, {sSTAMP}, 9
            s_add_u32 {sSTAMP}, {sSTAMP}, {STAMP}
            v_mov_b32 v252, -1
            v_mov_b32 v253, -1
            v_writelane_b32 v252, s90, 0
            v_writelane_b32 v253, s96, 0""")

    def poll(self, srd, vaddr, soff, nlanes, target, atomic=True):
        a = self.a
        lp, dn = a.lab("Lp"), a.lab("Ld")
        if atomic:
            ld = f"v_mov_b32 v6, 0\nbuffer_atomic_add v6, {vaddr}, {srd}, {soff} offen sc0 sc1"
        else:
            ld = f"buffer_load_dword v6, {vaddr}, {srd}, {soff} offen sc1"
        a(f"""s_mov_b32 s88, {SPIN}
        s_mov_b64 exec, {hex((1 << nlanes) - 1)}
        {lp}:
        {ld}
        s_sub_u32 s88, s88, 1
        s_cbranch_scc1 {dn}
        s_waitcnt vmcnt(0)
        v_cmpx_gt_u32 vcc, {target}, v6
        {f"s_cbranch_execnz {lp}" if atomic else f"s_cbranch_execz {dn}"}
        {"" if atomic else "s_sleep 12"}
        {"" if atomic else f"s_branch {lp}"}
        {dn}:
        s_waitcnt vmcnt(0)
        s_mov_b64 exec, -1""")

    def wait_lines(self, s_off, nlanes, target):
        self.a(f"v_lshlrev_b32 v5, 7, {vL}")
        self.poll(WS, "v5", s_off, nlanes, target)

    def push(self, s_off, shift, wave=None):
        a = self.a
        l = a.lab("Lsg")
        if wave is not None:
            a(f"s_cmp_lg_u32 {sWV}, {wave}\ns_cbranch_scc1 {l}")
        a(f"""v_lshlrev_b32 v5, {shift}, {vL}
        v_mov_b32 v6, 1
        s_mov_b64 exec, 0xffff
        buffer_atomic_add v6, v5, {WS}, {s_off} offen sc1
        s_mov_b64 exec, -1
        {l}:""")

    def gen_F(self, s_ct):
        a = self.a
        a(f"""s_mov_b32 s72, {s_ct}
        s_mul_i32 s73, {sCB0}, 80
        s_lshl_b32 s74, s72, 4
        s_add_u32 s73, s73, s74
        v_add_u32 v12, s73, {vN}
        v_lshrrev_b32 v14, 1, v12
        v_and_b32 v15, 1, v12
        v_cmp_ne_u32 vcc, 0, v12
        v_cndmask_b32 v14, 0x140, v14, vcc
        v_cmp_ne_u32 vcc, 1, v12
        v_cndmask_b32 v15, 0, v15, vcc
        v_cvt_f32_u32 v14, v14
        v_cvt_f32_u32 v15, v15
        v_lshlrev_b32 v13, 3, {vG}
        v_cvt_f32_u32 v13, v13
        v_mul_f32 v10, {fbits(1/640)}, v14
        v_mul_f32 v14, {fbits(1/20)}, v14
        v_mul_f32 v15, 0.25, v15
        v_fma_f32 v16, v13, v10, v15
        s_lshl_b32 s72, s72, 10
        s_add_u32 s72, s72, {FI}
        v_add_u32 v12, s72, {vL16}""".replace("0.25", fbits(0.25)))
        for e in range(1, 8):
            a(f"v_add_f32 v{16+e}, v{15+e}, v10")
        for h in range(4):
            a(f"v_pk_add_f32 {vr(24+2*h,2)}, {vr(16+2*h,2)}, v[14:15] op_sel_hi:[1,0]")
        a("v_cos_f32 v14, v14")
        for e in range(16):
            a(f"v_cos_f32 v{16+e}, v{16+e}")
        a("v_add_f32 v14, v14, v14")
        for ks in range(10):
            x, y, p = 16 + 8 * (ks % 2), 16 + 8 * ((ks + 1) % 2), 32 + 4 * (ks % 2)
            if ks >= 2:
                for h in range(4):
                    a(f"v_pk_fma_f32 {vr(x+2*h,2)}, {vr(y+2*h,2)}, v[14:15], {vr(x+2*h,2)} "
                      f"op_sel_hi:[1,0,1] neg_lo:[0,0,1] neg_hi:[0,0,1]")
            for h in range(4):
                a(f"v_cvt_pk_bf16_f32 v{p+h}, v{x+2*h}, v{x+2*h+1}")
            a(f"ds_write_b128 v12, {vr(p,4)} offset:{5120*ks}")

    def gcore(self, base, nks, dual, swap, init, await_a=None, hook=None, order=None, feed=None):
        a = self.a
        a(f"v_add_u32 v6, {base}, {vL16}")
        if nks > 12:
            a(f"v_add_u32 v7, {base+61440}, {vL16}")

        order = list(order or range(nks))

        def rd(j, ct):
            ks = order[j]
            reg, off = ("v6", ks * 5120) if ks < 12 else ("v7", (ks - 12) * 5120)
            return f"ds_read_b128 {vr(GB+20*(j%3)+4*ct,4)}, {reg} offset:{off+ct*1024}"

        def mf(acc, ka, j, ct, first):
            x, y = vr(GA + 4 * ka, 4), vr(GB + 20 * (j % 3) + 4 * ct, 4)
            if swap:
                x, y = y, x
            d = vr(acc + 4 * ct, 4)
            return f"v_mfma_f32_16x16x32_bf16 {d}, {x}, {y}, {'0' if first else d}"
        n = len(order)
        for j in range(2):
            for ct in range(5):
                a(rd(j, ct))
        for j, ks in enumerate(order):
            w = f"lgkmcnt({5 if j + 1 < n else 0})"
            if await_a:
                w = f"vmcnt({await_a(ks)}) " + w
            a("s_waitcnt " + w)
            if hook and hook[0] == ks:
                hook[1]()
            for ct in range(5):
                a(mf(GLO, ks, j, ct, j == 0 and not init))
                if ct == 0 and feed:
                    feed(ks)
                if j + 2 < n:
                    a(rd(j + 2, ct))
                if dual:
                    a(mf(GHI, ks + 10, j, ct, j == 0))

    def dual_setup(self, s_cb):
        a = self.a
        a(f"""v_mov_b32 v52, {fbits(AMP)}
        v_lshlrev_b32 v5, 30, {vN}
        v_and_b32 v5, 0x80000000, v5
        v_xor_b32 v54, v5, v52
        s_cmp_eq_u32 {s_cb}, 0
        s_cselect_b32 s72, 2, 0
        v_cmp_le_u32 vcc, s72, {vN}
        v_cndmask_b32 v56, {fbits(AMP/math.sqrt(2))}, v52, vcc
        v_xor_b32 v58, v5, v56""")

    def ep_setup(self):
        a = self.a
        a(f"""v_mul_u32_u24 v5, 144, {vN}
        v_lshl_add_u32 v5, {vG}, 3, v5
        s_lshl_b32 s72, {sWM}, 5
        s_add_u32 s72, s72, {EP}
        v_add_u32 v140, s72, v5""")

    def ep_write(self, dual):
        a = self.a
        for ct in range(5):
            if dual:
                p, q = (56, 58) if ct == 0 else (52, 54)
                for h in range(2):
                    lo, hi = vr(GLO + 4 * ct + 2 * h, 2), vr(GHI + 4 * ct + 2 * h, 2)
                    a(f"v_pk_mul_f32 {lo}, {lo}, {vr(p,2)} op_sel_hi:[1,0]")
                    a(f"v_pk_fma_f32 {lo}, {hi}, {vr(q,2)}, {lo} op_sel_hi:[1,0,1]")
            a(f"v_cvt_pk_bf16_f32 v{GB+2*ct}, v{GLO+4*ct}, v{GLO+4*ct+1}")
            a(f"v_cvt_pk_bf16_f32 v{GB+1+2*ct}, v{GLO+4*ct+2}, v{GLO+4*ct+3}")
            self.clean(GB + 2 * ct, 2)
            a(f"ds_write_b64 v140, {vr(GB+2*ct,2)} offset:{ct*16*144}")

    def ss_store(self, s_cb, s_ss):
        a = self.a
        R = GB + 16
        a(f"""s_cmp_eq_u32 {s_cb}, 0
        s_cselect_b32 s72, 1, 99
        v_cmp_ne_u32 vcc, s72, {vN}""")
        for h in range(2):
            x = vr(GLO + 4 + 2 * h, 2)
            a(f"v_pk_mul_f32 {vr(R+2*h,2)}, {x}, {x}")
        for r in range(4):
            a(f"v_cndmask_b32 v{GLO+r}, 0, v{GLO+r}, vcc")
        for ct in (2, 3, 4, 0):
            for h in range(2):
                x = vr(GLO + 4 * ct + 2 * h, 2)
                a(f"v_pk_fma_f32 {vr(R+2*h,2)}, {x}, {x}, {vr(R+2*h,2)}")
        for sh in (8, 4, 2, 1):
            for r in range(4):
                a(f"v_add_f32 v{R+r}, v{R+r}, v{R+r} row_ror:{sh} row_mask:0xf bank_mask:0xf")
        a(f"v_cvt_pk_bf16_f32 v{R}, v{R}, v{R+1}\nv_cvt_pk_bf16_f32 v{R+1}, v{R+2}, v{R+3}\nv_lshlrev_b32 v5, 3, {vG}")
        self.clean(R, 2)
        a(f"""s_lshl_b32 s72, {sWM}, 5
        s_add_u32 s72, s72, {s_ss}
        s_mov_b32 exec_lo, 0x00010001
        s_mov_b32 exec_hi, 0x00010001
        buffer_store_dwordx2 {vr(R,2)}, v5, {WS}, s72 offen sc1
        s_mov_b64 exec, -1""")

    def x_store_setup(self):
        a = self.a
        a(f"""s_movk_i32 s79, 144
        v_lshrrev_b32 v5, 3, {vTID}
        v_and_b32 v6, 7, {vTID}
        v_lshlrev_b32 v6, 4, v6
        v_mad_u32_u24 v141, v5, s79, v6
        v_lshl_add_u32 v142, v5, 8, v6
        v_add_u32 v141, {EP}, v141""")

    def x_store(self, s_dst, fill=False):
        a = self.a
        l1 = a.lab("Le")
        R = GB + 24
        for i in range(3):
            if fill:
                for k in range(4):
                    a(f"v_mov_b32 v{R+4*i+k}, -1")
            else:
                a(f"ds_read_b128 {vr(R+4*i,4)}, v141 offset:{32*144*i}")
        a(f"s_add_u32 s72, {s_dst}, 8192\ns_add_u32 s73, {s_dst}, 16384")
        a(f"s_waitcnt lgkmcnt(2)\nbuffer_store_dwordx4 {vr(R,4)}, v142, {WS}, {s_dst} offen sc1")
        a(f"s_waitcnt lgkmcnt(1)\nbuffer_store_dwordx4 {vr(R+4,4)}, v142, {WS}, s72 offen sc1")
        a(f"""s_cmp_gt_u32 {sWV}, 1
        s_waitcnt lgkmcnt(0)
        s_cbranch_scc1 {l1}
        buffer_store_dwordx4 {vr(R+8,4)}, v142, {WS}, s73 offen sc1
        {l1}:""")

    def dma_rows(self, srd, rg, s_rh, s_base, s_set):
        self.dma_rows_setup(rg, s_rh, s_set)
        self.dma_rows_issue(srd, s_base, s_set)

    def dma_rows_setup(self, rg, s_rh, s_set):
        a = self.a
        a(f"""s_and_b32 s72, {s_set}, 1
        s_lshl_b32 s72, s72, 3
        v_add_u32 v5, s72, {vG}
        v_xor_b32 v5, v5, {vN}
        v_mul_u32_u24 v6, {rg}, {vG}
        v_lshl_add_u32 v8, v5, 4, v6
        v_xor_b32 v5, 4, v5
        v_lshl_add_u32 v9, v5, 4, v6
        v_add_u32 v9, {s_rh}, v9""")

    def dma_rows_issue(self, srd, s_base, s_set):
        a = self.a
        a(f"s_lshl_b32 s72, {s_set}, 11")
        for blk in range(5):
            for h in range(2):
                a(f"s_add_u32 m0, s72, {XS + blk*(16384-256) + h*1024}")
                a(f"buffer_load_dwordx4 v{8+h}, {srd}, {s_base} offen offset:{blk*256} lds")

    def read_rows_frags(self):
        a = self.a
        a(f"""s_lshl_b32 s72, {sWM}, 12
        v_xor_b32 v5, {vG}, {vN}
        v_lshlrev_b32 v5, 4, v5
        v_lshl_add_u32 v5, {vN}, 8, v5
        v_add_u32 v60, s72, v5""")
        for c in range(1, 4):
            a(f"v_xor_b32 v{60+c}, {64*c}, v60")
        for ks in range(20):
            if ks == 16:
                for c in range(4):
                    a(f"v_add_u32 v{64+c}, 0x10000, v{60+c}")
            if ks < 16:
                a(f"ds_read_b128 {vr(GA+4*ks,4)}, v{60+ks%4} offset:{XS+(ks//4)*16384}")
            else:
                a(f"ds_read_b128 {vr(GA+4*ks,4)}, v{64+ks%4} offset:{XS}")

    def wf_setup(self):
        a = self.a
        a(f"""s_lshl_b32 s19, {sX}, 5
        s_add_u32 s19, s19, {sR}
        s_bfe_u32 s72, s19, 0x20005
        s_and_b32 s76, s72, 1
        s_lshl_b32 s76, s76, 5
        s_and_b32 s73, s19, 16
        s_add_u32 s76, s76, s73
        s_lshr_b32 s73, s72, 1
        s_add_u32 s76, s76, s73
        s_and_b32 s73, s19, 12
        s_lshl_b32 s73, s73, 7
        s_add_u32 s76, s76, s73
        s_mul_i32 s76, s76, 642
        s_and_b32 s75, s19, 3
        s_mul_i32 s75, s75, 160
        s_lshl_b32 s73, {sWM}, 4
        s_add_u32 s13, s75, s73
        s_and_b32 s73, s72, 2
        s_add_u32 s13, s13, s73
        s_add_u32 s76, s76, s13
        v_lshrrev_b32 v5, 3, {vL}
        v_and_b32 v6, 7, {vL}
        v_lshl_add_u32 v5, v6, 5, v5
        v_mul_u32_u24 v244, 1284, v5
        s_mov_b32 s18, s76""")

    def wf_loads(self):
        a = self.a
        skip = a.lab("Lw")
        a(f"""buffer_load_dwordx4 v[164:167], v244, {SWF}, s18 offen
        buffer_load_dwordx4 v[168:171], v244, {SWF}, s18 offen offset:64
        s_cmp_gt_u32 {sWM}, 1
        s_cbranch_scc1 {skip}
        buffer_load_dwordx4 v[172:175], v244, {SWF}, s18 offen offset:128
        s_cmp_lg_u32 s13, 0
        s_cbranch_scc1 {skip}
        buffer_load_ushort v176, v244, {SWF}, s18 offen offset:640
        {skip}:""")

    def wf_setup2(self):
        a = self.a
        a(f"""s_bfe_u32 s72, s19, 0x20005
        s_lshl_b32 s72, s72, 11
        s_lshr_b32 s73, s19, 7
        s_lshl_b32 s73, s73, 10
        s_add_u32 s72, s72, s73
        s_bfe_u32 s73, s19, 0x20002
        s_lshl_b32 s73, s73, 8
        s_add_u32 s72, s72, s73
        s_bfe_u32 s73, s19, 0x10004
        s_lshl_b32 s73, s73, 7
        s_add_u32 s72, s72, s73
        s_add_u32 s72, s72, {WF}
        s_lshl_b32 s74, {sWM}, 10
        s_add_u32 s74, s74, {TRS}
        v_lshrrev_b32 v5, 3, {vL}
        v_and_b32 v6, 7, {vL}
        v_xor_b32 v7, v5, v6
        v_lshl_add_u32 v7, v7, 4, s74
        v_lshl_add_u32 v245, v6, 7, v7
        v_lshl_add_u32 v250, v5, 7, v7
        v_add_u32 v246, s74, {vL16}
        v_lshlrev_b32 v247, 4, v6
        s_lshr_b32 s73, s13, 1
        v_add_u32 v5, s73, v5
        v_cmp_ne_u32 vcc, 0x100, v5
        v_lshl_add_u32 v247, v5, 13, v247
        v_subrev_u32 v249, {320*8192}, v247
        v_cndmask_b32 v249, v249, v247, vcc
        v_add_u32 v249, {64*8192}, v249""")
        a(f"""v_bfe_u32 v5, {vL}, 1, 1
        v_lshl_add_u32 v5, {vG}, 1, v5
        v_bfe_u32 v6, {vL}, 2, 2
        v_lshl_add_u32 v5, v5, 3, v6
        v_and_b32 v6, 1, {vL}
        v_lshlrev_b32 v6, 3, v6
        v_lshl_add_u32 v5, v5, 4, v6
        v_add_u32 v248, s74, v5
        s_mov_b32 s17, s72""")

    def wf_stores(self):
        a = self.a
        nop = a.lab("Lw")
        a(f"""s_cmp_lg_u32 s13, 0
        s_cbranch_scc1 {nop}
        v_and_b32 v164, 0xffff0000, v164
        v_or_b32 v164, v164, v176
        {nop}:""")
        for rnd in range(3):
            a(f"ds_write_b128 v246, {vr(164+4*rnd,4)}")
            for i in range(2):
                a(f"ds_read_b64_tr_b16 {vr(164+4*rnd+2*i,2)}, v248 offset:{64*i}")
        for rnd in range(3):
            a(f"s_waitcnt lgkmcnt({(6, 5, 4)[rnd]})")
            a(f"ds_write_b128 v245, {vr(164+4*rnd,4)}")
            a(f"ds_read_b128 {vr(164+4*rnd,4)}, v250")
        skip = a.lab("Lw")
        a("s_waitcnt lgkmcnt(0)")
        for rnd in range(3):
            if rnd == 2:
                a(f"s_cmp_gt_u32 {sWM}, 1\ns_cbranch_scc1 {skip}")
            a(f"buffer_store_dwordx4 {vr(164+4*rnd,4)}, {'v249' if rnd == 2 else 'v247'}, {WS}, {'s74' if rnd == 1 else 's17'} offen sc1")
            a(f"s_add_u32 s74, s17, {32*8192}")
        a(f"{skip}:")

    def wq_setup(self):
        a = self.a
        a(f"""v_lshrrev_b32 v5, 3, {vL}
        v_bfe_u32 v6, {vL}, 4, 1
        s_and_b32 s72, {sWV}, 1
        s_lshl_b32 s72, s72, 1
        v_or_b32 v6, s72, v6
        v_lshlrev_b32 v6, 1, v6
        v_and_b32 v7, 7, {vL}
        v_xor_b32 v6, v6, v7
        v_mul_u32_u24 v5, 3840, v5
        v_lshl_add_u32 v58, v6, 4, v5
        s_mul_i32 s72, {sWM}, {8*3840}
        s_lshl_b32 s73, {sTB0}, 7
        s_add_u32 s72, s72, s73
        s_lshl_b32 s73, {sWM}, 10""")

    def wq_dma(self, first, last):
        a = self.a
        for it in range(first, last):
            a(f"s_add_u32 m0, s73, {XS + it*4096}")
            a(f"buffer_load_dwordx4 v58, {SWQ}, s72 offen lds")
            a(f"s_add_u32 s72, s72, {32*3840}")

    def arrive(self, last, s_off, slot=0):
        a = self.a
        l = a.lab("Lar")
        a(f"""v_mov_b32 v5, {TRS+4096+4*slot}
        v_mov_b32 v6, 1
        s_mov_b64 exec, 1
        ds_add_rtn_u32 v7, v5, v6
        s_waitcnt lgkmcnt(0)
        v_cmp_eq_u32 vcc, {last}, v7
        s_mov_b64 exec, -1
        s_cbranch_vccz {l}""")
        self.push(s_off, 11)
        a(f"{l}:")

    def fill_cols(self, s0, s1, r):
        a = self.a
        for i in range(4):
            a(f"v_mov_b32 v{r+i}, -1")
        for so in (s0, s1):
            for i in range(2):
                a(f"buffer_store_dwordx4 {vr(r,4)}, v11, {WS}, {so} offen offset:{512*i} sc1")

    def clean(self, r, n):
        for i in range(n):
            self.a(f"v_min_u32 v{r+i}, -2, v{r+i}")

    def umax(self, dst, regs):
        out, regs = [], list(regs)
        out.append(f"v_max3_u32 v{dst}, v{regs[0]}, v{regs[1]}, v{regs[2]}")
        regs = regs[3:]
        while regs:
            if len(regs) == 1:
                out.append(f"v_max_u32 v{dst}, v{dst}, v{regs[0]}")
            else:
                out.append(f"v_max3_u32 v{dst}, v{dst}, v{regs[0]}, v{regs[1]}")
            regs = regs[2:]
        return out

    def half_sync(self, slot, add=True, addr=TRS + 4096):
        a = self.a
        lp = a.lab("Lhs")
        a(f"""v_mov_b32 v5, {addr+4*slot}
        v_mov_b32 v6, 1
        s_mov_b64 exec, 1
        {"ds_add_u32 v5, v6" if add else ""}
        {lp}:
        ds_read_b32 v6, v5
        s_waitcnt lgkmcnt(0)
        v_cmp_gt_u32 vcc, 4, v6
        s_cbranch_vccnz {lp}
        s_mov_b64 exec, -1""")

    def phase0(self):
        a = self.a
        z0, z1, z2, z3, z4, z5, l1, l2, l3, l5, l6, l7, l8, l9, l10 = (a.lab("Lq") for _ in range(15))
        dest = f"""s_mul_i32 s84, s80, 163840
        s_mul_i32 s85, {sCB0}, 20480
        s_add_u32 s84, s84, s85
        s_lshl_b32 s85, s81, 7
        s_add_u32 s84, s84, s85
        s_add_u32 s84, s84, {X0}
        s_lshl_b32 s85, s80, 11
        s_lshl_b32 s86, {sCB0}, 8
        s_add_u32 s85, s85, s86
        s_lshl_b32 s86, s81, 7
        s_add_u32 s85, s85, s86
        s_add_u32 s85, s85, {SS0}"""
        self.if_hi(z0)
        self.fstamp("0", 14)
        a(f"""s_mul_i32 s72, {sCB0}, 80
        s_mul_i32 s73, {sWM}, 20
        s_add_u32 s72, s72, s73
        s_mul_i32 s72, s72, 3840
        s_lshl_b32 s73, {sTB0}, 7
        s_add_u32 s72, s72, s73
        v_mul_u32_u24 v5, 3840, {vL}
        s_mov_b64 exec, 0xfffff
        s_waitcnt vmcnt(6)
        buffer_load_dword v251, v5, {SWQ}, s72 offen
        s_mov_b64 exec, -1""")
        self.fstamp("0", 15)
        a(f"""s_branch {l3}
        {z0}:
        s_cmp_lg_u32 {sWV}, 3
        s_cbranch_scc1 {z4}
        {dest}
        s_lshl_b32 s70, {sB}, 7
        v_lshrrev_b32 v5, 2, {vL}
        v_and_b32 v6, 3, {vL}
        v_lshlrev_b32 v6, 4, v6
        v_lshl_add_u32 v5, v5, 15, v6
        v_mov_b32 v60, 0
        v_mov_b32 v61, 0
        v_mov_b32 v62, 0
        v_mov_b32 v63, 0
        v_mov_b32 v6, {TRS+4096}
        s_lshl_b32 s71, {sB}, 10
        s_add_u32 s71, s71, {SQ0}
        buffer_store_dwordx4 v[60:63], {vL16}, {WS}, s71 offen sc1
        s_bfm_b64 exec, {4*NFLAG}, 0
        buffer_store_dwordx4 v[60:63], v5, {WS}, s70 offen sc1
        s_lshl_b32 s71, {sB}, 7
        s_add_u32 s71, s71, {SS0+65536}
        v_mov_b32 v64, -1
        v_mov_b32 v65, -1
        v_mov_b32 v66, -1
        v_mov_b32 v67, -1
        s_mov_b64 exec, 0xff
        buffer_store_dwordx4 v[64:67], {vL16}, {WS}, s71 offen sc1
        buffer_store_dwordx4 v[64:67], {vL16}, {WS}, s85 offen sc1
        ds_write_b128 v6, v[60:63]
        ds_write_b128 v6, v[60:63] offset:16
        s_mov_b64 exec, -1
        {z4}:""")
        a(f"s_mov_b32 s15, {sWV}\n{z5}:")
        self.gen_F("s15")
        a(f"""s_add_u32 s15, s15, 4
        s_cmp_eq_u32 s15, 4
        s_cbranch_scc1 {z5}
        s_cmp_ge_u32 {sR}, 20
        s_cbranch_scc1 {l9}
        s_sub_u32 s15, {sWV}, 1
        s_cmp_ge_u32 s15, 2
        s_cbranch_scc1 {l9}""")
        self.col_tables("s15", 2)
        a(f"""{l9}:
        {dest}
        """)
        self.fstamp("0", 15)
        a(f"""s_cmp_lg_u32 {sWV}, 3
        s_cbranch_scc1 {z3}
        s_and_b32 s70, {sB}, 1
        s_lshl_b32 s70, s70, 7
        v_mov_b32 v60, 0
        v_mov_b32 v61, 1
        s_mov_b64 exec, 1
        s_waitcnt vmcnt(0)
        buffer_atomic_add v61, v60, {SDBG}, s70 offen sc1
        s_mov_b64 exec, -1
        {z3}:
        s_waitcnt lgkmcnt(0)
        s_barrier""")
        self.stamp(1)
        self.read_rows_frags()
        self.dual_setup(sCB0)
        self.ep_setup()
        self.x_store_setup()
        a("s_waitcnt lgkmcnt(0)\ns_barrier")
        self.fstamp("0", 16)
        a(f"v_lshlrev_b32 v143, 7, {vL}\ns_movk_i32 s89, 128")
        self.gcore(FI, 10, True, False, False)
        self.fstamp("0", 17)
        self.ep_write(True)
        self.fstamp("0", 18)
        self.half_sync(1)
        self.x_store("s84")
        self.ss_store(sCB0, "s85")
        self.fstamp("0", 19)
        self.fstamp("1", 19)
        self.wf_setup()
        lw, lh = a.lab("Lq"), a.lab("Lq")
        a(f"s_cmp_lg_u32 {sWV}, 3\ns_cbranch_scc1 {lh}")
        self.poll(SDBG, "v143", "0", 2, "s89", atomic=False)
        a(f"{lh}:")
        self.fstamp("1", 14)
        self.wf_loads()
        self.wf_setup2()
        self.fstamp("1", 15)
        a(f"s_cmp_lt_u32 {sWV}, 2\ns_cbranch_scc1 {lw}\ns_waitcnt vmcnt(2)\n{lw}:\ns_waitcnt vmcnt(3)")
        self.fstamp("1", 16)
        self.arrive(3, sSH)
        self.stamp(2)
        self.half_sync(3)
        self.col_early()
        a("s_waitcnt vmcnt(0)")
        self.fstamp("1", 17)
        self.wf_stores()
        self.stamp(3)
        a(f"s_branch {l8}\n{l3}:")
        a("s_waitcnt vmcnt(1)\ns_barrier")
        self.stamp(1)
        self.wf_setup()
        self.wq_setup()
        a("s_barrier")
        self.wq_dma(0, 20)
        lt, lu = a.lab("Lq"), a.lab("Lq")
        a(f"""s_cmp_eq_u32 {sWM}, 3
        s_cbranch_scc1 {lt}
        s_mul_i32 s73, {sWM}, 62
        s_add_u32 s73, s73, s18
        s_andn2_b32 s73, s73, 3
        buffer_load_dword v251, v244, {SWF}, s73 offen
        s_branch {lu}
        {lt}:
        s_mul_i32 s72, {sB}, 3200
        v_lshlrev_b32 v5, 7, {vL}
        s_bfm_b64 exec, 25, 0
        buffer_load_dword v251, v5, {SWO}, s72 offen
        s_mov_b64 exec, -1
        {lu}:""")
        self.fstamp("0", 17)
        self.job_wq_setup()
        a("s_mov_b32 s78, s72")
        self.col_early()
        a("s_mov_b32 s72, s78")
        a("s_waitcnt vmcnt(1)")
        self.fstamp("0", 18)
        self.half_sync(2)
        self.stamp(2)
        self.job_wq()
        self.half_sync(3, add=False)
        self.stamp(3)
        a(f"{l8}:")

    def job_wq_setup(self):
        a = self.a
        a(f"""v_bfe_u32 v5, {vL}, 2, 2
        v_lshl_add_u32 v6, {vG}, 3, v5
        v_lshlrev_b32 v6, 7, v6
        v_lshrrev_b32 v5, 1, v5
        v_and_b32 v7, 1, {vG}
        v_lshl_add_u32 v5, v7, 1, v5
        v_xor_b32 v5, {sWM}, v5
        v_lshl_add_u32 v6, v5, 5, v6
        v_and_b32 v5, 3, {vL}
        v_lshl_add_u32 v56, v5, 3, v6
        v_add_u32 v57, 0xa000, v56""")
        a(f"""s_lshl_b32 s72, {sTB0}, 6
        s_lshl_b32 s73, {sWM}, 4
        s_add_u32 s72, s72, s73
        v_add_u32 v5, s72, {vN}
        s_cmp_ge_u32 {sTB0}, 10
        s_cselect_b32 s74, 1, 0
        s_cmp_ge_u32 {sTB0}, 20
        s_cselect_b32 s74, 2, s74
        s_mul_i32 s73, s74, 640
        v_subrev_u32 v5, s73, v5
        v_mul_u32_u24 v6, 3277, v5
        v_lshrrev_b32 v6, 16, v6
        v_mul_u32_u24 v7, 20, v6
        v_sub_u32 v7, v5, v7
        v_lshrrev_b32 v52, 1, v6
        s_mov_b32 s73, 163840
        v_mul_lo_u32 v52, v52, s73
        v_and_b32 v6, 1, v6
        v_lshl_add_u32 v52, v6, 11, v52
        s_lshl_b32 s75, s74, 4
        v_add_u32 v53, s75, v7
        s_lshl_b32 s75, s74, 2
        s_add_u32 s75, s75, 48
        v_add_u32 v55, s75, v7
        v_cmp_gt_u32 vcc, 16, v7
        v_cndmask_b32 v53, v55, v53, vcc
        v_add_u32 v55, 72, v7
        s_cmp_eq_u32 s74, 2
        s_cselect_b64 vcc, -1, 0
        v_cndmask_b32 v53, v53, v55, vcc
        v_lshl_add_u32 v52, v53, 4, v52
        v_lshrrev_b32 v5, 1, {vG}
        v_lshl_add_u32 v52, v5, 9, v52
        v_and_b32 v5, 1, {vG}
        v_lshl_add_u32 v52, v5, 12, v52
        s_cmp_eq_u32 s74, 0
        s_cselect_b32 s75, {fbits(AMP*QS)}, s87
        s_mul_i32 s72, {sCB0}, 20480
        s_add_u32 s72, s72, {WQ}
        v_mov_b32 v54, s75""".replace("s_cmp_eq_u32 s74, 0", f"s_mov_b32 s87, {fbits(AMP)}\ns_cmp_eq_u32 s74, 0"))

    def job_wq(self):
        a = self.a
        end = a.lab("Lb")
        for ks in range(20):
            for i in range(2):
                reg, off = ("v56", ks * 4096) if ks < 10 else ("v57", (ks - 10) * 4096)
                a(f"ds_read_b64_tr_b16 {vr(GA+4*ks+2*i,2)}, {reg} offset:{XS+off+i*512}")
        a(f"v_mov_b32 v5, {TRS+4096+16}\nv_mov_b32 v6, 1\ns_mov_b64 exec, 1\nds_add_u32 v5, v6\ns_mov_b64 exec, -1")
        a(f"s_cmp_ge_u32 {sTB0}, 30\ns_cbranch_scc1 {end}")
        self.gcore(FI, 10, True, True, False)
        for ct in range(5):
            lo, hi = GLO + 4 * ct, GHI + 4 * ct
            a(f"v_pk_add_f32 {vr(lo,2)}, {vr(lo,2)}, {vr(hi,2)}")
            a(f"v_pk_add_f32 {vr(lo+2,2)}, {vr(lo+2,2)}, {vr(hi+2,2)} neg_lo:[0,1] neg_hi:[0,1]")
            for h in range(2):
                a(f"v_pk_mul_f32 {vr(lo+2*h,2)}, {vr(lo+2*h,2)}, v[54:55] op_sel_hi:[1,0]")
        a(f"""s_cmp_eq_u32 {sCB0}, 0
        s_cselect_b32 s73, 16, 0
        v_cmp_le_u32 vcc, s73, {vL}
        v_mul_f32 v5, {fbits(1/math.sqrt(2))}, v{GLO}
        v_cndmask_b32 v{GLO}, v5, v{GLO}, vcc
        v_cndmask_b32 v{GLO+1}, 0, v{GLO+1}, vcc""")
        for ct in range(5):
            a(f"v_cvt_pk_bf16_f32 v{GB+2*ct}, v{GLO+4*ct}, v{GLO+4*ct+1}")
            a(f"v_cvt_pk_bf16_f32 v{GB+1+2*ct}, v{GLO+4*ct+2}, v{GLO+4*ct+3}")
        for p in range(3):
            a(f"v_permlane16_swap_b32 v{GB+4*p}, v{GB+2+4*p}")
            a(f"v_permlane16_swap_b32 v{GB+1+4*p}, v{GB+3+4*p}")
            if p == 2:
                a("s_mov_b32 exec_lo, 0xffff\ns_mov_b32 exec_hi, 0xffff")
            a(f"buffer_store_dwordx4 {vr(GB+4*p,4)}, v52, {WS}, s72 offen sc1")
            a("s_add_u32 s72, s72, 8192")
        a(f"s_mov_b64 exec, -1\n{end}:")

    def job_images(self):
        a = self.a
        l3 = a.lab("Lc")
        a(f"""s_sub_u32 s80, {sR}, 20
        s_lshl_b32 s80, s80, 3
        s_add_u32 s80, s80, {sX}
        s_lshl_b32 s80, s80, 3
        s_add_u32 s80, s80, {sWV}
        s_mov_b32 s77, {fbits(1/640)}
        {l3}:
        s_mul_i32 s81, s80, 656
        s_lshr_b32 s81, s81, 16
        s_mul_i32 s82, s81, 100
        s_sub_u32 s82, s80, s82
        s_mul_i32 s83, s82, 205
        s_lshr_b32 s83, s83, 10
        s_mul_i32 s84, s83, 5
        s_sub_u32 s84, s82, s84
        s_mul_i32 s81, s81, 80
        s_lshl_b32 s84, s84, 4
        s_add_u32 s81, s81, s84
        v_add_u32 v8, s81, {vN}
        s_mul_i32 s84, s83, 40
        s_sub_u32 s85, s83, 16
        s_mul_i32 s85, s85, 160
        s_add_u32 s85, s85, 16
        s_cmp_lt_u32 s83, 16
        s_cselect_b32 s84, s84, s85
        s_cselect_b32 s85, 8, 20
        s_cselect_b64 vcc, -1, 0
        v_lshrrev_b32 v5, 1, {vG}
        v_mul_u32_u24 v5, 20, v5
        v_and_b32 v6, 1, {vG}
        v_lshl_add_u32 v5, v6, 2, v5
        v_mul_u32_u24 v6, 40, {vG}
        v_cndmask_b32 v5, v6, v5, vcc
        v_mul_u32_u24 v5, 1280, v5
        v_lshl_add_u32 v5, v8, 1, v5
        s_mul_i32 s84, s84, 1280
        s_mul_i32 s85, s85, 1280
        s_add_u32 s85, s85, s84""")
        for e in range(8):
            a(f"buffer_load_ushort v{32+e}, v5, {SWO}, {'s84' if e < 4 else 's85'} offen offset:{1280*(e%4)}")
        a(f"""v_and_b32 v5, 1, {vG}
        v_lshrrev_b32 v6, 1, {vG}
        v_lshlrev_b32 v5, 3, v5
        v_lshl_add_u32 v5, v6, 2, v5
        s_lshl_b32 s84, s83, 4
        v_add_u32 v5, s84, v5
        v_cmp_ne_u32 vcc, 0, v5
        v_cndmask_b32 v12, 0x140, v5, vcc""")
        for e in range(1, 4):
            a(f"v_add_u32 v{12+e}, {e}, v5")
        for e in range(4):
            a(f"v_mul_u32_u24 v{12+e}, v{12+e}, v8")
            a(f"v_cvt_f32_u32 v{12+e}, v{12+e}")
            a(f"v_mul_f32 v{12+e}, s77, v{12+e}")
            a(f"v_fract_f32 v{12+e}, v{12+e}")
            a(f"v_cos_f32 v{16+2*e}, v{12+e}")
            a(f"v_sin_f32 v{17+2*e}, -v{12+e}")
        a(f"""v_mul_f32 v5, {fbits(1/math.sqrt(2))}, v16
        v_cndmask_b32 v16, v5, v16, vcc
        v_cndmask_b32 v17, {fbits(1/math.sqrt(2))}, v17, vcc""")
        for e in range(4):
            a(f"v_cvt_pk_bf16_f32 v{24+e}, v{16+2*e}, v{17+2*e}")
        a(f"""s_lshl_b32 s84, s80, 10
        s_add_u32 s85, s84, {FT}
        s_add_u32 s84, s84, {WOT}
        buffer_store_dwordx4 v[24:27], {vL16}, {WS}, s85 offen sc1
        s_waitcnt vmcnt(1)
        v_lshl_or_b32 v28, v33, 16, v32
        v_lshl_or_b32 v29, v35, 16, v34
        v_lshl_or_b32 v30, v37, 16, v36
        v_lshl_or_b32 v31, v39, 16, v38
        buffer_store_dwordx4 v[28:31], {vL16}, {WS}, s84 offen sc1
        s_add_u32 s80, s80, 768
        s_cmp_lt_u32 s80, 800
        s_waitcnt vmcnt(0)
        s_cbranch_scc1 {l3}""")

    def job_woh(self):
        a = self.a
        l0, l1, l2, l3, l4 = (a.lab("Lc") for _ in range(5))
        self.wq_done()
        self.if_lo(l0)
        a(f"""s_sub_u32 s80, {sR}, 12
        s_cmp_ge_u32 {sR}, 24
        s_cselect_b32 s80, {sX}, s80
        s_cmp_ge_u32 s80, 10
        s_cbranch_scc1 {l0}""")
        self.half_sync(4, add=False)
        a(f"""s_mov_b32 s14, {sWV}
        {l3}:
        s_lshl_b32 s81, s80, 1
        s_lshr_b32 s82, s14, 2
        s_add_u32 s81, s81, s82
        s_and_b32 s82, s14, 3
        s_lshl_b32 s83, s81, 1
        s_lshr_b32 s84, s82, 1
        s_add_u32 s83, s83, s84
        s_mul_i32 s83, s83, 20
        s_and_b32 s84, s82, 1
        s_lshl_b32 s84, s84, 2
        s_add_u32 s83, s83, s84
        s_sub_u32 s84, s81, 16
        s_lshl_b32 s84, s84, 3
        s_lshl_b32 s85, s82, 1
        s_add_u32 s84, s84, s85
        s_mul_i32 s84, s84, 20
        s_add_u32 s84, s84, 16
        s_cmp_lt_u32 s80, 8
        s_cselect_b32 s82, s83, s84
        s_cselect_b32 s83, 8, 20
        s_mul_i32 s82, s82, 1280
        s_mul_i32 s83, s83, 1280""")
        self.dma_rows(SWO, 1280, "s83", "s82", "s14")
        a(f"s_add_u32 s14, s14, 4\ns_cmp_lt_u32 s14, 8\ns_cbranch_scc1 {l3}\ns_waitcnt vmcnt(0)")
        self.half_sync(5)
        self.read_rows_frags()
        self.gcore(FI, 10, True, False, False)
        self.ep_write(True)
        self.half_sync(6)
        a(f"""s_mul_i32 s81, {sCB0}, 102400
        s_mul_i32 s82, s80, 10240
        s_add_u32 s81, s81, s82
        s_add_u32 s81, s81, {WOH}
        v_mul_u32_u24 v5, 144, {vN}
        v_lshl_add_u32 v5, {vG}, 4, v5
        s_mov_b32 s82, {sWV}
        {l2}:
        s_cmp_ge_u32 s82, 5
        s_cselect_b32 s83, {64 - 5*16*144}, 0
        s_mul_i32 s84, s82, {16*144}
        s_add_u32 s83, s83, s84
        s_add_u32 s83, s83, {EP}
        v_add_u32 v6, s83, v5
        ds_read_b128 v[8:11], v6
        s_lshl_b32 s84, s82, 10
        s_add_u32 s84, s84, s81
        s_add_u32 s82, s82, 4
        s_cmp_lt_u32 s82, 10
        s_waitcnt lgkmcnt(0)
        buffer_store_dwordx4 v[8:11], {vL16}, {WS}, s84 offen sc1
        s_cbranch_scc1 {l2}
        {l0}:""")

    def wq_done(self):
        self.a(f"s_add_u32 s72, {sSH}, {F_WQ*FSTRIDE}\ns_waitcnt vmcnt(0)")
        self.arrive(7, "s72", 7)

    def unpack(self, dst, src, n):
        for i in range(n):
            self.a(f"v_lshlrev_b32 v{dst+2*i}, 16, v{src+i}")
            self.a(f"v_and_b32 v{dst+2*i+1}, 0xffff0000, v{src+i}")

    def cmul_pack(self, c, s):
        a = self.a
        for e in range(8 if "plain" in self.opts else 0):
            dr, di, tr, ti = (f"v{x+e}" for x in (self.DR, self.DI, self.TR, self.TI))
            a(f"v_mul_f32 {tr}, {dr}, v{c+e}\nv_mul_f32 {ti}, {di}, v{c+e}")
            a(f"v_fma_f32 {tr}, -{di}, v{s+e}, {tr}\nv_fmac_f32 {ti}, {dr}, v{s+e}")
        for h in range(0 if "plain" in self.opts else 4):
            dr, di, tr, ti = (vr(x + 2 * h, 2) for x in (self.DR, self.DI, self.TR, self.TI))
            cc, ss = vr(c + 2 * h, 2), vr(s + 2 * h, 2)
            a(f"v_pk_mul_f32 {tr}, {dr}, {cc}")
            a(f"v_pk_mul_f32 {ti}, {di}, {cc}")
            a(f"v_pk_fma_f32 {tr}, {di}, {ss}, {tr} neg_lo:[1,0,0] neg_hi:[1,0,0]")
            a(f"v_pk_fma_f32 {ti}, {dr}, {ss}, {ti}")
        for h in range(4):
            a(f"v_cvt_pk_bf16_f32 v{self.BR+h}, v{self.TR+2*h}, v{self.TR+2*h+1}")
            a(f"v_cvt_pk_bf16_f32 v{self.BI+h}, v{self.TI+2*h}, v{self.TI+2*h+1}")

    def mm(self, d, x, y, first):
        self.a(f"v_mfma_f32_16x16x32_bf16 {vr(d,4)}, {vr(x,4)}, {vr(y,4)}, {'0' if first else vr(d,4)}")

    ZS, EX, RW, SEL = 81920, 98304, 114688, 232
    T1C, T1S, T2C, T2S = 20, 28, 36, 44
    C1, S1, N1, C2, S2, N2, S4E, C4O, S4O = 52, 56, 60, 64, 72, 80, 88, 96, 104
    WRAW, WR, WI = 112, 120, 128
    URAW, R0, R1, RS0, RS1, DR, DI, TR, TI, BR, BI, AF = 136, 144, 152, 160, 168, 176, 184, 192, 200, 208, 212, 216

    def col_tables(self, s_first, step):
        a = self.a
        lp = a.lab("Lk")
        a(f"""v_and_b32 v5, 31, {vL}
        v_lshrrev_b32 v6, 5, {vL}
        s_mov_b32 s74, {s_first}
        {lp}:
        v_lshl_add_u32 v7, v5, 1, v6
        s_lshl_b32 s72, s74, 3
        v_mul_u32_u24 v8, s72, v7
        s_lshl_b32 s72, s74, 5
        s_sub_u32 s72, s72, 127
        v_lshl_add_u32 v9, v6, 4, s72
        v_mul_u32_u24 v9, v9, v5
        v_lshlrev_b32 v10, 1, v5
        s_cmp_lt_u32 s74, 4
        s_cselect_b64 vcc, -1, 0
        v_cndmask_b32 v8, v9, v8, vcc
        v_cndmask_b32 v7, v10, v7, vcc
        v_cvt_f32_u32 v8, v8
        v_cvt_f32_u32 v7, v7
        v_mul_f32 v60, {fbits(1/64)}, v8
        v_mul_f32 v7, {fbits(1/64)}, v7
        s_lshl_b32 s73, s74, 10
        s_add_u32 s73, s73, {TB}""")
        for e in range(1, 8):
            a(f"v_add_f32 v{60+e}, v{59+e}, v7")
        for e in range(8):
            a(f"v_sin_f32 v{68+e}, v{60+e}")
            a(f"v_cos_f32 v{60+e}, v{60+e}")
        a(f"v_add_u32 v9, s73, {vL16}")
        for e in range(4):
            a(f"v_cvt_pk_bf16_f32 v{76+e}, v{60+2*e}, v{61+2*e}")
            a(f"v_cvt_pk_bf16_f32 v{80+e}, v{68+2*e}, v{69+2*e}")
        a(f"""s_add_u32 s74, s74, {step}
        s_cmp_lt_u32 s74, 6
        ds_write_b128 v9, v[76:79]
        ds_write_b128 v9, v[80:83] offset:6144
        s_cbranch_scc1 {lp}""")

    def col_twiddles(self):
        a = self.a
        a(f"""s_lshr_b32 s72, {sWM}, 1
        s_and_b32 s73, {sWM}, 1
        s_lshl_b32 s74, s73, 5
        s_add_u32 s74, s74, s72
        v_lshl_add_u32 v5, {vN}, 1, s74
        v_cvt_f32_u32 v5, v5
        v_mul_f32 v5, {fbits(1/2048)}, v5
        v_lshlrev_b32 v6, 3, {vG}
        v_cvt_f32_u32 v7, v6
        v_mul_f32 v{self.T1C}, v7, v5""")
        for e in range(1, 8):
            a(f"v_add_f32 v{self.T1C+e}, v{self.T1C+e-1}, v5")
        for e in range(8):
            a(f"v_sin_f32 v{self.T1S+e}, -v{self.T1C+e}")
            a(f"v_cos_f32 v{self.T1C+e}, v{self.T1C+e}")
        a(f"""v_add_u32 v6, s74, v6
        v_cvt_f32_u32 v6, v6
        v_lshrrev_b32 v7, 2, {vN}
        v_and_b32 v8, 3, {vN}
        v_lshl_add_u32 v8, v7, 3, v8
        v_cvt_f32_u32 v7, v8
        v_mul_f32 v9, {fbits(1/2048)}, v7
        v_add_f32 v10, {fbits(4/2048)}, v9""")
        for t in range(2):
            a(f"v_mul_f32 v{self.T2C+4*t}, v6, v{9+t}")
            a(f"v_add_f32 v{9+t}, v{9+t}, v{9+t}")
            for r in range(1, 4):
                a(f"v_add_f32 v{self.T2C+4*t+r}, v{self.T2C+4*t+r-1}, v{9+t}")
        for e in range(8):
            a(f"v_sin_f32 v{self.T2S+e}, v{self.T2C+e}")
            a(f"v_cos_f32 v{self.T2C+e}, v{self.T2C+e}")

    def pre_flags(self):
        self.a(f"""s_cmp_eq_u32 {sLAYER}, 0
        s_cselect_b32 s89, 16, 6
        s_cselect_b32 s72, 0, {2*FSTRIDE}
        s_add_u32 s72, s72, {F_WQ*FSTRIDE}
        s_add_u32 s72, s72, {sREP}
        s_lshl_b32 s73, {sWM}, 9
        s_add_u32 s72, s72, s73""")

    def col_wload(self):
        a = self.a
        a(f"buffer_load_dwordx4 {vr(self.WRAW,4)}, {vL16}, {WS}, s10 offen sc1")
        a(f"buffer_load_dwordx4 {vr(self.WRAW+4,4)}, {vL16}, {WS}, s10 offen offset:1024 sc1")

    def col_early(self):
        l = self.a.lab("Lk")
        self.a(f"s_cmp_ge_u32 {sR}, 20\ns_cbranch_scc1 {l}\ns_call_b64 s[70:71], Lcolearly\n{l}:")

    def col_early_body(self):
        a = self.a
        a("Lcolearly:\ns_nop 4")
        self.col_twiddles()
        a(f"""s_lshr_b32 s72, {sWM}, 1
        s_and_b32 s73, {sWM}, 1
        v_and_b32 v8, 3, {vN}
        s_mul_i32 s77, {sX}, 20
        s_add_u32 s77, s77, {sR}
        s_lshl_b32 s77, s77, 1
        s_add_u32 s77, s77, {sHI}
        s_lshl_b32 s4, s77, 1
        s_add_u32 s4, s4, s73
        s_lshl_b32 s5, s4, 8
        s_mul_i32 s74, s72, {8*163840}
        s_add_u32 s5, s5, s74
        s_lshl_b32 s10, s77, 13
        s_lshl_b32 s74, {sWM}, 11
        s_add_u32 s10, s10, s74
        s_add_u32 s10, s10, {WF}
        s_mov_b32 s74, 163840
        v_mul_lo_u32 v11, {vG}, s74
        v_lshl_add_u32 v11, {vN}, 4, v11
        s_lshl_b32 s74, {sHI}, 11
        s_lshl_b32 s76, {sWM}, 8
        s_add_u32 s74, s74, s76
        s_add_u32 s74, s74, {self.RW}
        v_lshlrev_b32 v5, 12, {vG}
        v_lshl_add_u32 v5, {vN}, 4, v5
        v_add_u32 v12, s74, v5
        s_lshl_b32 s75, {sHI}, 13
        s_lshl_b32 s74, s73, 12
        s_add_u32 s74, s74, s75
        s_lshl_b32 s76, s72, 11
        s_add_u32 s74, s74, s76
        s_add_u32 s74, s74, {self.RW}
        v_add_u32 v13, s74, {vL16}
        s_lshl_b32 s74, {sHI}, 7
        s_lshl_b32 s76, {sWM}, 8
        s_add_u32 s74, s74, s76
        s_add_u32 s74, s74, {self.ZS}
        v_bfe_u32 v5, {vN}, 2, 1
        v_lshlrev_b32 v5, 10, v5
        v_lshrrev_b32 v6, 1, {vG}
        v_lshl_add_u32 v5, v6, 13, v5
        v_and_b32 v6, 1, {vG}
        v_lshl_add_u32 v5, v6, 11, v5
        v_lshrrev_b32 v6, 3, {vN}
        v_lshl_add_u32 v5, v6, 6, v5
        v_lshl_add_u32 v5, v8, 4, v5
        v_add_u32 v14, s74, v5
        v_and_b32 v5, 1, {vN}
        v_lshlrev_b32 v5, 4, v5
        s_movk_i32 s74, 0x3f80
        v_lshlrev_b32 v5, v5, s74
        v_cmp_gt_u32 vcc, 2, v8
        v_cndmask_b32 v16, 0, v5, vcc
        v_sub_u32 v17, v5, v16
        s_lshl_b32 s74, s72, 12
        s_add_u32 s74, s74, s75
        s_add_u32 s74, s74, {self.ZS}
        v_add_u32 v15, s74, {vL16}
        s_lshl_b32 s76, s73, 9
        s_add_u32 s74, s74, s76
        v_lshlrev_b32 v5, 10, v6
        v_lshl_add_u32 v5, v8, 4, v5
        v_bfe_u32 v6, {vN}, 2, 1
        v_lshl_add_u32 v5, v6, 7, v5
        v_lshrrev_b32 v6, 1, {vG}
        v_lshl_add_u32 v5, v6, 8, v5
        v_and_b32 v6, 1, {vG}
        v_lshl_add_u32 v5, v6, 3, v5
        v_add_u32 v8, s74, v5
        s_lshl_b32 s74, s72, 10
        s_add_u32 s74, s74, s75
        s_lshl_b32 s76, s73, 11
        s_add_u32 s74, s74, s76
        s_add_u32 s74, s74, {self.EX}
        v_add_u32 v9, s74, {vL16}
        v_xor_b32 v10, 0x800, v9
        v_mov_b32 v18, {fbits(1e-5)}
        s_nop 4
        s_setpc_b64 s[70:71]""")

    def col_consts(self):
        a = self.a
        a(f"""s_lshl_b32 s74, {sWM}, 8
        s_add_u32 s74, s74, {TB}
        v_lshrrev_b32 v7, 2, {vN}
        v_and_b32 v6, 3, {vN}
        v_lshl_add_u32 v7, v7, 3, v6
        v_lshlrev_b32 v5, 10, {vG}
        v_lshl_add_u32 v6, {vN}, 4, v5
        v_add_u32 v6, s74, v6
        v_lshl_add_u32 v5, v7, 4, v5
        v_add_u32 v5, {TB}, v5
        v_lshlrev_b32 v19, 9, {vG}
        v_lshl_add_u32 v19, v7, 4, v19
        v_add_u32 v19, {TB+4096}, v19
        ds_read_b128 {vr(self.S1,4)}, v6 offset:6144""")
        for t in range(2):
            a(f"ds_read_b128 {vr(self.S2+4*t,4)}, v5 offset:{6144+64*t}")
            a(f"ds_read_b128 {vr(self.S4O+4*t,4)}, v19 offset:{6144+64*t}")
        a(f"ds_read_b128 {vr(self.C1,4)}, v6")
        for t in range(2):
            a(f"ds_read_b128 {vr(self.C2+4*t,4)}, v5 offset:{64*t}")
            a(f"ds_read_b128 {vr(self.C4O+4*t,4)}, v19 offset:{64*t}")
        a(f"""s_bitcmp0_b32 {sWM}, 0
        s_cselect_b32 s75, 0x80008000, 0
        s_mov_b32 s74, 0x80008000
        s_mov_b32 s76, {fbits(1/640)}
        s_mov_b32 s87, {fbits(1/2048)}
        s_lshl_b32 s72, {sHI}, 3
        s_add_u32 s72, s72, {sWM}
        s_mul_i32 s84, s72, 163840
        s_lshr_b32 s73, s4, 2
        s_lshl_b32 s73, s73, 10
        s_add_u32 s84, s84, s73
        s_add_u32 s84, s84, {sXA}
        s_add_u32 s85, s84, {4*163840}
        s_lshl_b32 s77, s72, 11
        s_add_u32 s77, s77, {sSS}
        s_add_u32 s86, s77, 8192
        s_cmp_eq_u32 s4, 1
        s_cselect_b32 s87, 0, s87
        v_mov_b32 v{self.SEL}, 0
        v_mov_b32 v{self.SEL+1}, 0
        v_mov_b32 v{self.SEL+2}, v16
        v_mov_b32 v{self.SEL+3}, v17
        v_mov_b32 v{self.SEL+4}, 0
        v_mov_b32 v{self.SEL+5}, 0
        s_add_u32 s82, s5, {sXB}
        s_add_u32 s83, s82, {4*163840}
        s_waitcnt lgkmcnt(5)""")
        for i in range(4):
            a(f"v_xor_b32 v{self.N1+i}, s74, v{self.S1+i}")
        for i in range(8):
            a(f"v_xor_b32 v{self.N2+i}, s74, v{self.S2+i}")
            a(f"v_xor_b32 v{self.S4E+i}, s75, v{self.S2+i}")
            a(f"v_xor_b32 v{self.S4O+i}, s75, v{self.S4O+i}")

    def wmid(self, slot):
        a = self.a
        slots = {5: (0, 1, 2, 3, 4), 4: (1, 2, 3, 4), 3: (1, 3, 4), 2: (3, 4), 1: (4,), 0: ()}[self.wg]
        if slot not in slots:
            return
        j = slots.index(slot)
        self.wm_issued += 2
        a(f"s_add_u32 m0, s80, {2048*j}\ns_add_u32 s72, s81, {2048*j}")
        for i in range(2):
            a(f"buffer_load_dwordx4 {vL16}, {WS}, s72 offen offset:{1024*i} sc1 lds")

    def col_main(self):
        a = self.a
        nz, l1 = a.lab("Lnz"), a.lab("Lk")
        EXO = self.EX - self.ZS
        T, U = self.TR, self.URAW
        lp, dn, l2, l4, l5 = (a.lab("Lk") for _ in range(5))
        a(f"""s_mov_b32 s35, 1
        s_lshl_b32 s78, {sWM}, 12
        s_mul_i32 s79, {sG}, 163840
        s_add_u32 s79, s79, {WQ}
        s_mul_i32 s80, {sWV}, {2048*self.wg}
        s_add_u32 s81, s79, s80
        s_add_u32 s79, s79, s78
        s_cmp_eq_u32 {sLAYER}, 0
        s_cbranch_scc1 {l1}""")
        self.col_wload()
        a(f"s_branch {l2}\n{l1}:")
        self.if_lo(l2)
        self.fill_cols("s82", "s83", T)
        a(f"""{l2}:
        s_lshl_b32 s72, {sWV}, 8
        s_add_u32 s72, s72, {sREP}
        s_add_u32 s73, s72, {F_WQ*FSTRIDE}
        s_add_u32 s72, s72, {sFL}""")
        self.wait_lines("s72", 2, 16)
        a(f"s_barrier\ns_cmp_lg_u32 {sLAYER}, 0\ns_cbranch_scc1 {l4}\ns_add_u32 s72, {sSH}, {F_WQ*FSTRIDE}")
        self.push("s72", 11, wave=0)
        a(f"v_lshlrev_b32 v5, 7, {vL}\n{l4}:")
        self.fstamp("c", 0)
        a(f"s_mov_b32 s88, {SPIN}\n{lp}:")
        for k in range(4):
            a(f"buffer_load_dwordx4 {vr(T+4*k,4)}, {vL16}, {WS}, {'s77' if k < 2 else 's86'} offen offset:{1024*(k%2)} sc1")
        a(f"""buffer_load_dwordx4 {vr(U,4)}, {vL16}, {WS}, s84 offen sc1
        buffer_load_dwordx4 {vr(U+4,4)}, {vL16}, {WS}, s85 offen sc1
        s_mov_b64 exec, 3
        v_mov_b32 v19, 0
        buffer_atomic_add v19, v5, {WS}, s73 offen sc0 sc1
        s_mov_b64 exec, -1""")
        for p in range(2):
            a(f"s_waitcnt vmcnt({5-2*p})")
            for k in range(2):
                for j in range(2):
                    self.mm(self.RS0 + 8 * p + 4 * j, self.SEL + 2 - 2 * j, T + 8 * p + 4 * k, k == 0)
        for x in self.umax(6, range(T, T + 16)):
            a(x)
        for i in range(16):
            a(f"v_fma_f32 v{self.RS0+i}, v{self.RS0+i}, s76, v18")
        for i in range(16):
            a(f"v_rsq_f32 v{self.RS0+i}, v{self.RS0+i}")
        a("s_waitcnt vmcnt(1)")
        for x in self.umax(6, [6] + list(range(U, U + 8))):
            a(x)
        a("v_cmp_eq_u32 vcc, -1, v6")
        a(f"ds_write_b128 v12, {vr(U,4)}\nds_write_b128 v12, {vr(U+4,4)} offset:1024")
        self.unpack(self.R0, U, 8)
        a(f"""s_cbranch_vccz {dn}
        s_waitcnt vmcnt(0)
        s_sub_u32 s88, s88, 1
        s_cbranch_scc0 {lp}
        {dn}:""")
        self.stamp(4)
        a(f"s_cmp_gt_u32 s4, 3\ns_cbranch_scc1 {nz}\ns_mov_b32 exec_lo, 0xffff0000\ns_mov_b32 exec_hi, 0")
        for i in range(16):
            a(f"v_mov_b32 v{self.RS0+i}, 0")
        a(f"s_mov_b64 exec, -1\n{nz}:")
        for h in range(4):
            p, r0, r1, x1 = vr(self.DR + 2 * h, 2), vr(self.RS0 + 2 * h, 2), vr(self.RS1 + 2 * h, 2), vr(self.R1 + 2 * h, 2)
            a(f"v_pk_mul_f32 {p}, {vr(self.R0+2*h,2)}, {r0}")
            a(f"v_pk_fma_f32 {vr(self.TR+2*h,2)}, {x1}, {r1}, {p}")
            a(f"v_pk_fma_f32 {vr(self.TI+2*h,2)}, {x1}, {r1}, {p} neg_lo:[1,0,0] neg_hi:[1,0,0]")
        for h in range(4):
            a(f"v_cvt_pk_bf16_f32 v{self.BR+h}, v{self.TR+2*h}, v{self.TR+2*h+1}")
        a(f"ds_write_b128 v14, {vr(self.BR,4)}")
        for h in range(4):
            a(f"v_cvt_pk_bf16_f32 v{self.BI+h}, v{self.TI+2*h}, v{self.TI+2*h+1}")
        a(f"ds_write_b128 v14, {vr(self.BI,4)} offset:4096")
        a(f"s_waitcnt vmcnt(0)\ns_mov_b64 exec, 3\nv_cmp_gt_u32 vcc, 16, v19\ns_mov_b64 exec, -1\ns_cbranch_vccz {l5}")
        self.poll(WS, "v5", "s73", 2, 16)
        a(f"{l5}:\ns_waitcnt lgkmcnt(0)\ns_barrier")
        AF, DR, DI, BR, BI = self.AF, self.DR, self.DI, self.BR, self.BI
        self.fstamp("c", 2)
        for i in range(4):
            a(f"ds_read_b128 {vr(AF+4*i,4)}, v15 offset:{1024*i}")
        lv = a.lab("Lk")
        a(f"s_cmp_lg_u32 {sLAYER}, 0\ns_cbranch_scc1 {lv}")
        self.col_wload()
        a(f"{lv}:")
        self.wm_issued = 0
        self.wmid(0)
        a("s_waitcnt lgkmcnt(2)")
        for t in range(2):
            self.mm(DR + 4 * t, AF + 4 * t, self.C1, True)
            self.mm(DI + 4 * t, AF + 4 * t, self.N1, True)
        a("s_waitcnt lgkmcnt(0)")
        for t in range(2):
            self.mm(DR + 4 * t, AF + 8 + 4 * t, self.S1, False)
            self.mm(DI + 4 * t, AF + 8 + 4 * t, self.C1, False)
        self.wmid(1)
        self.cmul_pack(self.T1C, self.T1S)
        for t in range(2):
            self.mm(DR + 4 * t, self.C2 + 4 * t, BR, True)
            self.mm(DI + 4 * t, self.N2 + 4 * t, BR, True)
        for t in range(2):
            self.mm(DR + 4 * t, self.S2 + 4 * t, BI, False)
            self.mm(DI + 4 * t, self.C2 + 4 * t, BI, False)
        self.wmid(2)
        a(f"s_waitcnt vmcnt({self.wm_issued})")
        self.fstamp("c", 3)
        self.unpack(self.WR, self.WRAW, 8)
        self.cmul_pack(self.WR, self.WI)
        for t in range(2):
            self.mm(DR + 4 * t, BR, self.C2 + 4 * t, True)
            self.mm(DI + 4 * t, BR, self.S2 + 4 * t, True)
        for t in range(2):
            self.mm(DR + 4 * t, BI, self.N2 + 4 * t, False)
            self.mm(DI + 4 * t, BI, self.C2 + 4 * t, False)
        a(f"ds_read_b128 {vr(U,4)}, v13\nds_read_b128 {vr(U+4,4)}, v13 offset:1024")
        self.wmid(3)
        self.cmul_pack(self.T2C, self.T2S)
        for t in range(2):
            a(f"ds_write_b64 v8, {vr(BR+2*t,2)} offset:{EXO+64*t}")
            a(f"ds_write_b64 v8, {vr(BI+2*t,2)} offset:{EXO+2048+64*t}")
        self.wmid(4)
        self.fstamp("c", 14)
        l3 = a.lab("Lk")
        self.if_hi(l3)
        self.pre_flags()
        a(f"""v_lshlrev_b32 v5, 7, {vL}
        v_mov_b32 v19, 0
        s_mov_b64 exec, 15
        buffer_atomic_add v19, v5, {WS}, s72 offen sc0 sc1
        s_mov_b64 exec, -1
        {l3}:
        s_waitcnt lgkmcnt(0)
        s_barrier""")
        self.fstamp("c", 15)
        for p in range(2):
            a(f"ds_read_b128 {vr(AF+8*p,4)}, v9 offset:{4096*p}")
        for p in range(2):
            a(f"ds_read_b128 {vr(AF+8*p+4,4)}, v10 offset:{4096*p}")
        self.unpack(self.R0, U, 8)
        a("v_mov_b32 v6, s87\ns_waitcnt lgkmcnt(2)")
        for t in range(2):
            self.mm(DR + 4 * t, self.C2 + 4 * t, AF, True)
            self.mm(DI + 4 * t, self.C4O + 4 * t, AF + 8, True)
        a("s_waitcnt lgkmcnt(0)")
        for t in range(2):
            self.mm(DR + 4 * t, self.S4E + 4 * t, AF + 4, False)
            self.mm(DI + 4 * t, self.S4O + 4 * t, AF + 12, False)
        for neg, t, r, b, so in (("", self.TR, self.R0, BR, "s82"), (" neg_lo:[0,1] neg_hi:[0,1]", self.TI, self.R1, BI, "s83")):
            for h in range(4):
                x = vr(t + 2 * h, 2)
                a(f"v_pk_add_f32 {x}, {vr(DR+2*h,2)}, {vr(DI+2*h,2)}{neg}")
                a(f"v_pk_fma_f32 {x}, {x}, v[6:7], {vr(r+2*h,2)} op_sel_hi:[1,0,1]")
            for h in range(4):
                a(f"v_cvt_pk_bf16_f32 v{b+h}, v{t+2*h}, v{t+2*h+1}")
            self.clean(b, 4)
            a(f"buffer_store_dwordx4 {vr(b,4)}, v11, {WS}, {so} offen sc1")

    XR = 81920
    NREG = 244
    QH, NRM, DEC, SSP, VSCR = 102400, 112640, 112768, 114688, 143360
    QACC, QF, QAD = 60, 144, 192

    def h_dma(self, voff, s_lds, s_src, q):
        a = self.a
        a(f"s_add_u32 m0, {s_lds}, {(q%5)*16384}")
        a(f"s_add_u32 s83, {s_src}, {q*16384}")
        for i in range(4):
            a(f"buffer_load_dwordx4 {voff}, {WS}, s83 offen offset:{1024*i} sc1 lds")

    def w_prefetch(self, entry):
        a = self.a
        a(f"""s_lshl_b32 s78, {sWM}, 12
        s_mul_i32 s79, {sG}, 163840
        s_add_u32 s79, s79, {WQ}
        s_add_u32 s79, s79, s78""")
        for q in range(6):
            if q == self.wg:
                a(f"{entry}:")
            if q < 5:
                a(f"s_add_u32 m0, s78, {q*16384}\ns_add_u32 s72, s79, {q*16384}")
                for i in range(4):
                    a(f"buffer_load_dwordx4 {vL16}, {WS}, s72 offen offset:{1024*i} sc1 lds")

    def qkv_helper(self):
        a = self.a
        XR = self.XR
        lw = a.lab("Lh")
        a(f"s_cmp_eq_u32 s35, 1\ns_cbranch_scc1 {lw}")
        self.w_prefetch(lw)
        a("s_mov_b32 s35, 0")
        self.att_setup()
        a(f"""s_mul_i32 s80, {sT}, 163840
        s_add_u32 s80, s80, {sXB}
        s_add_u32 s80, s80, s78
        s_add_u32 s81, s78, {XR}
        s_mul_i32 s82, {sCB}, 102400
        s_add_u32 s82, s82, {FT}
        s_add_u32 s82, s82, s78
        s_and_b32 s74, {sWM}, 1
        s_lshl_b32 s74, s74, 1
        v_lshlrev_b32 v5, 2, {vG}
        v_xor_b32 v5, s74, v5
        v_xor_b32 v5, v5, {vL}
        v_lshlrev_b32 v8, 4, v5
        v_bfe_u32 v5, {vL}, 2, 2
        v_and_b32 v7, 1, {vG}
        v_lshrrev_b32 v6, 1, {vG}
        v_lshl_add_u32 v6, v6, 3, v5
        v_lshlrev_b32 v6, 8, v6
        v_lshl_add_u32 v6, v7, 12, v6
        s_lshl_b32 s74, {sHALF}, 2
        s_add_u32 s74, s74, {sWM}
        v_lshlrev_b32 v5, 1, v5
        v_xor_b32 v5, v5, v7
        v_xor_b32 v5, s74, v5
        v_lshl_add_u32 v6, v5, 5, v6
        v_and_b32 v7, 3, {vL}
        v_lshl_add_u32 v6, v7, 3, v6
        v_add_u32 v10, {XR}, v6
        v_add_u32 v11, 0xa000, v10
        s_or_b32 s74, {sG}, {sWM}
        s_cselect_b32 s74, 99, 1
        v_cmp_ne_u32 s[6:7], s74, {vG}
        s_lshl_b32 s15, {sLAYER}, 17
        s_lshl_b32 s74, {sT}, 13
        s_add_u32 s15, s15, s74
        s_add_u32 s15, s15, {SQ0}
        s_mul_i32 s16, {sWM}, 3
        s_min_u32 s16, s16, 7
        s_mul_i32 s74, {sG}, 10
        s_add_u32 s16, s16, s74
        s_lshl_b32 s16, s16, 10
        s_add_u32 s16, s16, s80
        s_sub_u32 s16, s16, s78
        s_mov_b32 s17, 0xffff0000
        v_lshlrev_b32 v9, 5, {vN}
        v_lshl_add_u32 v9, {vG}, 3, v9
        s_lshl_b32 s74, {sWM}, 9
        v_add_u32 v12, s74, v9
        s_add_u32 s74, s74, {sREP}
        s_add_u32 s74, s74, {sFL}
        s_add_u32 s74, s74, {F_COL*FSTRIDE}""")
        if "nogate" in self.opts:
            a("s_waitcnt vmcnt(0)")
        else:
            self.wait_lines("s74", 4, 10)
        self.stamp(6)
        ACC, RAW, UN, CK = 140, 60, 100, 76
        order = []

        def dma(tag, q):
            voff, lds, src = {"X": ("v8", "s81", "s80"), "W": (vL16, "s78", "s79")}[tag]
            r = [[f"buffer_load_dwordx4 {voff}, {WS}, s83 offen offset:{1024*i} sc1 lds"] for i in range(4)]
            r[0] = [f"s_add_u32 m0, {lds}, {(q%5)*16384}", f"s_add_u32 s83, {src}, {q*16384}"] + r[0]
            return [(f"{tag}{q}", x) for x in r]

        def emit(items):
            for tag, x in items:
                order.append(tag)
                for y in x:
                    a(y)

        def allow(*tags):
            last = max((i for i, t in enumerate(order) if t in tags), default=-1)
            return len(order) - 1 - last

        def sloads():
            return [("S", [f"buffer_load_dwordx4 {vr(RAW+4*i,4)}, {vL16}, {WS}, s16 offen offset:{1024*i} sc1"]) for i in range(3)]

        def piece(i):
            r = [f"v_cndmask_b32 v{RAW+k}, 0, v{RAW+k}, s[6:7]" for k in range(4)] if i == 0 else []
            for k in range(4):
                r += [f"v_lshlrev_b32 v{UN+2*k}, 16, v{RAW+4*i+k}", f"v_and_b32 v{UN+2*k+1}, s17, v{RAW+4*i+k}"]
            r += [f"{'v_mul_f32' if i == 0 else 'v_fmac_f32'} v{ACC+h}, v{UN+h}, v{UN+h}" for h in range(8)]
            if i == 2:
                r += [f"v_permlane32_swap_b32 v{ACC+k}, v{ACC+4+k}" for k in range(4)]
                r += [f"v_add_f32 v{ACC+k}, v{ACC+k}, v{ACC+4+k}" for k in range(4)]
                r += [f"v_permlane16_swap_b32 v{ACC+k}, v{ACC+2+k}" for k in range(2)]
                r += [f"v_add_f32 v{ACC+k}, v{ACC+k}, v{ACC+2+k}" for k in range(2)]
                r += [f"ds_write_b64 v12, {vr(ACC,2)} offset:32768"]
            return r

        def weave(items, valu):
            per = -(-len(valu) // max(1, len(items)))
            for it in items:
                emit([it])
                for x in valu[:per]:
                    a(x)
                valu = valu[per:]
        emit(dma("X", 0) + dma("X", 1) + dma("X", 2))
        for q in range(10):
            n = allow(f"W{q}", f"X{q}", "Q", *(("S",) if q >= 2 else ()))
            if q >= 8:
                l = a.lab("Lh")
                a(f"s_cmp_lg_u32 {sLAYER}, 0\ns_cbranch_scc1 {l}\ns_waitcnt vmcnt({n})\n{l}:")
                n += 4
            a(f"s_waitcnt vmcnt({n}) lgkmcnt(0)\ns_barrier")
            if q in (1, 2, 3, 5, 7, 9):
                self.fstamp("q", {1: 0, 2: 1, 3: 2, 5: 3, 7: 14, 9: 15}[q])
            if q == 0:
                l = a.lab("Lh")
                a(f"s_cmp_lt_u32 {sR}, 20\ns_cbranch_scc1 {l}\ns_or_b32 s72, {sLAYER}, s14\ns_cbranch_scc1 {l}")
                a(f"s_add_u32 s72, {sSH}, {F_IMG*FSTRIDE}")
                self.push("s72", 11, wave=7)
                a(f"{l}:")
                emit(sloads())
            if q == 2:
                bad, ok, lp = a.lab("Lbad"), a.lab("Lok"), a.lab("Lbad")
                chk = self.umax(5, range(RAW, RAW + 12)) + ["v_cmp_eq_u32 vcc, -1, v5"]
                for x in chk:
                    a(x)
                a(f"s_cbranch_vccnz {bad}\n{ok}:")
                body = [f"{bad}:", f"s_mov_b32 s88, {SPIN}", f"{lp}:"] + [x[0] for _, x in sloads()]
                body += ["s_sub_u32 s88, s88, 1", "s_waitcnt vmcnt(0)", f"s_cbranch_scc1 {ok}"] + chk + [f"s_cbranch_vccnz {lp}", f"s_branch {ok}"]
                self.cold.append("\n".join(body))
                l = a.lab("Lh")
                a(f"s_cmp_lg_u32 {sWM}, 2\ns_cbranch_scc1 {l}")
                for k in range(4, 12):
                    a(f"v_mov_b32 v{RAW+k}, 0")
                a(f"{l}:")
            if q == 4:
                l = a.lab("Lh")
                a(f"s_cmp_lg_u32 {sWM}, 0\ns_cbranch_scc1 {l}")
                for i in range(1, 4):
                    a(f"ds_read_b64 {vr(ACC+2*i,2)}, v12 offset:{32768+512*i}")
                a(f"s_lshl_b32 s74, {sG}, 9\ns_add_u32 s74, s74, s15\ns_waitcnt lgkmcnt(0)")
                for i in range(2):
                    a(f"v_add_f32 v{ACC+i}, v{ACC+i}, v{ACC+2+i}\nv_add_f32 v{ACC+4+i}, v{ACC+4+i}, v{ACC+6+i}")
                for i in range(2):
                    a(f"v_add_f32 v{ACC+i}, v{ACC+i}, v{ACC+4+i}")
                for i in range(2):
                    a(f"v_or_b32 v{ACC+i}, 1, v{ACC+i}")
                a(f"buffer_store_dwordx2 {vr(ACC,2)}, v9, {WS}, s74 offen sc1\n{l}:")
            if q <= 6:
                valu = piece(0) + piece(1) if q == 2 else (piece(2) if q == 3 else [])
                weave(dma("X", q + 3) + (dma("W", q + 3) if q >= 2 else []), valu)
            if q == 8:
                a(f"s_lshl_b32 s74, {sWM}, 11\ns_add_u32 s15, s15, s74\ns_mov_b32 s88, {SPIN}")
                emit([("Q", [f"buffer_load_dwordx4 {vr(RAW+4*i,4)}, {vL16}, {WS}, s15 offen offset:{1024*i} sc1"]) for i in range(2)])
            l = a.lab("Lh")
            a(f"s_cmp_eq_u32 {sLAYER}, 0\ns_cbranch_scc1 {l}")
            for j in range(2):
                kk = (4 * q + 2 * j) % 20
                for i in range(2):
                    a(f"ds_read_b64_tr_b16 {vr(GA+4*(2*q+j)+2*i,2)}, v{10+kk//10} offset:{(kk%10)*4096+1024*i}")
            if q in (7, 8):
                self.h_dma(vL16, "s78", "s82", q - 7)
            a(f"{l}:")
        lp, dn = a.lab("Lh"), a.lab("Lh")
        a(f"""{lp}:
        v_min3_u32 v5, v{RAW}, v{RAW+1}, v{RAW+2}
        v_min3_u32 v5, v5, v{RAW+3}, v{RAW+4}
        v_min3_u32 v5, v5, v{RAW+5}, v{RAW+6}
        v_min_u32 v5, v5, v{RAW+7}
        v_cmp_eq_u32 vcc, 0, v5
        s_cbranch_vccz {dn}""")
        for i in range(2):
            a(f"buffer_load_dwordx4 {vr(RAW+4*i,4)}, {vL16}, {WS}, s15 offen offset:{1024*i} sc1")
        a(f"""s_sub_u32 s88, s88, 1
        s_waitcnt vmcnt(0)
        s_cbranch_scc0 {lp}
        {dn}:""")
        for i in range(4):
            a(f"v_add_f32 v{RAW+i}, v{RAW+i}, v{RAW+4+i}")
        a(f"""s_lshl_b32 s74, {sWM}, 9
        s_add_u32 s74, s74, {self.SSP}
        v_and_b32 v5, 31, {vL}
        v_lshrrev_b32 v6, 5, {vL}
        v_permlane32_swap_b32 v{RAW}, v{RAW+2}
        v_permlane32_swap_b32 v{RAW+1}, v{RAW+3}
        v_lshl_add_u32 v5, v5, 1, v6
        v_lshl_add_u32 v5, v5, 3, s74
        v_add_f32 v{RAW}, v{RAW}, v{RAW+2}
        v_add_f32 v{RAW+1}, v{RAW+1}, v{RAW+3}
        ds_write_b64 v5, {vr(RAW,2)}""")
        a("s_waitcnt lgkmcnt(0)\ns_barrier")
        l0, l1 = a.lab("Lh"), a.lab("Lh")
        a(f"s_cmp_eq_u32 {sLAYER}, 0\ns_cbranch_scc1 {l0}")
        for q in range(2, 6):
            a(f"s_add_u32 m0, s78, {q*16384}\ns_add_u32 s83, s82, {q*16384}")
            for i in range(4):
                a(f"buffer_load_dwordx4 {vL16}, {WS}, s83 offen offset:{1024*i} sc1 lds")
        a(f"""s_lshl_b32 s74, {sWM}, 10
        s_add_u32 m0, s74, 98304
        s_sub_u32 s83, s82, s78
        s_add_u32 s83, s83, m0
        buffer_load_dwordx4 {vL16}, {WS}, s83 offen sc1 lds""")
        a(f"s_branch {l1}\n{l0}:")
        self.res_load()
        a(f"{l1}:")
        a(f"""s_mul_i32 s72, {sWM}, 2560
        s_add_u32 s72, s72, {self.QH}
        v_add_u32 v5, s72, {vL16}
        v_lshl_add_u32 v6, {vL}, 3, s72
        s_barrier
        ds_read_b128 {vr(AR.Q1,4)}, v5
        ds_read_b128 {vr(AR.Q1+4,4)}, v5 offset:1024
        ds_read_b64 v[6:7], v6 offset:2048
        v_lshlrev_b32 v5, 3, {vN}
        v_add_u32 v5, {self.NRM}, v5
        ds_read_b64 {vr(self.NREG,2)}, v5
        s_waitcnt lgkmcnt(1)""")
        for j in range(4):
            a(f"v_mov_b32 v{AR.Q2+6*(j//2)+j%2}, v{6+j%2}")
        self.q2_spread()

    def q2_spread(self):
        for i in range(4):
            self.a(f"v_permlane32_swap_b32 v{AR.Q2+i}, v{AR.Q2+4+i}")

    def att_setup(self):
        a = self.a
        a(f"s_lshr_b32 s72, {sWM}, 1\ns_mul_i32 s84, s72, {A.HEADB}")
        A.setup_addr(a, vL, vL16, "s84", sHI, "s72", 5)
        a(f"""s_mul_i32 s85, {sWV}, 2560
        s_mul_i32 s86, {sG}, {16*A.CHUNK}
        s_add_u32 s86, s86, {sKV}
        s_add_u32 s86, s86, s85
        s_add_u32 s85, s85, {A.SLOT0}""")
        for i in range(2, 6):
            a(f"v_mov_b32 v{AR.Q2+i}, 0")
        for i in range(32):
            a(f"v_mov_b32 v{AR.O+i}, 0")

    def qkv_compute(self):
        a = self.a
        XR, AD = self.XR, self.QAD
        own = A.SLOT0 + A.slot_off(0)
        EA = AD + 10
        self.att_setup()
        a(f"""s_lshr_b32 s72, {sWM}, 1
        s_and_b32 s73, {sWM}, 1
        s_lshl_b32 s74, s72, 11
        v_add_u32 v{AD}, s74, {vL16}
        v_add_u32 v{AD+1}, 0xa000, v{AD}
        v_bfe_u32 v5, {vL}, 2, 2
        v_lshrrev_b32 v6, 5, {vL}
        v_lshl_add_u32 v6, v6, 3, v5
        v_mul_u32_u24 v{EA+1}, 48, v6
        v_lshlrev_b32 v6, 8, v6
        v_and_b32 v7, 3, {vL}
        v_lshl_add_u32 v6, v7, 3, v6
        s_lshl_b32 s74, s73, 1
        v_xor_b32 v7, s74, v5
        v_lshl_add_u32 v6, v7, 6, v6
        v_and_b32 v7, 1, {vG}
        v_lshl_add_u32 v6, v7, 5, v6
        v_add_u32 v{AD+2}, {XR}, v6""")
        for i in range(1, 4):
            a(f"v_xor_b32 v{AD+2+i}, {32*i}, v{AD+2}")
        for i in range(4):
            a(f"v_add_u32 v{AD+6+i}, 0xa000, v{AD+2+i}")
        a(f"""s_mul_i32 s75, {sWM}, 3072
        s_add_u32 s75, s75, {self.VSCR}
        v_and_b32 v5, 3, {vL}
        v_lshl_add_u32 v5, v7, 2, v5
        v_min_u32 v5, 4, v5
        v_and_b32 v6, 1, v5
        v_mul_u32_u24 v6, 24, v6
        v_lshrrev_b32 v5, 1, v5
        v_lshl_add_u32 v5, v5, 3, v6
        v_add3_u32 v{EA+1}, v{EA+1}, v5, s75
        v_and_b32 v5, 31, {vL}
        v_lshrrev_b32 v6, 5, {vL}
        v_lshl_add_u32 v7, v5, 1, v6
        v_mul_u32_u24 v7, 24, v7
        v_add_u32 v{EA}, s75, v7
        v_mul_u32_u24 v6, 20, v6
        v_add_lshl_u32 v{EA+2}, v6, v5, 4
        s_lshl_b32 s75, s73, 8
        s_add_u32 s75, s75, {self.SSP}
        v_lshl_add_u32 v{EA+3}, v5, 2, s75
        s_mul_i32 s76, s72, {A.HEADB}
        s_mul_i32 s77, s73, {2*A.TILE}
        s_add_u32 s77, s77, s76
        s_lshl_b32 s75, s73, 9
        s_add_u32 s76, s76, s75
        s_add_u32 s76, s76, {A.K2OFF}
        s_add_u32 s75, s77, {own}
        v_add_u32 v{EA+4}, s75, {vL16}
        v_add_u32 v{EA+5}, s75, v{EA+2}
        v_lshlrev_b32 v{EA+6}, 3, {vL}
        s_add_u32 s75, s76, {own}
        v_add_u32 v{EA+7}, s75, v{EA+6}
        s_lshl_b32 s75, {sG}, 4
        s_add_u32 s75, s75, {sT}
        s_mul_i32 s75, s75, {A.CHUNK}
        s_add_u32 s75, s75, {sKV}
        s_add_u32 s76, s76, s75
        s_add_u32 s77, s77, s75
        s_mul_i32 s75, {sWM}, 2560
        s_add_u32 s75, s75, {self.QH}
        v_add_u32 v{EA+8}, s75, {vL16}
        v_add_u32 v{EA+9}, s75, v{EA+6}
        s_mov_b32 s78, {fbits(1/640)}
        v_mov_b32 v{EA+10}, {fbits(1e-5)}
        s_lshl_b32 s75, {sWM}, 5
        s_add_u32 s75, s75, {self.NRM}
        v_lshl_add_u32 v{EA+11}, {vG}, 3, s75
        v_lshlrev_b32 v5, 3, {vN}
        v_add_u32 v{EA+12}, {self.NRM}, v5
        v_lshlrev_b32 v{EA+13}, 2, {vG}
        s_lshl_b32 s79, {sG}, 4
        s_add_u32 s79, s79, {sT}
        s_lshl_b32 s79, s79, 7
        s_lshl_b32 s75, {sWM}, 4
        s_add_u32 s79, s79, s75
        s_lshl_b32 s75, {sLAYER}, 15
        s_add_u32 s79, s79, s75
        s_add_u32 s79, s79, {F_KMAX*FSTRIDE}
        s_waitcnt vmcnt(0)
        s_barrier""")
        self.stamp(6)

        def reads(k):
            kk, f = k % 20, self.QF + 16 * (k % 3)
            hi, off = kk // 10, (kk % 10) * 4096
            r = []
            for j in range(2):
                r.append(f"ds_read_b128 {vr(f+4*j,4)}, v{AD+hi} offset:{off+1024*j}")
                for i in range(2):
                    r.append(f"ds_read_b64_tr_b16 {vr(f+8+4*j+2*i,2)}, v{AD+2+4*hi+2*j+k%2} offset:{off+1024*i}")
            return r
        for r in reads(0) + reads(1):
            a(r)
        SSR = 8
        for k in range(40):
            a(f"s_waitcnt lgkmcnt({6 if k < 39 else 0})")
            rr = reads(k + 2) if k + 2 < 40 else []
            if k == 39:
                rr = [f"ds_read_b32 v{SSR+4*nt+w}, v{EA+3} offset:{512*w+128*nt}" for nt in range(2) for w in range(4)]
            f = self.QF + 16 * (k % 3)
            per = (2, 2, 1, 1) if k < 39 else (4, 4, 0, 0)
            for j, (mt, nt) in enumerate(((0, 0), (1, 0), (1, 1), (0, 1))):
                d = vr(self.QACC + 32 * nt + 16 * mt, 16)
                a(f"v_mfma_f32_32x32x16_bf16 {d}, {vr(f+4*mt,4)}, {vr(f+8+4*nt,4)}, {'0' if k == 0 else d}")
                if j == 0 and (k == 39 or ((k + 2) % 4 == 0 and k + 2 < 40)):
                    a("s_barrier")
                for _ in range(per[j]):
                    if rr:
                        a(rr.pop(0))
        self.stamp(7)
        KR, K2R, VR, Q2T, VT, RSD, N, W = 144, 152, 154, 166, 168, 220, self.NREG, 224
        a("s_waitcnt lgkmcnt(0)")
        for nt in range(2):
            s = SSR + 4 * nt
            a(f"v_pk_add_f32 {vr(s,2)}, {vr(s,2)}, {vr(s+2,2)}")
        for nt in range(2):
            a(f"v_add_f32 v{SSR+4*nt}, v{SSR+4*nt}, v{SSR+4*nt+1}")
        for nt in range(2):
            a(f"v_fma_f32 v{RSD+2*nt}, v{SSR+4*nt}, s78, v{EA+10}")
        for nt in range(2):
            a(f"v_rsq_f32 v{RSD+2*nt}, v{RSD+2*nt}")

        def sc(dst, src, n, nt):
            for h in range(n):
                r = vr(src + 2 * h, 2)
                if "eplain" in self.opts:
                    a(f"v_mul_f32 v{src+2*h}, v{src+2*h}, v{RSD+2*nt}\nv_mul_f32 v{src+2*h+1}, v{src+2*h+1}, v{RSD+2*nt}")
                else:
                    a(f"v_pk_mul_f32 {r}, {r}, {vr(RSD+2*nt,2)} op_sel_hi:[1,0]")
            for h in range(n):
                a(f"v_cvt_pk_bf16_f32 v{dst+h}, v{src+2*h}, v{src+2*h+1}")

        def sq(acc, srcs):
            for j, r in enumerate(srcs):
                if j == 0:
                    a(f"v_pk_mul_f32 {vr(acc,2)}, {vr(r,2)}, {vr(r,2)}")
                else:
                    a(f"v_pk_fma_f32 {vr(acc,2)}, {vr(r,2)}, {vr(r,2)}, {vr(acc,2)}")
        PB = [self.QACC + 32 * nt for nt in range(2)]
        self.fstamp("e", 0)
        for nt in range(2):
            sc(VR + 6 * nt, PB[nt] + 20, 6, nt)
            for i in range(3):
                a(f"ds_write_b64 v{EA}, {vr(VR+6*nt+2*i,2)} offset:{8*i+1536*nt}")
            for i in range(4):
                a(f"ds_read_b64_tr_b16 {vr(VT+8*nt+2*i,2)}, v{EA+1} offset:{(i//2)*768+(i%2)*192+1536*nt}")
        self.fstamp("e", 1)
        for nt in range(2):
            sc(KR + 4 * nt, PB[nt] + 8, 4, nt)
            a(f"buffer_store_dwordx4 {vr(KR+4*nt,4)}, {vL16}, {WS}, s77 offen offset:{A.TILE*nt} sc1")
            sc((Q2T, K2R)[nt], PB[nt] + 16, 2, nt)
        for i in range(2):
            a(f"v_permlane32_swap_b32 v{Q2T+i}, v{K2R+i}")
        a(f"""buffer_store_dwordx2 {vr(K2R,2)}, v{EA+6}, {WS}, s76 offen sc1
        s_mov_b64 exec, {A.VMASK}
        s_waitcnt lgkmcnt(0)""")
        for nt in range(2):
            for i in range(2):
                a(f"buffer_store_dwordx4 {vr(VT+8*nt+4*i,4)}, v{EA+2}, {WS}, s77 offen offset:{A.TILE*nt+1024+A.VFR*i} sc1")
        self.fstamp("e", 2)
        for nt in range(2):
            for i in range(2):
                a(f"ds_write_b128 v{EA+5}, {vr(VT+8*nt+4*i,4)} offset:{A.TILE*nt+1024+A.VFR*i}")
        a("s_mov_b64 exec, -1")
        for nt in range(2):
            sc(AR.Q1 + 4 * nt, PB[nt], 4, nt)
            a(f"ds_write_b128 v{EA+4}, {vr(KR+4*nt,4)} offset:{A.TILE*nt}")
            a(f"ds_write_b128 v{EA+8}, {vr(AR.Q1+4*nt,4)} offset:{1024*nt}")
        a(f"ds_write_b64 v{EA+7}, {vr(K2R,2)}")
        a(f"ds_write_b64 v{EA+9}, {vr(Q2T,2)} offset:2048")
        self.fstamp("e", 3)
        for nt in range(2):
            sq(W + 4 * nt, [PB[nt] + 2 * h for h in (0, 1, 2, 3)])
            sq(W + 4 * nt + 2, [PB[nt] + 2 * h for h in (4, 5, 6, 7)])
        for half, ex in enumerate(("exec_hi", "exec_lo")):
            a(f"s_mov_b32 {ex}, 0")
            for nt in range(2):
                for h in (8, 9):
                    r, c = vr(PB[nt] + 2 * h, 2), vr(W + 4 * nt + 2 * half, 2)
                    a(f"v_pk_fma_f32 {c}, {r}, {r}, {c}")
            a(f"s_mov_b32 {ex}, -1")
        for j in range(4):
            a(f"v_add_f32 v{N+j}, v{W+2*j}, v{W+2*j+1}")
        a(f"v_max3_f32 v{W}, abs(v{PB[0]+20}), abs(v{PB[0]+21}), abs(v{PB[1]+20})")
        rest = [PB[1] + 21] + [PB[nt] + h for nt in range(2) for h in range(22, 28)]
        rest.append(rest[-1])
        for j in range(0, len(rest), 2):
            a(f"v_max3_f32 v{W}, v{W}, abs(v{rest[j]}), abs(v{rest[j+1]})")
        a(f"v_permlane32_swap_b32 v{N}, v{N+2}\nv_permlane32_swap_b32 v{N+1}, v{N+3}\ns_mov_b32 exec_hi, 0")
        for nt in range(2):
            for h in (28, 30):
                a(f"v_max3_f32 v{W}, v{W}, abs(v{PB[nt]+h}), abs(v{PB[nt]+h+1})")
        a(f"""s_mov_b32 exec_hi, -1
        v_pk_add_f32 {vr(N,2)}, {vr(N,2)}, {vr(N+2,2)}
        v_cmp_gt_f32 vcc, {fbits(2.0**50)}, v{W}
        v_cndmask_b32 v{N+1}, 0x7f800000, v{N+1}, vcc""")
        for j, sh in enumerate((8, 4, 2, 1)):
            a(f"v_mov_b32 v{AR.Q2+6*(j//2)+j%2}, v{Q2T+j%2}")
            for r in (N, N + 1):
                a(f"v_max_u32 v{r}, v{r}, v{r} row_ror:{sh} row_mask:0xf bank_mask:0xf")
        a(f"""v_or_b32 v{N+1}, 1, v{N+1}
        s_mov_b32 exec_lo, 0x10001
        s_mov_b32 exec_hi, 0x10001
        ds_write_b64 v{EA+11}, {vr(N,2)}
        buffer_store_dword v{N+1}, v{EA+13}, {WS}, s79 offen sc1
        s_mov_b64 exec, -1""")
        self.q2_spread()
        self.fstamp("e", 14)
        a(f"""s_waitcnt lgkmcnt(0)
        s_barrier
        ds_read_b64 {vr(N,2)}, v{EA+12}""")

    def kv_dma(self):
        return [f"buffer_load_dwordx4 {vL16}, {WS}, s81 offen sc1 lds",
                f"buffer_load_dwordx4 {vL16}, {WS}, s81 offen offset:1024 sc1 lds",
                "s_mov_b32 exec_hi, 0",
                f"buffer_load_dwordx4 {vL16}, {WS}, s81 offen offset:2048 sc1 lds",
                "s_mov_b32 exec_hi, -1"]

    def att_dma(self, c):
        a = self.a
        a(f"s_mul_i32 s81, s80, {A.CHUNK}\ns_add_u32 m0, s85, {A.slot_off(c)}\ns_add_u32 s81, s81, s86")
        for x in self.kv_dma():
            a(x)
        a("s_add_u32 s80, s80, 1\ns_and_b32 s80, s80, 15")

    def att_slow(self):
        a = self.a
        M = 140
        for i in range(32):
            a(f"v_mov_b32 v{AR.O+i}, 0")
        a(f"v_mov_b32 v{M}, 0xff800000\nv_mov_b32 v{M+1}, 0xff800000\ns_waitcnt vmcnt(0)")
        for ps in range(2):
            lp = a.lab("Lsl")
            a(f"s_mov_b32 s80, 0\n{lp}:\ns_barrier")
            self.att_dma(0)
            a("s_waitcnt vmcnt(0)\ns_barrier")
            for n in range(4):
                if n % 2 == 0:
                    for r in A.rd_k(n // 2) + (A.rd_v(n // 2) if ps else []):
                        a(r)
                    a("s_waitcnt lgkmcnt(0)")
                a(A.qk1(n))
                a(A.qk2(n))
                s = AR.S + 16 * (n % 3)
                if ps == 0:
                    for i in range(8):
                        a(f"v_max3_f32 v{M+n%2}, v{M+n%2}, v{s+2*i}, v{s+2*i+1}")
                else:
                    for i in range(16):
                        a(f"v_sub_f32 v{s+i}, v{s+i}, v{M+n%2}")
                    for i in range(16):
                        a(A.ex(n, i))
                    a(A.pv(n, 0))
                    a(A.pv(n, 1))
            a(f"s_cmp_lg_u32 s80, 0\ns_cbranch_scc1 {lp}")
            if ps == 0:
                off = A.SLOT0 + A.slot_off(1)
                a(f"""v_lshlrev_b32 v5, 3, {vTID}
                v_xor_b32 v6, 0x800, v5
                v_add_u32 v5, {off}, v5
                v_add_u32 v6, {off}, v6
                ds_write_b64 v5, {vr(M,2)}
                s_waitcnt lgkmcnt(0)
                s_barrier
                ds_read_b64 {vr(M+2,2)}, v6
                s_waitcnt lgkmcnt(0)""")
                for q in range(2):
                    a(f"""v_max_f32 v{M+q}, v{M+q}, v{M+2+q}
                    v_mov_b32 v5, v{M+q}
                    v_permlane32_swap_b32 v5, v{M+q}
                    v_max_f32 v{M+q}, v5, v{M+q}""")
        for i in range(12):
            for x in self.img_piece():
                a(x)

    def img_piece(self, half=False):
        ld = f"buffer_load_dwordx4 {vL16}, {WS}, s9 offen sc1 lds"
        step = 512 if half else 1024
        mid = ["s_mov_b32 exec_hi, 0", ld, "s_mov_b32 exec_hi, -1"] if half else [ld]
        return ["s_mov_b32 m0, s8", f"s_add_u32 s8, s8, {step}"] + mid + [f"s_add_u32 s9, s9, {step}"]

    def attention(self):
        a = self.a
        N = self.NREG
        l0, l1, l2, l3, l4, l5, slow, done, loop = (a.lab("La") for _ in range(9))
        a(f"""s_lshl_b32 s11, {sG}, 11
        s_add_u32 s11, s11, {sFL}
        s_add_u32 s11, s11, {F_KV*FSTRIDE}
        s_lshl_b32 s12, {sT}, 7
        s_add_u32 s12, s12, s11
        s_mul_i32 s8, {sWV}, 12800
        s_mov_b32 s9, {WOT}
        s_cmp_eq_u32 {sLAYER}, 0
        s_cselect_b32 s9, {WOH}, s9
        s_mul_i32 s72, {sCB}, 102400
        s_add_u32 s9, s9, s72
        s_add_u32 s9, s9, s8""")
        self.stamp(8)
        A.start(a, 0)
        redo, back, lo, li = (a.lab("Lredo") for _ in range(4))
        a(f"v_cmp_lt_u32 vcc, 0x7f800000, v{N}\ns_cbranch_vccnz {redo}\n{back}:")
        chk = "\n".join(self.umax(5, [5, 60, 61, 62, 63]))
        self.cold.append(f"""{redo}:
        s_cmp_lg_u32 s14, 0
        s_cbranch_scc1 {back}
        s_mov_b32 s14, 1
        s_mov_b32 s88, {SPIN >> 4}
        {lo}:
        s_mul_i32 s72, {sT}, 163840
        s_add_u32 s72, s72, {sXB}
        s_mul_i32 s73, {sWV}, 20480
        s_add_u32 s72, s72, s73
        s_add_u32 s73, s72, 20480
        v_mov_b32 v5, 0
        {li}:
        buffer_load_dwordx4 v[60:63], {vL16}, {WS}, s72 offen sc1
        s_add_u32 s72, s72, 1024
        s_cmp_lt_u32 s72, s73
        s_waitcnt vmcnt(0)
        {chk}
        s_cbranch_scc1 {li}
        v_cmp_eq_u32 vcc, -1, v5
        s_sub_u32 s88, s88, 1
        s_cselect_b64 vcc, 0, vcc
        s_cbranch_vccnz {lo}
        s_waitcnt lgkmcnt(0)
        s_barrier
        s_branch Lqkv""")

        def publish():
            lw = a.lab("La")
            self.if_lo(lw)
            a(f"s_waitcnt vmcnt(1)\ns_cmp_eq_u32 s14, 0\ns_cbranch_scc1 {lw}\ns_waitcnt vmcnt(0)\n{lw}:\ns_barrier")
            self.push("s11", 7, wave=4)
        for n in range(4):
            A.iteration(a, n, 4, publish if n == self.pub else None, first=(n == 0))
        a(A.pv(3, 1))
        self.stamp(9)
        self.if_lo(l1)
        a("s_barrier")
        for sh in (8, 4, 2, 1):
            a(f"v_max_u32 v{N}, v{N}, v{N} row_ror:{sh} row_mask:0xf bank_mask:0xf")
        a(f"""v_lshrrev_b32 v5, 2, {vL}
        v_and_b32 v6, 3, {vL}
        v_lshlrev_b32 v6, 4, v6
        v_lshl_add_u32 v{N+1}, v5, 7, v6
        s_lshl_b32 s76, {sG}, 11
        s_lshl_b32 s75, {sLAYER}, 15
        s_add_u32 s76, s76, s75
        s_add_u32 s76, s76, {F_KMAX*FSTRIDE}""")
        a(f"""s_mul_i32 s72, {sWM}, 2560
        s_add_u32 s73, s85, s72
        s_add_u32 s74, s86, s72
        s_movk_i32 s75, 2560""")
        for c in (1, 2):
            a(f"""s_or_b32 s80, {sT}, 3
            s_add_u32 s80, s80, {c}
            s_and_b32 s80, s80, 15
            s_mul_i32 s81, s80, {A.CHUNK}
            s_add_u32 s{76+c}, s81, s74""")
        a(f"s_add_u32 m0, s73, {A.slot_off(1)}")
        self.wait_lines("s12", 1, 16)
        self.fstamp("a", 14)
        self.fstamp("b", 0)
        a(f"s_cmp_lg_u32 {sWV}, 0\ns_cbranch_scc1 {l2}\nbuffer_load_dwordx4 v[140:143], v{N+1}, {WS}, s76 offen sc1\n{l2}:")
        for c in (1, 2):
            if c == 2:
                a(f"s_add_u32 m0, s73, {A.slot_off(c)}")
            for i in range(4):
                a(f"buffer_load_dwordx4 {vL16}, {WS}, s{76+c} offen offset:{1024*i} sc1 lds")
            a(f"s_add_u32 m0, m0, 4096\ns_add_u32 s81, s{76+c}, 4096")
            a(f"buffer_load_dwordx4 {vL16}, {WS}, s81 offen sc1 lds")
        self.fstamp("b", 1)
        kb, ko = a.lab("Lbad"), a.lab("Lok")
        self.cold.append(f"""{kb}:
        buffer_load_dwordx4 v[140:143], v{N+1}, {WS}, s76 offen sc1
        s_sub_u32 s88, s88, 1
        s_waitcnt vmcnt(0)
        s_cbranch_scc1 {ko}
        v_min3_u32 v7, v140, v141, v142
        v_min_u32 v7, v7, v143
        v_cmp_eq_u32 vcc, 0, v7
        s_cbranch_vccnz {kb}
        s_branch {ko}""")
        a(f"""s_mov_b32 s88, {SPIN}
        s_cmp_lg_u32 {sWV}, 0
        s_cbranch_scc1 {l5}
        s_waitcnt vmcnt(10)
        v_min3_u32 v7, v140, v141, v142
        v_min_u32 v7, v7, v143
        v_cmp_eq_u32 vcc, 0, v7
        s_cbranch_vccnz {kb}
        {ko}:
        v_max3_u32 v7, v140, v141, v142
        v_max_u32 v7, v7, v143
        v_mul_f32 v7, v7, v{N}
        v_cmp_nge_f32 vcc, {fbits(3600.0)}, v7
        s_or_b32 s72, vcc_lo, vcc_hi
        v_mov_b32 v5, {A.SLOT0 + A.slot_off(0)}
        v_mov_b32 v6, s72
        v_mad_u32_u24 v5, {vL}, s75, v5
        s_mov_b64 exec, 0xff
        ds_write_b32 v5, v6
        s_mov_b64 exec, -1
        {l5}:""")
        self.fstamp("b", 2)
        a("s_waitcnt vmcnt(5)")
        self.fstamp("b", 3)
        a(f"""s_branch {l3}
        {l1}:
        s_waitcnt vmcnt(0)
        s_barrier
        s_cmp_lg_u32 {sLAYER}, 0
        s_cbranch_scc1 {l4}""")
        self.unpack(GLO, GA, 10)
        a(f"s_lshl_b32 s72, {sWM}, 9\ns_add_u32 s72, s72, {sREP}\ns_add_u32 s72, s72, {F_IMG*FSTRIDE}")
        self.wait_lines("s72", 4, 6)
        a(f"s_branch {l3}\n{l4}:")
        self.gcore(0, 20, False, True, False)
        a(f"v_mov_b32 v6, {fbits(AMP)}")
        for h in range(10):
            a(f"v_pk_mul_f32 {vr(GLO+2*h,2)}, {vr(GLO+2*h,2)}, v[6:7] op_sel_hi:[1,0]")
        a(f"""{l3}:
        v_mov_b32 v5, s85
        s_or_b32 s80, {sT}, 3
        s_add_u32 s80, s80, 3
        s_and_b32 s80, s80, 15
        s_waitcnt lgkmcnt(0)
        s_barrier
        ds_read_b32 v6, v5 offset:{A.slot_off(0)}""")
        self.stamp(10)
        A.start(a, 4)
        self.att_dma(0)
        for x in self.img_piece(True):
            a(x)
        a(f"""v_readfirstlane_b32 s72, v6
        s_cmp_lg_u32 s72, 0
        s_cbranch_scc1 {slow}""")
        NT = 64
        prio = ((0, 0), (1, 0), (1, 3))

        def bnd(c):
            def f():
                cnt = 4 if c < 14 else 0
                a(f"s_waitcnt vmcnt({cnt}) lgkmcnt(0)\ns_barrier\ns_setprio 3")
            return f

        def hooks(n):
            h = {}

            def add(k, xs):
                h.setdefault(k, []).extend(xs)
            for lvl, (t, k) in zip((2, 1, 0), prio):
                if n % 4 == t:
                    add(k, [f"s_setprio {lvl}"])
            c = (n - 2) // 4
            d = self.kv_dma()
            if 1 <= c < 13:
                if n % 4 == 2:
                    add(2, [f"s_mul_i32 s81, s80, {A.CHUNK}", f"s_add_u32 m0, s85, {A.slot_off(c)}"])
                    add(3, ["s_add_u32 s81, s81, s86"])
                if n % 4 == 3:
                    add(0, d[:1])
                    add(2, ["s_add_u32 s80, s80, 1", "s_and_b32 s80, s80, 15"] + d[1:2])
                    add(3, d[2:])
                if n % 4 == 0:
                    add(2, [f"s_cmp_eq_u32 s80, {sT}", "s_addc_u32 s80, s80, 0"])
                    add(3, self.img_piece())
            return h
        for n in range(4, 6):
            A.iteration(a, n, NT, None, first=(n == 4), hooks=hooks(n))
        self.fstamp("a", 0)
        a(f"s_mov_b32 s82, 4\n.p2align 6\n{loop}:")
        for n in range(6, 18):
            h = hooks(n)
            if n == 17:
                h.setdefault(2, []).extend(["s_sub_u32 s82, s82, 1", "s_cmp_lg_u32 s82, 0"])
            A.iteration(a, n, NT, bnd(n // 4) if n % 4 == 2 else None, hooks=h)
        a(f"s_cbranch_scc1 {loop}")
        self.fstamp("a", 1)
        for n in range(54, 64):
            c = n // 4
            A.iteration(a, n, NT, bnd(c) if (n % 4 == 2 and c < 15) else None, hooks=hooks(n))
        a(A.pv(63, 1))
        a(f"{done}:")
        self.fstamp("a", 2)
        self.slow_labels = (slow, done)
        O, R, X = AR.O, AR.S, AR.S + 16
        l6, l7, l8, l9 = (a.lab("La") for _ in range(4))
        a(f"""s_setprio 0
        s_mul_i32 s72, {sWM}, 3072
        s_add_u32 s72, s72, {A.SLOT0}
        v_add_u32 v5, s72, {vL16}
        s_lshl_b32 s72, {sT}, 5
        s_lshl_b32 s73, {sG}, 1
        s_add_u32 s72, s72, s73
        s_lshr_b32 s73, {sWM}, 1
        s_add_u32 s72, s72, s73
        s_and_b32 s73, {sWM}, 1
        s_lshl_b32 s73, s73, 1
        s_add_u32 s73, s73, {sHI}
        s_lshl_b32 s74, s72, 12
        s_lshl_b32 s75, s73, 9
        s_add_u32 s74, s74, s75
        s_add_u32 s74, s74, {sO}
        s_lshl_b32 s75, s72, 10
        s_lshl_b32 s76, s73, 8
        s_add_u32 s75, s75, s76
        s_add_u32 s75, s75, {sO}
        s_add_u32 s75, s75, {OXOFF}""")
        self.if_lo(l6)
        for p, (skip, nxt) in enumerate(((l6, l7), (None, None))):
            for i in range(3):
                a(f"ds_write_b128 v5, {vr(O+16*(1-p)+4*i,4)} offset:{2*A.CHUNK*p+1024*i}")
            a("s_waitcnt lgkmcnt(0)\ns_barrier")
            for i in range(3):
                a(f"ds_read_b128 {vr(X+4*i,4)}, v5 offset:{2*A.CHUNK*(1-p)+1024*i}")
            a(f"v_lshrrev_b32 v5, 5, {vL}\nv_mul_u32_u24 v5, 1536, v5\ns_waitcnt lgkmcnt(0)")
            for h in (4, 5, 0, 1, 2, 3):
                a(f"v_pk_add_f32 {vr(R+2*h,2)}, {vr(O+16*p+2*h,2)}, {vr(X+2*h,2)}")
            if skip:
                a(f"s_branch {nxt}\n{skip}:")
        a(f"{l7}:")
        self.fstamp("a", 3)
        a(f"""v_mov_b32 v6, v{R+8}
        v_mov_b32 v7, v{R+8}
        v_add_u32 v5, v5, {vL16}
        v_lshlrev_b32 v16, 3, {vL}
        v_permlane32_swap_b32 v7, v6
        v_rcp_f32 v6, v6""")
        for h in range(4):
            a(f"v_pk_mul_f32 {vr(R+2*h,2)}, {vr(R+2*h,2)}, v[6:7] op_sel_hi:[1,0]")
        for h in range(4):
            a(f"v_cvt_pk_bf16_f32 v{8+h}, v{R+2*h}, v{R+2*h+1}")
        a(f"buffer_store_dwordx4 v[8:11], v5, {WS}, s74 offen sc1")
        for h in range(4, 6):
            a(f"v_pk_mul_f32 {vr(R+2*h,2)}, {vr(R+2*h,2)}, v[6:7] op_sel_hi:[1,0]")
        for h in range(4, 6):
            a(f"v_cvt_pk_bf16_f32 v{8+h}, v{R+2*h}, v{R+2*h+1}")
        a(f"""s_mov_b32 exec_hi, 0
        buffer_store_dwordx2 v[12:13], v16, {WS}, s75 offen sc1
        s_mov_b64 exec, -1""")

    def o_loads(self):
        a = self.a
        a(f"""s_lshl_b32 s72, {sHALF}, 6
        s_lshl_b32 s73, {sWM}, 4
        s_add_u32 s72, s72, s73
        v_add_u32 v5, s72, {vN}
        v_lshlrev_b32 v6, 11, {vG}
        v_lshl_add_u32 v141, v5, 4, v6
        v_lshl_add_u32 v142, v5, 3, v6
        s_lshl_b32 s72, {sT}, 17
        s_add_u32 s72, s72, {sO}
        s_lshl_b32 s73, {sT}, 15
        s_add_u32 s73, s73, {sO}
        s_add_u32 s73, s73, {OXOFF}""")
        self.wait_lines("s34", 1, 16)
        self.stamp(12)
        for ks in range(self.olead):
            self.o_load(ks)

    def o_load(self, ks):
        a = self.a
        if ks < 16:
            a(f"buffer_load_dwordx4 {vr(GA+4*ks,4)}, v141, {WS}, s72 offen sc1")
            a("s_add_u32 s72, s72, 8192")
        elif ks < 20:
            for i in range(2):
                a(f"buffer_load_dwordx2 {vr(GA+4*ks+2*i,2)}, v142, {WS}, s73 offen offset:{1024*i} sc1")
            a("s_add_u32 s73, s73, 8192")

    def o_feed(self, ks):
        self.o_load(ks + self.olead)

    def o_wait(self, ks):
        return sum(1 if k < 16 else 2 for k in range(ks + 1, min(20, ks + self.olead)))

    def res_load(self):
        a = self.a
        a(f"""s_mul_i32 s72, {sT}, 163840
        s_mul_i32 s73, {sCB}, 20480
        s_add_u32 s72, s72, s73
        s_lshl_b32 s73, {sHALF}, 7
        s_add_u32 s72, s72, s73
        s_lshl_b32 s73, {sWM}, 5
        s_add_u32 s72, s72, s73
        s_add_u32 s72, s72, {sXB}
        v_lshlrev_b32 v5, 8, {vN}
        v_lshl_add_u32 v5, {vG}, 3, v5""")
        for ct in range(5):
            a(f"buffer_load_dwordx2 {vr(GA+2*ct,2)}, v5, {WS}, s72 offen sc1")
            a("s_add_u32 s72, s72, 4096")

    def final_store(self):
        a = self.a
        a(f"""s_mul_i32 s72, {sWM}, {16*176}
        s_add_u32 s72, s72, {EP}
        v_mul_u32_u24 v5, 176, {vN}
        v_lshl_add_u32 v5, {vG}, 3, v5
        v_add_u32 v5, s72, v5""")
        for ct in range(5):
            a(f"v_cvt_pk_bf16_f32 v{16+2*ct}, v{GLO+4*ct}, v{GLO+4*ct+1}")
            a(f"v_cvt_pk_bf16_f32 v{17+2*ct}, v{GLO+4*ct+2}, v{GLO+4*ct+3}")
            a(f"ds_write_b64 v5, {vr(16+2*ct,2)} offset:{ct*32}")
        a(f"""s_and_b32 s73, {sT}, 7
        s_lshl_b32 s73, s73, 8
        s_lshr_b32 s74, {sT}, 3
        s_lshl_b32 s74, s74, 4
        s_add_u32 s73, s73, s74
        s_lshl_b32 s74, {sHALF}, 3
        s_add_u32 s73, s73, s74
        s_lshl_b32 s74, {sWM}, 1
        s_add_u32 s73, s73, s74
        s_mul_i32 s73, s73, 1280
        s_mul_i32 s74, {sCB}, 160
        s_add_u32 s73, s73, s74
        s_movk_i32 s74, 176
        s_movk_i32 s75, 1280""")
        for i in range(3):
            a(f"""v_add_u32 v5, {64*i}, {vL}
            v_mul_u32_u24 v6, 205, v5
            v_lshrrev_b32 v6, 11, v6
            v_mul_u32_u24 v7, 10, v6
            v_sub_u32 v5, v5, v7
            v_lshlrev_b32 v5, 4, v5
            v_mad_u32_u24 v{8+i}, v6, s74, v5
            v_add_u32 v{8+i}, s72, v{8+i}
            v_and_b32 v7, 7, v6
            v_lshrrev_b32 v6, 3, v6
            v_lshl_add_u32 v6, v7, 5, v6
            v_mad_u32_u24 v{12+i}, v6, s75, v5""")
        a("s_waitcnt lgkmcnt(0)")
        for i in range(3):
            a(f"ds_read_b128 {vr(28+4*i,4)}, v{8+i}")
        for i in range(3):
            if i == 2:
                a("s_mov_b32 exec_hi, 0")
            a(f"s_waitcnt lgkmcnt({2-i})")
            a(f"buffer_store_dwordx4 {vr(28+4*i,4)}, v{12+i}, {SOUT}, s73 offen{' sc1' if 'osc1' in self.opts else (' nt' if 'ont' in self.opts else '')}")

    def build(self):
        a = self.a
        self.prologue()
        self.phase0()
        a(f"""s_mov_b32 {sXA}, {X0}
        s_mov_b32 {sXB}, {X0+XSZ}
        s_mov_b32 {sKV}, {KV0}
        s_mov_b32 {sO}, {OM0}
        s_mov_b32 {sSS}, {SS0}
        s_mov_b32 s35, 0
        Llayer:""")
        idle, cdone, l0, l1, l2, l3, l4, l5, l6, l7, l8, last = (a.lab("Lm") for _ in range(12))
        a(f"s_cmp_ge_u32 {sR}, 20\ns_cbranch_scc1 {idle}")
        self.col_consts()
        self.col_main()
        a(f"""s_branch {cdone}
        {idle}:
        s_cmp_lg_u32 {sLAYER}, 0
        s_cbranch_scc1 {l0}""")
        self.job_woh()
        a(f"s_branch {l1}\n{l0}:")
        self.job_images()
        a(f"s_add_u32 s72, {sSH}, {(F_IMG+1)*FSTRIDE}\ns_barrier")
        self.push("s72", 11, wave=0)
        a(f"{l1}:\nv_mov_b32 v19, 0\n{cdone}:")
        self.stamp(5)
        a(f"""s_waitcnt {"vmcnt(0) " if "drainc" in self.opts else ""}lgkmcnt(0)
        s_barrier
        s_cmp_ge_u32 {sR}, 20
        s_cbranch_scc1 {l8}
        s_mul_i32 s72, {sX}, 20
        s_add_u32 s72, s72, {sR}
        s_and_b32 s72, s72, 15
        s_lshl_b32 s72, s72, 7
        s_add_u32 s72, s72, {sFL}
        s_add_u32 s72, s72, {F_COL*FSTRIDE}""")
        self.push("s72", 11, wave=0)
        a(f"{l8}:")
        self.if_hi(l2)
        self.pre_flags()
        a(f"s_waitcnt vmcnt(2)\ns_mov_b64 exec, 15\nv_cmp_gt_u32 vcc, s89, v19\ns_mov_b64 exec, -1\ns_cbranch_vccz {l2}")
        self.wait_lines("s72", 4, "s89")
        a(f"{l2}:\ns_barrier\ns_mov_b32 s14, 0\nLqkv:")
        self.if_lo(l3)
        self.qkv_compute()
        a(f"s_branch {l4}\n{l3}:")
        self.qkv_helper()
        a(f"{l4}:")
        self.attention()
        self.stamp(11)
        a(f"""s_lshl_b32 s72, {sT}, 11
        s_add_u32 s72, s72, {sFL}
        s_add_u32 s72, s72, {F_O*FSTRIDE}
        s_lshl_b32 s34, {sG}, 7
        s_add_u32 s34, s34, s72
        s_waitcnt vmcnt(0)
        s_barrier""")
        self.fstamp("a", 15)
        self.push("s72", 7, wave=0)
        a(f"s_cmp_lg_u32 {sLAYER}, 0\ns_cbranch_scc1 {last}")
        self.if_lo(l5)
        self.x_store_setup()
        a(f"""s_mul_i32 s84, {sT}, 163840
        s_mul_i32 s85, {sCB}, 20480
        s_add_u32 s84, s84, s85
        s_lshl_b32 s85, {sHALF}, 7
        s_add_u32 s84, s84, s85
        s_add_u32 s84, s84, {X0+2*XSZ}""")
        self.x_store("s84", fill=True)
        a(f"s_cmp_ge_u32 {sR}, 20\ns_cbranch_scc1 {l6}")
        self.col_tables(sWM, 4)
        self.col_early()
        a(f"s_add_u32 s72, s5, {X0+3*XSZ}\ns_add_u32 s73, s72, {4*163840}")
        self.fill_cols("s72", "s73", 60)
        a(f"{l6}:\ns_waitcnt vmcnt(0) lgkmcnt(0)\ns_barrier")
        self.x_store("s84")
        a(f"s_branch {l7}\n{l5}:")
        self.col_early()
        self.ep_setup()
        self.o_loads()
        self.fstamp("p", 0)
        self.gcore(0, 20, False, False, True, self.o_wait, hook=(1, lambda: self.fstamp("p", 1)), feed=self.o_feed)
        self.fstamp("p", 2)
        self.ep_write(False)
        self.fstamp("p", 3)
        a(f"""s_lshl_b32 s85, {sT}, 11
        s_lshl_b32 s86, {sCB}, 8
        s_add_u32 s85, s85, s86
        s_lshl_b32 s86, {sHALF}, 7
        s_add_u32 s85, s85, s86
        s_add_u32 s85, s85, {SS0+65536}
        s_waitcnt lgkmcnt(0)
        s_barrier""")
        self.ss_store(sCB, "s85")
        a(f"{l7}:")
        self.stamp(13)
        a(f"""s_mov_b32 {sLAYER}, 1
        s_mov_b32 {sXA}, {X0+2*XSZ}
        s_mov_b32 {sXB}, {X0+3*XSZ}
        s_mov_b32 {sKV}, {KV0+KVSZ}
        s_mov_b32 {sO}, {OM0+OSZ}
        s_mov_b32 {sSS}, {SS0+65536}
        s_mov_b32 {sFL}, {FLAGS+4*FSTRIDE}
        s_add_u32 s72, {sSH}, {sFL}
        {"s_waitcnt vmcnt(0)" if "drainx" in self.opts else ""}
        s_barrier""")
        self.push("s72", 11, wave=0)
        a(f"s_branch Llayer\n{last}:")
        self.if_hi("Lfin")
        self.o_loads()
        self.fstamp("p", 0)
        self.gcore(0, 20, False, True, True, self.o_wait, hook=(1, lambda: self.fstamp("p", 1)), feed=self.o_feed)
        self.fstamp("p", 2)
        self.final_store()
        self.fstamp("p", 3)
        if self.stamps or self.probe is not None:
            a("s_mov_b64 exec, -1\ns_waitcnt vmcnt(0)")
            self.stamp(13)
        if self.probe is not None:
            a("""s_memrealtime s[90:91]
            s_sub_u32 s98, s98, s100
            Lspin:
            s_memrealtime s[92:93]
            s_waitcnt lgkmcnt(0)
            s_sub_u32 s92, s92, s90
            s_cmp_lt_u32 s92, s98
            s_cbranch_scc1 Lspin""")
        a("Lfin:")
        self.stamp_dump()
        a("s_endpgm")
        self.col_early_body()
        a("Lend:\ns_endpgm")
        slow, done = self.slow_labels
        a(f"{slow}:")
        self.att_slow()
        a(f"s_branch {done}")
        for blk in self.cold:
            a(blk)
        return a.finalize()


def wrap(body):
    ref = open("cdna_kernels/" + NAME + ".s.ref").read()
    head = ref[:ref.index("; @launch")]
    out = head + "; @launch grid=(256,1,1) block=(512,1,1) lds=163840\n"
    out += f""".amdgcn_target "amdgcn-amd-amdhsa--gfx950"
.text
.globl {NAME}_kernel
.p2align 8
.type {NAME}_kernel,@function
{NAME}_kernel:
"""
    out += body
    out += ref[ref.index(".section .rodata"):]
    return out


if __name__ == "__main__":
    stamps = "--stamps" in sys.argv
    path = sys.argv[1]
    opts = [x[2:] for x in sys.argv[2:] if x.startswith("--")]
    g = Gen(stamps=stamps, opts=opts)
    txt = wrap(g.build())
    if "nosc1lds" in opts:
        txt = txt.replace(" sc1 lds", " lds")
    open(path, "w").write(txt)
    print("wrote", path, len(txt), "bytes; padded wait states", g.a.padded)
```

```python
from asmlib import *

VFR = 640
TILE = 1024 + 2 * VFR
K2OFF = 4 * TILE
HEADB = K2OFF + 1024
CHUNK = 2 * HEADB
SLOT0 = 163840 - 3 * CHUNK
SLOT_ORDER = (1, 2, 0)
VMASK = "s[4:5]"


class AR:
    Q1 = 8
    Q2 = 16
    IDX = 24
    KA = 25
    K2A = 26
    VA = 27
    O = 28
    S = 60
    K1 = 108
    K2 = 116
    V = 124
    END = 140


def slot_off(c):
    return SLOT_ORDER[c % 3] * CHUNK


def tile_off(m):
    return slot_off(m // 4) + (m % 4) * TILE


def rd_k(m):
    r = [f"ds_read_b128 {vr(AR.K1+4*(m%2),4)}, {vr(AR.KA)} offset:{tile_off(m)}"]
    if m % 2 == 0:
        r.append(f"ds_read_b64 {vr(AR.K2+2*((m//2)%3),2)}, {vr(AR.K2A)} offset:{slot_off(m//4)+256*(m%4)}")
    return r


def rd_v(m):
    r = [f"ds_read_b128 {vr(AR.V+8*(m%2)+4*i,4)}, {vr(AR.VA)} offset:{tile_off(m)+i*VFR}" for i in range(2)]
    return [f"s_mov_b64 exec, {VMASK}"] + r + ["s_mov_b64 exec, -1"]


def qk1(n, c="0"):
    m, q = n // 2, n % 2
    return f"v_mfma_f32_32x32x16_bf16 {vr(AR.S+16*(n%3),16)}, {vr(AR.K1+4*(m%2),4)}, {vr(AR.Q1+4*q,4)}, {c}"


def qk2(n):
    m, q = n // 2, n % 2
    s = vr(AR.S + 16 * (n % 3), 16)
    return f"v_mfma_f32_32x32x8_bf16 {s}, {vr(AR.K2+2*((m//2)%3),2)}, {vr(AR.Q2+4*q+2*(m%2),2)}, {s}"


def pv(n, h):
    m, q = n // 2, n % 2
    return (f"v_smfmac_f32_32x32x32_bf16 {vr(AR.O+16*q,16)}, {vr(AR.V+8*(m%2)+4*h,4)}, "
            f"{vr(AR.S+16*(n%3)+8*h,8)}, {vr(AR.IDX)}")


def ex(n, i):
    r = vr(AR.S + 16 * (n % 3) + i)
    return f"v_exp_f32 {r}, {r}"


def start(a, n):
    for r in rd_k(n // 2) + rd_v(n // 2):
        a(r)
    a("s_waitcnt lgkmcnt(2)")
    a(qk1(n))
    a(qk2(n))
    a("s_waitcnt lgkmcnt(0)")


def iteration(a, n, nt, boundary=None, first=False, hooks=None, vlate=False):
    hooks = hooks or {}
    has_next = n + 1 < nt
    fetch = n % 2 == 0 and n + 2 < nt

    def hk(k):
        for x in hooks.get(k, []):
            a(x)
    if has_next:
        a(qk1(n + 1))
    if boundary:
        boundary()
    hk(0)
    for i in range(0, 4):
        a(ex(n, i))
    if has_next:
        a(qk2(n + 1))
    if vlate and n % 2 == 0 and not boundary and not first:
        a("s_waitcnt lgkmcnt(0)")
    hk(1)
    if fetch:
        for r in rd_k(n // 2 + 1):
            a(r)
    for i in range(4, 8):
        a(ex(n, i))
    if not first:
        a(pv(n - 1, 1))
    if (fetch and not vlate) or (vlate and n % 2 == 1 and has_next):
        for r in rd_v(n // 2 + 1):
            a(r)
    hk(2)
    for i in range(8, 12):
        a(ex(n, i))
    a(pv(n, 0))
    if vlate:
        if fetch:
            a("s_waitcnt lgkmcnt(0)")
    elif fetch:
        a("s_waitcnt lgkmcnt(2)")
    elif n % 2 == 1 and has_next:
        a("s_waitcnt lgkmcnt(0)")
    hk(3)
    for i in range(12, 16):
        a(ex(n, i))


def setup_addr(a, vl, vl16, s_p, st, tmp):
    t0, t1 = vr(tmp), vr(tmp + 1)
    a(f"s_mul_i32 {st}, {s_p}, {HEADB}")
    a(f"s_add_u32 {st}, {st}, {SLOT0}")
    a(f"v_add_u32 {vr(AR.KA)}, {st}, {vl16}")
    a(f"v_and_b32 {t0}, 31, {vl}")
    a(f"v_lshrrev_b32 {t1}, 5, {vl}")
    a(f"v_cmp_ne_u32 vcc, 20, {t0}")
    a(f"v_mul_u32_u24 {t1}, 20, {t1}")
    a(f"v_add_lshl_u32 {t0}, {t0}, {t1}, 4")
    a(f"s_add_u32 {st}, {st}, 1024")
    a(f"v_add_u32 {vr(AR.VA)}, {st}, {t0}")
    a(f"v_mov_b32 {t1}, 0")
    a(f"v_cndmask_b32 {vr(AR.V)}, 0x3f803f80, {t1}, vcc")
    for i in range(1, 16):
        a(f"v_mov_b32 {vr(AR.V+i)}, {vr(AR.V)}")
    a("s_mov_b32 s4, 0xfffff\ns_mov_b32 s5, 0xfffff")
    a(f"s_add_u32 {st}, {st}, {K2OFF-1024}")
    a(f"v_lshl_add_u32 {vr(AR.K2A)}, {vl}, 3, {st}")
    a(f"v_mov_b32 {vr(AR.IDX)}, 0xdddd")
```

```python
import math, struct, sys
from asmlib import *
import attn as A
from attn import AR
from layout import *

NAME = "interleave_layers__spectral_gfnet__mha_block__prompt"


def fbits(x):
    return "0x%08x" % struct.unpack("<I", struct.pack("<f", x))[0]


WS, SX, SWF, SWQ, SWO, SOUT, SDBG = "s[20:23]", "s[24:27]", "s[28:31]", "s[36:39]", "s[40:43]", "s[44:47]", "s[48:51]"
sB, sWV, sX, sR, sT, sH, sHALF, sCB, sLAYER, sCB0, sTB0 = "s2", "s3", "s52", "s53", "s54", "s55", "s56", "s57", "s58", "s59", "s60"
sXA, sXB, sKV, sO, sSS, sFL, sSTAMP, sWM, sHI = "s61", "s62", "s63", "s64", "s65", "s66", "s67", "s68", "s69"
vTID, vL, vN, vG, vL16 = "v0", "v1", "v2", "v3", "v4"

AMP = math.sqrt(2.0 / 640)
QS = 20 ** -0.5 * math.log2(math.e)
SPIN = 1 << 16

XS, FI, EP, TB, TRS = 0, 81920, 133120, 145408, 157696
GA, GB, GLO, GHI = 164, 60, 144, 120
F_X, F_COL, F_KV, F_O, F_WQ, F_IMG, F_KMAX = 0, 1, 2, 3, 8, 9, 11
sSH, sREP, sTT = "s32", "s33", "s94"


class Gen:
    def __init__(self, stamps=False, opts=()):
        self.opts = set(opts)
        self.a = Asm()
        self.stamps = stamps
        self.olead = next((int(o[2:]) for o in self.opts if o.startswith("ol")), 10)
        self.cold = []
        self.ft_early = {} if "ft0" in self.opts else ({17: 0, 18: 1, 19: 3} if "ft3" in self.opts else {17: 0, 19: 1})
        self.hk = next((int(o[2:]) for o in self.opts if o.startswith("hk")), 19)
        self.ho = next((int(o[2:]) for o in self.opts if o.startswith("ho")), None)
        self.wg = next((int(o[2:]) for o in self.opts if o.startswith("wg")), 5)
        self.probe = next((int(o[5:]) for o in self.opts if o.startswith("probe")), None)
        self.stw = next((int(o[3:]) for o in self.opts if o.startswith("stw")), 0)
        self.pub = next((int(o[3:]) for o in self.opts if o.startswith("pub")), 1)

    def stamp(self, k):
        if self.probe is not None and k == self.probe % 16:
            l = self.a.lab("Lpb")
            self.a(f"""s_cselect_b32 s91, 1, 0
            s_cmp_lg_u32 {sLAYER}, {self.probe//16}
            s_cbranch_scc1 {l}
            s_memrealtime s[98:99]
            s_waitcnt lgkmcnt(0)
            {l}:
            s_cmp_lg_u32 s91, 0""")
        if not self.stamps:
            return
        a = self.a
        a(f"""s_memrealtime s[90:91]
        s_memtime s[96:97]
        s_mov_b32 s93, m0
        s_mul_i32 s92, {sLAYER}, 16
        s_bitset0_b32 s92, 31
        s_waitcnt lgkmcnt(0)
        s_cselect_b32 s91, 1, 0
        s_add_u32 m0, s92, {k}
        s_cmp_lg_u32 s91, 0
        v_writelane_b32 v252, s90, m0
        v_writelane_b32 v253, s96, m0
        s_mov_b32 m0, s93""")

    def stamp_dump(self):
        if not self.stamps:
            return
        a = self.a
        l = a.lab("Lst")
        a(f"""s_cmp_lg_u32 {sWM}, {self.stw}
        s_cbranch_scc1 {l}
        s_mov_b64 exec, -1
        v_lshlrev_b32 v254, 3, {vL}
        s_getreg_b32 s90, hwreg(HW_REG_XCC_ID)
        s_getreg_b32 s91, hwreg(HW_REG_HW_ID)
        v_writelane_b32 v252, s90, 32
        v_writelane_b32 v253, s91, 32
        s_mov_b32 exec_hi, 1
        buffer_store_dwordx2 v[252:253], v254, {WS}, {sSTAMP} offen
        {l}:""")

    def fstamp(self, grp, k):
        if "fine" + grp in self.opts:
            self.stamp(k)

    def count(self, word):
        if "count" in self.opts:
            self.a(self.count_text(word))

    def count_text(self, word):
        if "count" not in self.opts:
            return ""
        return f"v_mov_b32 v254, 1\ns_mov_b64 exec, 1\nbuffer_atomic_add v254, {vL16}, {SDBG}, 0 offen offset:{4*word} sc1\ns_mov_b64 exec, -1"

    def if_lo(self, lab):
        self.a(f"s_cmp_lg_u32 {sHI}, 0\ns_cbranch_scc1 {lab}")

    def if_hi(self, lab):
        self.a(f"s_cmp_eq_u32 {sHI}, 0\ns_cbranch_scc1 {lab}")

    def prologue(self):
        a = self.a
        l0, l1, lp = a.lab("Lp"), a.lab("Lp"), a.lab("Lp")
        a(f"""s_cmp_ge_u32 {sB}, 256
        s_cbranch_scc1 Lend
        {"s_memrealtime s[100:101]" if self.probe is not None else ""}
        {"s_memrealtime s[98:99]" if self.probe is not None else ""}
        {"s_memrealtime s[90:91]" if self.stamps else ""}
        {"s_memtime s[96:97]" if self.stamps else ""}
        s_load_dwordx16 s[4:19], s[0:1], 0
        s_load_dwordx2 s[20:21], s[0:1], 64
        s_getpc_b64 s[72:73]
        Lpc:
        s_lshr_b32 {sR}, {sB}, 3
        v_lshlrev_b32 v6, 5, v0
        v_add_lshl_u32 v6, v6, {sR}, 7
        v_cmp_gt_u32 vcc, Lend-Lpc, v6
        s_and_saveexec_b64 s[74:75], vcc
        s_cbranch_execz {l0}
        v_mov_b32 v7, s73
        v_add_co_u32 v6, vcc, s72, v6
        v_addc_co_u32 v7, vcc, 0, v7, vcc
        global_load_dword v251, v[6:7], off
        {l0}:
        s_mov_b64 exec, s[74:75]
        v_lshrrev_b32 v5, 6, v0
        v_and_b32 {vL}, 63, v0
        v_readfirstlane_b32 {sWV}, v5
        v_and_b32 {vN}, 15, v0
        v_lshrrev_b32 {vG}, 4, {vL}
        s_and_b32 {sX}, {sB}, 7
        s_add_u32 s70, {sR}, {sX}
        s_and_b32 {sCB0}, s70, 7
        s_lshl_b32 s70, {sX}, 2
        s_lshr_b32 s71, {sR}, 3
        s_add_u32 {sTB0}, s70, s71
        s_lshr_b32 s80, {sTB0}, 1
        s_and_b32 s81, {sTB0}, 1
        s_mov_b32 s26, {XSZ}
        s_mov_b32 s27, 0x20000
        s_lshr_b32 {sHI}, {sWV}, 2
        s_cbranch_scc0 {l1}
        s_and_b32 s82, s80, 7
        s_lshl_b32 s82, s82, 5
        s_lshr_b32 s83, s80, 3
        s_lshl_b32 s83, s83, 1
        s_add_u32 s82, s82, s83
        s_add_u32 s82, s82, s81
        s_lshl_b32 s86, s82, 3
        s_add_u32 s84, {sWV}, {sCB0}
        s_and_b32 s84, s84, 7
        s_mov_b32 s85, 0""")
        self.dma_rows_setup(32 * 1280, 128 * 1280, "s84")
        a(f"""s_waitcnt lgkmcnt(0)
        s_mov_b64 s[24:25], s[4:5]
        {lp}:
        s_add_u32 s82, s86, s84
        s_mul_i32 s82, s82, 1280""")
        self.dma_rows_issue(SX, "s82", "s84")
        a(f"""s_xor_b32 s84, s84, 4
        s_xor_b32 s85, s85, 1
        s_cbranch_scc1 {lp}
        {l1}:
        v_lshlrev_b32 {vL16}, 4, {vL}
        v_mov_b32 v11, 0
        s_and_b32 s70, {sX}, 3
        s_lshl_b32 s70, s70, 1
        s_and_b32 s71, {sR}, 1
        s_add_u32 {sTT}, s70, s71
        s_lshr_b32 s70, {sX}, 2
        s_lshl_b32 {sT}, {sTT}, 1
        s_add_u32 {sT}, {sT}, s70
        s_lshl_b32 s70, s70, 4
        s_lshr_b32 s71, {sR}, 1
        s_add_u32 {sH}, s70, s71
        s_lshr_b32 {sHALF}, {sR}, 4
        s_and_b32 {sCB}, s71, 7
        s_mov_b32 {sLAYER}, 0
        s_and_b32 {sWM}, {sWV}, 3
        s_mov_b32 {sFL}, {FLAGS}
        s_and_b32 {sSH}, {sB}, 15
        s_lshl_b32 {sREP}, {sSH}, 11
        s_lshl_b32 {sSH}, {sSH}, 7
        s_mov_b32 s22, {WSEND}
        s_mov_b32 s23, 0x20000
        s_mov_b32 s30, {2048*642}
        s_mov_b32 s31, 0x20000
        s_mov_b32 s38, {640*3840}
        s_mov_b32 s39, 0x20000
        s_mov_b32 s42, {640*1280}
        s_mov_b32 s43, 0x20000
        s_mov_b32 s46, {XSZ}
        s_mov_b32 s47, 0x20000
        s_mov_b32 s50, 256
        s_mov_b32 s51, 0x20000
        s_waitcnt lgkmcnt(0)
        s_cmp_lt_u32 {sX}, 4
        s_cselect_b32 s28, s6, s8
        s_cselect_b32 s29, s7, s9
        s_mov_b64 s[36:37], s[12:13]
        s_mov_b64 s[40:41], s[14:15]
        s_mov_b64 s[44:45], s[16:17]
        s_mov_b64 s[48:49], s[18:19]""")
        if self.stamps:
            a(f"""s_lshl_b32 {sSTAMP}, {sB}, 1
            s_add_u32 {sSTAMP}, {sSTAMP}, {sHI}
            s_lshl_b32 {sSTAMP}, {sSTAMP}, 9
            s_add_u32 {sSTAMP}, {sSTAMP}, {STAMP}
            v_mov_b32 v252, -1
            v_mov_b32 v253, -1
            v_writelane_b32 v252, s90, 0
            v_writelane_b32 v253, s96, 0""")

    def poll(self, srd, vaddr, soff, nlanes, target, atomic=True):
        a = self.a
        lp, dn = a.lab("Lp"), a.lab("Ld")
        if atomic:
            ld = f"v_mov_b32 v6, 0\nbuffer_atomic_add v6, {vaddr}, {srd}, {soff} offen sc0 sc1"
        else:
            ld = f"buffer_load_dword v6, {vaddr}, {srd}, {soff} offen sc1"
        a(f"""s_mov_b32 s88, {SPIN}
        s_mov_b64 exec, {hex((1 << nlanes) - 1)}
        {lp}:
        {ld}
        s_sub_u32 s88, s88, 1
        s_cbranch_scc1 {dn}
        s_waitcnt vmcnt(0)
        v_cmpx_gt_u32 vcc, {target}, v6
        {f"s_cbranch_execnz {lp}" if atomic else f"s_cbranch_execz {dn}"}
        {"" if atomic else "s_sleep 12"}
        {"" if atomic else f"s_branch {lp}"}
        {dn}:
        s_waitcnt vmcnt(0)
        s_mov_b64 exec, -1""")

    def wait_lines(self, s_off, nlanes, target):
        self.a(f"v_lshlrev_b32 v5, 7, {vL}")
        self.poll(WS, "v5", s_off, nlanes, target)

    def push(self, s_off, shift, wave=None, n=16):
        a = self.a
        l = a.lab("Lsg")
        if wave is not None:
            a(f"s_cmp_lg_u32 {sWV}, {wave}\ns_cbranch_scc1 {l}")
        a(f"""v_lshlrev_b32 v5, {shift}, {vL}
        v_mov_b32 v6, 1
        s_bfm_b64 exec, {n}, 0
        buffer_atomic_add v6, v5, {WS}, {s_off} offen sc1
        s_mov_b64 exec, -1
        {l}:""")

    def gen_F(self, s_ct):
        a = self.a
        a(f"""s_mov_b32 s72, {s_ct}
        s_mul_i32 s73, {sCB0}, 80
        s_lshl_b32 s74, s72, 4
        s_add_u32 s73, s73, s74
        v_add_u32 v12, s73, {vN}
        v_lshrrev_b32 v14, 1, v12
        v_and_b32 v15, 1, v12
        v_cmp_ne_u32 vcc, 0, v12
        v_cndmask_b32 v14, 0x140, v14, vcc
        v_cmp_ne_u32 vcc, 1, v12
        v_cndmask_b32 v15, 0, v15, vcc
        v_cvt_f32_u32 v14, v14
        v_cvt_f32_u32 v15, v15
        v_lshlrev_b32 v13, 3, {vG}
        v_cvt_f32_u32 v13, v13
        v_mul_f32 v10, {fbits(1/640)}, v14
        v_mul_f32 v14, {fbits(1/20)}, v14
        v_mul_f32 v15, 0.25, v15
        v_fma_f32 v16, v13, v10, v15
        s_lshl_b32 s72, s72, 10
        s_add_u32 s72, s72, {FI}
        v_add_u32 v12, s72, {vL16}""".replace("0.25", fbits(0.25)))
        for e in range(1, 8):
            a(f"v_add_f32 v{16+e}, v{15+e}, v10")
        for h in range(4):
            a(f"v_pk_add_f32 {vr(24+2*h,2)}, {vr(16+2*h,2)}, v[14:15] op_sel_hi:[1,0]")
        a("v_cos_f32 v14, v14")
        for e in range(16):
            a(f"v_cos_f32 v{16+e}, v{16+e}")
        a("v_add_f32 v14, v14, v14")
        for ks in range(10):
            x, y, p = 16 + 8 * (ks % 2), 16 + 8 * ((ks + 1) % 2), 32 + 4 * (ks % 2)
            if ks >= 2:
                for h in range(4):
                    a(f"v_pk_fma_f32 {vr(x+2*h,2)}, {vr(y+2*h,2)}, v[14:15], {vr(x+2*h,2)} "
                      f"op_sel_hi:[1,0,1] neg_lo:[0,0,1] neg_hi:[0,0,1]")
            for h in range(4):
                a(f"v_cvt_pk_bf16_f32 v{p+h}, v{x+2*h}, v{x+2*h+1}")
            a(f"ds_write_b128 v12, {vr(p,4)} offset:{5120*ks}")

    def gcore(self, base, nks, dual, swap, init, await_a=None, hook=None, order=None, feed=None):
        a = self.a
        a(f"v_add_u32 v6, {base}, {vL16}")
        if nks > 12:
            a(f"v_add_u32 v7, {base+61440}, {vL16}")

        order = list(order or range(nks))

        def rd(j, ct):
            ks = order[j]
            reg, off = ("v6", ks * 5120) if ks < 12 else ("v7", (ks - 12) * 5120)
            return f"ds_read_b128 {vr(GB+20*(j%3)+4*ct,4)}, {reg} offset:{off+ct*1024}"

        def mf(acc, ka, j, ct, first):
            x, y = vr(GA + 4 * ka, 4), vr(GB + 20 * (j % 3) + 4 * ct, 4)
            if swap:
                x, y = y, x
            d = vr(acc + 4 * ct, 4)
            return f"v_mfma_f32_16x16x32_bf16 {d}, {x}, {y}, {'0' if first else d}"
        n = len(order)
        for j in range(2):
            for ct in range(5):
                a(rd(j, ct))
        for j, ks in enumerate(order):
            w = f"lgkmcnt({5 if j + 1 < n else 0})"
            if await_a:
                w = f"vmcnt({await_a(ks)}) " + w
            a("s_waitcnt " + w)
            if hook and hook[0] == ks:
                hook[1]()
            for ct in range(5):
                a(mf(GLO, ks, j, ct, j == 0 and not init))
                if ct == 0 and feed:
                    feed(ks)
                if j + 2 < n:
                    a(rd(j + 2, ct))
                if dual:
                    a(mf(GHI, ks + 10, j, ct, j == 0))

    def dual_setup(self, s_cb):
        a = self.a
        a(f"""v_mov_b32 v52, {fbits(AMP)}
        v_lshlrev_b32 v5, 30, {vN}
        v_and_b32 v5, 0x80000000, v5
        v_xor_b32 v54, v5, v52
        s_cmp_eq_u32 {s_cb}, 0
        s_cselect_b32 s72, 2, 0
        v_cmp_le_u32 vcc, s72, {vN}
        v_cndmask_b32 v56, {fbits(AMP/math.sqrt(2))}, v52, vcc
        v_xor_b32 v58, v5, v56""")

    def ep_setup(self):
        a = self.a
        a(f"""v_mul_u32_u24 v5, 144, {vN}
        v_lshl_add_u32 v5, {vG}, 3, v5
        s_lshl_b32 s72, {sWM}, 5
        s_add_u32 s72, s72, {EP}
        v_add_u32 v140, s72, v5""")

    def ep_write(self, dual):
        a = self.a
        for ct in range(5):
            if dual:
                p, q = (56, 58) if ct == 0 else (52, 54)
                for h in range(2):
                    lo, hi = vr(GLO + 4 * ct + 2 * h, 2), vr(GHI + 4 * ct + 2 * h, 2)
                    a(f"v_pk_mul_f32 {lo}, {lo}, {vr(p,2)} op_sel_hi:[1,0]")
                    a(f"v_pk_fma_f32 {lo}, {hi}, {vr(q,2)}, {lo} op_sel_hi:[1,0,1]")
            a(f"v_cvt_pk_bf16_f32 v{GB+2*ct}, v{GLO+4*ct}, v{GLO+4*ct+1}")
            a(f"v_cvt_pk_bf16_f32 v{GB+1+2*ct}, v{GLO+4*ct+2}, v{GLO+4*ct+3}")
            self.clean(GB + 2 * ct, 2)
            a(f"ds_write_b64 v140, {vr(GB+2*ct,2)} offset:{ct*16*144}")

    def ss_store(self, s_cb, s_ss):
        a = self.a
        R = GB + 16
        a(f"""s_cmp_eq_u32 {s_cb}, 0
        s_cselect_b32 s72, 1, 99
        v_cmp_ne_u32 vcc, s72, {vN}""")
        for h in range(2):
            x = vr(GLO + 4 + 2 * h, 2)
            a(f"v_pk_mul_f32 {vr(R+2*h,2)}, {x}, {x}")
        for r in range(4):
            a(f"v_cndmask_b32 v{GLO+r}, 0, v{GLO+r}, vcc")
        for ct in (2, 3, 4, 0):
            for h in range(2):
                x = vr(GLO + 4 * ct + 2 * h, 2)
                a(f"v_pk_fma_f32 {vr(R+2*h,2)}, {x}, {x}, {vr(R+2*h,2)}")
        for sh in (8, 4, 2, 1):
            for r in range(4):
                a(f"v_add_f32 v{R+r}, v{R+r}, v{R+r} row_ror:{sh} row_mask:0xf bank_mask:0xf")
        a(f"v_cvt_pk_bf16_f32 v{R}, v{R}, v{R+1}\nv_cvt_pk_bf16_f32 v{R+1}, v{R+2}, v{R+3}\nv_lshlrev_b32 v5, 3, {vG}")
        self.clean(R, 2)
        a(f"""s_lshl_b32 s72, {sWM}, 5
        s_add_u32 s72, s72, {s_ss}
        s_mov_b32 exec_lo, 0x00010001
        s_mov_b32 exec_hi, 0x00010001
        buffer_store_dwordx2 {vr(R,2)}, v5, {WS}, s72 offen sc1
        s_mov_b64 exec, -1""")

    def x_store_setup(self):
        a = self.a
        a(f"""s_movk_i32 s79, 144
        v_lshrrev_b32 v5, 3, {vTID}
        v_and_b32 v6, 7, {vTID}
        v_lshlrev_b32 v6, 4, v6
        v_mad_u32_u24 v141, v5, s79, v6
        v_lshl_add_u32 v142, v5, 8, v6
        v_add_u32 v141, {EP}, v141""")

    def x_store(self, s_dst):
        a = self.a
        l1 = a.lab("Le")
        R = GB + 24
        for i in range(3):
            a(f"ds_read_b128 {vr(R+4*i,4)}, v141 offset:{32*144*i}")
        a(f"s_add_u32 s72, {s_dst}, 8192\ns_add_u32 s73, {s_dst}, 16384")
        a(f"s_waitcnt lgkmcnt(2)\nbuffer_store_dwordx4 {vr(R,4)}, v142, {WS}, {s_dst} offen sc1")
        a(f"s_waitcnt lgkmcnt(1)\nbuffer_store_dwordx4 {vr(R+4,4)}, v142, {WS}, s72 offen sc1")
        a(f"""s_cmp_gt_u32 {sWV}, 1
        s_waitcnt lgkmcnt(0)
        s_cbranch_scc1 {l1}
        buffer_store_dwordx4 {vr(R+8,4)}, v142, {WS}, s73 offen sc1
        {l1}:""")

    def dma_rows(self, srd, rg, s_rh, s_base, s_set):
        self.dma_rows_setup(rg, s_rh, s_set)
        self.dma_rows_issue(srd, s_base, s_set)

    def dma_rows_setup(self, rg, s_rh, s_set):
        a = self.a
        a(f"""s_and_b32 s72, {s_set}, 1
        s_lshl_b32 s72, s72, 3
        v_add_u32 v5, s72, {vG}
        v_xor_b32 v5, v5, {vN}
        v_mul_u32_u24 v6, {rg}, {vG}
        v_lshl_add_u32 v8, v5, 4, v6
        v_xor_b32 v5, 4, v5
        v_lshl_add_u32 v9, v5, 4, v6
        v_add_u32 v9, {s_rh}, v9""")

    def dma_rows_issue(self, srd, s_base, s_set):
        a = self.a
        a(f"s_lshl_b32 s72, {s_set}, 11")
        for blk in range(5):
            for h in range(2):
                a(f"s_add_u32 m0, s72, {XS + blk*(16384-256) + h*1024}")
                a(f"buffer_load_dwordx4 v{8+h}, {srd}, {s_base} offen offset:{blk*256} lds")

    def read_rows_frags(self):
        a = self.a
        a(f"""s_lshl_b32 s72, {sWM}, 12
        v_xor_b32 v5, {vG}, {vN}
        v_lshlrev_b32 v5, 4, v5
        v_lshl_add_u32 v5, {vN}, 8, v5
        v_add_u32 v60, s72, v5""")
        for c in range(1, 4):
            a(f"v_xor_b32 v{60+c}, {64*c}, v60")
        for ks in range(20):
            if ks == 16:
                for c in range(4):
                    a(f"v_add_u32 v{64+c}, 0x10000, v{60+c}")
            if ks < 16:
                a(f"ds_read_b128 {vr(GA+4*ks,4)}, v{60+ks%4} offset:{XS+(ks//4)*16384}")
            else:
                a(f"ds_read_b128 {vr(GA+4*ks,4)}, v{64+ks%4} offset:{XS}")

    def wf_setup(self):
        a = self.a
        a(f"""s_lshl_b32 s19, {sX}, 5
        s_add_u32 s19, s19, {sR}
        s_bfe_u32 s72, s19, 0x20005
        s_and_b32 s76, s72, 1
        s_lshl_b32 s76, s76, 5
        s_and_b32 s73, s19, 16
        s_add_u32 s76, s76, s73
        s_lshr_b32 s73, s72, 1
        s_add_u32 s76, s76, s73
        s_and_b32 s73, s19, 12
        s_lshl_b32 s73, s73, 7
        s_add_u32 s76, s76, s73
        s_mul_i32 s76, s76, 642
        s_and_b32 s75, s19, 3
        s_mul_i32 s75, s75, 160
        s_lshl_b32 s73, {sWM}, 4
        s_add_u32 s13, s75, s73
        s_and_b32 s73, s72, 2
        s_add_u32 s13, s13, s73
        s_add_u32 s76, s76, s13
        v_lshrrev_b32 v5, 3, {vL}
        v_and_b32 v6, 7, {vL}
        v_lshl_add_u32 v5, v6, 5, v5
        v_mul_u32_u24 v244, 1284, v5
        s_mov_b32 s18, s76""")

    def wf_loads(self):
        a = self.a
        skip = a.lab("Lw")
        a(f"""buffer_load_dwordx4 v[164:167], v244, {SWF}, s18 offen
        buffer_load_dwordx4 v[168:171], v244, {SWF}, s18 offen offset:64
        s_cmp_gt_u32 {sWM}, 1
        s_cbranch_scc1 {skip}
        buffer_load_dwordx4 v[172:175], v244, {SWF}, s18 offen offset:128
        s_cmp_lg_u32 s13, 0
        s_cbranch_scc1 {skip}
        buffer_load_ushort v176, v244, {SWF}, s18 offen offset:640
        {skip}:""")

    def wf_setup2(self):
        a = self.a
        a(f"""s_bfe_u32 s72, s19, 0x20005
        s_lshl_b32 s72, s72, 11
        s_lshr_b32 s73, s19, 7
        s_lshl_b32 s73, s73, 10
        s_add_u32 s72, s72, s73
        s_bfe_u32 s73, s19, 0x20002
        s_lshl_b32 s73, s73, 8
        s_add_u32 s72, s72, s73
        s_bfe_u32 s73, s19, 0x10004
        s_lshl_b32 s73, s73, 7
        s_add_u32 s72, s72, s73
        s_add_u32 s72, s72, {WF}
        s_lshl_b32 s74, {sWM}, 10
        s_add_u32 s74, s74, {TRS}
        v_lshrrev_b32 v5, 3, {vL}
        v_and_b32 v6, 7, {vL}
        v_xor_b32 v7, v5, v6
        v_lshl_add_u32 v7, v7, 4, s74
        v_lshl_add_u32 v245, v6, 7, v7
        v_lshl_add_u32 v250, v5, 7, v7
        v_add_u32 v246, s74, {vL16}
        v_lshlrev_b32 v247, 4, v6
        s_lshr_b32 s73, s13, 1
        v_add_u32 v5, s73, v5
        v_cmp_ne_u32 vcc, 0x100, v5
        v_lshl_add_u32 v247, v5, 13, v247
        v_subrev_u32 v249, {320*8192}, v247
        v_cndmask_b32 v249, v249, v247, vcc
        v_add_u32 v249, {64*8192}, v249""")
        a(f"""v_bfe_u32 v5, {vL}, 1, 1
        v_lshl_add_u32 v5, {vG}, 1, v5
        v_bfe_u32 v6, {vL}, 2, 2
        v_lshl_add_u32 v5, v5, 3, v6
        v_and_b32 v6, 1, {vL}
        v_lshlrev_b32 v6, 3, v6
        v_lshl_add_u32 v5, v5, 4, v6
        v_add_u32 v248, s74, v5
        s_mov_b32 s17, s72""")

    def wf_stores(self):
        a = self.a
        nop = a.lab("Lw")
        a(f"""s_cmp_lg_u32 s13, 0
        s_cbranch_scc1 {nop}
        v_and_b32 v164, 0xffff0000, v164
        v_or_b32 v164, v164, v176
        {nop}:""")
        for rnd in range(3):
            a(f"ds_write_b128 v246, {vr(164+4*rnd,4)}")
            for i in range(2):
                a(f"ds_read_b64_tr_b16 {vr(164+4*rnd+2*i,2)}, v248 offset:{64*i}")
        for rnd in range(3):
            a(f"s_waitcnt lgkmcnt({(6, 5, 4)[rnd]})")
            a(f"ds_write_b128 v245, {vr(164+4*rnd,4)}")
            a(f"ds_read_b128 {vr(164+4*rnd,4)}, v250")
        skip = a.lab("Lw")
        a("s_waitcnt lgkmcnt(0)")
        for rnd in range(3):
            if rnd == 2:
                a(f"s_cmp_gt_u32 {sWM}, 1\ns_cbranch_scc1 {skip}")
            a(f"buffer_store_dwordx4 {vr(164+4*rnd,4)}, {'v249' if rnd == 2 else 'v247'}, {WS}, {'s74' if rnd == 1 else 's17'} offen sc1")
            a(f"s_add_u32 s74, s17, {32*8192}")
        a(f"{skip}:")

    def wq_setup(self):
        a = self.a
        a(f"""v_lshrrev_b32 v5, 3, {vL}
        v_bfe_u32 v6, {vL}, 4, 1
        s_and_b32 s72, {sWV}, 1
        s_lshl_b32 s72, s72, 1
        v_or_b32 v6, s72, v6
        v_lshlrev_b32 v6, 1, v6
        v_and_b32 v7, 7, {vL}
        v_xor_b32 v6, v6, v7
        v_mul_u32_u24 v5, 3840, v5
        v_lshl_add_u32 v58, v6, 4, v5
        s_mul_i32 s72, {sWM}, {8*3840}
        s_lshl_b32 s73, {sTB0}, 7
        s_add_u32 s72, s72, s73
        s_lshl_b32 s73, {sWM}, 10""")

    def wq_dma(self, first, last):
        a = self.a
        for it in range(first, last):
            a(f"s_add_u32 m0, s73, {XS + it*4096}")
            a(f"buffer_load_dwordx4 v58, {SWQ}, s72 offen lds")
            a(f"s_add_u32 s72, s72, {32*3840}")

    def arrive(self, last, s_off, slot=0):
        a = self.a
        l = a.lab("Lar")
        a(f"""v_mov_b32 v5, {TRS+4096+4*slot}
        v_mov_b32 v6, 1
        s_mov_b64 exec, 1
        ds_add_rtn_u32 v7, v5, v6
        s_waitcnt lgkmcnt(0)
        v_cmp_eq_u32 vcc, {last}, v7
        s_mov_b64 exec, -1
        s_cbranch_vccz {l}""")
        self.push(s_off, 11)
        a(f"{l}:")

    def fill_cols(self, s0, s1, r):
        a = self.a
        for i in range(4):
            a(f"v_mov_b32 v{r+i}, -1")
        for so in (s0, s1):
            for i in range(2):
                a(f"buffer_store_dwordx4 {vr(r,4)}, v11, {WS}, {so} offen offset:{512*i} sc1")

    def clean(self, r, n):
        for i in range(n):
            self.a(f"v_min_u32 v{r+i}, -2, v{r+i}")

    def umax(self, dst, regs):
        out, regs = [], list(regs)
        out.append(f"v_max3_u32 v{dst}, v{regs[0]}, v{regs[1]}, v{regs[2]}")
        regs = regs[3:]
        while regs:
            if len(regs) == 1:
                out.append(f"v_max_u32 v{dst}, v{dst}, v{regs[0]}")
            else:
                out.append(f"v_max3_u32 v{dst}, v{dst}, v{regs[0]}, v{regs[1]}")
            regs = regs[2:]
        return out

    def half_sync(self, slot, add=True, addr=TRS + 4096):
        a = self.a
        lp = a.lab("Lhs")
        a(f"""v_mov_b32 v5, {addr+4*slot}
        v_mov_b32 v6, 1
        s_mov_b64 exec, 1
        {"ds_add_u32 v5, v6" if add else ""}
        {lp}:
        ds_read_b32 v6, v5
        s_waitcnt lgkmcnt(0)
        v_cmp_gt_u32 vcc, 4, v6
        s_cbranch_vccnz {lp}
        s_mov_b64 exec, -1""")

    def phase0(self):
        a = self.a
        z0, z1, z2, z3, z4, z5, l1, l2, l3, l5, l6, l7, l8, l9, l10 = (a.lab("Lq") for _ in range(15))
        dest = f"""s_mul_i32 s84, s80, 163840
        s_mul_i32 s85, {sCB0}, 20480
        s_add_u32 s84, s84, s85
        s_lshl_b32 s85, s81, 7
        s_add_u32 s84, s84, s85
        s_add_u32 s84, s84, {X0}
        s_lshl_b32 s85, s80, 11
        s_lshl_b32 s86, {sCB0}, 8
        s_add_u32 s85, s85, s86
        s_lshl_b32 s86, s81, 7
        s_add_u32 s85, s85, s86
        s_add_u32 s85, s85, {SS0}"""
        self.if_hi(z0)
        self.fstamp("0", 14)
        a(f"""s_mul_i32 s72, {sCB0}, 80
        s_mul_i32 s73, {sWM}, 20
        s_add_u32 s72, s72, s73
        s_mul_i32 s72, s72, 3840
        s_lshl_b32 s73, {sTB0}, 7
        s_add_u32 s72, s72, s73
        v_mul_u32_u24 v5, 3840, {vL}
        s_mov_b64 exec, 0xfffff
        s_waitcnt vmcnt(6)
        buffer_load_dword v251, v5, {SWQ}, s72 offen
        s_mov_b64 exec, -1""")
        self.fstamp("0", 15)
        a(f"""s_branch {l3}
        {z0}:
        s_cmp_lg_u32 {sWV}, 3
        s_cbranch_scc1 {z4}
        {dest}
        s_lshl_b32 s70, {sB}, 7
        v_lshrrev_b32 v5, 2, {vL}
        v_and_b32 v6, 3, {vL}
        v_lshlrev_b32 v6, 4, v6
        v_lshl_add_u32 v5, v5, 15, v6
        v_mov_b32 v60, 0
        v_mov_b32 v61, 0
        v_mov_b32 v62, 0
        v_mov_b32 v63, 0
        v_mov_b32 v6, {TRS+4096}
        s_lshl_b32 s71, {sB}, 10
        s_add_u32 s71, s71, {SQ0}
        buffer_store_dwordx4 v[60:63], {vL16}, {WS}, s71 offen sc1
        s_bfm_b64 exec, {4*NFLAG}, 0
        buffer_store_dwordx4 v[60:63], v5, {WS}, s70 offen sc1
        s_lshl_b32 s71, {sB}, 7
        s_add_u32 s71, s71, {SS0+65536}
        v_mov_b32 v64, -1
        v_mov_b32 v65, -1
        v_mov_b32 v66, -1
        v_mov_b32 v67, -1
        s_mov_b64 exec, 0xff
        buffer_store_dwordx4 v[64:67], {vL16}, {WS}, s71 offen sc1
        buffer_store_dwordx4 v[64:67], {vL16}, {WS}, s85 offen sc1
        ds_write_b128 v6, v[60:63]
        ds_write_b128 v6, v[60:63] offset:16
        s_mov_b64 exec, -1
        {z4}:""")
        a(f"s_mov_b32 s15, {sWV}\n{z5}:")
        self.gen_F("s15")
        a(f"""s_add_u32 s15, s15, 4
        s_cmp_eq_u32 s15, 4
        s_cbranch_scc1 {z5}
        s_cmp_ge_u32 {sR}, 20
        s_cbranch_scc1 {l9}
        s_sub_u32 s15, {sWV}, 1
        s_cmp_ge_u32 s15, 2
        s_cbranch_scc1 {l9}""")
        self.col_tables("s15", 2)
        a(f"""{l9}:
        {dest}
        """)
        self.fstamp("0", 15)
        a(f"""s_cmp_lg_u32 {sWV}, 3
        s_cbranch_scc1 {z3}
        s_and_b32 s70, {sB}, 1
        s_lshl_b32 s70, s70, 7
        v_mov_b32 v60, 0
        v_mov_b32 v61, 1
        s_mov_b64 exec, 1
        s_waitcnt vmcnt(0)
        buffer_atomic_add v61, v60, {SDBG}, s70 offen sc1
        s_mov_b64 exec, -1
        {z3}:
        s_waitcnt lgkmcnt(0)
        s_barrier""")
        self.stamp(1)
        self.read_rows_frags()
        self.dual_setup(sCB0)
        self.ep_setup()
        self.x_store_setup()
        a("s_waitcnt lgkmcnt(0)\ns_barrier")
        self.fstamp("0", 16)
        a(f"v_lshlrev_b32 v143, 7, {vL}\ns_movk_i32 s89, 128")
        self.gcore(FI, 10, True, False, False)
        self.fstamp("0", 17)
        self.ep_write(True)
        self.fstamp("0", 18)
        self.half_sync(1)
        self.x_store("s84")
        self.ss_store(sCB0, "s85")
        self.fstamp("0", 19)
        self.fstamp("1", 19)
        self.wf_setup()
        lw, lh = a.lab("Lq"), a.lab("Lq")
        a(f"s_cmp_lg_u32 {sWV}, 3\ns_cbranch_scc1 {lh}")
        self.poll(SDBG, "v143", "0", 2, "s89", atomic=False)
        a(f"{lh}:")
        self.fstamp("1", 14)
        self.wf_loads()
        self.wf_setup2()
        self.fstamp("1", 15)
        a(f"s_cmp_lt_u32 {sWV}, 2\ns_cbranch_scc1 {lw}\ns_waitcnt vmcnt(2)\n{lw}:\ns_waitcnt vmcnt(3)")
        self.fstamp("1", 16)
        self.arrive(3, sSH)
        self.stamp(2)
        self.half_sync(3)
        self.col_early()
        a("s_waitcnt vmcnt(0)")
        self.fstamp("1", 17)
        self.wf_stores()
        self.stamp(3)
        a(f"s_branch {l8}\n{l3}:")
        a("s_waitcnt vmcnt(1)\ns_barrier")
        self.stamp(1)
        self.wf_setup()
        self.wq_setup()
        a("s_barrier")
        self.wq_dma(0, 20)
        lt, lu = a.lab("Lq"), a.lab("Lq")
        a(f"""s_cmp_eq_u32 {sWM}, 3
        s_cbranch_scc1 {lt}
        s_mul_i32 s73, {sWM}, 62
        s_add_u32 s73, s73, s18
        s_andn2_b32 s73, s73, 3
        buffer_load_dword v251, v244, {SWF}, s73 offen
        s_branch {lu}
        {lt}:
        s_mul_i32 s72, {sB}, 3200
        v_lshlrev_b32 v5, 7, {vL}
        s_bfm_b64 exec, 25, 0
        buffer_load_dword v251, v5, {SWO}, s72 offen
        s_mov_b64 exec, -1
        {lu}:""")
        self.fstamp("0", 17)
        self.job_wq_setup()
        a("s_mov_b32 s78, s72")
        self.col_early()
        a("s_mov_b32 s72, s78")
        a("s_waitcnt vmcnt(1)")
        self.fstamp("0", 18)
        self.half_sync(2)
        self.stamp(2)
        self.job_wq()
        self.half_sync(3, add=False)
        self.stamp(3)
        a(f"{l8}:")

    def job_wq_setup(self):
        a = self.a
        a(f"""v_bfe_u32 v5, {vL}, 2, 2
        v_lshl_add_u32 v6, {vG}, 3, v5
        v_lshlrev_b32 v6, 7, v6
        v_lshrrev_b32 v5, 1, v5
        v_and_b32 v7, 1, {vG}
        v_lshl_add_u32 v5, v7, 1, v5
        v_xor_b32 v5, {sWM}, v5
        v_lshl_add_u32 v6, v5, 5, v6
        v_and_b32 v5, 3, {vL}
        v_lshl_add_u32 v56, v5, 3, v6
        v_add_u32 v57, 0xa000, v56""")
        a(f"""s_lshl_b32 s72, {sTB0}, 6
        s_lshl_b32 s73, {sWM}, 4
        s_add_u32 s72, s72, s73
        v_add_u32 v5, s72, {vN}
        s_cmp_ge_u32 {sTB0}, 10
        s_cselect_b32 s74, 1, 0
        s_cmp_ge_u32 {sTB0}, 20
        s_cselect_b32 s74, 2, s74
        s_mul_i32 s73, s74, 640
        v_subrev_u32 v5, s73, v5
        v_mul_u32_u24 v6, 3277, v5
        v_lshrrev_b32 v6, 16, v6
        v_mul_u32_u24 v7, 20, v6
        v_sub_u32 v7, v5, v7
        s_mov_b32 s73, 81920
        v_mul_lo_u32 v52, v6, s73
        s_lshl_b32 s75, s74, 4
        v_add_u32 v53, s75, v7
        s_lshl_b32 s75, s74, 2
        s_add_u32 s75, s75, 48
        v_add_u32 v55, s75, v7
        v_cmp_gt_u32 vcc, 16, v7
        v_cndmask_b32 v53, v55, v53, vcc
        v_add_u32 v55, 72, v7
        s_cmp_eq_u32 s74, 2
        s_cselect_b64 vcc, -1, 0
        v_cndmask_b32 v53, v53, v55, vcc
        v_lshl_add_u32 v52, v53, 4, v52
        v_lshrrev_b32 v5, 1, {vG}
        v_lshl_add_u32 v52, v5, 9, v52
        v_and_b32 v5, 1, {vG}
        v_lshl_add_u32 v52, v5, 11, v52
        s_cmp_eq_u32 s74, 0
        s_cselect_b32 s75, {fbits(AMP*QS)}, s87
        s_mul_i32 s72, {sCB0}, 10240
        s_add_u32 s72, s72, {WQ}
        v_mov_b32 v54, s75""".replace("s_cmp_eq_u32 s74, 0", f"s_mov_b32 s87, {fbits(AMP)}\ns_cmp_eq_u32 s74, 0"))

    def job_wq(self):
        a = self.a
        end = a.lab("Lb")
        for ks in range(20):
            for i in range(2):
                reg, off = ("v56", ks * 4096) if ks < 10 else ("v57", (ks - 10) * 4096)
                a(f"ds_read_b64_tr_b16 {vr(GA+4*ks+2*i,2)}, {reg} offset:{XS+off+i*512}")
        a(f"v_mov_b32 v5, {TRS+4096+16}\nv_mov_b32 v6, 1\ns_mov_b64 exec, 1\nds_add_u32 v5, v6\ns_mov_b64 exec, -1")
        a(f"s_cmp_ge_u32 {sTB0}, 30\ns_cbranch_scc1 {end}")
        self.gcore(FI, 10, True, True, False)
        for ct in range(5):
            lo, hi = GLO + 4 * ct, GHI + 4 * ct
            a(f"v_pk_add_f32 {vr(lo,2)}, {vr(lo,2)}, {vr(hi,2)}")
            a(f"v_pk_add_f32 {vr(lo+2,2)}, {vr(lo+2,2)}, {vr(hi+2,2)} neg_lo:[0,1] neg_hi:[0,1]")
            for h in range(2):
                a(f"v_pk_mul_f32 {vr(lo+2*h,2)}, {vr(lo+2*h,2)}, v[54:55] op_sel_hi:[1,0]")
        a(f"""s_cmp_eq_u32 {sCB0}, 0
        s_cselect_b32 s73, 16, 0
        v_cmp_le_u32 vcc, s73, {vL}
        v_mul_f32 v5, {fbits(1/math.sqrt(2))}, v{GLO}
        v_cndmask_b32 v{GLO}, v5, v{GLO}, vcc
        v_cndmask_b32 v{GLO+1}, 0, v{GLO+1}, vcc""")
        for ct in range(5):
            a(f"v_cvt_pk_bf16_f32 v{GB+2*ct}, v{GLO+4*ct}, v{GLO+4*ct+1}")
            a(f"v_cvt_pk_bf16_f32 v{GB+1+2*ct}, v{GLO+4*ct+2}, v{GLO+4*ct+3}")
        for p in range(3):
            a(f"v_permlane16_swap_b32 v{GB+4*p}, v{GB+2+4*p}")
            a(f"v_permlane16_swap_b32 v{GB+1+4*p}, v{GB+3+4*p}")
            if p == 2:
                a("s_mov_b32 exec_lo, 0xffff\ns_mov_b32 exec_hi, 0xffff")
            a(f"buffer_store_dwordx4 {vr(GB+4*p,4)}, v52, {WS}, s72 offen sc1")
            a("s_add_u32 s72, s72, 4096")
        a(f"s_mov_b64 exec, -1\n{end}:")

    def job_images(self):
        a = self.a
        l3 = a.lab("Lc")
        a(f"""s_sub_u32 s80, {sR}, 20
        s_lshl_b32 s80, s80, 3
        s_add_u32 s80, s80, {sX}
        s_lshl_b32 s80, s80, 3
        s_add_u32 s80, s80, {sWV}
        s_mov_b32 s77, {fbits(1/640)}
        {l3}:
        s_mul_i32 s81, s80, 656
        s_lshr_b32 s81, s81, 16
        s_mul_i32 s82, s81, 100
        s_sub_u32 s82, s80, s82
        s_mul_i32 s83, s82, 205
        s_lshr_b32 s83, s83, 10
        s_mul_i32 s84, s83, 5
        s_sub_u32 s84, s82, s84
        s_mul_i32 s81, s81, 80
        s_lshl_b32 s84, s84, 4
        s_add_u32 s81, s81, s84
        v_add_u32 v8, s81, {vN}
        s_mul_i32 s84, s83, 40
        s_sub_u32 s85, s83, 16
        s_mul_i32 s85, s85, 160
        s_add_u32 s85, s85, 16
        s_cmp_lt_u32 s83, 16
        s_cselect_b32 s84, s84, s85
        s_cselect_b32 s85, 8, 20
        s_cselect_b64 vcc, -1, 0
        v_lshrrev_b32 v5, 1, {vG}
        v_mul_u32_u24 v5, 20, v5
        v_and_b32 v6, 1, {vG}
        v_lshl_add_u32 v5, v6, 2, v5
        v_mul_u32_u24 v6, 40, {vG}
        v_cndmask_b32 v5, v6, v5, vcc
        v_mul_u32_u24 v5, 1280, v5
        v_lshl_add_u32 v5, v8, 1, v5
        s_mul_i32 s84, s84, 1280
        s_mul_i32 s85, s85, 1280
        s_add_u32 s85, s85, s84""")
        for e in range(8):
            a(f"buffer_load_ushort v{32+e}, v5, {SWO}, {'s84' if e < 4 else 's85'} offen offset:{1280*(e%4)}")
        a(f"""v_and_b32 v5, 1, {vG}
        v_lshrrev_b32 v6, 1, {vG}
        v_lshlrev_b32 v5, 3, v5
        v_lshl_add_u32 v5, v6, 2, v5
        s_lshl_b32 s84, s83, 4
        v_add_u32 v5, s84, v5
        v_cmp_ne_u32 vcc, 0, v5
        v_cndmask_b32 v12, 0x140, v5, vcc""")
        for e in range(1, 4):
            a(f"v_add_u32 v{12+e}, {e}, v5")
        for e in range(4):
            a(f"v_mul_u32_u24 v{12+e}, v{12+e}, v8")
            a(f"v_cvt_f32_u32 v{12+e}, v{12+e}")
            a(f"v_mul_f32 v{12+e}, s77, v{12+e}")
            a(f"v_fract_f32 v{12+e}, v{12+e}")
            a(f"v_cos_f32 v{16+2*e}, v{12+e}")
            a(f"v_sin_f32 v{17+2*e}, -v{12+e}")
        a(f"""v_mul_f32 v5, {fbits(1/math.sqrt(2))}, v16
        v_cndmask_b32 v16, v5, v16, vcc
        v_cndmask_b32 v17, {fbits(1/math.sqrt(2))}, v17, vcc""")
        for e in range(4):
            a(f"v_cvt_pk_bf16_f32 v{24+e}, v{16+2*e}, v{17+2*e}")
        a(f"""s_lshl_b32 s84, s80, 10
        s_add_u32 s85, s84, {FT}
        s_add_u32 s84, s84, {WOT}
        buffer_store_dwordx4 v[24:27], {vL16}, {WS}, s85 offen sc1
        s_waitcnt vmcnt(1)
        v_lshl_or_b32 v28, v33, 16, v32
        v_lshl_or_b32 v29, v35, 16, v34
        v_lshl_or_b32 v30, v37, 16, v36
        v_lshl_or_b32 v31, v39, 16, v38
        buffer_store_dwordx4 v[28:31], {vL16}, {WS}, s84 offen sc1
        s_add_u32 s80, s80, 768
        s_cmp_lt_u32 s80, 800
        s_waitcnt vmcnt(0)
        s_cbranch_scc1 {l3}""")

    def job_woh(self):
        a = self.a
        l0, l1, l2, l3, l4 = (a.lab("Lc") for _ in range(5))
        self.wq_done()
        self.if_lo(l0)
        a(f"""s_sub_u32 s80, {sR}, 12
        s_cmp_ge_u32 {sR}, 24
        s_cselect_b32 s80, {sX}, s80
        s_cmp_ge_u32 s80, 10
        s_cbranch_scc1 {l0}""")
        self.half_sync(4, add=False)
        a(f"""s_mov_b32 s14, {sWV}
        {l3}:
        s_lshl_b32 s81, s80, 1
        s_lshr_b32 s82, s14, 2
        s_add_u32 s81, s81, s82
        s_and_b32 s82, s14, 3
        s_lshl_b32 s83, s81, 1
        s_lshr_b32 s84, s82, 1
        s_add_u32 s83, s83, s84
        s_mul_i32 s83, s83, 20
        s_and_b32 s84, s82, 1
        s_lshl_b32 s84, s84, 2
        s_add_u32 s83, s83, s84
        s_sub_u32 s84, s81, 16
        s_lshl_b32 s84, s84, 3
        s_lshl_b32 s85, s82, 1
        s_add_u32 s84, s84, s85
        s_mul_i32 s84, s84, 20
        s_add_u32 s84, s84, 16
        s_cmp_lt_u32 s80, 8
        s_cselect_b32 s82, s83, s84
        s_cselect_b32 s83, 8, 20
        s_mul_i32 s82, s82, 1280
        s_mul_i32 s83, s83, 1280""")
        self.dma_rows(SWO, 1280, "s83", "s82", "s14")
        a(f"s_add_u32 s14, s14, 4\ns_cmp_lt_u32 s14, 8\ns_cbranch_scc1 {l3}\ns_waitcnt vmcnt(0)")
        self.half_sync(5)
        self.read_rows_frags()
        self.gcore(FI, 10, True, False, False)
        self.ep_write(True)
        self.half_sync(6)
        a(f"""s_mul_i32 s81, {sCB0}, 102400
        s_mul_i32 s82, s80, 10240
        s_add_u32 s81, s81, s82
        s_add_u32 s81, s81, {WOH}
        v_mul_u32_u24 v5, 144, {vN}
        v_lshl_add_u32 v5, {vG}, 4, v5
        s_mov_b32 s82, {sWV}
        {l2}:
        s_cmp_ge_u32 s82, 5
        s_cselect_b32 s83, {64 - 5*16*144}, 0
        s_mul_i32 s84, s82, {16*144}
        s_add_u32 s83, s83, s84
        s_add_u32 s83, s83, {EP}
        v_add_u32 v6, s83, v5
        ds_read_b128 v[8:11], v6
        s_lshl_b32 s84, s82, 10
        s_add_u32 s84, s84, s81
        s_add_u32 s82, s82, 4
        s_cmp_lt_u32 s82, 10
        s_waitcnt lgkmcnt(0)
        buffer_store_dwordx4 v[8:11], {vL16}, {WS}, s84 offen sc1
        s_cbranch_scc1 {l2}
        {l0}:""")

    def wq_done(self, pending=0):
        self.a(f"s_add_u32 s72, {sSH}, {F_WQ*FSTRIDE}\ns_waitcnt vmcnt({pending})")
        self.arrive(7, "s72", 7)

    def unpack(self, dst, src, n):
        for i in range(n):
            self.a(f"v_lshlrev_b32 v{dst+2*i}, 16, v{src+i}")
            self.a(f"v_and_b32 v{dst+2*i+1}, 0xffff0000, v{src+i}")

    def cmul_pack(self, c, s):
        a = self.a
        for e in range(8 if "plain" in self.opts else 0):
            dr, di, tr, ti = (f"v{x+e}" for x in (self.DR, self.DI, self.TR, self.TI))
            a(f"v_mul_f32 {tr}, {dr}, v{c+e}\nv_mul_f32 {ti}, {di}, v{c+e}")
            a(f"v_fma_f32 {tr}, -{di}, v{s+e}, {tr}\nv_fmac_f32 {ti}, {dr}, v{s+e}")
        for h in range(0 if "plain" in self.opts else 4):
            dr, di, tr, ti = (vr(x + 2 * h, 2) for x in (self.DR, self.DI, self.TR, self.TI))
            cc, ss = vr(c + 2 * h, 2), vr(s + 2 * h, 2)
            a(f"v_pk_mul_f32 {tr}, {dr}, {cc}")
            a(f"v_pk_mul_f32 {ti}, {di}, {cc}")
            a(f"v_pk_fma_f32 {tr}, {di}, {ss}, {tr} neg_lo:[1,0,0] neg_hi:[1,0,0]")
            a(f"v_pk_fma_f32 {ti}, {dr}, {ss}, {ti}")
        for h in range(4):
            a(f"v_cvt_pk_bf16_f32 v{self.BR+h}, v{self.TR+2*h}, v{self.TR+2*h+1}")
            a(f"v_cvt_pk_bf16_f32 v{self.BI+h}, v{self.TI+2*h}, v{self.TI+2*h+1}")

    def mm(self, d, x, y, first):
        self.a(f"v_mfma_f32_16x16x32_bf16 {vr(d,4)}, {vr(x,4)}, {vr(y,4)}, {'0' if first else vr(d,4)}")

    ZS, EX, RW, SEL = 81920, 98304, 114688, 232
    T1C, T1S, T2C, T2S = 20, 28, 36, 44
    C1, S1, N1, C2, S2, N2, S4E, C4O, S4O = 52, 56, 60, 64, 72, 80, 88, 96, 104
    WRAW, WR, WI = 112, 120, 128
    URAW, R0, R1, RS0, RS1, DR, DI, TR, TI, BR, BI, AF = 136, 144, 152, 160, 168, 176, 184, 192, 200, 208, 212, 216

    def col_tables(self, s_first, step):
        a = self.a
        lp = a.lab("Lk")
        a(f"""v_and_b32 v5, 31, {vL}
        v_lshrrev_b32 v6, 5, {vL}
        s_mov_b32 s74, {s_first}
        {lp}:
        v_lshl_add_u32 v7, v5, 1, v6
        s_lshl_b32 s72, s74, 3
        v_mul_u32_u24 v8, s72, v7
        s_lshl_b32 s72, s74, 5
        s_sub_u32 s72, s72, 127
        v_lshl_add_u32 v9, v6, 4, s72
        v_mul_u32_u24 v9, v9, v5
        v_lshlrev_b32 v10, 1, v5
        s_cmp_lt_u32 s74, 4
        s_cselect_b64 vcc, -1, 0
        v_cndmask_b32 v8, v9, v8, vcc
        v_cndmask_b32 v7, v10, v7, vcc
        v_cvt_f32_u32 v8, v8
        v_cvt_f32_u32 v7, v7
        v_mul_f32 v60, {fbits(1/64)}, v8
        v_mul_f32 v7, {fbits(1/64)}, v7
        s_lshl_b32 s73, s74, 10
        s_add_u32 s73, s73, {TB}""")
        for e in range(1, 8):
            a(f"v_add_f32 v{60+e}, v{59+e}, v7")
        for e in range(8):
            a(f"v_sin_f32 v{68+e}, v{60+e}")
            a(f"v_cos_f32 v{60+e}, v{60+e}")
        a(f"v_add_u32 v9, s73, {vL16}")
        for e in range(4):
            a(f"v_cvt_pk_bf16_f32 v{76+e}, v{60+2*e}, v{61+2*e}")
            a(f"v_cvt_pk_bf16_f32 v{80+e}, v{68+2*e}, v{69+2*e}")
        a(f"""s_add_u32 s74, s74, {step}
        s_cmp_lt_u32 s74, 6
        ds_write_b128 v9, v[76:79]
        ds_write_b128 v9, v[80:83] offset:6144
        s_cbranch_scc1 {lp}""")

    def col_twiddles(self):
        a = self.a
        a(f"""s_lshr_b32 s72, {sWM}, 1
        s_and_b32 s73, {sWM}, 1
        s_lshl_b32 s74, s73, 5
        s_add_u32 s74, s74, s72
        v_lshl_add_u32 v5, {vN}, 1, s74
        v_cvt_f32_u32 v5, v5
        v_mul_f32 v5, {fbits(1/2048)}, v5
        v_lshlrev_b32 v6, 3, {vG}
        v_cvt_f32_u32 v7, v6
        v_mul_f32 v{self.T1C}, v7, v5""")
        for e in range(1, 8):
            a(f"v_add_f32 v{self.T1C+e}, v{self.T1C+e-1}, v5")
        for e in range(8):
            a(f"v_sin_f32 v{self.T1S+e}, -v{self.T1C+e}")
            a(f"v_cos_f32 v{self.T1C+e}, v{self.T1C+e}")
        a(f"""v_add_u32 v6, s74, v6
        v_cvt_f32_u32 v6, v6
        v_lshrrev_b32 v7, 2, {vN}
        v_and_b32 v8, 3, {vN}
        v_lshl_add_u32 v8, v7, 3, v8
        v_cvt_f32_u32 v7, v8
        v_mul_f32 v9, {fbits(1/2048)}, v7
        v_add_f32 v10, {fbits(4/2048)}, v9""")
        for t in range(2):
            a(f"v_mul_f32 v{self.T2C+4*t}, v6, v{9+t}")
            a(f"v_add_f32 v{9+t}, v{9+t}, v{9+t}")
            for r in range(1, 4):
                a(f"v_add_f32 v{self.T2C+4*t+r}, v{self.T2C+4*t+r-1}, v{9+t}")
        for e in range(8):
            a(f"v_sin_f32 v{self.T2S+e}, v{self.T2C+e}")
            a(f"v_cos_f32 v{self.T2C+e}, v{self.T2C+e}")

    def pre_flags(self):
        self.a(f"""s_cmp_eq_u32 {sLAYER}, 0
        s_cselect_b32 s89, 16, 6
        s_cselect_b32 s72, 0, {2*FSTRIDE}
        s_add_u32 s72, s72, {F_WQ*FSTRIDE}
        s_add_u32 s72, s72, {sREP}
        s_lshl_b32 s73, {sWM}, 9
        s_add_u32 s72, s72, s73""")

    def col_wload(self):
        a = self.a
        a(f"buffer_load_dwordx4 {vr(self.WRAW,4)}, {vL16}, {WS}, s10 offen sc1")
        a(f"buffer_load_dwordx4 {vr(self.WRAW+4,4)}, {vL16}, {WS}, s10 offen offset:1024 sc1")

    def col_early(self):
        l = self.a.lab("Lk")
        self.a(f"s_cmp_ge_u32 {sR}, 20\ns_cbranch_scc1 {l}\ns_call_b64 s[70:71], Lcolearly\n{l}:")

    def col_early_body(self):
        a = self.a
        a("Lcolearly:\ns_nop 4")
        self.col_twiddles()
        a(f"""s_lshr_b32 s72, {sWM}, 1
        s_and_b32 s73, {sWM}, 1
        v_and_b32 v8, 3, {vN}
        s_mul_i32 s77, {sX}, 20
        s_add_u32 s77, s77, {sR}
        s_lshl_b32 s77, s77, 1
        s_add_u32 s77, s77, {sHI}
        s_lshl_b32 s4, s77, 1
        s_add_u32 s4, s4, s73
        s_lshl_b32 s5, s4, 8
        s_mul_i32 s74, s72, {8*163840}
        s_add_u32 s5, s5, s74
        s_lshl_b32 s10, s77, 13
        s_lshl_b32 s74, {sWM}, 11
        s_add_u32 s10, s10, s74
        s_add_u32 s10, s10, {WF}
        s_mov_b32 s74, 163840
        v_mul_lo_u32 v11, {vG}, s74
        v_lshl_add_u32 v11, {vN}, 4, v11
        s_lshl_b32 s74, {sHI}, 11
        s_lshl_b32 s76, {sWM}, 8
        s_add_u32 s74, s74, s76
        s_add_u32 s74, s74, {self.RW}
        v_lshlrev_b32 v5, 12, {vG}
        v_lshl_add_u32 v5, {vN}, 4, v5
        v_add_u32 v12, s74, v5
        s_lshl_b32 s75, {sHI}, 13
        s_lshl_b32 s74, s73, 12
        s_add_u32 s74, s74, s75
        s_lshl_b32 s76, s72, 11
        s_add_u32 s74, s74, s76
        s_add_u32 s74, s74, {self.RW}
        v_add_u32 v13, s74, {vL16}
        s_lshl_b32 s74, {sHI}, 7
        s_lshl_b32 s76, {sWM}, 8
        s_add_u32 s74, s74, s76
        s_add_u32 s74, s74, {self.ZS}
        v_bfe_u32 v5, {vN}, 2, 1
        v_lshlrev_b32 v5, 10, v5
        v_lshrrev_b32 v6, 1, {vG}
        v_lshl_add_u32 v5, v6, 13, v5
        v_and_b32 v6, 1, {vG}
        v_lshl_add_u32 v5, v6, 11, v5
        v_lshrrev_b32 v6, 3, {vN}
        v_lshl_add_u32 v5, v6, 6, v5
        v_lshl_add_u32 v5, v8, 4, v5
        v_add_u32 v14, s74, v5
        v_and_b32 v5, 1, {vN}
        v_lshlrev_b32 v5, 4, v5
        s_movk_i32 s74, 0x3f80
        v_lshlrev_b32 v5, v5, s74
        v_cmp_gt_u32 vcc, 2, v8
        v_cndmask_b32 v16, 0, v5, vcc
        v_sub_u32 v17, v5, v16
        s_lshl_b32 s74, s72, 12
        s_add_u32 s74, s74, s75
        s_add_u32 s74, s74, {self.ZS}
        v_add_u32 v15, s74, {vL16}
        s_lshl_b32 s76, s73, 9
        s_add_u32 s74, s74, s76
        v_lshlrev_b32 v5, 10, v6
        v_lshl_add_u32 v5, v8, 4, v5
        v_bfe_u32 v6, {vN}, 2, 1
        v_lshl_add_u32 v5, v6, 7, v5
        v_lshrrev_b32 v6, 1, {vG}
        v_lshl_add_u32 v5, v6, 8, v5
        v_and_b32 v6, 1, {vG}
        v_lshl_add_u32 v5, v6, 3, v5
        v_add_u32 v8, s74, v5
        s_lshl_b32 s74, s72, 10
        s_add_u32 s74, s74, s75
        s_lshl_b32 s76, s73, 11
        s_add_u32 s74, s74, s76
        s_add_u32 s74, s74, {self.EX}
        v_add_u32 v9, s74, {vL16}
        v_xor_b32 v10, 0x800, v9
        v_mov_b32 v18, {fbits(1e-5)}
        s_nop 4
        s_setpc_b64 s[70:71]""")

    def x_look(self):
        self.a(f"""s_lshl_b32 s72, {sWV}, 8
        s_add_u32 s72, s72, {sREP}
        s_add_u32 s72, s72, {sFL}
        v_lshlrev_b32 v5, 7, {vL}
        v_mov_b32 v240, 0
        s_mov_b64 exec, 3
        buffer_atomic_add v240, v5, {WS}, s72 offen sc0 sc1
        s_mov_b64 exec, -1""")

    def col_consts(self):
        a = self.a
        a(f"""s_lshl_b32 s74, {sWM}, 8
        s_add_u32 s74, s74, {TB}
        v_lshrrev_b32 v7, 2, {vN}
        v_and_b32 v6, 3, {vN}
        v_lshl_add_u32 v7, v7, 3, v6
        v_lshlrev_b32 v5, 10, {vG}
        v_lshl_add_u32 v6, {vN}, 4, v5
        v_add_u32 v6, s74, v6
        v_lshl_add_u32 v5, v7, 4, v5
        v_add_u32 v5, {TB}, v5
        v_lshlrev_b32 v19, 9, {vG}
        v_lshl_add_u32 v19, v7, 4, v19
        v_add_u32 v19, {TB+4096}, v19
        ds_read_b128 {vr(self.S1,4)}, v6 offset:6144""")
        for t in range(2):
            a(f"ds_read_b128 {vr(self.S2+4*t,4)}, v5 offset:{6144+64*t}")
            a(f"ds_read_b128 {vr(self.S4O+4*t,4)}, v19 offset:{6144+64*t}")
        a(f"ds_read_b128 {vr(self.C1,4)}, v6")
        for t in range(2):
            a(f"ds_read_b128 {vr(self.C2+4*t,4)}, v5 offset:{64*t}")
            a(f"ds_read_b128 {vr(self.C4O+4*t,4)}, v19 offset:{64*t}")
        a(f"""s_bitcmp0_b32 {sWM}, 0
        s_cselect_b32 s75, 0x80008000, 0
        s_mov_b32 s74, 0x80008000
        s_mov_b32 s76, {fbits(1/640)}
        s_mov_b32 s87, {fbits(1/2048)}
        s_lshl_b32 s72, {sHI}, 3
        s_add_u32 s72, s72, {sWM}
        s_mul_i32 s84, s72, 163840
        s_lshr_b32 s73, s4, 2
        s_lshl_b32 s73, s73, 10
        s_add_u32 s84, s84, s73
        s_add_u32 s84, s84, {sXA}
        s_add_u32 s85, s84, {4*163840}
        s_lshl_b32 s77, s72, 11
        s_add_u32 s77, s77, {sSS}
        s_add_u32 s86, s77, 8192
        s_cmp_eq_u32 s4, 1
        s_cselect_b32 s87, 0, s87
        v_mov_b32 v{self.SEL}, 0
        v_mov_b32 v{self.SEL+1}, 0
        v_mov_b32 v{self.SEL+2}, v16
        v_mov_b32 v{self.SEL+3}, v17
        v_mov_b32 v{self.SEL+4}, 0
        v_mov_b32 v{self.SEL+5}, 0
        s_add_u32 s82, s5, {sXB}
        s_add_u32 s83, s82, {4*163840}
        s_waitcnt lgkmcnt(5)""")
        for i in range(4):
            a(f"v_xor_b32 v{self.N1+i}, s74, v{self.S1+i}")
        for i in range(8):
            a(f"v_xor_b32 v{self.N2+i}, s74, v{self.S2+i}")
            a(f"v_xor_b32 v{self.S4E+i}, s75, v{self.S2+i}")
            a(f"v_xor_b32 v{self.S4O+i}, s75, v{self.S4O+i}")

    def wmid(self, slot):
        a = self.a
        slots = {5: (0, 1, 2, 3, 4), 4: (1, 2, 3, 4), 3: (1, 3, 4), 2: (3, 4), 1: (4,), 0: ()}[self.wg]
        if slot not in slots:
            return
        j = slots.index(slot)
        self.wm_issued += 2
        a(f"s_add_u32 m0, s80, {2048*j}\ns_add_u32 s72, s81, {2048*j}")
        for i in range(2):
            a(f"buffer_load_dwordx4 {vL16}, {WS}, s72 offen offset:{1024*i} sc1 lds")

    def col_main(self):
        a = self.a
        nz, l1 = a.lab("Lnz"), a.lab("Lk")
        EXO = self.EX - self.ZS
        T, U = self.TR, self.URAW
        lp, dn, l2, l4, l5 = (a.lab("Lk") for _ in range(5))
        a(f"""s_mov_b32 s35, 1
        s_lshl_b32 s78, {sWM}, 12
        s_mul_i32 s79, {sH}, 81920
        s_add_u32 s79, s79, {WQ}
        s_mul_i32 s80, {sWV}, {2048*self.wg}
        s_add_u32 s81, s79, s80
        s_add_u32 s79, s79, s78
        s_cmp_eq_u32 {sLAYER}, 0
        s_cbranch_scc1 {l1}""")
        self.col_wload()
        a(f"s_branch {l2}\n{l1}:")
        self.if_lo(l2)
        self.fill_cols("s82", "s83", T)
        a(f"""{l2}:
        s_lshl_b32 s72, {sWV}, 8
        s_add_u32 s72, s72, {sREP}
        s_add_u32 s73, s72, {F_WQ*FSTRIDE}
        s_add_u32 s72, s72, {sFL}""")
        lg = a.lab("Lk")
        a(f"v_lshlrev_b32 v5, 7, {vL}\ns_waitcnt vmcnt(0)\ns_mov_b64 exec, 3\nv_cmp_gt_u32 vcc, 16, v240\ns_mov_b64 exec, -1\ns_cbranch_vccz {lg}")
        self.wait_lines("s72", 2, 16)
        a(f"{lg}:\ns_barrier\ns_cmp_lg_u32 {sLAYER}, 0\ns_cbranch_scc1 {l4}\ns_add_u32 s72, {sSH}, {F_WQ*FSTRIDE}")
        self.push("s72", 11, wave=0)
        a(f"v_lshlrev_b32 v5, 7, {vL}\n{l4}:")
        self.fstamp("c", 0)
        a(f"s_mov_b32 s88, {SPIN}\n{lp}:")
        for k in range(4):
            a(f"buffer_load_dwordx4 {vr(T+4*k,4)}, {vL16}, {WS}, {'s77' if k < 2 else 's86'} offen offset:{1024*(k%2)} sc1")
        a(f"""buffer_load_dwordx4 {vr(U,4)}, {vL16}, {WS}, s84 offen sc1
        buffer_load_dwordx4 {vr(U+4,4)}, {vL16}, {WS}, s85 offen sc1
        s_mov_b64 exec, 3
        v_mov_b32 v19, 0
        buffer_atomic_add v19, v5, {WS}, s73 offen sc0 sc1
        s_mov_b64 exec, -1""")
        for p in range(2):
            a(f"s_waitcnt vmcnt({5-2*p})")
            for k in range(2):
                for j in range(2):
                    self.mm(self.RS0 + 8 * p + 4 * j, self.SEL + 2 - 2 * j, T + 8 * p + 4 * k, k == 0)
        for x in self.umax(6, range(T, T + 16)):
            a(x)
        for i in range(16):
            a(f"v_fma_f32 v{self.RS0+i}, v{self.RS0+i}, s76, v18")
        for i in range(16):
            a(f"v_rsq_f32 v{self.RS0+i}, v{self.RS0+i}")
        a("s_waitcnt vmcnt(1)")
        for x in self.umax(6, [6] + list(range(U, U + 8))):
            a(x)
        a("v_cmp_eq_u32 vcc, -1, v6")
        a(f"ds_write_b128 v12, {vr(U,4)}\nds_write_b128 v12, {vr(U+4,4)} offset:1024")
        self.unpack(self.R0, U, 8)
        a(f"s_cbranch_vccz {dn}")
        self.count(8)
        a(f"""s_waitcnt vmcnt(0)
        s_sub_u32 s88, s88, 1
        s_cbranch_scc0 {lp}
        {dn}:""")
        self.stamp(4)
        a(f"s_cmp_gt_u32 s4, 3\ns_cbranch_scc1 {nz}\ns_mov_b32 exec_lo, 0xffff0000\ns_mov_b32 exec_hi, 0")
        for i in range(16):
            a(f"v_mov_b32 v{self.RS0+i}, 0")
        a(f"s_mov_b64 exec, -1\n{nz}:")
        for h in range(4):
            p, r0, r1, x1 = vr(self.DR + 2 * h, 2), vr(self.RS0 + 2 * h, 2), vr(self.RS1 + 2 * h, 2), vr(self.R1 + 2 * h, 2)
            a(f"v_pk_mul_f32 {p}, {vr(self.R0+2*h,2)}, {r0}")
            a(f"v_pk_fma_f32 {vr(self.TR+2*h,2)}, {x1}, {r1}, {p}")
            a(f"v_pk_fma_f32 {vr(self.TI+2*h,2)}, {x1}, {r1}, {p} neg_lo:[1,0,0] neg_hi:[1,0,0]")
        for h in range(4):
            a(f"v_cvt_pk_bf16_f32 v{self.BR+h}, v{self.TR+2*h}, v{self.TR+2*h+1}")
        a(f"ds_write_b128 v14, {vr(self.BR,4)}")
        for h in range(4):
            a(f"v_cvt_pk_bf16_f32 v{self.BI+h}, v{self.TI+2*h}, v{self.TI+2*h+1}")
        a(f"ds_write_b128 v14, {vr(self.BI,4)} offset:4096")
        a(f"s_waitcnt vmcnt(0)\ns_mov_b64 exec, 3\nv_cmp_gt_u32 vcc, 16, v19\ns_mov_b64 exec, -1\ns_cbranch_vccz {l5}")
        self.poll(WS, "v5", "s73", 2, 16)
        a(f"{l5}:\ns_waitcnt lgkmcnt(0)\ns_barrier")
        AF, DR, DI, BR, BI = self.AF, self.DR, self.DI, self.BR, self.BI
        self.fstamp("c", 2)
        for i in range(4):
            a(f"ds_read_b128 {vr(AF+4*i,4)}, v15 offset:{1024*i}")
        lv = a.lab("Lk")
        a(f"s_cmp_lg_u32 {sLAYER}, 0\ns_cbranch_scc1 {lv}")
        self.col_wload()
        a(f"{lv}:")
        self.wm_issued = 0
        self.wmid(0)
        a("s_waitcnt lgkmcnt(2)")
        for t in range(2):
            self.mm(DR + 4 * t, AF + 4 * t, self.C1, True)
            self.mm(DI + 4 * t, AF + 4 * t, self.N1, True)
        a("s_waitcnt lgkmcnt(0)")
        for t in range(2):
            self.mm(DR + 4 * t, AF + 8 + 4 * t, self.S1, False)
            self.mm(DI + 4 * t, AF + 8 + 4 * t, self.C1, False)
        self.wmid(1)
        self.cmul_pack(self.T1C, self.T1S)
        for t in range(2):
            self.mm(DR + 4 * t, self.C2 + 4 * t, BR, True)
            self.mm(DI + 4 * t, self.N2 + 4 * t, BR, True)
        for t in range(2):
            self.mm(DR + 4 * t, self.S2 + 4 * t, BI, False)
            self.mm(DI + 4 * t, self.C2 + 4 * t, BI, False)
        self.wmid(2)
        a(f"s_waitcnt vmcnt({self.wm_issued})")
        self.fstamp("c", 3)
        self.unpack(self.WR, self.WRAW, 8)
        self.cmul_pack(self.WR, self.WI)
        for t in range(2):
            self.mm(DR + 4 * t, BR, self.C2 + 4 * t, True)
            self.mm(DI + 4 * t, BR, self.S2 + 4 * t, True)
        for t in range(2):
            self.mm(DR + 4 * t, BI, self.N2 + 4 * t, False)
            self.mm(DI + 4 * t, BI, self.C2 + 4 * t, False)
        a(f"ds_read_b128 {vr(U,4)}, v13\nds_read_b128 {vr(U+4,4)}, v13 offset:1024")
        self.wmid(3)
        self.cmul_pack(self.T2C, self.T2S)
        for t in range(2):
            a(f"ds_write_b64 v8, {vr(BR+2*t,2)} offset:{EXO+64*t}")
            a(f"ds_write_b64 v8, {vr(BI+2*t,2)} offset:{EXO+2048+64*t}")
        self.wmid(4)
        self.fstamp("c", 14)
        l3 = a.lab("Lk")
        self.if_hi(l3)
        self.pre_flags()
        a(f"""v_lshlrev_b32 v5, 7, {vL}
        v_mov_b32 v19, 0
        s_mov_b64 exec, 15
        buffer_atomic_add v19, v5, {WS}, s72 offen sc0 sc1
        s_mov_b64 exec, -1
        {l3}:
        s_waitcnt lgkmcnt(0)
        s_barrier""")
        self.fstamp("c", 15)
        for p in range(2):
            a(f"ds_read_b128 {vr(AF+8*p,4)}, v9 offset:{4096*p}")
        for p in range(2):
            a(f"ds_read_b128 {vr(AF+8*p+4,4)}, v10 offset:{4096*p}")
        self.unpack(self.R0, U, 8)
        a("v_mov_b32 v6, s87\ns_waitcnt lgkmcnt(2)")
        for t in range(2):
            self.mm(DR + 4 * t, self.C2 + 4 * t, AF, True)
            self.mm(DI + 4 * t, self.C4O + 4 * t, AF + 8, True)
        a("s_waitcnt lgkmcnt(0)")
        for t in range(2):
            self.mm(DR + 4 * t, self.S4E + 4 * t, AF + 4, False)
            self.mm(DI + 4 * t, self.S4O + 4 * t, AF + 12, False)
        for neg, t, r, b, so in (("", self.TR, self.R0, BR, "s82"), (" neg_lo:[0,1] neg_hi:[0,1]", self.TI, self.R1, BI, "s83")):
            for h in range(4):
                x = vr(t + 2 * h, 2)
                a(f"v_pk_add_f32 {x}, {vr(DR+2*h,2)}, {vr(DI+2*h,2)}{neg}")
                a(f"v_pk_fma_f32 {x}, {x}, v[6:7], {vr(r+2*h,2)} op_sel_hi:[1,0,1]")
            for h in range(4):
                a(f"v_cvt_pk_bf16_f32 v{b+h}, v{t+2*h}, v{t+2*h+1}")
            self.clean(b, 4)
            a(f"buffer_store_dwordx4 {vr(b,4)}, v11, {WS}, {so} offen sc1")

    XR = 81920
    NREG = 244
    QH, NRM, SSP, VSCR = 102400, 112640, 32768, 143360
    QACC, QF, QAD = 60, 144, 192

    XB = (0, 81920, 131072)

    def retry(self, chk, loads):
        a = self.a
        bad, ok, lp = a.lab("Lbad"), a.lab("Lok"), a.lab("Lbad")
        a(f"s_cbranch_vccnz {bad}\n{ok}:")
        body = [f"{bad}:", f"s_mov_b32 s88, {SPIN}", f"{lp}:"] + loads
        body += ["s_sub_u32 s88, s88, 1", "s_waitcnt vmcnt(0)", f"s_cbranch_scc1 {ok}"] + chk + [f"s_cbranch_vccnz {lp}", f"s_branch {ok}"]
        self.cold.append("\n".join(body))

    def ft_part(self, q):
        a = self.a
        a(f"s_add_u32 m0, s78, {q*16384}\ns_add_u32 s83, s82, {q*16384}")
        for i in range(4):
            a(f"buffer_load_dwordx4 {vL16}, {WS}, s83 offen offset:{1024*i} sc1 lds")

    def ss_sched(self):
        k0 = next((int(o[2:]) for o in self.opts if o.startswith("ks")), 6)
        n = -(-72 // sum(self.ss_dens()))
        return k0, k0 + 2 * (n // 2) + 2

    def ss_dens(self):
        return {"d4": (0, 0, 2, 2), "d6": (1, 1, 2, 2), "d8": (1, 1, 3, 3), "d12": (2, 2, 4, 4), "d18": (4, 4, 5, 5)}[
            next((o for o in self.opts if o in ("d4", "d6", "d8", "d12", "d18")), "d18")]

    def x_base(self, addr):
        return max(i for i in range(3) if self.XB[i] <= addr)

    def x_plan(self):
        free = [self.XR + 16384 * i for i in range(5)]
        extra = {5: 0}
        nx = next((int(o[2:]) for o in self.opts if o.startswith("nx")), 0)
        pre = next((int(o[2:]) for o in self.opts if o.startswith("pr")), 3)
        slot, plan, g = {}, {}, 0
        for q in range(-1, 20):
            if q >= 2:
                free.append(slot[q - 2])
            if q in extra and list(extra).index(q) < nx:
                free.append(extra[q])
            plan[q] = []
            while free and g < 20 and len(plan[q]) < (pre if q < 0 else 2):
                slot[g] = free.pop(0)
                plan[q].append(g)
                g += 1
        return slot, plan

    def w_prefetch(self, entry):
        a = self.a
        a(f"""s_lshl_b32 s78, {sWM}, 12
        s_mul_i32 s79, {sH}, 81920
        s_add_u32 s79, s79, {WQ}
        s_add_u32 s79, s79, s78""")
        for q in range(6):
            if q == self.wg:
                a(f"{entry}:")
            if q < 5:
                a(f"s_add_u32 m0, s78, {q*16384}\ns_add_u32 s72, s79, {q*16384}")
                for i in range(4):
                    a(f"buffer_load_dwordx4 {vL16}, {WS}, s72 offen offset:{1024*i} sc1 lds")

    def qkv_helper(self):
        a = self.a
        XR = self.XR
        lw = a.lab("Lh")
        a(f"s_cmp_eq_u32 s35, 1\ns_cbranch_scc1 {lw}")
        self.w_prefetch(lw)
        a("s_mov_b32 s35, 0")
        self.att_setup()
        a(f"""s_lshl_b32 s80, {sTT}, 1
        s_lshr_b32 s74, {sWM}, 1
        s_add_u32 s80, s80, s74
        s_lshl_b32 s13, s80, 13
        s_mul_i32 s80, s80, 163840
        s_add_u32 s80, s80, {sXB}
        s_and_b32 s74, {sWM}, 1
        s_lshl_b32 s74, s74, 12
        s_add_u32 s80, s80, s74
        s_add_u32 s13, s13, s74
        s_mul_i32 s82, {sCB}, 102400
        s_add_u32 s82, s82, {FT}
        s_add_u32 s82, s82, s78
        s_and_b32 s74, {sWM}, 1
        s_lshl_b32 s74, s74, 1
        v_lshlrev_b32 v5, 2, {vG}
        v_xor_b32 v5, s74, v5
        v_xor_b32 v5, v5, {vL}
        v_lshlrev_b32 v8, 4, v5
        v_bfe_u32 v5, {vL}, 2, 2
        v_and_b32 v7, 1, {vG}
        v_lshrrev_b32 v6, 1, {vG}
        v_lshl_add_u32 v6, v6, 3, v5
        v_lshlrev_b32 v6, 8, v6
        v_lshl_add_u32 v6, v7, 12, v6
        s_lshl_b32 s74, {sHALF}, 2
        s_add_u32 s74, s74, {sWM}
        v_lshlrev_b32 v5, 1, v5
        v_xor_b32 v5, v5, v7
        v_xor_b32 v5, s74, v5
        v_lshl_add_u32 v6, v5, 5, v6
        v_and_b32 v7, 3, {vL}
        v_lshl_add_u32 v6, v7, 3, v6
        s_and_b32 s74, {sT}, 1
        s_lshl_b32 s74, s74, 13
        v_add_u32 v13, s74, v6
        v_add_u32 v14, {self.XB[1]}, v13
        v_add_u32 v15, {self.XB[2]}, v13
        s_and_b32 s81, {sH}, 15
        s_lshl_b32 s15, {sLAYER}, 17
        s_add_u32 s15, s15, {SQ0}
        s_add_u32 s13, s13, s15
        s_lshl_b32 s74, {sT}, 13
        s_add_u32 s15, s15, s74
        s_lshl_b32 s74, s81, 9
        s_add_u32 s15, s15, s74
        v_lshlrev_b32 v9, 5, {vN}
        v_lshl_add_u32 v9, {vG}, 3, v9
        s_lshl_b32 s74, {sWM}, 9
        v_and_b32 v5, 31, {vL}
        v_lshrrev_b32 v6, 5, {vL}
        v_lshl_add_u32 v5, v5, 1, v6
        v_lshl_add_u32 v12, v5, 3, s74
        s_add_u32 s74, s74, {sREP}
        s_add_u32 s74, s74, {sFL}
        s_add_u32 s74, s74, {F_COL*FSTRIDE}""")
        if "nogate" in self.opts:
            a("s_waitcnt vmcnt(0)")
        else:
            self.wait_lines("s74", 4, 10)
        a("s_barrier")
        if "hp" in self.opts:
            a("s_setprio 3")
        self.stamp(6)
        ACC, RAW = 140, 60
        order = []
        slot, plan = self.x_plan()

        def dma(g):
            r = [[f"buffer_load_dwordx4 v8, {WS}, s83 offen offset:{1024*i} sc1 lds"] for i in range(4)]
            r[0] = [f"s_add_u32 m0, s78, {slot[g]}", f"s_add_u32 s83, s80, {g*8192}"] + r[0]
            return [(f"X{g}", x) for x in r]

        def emit(items):
            for tag, x in items:
                order.append(tag)
                for y in x:
                    a(y)

        def allow(*tags):
            last = max((i for i, t in enumerate(order) if t in tags), default=-1)
            return len(order) - 1 - last

        def qloads():
            return [("Q", [f"buffer_load_dwordx4 {vr(RAW+4*i,4)}, {vL16}, {WS}, s13 offen offset:{1024*i} sc1"]) for i in range(4)]

        QQ = next((int(o[2:]) for o in self.opts if o.startswith("qq")), 15)
        QC = self.ss_sched()[1] // 2 + 2
        for g in plan[-1]:
            emit(dma(g))
        for q in range(20):
            n = allow(f"X{q}", *(("Q",) if q >= 18 else ()))
            extra = 4 * sum(1 for e in self.ft_early if e < q)
            if extra:
                l = a.lab("Lh")
                a(f"s_cmp_lg_u32 {sLAYER}, 0\ns_cbranch_scc1 {l}\ns_waitcnt vmcnt({n})\n{l}:")
            a(f"s_waitcnt vmcnt({n+extra}) lgkmcnt(0)\ns_barrier")
            if q in (2, 4, 6, 10, 14, 18):
                self.fstamp("q", {2: 0, 4: 1, 6: 2, 10: 3, 14: 14, 18: 15}[q])
            if q == 0:
                l = a.lab("Lh")
                a(f"s_cmp_lt_u32 {sR}, 20\ns_cbranch_scc1 {l}\ns_or_b32 s72, {sLAYER}, s14\ns_cbranch_scc1 {l}")
                a(f"s_add_u32 s72, {sSH}, {F_IMG*FSTRIDE}")
                self.push("s72", 11, wave=7)
                a(f"{l}:")
            if q == QC:
                for i in range(4):
                    a(f"ds_read_b64 {vr(ACC+2*i,2)}, v9 offset:{16384+512*i}")
            emit([x for g in plan[q] for x in dma(g)] + (qloads() if q == QQ else []))
            if q == QC:
                l = a.lab("Lh")
                a(f"s_cmp_lg_u32 {sWM}, 0\ns_waitcnt lgkmcnt(0)\ns_cbranch_scc1 {l}")
                for i in range(2):
                    a(f"v_add_f32 v{ACC+i}, v{ACC+i}, v{ACC+2+i}\nv_add_f32 v{ACC+4+i}, v{ACC+4+i}, v{ACC+6+i}")
                for i in range(2):
                    a(f"v_add_f32 v{ACC+i}, v{ACC+i}, v{ACC+4+i}")
                for i in range(2):
                    a(f"v_or_b32 v{ACC+i}, 1, v{ACC+i}")
                a(f"buffer_store_dwordx2 {vr(ACC,2)}, v9, {WS}, s15 offen sc1\n{l}:")
            if q == 18:
                chk = [x.replace("max", "min") for x in self.umax(5, range(RAW, RAW + 16))] + ["v_cmp_eq_u32 vcc, 0, v5"]
                for x in chk:
                    a(x)
                self.retry(chk, [x[0] for _, x in qloads()])
                for i in range(8):
                    a(f"v_add_f32 v{RAW+i}, v{RAW+i}, v{RAW+8+i}")
            if q == 18:
                for i in range(4):
                    a(f"v_add_f32 v{RAW+i}, v{RAW+i}, v{RAW+4+i}")
                a(f"""v_permlane32_swap_b32 v{RAW}, v{RAW+2}
                v_permlane32_swap_b32 v{RAW+1}, v{RAW+3}
                v_add_f32 v{RAW}, v{RAW}, v{RAW+2}
                v_add_f32 v{RAW+1}, v{RAW+1}, v{RAW+3}
                ds_write_b64 v12, {vr(RAW,2)} offset:{self.SSP}""")
            l = a.lab("Lh")
            a(f"s_cmp_eq_u32 {sLAYER}, 0\ns_cbranch_scc1 {l}")
            b = self.x_base(slot[q])
            for i in range(2):
                a(f"ds_read_b64_tr_b16 {vr(GA+4*q+2*i,2)}, v{13+b} offset:{slot[q]-self.XB[b]+1024*i}")
            if q in self.ft_early:
                self.ft_part(self.ft_early[q])
            a(f"{l}:")
        a("s_waitcnt lgkmcnt(0)\ns_barrier")
        l0, l1 = a.lab("Lh"), a.lab("Lh")
        a(f"s_setprio 0\ns_cmp_lg_u32 {sLAYER}, 0\ns_cbranch_scc1 {l1}")
        self.res_load()
        a(f"s_lshl_b32 s72, {sWM}, 9\ns_add_u32 s72, s72, {sREP}\ns_add_u32 s72, s72, {F_IMG*FSTRIDE}")
        self.wait_lines("s72", 4, 6)
        self.unpack(GLO, GA, 10)
        a(f"{l1}:")
        a(f"""s_mul_i32 s72, {sWM}, 2560
        s_add_u32 s72, s72, {self.QH}
        v_add_u32 v5, s72, {vL16}
        v_xor_b32 v6, 32, {vL}
        v_lshl_add_u32 v6, v6, 3, s72
        s_barrier
        ds_read_b128 {vr(AR.Q1,4)}, v5 offset:1024
        ds_read_b128 {vr(AR.Q1+4,4)}, v5
        ds_read_b64 v[6:7], v6 offset:2048
        v_lshlrev_b32 v5, 3, {vN}
        v_add_u32 v5, {self.NRM}, v5
        ds_read_b64 {vr(self.NREG,2)}, v5
        s_waitcnt lgkmcnt(1)""")
        for j in range(4):
            a(f"v_mov_b32 v{AR.Q2+6*(j//2)+j%2}, v{6+j%2}")
        self.q2_spread()

    def q2_spread(self):
        for i in range(4):
            self.a(f"v_permlane32_swap_b32 v{AR.Q2+i}, v{AR.Q2+4+i}")

    def att_setup(self):
        a = self.a
        A.setup_addr(a, vL, vL16, sHI, "s72", 5)
        a(f"""s_mul_i32 s85, {sWV}, 2560
        s_mul_i32 s86, {sH}, {8*A.CHUNK}
        s_add_u32 s86, s86, {sKV}
        s_add_u32 s86, s86, s85
        s_add_u32 s85, s85, {A.SLOT0}""")
        for i in range(2, 6):
            a(f"v_mov_b32 v{AR.Q2+i}, 0")
        for i in range(32):
            a(f"v_mov_b32 v{AR.O+i}, 0")
        self.o_prepare()

    def qkv_compute(self):
        a = self.a
        XR, AD = self.XR, self.QAD
        own = A.SLOT0 + A.slot_off(0)
        EA = AD + 14
        self.att_setup()
        a(f"""s_lshr_b32 s72, {sWM}, 1
        s_and_b32 s73, {sWM}, 1
        v_mov_b32 v{AD}, {vL16}
        v_add_u32 v{AD+1}, 0xa000, {vL16}
        v_bfe_u32 v5, {vL}, 2, 2
        v_lshrrev_b32 v6, 5, {vL}
        v_lshl_add_u32 v6, v6, 3, v5
        v_mul_u32_u24 v{EA+1}, 48, v6
        v_lshlrev_b32 v6, 8, v6
        v_and_b32 v7, 3, {vL}
        v_lshl_add_u32 v6, v7, 3, v6
        s_lshl_b32 s74, s73, 1
        v_xor_b32 v7, s74, v5
        v_lshl_add_u32 v6, v7, 6, v6
        v_and_b32 v7, 1, {vG}
        v_lshl_add_u32 v6, v7, 5, v6
        s_lshl_b32 s74, s72, 13
        v_add_u32 v{AD+2}, s74, v6""")
        for i in range(1, 4):
            a(f"v_xor_b32 v{AD+2+i}, {32*i}, v{AD+2}")
        for i in range(8):
            a(f"v_add_u32 v{AD+6+i}, {self.XB[1+i//4]}, v{AD+2+i%4}")
        a(f"""s_mul_i32 s75, {sWM}, 3072
        s_add_u32 s75, s75, {self.VSCR}
        v_and_b32 v5, 3, {vL}
        v_lshl_add_u32 v5, v7, 2, v5
        v_min_u32 v5, 4, v5
        v_and_b32 v6, 1, v5
        v_mul_u32_u24 v6, 24, v6
        v_lshrrev_b32 v5, 1, v5
        v_lshl_add_u32 v5, v5, 3, v6
        v_add3_u32 v{EA+1}, v{EA+1}, v5, s75
        v_and_b32 v5, 31, {vL}
        v_lshrrev_b32 v6, 5, {vL}
        v_lshl_add_u32 v7, v5, 1, v6
        v_mul_u32_u24 v7, 24, v7
        v_add_u32 v{EA}, s75, v7
        v_mul_u32_u24 v6, 20, v6
        v_add_lshl_u32 v{EA+2}, v6, v5, 4
        s_lshl_b32 s75, s73, 8
        s_lshl_b32 s76, s72, 10
        s_add_u32 s75, s75, s76
        s_add_u32 s75, s75, {self.SSP}
        v_lshl_add_u32 v{EA+3}, v5, 2, s75
        s_mul_i32 s76, s72, {A.HEADB}
        s_mul_i32 s77, s73, {2*A.TILE}
        s_add_u32 s77, s77, s76
        s_lshl_b32 s75, s73, 9
        s_add_u32 s76, s76, s75
        s_add_u32 s76, s76, {A.K2OFF}
        s_add_u32 s75, s77, {own}
        v_add_u32 v{EA+4}, s75, {vL16}
        v_add_u32 v{EA+5}, s75, v{EA+2}
        v_lshlrev_b32 v{EA+6}, 3, {vL}
        s_add_u32 s75, s76, {own}
        v_add_u32 v{EA+7}, s75, v{EA+6}
        s_lshl_b32 s75, {sH}, 3
        s_add_u32 s75, s75, {sTT}
        s_mul_i32 s75, s75, {A.CHUNK}
        s_add_u32 s75, s75, {sKV}
        s_add_u32 s76, s76, s75
        s_add_u32 s77, s77, s75
        s_mul_i32 s75, {sWM}, 2560
        s_add_u32 s75, s75, {self.QH}
        v_add_u32 v{EA+8}, s75, {vL16}
        v_add_u32 v{EA+9}, s75, v{EA+6}
        s_mov_b32 s78, {fbits(1/640)}
        v_mov_b32 v{EA+10}, {fbits(1e-5)}
        s_lshl_b32 s75, {sWM}, 5
        s_add_u32 s75, s75, {self.NRM}
        v_lshl_add_u32 v{EA+11}, {vG}, 3, s75
        v_lshlrev_b32 v5, 3, {vN}
        v_add_u32 v{EA+12}, {self.NRM}, v5
        v_lshlrev_b32 v{EA+13}, 2, {vG}
        s_lshl_b32 s79, {sH}, 3
        s_add_u32 s79, s79, {sTT}
        s_lshl_b32 s79, s79, 7
        s_lshl_b32 s75, {sWM}, 4
        s_add_u32 s79, s79, s75
        s_lshl_b32 s75, {sLAYER}, 15
        s_add_u32 s79, s79, s75
        s_add_u32 s79, s79, {F_KMAX*FSTRIDE}
        s_and_b32 s81, {sH}, 15
        s_or_b32 s74, s81, {sWM}
        s_cselect_b32 s74, 99, 1
        v_cmp_ne_u32 s[6:7], s74, {vG}
        s_mul_i32 s16, {sWM}, 3
        s_min_u32 s16, s16, 7
        s_mul_i32 s74, s81, 10
        s_add_u32 s16, s16, s74
        s_lshl_b32 s16, s16, 10
        s_mul_i32 s74, {sT}, 163840
        s_add_u32 s16, s16, s74
        s_add_u32 s16, s16, {sXB}
        s_mov_b32 s17, 0xffff0000
        v_lshlrev_b32 v5, 5, {vN}
        v_lshl_add_u32 v5, {vG}, 3, v5
        s_lshl_b32 s74, {sWM}, 9
        v_add_u32 v240, s74, v5
        s_cmp_eq_u32 {sWM}, 2
        s_cselect_b64 s[74:75], 0, -1
        s_waitcnt vmcnt(0)
        s_barrier
        s_barrier""")
        RAW, UN, ACC = 220, 8, 232
        sl = [f"buffer_load_dwordx4 {vr(RAW+4*i,4)}, {vL16}, {WS}, s16 offen offset:{1024*i} sc1" for i in range(3)]
        chk = self.umax(5, range(RAW, RAW + 12)) + ["v_cmp_eq_u32 vcc, -1, v5"]
        self.stamp(6)
        slot, _ = self.x_plan()
        work = [f"v_cndmask_b32 v{RAW+k}, 0, v{RAW+k}, {'s[6:7]' if k < 4 else 's[74:75]'}" for k in range(12)]
        for i in range(3):
            for k in range(4):
                work += [f"v_lshlrev_b32 v{UN+2*k}, 16, v{RAW+4*i+k}", f"v_and_b32 v{UN+2*k+1}, s17, v{RAW+4*i+k}"]
            work += [f"{'v_mul_f32' if i == 0 else 'v_fmac_f32'} v{ACC+h}, v{UN+h}, v{UN+h}" for h in range(8)]
        work += [f"v_permlane32_swap_b32 v{ACC+k}, v{ACC+4+k}" for k in range(4)]
        work += [f"v_add_f32 v{ACC+k}, v{ACC+k}, v{ACC+4+k}" for k in range(4)]
        work += [f"v_permlane16_swap_b32 v{ACC+k}, v{ACC+2+k}" for k in range(2)]
        work += [f"v_add_f32 v{ACC+k}, v{ACC+k}, v{ACC+2+k}" for k in range(2)]
        K0, KW = self.ss_sched()

        def reads(k):
            f = self.QF + 16 * (k % 3)
            b = self.x_base(slot[k // 2])
            off = slot[k // 2] - self.XB[b] + 4096 * (k % 2)
            r = []
            for j in range(2):
                r.append(f"ds_read_b128 {vr(f+4*j,4)}, v{AD+k//20} offset:{(k%20)*2048+1024*j}")
                for i in range(2):
                    r.append(f"ds_read_b64_tr_b16 {vr(f+8+4*j+2*i,2)}, v{AD+2+4*b+2*j+k%2} offset:{off+1024*i}")
            return r
        for r in reads(0) + reads(1) + sl:
            a(r)
        SSR = 8
        KR, K2R, VR, Q2T, VT, RSD, N, W = 144, 152, 154, 166, 168, 220, self.NREG, 224
        for k in range(40):
            a(f"s_waitcnt lgkmcnt({6 if k < 39 else 0})")
            rr = reads(k + 2) if k + 2 < 40 else []
            per = (2, 2, 1, 1)
            if k == 38:
                rr = [f"ds_read_b32 v{SSR+2*nt+w}, v{EA+3} offset:{512*w+128*nt}" for nt in range(2) for w in range(2)]
            if k == 39:
                rr = [f"v_add_f32 v{SSR+2*nt}, v{SSR+2*nt}, v{SSR+2*nt+1}" for nt in range(2)]
                rr += [f"v_fma_f32 v{RSD+2*nt}, v{SSR+2*nt}, s78, v{EA+10}" for nt in range(2)]
                rr += [f"v_rsq_f32 v{RSD+2*nt}, v{RSD+2*nt}" for nt in range(2)]
                per = (2, 2, 2, 0)
            f = self.QF + 16 * (k % 3)
            for j, (mt, nt) in enumerate(((0, 0), (1, 0), (1, 1), (0, 1)) if k < 39 else ((1, 0), (1, 1), (0, 0), (0, 1))):
                d = vr(self.QACC + 32 * nt + 16 * mt, 16)
                a(f"v_mfma_f32_32x32x16_bf16 {d}, {vr(f+4*mt,4)}, {vr(f+8+4*nt,4)}, {'0' if k == 0 else d}")
                if j == 0 and (k == 39 or (k % 2 == 0 and k + 2 < 40)):
                    a("s_barrier")
                    if k == KW:
                        assert not work
                        a(f"ds_write_b64 v240, {vr(ACC,2)} offset:16384")
                for _ in range(per[j]):
                    if rr:
                        a(rr.pop(0))
                if k == K0:
                    for x in (["s_waitcnt vmcnt(0)"] + chk[:2], chk[2:4], chk[4:], [])[j]:
                        a(x)
                    if j == 3:
                        self.retry(chk, sl)
                if k > K0:
                    for _ in range(self.ss_dens()[j]):
                        if work:
                            a(work.pop(0))
        self.stamp(7)

        def sc(dst, src, n, nt):
            for h in range(n):
                r = vr(src + 2 * h, 2)
                if "eplain" in self.opts:
                    a(f"v_mul_f32 v{src+2*h}, v{src+2*h}, v{RSD+2*nt}\nv_mul_f32 v{src+2*h+1}, v{src+2*h+1}, v{RSD+2*nt}")
                else:
                    a(f"v_pk_mul_f32 {r}, {r}, {vr(RSD+2*nt,2)} op_sel_hi:[1,0]")
            for h in range(n):
                a(f"v_cvt_pk_bf16_f32 v{dst+h}, v{src+2*h}, v{src+2*h+1}")

        def sq(acc, srcs):
            for j, r in enumerate(srcs):
                if j == 0:
                    a(f"v_pk_mul_f32 {vr(acc,2)}, {vr(r,2)}, {vr(r,2)}")
                else:
                    a(f"v_pk_fma_f32 {vr(acc,2)}, {vr(r,2)}, {vr(r,2)}, {vr(acc,2)}")
        PB = [self.QACC + 32 * nt for nt in range(2)]
        self.fstamp("e", 0)
        for nt in range(2):
            sc(VR + 6 * nt, PB[nt] + 20, 6, nt)
            for i in range(3):
                a(f"ds_write_b64 v{EA}, {vr(VR+6*nt+2*i,2)} offset:{8*i+1536*nt}")
            for i in range(4):
                a(f"ds_read_b64_tr_b16 {vr(VT+8*nt+2*i,2)}, v{EA+1} offset:{(i//2)*768+(i%2)*192+1536*nt}")
        self.fstamp("e", 1)
        for nt in range(2):
            sc(KR + 4 * nt, PB[nt] + 8, 4, nt)
            a(f"buffer_store_dwordx4 {vr(KR+4*nt,4)}, {vL16}, {WS}, s77 offen offset:{A.TILE*nt} sc1")
            sc((Q2T, K2R)[nt], PB[nt] + 16, 2, nt)
        for i in range(2):
            a(f"v_permlane32_swap_b32 v{Q2T+i}, v{K2R+i}")
        a(f"""buffer_store_dwordx2 {vr(K2R,2)}, v{EA+6}, {WS}, s76 offen sc1
        s_mov_b64 exec, {A.VMASK}
        s_waitcnt lgkmcnt(0)""")
        for nt in range(2):
            for i in range(2):
                a(f"buffer_store_dwordx4 {vr(VT+8*nt+4*i,4)}, v{EA+2}, {WS}, s77 offen offset:{A.TILE*nt+1024+A.VFR*i} sc1")
        self.fstamp("e", 2)
        for nt in range(2):
            for i in range(2):
                a(f"ds_write_b128 v{EA+5}, {vr(VT+8*nt+4*i,4)} offset:{A.TILE*nt+1024+A.VFR*i}")
        a("s_mov_b64 exec, -1")
        for nt in range(2):
            sc(AR.Q1 + 4 * nt, PB[nt], 4, nt)
            a(f"ds_write_b128 v{EA+4}, {vr(KR+4*nt,4)} offset:{A.TILE*nt}")
            a(f"ds_write_b128 v{EA+8}, {vr(AR.Q1+4*nt,4)} offset:{1024*nt}")
        a(f"ds_write_b64 v{EA+7}, {vr(K2R,2)}")
        a(f"ds_write_b64 v{EA+9}, {vr(Q2T,2)} offset:2048")
        self.fstamp("e", 3)
        for nt in range(2):
            sq(W + 4 * nt, [PB[nt] + 2 * h for h in (0, 1, 2, 3)])
            sq(W + 4 * nt + 2, [PB[nt] + 2 * h for h in (4, 5, 6, 7)])
        for half, ex in enumerate(("exec_hi", "exec_lo")):
            a(f"s_mov_b32 {ex}, 0")
            for nt in range(2):
                for h in (8, 9):
                    r, c = vr(PB[nt] + 2 * h, 2), vr(W + 4 * nt + 2 * half, 2)
                    a(f"v_pk_fma_f32 {c}, {r}, {r}, {c}")
            a(f"s_mov_b32 {ex}, -1")
        for j in range(4):
            a(f"v_add_f32 v{N+j}, v{W+2*j}, v{W+2*j+1}")
        a(f"v_max3_f32 v{W}, abs(v{PB[0]+20}), abs(v{PB[0]+21}), abs(v{PB[1]+20})")
        rest = [PB[1] + 21] + [PB[nt] + h for nt in range(2) for h in range(22, 28)]
        rest.append(rest[-1])
        for j in range(0, len(rest), 2):
            a(f"v_max3_f32 v{W}, v{W}, abs(v{rest[j]}), abs(v{rest[j+1]})")
        a(f"v_permlane32_swap_b32 v{N}, v{N+2}\nv_permlane32_swap_b32 v{N+1}, v{N+3}\ns_mov_b32 exec_hi, 0")
        for nt in range(2):
            for h in (28, 30):
                a(f"v_max3_f32 v{W}, v{W}, abs(v{PB[nt]+h}), abs(v{PB[nt]+h+1})")
        a(f"""s_mov_b32 exec_hi, -1
        v_pk_add_f32 {vr(N,2)}, {vr(N,2)}, {vr(N+2,2)}
        v_cmp_gt_f32 vcc, {fbits(2.0**50)}, v{W}
        v_cndmask_b32 v{N+1}, 0x7f800000, v{N+1}, vcc""")
        for j, sh in enumerate((8, 4, 2, 1)):
            a(f"v_mov_b32 v{AR.Q2+6*(j//2)+j%2}, v{Q2T+j%2}")
            for r in (N, N + 1):
                a(f"v_max_u32 v{r}, v{r}, v{r} row_ror:{sh} row_mask:0xf bank_mask:0xf")
        a(f"""v_or_b32 v{N+1}, 1, v{N+1}
        s_mov_b32 exec_lo, 0x10001
        s_mov_b32 exec_hi, 0x10001
        ds_write_b64 v{EA+11}, {vr(N,2)}
        buffer_store_dword v{N+1}, v{EA+13}, {WS}, s79 offen sc1
        s_mov_b64 exec, -1""")
        self.q2_spread()
        self.fstamp("e", 14)
        a(f"""s_waitcnt lgkmcnt(0)
        s_barrier
        ds_read_b64 {vr(N,2)}, v{EA+12}""")

    def kv_dma(self):
        return [f"buffer_load_dwordx4 {vL16}, {WS}, s81 offen sc1 lds",
                f"buffer_load_dwordx4 {vL16}, {WS}, s81 offen offset:1024 sc1 lds",
                "s_mov_b32 exec_hi, 0",
                f"buffer_load_dwordx4 {vL16}, {WS}, s81 offen offset:2048 sc1 lds",
                "s_mov_b32 exec_hi, -1"]

    def att_dma(self, c):
        a = self.a
        a(f"s_mul_i32 s81, s80, {A.CHUNK}\ns_add_u32 m0, s85, {A.slot_off(c)}\ns_add_u32 s81, s81, s86")
        for x in self.kv_dma():
            a(x)
        a("s_add_u32 s80, s80, 1\ns_and_b32 s80, s80, 7")

    def att_slow(self):
        a = self.a
        M = 140
        for i in range(32):
            a(f"v_mov_b32 v{AR.O+i}, 0")
        for x in self.o_fill() + self.x_fill():
            a(x)
        a(f"v_mov_b32 v{M}, 0xff800000\nv_mov_b32 v{M+1}, 0xff800000\ns_waitcnt vmcnt(0)")
        for ps in range(2):
            lp = a.lab("Lsl")
            a(f"s_mov_b32 s80, 0\n{lp}:\ns_barrier")
            self.att_dma(0)
            a("s_waitcnt vmcnt(0)\ns_barrier")
            for n in range(8):
                if n % 2 == 0:
                    for r in A.rd_k(n // 2) + (A.rd_v(n // 2) if ps else []):
                        a(r)
                    a("s_waitcnt lgkmcnt(0)")
                a(A.qk1(n))
                a(A.qk2(n))
                s = AR.S + 16 * (n % 3)
                if ps == 0:
                    for i in range(8):
                        a(f"v_max3_f32 v{M+n%2}, v{M+n%2}, v{s+2*i}, v{s+2*i+1}")
                else:
                    for i in range(16):
                        a(f"v_sub_f32 v{s+i}, v{s+i}, v{M+n%2}")
                    for i in range(16):
                        a(A.ex(n, i))
                    a(A.pv(n, 0))
                    a(A.pv(n, 1))
            a(f"s_cmp_lg_u32 s80, 0\ns_cbranch_scc1 {lp}")
            if ps == 0:
                off = A.SLOT0 + A.slot_off(1)
                a(f"""v_lshlrev_b32 v5, 3, {vTID}
                v_xor_b32 v6, 0x800, v5
                v_add_u32 v5, {off}, v5
                v_add_u32 v6, {off}, v6
                ds_write_b64 v5, {vr(M,2)}
                s_waitcnt lgkmcnt(0)
                s_barrier
                ds_read_b64 {vr(M+2,2)}, v6
                s_waitcnt lgkmcnt(0)""")
                for q in range(2):
                    a(f"""v_max_f32 v{M+q}, v{M+q}, v{M+3-q}
                    v_mov_b32 v5, v{M+q}
                    v_permlane32_swap_b32 v5, v{M+q}
                    v_max_f32 v{M+q}, v5, v{M+q}""")
        for i in range(13):
            for x in self.img_piece(i == 12):
                a(x)

    def img_piece(self, half=False):
        ld = f"buffer_load_dwordx4 {vL16}, {WS}, s9 offen sc1 lds"
        step = 512 if half else 1024
        mid = ["s_mov_b32 exec_hi, 0", ld, "s_mov_b32 exec_hi, -1"] if half else [ld]
        return ["s_mov_b32 m0, s8", f"s_add_u32 s8, s8, {step}"] + mid + [f"s_add_u32 s9, s9, {step}"]

    def attention(self):
        a = self.a
        N = self.NREG
        l0, l1, l2, l3, l4, l5, slow, done, loop = (a.lab("La") for _ in range(9))
        a(f"""s_lshl_b32 s11, {sH}, 10
        s_add_u32 s11, s11, {sFL}
        s_add_u32 s11, s11, {F_KV*FSTRIDE}
        s_lshl_b32 s12, {sTT}, 7
        s_add_u32 s12, s12, s11
        s_mul_i32 s8, {sWV}, 12800
        s_mov_b32 s9, {WOT}
        s_cmp_eq_u32 {sLAYER}, 0
        s_cselect_b32 s9, {WOH}, s9
        s_mul_i32 s72, {sCB}, 102400
        s_add_u32 s9, s9, s72
        s_add_u32 s9, s9, s8""")
        self.stamp(8)
        A.start(a, 0)
        redo, back, lo, li = (a.lab("Lredo") for _ in range(4))
        a(f"v_cmp_lt_u32 vcc, 0x7f800000, v{N}\ns_cbranch_vccnz {redo}\n{back}:")
        chk = "\n".join(self.umax(5, [5, 60, 61, 62, 63]))
        self.cold.append(f"""{redo}:
        s_cmp_lg_u32 s14, 0
        s_cbranch_scc1 {back}
        s_mov_b32 s14, 1
        {self.count_text(10)}
        s_mov_b32 s88, {SPIN >> 4}
        {lo}:
        s_mul_i32 s72, {sTT}, 327680
        s_add_u32 s72, s72, {sXB}
        s_mul_i32 s73, {sWV}, 40960
        s_add_u32 s72, s72, s73
        s_add_u32 s73, s72, 40960
        v_mov_b32 v5, 0
        {li}:
        buffer_load_dwordx4 v[60:63], {vL16}, {WS}, s72 offen sc1
        s_add_u32 s72, s72, 1024
        s_cmp_lt_u32 s72, s73
        s_waitcnt vmcnt(0)
        {chk}
        s_cbranch_scc1 {li}
        v_cmp_eq_u32 vcc, -1, v5
        s_sub_u32 s88, s88, 1
        s_cselect_b64 vcc, 0, vcc
        s_cbranch_vccnz {lo}
        s_waitcnt lgkmcnt(0)
        s_barrier
        s_branch Lqkv""")

        def publish():
            lw = a.lab("La")
            self.if_lo(lw)
            a(f"s_waitcnt vmcnt(1)\ns_cmp_eq_u32 s14, 0\ns_cbranch_scc1 {lw}\ns_waitcnt vmcnt(0)\n{lw}:\ns_barrier")
            self.push("s11", 7, wave=4, n=8)
            lf = a.lab("La")
            a(f"s_and_b32 s72, {sHI}, {sLAYER}\ns_cbranch_scc0 {lf}")
            for q in range(6):
                if q not in self.ft_early.values():
                    self.ft_part(q)
            a(f"""s_lshl_b32 s74, {sWM}, 10
            s_add_u32 m0, s74, 98304
            s_sub_u32 s83, s82, s78
            s_add_u32 s83, s83, m0
            buffer_load_dwordx4 {vL16}, {WS}, s83 offen sc1 lds""")
            a(f"{lf}:")

        def fetch():
            self.if_lo(l0)
            a(f"""v_bfe_u32 v5, {vL}, 2, 3
            v_and_b32 v6, 3, {vL}
            v_lshlrev_b32 v6, 4, v6
            v_lshl_add_u32 v{N+1}, v5, 7, v6
            s_lshl_b32 s76, {sH}, 10
            s_lshl_b32 s75, {sLAYER}, 15
            s_add_u32 s76, s76, s75
            s_add_u32 s76, s76, {F_KMAX*FSTRIDE}
            s_mul_i32 s72, {sWM}, 2560
            s_add_u32 s73, s85, s72
            s_add_u32 s74, s86, s72
            s_movk_i32 s75, 2560""")
            for c in (1, 2):
                a(f"""s_or_b32 s80, {sTT}, 1
                s_add_u32 s80, s80, {c}
                s_and_b32 s80, s80, 7
                s_mul_i32 s81, s80, {A.CHUNK}
                s_add_u32 s{76+c}, s81, s74""")
            a(f"s_add_u32 m0, s73, {A.slot_off(1)}")
            self.wait_lines("s12", 1, 8)
            self.fstamp("a", 14)
            a(f"s_cmp_lg_u32 {sWV}, 0\ns_cbranch_scc1 {l2}\nbuffer_load_dwordx4 v[140:143], v{N+1}, {WS}, s76 offen sc1\n{l2}:")
            for c in (1, 2):
                if c == 2:
                    a(f"s_add_u32 m0, s73, {A.slot_off(c)}")
                for i in range(4):
                    a(f"buffer_load_dwordx4 {vL16}, {WS}, s{76+c} offen offset:{1024*i} sc1 lds")
                a(f"s_add_u32 m0, m0, 4096\ns_add_u32 s81, s{76+c}, 4096")
                a(f"buffer_load_dwordx4 {vL16}, {WS}, s81 offen sc1 lds")
            a(f"{l0}:")
        pi = next((int(o[2:]) for o in self.opts if o.startswith("pi")), 5)
        for n in range(8):
            A.iteration(a, n, 8, {self.pub: publish, pi: fetch}.get(n), first=(n == 0))
        a(A.pv(7, 1))
        self.stamp(9)
        self.if_lo(l1)
        a("s_barrier")
        for sh in (8, 4, 2, 1):
            a(f"v_max_u32 v{N}, v{N}, v{N} row_ror:{sh} row_mask:0xf bank_mask:0xf")
        kb, ko = a.lab("Lbad"), a.lab("Lok")
        self.cold.append(f"""{kb}:
        buffer_load_dwordx4 v[140:143], v{N+1}, {WS}, s76 offen sc1
        s_sub_u32 s88, s88, 1
        s_waitcnt vmcnt(0)
        s_cbranch_scc1 {ko}
        v_min3_u32 v7, v140, v141, v142
        v_min_u32 v7, v7, v143
        v_cmp_eq_u32 vcc, 0, v7
        s_cbranch_vccnz {kb}
        s_branch {ko}""")
        a(f"""s_mov_b32 s88, {SPIN}
        s_cmp_lg_u32 {sWV}, 0
        s_cbranch_scc1 {l5}
        s_waitcnt vmcnt(10)
        v_min3_u32 v7, v140, v141, v142
        v_min_u32 v7, v7, v143
        v_cmp_eq_u32 vcc, 0, v7
        s_cbranch_vccnz {kb}
        {ko}:
        v_max3_u32 v7, v140, v141, v142
        v_max_u32 v7, v7, v143
        v_mul_f32 v7, v7, v{N}
        v_cmp_nge_f32 vcc, {fbits(3600.0)}, v7
        s_or_b32 s72, vcc_lo, vcc_hi
        v_mov_b32 v5, {A.SLOT0 + A.slot_off(0)}
        v_mov_b32 v6, s72
        v_mad_u32_u24 v5, {vL}, s75, v5
        s_mov_b64 exec, 0xff
        ds_write_b32 v5, v6
        s_mov_b64 exec, -1
        {l5}:""")
        self.fstamp("b", 2)
        a("s_waitcnt vmcnt(5)")
        self.fstamp("b", 3)
        a(f"""s_branch {l3}
        {l1}:
        s_waitcnt vmcnt(0)
        s_barrier
        s_cmp_eq_u32 {sLAYER}, 0
        s_cbranch_scc1 {l3}""")
        self.gcore(0, 20, False, True, False)
        a(f"v_mov_b32 v6, {fbits(AMP)}")
        for h in range(10):
            a(f"v_pk_mul_f32 {vr(GLO+2*h,2)}, {vr(GLO+2*h,2)}, v[6:7] op_sel_hi:[1,0]")
        a(f"""{l3}:
        v_mov_b32 v5, s85
        s_or_b32 s80, {sTT}, 1
        s_add_u32 s80, s80, 3
        s_and_b32 s80, s80, 7
        s_waitcnt lgkmcnt(0)
        s_barrier
        ds_read_b32 v6, v5 offset:{A.slot_off(0)}""")
        self.stamp(10)
        A.start(a, 8)
        self.att_dma(0)
        a(f"""v_readfirstlane_b32 s72, v6
        s_cmp_lg_u32 s72, 0
        s_cbranch_scc1 {slow}""")
        NT = 64
        prio = {"pa": ((4, 0), (5, 0), (5, 3)), "pb": ((3, 0), (5, 0), (5, 3)), "pc": ((2, 0), (4, 2), (5, 2)),
                "pd": ((1, 0), (3, 0), (5, 0))}[next((o for o in self.opts if o in ("pa", "pb", "pc", "pd")), "pb")]
        order = ["K3"] * 3
        imgs = [n for n in range(10, 62) if n % 8 in (2, 3)][:13]

        def bnd(c):
            def f():
                last = max((i for i, t in enumerate(order) if t == f"K{c+1}"), default=-1)
                a(f"s_waitcnt vmcnt({len(order)-1-last}) lgkmcnt(0)\ns_barrier\ns_setprio 3")
            return f

        def hooks(n):
            h = {}

            def add(k, xs):
                h.setdefault(k, []).extend(xs)
            for lvl, (t, k) in zip((2, 1, 0), prio):
                if n % 8 == t:
                    add(k, [f"s_setprio {lvl}"])
            c = (n + 2) // 8 - 1
            d = self.kv_dma()
            if 1 <= c <= 4:
                if n % 8 == 6:
                    add(2, [f"s_mul_i32 s81, s80, {A.CHUNK}", f"s_add_u32 m0, s85, {A.slot_off(c)}"])
                    add(3, ["s_add_u32 s81, s81, s86"])
                if n % 8 == 7:
                    add(0, d[:1])
                    add(2, ["s_add_u32 s80, s80, 1", "s_and_b32 s80, s80, 7"] + d[1:2])
                    add(3, d[2:])
                    order.extend([f"K{c+3}"] * 3)
                if n % 8 == 0:
                    add(2, [f"s_cmp_eq_u32 s80, {sTT}", "s_addc_u32 s80, s80, 0"])
            if n in imgs:
                add(3, self.img_piece(n == imgs[-1]))
                order.append("I")
            if n == 47:
                f = self.o_fill()
                add(0, f[:4])
                add(2, f[4:5])
                add(3, f[5:])
                order.extend(["F"] * 2)
            if n == 55:
                add(2, self.x_fill())
            return h
        for n in range(8, 64):
            c = n // 8
            A.iteration(a, n, NT, bnd(c) if (n % 8 == 6 and c < 7) else None, first=(n == 8), hooks=hooks(n))
        a(A.pv(63, 1))
        a(f"{done}:")
        for x in self.o_send():
            a(x)
        self.fstamp("a", 2)
        self.slow_labels = (slow, done)
        O, X = AR.O + 16, AR.S + 16
        a(f"""s_setprio 0
        s_lshl_b32 s72, {sTT}, 12
        s_add_u32 s72, s72, {sFL}
        s_add_u32 s72, s72, {F_O*FSTRIDE}
        s_lshl_b32 s34, {sH}, 7
        s_add_u32 s34, s34, s72
        s_waitcnt vmcnt(0) lgkmcnt(0)
        s_barrier""")
        for i in (2, 0, 1):
            a(f"ds_read_b128 {vr(X+4*i,4)}, v{N+5} offset:{1024*i}")
        self.push("s72", 7, wave=0, n=32)
        a("s_waitcnt lgkmcnt(2)")
        for h in (4, 5):
            a(f"v_pk_add_f32 {vr(O+2*h,2)}, {vr(O+2*h,2)}, {vr(X+2*h,2)}")
        a(f"v_mov_b32 v6, v{O+8}\nv_mov_b32 v7, v{O+8}\ns_waitcnt lgkmcnt(0)")
        for h in range(2):
            a(f"v_pk_add_f32 {vr(O+2*h,2)}, {vr(O+2*h,2)}, {vr(X+2*h,2)}")
        a("v_permlane32_swap_b32 v7, v6\nv_rcp_f32 v6, v6")
        for h in range(2, 4):
            a(f"v_pk_add_f32 {vr(O+2*h,2)}, {vr(O+2*h,2)}, {vr(X+2*h,2)}")
        self.fstamp("a", 3)
        for h in range(4):
            a(f"v_pk_mul_f32 {vr(O+2*h,2)}, {vr(O+2*h,2)}, v[6:7] op_sel_hi:[1,0]")
        for h in range(4):
            a(f"v_cvt_pk_bf16_f32 v{8+h}, v{O+2*h}, v{O+2*h+1}")
        self.clean(8, 4)
        a(f"buffer_store_dwordx4 v[8:11], v{N+6}, {WS}, s18 offen sc1")
        for h in range(4, 6):
            a(f"v_pk_mul_f32 {vr(O+2*h,2)}, {vr(O+2*h,2)}, v[6:7] op_sel_hi:[1,0]")
        for h in range(4, 6):
            a(f"v_cvt_pk_bf16_f32 v{8+h}, v{O+2*h}, v{O+2*h+1}")
        self.clean(12, 2)
        a(f"""s_mov_b32 exec_hi, 0
        buffer_store_dwordx2 v[12:13], v{N+7}, {WS}, s19 offen sc1
        s_mov_b64 exec, -1""")

    def o_send(self):
        return [f"ds_write_b128 v{self.NREG+4}, {vr(AR.O+4*i,4)} offset:{1024*i}" for i in range(3)]

    def o_prepare(self):
        a = self.a
        N = self.NREG
        a(f"""s_mul_i32 s72, {sWM}, 3072
        s_add_u32 s72, s72, {A.SLOT0}
        s_mul_i32 s73, {sHI}, {A.CHUNK}
        s_add_u32 s74, s72, s73
        v_add_u32 v{N+4}, s74, {vL16}
        s_sub_u32 s74, s72, s73
        s_add_u32 s74, s74, {A.CHUNK}
        v_add_u32 v{N+5}, s74, {vL16}
        s_lshl_b32 s72, {sTT}, 1
        s_lshr_b32 s73, {sWM}, 1
        s_add_u32 s72, s72, s73
        s_lshl_b32 s72, s72, 5
        s_add_u32 s72, s72, {sH}
        s_and_b32 s73, {sWM}, 1
        s_lshl_b32 s73, s73, 1
        s_add_u32 s73, s73, 1
        s_sub_u32 s73, s73, {sHI}
        s_lshl_b32 s18, s72, 12
        s_lshl_b32 s74, s73, 9
        s_add_u32 s18, s18, s74
        s_add_u32 s18, s18, {sO}
        s_lshl_b32 s19, s72, 10
        s_lshl_b32 s74, s73, 8
        s_add_u32 s19, s19, s74
        s_add_u32 s19, s19, {sO}
        s_add_u32 s19, s19, {OXOFF}
        v_lshrrev_b32 v5, 5, {vL}
        v_mul_u32_u24 v5, 1536, v5
        v_add_u32 v{N+6}, v5, {vL16}
        v_lshlrev_b32 v{N+7}, 3, {vL}
        s_mul_i32 s0, {sT}, 163840
        s_mul_i32 s72, {sCB}, 20480
        s_add_u32 s0, s0, s72
        s_lshl_b32 s72, {sHALF}, 7
        s_add_u32 s0, s0, s72
        s_add_u32 s0, s0, {X0+2*XSZ}
        s_mul_i32 s1, {sWV}, {2*163840}
        s_mul_i32 s72, {sX}, 20
        s_add_u32 s72, s72, {sR}
        s_lshl_b32 s72, s72, 10
        s_add_u32 s1, s1, s72
        s_add_u32 s1, s1, {X0+3*XSZ}
        s_cmp_ge_u32 {sR}, 20
        s_cselect_b32 s1, s22, s1""")

    def x_fill(self):
        l2 = self.a.lab("Lxf")
        st = "buffer_store_dwordx4 v[140:143]"
        return [f"s_cmp_lg_u32 {sLAYER}, 0", f"s_cbranch_scc1 {l2}",
                f"v_lshrrev_b32 v5, 3, {vTID}", "v_lshlrev_b32 v5, 7, v5", f"v_lshl_add_u32 v5, {vTID}, 4, v5",
                "s_add_u32 s72, s0, 16384", f"s_cmp_gt_u32 {sWV}, 1", "s_cselect_b32 s72, s22, s72",
                f"{st}, v5, {WS}, s0 offen sc1", f"{st}, v5, {WS}, s72 offen sc1", "s_add_u32 s72, s1, 163840",
                f"{st}, {vL16}, {WS}, s1 offen sc1", f"{st}, {vL16}, {WS}, s72 offen sc1", f"{l2}:"]

    def o_fill(self):
        N = self.NREG
        r = [f"v_mov_b32 v{140+i}, -1" for i in range(4)]
        r += [f"buffer_store_dwordx4 v[140:143], v{N+6}, {WS}, s18 offen sc1", "s_mov_b32 exec_hi, 0"]
        r += [f"buffer_store_dwordx2 v[140:141], v{N+7}, {WS}, s19 offen sc1", "s_mov_b32 exec_hi, -1"]
        return r

    def o_look(self):
        self.a(f"v_mov_b32 v19, 0\ns_mov_b64 exec, 1\nbuffer_atomic_add v19, {vL16}, {WS}, s34 offen sc0 sc1\ns_mov_b64 exec, -1")

    def o_loads(self):
        a = self.a
        a(f"""s_lshl_b32 s72, {sHALF}, 6
        s_lshl_b32 s73, {sWM}, 4
        s_add_u32 s72, s72, s73
        v_add_u32 v5, s72, {vN}
        v_lshlrev_b32 v6, 11, {vG}
        v_lshl_add_u32 v141, v5, 4, v6
        v_lshl_add_u32 v142, v5, 3, v6
        s_lshl_b32 s72, {sT}, 17
        s_add_u32 s72, s72, {sO}
        s_lshl_b32 s73, {sT}, 15
        s_add_u32 s73, s73, {sO}
        s_add_u32 s73, s73, {OXOFF}
        s_mov_b32 s78, s72
        s_mov_b32 s79, s73""")
        for i in range(20):
            a(f"v_mov_b32 v{GHI+i}, v{GLO+i}")
        if "nogate" not in self.opts:
            l = a.lab("Lo")
            a(f"s_waitcnt vmcnt(0)\nv_readfirstlane_b32 s74, v19\ns_cmp_ge_u32 s74, 32\ns_cbranch_scc1 {l}")
            self.wait_lines("s34", 1, 32)
            a(f"{l}:")
        self.stamp(12)

    def o_proj(self, swap):
        a = self.a
        top, bad, ok = a.lab("Lo"), a.lab("Lbad"), a.lab("Lok")
        a(f"s_mov_b32 s88, {SPIN >> 3}\n{top}:")
        for ks in range(self.olead):
            self.o_load(ks)
        self.fstamp("p", 0)
        hook = None
        if not swap and self.hk is not None:
            def early():
                l = a.lab("Lo")
                a(f"""s_cmp_lg_u32 s76, 4
                s_cbranch_scc1 {l}
                s_mov_b64 exec, 0xffff
                buffer_atomic_add v143, v19, {WS}, s77 offen sc1
                s_mov_b64 exec, -1
                s_mov_b32 s76, 0
                {l}:""")
            hook = (self.hk, early)
        self.gcore(0, 20, False, swap, True, self.o_wait, feed=self.o_feed, hook=hook)
        a(f"v_cmp_u_f32 vcc, v{GLO}, v{GLO+1}\nv_cmp_u_f32 s[74:75], v{GLO+2}, v{GLO+3}\ns_or_b64 vcc, vcc, s[74:75]")
        a(f"s_cbranch_scc1 {bad}\n{ok}:")
        self.fstamp("p", 2)
        body = [f"{bad}:"] + self.umax(5, range(GA, GA + 80)) + ["v_cmp_eq_u32 vcc, -1, v5", f"s_cbranch_vccz {ok}"]
        body += [self.count_text(9), "s_sub_u32 s88, s88, 1", f"s_cbranch_scc1 {ok}", "s_mov_b32 s72, s78", "s_mov_b32 s73, s79"]
        body += [f"v_mov_b32 v{GLO+i}, v{GHI+i}" for i in range(20)] + [f"s_branch {top}"]
        self.cold.append("\n".join(body))

    def o_load(self, ks):
        a = self.a
        if ks < 16:
            a(f"buffer_load_dwordx4 {vr(GA+4*ks,4)}, v141, {WS}, s72 offen sc1")
            a("s_add_u32 s72, s72, 8192")
        elif ks < 20:
            for i in range(2):
                a(f"buffer_load_dwordx2 {vr(GA+4*ks+2*i,2)}, v142, {WS}, s73 offen offset:{1024*i} sc1")
            a("s_add_u32 s73, s73, 8192")

    def o_feed(self, ks):
        self.o_load(ks + self.olead)

    def o_wait(self, ks):
        return sum(1 if k < 16 else 2 for k in range(ks + 1, min(20, ks + self.olead)))

    def res_load(self):
        a = self.a
        a(f"""s_mul_i32 s72, {sT}, 163840
        s_mul_i32 s73, {sCB}, 20480
        s_add_u32 s72, s72, s73
        s_lshl_b32 s73, {sHALF}, 7
        s_add_u32 s72, s72, s73
        s_lshl_b32 s73, {sWM}, 5
        s_add_u32 s72, s72, s73
        s_add_u32 s72, s72, {sXB}
        v_lshlrev_b32 v5, 8, {vN}
        v_lshl_add_u32 v5, {vG}, 3, v5""")
        for ct in range(5):
            a(f"buffer_load_dwordx2 {vr(GA+2*ct,2)}, v5, {WS}, s72 offen sc1")
            a("s_add_u32 s72, s72, 4096")

    def final_setup(self):
        a = self.a
        a(f"""s_mul_i32 s72, {sWM}, {16*176}
        s_add_u32 s72, s72, {EP}
        v_mul_u32_u24 v5, 176, {vN}
        v_lshl_add_u32 v5, {vG}, 3, v5
        v_add_u32 v11, s72, v5""")
        a(f"""s_and_b32 s73, {sT}, 7
        s_lshl_b32 s73, s73, 8
        s_lshr_b32 s74, {sT}, 3
        s_lshl_b32 s74, s74, 4
        s_add_u32 s73, s73, s74
        s_lshl_b32 s74, {sHALF}, 3
        s_add_u32 s73, s73, s74
        s_lshl_b32 s74, {sWM}, 1
        s_add_u32 s73, s73, s74
        s_mul_i32 s73, s73, 1280
        s_mul_i32 s74, {sCB}, 160
        s_add_u32 s73, s73, s74
        s_movk_i32 s74, 176
        s_movk_i32 s75, 1280""")
        for i in range(3):
            a(f"""v_add_u32 v5, {64*i}, {vL}
            v_mul_u32_u24 v6, 205, v5
            v_lshrrev_b32 v6, 11, v6
            v_mul_u32_u24 v7, 10, v6
            v_sub_u32 v5, v5, v7
            v_lshlrev_b32 v5, 4, v5
            v_mad_u32_u24 v{8+i}, v6, s74, v5
            v_add_u32 v{8+i}, s72, v{8+i}
            v_and_b32 v7, 7, v6
            v_lshrrev_b32 v6, 3, v6
            v_lshl_add_u32 v6, v7, 5, v6
            v_mad_u32_u24 v{12+i}, v6, s75, v5""")
        a("s_mov_b32 s77, s73")

    def final_store(self):
        a = self.a
        for ct in range(5):
            a(f"v_cvt_pk_bf16_f32 v{16+2*ct}, v{GLO+4*ct}, v{GLO+4*ct+1}")
            a(f"v_cvt_pk_bf16_f32 v{17+2*ct}, v{GLO+4*ct+2}, v{GLO+4*ct+3}")
            a(f"ds_write_b64 v11, {vr(16+2*ct,2)} offset:{ct*32}")
        for i in range(3):
            a(f"ds_read_b128 {vr(28+4*i,4)}, v{8+i}")
        for i in range(3):
            if i == 2:
                a("s_mov_b32 exec_hi, 0")
            a(f"s_waitcnt lgkmcnt({2-i})")
            a(f"buffer_store_dwordx4 {vr(28+4*i,4)}, v{12+i}, {SOUT}, s77 offen")

    def build(self):
        a = self.a
        self.prologue()
        self.phase0()
        a(f"""s_mov_b32 {sXA}, {X0}
        s_mov_b32 {sXB}, {X0+XSZ}
        s_mov_b32 {sKV}, {KV0}
        s_mov_b32 {sO}, {OM0}
        s_mov_b32 {sSS}, {SS0}
        s_mov_b32 s35, 0
        Llayer:""")
        idle, cdone, l0, l1, l2, l3, l4, l5, l6, l7, l8, last = (a.lab("Lm") for _ in range(12))
        a(f"s_cmp_ge_u32 {sR}, 20\ns_cbranch_scc1 {idle}")
        self.x_look()
        self.col_consts()
        self.col_main()
        a(f"""s_branch {cdone}
        {idle}:
        s_cmp_lg_u32 {sLAYER}, 0
        s_cbranch_scc1 {l0}""")
        self.job_woh()
        a(f"s_branch {l1}\n{l0}:")
        self.job_images()
        a(f"s_add_u32 s72, {sSH}, {(F_IMG+1)*FSTRIDE}\ns_barrier")
        self.push("s72", 11, wave=0)
        a(f"{l1}:\nv_mov_b32 v19, 0\n{cdone}:")
        self.stamp(5)
        a(f"""s_waitcnt {"vmcnt(0) " if "drainc" in self.opts else ""}lgkmcnt(0)
        s_barrier
        s_cmp_ge_u32 {sR}, 20
        s_cbranch_scc1 {l8}
        s_mul_i32 s72, {sX}, 20
        s_add_u32 s72, s72, {sR}
        s_and_b32 s72, s72, 15
        s_lshl_b32 s72, s72, 7
        s_add_u32 s72, s72, {sFL}
        s_add_u32 s72, s72, {F_COL*FSTRIDE}""")
        self.push("s72", 11, wave=0)
        a(f"{l8}:")
        self.if_hi(l2)
        self.pre_flags()
        a(f"s_waitcnt vmcnt(2)\ns_mov_b64 exec, 15\nv_cmp_gt_u32 vcc, s89, v19\ns_mov_b64 exec, -1\ns_cbranch_vccz {l2}")
        self.wait_lines("s72", 4, "s89")
        a(f"{l2}:\ns_barrier\ns_mov_b32 s14, 0\nLqkv:")
        self.if_lo(l3)
        self.qkv_compute()
        a(f"s_branch {l4}\n{l3}:")
        self.qkv_helper()
        a(f"{l4}:")
        self.attention()
        self.stamp(11)
        a("s_barrier")
        self.fstamp("a", 15)
        a(f"s_cmp_lg_u32 {sLAYER}, 0\ns_cbranch_scc1 {last}")
        self.if_lo(l5)
        self.x_store_setup()
        a(f"s_cmp_ge_u32 {sR}, 20\ns_cbranch_scc1 {l6}")
        self.col_tables(sWM, 4)
        self.col_early()
        a(f"{l6}:")
        a(f"s_add_u32 s76, {sSH}, {FLAGS+4*FSTRIDE}\ns_waitcnt lgkmcnt(0)\ns_barrier")
        if self.hk is None:
            self.push("s76", 11, wave=3)
        self.x_store("s0")
        self.stamp(13)
        a(f"s_branch {l7}\n{l5}:\ns_setprio 2")
        self.o_look()
        self.col_early()
        self.ep_setup()
        self.o_loads()
        a(f"s_mov_b32 s76, {sWV}\ns_add_u32 s77, {sSH}, {FLAGS+4*FSTRIDE}\nv_lshlrev_b32 v19, 11, {vL}\nv_mov_b32 v143, 1")
        self.o_proj(False)
        self.ep_write(False)
        self.fstamp("p", 3)
        a(f"""s_lshl_b32 s85, {sT}, 11
        s_lshl_b32 s86, {sCB}, 8
        s_add_u32 s85, s85, s86
        s_lshl_b32 s86, {sHALF}, 7
        s_add_u32 s85, s85, s86
        s_add_u32 s85, s85, {SS0+65536}
        s_waitcnt lgkmcnt(0)
        s_barrier""")
        self.ss_store(sCB, "s85")
        a("s_setprio 0")
        self.stamp(13)
        a(f"{l7}:")
        a(f"""s_mov_b32 {sLAYER}, 1
        s_mov_b32 {sXA}, {X0+2*XSZ}
        s_mov_b32 {sXB}, {X0+3*XSZ}
        s_mov_b32 {sKV}, {KV0+KVSZ}
        s_mov_b32 {sO}, {OM0+OSZ}
        s_mov_b32 {sSS}, {SS0+65536}
        s_mov_b32 {sFL}, {FLAGS+4*FSTRIDE}
        """)
        a(f"s_branch Llayer\n{last}:")
        self.if_hi("Lfin")
        self.o_look()
        self.final_setup()
        self.o_loads()
        self.o_proj(True)
        self.final_store()
        self.fstamp("p", 3)
        if self.stamps or self.probe is not None:
            a("s_mov_b64 exec, -1\ns_waitcnt vmcnt(0)")
            self.stamp(13)
        if self.probe is not None:
            a("""s_memrealtime s[90:91]
            s_sub_u32 s98, s98, s100
            Lspin:
            s_memrealtime s[92:93]
            s_waitcnt lgkmcnt(0)
            s_sub_u32 s92, s92, s90
            s_cmp_lt_u32 s92, s98
            s_cbranch_scc1 Lspin""")
        a("Lfin:")
        self.stamp_dump()
        a("s_endpgm")
        self.col_early_body()
        a("Lend:\ns_endpgm")
        slow, done = self.slow_labels
        a(f"{slow}:")
        self.att_slow()
        a(f"s_barrier\ns_branch {done}")
        for blk in self.cold:
            a(blk)
        return a.finalize()


def wrap(body):
    ref = open("cdna_kernels/" + NAME + ".s.ref").read()
    head = ref[:ref.index("; @launch")]
    out = head + "; @launch grid=(256,1,1) block=(512,1,1) lds=163840\n"
    out += f""".amdgcn_target "amdgcn-amd-amdhsa--gfx950"
.text
.globl {NAME}_kernel
.p2align 8
.type {NAME}_kernel,@function
{NAME}_kernel:
"""
    out += body
    out += ref[ref.index(".section .rodata"):]
    return out


if __name__ == "__main__":
    stamps = "--stamps" in sys.argv
    path = sys.argv[1]
    opts = [x[2:] for x in sys.argv[2:] if x.startswith("--")]
    g = Gen(stamps=stamps, opts=opts)
    txt = wrap(g.build())
    if "nosc1lds" in opts:
        txt = txt.replace(" sc1 lds", " lds")
    open(path, "w").write(txt)
    print("wrote", path, len(txt), "bytes; padded wait states", g.a.padded)
```

```python
from asmlib import *

VFR = 640
TILE = 1024 + 2 * VFR
K2OFF = 4 * TILE
HEADB = K2OFF + 1024
CHUNK = 2 * HEADB
SLOT0 = 163840 - 3 * CHUNK
SLOT_ORDER = (1, 2, 0)
VMASK = "s[4:5]"


class AR:
    Q1 = 8
    Q2 = 16
    IDX = 24
    KA = 25
    K2A = 26
    VA = 27
    O = 28
    S = 60
    K1 = 196
    K2 = 204
    V = 124
    END = 140


import os
MODE = os.environ.get("MODE2B", "a")
NB = int(os.environ.get("NB2B", "3"))


def sreg(n):
    return (60, 92, 164)[(n // 2) % NB] + 16 * (n % 2)


def slot_off(c):
    return SLOT_ORDER[c % 3] * CHUNK


def tile_off(m):
    return slot_off(m // 4) + (m % 4) * TILE


def rd_k(m):
    r = [f"ds_read_b128 {vr(AR.K1+4*(m%2),4)}, {vr(AR.KA)} offset:{tile_off(m)}"]
    if m % 2 == 0:
        r.append(f"ds_read_b64 {vr(AR.K2+2*((m//2)%3),2)}, {vr(AR.K2A)} offset:{slot_off(m//4)+256*(m%4)}")
    return r


def rd_v(m):
    r = [f"ds_read_b128 {vr(AR.V+8*(m%2)+4*i,4)}, {vr(AR.VA)} offset:{tile_off(m)+i*VFR}" for i in range(2)]
    return [f"s_mov_b64 exec, {VMASK}"] + r + ["s_mov_b64 exec, -1"]


def qk1(n, c="0"):
    m, q = n // 2, n % 2
    return f"v_mfma_f32_32x32x16_bf16 {vr(sreg(n),16)}, {vr(AR.K1+4*(m%2),4)}, {vr(AR.Q1+4*q,4)}, {c}"


def qk2(n):
    m, q = n // 2, n % 2
    s = vr(sreg(n), 16)
    return f"v_mfma_f32_32x32x8_bf16 {s}, {vr(AR.K2+2*((m//2)%3),2)}, {vr(AR.Q2+4*q+2*(m%2),2)}, {s}"


def qk2b(m):
    return (f"v_mfma_f32_32x32x4_2b_bf16 {vr(sreg(2*m),32)}, {vr(AR.K2+2*((m//2)%3),2)}, {vr(AR.Q2,2)}, 0 "
            f"cbsz:1 abid:{m%2}")


def qk1c(n):
    return qk1(n, vr(sreg(n), 16))


def pv(n, h):
    m, q = n // 2, n % 2
    return (f"v_smfmac_f32_32x32x32_bf16 {vr(AR.O+16*q,16)}, {vr(AR.V+8*(m%2)+4*h,4)}, "
            f"{vr(sreg(n)+8*h,8)}, {vr(AR.IDX)}")


def ex(n, i):
    r = vr(sreg(n) + i)
    return f"v_exp_f32 {r}, {r}"


def start(a, n):
    for r in rd_k(n // 2) + rd_v(n // 2):
        a(r)
    a("s_waitcnt lgkmcnt(2)")
    a(qk2b(n // 2))
    a(qk1c(n))
    a("s_waitcnt lgkmcnt(0)")


def iteration(a, n, nt, boundary=None, first=False, hooks=None):
    hooks = hooks or {}
    fetch = n % 2 == 0 and n + 2 < nt
    m = n // 2

    def hk(k):
        for x in hooks.get(k, []):
            a(x)

    def exs(i, j):
        for t in range(i, j):
            a(ex(n, t))
    if n % 2 == 0:
        a(qk1c(n + 1))
        if boundary:
            boundary()
        hk(0)
        if fetch:
            for r in rd_k(m + 1):
                a(r)
        exs(0, 4)
        if not first:
            a(pv(n - 1, 1))
        hk(1)
        hk(2)
        if fetch:
            for r in rd_v(m + 1):
                a(r)
        if MODE == "a":
            exs(4, 8)
            if fetch:
                a("s_waitcnt lgkmcnt(2)")
                a(qk2b(m + 1))
            exs(8, 14)
            a(pv(n, 0))
            hk(3)
            exs(14, 16)
        else:
            exs(4, 10)
            a(pv(n, 0))
            if fetch:
                a("s_waitcnt lgkmcnt(2)")
            hk(3)
            exs(10, 12)
            if fetch:
                a(qk2b(m + 1))
            exs(12, 16)
    else:
        if boundary:
            boundary()
        exs(0, 3)
        a(pv(n - 1, 1))
        hk(0)
        hk(1)
        exs(3, 7)
        if n + 1 < nt:
            a(qk1c(n + 1))
        hk(2)
        exs(7, 12)
        a(pv(n, 0))
        if n + 1 < nt:
            a("s_waitcnt lgkmcnt(0)")
        hk(3)
        exs(12, 16)


def setup_addr(a, vl, vl16, s_p, st, tmp):
    t0, t1 = vr(tmp), vr(tmp + 1)
    a(f"s_mul_i32 {st}, {s_p}, {HEADB}")
    a(f"s_add_u32 {st}, {st}, {SLOT0}")
    a(f"v_add_u32 {vr(AR.KA)}, {st}, {vl16}")
    a(f"v_and_b32 {t0}, 31, {vl}")
    a(f"v_lshrrev_b32 {t1}, 5, {vl}")
    a(f"v_cmp_ne_u32 vcc, 20, {t0}")
    a(f"v_mul_u32_u24 {t1}, 20, {t1}")
    a(f"v_add_lshl_u32 {t0}, {t0}, {t1}, 4")
    a(f"s_add_u32 {st}, {st}, 1024")
    a(f"v_add_u32 {vr(AR.VA)}, {st}, {t0}")
    a(f"v_mov_b32 {t1}, 0")
    a(f"v_cndmask_b32 {vr(AR.V)}, 0x3f803f80, {t1}, vcc")
    for i in range(1, 16):
        a(f"v_mov_b32 {vr(AR.V+i)}, {vr(AR.V)}")
    a("s_mov_b32 s4, 0xfffff\ns_mov_b32 s5, 0xfffff")
    a(f"s_add_u32 {st}, {st}, {K2OFF-1024}")
    a(f"v_lshl_add_u32 {vr(AR.K2A)}, {vl}, 3, {st}")
    a(f"v_mov_b32 {vr(AR.IDX)}, 0xdddd")
```

```python
import math, struct, sys
from asmlib import *
import attn as A
from attn import AR
from layout import *

NAME = "interleave_layers__spectral_gfnet__mha_block__prompt"


def fbits(x):
    return "0x%08x" % struct.unpack("<I", struct.pack("<f", x))[0]


WS, SX, SWF, SWQ, SWO, SOUT, SDBG = "s[20:23]", "s[24:27]", "s[28:31]", "s[36:39]", "s[40:43]", "s[44:47]", "s[48:51]"
sB, sWV, sX, sR, sT, sH, sHALF, sCB, sLAYER, sCB0, sTB0 = "s2", "s3", "s52", "s53", "s54", "s55", "s56", "s57", "s58", "s59", "s60"
sXA, sXB, sKV, sO, sSS, sFL, sSTAMP, sWM, sHI = "s61", "s62", "s63", "s64", "s65", "s66", "s67", "s68", "s69"
vTID, vL, vN, vG, vL16 = "v0", "v1", "v2", "v3", "v4"

AMP = math.sqrt(2.0 / 640)
QS = 20 ** -0.5 * math.log2(math.e)
SPIN = 1 << 16

XS, FI, EP, TB, TRS = 0, 81920, 133120, 145408, 157696
GA, GB, GLO, GHI = 164, 60, 144, 120
F_X, F_COL, F_KV, F_O, F_WQ, F_IMG, F_KMAX = 0, 1, 2, 3, 8, 9, 11
sSH, sREP, sTT = "s32", "s33", "s94"


class Gen:
    def __init__(self, stamps=False, opts=()):
        self.opts = set(opts)
        self.a = Asm()
        self.stamps = stamps
        self.olead = next((int(o[2:]) for o in self.opts if o.startswith("ol")), 10)
        self.cold = []
        self.hc = next((int(o[2:]) for o in self.opts if o.startswith("hc")), 0)
        self.jit = next((int(o[3:]) for o in self.opts if o.startswith("jit")), None)
        self.ft_early = {} if "ft0" in self.opts else ({17: 0, 19: 1} if "ft2" in self.opts else {17: 0, 18: 1, 19: 3})
        self.hk = next((int(o[2:]) for o in self.opts if o.startswith("hk")), 19)
        self.hk = None if self.hk > 19 else self.hk
        self.ho = next((int(o[2:]) for o in self.opts if o.startswith("ho")), None)
        self.wg = next((int(o[2:]) for o in self.opts if o.startswith("wg")), 5)
        self.probe = next((int(o[5:]) for o in self.opts if o.startswith("probe")), None)
        self.stw = next((int(o[3:]) for o in self.opts if o.startswith("stw")), 0)
        self.pub = next((int(o[3:]) for o in self.opts if o.startswith("pub")), 1)

    def stamp(self, k):
        if self.jit is not None:
            l, e = self.a.lab("Lj"), self.a.lab("Lj")
            self.a(f"""s_cselect_b32 s91, 1, 0
            s_mul_i32 s92, {sB}, {2654435761 % 65521}
            s_mul_i32 s93, {sWV}, {40503 if self.jit % 2 else 0}
            s_add_u32 s92, s92, s93
            s_mul_i32 s92, s92, {7919 + 104729 * (k + 1) * (self.jit + 1) % 99991}
            s_bfe_u32 s92, s92, 0x5000b
            s_cmp_lt_u32 s92, 24
            s_cbranch_scc1 {e}
            {l}:
            s_sleep 12
            s_sub_u32 s92, s92, 1
            s_cmp_gt_u32 s92, 23
            s_cbranch_scc1 {l}
            {e}:
            s_cmp_lg_u32 s91, 0""")
        if self.probe is not None and k == self.probe % 16:
            l = self.a.lab("Lpb")
            self.a(f"""s_cselect_b32 s91, 1, 0
            s_cmp_lg_u32 {sLAYER}, {self.probe//16}
            s_cbranch_scc1 {l}
            s_memrealtime s[98:99]
            s_waitcnt lgkmcnt(0)
            {l}:
            s_cmp_lg_u32 s91, 0""")
        if not self.stamps:
            return
        a = self.a
        a(f"""s_memrealtime s[90:91]
        s_memtime s[96:97]
        s_mov_b32 s93, m0
        s_mul_i32 s92, {sLAYER}, 16
        s_bitset0_b32 s92, 31
        s_waitcnt lgkmcnt(0)
        s_cselect_b32 s91, 1, 0
        s_add_u32 m0, s92, {k}
        s_cmp_lg_u32 s91, 0
        v_writelane_b32 v252, s90, m0
        v_writelane_b32 v253, s96, m0
        s_mov_b32 m0, s93""")

    def stamp_dump(self):
        if not self.stamps:
            return
        a = self.a
        l = a.lab("Lst")
        a(f"""s_cmp_lg_u32 {sWM}, {self.stw}
        s_cbranch_scc1 {l}
        s_mov_b64 exec, -1
        v_lshlrev_b32 v254, 3, {vL}
        s_getreg_b32 s90, hwreg(HW_REG_XCC_ID)
        s_getreg_b32 s91, hwreg(HW_REG_HW_ID)
        v_writelane_b32 v252, s90, 32
        v_writelane_b32 v253, s91, 32
        s_mov_b32 exec_hi, 1
        buffer_store_dwordx2 v[252:253], v254, {WS}, {sSTAMP} offen
        {l}:""")

    def fstamp(self, grp, k):
        if "fine" + grp in self.opts or self.jit is not None:
            self.stamp(k)

    def count(self, word):
        if "count" in self.opts:
            self.a(self.count_text(word))

    def count_text(self, word):
        if "count" not in self.opts:
            return ""
        return f"v_mov_b32 v254, 1\ns_mov_b64 exec, 1\nbuffer_atomic_add v254, {vL16}, {SDBG}, 0 offen offset:{4*word} sc1\ns_mov_b64 exec, -1"

    def if_lo(self, lab):
        self.a(f"s_cmp_lg_u32 {sHI}, 0\ns_cbranch_scc1 {lab}")

    def if_hi(self, lab):
        self.a(f"s_cmp_eq_u32 {sHI}, 0\ns_cbranch_scc1 {lab}")

    def prologue(self):
        a = self.a
        l0, l1, lp = a.lab("Lp"), a.lab("Lp"), a.lab("Lp")
        a(f"""s_cmp_ge_u32 {sB}, 256
        s_cbranch_scc1 Lend
        {"s_memrealtime s[100:101]" if self.probe is not None else ""}
        {"s_memrealtime s[98:99]" if self.probe is not None else ""}
        {"s_memrealtime s[90:91]" if self.stamps else ""}
        {"s_memtime s[96:97]" if self.stamps else ""}
        s_load_dwordx16 s[4:19], s[0:1], 0
        s_load_dwordx2 s[20:21], s[0:1], 64
        s_getpc_b64 s[72:73]
        Lpc:
        s_lshr_b32 {sR}, {sB}, 3
        v_lshlrev_b32 v6, 5, v0
        v_add_lshl_u32 v6, v6, {sR}, 7
        v_cmp_gt_u32 vcc, Lend-Lpc, v6
        s_and_saveexec_b64 s[74:75], vcc
        s_cbranch_execz {l0}
        v_mov_b32 v7, s73
        v_add_co_u32 v6, vcc, s72, v6
        v_addc_co_u32 v7, vcc, 0, v7, vcc
        global_load_dword v251, v[6:7], off
        {l0}:
        s_mov_b64 exec, s[74:75]
        v_lshrrev_b32 v5, 6, v0
        v_and_b32 {vL}, 63, v0
        v_readfirstlane_b32 {sWV}, v5
        v_and_b32 {vN}, 15, v0
        v_lshrrev_b32 {vG}, 4, {vL}
        s_and_b32 {sX}, {sB}, 7
        s_add_u32 s70, {sR}, {sX}
        s_and_b32 {sCB0}, s70, 7
        s_lshl_b32 s70, {sX}, 2
        s_lshr_b32 s71, {sR}, 3
        s_add_u32 {sTB0}, s70, s71
        s_lshr_b32 s80, {sTB0}, 1
        s_and_b32 s81, {sTB0}, 1
        s_mov_b32 s26, {XSZ}
        s_mov_b32 s27, 0x20000
        s_lshr_b32 {sHI}, {sWV}, 2
        s_cbranch_scc0 {l1}
        s_and_b32 s82, s80, 7
        s_lshl_b32 s82, s82, 5
        s_lshr_b32 s83, s80, 3
        s_lshl_b32 s83, s83, 1
        s_add_u32 s82, s82, s83
        s_add_u32 s82, s82, s81
        s_lshl_b32 s86, s82, 3
        s_add_u32 s84, {sWV}, {sCB0}
        s_and_b32 s84, s84, 7
        s_mov_b32 s85, 0""")
        self.dma_rows_setup(32 * 1280, 128 * 1280, "s84")
        a(f"""s_waitcnt lgkmcnt(0)
        s_mov_b64 s[24:25], s[4:5]
        {lp}:
        s_add_u32 s82, s86, s84
        s_mul_i32 s82, s82, 1280""")
        self.dma_rows_issue(SX, "s82", "s84")
        a(f"""s_xor_b32 s84, s84, 4
        s_xor_b32 s85, s85, 1
        s_cbranch_scc1 {lp}
        {l1}:
        v_lshlrev_b32 {vL16}, 4, {vL}
        v_mov_b32 v11, 0
        s_and_b32 s70, {sX}, 3
        s_lshl_b32 s70, s70, 1
        s_and_b32 s71, {sR}, 1
        s_add_u32 {sTT}, s70, s71
        s_lshr_b32 s70, {sX}, 2
        s_lshl_b32 {sT}, {sTT}, 1
        s_add_u32 {sT}, {sT}, s70
        s_lshl_b32 s70, s70, 4
        s_lshr_b32 s71, {sR}, 1
        s_add_u32 {sH}, s70, s71
        s_lshr_b32 {sHALF}, {sR}, 4
        s_and_b32 {sCB}, s71, 7
        s_mov_b32 {sLAYER}, 0
        s_and_b32 {sWM}, {sWV}, 3
        s_mov_b32 {sFL}, {FLAGS}
        s_and_b32 {sSH}, {sB}, 15
        s_lshl_b32 {sREP}, {sSH}, 11
        s_lshl_b32 {sSH}, {sSH}, 7
        s_mov_b32 s22, {WSEND}
        s_mov_b32 s23, 0x20000
        s_mov_b32 s30, {2048*642}
        s_mov_b32 s31, 0x20000
        s_mov_b32 s38, {640*3840}
        s_mov_b32 s39, 0x20000
        s_mov_b32 s42, {640*1280}
        s_mov_b32 s43, 0x20000
        s_mov_b32 s46, {XSZ}
        s_mov_b32 s47, 0x20000
        s_mov_b32 s50, 256
        s_mov_b32 s51, 0x20000
        s_waitcnt lgkmcnt(0)
        s_cmp_lt_u32 {sX}, 4
        s_cselect_b32 s28, s6, s8
        s_cselect_b32 s29, s7, s9
        s_mov_b64 s[36:37], s[12:13]
        s_mov_b64 s[40:41], s[14:15]
        s_mov_b64 s[44:45], s[16:17]
        s_mov_b64 s[48:49], s[18:19]""")
        if self.stamps:
            a(f"""s_lshl_b32 {sSTAMP}, {sB}, 1
            s_add_u32 {sSTAMP}, {sSTAMP}, {sHI}
            s_lshl_b32 {sSTAMP}, {sSTAMP}, 9
            s_add_u32 {sSTAMP}, {sSTAMP}, {STAMP}
            v_mov_b32 v252, -1
            v_mov_b32 v253, -1
            v_writelane_b32 v252, s90, 0
            v_writelane_b32 v253, s96, 0""")

    def poll(self, srd, vaddr, soff, nlanes, target, atomic=True):
        a = self.a
        lp, dn = a.lab("Lp"), a.lab("Ld")
        if atomic:
            ld = f"v_mov_b32 v6, 0\nbuffer_atomic_add v6, {vaddr}, {srd}, {soff} offen sc0 sc1"
        else:
            ld = f"buffer_load_dword v6, {vaddr}, {srd}, {soff} offen sc1"
        a(f"""s_mov_b32 s88, {SPIN}
        s_mov_b64 exec, {hex((1 << nlanes) - 1)}
        {lp}:
        {ld}
        s_sub_u32 s88, s88, 1
        s_cbranch_scc1 {dn}
        s_waitcnt vmcnt(0)
        v_cmpx_gt_u32 vcc, {target}, v6
        {f"s_cbranch_execnz {lp}" if atomic else f"s_cbranch_execz {dn}"}
        {"" if atomic else "s_sleep 12"}
        {"" if atomic else f"s_branch {lp}"}
        {dn}:
        s_waitcnt vmcnt(0)
        s_mov_b64 exec, -1""")

    def wait_lines(self, s_off, nlanes, target):
        self.a(f"v_lshlrev_b32 v5, 7, {vL}")
        self.poll(WS, "v5", s_off, nlanes, target)

    def push(self, s_off, shift, wave=None, n=16):
        a = self.a
        l = a.lab("Lsg")
        if wave is not None:
            a(f"s_cmp_lg_u32 {sWV}, {wave}\ns_cbranch_scc1 {l}")
        a(f"""v_lshlrev_b32 v5, {shift}, {vL}
        v_mov_b32 v6, 1
        s_bfm_b64 exec, {n}, 0
        buffer_atomic_add v6, v5, {WS}, {s_off} offen sc1
        s_mov_b64 exec, -1
        {l}:""")

    def gen_F(self, s_ct):
        a = self.a
        a(f"""s_mov_b32 s72, {s_ct}
        s_mul_i32 s73, {sCB0}, 80
        s_lshl_b32 s74, s72, 4
        s_add_u32 s73, s73, s74
        v_add_u32 v12, s73, {vN}
        v_lshrrev_b32 v14, 1, v12
        v_and_b32 v15, 1, v12
        v_cmp_ne_u32 vcc, 0, v12
        v_cndmask_b32 v14, 0x140, v14, vcc
        v_cmp_ne_u32 vcc, 1, v12
        v_cndmask_b32 v15, 0, v15, vcc
        v_cvt_f32_u32 v14, v14
        v_cvt_f32_u32 v15, v15
        v_lshlrev_b32 v13, 3, {vG}
        v_cvt_f32_u32 v13, v13
        v_mul_f32 v10, {fbits(1/640)}, v14
        v_mul_f32 v14, {fbits(1/20)}, v14
        v_mul_f32 v15, 0.25, v15
        v_fma_f32 v16, v13, v10, v15
        s_lshl_b32 s72, s72, 10
        s_add_u32 s72, s72, {FI}
        v_add_u32 v12, s72, {vL16}""".replace("0.25", fbits(0.25)))
        for e in range(1, 8):
            a(f"v_add_f32 v{16+e}, v{15+e}, v10")
        for h in range(4):
            a(f"v_pk_add_f32 {vr(24+2*h,2)}, {vr(16+2*h,2)}, v[14:15] op_sel_hi:[1,0]")
        a("v_cos_f32 v14, v14")
        for e in range(16):
            a(f"v_cos_f32 v{16+e}, v{16+e}")
        a("v_add_f32 v14, v14, v14")
        for ks in range(10):
            x, y, p = 16 + 8 * (ks % 2), 16 + 8 * ((ks + 1) % 2), 32 + 4 * (ks % 2)
            if ks >= 2:
                for h in range(4):
                    a(f"v_pk_fma_f32 {vr(x+2*h,2)}, {vr(y+2*h,2)}, v[14:15], {vr(x+2*h,2)} "
                      f"op_sel_hi:[1,0,1] neg_lo:[0,0,1] neg_hi:[0,0,1]")
            for h in range(4):
                a(f"v_cvt_pk_bf16_f32 v{p+h}, v{x+2*h}, v{x+2*h+1}")
            a(f"ds_write_b128 v12, {vr(p,4)} offset:{5120*ks}")

    def gcore(self, base, nks, dual, swap, init, await_a=None, hook=None, order=None, feed=None):
        a = self.a
        a(f"v_add_u32 v6, {base}, {vL16}")
        if nks > 12:
            a(f"v_add_u32 v7, {base+61440}, {vL16}")

        order = list(order or range(nks))

        def rd(j, ct):
            ks = order[j]
            reg, off = ("v6", ks * 5120) if ks < 12 else ("v7", (ks - 12) * 5120)
            return f"ds_read_b128 {vr(GB+20*(j%3)+4*ct,4)}, {reg} offset:{off+ct*1024}"

        def mf(acc, ka, j, ct, first):
            x, y = vr(GA + 4 * ka, 4), vr(GB + 20 * (j % 3) + 4 * ct, 4)
            if swap:
                x, y = y, x
            d = vr(acc + 4 * ct, 4)
            return f"v_mfma_f32_16x16x32_bf16 {d}, {x}, {y}, {'0' if first else d}"
        n = len(order)
        for j in range(2):
            for ct in range(5):
                a(rd(j, ct))
        for j, ks in enumerate(order):
            w = f"lgkmcnt({5 if j + 1 < n else 0})"
            if await_a:
                w = f"vmcnt({await_a(ks)}) " + w
            a("s_waitcnt " + w)
            if hook and hook[0] == ks:
                hook[1]()
            for ct in range(5):
                a(mf(GLO, ks, j, ct, j == 0 and not init))
                if ct == 0 and feed:
                    feed(ks)
                if j + 2 < n:
                    a(rd(j + 2, ct))
                if dual:
                    a(mf(GHI, ks + 10, j, ct, j == 0))

    def dual_setup(self, s_cb):
        a = self.a
        a(f"""v_mov_b32 v52, {fbits(AMP)}
        v_lshlrev_b32 v5, 30, {vN}
        v_and_b32 v5, 0x80000000, v5
        v_xor_b32 v54, v5, v52
        s_cmp_eq_u32 {s_cb}, 0
        s_cselect_b32 s72, 2, 0
        v_cmp_le_u32 vcc, s72, {vN}
        v_cndmask_b32 v56, {fbits(AMP/math.sqrt(2))}, v52, vcc
        v_xor_b32 v58, v5, v56""")

    def ep_setup(self):
        a = self.a
        a(f"""v_mul_u32_u24 v5, 144, {vN}
        v_lshl_add_u32 v5, {vG}, 3, v5
        s_lshl_b32 s72, {sWM}, 5
        s_add_u32 s72, s72, {EP}
        v_add_u32 v140, s72, v5""")

    def ep_write(self, dual):
        a = self.a
        for ct in range(5):
            if dual:
                p, q = (56, 58) if ct == 0 else (52, 54)
                for h in range(2):
                    lo, hi = vr(GLO + 4 * ct + 2 * h, 2), vr(GHI + 4 * ct + 2 * h, 2)
                    a(f"v_pk_mul_f32 {lo}, {lo}, {vr(p,2)} op_sel_hi:[1,0]")
                    a(f"v_pk_fma_f32 {lo}, {hi}, {vr(q,2)}, {lo} op_sel_hi:[1,0,1]")
            a(f"v_cvt_pk_bf16_f32 v{GB+2*ct}, v{GLO+4*ct}, v{GLO+4*ct+1}")
            a(f"v_cvt_pk_bf16_f32 v{GB+1+2*ct}, v{GLO+4*ct+2}, v{GLO+4*ct+3}")
            self.clean(GB + 2 * ct, 2)
            a(f"ds_write_b64 v140, {vr(GB+2*ct,2)} offset:{ct*16*144}")

    def ss_store(self, s_cb, s_ss):
        a = self.a
        R = GB + 16
        a(f"""s_cmp_eq_u32 {s_cb}, 0
        s_cselect_b32 s72, 1, 99
        v_cmp_ne_u32 vcc, s72, {vN}""")
        for h in range(2):
            x = vr(GLO + 4 + 2 * h, 2)
            a(f"v_pk_mul_f32 {vr(R+2*h,2)}, {x}, {x}")
        for r in range(4):
            a(f"v_cndmask_b32 v{GLO+r}, 0, v{GLO+r}, vcc")
        for ct in (2, 3, 4, 0):
            for h in range(2):
                x = vr(GLO + 4 * ct + 2 * h, 2)
                a(f"v_pk_fma_f32 {vr(R+2*h,2)}, {x}, {x}, {vr(R+2*h,2)}")
        for sh in (8, 4, 2, 1):
            for r in range(4):
                a(f"v_add_f32 v{R+r}, v{R+r}, v{R+r} row_ror:{sh} row_mask:0xf bank_mask:0xf")
        a(f"v_cvt_pk_bf16_f32 v{R}, v{R}, v{R+1}\nv_cvt_pk_bf16_f32 v{R+1}, v{R+2}, v{R+3}\nv_lshlrev_b32 v5, 3, {vG}")
        self.clean(R, 2)
        a(f"""s_lshl_b32 s72, {sWM}, 5
        s_add_u32 s72, s72, {s_ss}
        s_mov_b32 exec_lo, 0x00010001
        s_mov_b32 exec_hi, 0x00010001
        buffer_store_dwordx2 {vr(R,2)}, v5, {WS}, s72 offen sc1
        s_mov_b64 exec, -1""")

    def x_store_setup(self):
        a = self.a
        a(f"""s_movk_i32 s79, 144
        v_lshrrev_b32 v5, 3, {vTID}
        v_and_b32 v6, 7, {vTID}
        v_lshlrev_b32 v6, 4, v6
        v_mad_u32_u24 v141, v5, s79, v6
        v_lshl_add_u32 v142, v5, 8, v6
        v_add_u32 v141, {EP}, v141""")

    def x_store(self, s_dst):
        a = self.a
        l1 = a.lab("Le")
        R = GB + 24
        for i in range(3):
            a(f"ds_read_b128 {vr(R+4*i,4)}, v141 offset:{32*144*i}")
        a(f"s_add_u32 s72, {s_dst}, 8192\ns_add_u32 s73, {s_dst}, 16384")
        a(f"s_waitcnt lgkmcnt(2)\nbuffer_store_dwordx4 {vr(R,4)}, v142, {WS}, {s_dst} offen sc1")
        a(f"s_waitcnt lgkmcnt(1)\nbuffer_store_dwordx4 {vr(R+4,4)}, v142, {WS}, s72 offen sc1")
        a(f"""s_cmp_gt_u32 {sWV}, 1
        s_waitcnt lgkmcnt(0)
        s_cbranch_scc1 {l1}
        buffer_store_dwordx4 {vr(R+8,4)}, v142, {WS}, s73 offen sc1
        {l1}:""")

    def dma_rows(self, srd, rg, s_rh, s_base, s_set):
        self.dma_rows_setup(rg, s_rh, s_set)
        self.dma_rows_issue(srd, s_base, s_set)

    def dma_rows_setup(self, rg, s_rh, s_set):
        a = self.a
        a(f"""s_and_b32 s72, {s_set}, 1
        s_lshl_b32 s72, s72, 3
        v_add_u32 v5, s72, {vG}
        v_xor_b32 v5, v5, {vN}
        v_mul_u32_u24 v6, {rg}, {vG}
        v_lshl_add_u32 v8, v5, 4, v6
        v_xor_b32 v5, 4, v5
        v_lshl_add_u32 v9, v5, 4, v6
        v_add_u32 v9, {s_rh}, v9""")

    def dma_rows_issue(self, srd, s_base, s_set):
        a = self.a
        a(f"s_lshl_b32 s72, {s_set}, 11")
        for blk in range(5):
            for h in range(2):
                a(f"s_add_u32 m0, s72, {XS + blk*(16384-256) + h*1024}")
                a(f"buffer_load_dwordx4 v{8+h}, {srd}, {s_base} offen offset:{blk*256} lds")

    def read_rows_frags(self):
        a = self.a
        a(f"""s_lshl_b32 s72, {sWM}, 12
        v_xor_b32 v5, {vG}, {vN}
        v_lshlrev_b32 v5, 4, v5
        v_lshl_add_u32 v5, {vN}, 8, v5
        v_add_u32 v60, s72, v5""")
        for c in range(1, 4):
            a(f"v_xor_b32 v{60+c}, {64*c}, v60")
        for ks in range(20):
            if ks == 16:
                for c in range(4):
                    a(f"v_add_u32 v{64+c}, 0x10000, v{60+c}")
            if ks < 16:
                a(f"ds_read_b128 {vr(GA+4*ks,4)}, v{60+ks%4} offset:{XS+(ks//4)*16384}")
            else:
                a(f"ds_read_b128 {vr(GA+4*ks,4)}, v{64+ks%4} offset:{XS}")

    def wf_setup(self):
        a = self.a
        a(f"""s_lshl_b32 s19, {sX}, 5
        s_add_u32 s19, s19, {sR}
        s_bfe_u32 s72, s19, 0x20005
        s_and_b32 s76, s72, 1
        s_lshl_b32 s76, s76, 5
        s_and_b32 s73, s19, 16
        s_add_u32 s76, s76, s73
        s_lshr_b32 s73, s72, 1
        s_add_u32 s76, s76, s73
        s_and_b32 s73, s19, 12
        s_lshl_b32 s73, s73, 7
        s_add_u32 s76, s76, s73
        s_mul_i32 s76, s76, 642
        s_and_b32 s75, s19, 3
        s_mul_i32 s75, s75, 160
        s_lshl_b32 s73, {sWM}, 4
        s_add_u32 s13, s75, s73
        s_and_b32 s73, s72, 2
        s_add_u32 s13, s13, s73
        s_add_u32 s76, s76, s13
        v_lshrrev_b32 v5, 3, {vL}
        v_and_b32 v6, 7, {vL}
        v_lshl_add_u32 v5, v6, 5, v5
        v_mul_u32_u24 v244, 1284, v5
        s_mov_b32 s18, s76""")

    def wf_loads(self):
        a = self.a
        skip = a.lab("Lw")
        a(f"""buffer_load_dwordx4 v[164:167], v244, {SWF}, s18 offen
        buffer_load_dwordx4 v[168:171], v244, {SWF}, s18 offen offset:64
        s_cmp_gt_u32 {sWM}, 1
        s_cbranch_scc1 {skip}
        buffer_load_dwordx4 v[172:175], v244, {SWF}, s18 offen offset:128
        s_cmp_lg_u32 s13, 0
        s_cbranch_scc1 {skip}
        buffer_load_ushort v176, v244, {SWF}, s18 offen offset:640
        {skip}:""")

    def wf_setup2(self):
        a = self.a
        a(f"""s_bfe_u32 s72, s19, 0x20005
        s_lshl_b32 s72, s72, 11
        s_lshr_b32 s73, s19, 7
        s_lshl_b32 s73, s73, 10
        s_add_u32 s72, s72, s73
        s_bfe_u32 s73, s19, 0x20002
        s_lshl_b32 s73, s73, 8
        s_add_u32 s72, s72, s73
        s_bfe_u32 s73, s19, 0x10004
        s_lshl_b32 s73, s73, 7
        s_add_u32 s72, s72, s73
        s_add_u32 s72, s72, {WF}
        s_lshl_b32 s74, {sWM}, 10
        s_add_u32 s74, s74, {TRS}
        v_lshrrev_b32 v5, 3, {vL}
        v_and_b32 v6, 7, {vL}
        v_xor_b32 v7, v5, v6
        v_lshl_add_u32 v7, v7, 4, s74
        v_lshl_add_u32 v245, v6, 7, v7
        v_lshl_add_u32 v250, v5, 7, v7
        v_add_u32 v246, s74, {vL16}
        v_lshlrev_b32 v247, 4, v6
        s_lshr_b32 s73, s13, 1
        v_add_u32 v5, s73, v5
        v_cmp_ne_u32 vcc, 0x100, v5
        v_lshl_add_u32 v247, v5, 13, v247
        v_subrev_u32 v249, {320*8192}, v247
        v_cndmask_b32 v249, v249, v247, vcc
        v_add_u32 v249, {64*8192}, v249""")
        a(f"""v_bfe_u32 v5, {vL}, 1, 1
        v_lshl_add_u32 v5, {vG}, 1, v5
        v_bfe_u32 v6, {vL}, 2, 2
        v_lshl_add_u32 v5, v5, 3, v6
        v_and_b32 v6, 1, {vL}
        v_lshlrev_b32 v6, 3, v6
        v_lshl_add_u32 v5, v5, 4, v6
        v_add_u32 v248, s74, v5
        s_mov_b32 s17, s72""")

    def wf_stores(self):
        a = self.a
        nop = a.lab("Lw")
        a(f"""s_cmp_lg_u32 s13, 0
        s_cbranch_scc1 {nop}
        v_and_b32 v164, 0xffff0000, v164
        v_or_b32 v164, v164, v176
        {nop}:""")
        for rnd in range(3):
            a(f"ds_write_b128 v246, {vr(164+4*rnd,4)}")
            for i in range(2):
                a(f"ds_read_b64_tr_b16 {vr(164+4*rnd+2*i,2)}, v248 offset:{64*i}")
        for rnd in range(3):
            a(f"s_waitcnt lgkmcnt({(6, 5, 4)[rnd]})")
            a(f"ds_write_b128 v245, {vr(164+4*rnd,4)}")
            a(f"ds_read_b128 {vr(164+4*rnd,4)}, v250")
        skip = a.lab("Lw")
        a("s_waitcnt lgkmcnt(0)")
        for rnd in range(3):
            if rnd == 2:
                a(f"s_cmp_gt_u32 {sWM}, 1\ns_cbranch_scc1 {skip}")
            a(f"buffer_store_dwordx4 {vr(164+4*rnd,4)}, {'v249' if rnd == 2 else 'v247'}, {WS}, {'s74' if rnd == 1 else 's17'} offen sc1")
            a(f"s_add_u32 s74, s17, {32*8192}")
        a(f"{skip}:")

    def wq_setup(self):
        a = self.a
        a(f"""v_lshrrev_b32 v5, 3, {vL}
        v_bfe_u32 v6, {vL}, 4, 1
        s_and_b32 s72, {sWV}, 1
        s_lshl_b32 s72, s72, 1
        v_or_b32 v6, s72, v6
        v_lshlrev_b32 v6, 1, v6
        v_and_b32 v7, 7, {vL}
        v_xor_b32 v6, v6, v7
        v_mul_u32_u24 v5, 3840, v5
        v_lshl_add_u32 v58, v6, 4, v5
        s_mul_i32 s72, {sWM}, {8*3840}
        s_lshl_b32 s73, {sTB0}, 7
        s_add_u32 s72, s72, s73
        s_lshl_b32 s73, {sWM}, 10""")

    def wq_dma(self, first, last):
        a = self.a
        for it in range(first, last):
            a(f"s_add_u32 m0, s73, {XS + it*4096}")
            a(f"buffer_load_dwordx4 v58, {SWQ}, s72 offen lds")
            a(f"s_add_u32 s72, s72, {32*3840}")

    def arrive(self, last, s_off, slot=0):
        a = self.a
        l = a.lab("Lar")
        a(f"""v_mov_b32 v5, {TRS+4096+4*slot}
        v_mov_b32 v6, 1
        s_mov_b64 exec, 1
        ds_add_rtn_u32 v7, v5, v6
        s_waitcnt lgkmcnt(0)
        v_cmp_eq_u32 vcc, {last}, v7
        s_mov_b64 exec, -1
        s_cbranch_vccz {l}""")
        self.push(s_off, 11)
        a(f"{l}:")

    def fill_cols(self, s0, s1, r):
        a = self.a
        for i in range(4):
            a(f"v_mov_b32 v{r+i}, -1")
        for so in (s0, s1):
            for i in range(2):
                a(f"buffer_store_dwordx4 {vr(r,4)}, v11, {WS}, {so} offen offset:{512*i} sc1")

    def clean(self, r, n):
        for i in range(n):
            self.a(f"v_min_u32 v{r+i}, -2, v{r+i}")

    def umax(self, dst, regs):
        out, regs = [], list(regs)
        out.append(f"v_max3_u32 v{dst}, v{regs[0]}, v{regs[1]}, v{regs[2]}")
        regs = regs[3:]
        while regs:
            if len(regs) == 1:
                out.append(f"v_max_u32 v{dst}, v{dst}, v{regs[0]}")
            else:
                out.append(f"v_max3_u32 v{dst}, v{dst}, v{regs[0]}, v{regs[1]}")
            regs = regs[2:]
        return out

    def half_sync(self, slot, add=True, addr=TRS + 4096):
        a = self.a
        lp = a.lab("Lhs")
        a(f"""v_mov_b32 v5, {addr+4*slot}
        v_mov_b32 v6, 1
        s_mov_b64 exec, 1
        {"ds_add_u32 v5, v6" if add else ""}
        {lp}:
        ds_read_b32 v6, v5
        s_waitcnt lgkmcnt(0)
        v_cmp_gt_u32 vcc, 4, v6
        s_cbranch_vccnz {lp}
        s_mov_b64 exec, -1""")

    def phase0(self):
        a = self.a
        z0, z1, z2, z3, z4, z5, l1, l2, l3, l5, l6, l7, l8, l9, l10 = (a.lab("Lq") for _ in range(15))
        dest = f"""s_mul_i32 s84, s80, 163840
        s_mul_i32 s85, {sCB0}, 20480
        s_add_u32 s84, s84, s85
        s_lshl_b32 s85, s81, 7
        s_add_u32 s84, s84, s85
        s_add_u32 s84, s84, {X0}
        s_lshl_b32 s85, s80, 11
        s_lshl_b32 s86, {sCB0}, 8
        s_add_u32 s85, s85, s86
        s_lshl_b32 s86, s81, 7
        s_add_u32 s85, s85, s86
        s_add_u32 s85, s85, {SS0}"""
        self.if_hi(z0)
        self.fstamp("0", 14)
        a(f"""s_mul_i32 s72, {sCB0}, 80
        s_mul_i32 s73, {sWM}, 20
        s_add_u32 s72, s72, s73
        s_mul_i32 s72, s72, 3840
        s_lshl_b32 s73, {sTB0}, 7
        s_add_u32 s72, s72, s73
        v_mul_u32_u24 v5, 3840, {vL}
        s_mov_b64 exec, 0xfffff
        s_waitcnt vmcnt(6)
        buffer_load_dword v251, v5, {SWQ}, s72 offen
        s_mov_b64 exec, -1""")
        self.fstamp("0", 15)
        a(f"""s_branch {l3}
        {z0}:
        s_cmp_lg_u32 {sWV}, 3
        s_cbranch_scc1 {z4}
        {dest}
        s_lshl_b32 s70, {sB}, 7
        v_lshrrev_b32 v5, 2, {vL}
        v_and_b32 v6, 3, {vL}
        v_lshlrev_b32 v6, 4, v6
        v_lshl_add_u32 v5, v5, 15, v6
        v_mov_b32 v60, 0
        v_mov_b32 v61, 0
        v_mov_b32 v62, 0
        v_mov_b32 v63, 0
        v_mov_b32 v6, {TRS+4096}
        s_lshl_b32 s71, {sB}, 10
        s_add_u32 s71, s71, {SQ0}
        buffer_store_dwordx4 v[60:63], {vL16}, {WS}, s71 offen sc1
        s_bfm_b64 exec, {4*NFLAG}, 0
        buffer_store_dwordx4 v[60:63], v5, {WS}, s70 offen sc1
        s_lshl_b32 s71, {sB}, 7
        s_add_u32 s71, s71, {SS0+65536}
        v_mov_b32 v64, -1
        v_mov_b32 v65, -1
        v_mov_b32 v66, -1
        v_mov_b32 v67, -1
        s_mov_b64 exec, 0xff
        buffer_store_dwordx4 v[64:67], {vL16}, {WS}, s71 offen sc1
        buffer_store_dwordx4 v[64:67], {vL16}, {WS}, s85 offen sc1
        ds_write_b128 v6, v[60:63]
        ds_write_b128 v6, v[60:63] offset:16
        s_mov_b64 exec, -1
        {z4}:""")
        a(f"s_mov_b32 s15, {sWV}\n{z5}:")
        self.gen_F("s15")
        a(f"""s_add_u32 s15, s15, 4
        s_cmp_eq_u32 s15, 4
        s_cbranch_scc1 {z5}
        s_cmp_ge_u32 {sR}, 20
        s_cbranch_scc1 {l9}
        s_sub_u32 s15, {sWV}, 1
        s_cmp_ge_u32 s15, 2
        s_cbranch_scc1 {l9}""")
        self.col_tables("s15", 2)
        a(f"""{l9}:
        {dest}
        """)
        self.fstamp("0", 15)
        a(f"""s_cmp_lg_u32 {sWV}, 3
        s_cbranch_scc1 {z3}
        s_and_b32 s70, {sB}, 1
        s_lshl_b32 s70, s70, 7
        v_mov_b32 v60, 0
        v_mov_b32 v61, 1
        s_mov_b64 exec, 1
        s_waitcnt vmcnt(0)
        buffer_atomic_add v61, v60, {SDBG}, s70 offen sc1
        s_mov_b64 exec, -1
        {z3}:
        s_waitcnt lgkmcnt(0)
        s_barrier""")
        self.stamp(1)
        self.read_rows_frags()
        self.dual_setup(sCB0)
        self.ep_setup()
        self.x_store_setup()
        a("s_waitcnt lgkmcnt(0)\ns_barrier")
        self.fstamp("0", 16)
        a(f"v_lshlrev_b32 v143, 7, {vL}\ns_movk_i32 s89, 128")
        self.gcore(FI, 10, True, False, False)
        self.fstamp("0", 17)
        self.ep_write(True)
        self.fstamp("0", 18)
        self.half_sync(1)
        self.x_store("s84")
        self.ss_store(sCB0, "s85")
        self.fstamp("0", 19)
        self.fstamp("1", 19)
        self.wf_setup()
        lw, lh = a.lab("Lq"), a.lab("Lq")
        lk = a.lab("Lq")
        a(f"s_cmp_lg_u32 {sWV}, 3\ns_cbranch_scc1 {lk}\ns_mov_b64 exec, 3\nbuffer_load_dword v251, v143, {SDBG}, 0 offen sc1\ns_mov_b64 exec, -1\n{lk}:")
        self.fstamp("1", 14)
        self.wf_loads()
        self.wf_setup2()
        self.fstamp("1", 15)
        a(f"s_cmp_lt_u32 {sWV}, 2\ns_cbranch_scc1 {lw}\ns_waitcnt vmcnt(2)\n{lw}:\ns_waitcnt vmcnt(3)")
        a(f"s_cmp_lg_u32 {sWV}, 3\ns_cbranch_scc1 {lh}\ns_mov_b64 exec, 3\nv_cmp_gt_u32 vcc, s89, v251\ns_mov_b64 exec, -1\ns_cbranch_vccz {lh}")
        self.poll(SDBG, "v143", "0", 2, "s89", atomic=False)
        a(f"{lh}:")
        self.fstamp("1", 16)
        self.arrive(3, sSH)
        self.stamp(2)
        self.half_sync(3)
        self.col_early()
        a("s_waitcnt vmcnt(0)")
        self.fstamp("1", 17)
        self.wf_stores()
        self.stamp(3)
        a(f"s_branch {l8}\n{l3}:")
        a("s_waitcnt vmcnt(1)\ns_barrier")
        self.stamp(1)
        self.wf_setup()
        self.wq_setup()
        a("s_barrier")
        self.wq_dma(0, 20)
        lt, lu = a.lab("Lq"), a.lab("Lq")
        a(f"""s_cmp_eq_u32 {sWM}, 3
        s_cbranch_scc1 {lt}
        s_mul_i32 s73, {sWM}, 62
        s_add_u32 s73, s73, s18
        s_andn2_b32 s73, s73, 3
        buffer_load_dword v251, v244, {SWF}, s73 offen
        s_branch {lu}
        {lt}:
        s_mul_i32 s72, {sB}, 3200
        v_lshlrev_b32 v5, 7, {vL}
        s_bfm_b64 exec, 25, 0
        buffer_load_dword v251, v5, {SWO}, s72 offen
        s_mov_b64 exec, -1
        {lu}:""")
        self.fstamp("0", 17)
        self.job_wq_setup()
        a("s_mov_b32 s78, s72")
        self.col_early()
        a("s_mov_b32 s72, s78")
        a("s_waitcnt vmcnt(1)")
        self.fstamp("0", 18)
        self.half_sync(2)
        self.stamp(2)
        self.job_wq()
        self.half_sync(3, add=False)
        self.stamp(3)
        a(f"{l8}:")

    def job_wq_setup(self):
        a = self.a
        a(f"""v_bfe_u32 v5, {vL}, 2, 2
        v_lshl_add_u32 v6, {vG}, 3, v5
        v_lshlrev_b32 v6, 7, v6
        v_lshrrev_b32 v5, 1, v5
        v_and_b32 v7, 1, {vG}
        v_lshl_add_u32 v5, v7, 1, v5
        v_xor_b32 v5, {sWM}, v5
        v_lshl_add_u32 v6, v5, 5, v6
        v_and_b32 v5, 3, {vL}
        v_lshl_add_u32 v56, v5, 3, v6
        v_add_u32 v57, 0xa000, v56""")
        a(f"""s_lshl_b32 s72, {sTB0}, 6
        s_lshl_b32 s73, {sWM}, 4
        s_add_u32 s72, s72, s73
        v_add_u32 v5, s72, {vN}
        s_cmp_ge_u32 {sTB0}, 10
        s_cselect_b32 s74, 1, 0
        s_cmp_ge_u32 {sTB0}, 20
        s_cselect_b32 s74, 2, s74
        s_mul_i32 s73, s74, 640
        v_subrev_u32 v5, s73, v5
        v_mul_u32_u24 v6, 3277, v5
        v_lshrrev_b32 v6, 16, v6
        v_mul_u32_u24 v7, 20, v6
        v_sub_u32 v7, v5, v7
        s_mov_b32 s73, 81920
        v_mul_lo_u32 v52, v6, s73
        s_lshl_b32 s75, s74, 4
        v_add_u32 v53, s75, v7
        s_lshl_b32 s75, s74, 2
        s_add_u32 s75, s75, 48
        v_add_u32 v55, s75, v7
        v_cmp_gt_u32 vcc, 16, v7
        v_cndmask_b32 v53, v55, v53, vcc
        v_add_u32 v55, 72, v7
        s_cmp_eq_u32 s74, 2
        s_cselect_b64 vcc, -1, 0
        v_cndmask_b32 v53, v53, v55, vcc
        v_lshl_add_u32 v52, v53, 4, v52
        v_subrev_u32 v5, 640, v5
        v_lshrrev_b32 v6, 2, v5
        v_mul_lo_u32 v6, v6, s73
        v_and_b32 v5, 3, v5
        v_lshl_add_u32 v6, v5, 4, v6
        v_add_u32 v6, {92*16}, v6
        s_cmp_ge_u32 {sTB0}, 30
        s_cselect_b64 vcc, -1, 0
        v_cndmask_b32 v52, v52, v6, vcc
        v_lshrrev_b32 v5, 1, {vG}
        v_lshl_add_u32 v52, v5, 9, v52
        v_and_b32 v5, 1, {vG}
        v_lshl_add_u32 v52, v5, 11, v52
        s_cmp_eq_u32 s74, 0
        s_cselect_b32 s75, {fbits(AMP*QS)}, s87
        s_mul_i32 s72, {sCB0}, 10240
        s_add_u32 s72, s72, {WQ}
        v_mov_b32 v54, s75""".replace("s_cmp_eq_u32 s74, 0", f"s_mov_b32 s87, {fbits(AMP)}\ns_cmp_eq_u32 s74, 0"))

    def job_wq(self):
        a = self.a
        end = a.lab("Lb")
        for ks in range(20):
            for i in range(2):
                reg, off = ("v56", ks * 4096) if ks < 10 else ("v57", (ks - 10) * 4096)
                a(f"ds_read_b64_tr_b16 {vr(GA+4*ks+2*i,2)}, {reg} offset:{XS+off+i*512}")
        a(f"v_mov_b32 v5, {TRS+4096+16}\nv_mov_b32 v6, 1\ns_mov_b64 exec, 1\nds_add_u32 v5, v6\ns_mov_b64 exec, -1")
        pad, st = a.lab("Lb"), a.lab("Lb")
        a(f"s_cmp_ge_u32 {sTB0}, 30\ns_cbranch_scc1 {pad}")
        self.cold.append("\n".join([f"{pad}:"] + [f"v_mov_b32 v{GB+i}, 0" for i in range(12)] + [f"s_branch {st}"]))
        self.gcore(FI, 10, True, True, False)
        for ct in range(5):
            lo, hi = GLO + 4 * ct, GHI + 4 * ct
            a(f"v_pk_add_f32 {vr(lo,2)}, {vr(lo,2)}, {vr(hi,2)}")
            a(f"v_pk_add_f32 {vr(lo+2,2)}, {vr(lo+2,2)}, {vr(hi+2,2)} neg_lo:[0,1] neg_hi:[0,1]")
            for h in range(2):
                a(f"v_pk_mul_f32 {vr(lo+2*h,2)}, {vr(lo+2*h,2)}, v[54:55] op_sel_hi:[1,0]")
        a(f"""s_cmp_eq_u32 {sCB0}, 0
        s_cselect_b32 s73, 16, 0
        v_cmp_le_u32 vcc, s73, {vL}
        v_mul_f32 v5, {fbits(1/math.sqrt(2))}, v{GLO}
        v_cndmask_b32 v{GLO}, v5, v{GLO}, vcc
        v_cndmask_b32 v{GLO+1}, 0, v{GLO+1}, vcc""")
        for ct in range(5):
            a(f"v_cvt_pk_bf16_f32 v{GB+2*ct}, v{GLO+4*ct}, v{GLO+4*ct+1}")
            a(f"v_cvt_pk_bf16_f32 v{GB+1+2*ct}, v{GLO+4*ct+2}, v{GLO+4*ct+3}")
        a(f"{st}:")
        for p in range(3):
            a(f"v_permlane16_swap_b32 v{GB+4*p}, v{GB+2+4*p}")
            a(f"v_permlane16_swap_b32 v{GB+1+4*p}, v{GB+3+4*p}")
            if p == 2:
                a("s_mov_b32 exec_lo, 0xffff\ns_mov_b32 exec_hi, 0xffff")
            a(f"buffer_store_dwordx4 {vr(GB+4*p,4)}, v52, {WS}, s72 offen sc1")
            a("s_add_u32 s72, s72, 4096")
        a(f"s_mov_b64 exec, -1\n{end}:")

    def job_images(self):
        a = self.a
        l3 = a.lab("Lc")
        a(f"""s_sub_u32 s80, {sR}, 20
        s_lshl_b32 s80, s80, 3
        s_add_u32 s80, s80, {sX}
        s_lshl_b32 s80, s80, 3
        s_add_u32 s80, s80, {sWV}
        s_mov_b32 s77, {fbits(1/640)}
        {l3}:
        s_mul_i32 s81, s80, 656
        s_lshr_b32 s81, s81, 16
        s_mul_i32 s82, s81, 100
        s_sub_u32 s82, s80, s82
        s_mul_i32 s83, s82, 205
        s_lshr_b32 s83, s83, 10
        s_mul_i32 s84, s83, 5
        s_sub_u32 s84, s82, s84
        s_mul_i32 s81, s81, 80
        s_lshl_b32 s84, s84, 4
        s_add_u32 s81, s81, s84
        v_add_u32 v8, s81, {vN}
        s_mul_i32 s84, s83, 40
        s_sub_u32 s85, s83, 16
        s_mul_i32 s85, s85, 160
        s_add_u32 s85, s85, 16
        s_cmp_lt_u32 s83, 16
        s_cselect_b32 s84, s84, s85
        s_cselect_b32 s85, 8, 20
        s_cselect_b64 vcc, -1, 0
        v_lshrrev_b32 v5, 1, {vG}
        v_mul_u32_u24 v5, 20, v5
        v_and_b32 v6, 1, {vG}
        v_lshl_add_u32 v5, v6, 2, v5
        v_mul_u32_u24 v6, 40, {vG}
        v_cndmask_b32 v5, v6, v5, vcc
        v_mul_u32_u24 v5, 1280, v5
        v_lshl_add_u32 v5, v8, 1, v5
        s_mul_i32 s84, s84, 1280
        s_mul_i32 s85, s85, 1280
        s_add_u32 s85, s85, s84""")
        for e in range(8):
            a(f"buffer_load_ushort v{32+e}, v5, {SWO}, {'s84' if e < 4 else 's85'} offen offset:{1280*(e%4)}")
        a(f"""v_and_b32 v5, 1, {vG}
        v_lshrrev_b32 v6, 1, {vG}
        v_lshlrev_b32 v5, 3, v5
        v_lshl_add_u32 v5, v6, 2, v5
        s_lshl_b32 s84, s83, 4
        v_add_u32 v5, s84, v5
        v_cmp_ne_u32 vcc, 0, v5
        v_cndmask_b32 v12, 0x140, v5, vcc""")
        for e in range(1, 4):
            a(f"v_add_u32 v{12+e}, {e}, v5")
        for e in range(4):
            a(f"v_mul_u32_u24 v{12+e}, v{12+e}, v8")
            a(f"v_cvt_f32_u32 v{12+e}, v{12+e}")
            a(f"v_mul_f32 v{12+e}, s77, v{12+e}")
            a(f"v_fract_f32 v{12+e}, v{12+e}")
            a(f"v_cos_f32 v{16+2*e}, v{12+e}")
            a(f"v_sin_f32 v{17+2*e}, -v{12+e}")
        a(f"""v_mul_f32 v5, {fbits(1/math.sqrt(2))}, v16
        v_cndmask_b32 v16, v5, v16, vcc
        v_cndmask_b32 v17, {fbits(1/math.sqrt(2))}, v17, vcc""")
        for e in range(4):
            a(f"v_cvt_pk_bf16_f32 v{24+e}, v{16+2*e}, v{17+2*e}")
        a(f"""s_lshl_b32 s84, s80, 10
        s_add_u32 s85, s84, {FT}
        s_add_u32 s84, s84, {WOT}
        buffer_store_dwordx4 v[24:27], {vL16}, {WS}, s85 offen sc1
        s_waitcnt vmcnt(1)
        v_lshl_or_b32 v28, v33, 16, v32
        v_lshl_or_b32 v29, v35, 16, v34
        v_lshl_or_b32 v30, v37, 16, v36
        v_lshl_or_b32 v31, v39, 16, v38
        buffer_store_dwordx4 v[28:31], {vL16}, {WS}, s84 offen sc1
        s_add_u32 s80, s80, 768
        s_cmp_lt_u32 s80, 800
        s_waitcnt vmcnt(0)
        s_cbranch_scc1 {l3}""")

    def job_woh(self):
        a = self.a
        l0, l1, l2, l3, l4 = (a.lab("Lc") for _ in range(5))
        self.wq_done()
        self.if_lo(l0)
        a(f"""s_sub_u32 s80, {sR}, 12
        s_cmp_ge_u32 {sR}, 24
        s_cselect_b32 s80, {sX}, s80
        s_cmp_ge_u32 s80, 10
        s_cbranch_scc1 {l0}""")
        self.half_sync(4, add=False)
        a(f"""s_mov_b32 s14, {sWV}
        {l3}:
        s_lshl_b32 s81, s80, 1
        s_lshr_b32 s82, s14, 2
        s_add_u32 s81, s81, s82
        s_and_b32 s82, s14, 3
        s_lshl_b32 s83, s81, 1
        s_lshr_b32 s84, s82, 1
        s_add_u32 s83, s83, s84
        s_mul_i32 s83, s83, 20
        s_and_b32 s84, s82, 1
        s_lshl_b32 s84, s84, 2
        s_add_u32 s83, s83, s84
        s_sub_u32 s84, s81, 16
        s_lshl_b32 s84, s84, 3
        s_lshl_b32 s85, s82, 1
        s_add_u32 s84, s84, s85
        s_mul_i32 s84, s84, 20
        s_add_u32 s84, s84, 16
        s_cmp_lt_u32 s80, 8
        s_cselect_b32 s82, s83, s84
        s_cselect_b32 s83, 8, 20
        s_mul_i32 s82, s82, 1280
        s_mul_i32 s83, s83, 1280""")
        self.dma_rows(SWO, 1280, "s83", "s82", "s14")
        a(f"s_add_u32 s14, s14, 4\ns_cmp_lt_u32 s14, 8\ns_cbranch_scc1 {l3}\ns_waitcnt vmcnt(0)")
        self.half_sync(5)
        self.read_rows_frags()
        self.gcore(FI, 10, True, False, False)
        self.ep_write(True)
        self.half_sync(6)
        a(f"""s_mul_i32 s81, {sCB0}, 102400
        s_mul_i32 s82, s80, 10240
        s_add_u32 s81, s81, s82
        s_add_u32 s81, s81, {WOH}
        v_mul_u32_u24 v5, 144, {vN}
        v_lshl_add_u32 v5, {vG}, 4, v5
        s_mov_b32 s82, {sWV}
        {l2}:
        s_cmp_ge_u32 s82, 5
        s_cselect_b32 s83, {64 - 5*16*144}, 0
        s_mul_i32 s84, s82, {16*144}
        s_add_u32 s83, s83, s84
        s_add_u32 s83, s83, {EP}
        v_add_u32 v6, s83, v5
        ds_read_b128 v[8:11], v6
        s_lshl_b32 s84, s82, 10
        s_add_u32 s84, s84, s81
        s_add_u32 s82, s82, 4
        s_cmp_lt_u32 s82, 10
        s_waitcnt lgkmcnt(0)
        buffer_store_dwordx4 v[8:11], {vL16}, {WS}, s84 offen sc1
        s_cbranch_scc1 {l2}
        {l0}:""")

    def wq_done(self, pending=0):
        self.a(f"s_add_u32 s72, {sSH}, {F_WQ*FSTRIDE}\ns_waitcnt vmcnt({pending})")
        self.arrive(7, "s72", 7)

    def unpack(self, dst, src, n):
        for i in range(n):
            self.a(f"v_lshlrev_b32 v{dst+2*i}, 16, v{src+i}")
            self.a(f"v_and_b32 v{dst+2*i+1}, 0xffff0000, v{src+i}")

    def cmul_pack(self, c, s):
        a = self.a
        for e in range(8 if "plain" in self.opts else 0):
            dr, di, tr, ti = (f"v{x+e}" for x in (self.DR, self.DI, self.TR, self.TI))
            a(f"v_mul_f32 {tr}, {dr}, v{c+e}\nv_mul_f32 {ti}, {di}, v{c+e}")
            a(f"v_fma_f32 {tr}, -{di}, v{s+e}, {tr}\nv_fmac_f32 {ti}, {dr}, v{s+e}")
        for h in range(0 if "plain" in self.opts else 4):
            dr, di, tr, ti = (vr(x + 2 * h, 2) for x in (self.DR, self.DI, self.TR, self.TI))
            cc, ss = vr(c + 2 * h, 2), vr(s + 2 * h, 2)
            a(f"v_pk_mul_f32 {tr}, {dr}, {cc}")
            a(f"v_pk_mul_f32 {ti}, {di}, {cc}")
            a(f"v_pk_fma_f32 {tr}, {di}, {ss}, {tr} neg_lo:[1,0,0] neg_hi:[1,0,0]")
            a(f"v_pk_fma_f32 {ti}, {dr}, {ss}, {ti}")
        for h in range(4):
            a(f"v_cvt_pk_bf16_f32 v{self.BR+h}, v{self.TR+2*h}, v{self.TR+2*h+1}")
            a(f"v_cvt_pk_bf16_f32 v{self.BI+h}, v{self.TI+2*h}, v{self.TI+2*h+1}")

    def mm(self, d, x, y, first):
        self.a(f"v_mfma_f32_16x16x32_bf16 {vr(d,4)}, {vr(x,4)}, {vr(y,4)}, {'0' if first else vr(d,4)}")

    ZS, EX, RW, SEL = 81920, 98304, 114688, 232
    T1C, T1S, T2C, T2S = 20, 28, 36, 44
    C1, S1, N1, C2, S2, N2, S4E, C4O, S4O = 52, 56, 60, 64, 72, 80, 88, 96, 104
    WRAW, WR, WI = 112, 120, 128
    URAW, R0, R1, RS0, RS1, DR, DI, TR, TI, BR, BI, AF = 136, 144, 152, 160, 168, 176, 184, 192, 200, 208, 212, 216

    def col_tables(self, s_first, step):
        a = self.a
        lp = a.lab("Lk")
        a(f"""v_and_b32 v5, 31, {vL}
        v_lshrrev_b32 v6, 5, {vL}
        s_mov_b32 s74, {s_first}
        {lp}:
        v_lshl_add_u32 v7, v5, 1, v6
        s_lshl_b32 s72, s74, 3
        v_mul_u32_u24 v8, s72, v7
        s_lshl_b32 s72, s74, 5
        s_sub_u32 s72, s72, 127
        v_lshl_add_u32 v9, v6, 4, s72
        v_mul_u32_u24 v9, v9, v5
        v_lshlrev_b32 v10, 1, v5
        s_cmp_lt_u32 s74, 4
        s_cselect_b64 vcc, -1, 0
        v_cndmask_b32 v8, v9, v8, vcc
        v_cndmask_b32 v7, v10, v7, vcc
        v_cvt_f32_u32 v8, v8
        v_cvt_f32_u32 v7, v7
        v_mul_f32 v60, {fbits(1/64)}, v8
        v_mul_f32 v7, {fbits(1/64)}, v7
        s_lshl_b32 s73, s74, 10
        s_add_u32 s73, s73, {TB}""")
        for e in range(1, 8):
            a(f"v_add_f32 v{60+e}, v{59+e}, v7")
        for e in range(8):
            a(f"v_sin_f32 v{68+e}, v{60+e}")
            a(f"v_cos_f32 v{60+e}, v{60+e}")
        a(f"v_add_u32 v9, s73, {vL16}")
        for e in range(4):
            a(f"v_cvt_pk_bf16_f32 v{76+e}, v{60+2*e}, v{61+2*e}")
            a(f"v_cvt_pk_bf16_f32 v{80+e}, v{68+2*e}, v{69+2*e}")
        a(f"""s_add_u32 s74, s74, {step}
        s_cmp_lt_u32 s74, 6
        ds_write_b128 v9, v[76:79]
        ds_write_b128 v9, v[80:83] offset:6144
        s_cbranch_scc1 {lp}""")

    def col_twiddles(self):
        a = self.a
        a(f"""s_lshr_b32 s72, {sWM}, 1
        s_and_b32 s73, {sWM}, 1
        s_lshl_b32 s74, s73, 5
        s_add_u32 s74, s74, s72
        v_lshl_add_u32 v5, {vN}, 1, s74
        v_cvt_f32_u32 v5, v5
        v_mul_f32 v5, {fbits(1/2048)}, v5
        v_lshlrev_b32 v6, 3, {vG}
        v_cvt_f32_u32 v7, v6
        v_mul_f32 v{self.T1C}, v7, v5""")
        for e in range(1, 8):
            a(f"v_add_f32 v{self.T1C+e}, v{self.T1C+e-1}, v5")
        for e in range(8):
            a(f"v_sin_f32 v{self.T1S+e}, -v{self.T1C+e}")
            a(f"v_cos_f32 v{self.T1C+e}, v{self.T1C+e}")
        a(f"""v_add_u32 v6, s74, v6
        v_cvt_f32_u32 v6, v6
        v_lshrrev_b32 v7, 2, {vN}
        v_and_b32 v8, 3, {vN}
        v_lshl_add_u32 v8, v7, 3, v8
        v_cvt_f32_u32 v7, v8
        v_mul_f32 v9, {fbits(1/2048)}, v7
        v_add_f32 v10, {fbits(4/2048)}, v9""")
        for t in range(2):
            a(f"v_mul_f32 v{self.T2C+4*t}, v6, v{9+t}")
            a(f"v_add_f32 v{9+t}, v{9+t}, v{9+t}")
            for r in range(1, 4):
                a(f"v_add_f32 v{self.T2C+4*t+r}, v{self.T2C+4*t+r-1}, v{9+t}")
        for e in range(8):
            a(f"v_sin_f32 v{self.T2S+e}, v{self.T2C+e}")
            a(f"v_cos_f32 v{self.T2C+e}, v{self.T2C+e}")

    def pre_flags(self):
        self.a(f"""s_cmp_eq_u32 {sLAYER}, 0
        s_cselect_b32 s89, 16, 6
        s_cselect_b32 s72, 0, {2*FSTRIDE}
        s_add_u32 s72, s72, {F_WQ*FSTRIDE}
        s_add_u32 s72, s72, {sREP}
        s_lshl_b32 s73, {sWM}, 9
        s_add_u32 s72, s72, s73""")

    def col_hint(self, wave=0):
        self.a(f"""s_lshl_b32 s72, s4, 5
        s_and_b32 s72, s72, 0x780
        s_add_u32 s72, s72, {sFL}
        s_add_u32 s72, s72, {F_COL*FSTRIDE}""")
        self.push("s72", 11, wave=wave)

    def col_wload(self):
        a = self.a
        a(f"buffer_load_dwordx4 {vr(self.WRAW,4)}, {vL16}, {WS}, s10 offen sc1")
        a(f"buffer_load_dwordx4 {vr(self.WRAW+4,4)}, {vL16}, {WS}, s10 offen offset:1024 sc1")

    def col_early(self):
        l = self.a.lab("Lk")
        self.a(f"s_cmp_ge_u32 {sR}, 20\ns_cbranch_scc1 {l}\ns_call_b64 s[70:71], Lcolearly\n{l}:")

    def col_early_body(self):
        a = self.a
        a("Lcolearly:\ns_nop 4")
        self.col_twiddles()
        a(f"""s_lshr_b32 s72, {sWM}, 1
        s_and_b32 s73, {sWM}, 1
        v_and_b32 v8, 3, {vN}
        s_mul_i32 s77, {sX}, 20
        s_add_u32 s77, s77, {sR}
        s_lshl_b32 s77, s77, 1
        s_add_u32 s77, s77, {sHI}
        s_lshl_b32 s4, s77, 1
        s_add_u32 s4, s4, s73
        s_lshl_b32 s5, s4, 8
        s_mul_i32 s74, s72, {8*163840}
        s_add_u32 s5, s5, s74
        s_lshl_b32 s10, s77, 13
        s_lshl_b32 s74, {sWM}, 11
        s_add_u32 s10, s10, s74
        s_add_u32 s10, s10, {WF}
        s_mov_b32 s74, 163840
        v_mul_lo_u32 v11, {vG}, s74
        v_lshl_add_u32 v11, {vN}, 4, v11
        s_lshl_b32 s74, {sHI}, 11
        s_lshl_b32 s76, {sWM}, 8
        s_add_u32 s74, s74, s76
        s_add_u32 s74, s74, {self.RW}
        v_lshlrev_b32 v5, 12, {vG}
        v_lshl_add_u32 v5, {vN}, 4, v5
        v_add_u32 v12, s74, v5
        s_lshl_b32 s75, {sHI}, 13
        s_lshl_b32 s74, s73, 12
        s_add_u32 s74, s74, s75
        s_lshl_b32 s76, s72, 11
        s_add_u32 s74, s74, s76
        s_add_u32 s74, s74, {self.RW}
        v_add_u32 v13, s74, {vL16}
        s_lshl_b32 s74, {sHI}, 7
        s_lshl_b32 s76, {sWM}, 8
        s_add_u32 s74, s74, s76
        s_add_u32 s74, s74, {self.ZS}
        v_bfe_u32 v5, {vN}, 2, 1
        v_lshlrev_b32 v5, 10, v5
        v_lshrrev_b32 v6, 1, {vG}
        v_lshl_add_u32 v5, v6, 13, v5
        v_and_b32 v6, 1, {vG}
        v_lshl_add_u32 v5, v6, 11, v5
        v_lshrrev_b32 v6, 3, {vN}
        v_lshl_add_u32 v5, v6, 6, v5
        v_lshl_add_u32 v5, v8, 4, v5
        v_add_u32 v14, s74, v5
        v_and_b32 v5, 1, {vN}
        v_lshlrev_b32 v5, 4, v5
        s_movk_i32 s74, 0x3f80
        v_lshlrev_b32 v5, v5, s74
        v_cmp_gt_u32 vcc, 2, v8
        v_cndmask_b32 v16, 0, v5, vcc
        v_sub_u32 v17, v5, v16
        s_lshl_b32 s74, s72, 12
        s_add_u32 s74, s74, s75
        s_add_u32 s74, s74, {self.ZS}
        v_add_u32 v15, s74, {vL16}
        s_lshl_b32 s76, s73, 9
        s_add_u32 s74, s74, s76
        v_lshlrev_b32 v5, 10, v6
        v_lshl_add_u32 v5, v8, 4, v5
        v_bfe_u32 v6, {vN}, 2, 1
        v_lshl_add_u32 v5, v6, 7, v5
        v_lshrrev_b32 v6, 1, {vG}
        v_lshl_add_u32 v5, v6, 8, v5
        v_and_b32 v6, 1, {vG}
        v_lshl_add_u32 v5, v6, 3, v5
        v_add_u32 v8, s74, v5
        s_lshl_b32 s74, s72, 10
        s_add_u32 s74, s74, s75
        s_lshl_b32 s76, s73, 11
        s_add_u32 s74, s74, s76
        s_add_u32 s74, s74, {self.EX}
        v_add_u32 v9, s74, {vL16}
        v_xor_b32 v10, 0x800, v9
        v_mov_b32 v18, {fbits(1e-5)}
        s_nop 4
        s_setpc_b64 s[70:71]""")

    def x_look(self):
        self.a(f"""s_lshl_b32 s72, {sWV}, 8
        s_add_u32 s72, s72, {sREP}
        s_add_u32 s72, s72, {sFL}
        v_lshlrev_b32 v5, 7, {vL}
        v_mov_b32 v240, 0
        s_mov_b64 exec, 3
        buffer_atomic_add v240, v5, {WS}, s72 offen sc0 sc1
        s_mov_b64 exec, -1""")

    def col_consts(self):
        a = self.a
        a(f"""s_lshl_b32 s74, {sWM}, 8
        s_add_u32 s74, s74, {TB}
        v_lshrrev_b32 v7, 2, {vN}
        v_and_b32 v6, 3, {vN}
        v_lshl_add_u32 v7, v7, 3, v6
        v_lshlrev_b32 v5, 10, {vG}
        v_lshl_add_u32 v6, {vN}, 4, v5
        v_add_u32 v6, s74, v6
        v_lshl_add_u32 v5, v7, 4, v5
        v_add_u32 v5, {TB}, v5
        v_lshlrev_b32 v19, 9, {vG}
        v_lshl_add_u32 v19, v7, 4, v19
        v_add_u32 v19, {TB+4096}, v19
        ds_read_b128 {vr(self.S1,4)}, v6 offset:6144""")
        for t in range(2):
            a(f"ds_read_b128 {vr(self.S2+4*t,4)}, v5 offset:{6144+64*t}")
            a(f"ds_read_b128 {vr(self.S4O+4*t,4)}, v19 offset:{6144+64*t}")
        a(f"ds_read_b128 {vr(self.C1,4)}, v6")
        for t in range(2):
            a(f"ds_read_b128 {vr(self.C2+4*t,4)}, v5 offset:{64*t}")
            a(f"ds_read_b128 {vr(self.C4O+4*t,4)}, v19 offset:{64*t}")
        a(f"""s_bitcmp0_b32 {sWM}, 0
        s_cselect_b32 s75, 0x80008000, 0
        s_mov_b32 s74, 0x80008000
        s_mov_b32 s76, {fbits(1/640)}
        s_mov_b32 s87, {fbits(1/2048)}
        s_lshl_b32 s72, {sHI}, 3
        s_add_u32 s72, s72, {sWM}
        s_mul_i32 s84, s72, 163840
        s_lshr_b32 s73, s4, 2
        s_lshl_b32 s73, s73, 10
        s_add_u32 s84, s84, s73
        s_add_u32 s84, s84, {sXA}
        s_add_u32 s85, s84, {4*163840}
        s_lshl_b32 s77, s72, 11
        s_add_u32 s77, s77, {sSS}
        s_add_u32 s86, s77, 8192
        s_cmp_eq_u32 s4, 1
        s_cselect_b32 s87, 0, s87
        v_mov_b32 v{self.SEL}, 0
        v_mov_b32 v{self.SEL+1}, 0
        v_mov_b32 v{self.SEL+2}, v16
        v_mov_b32 v{self.SEL+3}, v17
        v_mov_b32 v{self.SEL+4}, 0
        v_mov_b32 v{self.SEL+5}, 0
        s_add_u32 s82, s5, {sXB}
        s_add_u32 s83, s82, {4*163840}
        s_waitcnt lgkmcnt(5)""")
        for i in range(4):
            a(f"v_xor_b32 v{self.N1+i}, s74, v{self.S1+i}")
        for i in range(8):
            a(f"v_xor_b32 v{self.N2+i}, s74, v{self.S2+i}")
            a(f"v_xor_b32 v{self.S4E+i}, s75, v{self.S2+i}")
            a(f"v_xor_b32 v{self.S4O+i}, s75, v{self.S4O+i}")

    def wmid(self, slot):
        a = self.a
        slots = {5: (0, 1, 2, 3, 4), 4: (1, 2, 3, 4), 3: (1, 3, 4), 2: (3, 4), 1: (4,), 0: ()}[self.wg]
        if slot not in slots:
            return
        j = slots.index(slot)
        self.wm_issued += 2
        a(f"s_add_u32 m0, s80, {2048*j}\ns_add_u32 s72, s81, {2048*j}")
        for i in range(2):
            a(f"buffer_load_dwordx4 {vL16}, {WS}, s72 offen offset:{1024*i} sc1 lds")

    def col_main(self):
        a = self.a
        nz, l1 = a.lab("Lnz"), a.lab("Lk")
        EXO = self.EX - self.ZS
        T, U = self.TR, self.URAW
        lp, dn, l2, l4, l5 = (a.lab("Lk") for _ in range(5))
        a(f"""s_mov_b32 s35, 1
        s_lshl_b32 s78, {sWM}, 12
        s_mul_i32 s79, {sH}, 81920
        s_add_u32 s79, s79, {WQ}
        s_mul_i32 s80, {sWV}, {2048*self.wg}
        s_add_u32 s81, s79, s80
        s_add_u32 s79, s79, s78
        s_cmp_eq_u32 {sLAYER}, 0
        s_cbranch_scc1 {l1}""")
        self.col_wload()
        a(f"s_branch {l2}\n{l1}:")
        self.if_lo(l2)
        self.fill_cols("s82", "s83", T)
        a(f"""{l2}:
        s_lshl_b32 s72, {sWV}, 8
        s_add_u32 s72, s72, {sREP}
        s_add_u32 s73, s72, {F_WQ*FSTRIDE}
        s_add_u32 s72, s72, {sFL}""")
        lg = a.lab("Lk")
        a(f"v_lshlrev_b32 v5, 7, {vL}\ns_waitcnt vmcnt(0)\ns_mov_b64 exec, 3\nv_cmp_gt_u32 vcc, 16, v240\ns_mov_b64 exec, -1\ns_cbranch_vccz {lg}")
        self.wait_lines("s72", 2, 16)
        a(f"{lg}:\ns_barrier\ns_cmp_lg_u32 {sLAYER}, 0\ns_cbranch_scc1 {l4}\ns_add_u32 s72, {sSH}, {F_WQ*FSTRIDE}")
        self.push("s72", 11, wave=0)
        a(f"v_lshlrev_b32 v5, 7, {vL}\n{l4}:")
        self.fstamp("c", 0)
        a(f"s_mov_b32 s88, {SPIN}\n{lp}:")
        for k in range(4):
            a(f"buffer_load_dwordx4 {vr(T+4*k,4)}, {vL16}, {WS}, {'s77' if k < 2 else 's86'} offen offset:{1024*(k%2)} sc1")
        a(f"""buffer_load_dwordx4 {vr(U,4)}, {vL16}, {WS}, s84 offen sc1
        buffer_load_dwordx4 {vr(U+4,4)}, {vL16}, {WS}, s85 offen sc1
        s_mov_b64 exec, 3
        v_mov_b32 v19, 0
        buffer_atomic_add v19, v5, {WS}, s73 offen sc0 sc1
        s_mov_b64 exec, -1""")
        for p in range(2):
            a(f"s_waitcnt vmcnt({5-2*p})")
            for k in range(2):
                for j in range(2):
                    self.mm(self.RS0 + 8 * p + 4 * j, self.SEL + 2 - 2 * j, T + 8 * p + 4 * k, k == 0)
        for x in self.umax(6, range(T, T + 16)):
            a(x)
        for i in range(16):
            a(f"v_fma_f32 v{self.RS0+i}, v{self.RS0+i}, s76, v18")
        for i in range(16):
            a(f"v_rsq_f32 v{self.RS0+i}, v{self.RS0+i}")
        a("s_waitcnt vmcnt(1)")
        for x in self.umax(6, [6] + list(range(U, U + 8))):
            a(x)
        a("v_cmp_eq_u32 vcc, -1, v6")
        a(f"ds_write_b128 v12, {vr(U,4)}\nds_write_b128 v12, {vr(U+4,4)} offset:1024")
        self.unpack(self.R0, U, 8)
        a(f"s_cbranch_vccz {dn}")
        self.count(8)
        a(f"""s_waitcnt vmcnt(0)
        s_sub_u32 s88, s88, 1
        s_cbranch_scc0 {lp}
        {dn}:""")
        self.stamp(4)
        a(f"s_cmp_gt_u32 s4, 3\ns_cbranch_scc1 {nz}\ns_mov_b32 exec_lo, 0xffff0000\ns_mov_b32 exec_hi, 0")
        for i in range(16):
            a(f"v_mov_b32 v{self.RS0+i}, 0")
        a(f"s_mov_b64 exec, -1\n{nz}:")
        for h in range(4):
            p, r0, r1, x1 = vr(self.DR + 2 * h, 2), vr(self.RS0 + 2 * h, 2), vr(self.RS1 + 2 * h, 2), vr(self.R1 + 2 * h, 2)
            a(f"v_pk_mul_f32 {p}, {vr(self.R0+2*h,2)}, {r0}")
            a(f"v_pk_fma_f32 {vr(self.TR+2*h,2)}, {x1}, {r1}, {p}")
            a(f"v_pk_fma_f32 {vr(self.TI+2*h,2)}, {x1}, {r1}, {p} neg_lo:[1,0,0] neg_hi:[1,0,0]")
        for h in range(4):
            a(f"v_cvt_pk_bf16_f32 v{self.BR+h}, v{self.TR+2*h}, v{self.TR+2*h+1}")
        a(f"ds_write_b128 v14, {vr(self.BR,4)}")
        for h in range(4):
            a(f"v_cvt_pk_bf16_f32 v{self.BI+h}, v{self.TI+2*h}, v{self.TI+2*h+1}")
        a(f"ds_write_b128 v14, {vr(self.BI,4)} offset:4096")
        a(f"s_waitcnt vmcnt(0)\ns_mov_b64 exec, 3\nv_cmp_gt_u32 vcc, 16, v19\ns_mov_b64 exec, -1\ns_cbranch_vccz {l5}")
        self.poll(WS, "v5", "s73", 2, 16)
        a(f"{l5}:\ns_waitcnt lgkmcnt(0)\ns_barrier")
        AF, DR, DI, BR, BI = self.AF, self.DR, self.DI, self.BR, self.BI
        self.fstamp("c", 2)
        for i in range(4):
            a(f"ds_read_b128 {vr(AF+4*i,4)}, v15 offset:{1024*i}")
        lv = a.lab("Lk")
        a(f"s_cmp_lg_u32 {sLAYER}, 0\ns_cbranch_scc1 {lv}")
        self.col_wload()
        a(f"{lv}:")
        self.wm_issued = 0
        self.wmid(0)
        a("s_waitcnt lgkmcnt(2)")
        for t in range(2):
            self.mm(DR + 4 * t, AF + 4 * t, self.C1, True)
            self.mm(DI + 4 * t, AF + 4 * t, self.N1, True)
        a("s_waitcnt lgkmcnt(0)")
        for t in range(2):
            self.mm(DR + 4 * t, AF + 8 + 4 * t, self.S1, False)
            self.mm(DI + 4 * t, AF + 8 + 4 * t, self.C1, False)
        self.wmid(1)
        self.cmul_pack(self.T1C, self.T1S)
        for t in range(2):
            self.mm(DR + 4 * t, self.C2 + 4 * t, BR, True)
            self.mm(DI + 4 * t, self.N2 + 4 * t, BR, True)
        for t in range(2):
            self.mm(DR + 4 * t, self.S2 + 4 * t, BI, False)
            self.mm(DI + 4 * t, self.C2 + 4 * t, BI, False)
        self.wmid(2)
        a(f"s_waitcnt vmcnt({self.wm_issued})")
        self.fstamp("c", 3)
        self.unpack(self.WR, self.WRAW, 8)
        self.cmul_pack(self.WR, self.WI)
        for t in range(2):
            self.mm(DR + 4 * t, BR, self.C2 + 4 * t, True)
            self.mm(DI + 4 * t, BR, self.S2 + 4 * t, True)
        for t in range(2):
            self.mm(DR + 4 * t, BI, self.N2 + 4 * t, False)
            self.mm(DI + 4 * t, BI, self.C2 + 4 * t, False)
        a(f"ds_read_b128 {vr(U,4)}, v13\nds_read_b128 {vr(U+4,4)}, v13 offset:1024")
        self.wmid(3)
        self.cmul_pack(self.T2C, self.T2S)
        for t in range(2):
            a(f"ds_write_b64 v8, {vr(BR+2*t,2)} offset:{EXO+64*t}")
            a(f"ds_write_b64 v8, {vr(BI+2*t,2)} offset:{EXO+2048+64*t}")
        self.wmid(4)
        self.fstamp("c", 14)
        l3 = a.lab("Lk")
        self.if_hi(l3)
        self.pre_flags()
        a(f"""v_lshlrev_b32 v5, 7, {vL}
        v_mov_b32 v19, 0
        s_mov_b64 exec, 15
        buffer_atomic_add v19, v5, {WS}, s72 offen sc0 sc1
        s_mov_b64 exec, -1
        {l3}:
        s_waitcnt lgkmcnt(0)
        s_barrier""")
        self.fstamp("c", 15)
        for p in range(2):
            a(f"ds_read_b128 {vr(AF+8*p,4)}, v9 offset:{4096*p}")
        for p in range(2):
            a(f"ds_read_b128 {vr(AF+8*p+4,4)}, v10 offset:{4096*p}")
        if self.hc == 0:
            self.col_hint()
        self.fstamp("j", 1)
        self.unpack(self.R0, U, 8)
        a("v_mov_b32 v6, s87\ns_waitcnt lgkmcnt(2)")
        for t in range(2):
            self.mm(DR + 4 * t, self.C2 + 4 * t, AF, True)
            self.mm(DI + 4 * t, self.C4O + 4 * t, AF + 8, True)
        a("s_waitcnt lgkmcnt(0)")
        for t in range(2):
            self.mm(DR + 4 * t, self.S4E + 4 * t, AF + 4, False)
            self.mm(DI + 4 * t, self.S4O + 4 * t, AF + 12, False)
        for neg, t, r, b, so in (("", self.TR, self.R0, BR, "s82"), (" neg_lo:[0,1] neg_hi:[0,1]", self.TI, self.R1, BI, "s83")):
            for h in range(4):
                x = vr(t + 2 * h, 2)
                a(f"v_pk_add_f32 {x}, {vr(DR+2*h,2)}, {vr(DI+2*h,2)}{neg}")
                a(f"v_pk_fma_f32 {x}, {x}, v[6:7], {vr(r+2*h,2)} op_sel_hi:[1,0,1]")
            for h in range(4):
                a(f"v_cvt_pk_bf16_f32 v{b+h}, v{t+2*h}, v{t+2*h+1}")
            self.clean(b, 4)
            a(f"buffer_store_dwordx4 {vr(b,4)}, v11, {WS}, {so} offen sc1")
        if self.hc == 1:
            self.col_hint()

    XR = 81920
    NREG = 244
    QH, NRM, SSP, VSCR = 102400, 112640, 32768, 143360
    QACC, QF, QAD = 60, 144, 192

    XB = (0, 81920, 131072)

    def retry(self, chk, loads):
        a = self.a
        bad, ok, lp = a.lab("Lbad"), a.lab("Lok"), a.lab("Lbad")
        a(f"s_cbranch_vccnz {bad}\n{ok}:")
        body = [f"{bad}:", f"s_mov_b32 s88, {SPIN}", f"{lp}:"] + loads
        body += ["s_sub_u32 s88, s88, 1", "s_waitcnt vmcnt(0)", f"s_cbranch_scc1 {ok}"] + chk + [f"s_cbranch_vccnz {lp}", f"s_branch {ok}"]
        self.cold.append("\n".join(body))

    def ft_part(self, q):
        a = self.a
        a(f"s_add_u32 m0, s78, {q*16384}\ns_add_u32 s83, s82, {q*16384}")
        for i in range(4):
            a(f"buffer_load_dwordx4 {vL16}, {WS}, s83 offen offset:{1024*i} sc1 lds")

    def ss_sched(self):
        k0 = next((int(o[2:]) for o in self.opts if o.startswith("ks")), 6)
        n = -(-72 // sum(self.ss_dens()))
        return k0, k0 + 2 * (n // 2) + 2

    def ss_dens(self):
        return {"d4": (0, 0, 2, 2), "d6": (1, 1, 2, 2), "d8": (1, 1, 3, 3), "d12": (2, 2, 4, 4), "d18": (4, 4, 5, 5)}[
            next((o for o in self.opts if o in ("d4", "d6", "d8", "d12", "d18")), "d18")]

    def x_base(self, addr):
        return max(i for i in range(3) if self.XB[i] <= addr)

    def x_plan(self):
        free = [self.XR + 16384 * i for i in range(5)]
        extra = {5: 0}
        nx = next((int(o[2:]) for o in self.opts if o.startswith("nx")), 0)
        pre = next((int(o[2:]) for o in self.opts if o.startswith("pr")), 3)
        slot, plan, g = {}, {}, 0
        for q in range(-1, 20):
            if q >= 2:
                free.append(slot[q - 2])
            if q in extra and list(extra).index(q) < nx:
                free.append(extra[q])
            plan[q] = []
            while free and g < 20 and len(plan[q]) < (pre if q < 0 else 2):
                slot[g] = free.pop(0)
                plan[q].append(g)
                g += 1
        return slot, plan

    def w_prefetch(self, entry):
        a = self.a
        a(f"""s_lshl_b32 s78, {sWM}, 12
        s_mul_i32 s79, {sH}, 81920
        s_add_u32 s79, s79, {WQ}
        s_add_u32 s79, s79, s78""")
        for q in range(6):
            if q == self.wg:
                a(f"{entry}:")
            if q < 5:
                a(f"s_add_u32 m0, s78, {q*16384}\ns_add_u32 s72, s79, {q*16384}")
                for i in range(4):
                    a(f"buffer_load_dwordx4 {vL16}, {WS}, s72 offen offset:{1024*i} sc1 lds")

    def qkv_helper(self):
        a = self.a
        XR = self.XR
        lw = a.lab("Lh")
        a(f"s_cmp_eq_u32 s35, 1\ns_cbranch_scc1 {lw}")
        self.w_prefetch(lw)
        lg = a.lab("Lh")
        a(f"""s_mov_b32 s35, 0
        s_setprio 3
        s_lshl_b32 s75, {sWM}, 9
        s_add_u32 s75, s75, {sREP}
        s_add_u32 s75, s75, {sFL}
        s_add_u32 s75, s75, {F_COL*FSTRIDE}""")
        a(f"""s_lshl_b32 s80, {sTT}, 1
        s_lshr_b32 s74, {sWM}, 1
        s_add_u32 s80, s80, s74
        s_lshl_b32 s13, s80, 13
        s_mul_i32 s80, s80, 163840
        s_add_u32 s80, s80, {sXB}
        s_and_b32 s74, {sWM}, 1
        s_lshl_b32 s74, s74, 12
        s_add_u32 s80, s80, s74
        s_add_u32 s13, s13, s74
        s_mul_i32 s82, {sCB}, 102400
        s_add_u32 s82, s82, {FT}
        s_add_u32 s82, s82, s78
        s_and_b32 s74, {sWM}, 1
        s_lshl_b32 s74, s74, 1
        v_lshlrev_b32 v5, 2, {vG}
        v_xor_b32 v5, s74, v5
        v_xor_b32 v5, v5, {vL}
        v_lshlrev_b32 v8, 4, v5""")
        self.wait_lines("s75", 4, 10)
        a("s_barrier\ns_setprio 0")
        self.stamp(6)
        ACC, RAW = 140, 60
        order = []
        slot, plan = self.x_plan()

        def dma(g):
            r = [[f"buffer_load_dwordx4 v8, {WS}, s83 offen offset:{1024*i} sc1 lds"] for i in range(4)]
            r[0] = [f"s_add_u32 m0, s78, {slot[g]}", f"s_add_u32 s83, s80, {g*8192}"] + r[0]
            return [(f"X{g}", x) for x in r]

        def emit(items):
            for tag, x in items:
                order.append(tag)
                for y in x:
                    a(y)

        def allow(*tags):
            last = max((i for i, t in enumerate(order) if t in tags), default=-1)
            return len(order) - 1 - last

        def qloads():
            return [("Q", [f"buffer_load_dwordx4 {vr(RAW+4*i,4)}, {vL16}, {WS}, s13 offen offset:{1024*i} sc1"]) for i in range(4)]

        QQ = next((int(o[2:]) for o in self.opts if o.startswith("qq")), 15)
        QC = self.ss_sched()[1] // 2 + 2
        for g in plan[-1]:
            emit(dma(g))
        a(f"""v_bfe_u32 v5, {vL}, 2, 2
        v_and_b32 v7, 1, {vG}
        v_lshrrev_b32 v6, 1, {vG}
        v_lshl_add_u32 v6, v6, 3, v5
        v_lshlrev_b32 v6, 8, v6
        v_lshl_add_u32 v6, v7, 12, v6
        s_lshl_b32 s74, {sHALF}, 2
        s_add_u32 s74, s74, {sWM}
        v_lshlrev_b32 v5, 1, v5
        v_xor_b32 v5, v5, v7
        v_xor_b32 v5, s74, v5
        v_lshl_add_u32 v6, v5, 5, v6
        v_and_b32 v7, 3, {vL}
        v_lshl_add_u32 v6, v7, 3, v6
        s_and_b32 s74, {sT}, 1
        s_lshl_b32 s74, s74, 13
        v_add_u32 v13, s74, v6
        v_add_u32 v14, {self.XB[1]}, v13
        v_add_u32 v15, {self.XB[2]}, v13
        s_and_b32 s81, {sH}, 15
        s_lshl_b32 s15, {sLAYER}, 17
        s_add_u32 s15, s15, {SQ0}
        s_add_u32 s13, s13, s15
        s_lshl_b32 s74, {sT}, 13
        s_add_u32 s15, s15, s74
        s_lshl_b32 s74, s81, 9
        s_add_u32 s15, s15, s74
        v_lshlrev_b32 v9, 5, {vN}
        v_lshl_add_u32 v9, {vG}, 3, v9
        s_lshl_b32 s74, {sWM}, 9
        v_and_b32 v5, 31, {vL}
        v_lshrrev_b32 v6, 5, {vL}
        v_lshl_add_u32 v5, v5, 1, v6
        v_lshl_add_u32 v12, v5, 3, s74""")
        for q in range(20):
            n = allow(f"X{q}", *(("Q",) if q >= 18 else ()))
            extra = 4 * sum(1 for e in self.ft_early if e < q)
            if extra:
                l = a.lab("Lh")
                a(f"s_cmp_lg_u32 {sLAYER}, 0\ns_cbranch_scc1 {l}\ns_waitcnt vmcnt({n})\n{l}:")
            a(f"s_waitcnt vmcnt({n+extra}) lgkmcnt(0)\ns_barrier")
            if q in (2, 4, 6, 10, 14, 18):
                self.fstamp("q", {2: 0, 4: 1, 6: 2, 10: 3, 14: 14, 18: 15}[q])
            if q == 0:
                l = a.lab("Lh")
                a(f"s_cmp_lt_u32 {sR}, 20\ns_cbranch_scc1 {l}\ns_or_b32 s72, {sLAYER}, s14\ns_cbranch_scc1 {l}")
                a(f"s_add_u32 s72, {sSH}, {F_IMG*FSTRIDE}")
                self.push("s72", 11, wave=7)
                a(f"{l}:")
            if q == QC:
                for i in range(4):
                    a(f"ds_read_b64 {vr(ACC+2*i,2)}, v9 offset:{16384+512*i}")
            emit([x for g in plan[q] for x in dma(g)] + (qloads() if q == QQ else []))
            if q == QC:
                l = a.lab("Lh")
                a(f"s_cmp_lg_u32 {sWM}, 0\ns_waitcnt lgkmcnt(0)\ns_cbranch_scc1 {l}")
                for i in range(2):
                    a(f"v_add_f32 v{ACC+i}, v{ACC+i}, v{ACC+2+i}\nv_add_f32 v{ACC+4+i}, v{ACC+4+i}, v{ACC+6+i}")
                for i in range(2):
                    a(f"v_add_f32 v{ACC+i}, v{ACC+i}, v{ACC+4+i}")
                for i in range(2):
                    a(f"v_or_b32 v{ACC+i}, 1, v{ACC+i}")
                a(f"buffer_store_dwordx2 {vr(ACC,2)}, v9, {WS}, s15 offen sc1\n{l}:")
            if q == 18:
                chk = [x.replace("max", "min") for x in self.umax(5, range(RAW, RAW + 16))] + ["v_cmp_eq_u32 vcc, 0, v5"]
                for x in chk:
                    a(x)
                self.retry(chk, [x[0] for _, x in qloads()])
                for i in range(8):
                    a(f"v_add_f32 v{RAW+i}, v{RAW+i}, v{RAW+8+i}")
            if q == 18:
                for i in range(4):
                    a(f"v_add_f32 v{RAW+i}, v{RAW+i}, v{RAW+4+i}")
                a(f"""v_permlane32_swap_b32 v{RAW}, v{RAW+2}
                v_permlane32_swap_b32 v{RAW+1}, v{RAW+3}
                v_add_f32 v{RAW}, v{RAW}, v{RAW+2}
                v_add_f32 v{RAW+1}, v{RAW+1}, v{RAW+3}
                ds_write_b64 v12, {vr(RAW,2)} offset:{self.SSP}""")
            l = a.lab("Lh")
            a(f"s_cmp_eq_u32 {sLAYER}, 0\ns_cbranch_scc1 {l}")
            b = self.x_base(slot[q])
            for i in range(2):
                a(f"ds_read_b64_tr_b16 {vr(GA+4*q+2*i,2)}, v{13+b} offset:{slot[q]-self.XB[b]+1024*i}")
            if q in self.ft_early:
                self.ft_part(self.ft_early[q])
            a(f"{l}:")
        a("s_waitcnt lgkmcnt(0)\ns_barrier")
        l0, l1 = a.lab("Lh"), a.lab("Lh")
        self.att_setup()
        a(f"""s_mul_i32 s72, {sWM}, 2560
        s_add_u32 s72, s72, {self.QH}
        v_add_u32 v5, s72, {vL16}
        v_xor_b32 v6, 32, {vL}
        v_lshl_add_u32 v6, v6, 3, s72
        s_barrier
        ds_read_b128 {vr(AR.Q1,4)}, v5 offset:1024
        ds_read_b128 {vr(AR.Q1+4,4)}, v5
        ds_read_b64 v[6:7], v6 offset:2048
        v_lshlrev_b32 v5, 3, {vN}
        v_add_u32 v5, {self.NRM}, v5
        ds_read_b64 {vr(self.NREG,2)}, v5
        s_waitcnt lgkmcnt(1)""")
        for j in range(4):
            a(f"v_mov_b32 v{AR.Q2+6*(j//2)+j%2}, v{6+j%2}")
        self.q2_spread()

    def q2_spread(self):
        for i in range(4):
            self.a(f"v_permlane32_swap_b32 v{AR.Q2+i}, v{AR.Q2+4+i}")

    def att_setup(self):
        a = self.a
        A.setup_addr(a, vL, vL16, sHI, "s72", 5)
        a(f"""s_mul_i32 s85, {sWV}, 2560
        s_mul_i32 s86, {sH}, {8*A.CHUNK}
        s_add_u32 s86, s86, {sKV}
        s_add_u32 s86, s86, s85
        s_add_u32 s85, s85, {A.SLOT0}""")
        for i in range(2, 6):
            a(f"v_mov_b32 v{AR.Q2+i}, 0")
        for i in range(32):
            a(f"v_mov_b32 v{AR.O+i}, 0")
        self.o_prepare()

    def qkv_compute(self):
        a = self.a
        XR, AD = self.XR, self.QAD
        own = A.SLOT0 + A.slot_off(0)
        EA = AD + 14
        self.att_setup()
        a(f"""s_lshr_b32 s72, {sWM}, 1
        s_and_b32 s73, {sWM}, 1
        v_mov_b32 v{AD}, {vL16}
        v_add_u32 v{AD+1}, 0xa000, {vL16}
        v_bfe_u32 v5, {vL}, 2, 2
        v_lshrrev_b32 v6, 5, {vL}
        v_lshl_add_u32 v6, v6, 3, v5
        v_mul_u32_u24 v{EA+1}, 48, v6
        v_lshlrev_b32 v6, 8, v6
        v_and_b32 v7, 3, {vL}
        v_lshl_add_u32 v6, v7, 3, v6
        s_lshl_b32 s74, s73, 1
        v_xor_b32 v7, s74, v5
        v_lshl_add_u32 v6, v7, 6, v6
        v_and_b32 v7, 1, {vG}
        v_lshl_add_u32 v6, v7, 5, v6
        s_lshl_b32 s74, s72, 13
        v_add_u32 v{AD+2}, s74, v6""")
        for i in range(1, 4):
            a(f"v_xor_b32 v{AD+2+i}, {32*i}, v{AD+2}")
        for i in range(8):
            a(f"v_add_u32 v{AD+6+i}, {self.XB[1+i//4]}, v{AD+2+i%4}")
        a(f"""s_mul_i32 s75, {sWM}, 3072
        s_add_u32 s75, s75, {self.VSCR}
        v_and_b32 v5, 3, {vL}
        v_lshl_add_u32 v5, v7, 2, v5
        v_min_u32 v5, 4, v5
        v_and_b32 v6, 1, v5
        v_mul_u32_u24 v6, 24, v6
        v_lshrrev_b32 v5, 1, v5
        v_lshl_add_u32 v5, v5, 3, v6
        v_add3_u32 v{EA+1}, v{EA+1}, v5, s75
        v_and_b32 v5, 31, {vL}
        v_lshrrev_b32 v6, 5, {vL}
        v_lshl_add_u32 v7, v5, 1, v6
        v_mul_u32_u24 v7, 24, v7
        v_add_u32 v{EA}, s75, v7
        v_mul_u32_u24 v6, 20, v6
        v_add_lshl_u32 v{EA+2}, v6, v5, 4
        s_lshl_b32 s75, s73, 8
        s_lshl_b32 s76, s72, 10
        s_add_u32 s75, s75, s76
        s_add_u32 s75, s75, {self.SSP}
        v_lshl_add_u32 v{EA+3}, v5, 2, s75
        s_mul_i32 s76, s72, {A.HEADB}
        s_mul_i32 s77, s73, {2*A.TILE}
        s_add_u32 s77, s77, s76
        s_lshl_b32 s75, s73, 9
        s_add_u32 s76, s76, s75
        s_add_u32 s76, s76, {A.K2OFF}
        s_add_u32 s75, s77, {own}
        v_add_u32 v{EA+4}, s75, {vL16}
        v_add_u32 v{EA+5}, s75, v{EA+2}
        v_lshlrev_b32 v{EA+6}, 3, {vL}
        s_add_u32 s75, s76, {own}
        v_add_u32 v{EA+7}, s75, v{EA+6}
        s_lshl_b32 s75, {sH}, 3
        s_add_u32 s75, s75, {sTT}
        s_mul_i32 s75, s75, {A.CHUNK}
        s_add_u32 s75, s75, {sKV}
        s_add_u32 s76, s76, s75
        s_add_u32 s77, s77, s75
        s_mul_i32 s75, {sWM}, 2560
        s_add_u32 s75, s75, {self.QH}
        v_add_u32 v{EA+8}, s75, {vL16}
        v_add_u32 v{EA+9}, s75, v{EA+6}
        s_mov_b32 s78, {fbits(1/640)}
        v_mov_b32 v{EA+10}, {fbits(1e-5)}
        s_lshl_b32 s75, {sWM}, 5
        s_add_u32 s75, s75, {self.NRM}
        v_lshl_add_u32 v{EA+11}, {vG}, 3, s75
        v_lshlrev_b32 v5, 3, {vN}
        v_add_u32 v{EA+12}, {self.NRM}, v5
        v_lshlrev_b32 v{EA+13}, 2, {vG}
        s_lshl_b32 s79, {sH}, 3
        s_add_u32 s79, s79, {sTT}
        s_lshl_b32 s79, s79, 7
        s_lshl_b32 s75, {sWM}, 4
        s_add_u32 s79, s79, s75
        s_lshl_b32 s75, {sLAYER}, 15
        s_add_u32 s79, s79, s75
        s_add_u32 s79, s79, {F_KMAX*FSTRIDE}
        s_and_b32 s81, {sH}, 15
        s_or_b32 s74, s81, {sWM}
        s_cselect_b32 s74, 99, 1
        v_cmp_ne_u32 s[6:7], s74, {vG}
        s_mul_i32 s16, {sWM}, 3
        s_min_u32 s16, s16, 7
        s_mul_i32 s74, s81, 10
        s_add_u32 s16, s16, s74
        s_lshl_b32 s16, s16, 10
        s_mul_i32 s74, {sT}, 163840
        s_add_u32 s16, s16, s74
        s_add_u32 s16, s16, {sXB}
        s_mov_b32 s17, 0xffff0000
        v_lshlrev_b32 v5, 5, {vN}
        v_lshl_add_u32 v5, {vG}, 3, v5
        s_lshl_b32 s74, {sWM}, 9
        v_add_u32 v240, s74, v5
        s_cmp_eq_u32 {sWM}, 2
        s_cselect_b64 s[74:75], 0, -1
        s_barrier
        s_waitcnt vmcnt(0)
        s_barrier""")
        RAW, UN, ACC = 220, 8, 232
        sl = [f"buffer_load_dwordx4 {vr(RAW+4*i,4)}, {vL16}, {WS}, s16 offen offset:{1024*i} sc1" for i in range(3)]
        chk = self.umax(5, range(RAW, RAW + 12)) + ["v_cmp_eq_u32 vcc, -1, v5"]
        self.stamp(6)
        slot, _ = self.x_plan()
        work = [f"v_cndmask_b32 v{RAW+k}, 0, v{RAW+k}, {'s[6:7]' if k < 4 else 's[74:75]'}" for k in range(12)]
        for i in range(3):
            for k in range(4):
                work += [f"v_lshlrev_b32 v{UN+2*k}, 16, v{RAW+4*i+k}", f"v_and_b32 v{UN+2*k+1}, s17, v{RAW+4*i+k}"]
            work += [f"{'v_mul_f32' if i == 0 else 'v_fmac_f32'} v{ACC+h}, v{UN+h}, v{UN+h}" for h in range(8)]
        work += [f"v_permlane32_swap_b32 v{ACC+k}, v{ACC+4+k}" for k in range(4)]
        work += [f"v_add_f32 v{ACC+k}, v{ACC+k}, v{ACC+4+k}" for k in range(4)]
        work += [f"v_permlane16_swap_b32 v{ACC+k}, v{ACC+2+k}" for k in range(2)]
        work += [f"v_add_f32 v{ACC+k}, v{ACC+k}, v{ACC+2+k}" for k in range(2)]
        K0, KW = self.ss_sched()

        def reads(k):
            f = self.QF + 16 * (k % 3)
            b = self.x_base(slot[k // 2])
            off = slot[k // 2] - self.XB[b] + 4096 * (k % 2)
            r = []
            for j in range(2):
                r.append(f"ds_read_b128 {vr(f+4*j,4)}, v{AD+k//20} offset:{(k%20)*2048+1024*j}")
                for i in range(2):
                    r.append(f"ds_read_b64_tr_b16 {vr(f+8+4*j+2*i,2)}, v{AD+2+4*b+2*j+k%2} offset:{off+1024*i}")
            return r
        for r in reads(0) + reads(1) + sl:
            a(r)
        SSR = 8
        KR, K2R, VR, Q2T, VT, RSD, N, W = 144, 152, 154, 166, 168, 220, self.NREG, 224
        for k in range(40):
            a(f"s_waitcnt lgkmcnt({6 if k < 39 else 0})")
            rr = reads(k + 2) if k + 2 < 40 else []
            per = (2, 2, 1, 1)
            if k == 38:
                rr = [f"ds_read_b32 v{SSR+2*nt+w}, v{EA+3} offset:{512*w+128*nt}" for nt in range(2) for w in range(2)]
            if k == 39:
                rr = [f"v_add_f32 v{SSR+2*nt}, v{SSR+2*nt}, v{SSR+2*nt+1}" for nt in range(2)]
                rr += [f"v_fma_f32 v{RSD+2*nt}, v{SSR+2*nt}, s78, v{EA+10}" for nt in range(2)]
                rr += [f"v_rsq_f32 v{RSD+2*nt}, v{RSD+2*nt}" for nt in range(2)]
                per = (2, 2, 2, 0)
            f = self.QF + 16 * (k % 3)
            for j, (mt, nt) in enumerate(((0, 0), (1, 0), (1, 1), (0, 1)) if k < 39 else ((1, 0), (1, 1), (0, 0), (0, 1))):
                d = vr(self.QACC + 32 * nt + 16 * mt, 16)
                a(f"v_mfma_f32_32x32x16_bf16 {d}, {vr(f+4*mt,4)}, {vr(f+8+4*nt,4)}, {'0' if k == 0 else d}")
                if j == 0 and (k == 39 or (k % 2 == 0 and k + 2 < 40)):
                    a("s_barrier")
                    if k == KW:
                        assert not work
                        a(f"ds_write_b64 v240, {vr(ACC,2)} offset:16384")
                for _ in range(per[j]):
                    if rr:
                        a(rr.pop(0))
                if k == K0:
                    for x in (["s_waitcnt vmcnt(0)"] + chk[:2], chk[2:4], chk[4:], [])[j]:
                        a(x)
                    if j == 3:
                        self.retry(chk, sl)
                if k > K0:
                    for _ in range(self.ss_dens()[j]):
                        if work:
                            a(work.pop(0))
        self.stamp(7)

        def sc(dst, src, n, nt):
            for h in range(n):
                r = vr(src + 2 * h, 2)
                if "eplain" in self.opts:
                    a(f"v_mul_f32 v{src+2*h}, v{src+2*h}, v{RSD+2*nt}\nv_mul_f32 v{src+2*h+1}, v{src+2*h+1}, v{RSD+2*nt}")
                else:
                    a(f"v_pk_mul_f32 {r}, {r}, {vr(RSD+2*nt,2)} op_sel_hi:[1,0]")
            for h in range(n):
                a(f"v_cvt_pk_bf16_f32 v{dst+h}, v{src+2*h}, v{src+2*h+1}")

        def sq(acc, srcs):
            for j, r in enumerate(srcs):
                if j == 0:
                    a(f"v_pk_mul_f32 {vr(acc,2)}, {vr(r,2)}, {vr(r,2)}")
                else:
                    a(f"v_pk_fma_f32 {vr(acc,2)}, {vr(r,2)}, {vr(r,2)}, {vr(acc,2)}")
        PB = [self.QACC + 32 * nt for nt in range(2)]
        self.fstamp("e", 0)
        for nt in range(2):
            sc(VR + 6 * nt, PB[nt] + 20, 6, nt)
            for i in range(3):
                a(f"ds_write_b64 v{EA}, {vr(VR+6*nt+2*i,2)} offset:{8*i+1536*nt}")
            for i in range(4):
                a(f"ds_read_b64_tr_b16 {vr(VT+8*nt+2*i,2)}, v{EA+1} offset:{(i//2)*768+(i%2)*192+1536*nt}")
        self.fstamp("e", 1)
        for nt in range(2):
            sc(KR + 4 * nt, PB[nt] + 8, 4, nt)
            a(f"buffer_store_dwordx4 {vr(KR+4*nt,4)}, {vL16}, {WS}, s77 offen offset:{A.TILE*nt} sc1")
            sc((Q2T, K2R)[nt], PB[nt] + 16, 2, nt)
        for i in range(2):
            a(f"v_permlane32_swap_b32 v{Q2T+i}, v{K2R+i}")
        a(f"""buffer_store_dwordx2 {vr(K2R,2)}, v{EA+6}, {WS}, s76 offen sc1
        s_mov_b64 exec, {A.VMASK}
        s_waitcnt lgkmcnt(0)""")
        for nt in range(2):
            for i in range(2):
                a(f"buffer_store_dwordx4 {vr(VT+8*nt+4*i,4)}, v{EA+2}, {WS}, s77 offen offset:{A.TILE*nt+1024+A.VFR*i} sc1")
        self.fstamp("e", 2)
        for nt in range(2):
            for i in range(2):
                a(f"ds_write_b128 v{EA+5}, {vr(VT+8*nt+4*i,4)} offset:{A.TILE*nt+1024+A.VFR*i}")
        a("s_mov_b64 exec, -1")
        for nt in range(2):
            sc(AR.Q1 + 4 * nt, PB[nt], 4, nt)
            a(f"ds_write_b128 v{EA+4}, {vr(KR+4*nt,4)} offset:{A.TILE*nt}")
            a(f"ds_write_b128 v{EA+8}, {vr(AR.Q1+4*nt,4)} offset:{1024*nt}")
        a(f"ds_write_b64 v{EA+7}, {vr(K2R,2)}")
        a(f"ds_write_b64 v{EA+9}, {vr(Q2T,2)} offset:2048")
        self.fstamp("e", 3)
        for nt in range(2):
            sq(W + 4 * nt, [PB[nt] + 2 * h for h in (0, 1, 2, 3)])
            sq(W + 4 * nt + 2, [PB[nt] + 2 * h for h in (4, 5, 6, 7)])
        for half, ex in enumerate(("exec_hi", "exec_lo")):
            a(f"s_mov_b32 {ex}, 0")
            for nt in range(2):
                for h in (8, 9):
                    r, c = vr(PB[nt] + 2 * h, 2), vr(W + 4 * nt + 2 * half, 2)
                    a(f"v_pk_fma_f32 {c}, {r}, {r}, {c}")
            a(f"s_mov_b32 {ex}, -1")
        for j in range(4):
            a(f"v_add_f32 v{N+j}, v{W+2*j}, v{W+2*j+1}")
        a(f"v_max3_f32 v{W}, abs(v{PB[0]+20}), abs(v{PB[0]+21}), abs(v{PB[1]+20})")
        rest = [PB[1] + 21] + [PB[nt] + h for nt in range(2) for h in range(22, 28)]
        rest.append(rest[-1])
        for j in range(0, len(rest), 2):
            a(f"v_max3_f32 v{W}, v{W}, abs(v{rest[j]}), abs(v{rest[j+1]})")
        a(f"v_permlane32_swap_b32 v{N}, v{N+2}\nv_permlane32_swap_b32 v{N+1}, v{N+3}\ns_mov_b32 exec_hi, 0")
        for nt in range(2):
            for h in (28, 30):
                a(f"v_max3_f32 v{W}, v{W}, abs(v{PB[nt]+h}), abs(v{PB[nt]+h+1})")
        a(f"""s_mov_b32 exec_hi, -1
        v_pk_add_f32 {vr(N,2)}, {vr(N,2)}, {vr(N+2,2)}
        v_cmp_gt_f32 vcc, {fbits(2.0**50)}, v{W}
        v_cndmask_b32 v{N+1}, 0x7f800000, v{N+1}, vcc""")
        for j, sh in enumerate((8, 4, 2, 1)):
            a(f"v_mov_b32 v{AR.Q2+6*(j//2)+j%2}, v{Q2T+j%2}")
            for r in (N, N + 1):
                a(f"v_max_u32 v{r}, v{r}, v{r} row_ror:{sh} row_mask:0xf bank_mask:0xf")
        a(f"""v_or_b32 v{N+1}, 1, v{N+1}
        s_mov_b32 exec_lo, 0x10001
        s_mov_b32 exec_hi, 0x10001
        ds_write_b64 v{EA+11}, {vr(N,2)}
        buffer_store_dword v{N+1}, v{EA+13}, {WS}, s79 offen sc1
        s_mov_b64 exec, -1""")
        self.q2_spread()
        self.fstamp("e", 14)
        a(f"""s_waitcnt lgkmcnt(0)
        s_barrier
        ds_read_b64 {vr(N,2)}, v{EA+12}""")

    def kv_dma(self):
        return [f"buffer_load_dwordx4 {vL16}, {WS}, s81 offen sc1 lds",
                f"buffer_load_dwordx4 {vL16}, {WS}, s81 offen offset:1024 sc1 lds",
                "s_mov_b32 exec_hi, 0",
                f"buffer_load_dwordx4 {vL16}, {WS}, s81 offen offset:2048 sc1 lds",
                "s_mov_b32 exec_hi, -1"]

    def att_dma(self, c):
        a = self.a
        a(f"s_mul_i32 s81, s80, {A.CHUNK}\ns_add_u32 m0, s85, {A.slot_off(c)}\ns_add_u32 s81, s81, s86")
        for x in self.kv_dma():
            a(x)
        a("s_add_u32 s80, s80, 1\ns_and_b32 s80, s80, 7")

    def att_slow(self):
        a = self.a
        M = 140
        for i in range(32):
            a(f"v_mov_b32 v{AR.O+i}, 0")
        for x in self.o_fill() + sum(self.x_fill() + self.res_load(), []):
            a(x)
        a(f"v_mov_b32 v{M}, 0xff800000\nv_mov_b32 v{M+1}, 0xff800000\ns_waitcnt vmcnt(0)")
        for ps in range(2):
            lp = a.lab("Lsl")
            a(f"s_mov_b32 s80, 0\n{lp}:\ns_barrier")
            self.att_dma(0)
            a("s_waitcnt vmcnt(0)\ns_barrier")
            for n in range(8):
                if n % 2 == 0:
                    for r in A.rd_k(n // 2) + (A.rd_v(n // 2) if ps else []):
                        a(r)
                    a("s_waitcnt lgkmcnt(0)")
                a(A.qk1(n))
                a(A.qk2(n))
                s = AR.S + 16 * (n % 3)
                if ps == 0:
                    for i in range(8):
                        a(f"v_max3_f32 v{M+n%2}, v{M+n%2}, v{s+2*i}, v{s+2*i+1}")
                else:
                    for i in range(16):
                        a(f"v_sub_f32 v{s+i}, v{s+i}, v{M+n%2}")
                    for i in range(16):
                        a(A.ex(n, i))
                    a(A.pv(n, 0))
                    a(A.pv(n, 1))
            a(f"s_cmp_lg_u32 s80, 0\ns_cbranch_scc1 {lp}")
            if ps == 0:
                off = A.SLOT0 + A.slot_off(1)
                a(f"""v_lshlrev_b32 v5, 3, {vTID}
                v_xor_b32 v6, 0x800, v5
                v_add_u32 v5, {off}, v5
                v_add_u32 v6, {off}, v6
                ds_write_b64 v5, {vr(M,2)}
                s_waitcnt lgkmcnt(0)
                s_barrier
                ds_read_b64 {vr(M+2,2)}, v6
                s_waitcnt lgkmcnt(0)""")
                for q in range(2):
                    a(f"""v_max_f32 v{M+q}, v{M+q}, v{M+3-q}
                    v_mov_b32 v5, v{M+q}
                    v_permlane32_swap_b32 v5, v{M+q}
                    v_max_f32 v{M+q}, v5, v{M+q}""")
        for i in range(13):
            for x in self.img_piece(i == 12):
                a(x)

    def img_piece(self, half=False):
        ld = f"buffer_load_dwordx4 {vL16}, {WS}, s9 offen sc1 lds"
        step = 512 if half else 1024
        mid = ["s_mov_b32 exec_hi, 0", ld, "s_mov_b32 exec_hi, -1"] if half else [ld]
        return ["s_mov_b32 m0, s8", f"s_add_u32 s8, s8, {step}"] + mid + [f"s_add_u32 s9, s9, {step}"]

    def attention(self):
        a = self.a
        N = self.NREG
        l0, l1, l2, l3, l4, l5, slow, done, loop = (a.lab("La") for _ in range(9))
        a(f"""s_lshl_b32 s11, {sH}, 10
        s_add_u32 s11, s11, {sFL}
        s_add_u32 s11, s11, {F_KV*FSTRIDE}
        s_lshl_b32 s12, {sTT}, 7
        s_add_u32 s12, s12, s11
        s_mul_i32 s8, {sWV}, 12800
        s_mov_b32 s9, {WOT}
        s_cmp_eq_u32 {sLAYER}, 0
        s_cselect_b32 s9, {WOH}, s9
        s_mul_i32 s72, {sCB}, 102400
        s_add_u32 s9, s9, s72
        s_add_u32 s9, s9, s8""")
        self.stamp(8)
        A.start(a, 0)
        redo, back, lo, li = (a.lab("Lredo") for _ in range(4))
        a(f"v_cmp_lt_u32 vcc, 0x7f800000, v{N}\ns_cbranch_vccnz {redo}\n{back}:")
        chk = "\n".join(self.umax(5, [5, 60, 61, 62, 63]))
        self.cold.append(f"""{redo}:
        s_cmp_lg_u32 s14, 0
        s_cbranch_scc1 {back}
        s_mov_b32 s14, 1
        {self.count_text(10)}
        s_mov_b32 s88, {SPIN >> 4}
        {lo}:
        s_mul_i32 s72, {sTT}, 327680
        s_add_u32 s72, s72, {sXB}
        s_mul_i32 s73, {sWV}, 40960
        s_add_u32 s72, s72, s73
        s_add_u32 s73, s72, 40960
        v_mov_b32 v5, 0
        {li}:
        buffer_load_dwordx4 v[60:63], {vL16}, {WS}, s72 offen sc1
        s_add_u32 s72, s72, 1024
        s_cmp_lt_u32 s72, s73
        s_waitcnt vmcnt(0)
        {chk}
        s_cbranch_scc1 {li}
        v_cmp_eq_u32 vcc, -1, v5
        s_sub_u32 s88, s88, 1
        s_cselect_b64 vcc, 0, vcc
        s_cbranch_vccnz {lo}
        s_waitcnt lgkmcnt(0)
        s_barrier
        s_branch Lqkv""")

        def publish():
            lw = a.lab("La")
            self.if_lo(lw)
            a(f"s_waitcnt vmcnt(1)\ns_cmp_eq_u32 s14, 0\ns_cbranch_scc1 {lw}\ns_waitcnt vmcnt(0)\n{lw}:\ns_barrier")
            self.push("s11", 7, wave=4, n=8)
            lf, lr = a.lab("La"), a.lab("La")
            self.if_hi(lf)
            a(f"s_cmp_lg_u32 {sLAYER}, 0\ns_cbranch_scc1 {lr}")
            a(f"""s_lshl_b32 s76, {sWM}, 9
            s_add_u32 s76, s76, {sREP}
            s_add_u32 s76, s76, {F_IMG*FSTRIDE}
            v_lshlrev_b32 v5, 7, {vL}
            v_mov_b32 v143, 0
            s_mov_b64 exec, 15
            buffer_atomic_add v143, v5, {WS}, s76 offen sc0 sc1
            s_mov_b64 exec, -1""")
            a(f"s_branch {lf}\n{lr}:")
            for q in range(6):
                if q not in self.ft_early.values():
                    self.ft_part(q)
            a(f"""s_lshl_b32 s74, {sWM}, 10
            s_add_u32 m0, s74, 98304
            s_sub_u32 s83, s82, s78
            s_add_u32 s83, s83, m0
            buffer_load_dwordx4 {vL16}, {WS}, s83 offen sc1 lds""")
            a(f"{lf}:")

        def early():
            lm = a.lab("La")
            a(f"s_or_b32 s72, {sHI}, {sLAYER}\ns_cbranch_scc1 {lm}")
            fetch()
            a(f"{lm}:")

        def late():
            lm, ln = a.lab("La"), a.lab("La")
            a(f"s_cmp_eq_u32 {sLAYER}, 0\ns_cbranch_scc1 {ln}")
            self.if_hi(lm)
            a(f"s_waitcnt vmcnt(0)\ns_barrier\ns_branch {ln}\n{lm}:\ns_barrier")
            fetch()
            a(f"{ln}:")

        def fetch():
            l2 = a.lab("La")
            a(f"""v_bfe_u32 v5, {vL}, 2, 3
            v_and_b32 v6, 3, {vL}
            v_lshlrev_b32 v6, 4, v6
            v_lshl_add_u32 v{N+1}, v5, 7, v6
            s_lshl_b32 s76, {sH}, 10
            s_lshl_b32 s75, {sLAYER}, 15
            s_add_u32 s76, s76, s75
            s_add_u32 s76, s76, {F_KMAX*FSTRIDE}
            s_mul_i32 s72, {sWM}, 2560
            s_add_u32 s73, s85, s72
            s_add_u32 s74, s86, s72
            s_movk_i32 s75, 2560""")
            for c in (1, 2):
                a(f"""s_or_b32 s80, {sTT}, 1
                s_add_u32 s80, s80, {c}
                s_and_b32 s80, s80, 7
                s_mul_i32 s81, s80, {A.CHUNK}
                s_add_u32 s{76+c}, s81, s74""")
            a(f"s_add_u32 m0, s73, {A.slot_off(1)}")
            self.wait_lines("s12", 1, 8)
            self.fstamp("a", 14)
            a(f"s_cmp_lg_u32 {sWV}, 0\ns_cbranch_scc1 {l2}\nbuffer_load_dwordx4 v[140:143], v{N+1}, {WS}, s76 offen sc1\n{l2}:")
            for c in (1, 2):
                if c == 2:
                    a(f"s_add_u32 m0, s73, {A.slot_off(c)}")
                for i in range(4):
                    a(f"buffer_load_dwordx4 {vL16}, {WS}, s{76+c} offen offset:{1024*i} sc1 lds")
                a(f"s_add_u32 m0, m0, 4096\ns_add_u32 s81, s{76+c}, 4096")
                a(f"buffer_load_dwordx4 {vL16}, {WS}, s81 offen sc1 lds")
        pi = next((int(o[2:]) for o in self.opts if o.startswith("pi")), 5)
        for n in range(8):
            A.iteration(a, n, 8, {self.pub: publish, pi: early, 6: late}.get(n), first=(n == 0))
        a(A.pv(7, 1))
        self.stamp(9)
        self.if_lo(l1)
        a(f"s_cmp_lg_u32 {sLAYER}, 0\ns_cbranch_scc1 {l0}\ns_barrier\n{l0}:")
        for sh in (8, 4, 2, 1):
            a(f"v_max_u32 v{N}, v{N}, v{N} row_ror:{sh} row_mask:0xf bank_mask:0xf")
        kb, ko = a.lab("Lbad"), a.lab("Lok")
        self.cold.append(f"""{kb}:
        buffer_load_dwordx4 v[140:143], v{N+1}, {WS}, s76 offen sc1
        s_sub_u32 s88, s88, 1
        s_waitcnt vmcnt(0)
        s_cbranch_scc1 {ko}
        v_min3_u32 v7, v140, v141, v142
        v_min_u32 v7, v7, v143
        v_cmp_eq_u32 vcc, 0, v7
        s_cbranch_vccnz {kb}
        s_branch {ko}""")
        a(f"""s_mov_b32 s88, {SPIN}
        s_cmp_lg_u32 {sWV}, 0
        s_cbranch_scc1 {l5}
        s_waitcnt vmcnt(10)
        v_min3_u32 v7, v140, v141, v142
        v_min_u32 v7, v7, v143
        v_cmp_eq_u32 vcc, 0, v7
        s_cbranch_vccnz {kb}
        {ko}:
        v_max3_u32 v7, v140, v141, v142
        v_max_u32 v7, v7, v143
        v_mul_f32 v7, v7, v{N}
        v_cmp_nge_f32 vcc, {fbits(3600.0)}, v7
        s_or_b32 s72, vcc_lo, vcc_hi
        v_mov_b32 v5, {A.SLOT0 + A.slot_off(0)}
        v_mov_b32 v6, s72
        v_mad_u32_u24 v5, {vL}, s75, v5
        s_mov_b64 exec, 0xff
        ds_write_b32 v5, v6
        s_mov_b64 exec, -1
        {l5}:""")
        self.fstamp("b", 2)
        a("s_waitcnt vmcnt(5)")
        self.fstamp("b", 3)
        a(f"""s_branch {l3}
        {l1}:
        s_cmp_lg_u32 {sLAYER}, 0
        s_waitcnt vmcnt(0)
        s_cbranch_scc1 {l4}""")
        lg = a.lab("La")
        a(f"s_mov_b64 exec, 15\nv_cmp_gt_u32 vcc, 6, v143\ns_mov_b64 exec, -1\ns_cbranch_vccz {lg}")
        self.wait_lines("s76", 4, 6)
        a(f"{lg}:\ns_barrier\ns_branch {l3}\n{l4}:")
        self.gcore(0, 20, False, True, False)
        a(f"v_mov_b32 v6, {fbits(AMP)}")
        for h in range(10):
            a(f"v_pk_mul_f32 {vr(GLO+2*h,2)}, {vr(GLO+2*h,2)}, v[6:7] op_sel_hi:[1,0]")
        a(f"""{l3}:
        v_mov_b32 v5, s85
        s_or_b32 s80, {sTT}, 1
        s_add_u32 s80, s80, 3
        s_and_b32 s80, s80, 7
        s_waitcnt lgkmcnt(0)
        s_barrier
        ds_read_b32 v6, v5 offset:{A.slot_off(0)}""")
        self.stamp(10)
        A.start(a, 8)
        self.att_dma(0)
        a(f"""v_readfirstlane_b32 s72, v6
        s_cmp_lg_u32 s72, 0
        s_cbranch_scc1 {slow}""")
        NT = 64
        prio = {"pa": ((4, 0), (5, 0), (5, 3)), "pb": ((3, 0), (5, 0), (5, 3)), "pc": ((2, 0), (4, 2), (5, 2)),
                "pd": ((1, 0), (3, 0), (5, 0))}[next((o for o in self.opts if o in ("pa", "pb", "pc", "pd")), "pb")]
        order = ["K3"] * 3
        imgs = [n for n in range(10, 62) if n % 8 in (2, 3)][:13]

        of = self.o_fill()
        jobs = self.res_load() + [of[:4], of[4:5], of[5:]] + self.x_fill()
        spots = [n for n in range(16, 60) if n % 8 in (0, 1, 4)]
        extra = dict(zip(spots, jobs))
        assert len(extra) == len(jobs)

        def bnd(c):
            def f():
                last = max((i for i, t in enumerate(order) if t == f"K{c+1}"), default=-1)
                a(f"s_waitcnt vmcnt({len(order)-1-last}) lgkmcnt(0)\ns_barrier\ns_setprio 3")
            return f

        def hooks(n):
            h = {}

            def add(k, xs):
                h.setdefault(k, []).extend(xs)
            for lvl, (t, k) in zip((2, 1, 0), prio):
                if n % 8 == t:
                    add(k, [f"s_setprio {lvl}"])
            c = (n + 2) // 8 - 1
            d = self.kv_dma()
            if 1 <= c <= 4:
                if n % 8 == 6:
                    add(2, [f"s_mul_i32 s81, s80, {A.CHUNK}", f"s_add_u32 m0, s85, {A.slot_off(c)}"])
                    add(3, ["s_add_u32 s81, s81, s86"])
                if n % 8 == 7:
                    add(0, d[:1])
                    add(2, ["s_add_u32 s80, s80, 1", "s_and_b32 s80, s80, 7"] + d[1:2])
                    add(3, d[2:])
                    order.extend([f"K{c+3}"] * 3)
                if n % 8 == 0:
                    add(2, [f"s_cmp_eq_u32 s80, {sTT}", "s_addc_u32 s80, s80, 0"])
            if n in imgs:
                add(3, self.img_piece(n == imgs[-1]))
                order.append("I")
            if n in extra:
                add(3, extra[n])
                order.extend(["F"] * sum(x.startswith("buffer") for x in extra[n]))
            return h
        for n in range(8, 64):
            c = n // 8
            A.iteration(a, n, NT, bnd(c) if (n % 8 == 6 and c < 7) else None, first=(n == 8), hooks=hooks(n))
        a(A.pv(63, 1))
        a(f"{done}:")
        for x in self.o_send():
            a(x)
        self.fstamp("a", 2)
        self.slow_labels = (slow, done)
        O, X = AR.O + 16, AR.S + 16
        a(f"""s_setprio 0
        s_lshl_b32 s72, {sTT}, 12
        s_add_u32 s72, s72, {sFL}
        s_add_u32 s72, s72, {F_O*FSTRIDE}
        s_lshl_b32 s34, {sH}, 7
        s_add_u32 s34, s34, s72
        s_waitcnt vmcnt(0) lgkmcnt(0)
        s_barrier""")
        for i in (2, 0, 1):
            a(f"ds_read_b128 {vr(X+4*i,4)}, v{N+5} offset:{1024*i}")
        self.push("s72", 7, wave=0, n=32)
        a("s_waitcnt lgkmcnt(2)")
        for h in (4, 5):
            a(f"v_pk_add_f32 {vr(O+2*h,2)}, {vr(O+2*h,2)}, {vr(X+2*h,2)}")
        a(f"v_mov_b32 v6, v{O+8}\nv_mov_b32 v7, v{O+8}\ns_waitcnt lgkmcnt(0)")
        for h in range(2):
            a(f"v_pk_add_f32 {vr(O+2*h,2)}, {vr(O+2*h,2)}, {vr(X+2*h,2)}")
        a("v_permlane32_swap_b32 v7, v6\nv_rcp_f32 v6, v6")
        for h in range(2, 4):
            a(f"v_pk_add_f32 {vr(O+2*h,2)}, {vr(O+2*h,2)}, {vr(X+2*h,2)}")
        self.fstamp("a", 3)
        for h in range(4):
            a(f"v_pk_mul_f32 {vr(O+2*h,2)}, {vr(O+2*h,2)}, v[6:7] op_sel_hi:[1,0]")
        for h in range(4):
            a(f"v_cvt_pk_bf16_f32 v{8+h}, v{O+2*h}, v{O+2*h+1}")
        self.clean(8, 4)
        a(f"buffer_store_dwordx4 v[8:11], v{N+6}, {WS}, s18 offen sc1")
        for h in range(4, 6):
            a(f"v_pk_mul_f32 {vr(O+2*h,2)}, {vr(O+2*h,2)}, v[6:7] op_sel_hi:[1,0]")
        for h in range(4, 6):
            a(f"v_cvt_pk_bf16_f32 v{8+h}, v{O+2*h}, v{O+2*h+1}")
        self.clean(12, 2)
        a(f"""s_mov_b32 exec_hi, 0
        buffer_store_dwordx2 v[12:13], v{N+7}, {WS}, s19 offen sc1
        s_mov_b64 exec, -1""")

    def o_send(self):
        return [f"ds_write_b128 v{self.NREG+4}, {vr(AR.O+4*i,4)} offset:{1024*i}" for i in range(3)]

    def o_prepare(self):
        a = self.a
        N = self.NREG
        a(f"""s_mul_i32 s72, {sWM}, 3072
        s_add_u32 s72, s72, {A.SLOT0}
        s_mul_i32 s73, {sHI}, {A.CHUNK}
        s_add_u32 s74, s72, s73
        v_add_u32 v{N+4}, s74, {vL16}
        s_sub_u32 s74, s72, s73
        s_add_u32 s74, s74, {A.CHUNK}
        v_add_u32 v{N+5}, s74, {vL16}
        s_lshl_b32 s72, {sTT}, 1
        s_lshr_b32 s73, {sWM}, 1
        s_add_u32 s72, s72, s73
        s_lshl_b32 s72, s72, 5
        s_add_u32 s72, s72, {sH}
        s_and_b32 s73, {sWM}, 1
        s_lshl_b32 s73, s73, 1
        s_add_u32 s73, s73, 1
        s_sub_u32 s73, s73, {sHI}
        s_lshl_b32 s18, s72, 12
        s_lshl_b32 s74, s73, 9
        s_add_u32 s18, s18, s74
        s_add_u32 s18, s18, {sO}
        s_lshl_b32 s19, s72, 10
        s_lshl_b32 s74, s73, 8
        s_add_u32 s19, s19, s74
        s_add_u32 s19, s19, {sO}
        s_add_u32 s19, s19, {OXOFF}
        v_lshrrev_b32 v5, 5, {vL}
        v_mul_u32_u24 v5, 1536, v5
        v_add_u32 v{N+6}, v5, {vL16}
        v_lshlrev_b32 v{N+7}, 3, {vL}
        s_mul_i32 s0, {sT}, 163840
        s_mul_i32 s72, {sCB}, 20480
        s_add_u32 s0, s0, s72
        s_lshl_b32 s72, {sHALF}, 7
        s_add_u32 s0, s0, s72
        s_add_u32 s0, s0, {X0+2*XSZ}
        s_mul_i32 s1, {sWV}, {2*163840}
        s_mul_i32 s72, {sX}, 20
        s_add_u32 s72, s72, {sR}
        s_lshl_b32 s72, s72, 10
        s_add_u32 s1, s1, s72
        s_add_u32 s1, s1, {X0+3*XSZ}
        s_cmp_ge_u32 {sR}, 20
        s_cselect_b32 s1, s22, s1""")

    def x_fill(self):
        st = "buffer_store_dwordx4 v[140:143]"
        return [[f"v_lshrrev_b32 v5, 3, {vTID}", "v_lshlrev_b32 v5, 7, v5", f"v_lshl_add_u32 v5, {vTID}, 4, v5",
                 f"s_cmp_eq_u32 {sLAYER}, 0", "s_cselect_b32 s15, s0, s22", "s_cselect_b32 s16, s1, s22"],
                [f"{st}, v5, {WS}, s15 offen sc1", "s_add_u32 s15, s15, 16384", f"s_cmp_gt_u32 {sWV}, 1", "s_cselect_b32 s15, s22, s15"],
                [f"{st}, v5, {WS}, s15 offen sc1"],
                [f"{st}, {vL16}, {WS}, s16 offen sc1", "s_add_u32 s16, s16, 163840"],
                [f"{st}, {vL16}, {WS}, s16 offen sc1"]]

    def o_fill(self):
        N = self.NREG
        r = [f"v_mov_b32 v{140+i}, -1" for i in range(4)]
        r += [f"buffer_store_dwordx4 v[140:143], v{N+6}, {WS}, s18 offen sc1", "s_mov_b32 exec_hi, 0"]
        r += [f"buffer_store_dwordx2 v[140:141], v{N+7}, {WS}, s19 offen sc1", "s_mov_b32 exec_hi, -1"]
        return r

    def o_look(self):
        self.a(f"v_mov_b32 v19, 0\ns_mov_b64 exec, 1\nbuffer_atomic_add v19, {vL16}, {WS}, s34 offen sc0 sc1\ns_mov_b64 exec, -1")

    def o_loads(self):
        a = self.a
        a(f"""s_lshl_b32 s72, {sHALF}, 6
        s_lshl_b32 s73, {sWM}, 4
        s_add_u32 s72, s72, s73
        v_add_u32 v5, s72, {vN}
        v_lshlrev_b32 v6, 11, {vG}
        v_lshl_add_u32 v141, v5, 4, v6
        v_lshl_add_u32 v142, v5, 3, v6
        s_lshl_b32 s72, {sT}, 17
        s_add_u32 s72, s72, {sO}
        s_lshl_b32 s73, {sT}, 15
        s_add_u32 s73, s73, {sO}
        s_add_u32 s73, s73, {OXOFF}
        s_mov_b32 s78, s72
        s_mov_b32 s79, s73""")
        for i in range(20):
            a(f"v_mov_b32 v{GHI+i}, v{GLO+i}")
        if "nogate" not in self.opts:
            l = a.lab("Lo")
            a(f"s_waitcnt vmcnt(0)\nv_readfirstlane_b32 s74, v19\ns_cmp_ge_u32 s74, 32\ns_cbranch_scc1 {l}")
            self.wait_lines("s34", 1, 32)
            a(f"{l}:")
        self.stamp(12)

    def o_proj(self, swap):
        a = self.a
        top, bad, ok = a.lab("Lo"), a.lab("Lbad"), a.lab("Lok")
        a(f"s_mov_b32 s88, {SPIN >> 3}\n{top}:")
        for ks in range(self.olead):
            self.o_load(ks)
        self.fstamp("p", 0)
        hook = None
        if not swap and self.hk is not None:
            def early():
                l = a.lab("Lo")
                a(f"""s_cmp_lg_u32 s76, 4
                s_cbranch_scc1 {l}
                s_mov_b64 exec, 0xffff
                buffer_atomic_add v143, v19, {WS}, s77 offen sc1
                s_mov_b64 exec, -1
                s_mov_b32 s76, 0
                {l}:""")
            hook = (self.hk, early)
        self.gcore(0, 20, False, swap, True, self.o_wait, feed=self.o_feed, hook=hook)
        a(f"v_cmp_u_f32 vcc, v{GLO}, v{GLO+1}\nv_cmp_u_f32 s[74:75], v{GLO+2}, v{GLO+3}\ns_or_b64 vcc, vcc, s[74:75]")
        a(f"s_cbranch_scc1 {bad}\n{ok}:")
        self.fstamp("p", 2)
        body = [f"{bad}:"] + self.umax(5, range(GA, GA + 80)) + ["v_cmp_eq_u32 vcc, -1, v5", f"s_cbranch_vccz {ok}"]
        body += [self.count_text(9), "s_sub_u32 s88, s88, 1", f"s_cbranch_scc1 {ok}", "s_mov_b32 s72, s78", "s_mov_b32 s73, s79"]
        body += [f"v_mov_b32 v{GLO+i}, v{GHI+i}" for i in range(20)] + [f"s_branch {top}"]
        self.cold.append("\n".join(body))

    def o_load(self, ks):
        a = self.a
        if ks < 16:
            a(f"buffer_load_dwordx4 {vr(GA+4*ks,4)}, v141, {WS}, s72 offen sc1")
            a("s_add_u32 s72, s72, 8192")
        elif ks < 20:
            for i in range(2):
                a(f"buffer_load_dwordx2 {vr(GA+4*ks+2*i,2)}, v142, {WS}, s73 offen offset:{1024*i} sc1")
            a("s_add_u32 s73, s73, 8192")

    def o_feed(self, ks):
        self.o_load(ks + self.olead)

    def o_wait(self, ks):
        return sum(1 if k < 16 else 2 for k in range(ks + 1, min(20, ks + self.olead)))

    def res_load(self):
        r = [[f"s_lshl_b32 s73, {sWM}, 5", "s_add_u32 s13, s0, s73", f"s_sub_u32 s13, s13, {XSZ}", f"s_cmp_gt_u32 {sHI}, {sLAYER}",
              "s_cselect_b32 s13, s13, s22", f"v_lshlrev_b32 v7, 8, {vN}", f"v_lshl_add_u32 v7, {vG}, 3, v7"]]
        for ct in range(5):
            r.append([f"buffer_load_dwordx2 {vr(GA+2*ct,2)}, v7, {WS}, s13 offen sc1", "s_add_u32 s13, s13, 4096"])
        return r

    def final_setup(self):
        a = self.a
        a(f"""s_mul_i32 s72, {sWM}, {16*176}
        s_add_u32 s72, s72, {EP}
        v_mul_u32_u24 v5, 176, {vN}
        v_lshl_add_u32 v5, {vG}, 3, v5
        v_add_u32 v11, s72, v5""")
        a(f"""s_and_b32 s73, {sT}, 7
        s_lshl_b32 s73, s73, 8
        s_lshr_b32 s74, {sT}, 3
        s_lshl_b32 s74, s74, 4
        s_add_u32 s73, s73, s74
        s_lshl_b32 s74, {sHALF}, 3
        s_add_u32 s73, s73, s74
        s_lshl_b32 s74, {sWM}, 1
        s_add_u32 s73, s73, s74
        s_mul_i32 s73, s73, 1280
        s_mul_i32 s74, {sCB}, 160
        s_add_u32 s73, s73, s74
        s_movk_i32 s74, 176
        s_movk_i32 s75, 1280""")
        for i in range(3):
            a(f"""v_add_u32 v5, {64*i}, {vL}
            v_mul_u32_u24 v6, 205, v5
            v_lshrrev_b32 v6, 11, v6
            v_mul_u32_u24 v7, 10, v6
            v_sub_u32 v5, v5, v7
            v_lshlrev_b32 v5, 4, v5
            v_mad_u32_u24 v{8+i}, v6, s74, v5
            v_add_u32 v{8+i}, s72, v{8+i}
            v_and_b32 v7, 7, v6
            v_lshrrev_b32 v6, 3, v6
            v_lshl_add_u32 v6, v7, 5, v6
            v_mad_u32_u24 v{12+i}, v6, s75, v5""")
        a("s_mov_b32 s77, s73")

    def final_store(self):
        a = self.a
        for ct in range(5):
            a(f"v_cvt_pk_bf16_f32 v{16+2*ct}, v{GLO+4*ct}, v{GLO+4*ct+1}")
            a(f"v_cvt_pk_bf16_f32 v{17+2*ct}, v{GLO+4*ct+2}, v{GLO+4*ct+3}")
            a(f"ds_write_b64 v11, {vr(16+2*ct,2)} offset:{ct*32}")
        for i in range(3):
            a(f"ds_read_b128 {vr(28+4*i,4)}, v{8+i}")
        for i in range(3):
            if i == 2:
                a("s_mov_b32 exec_hi, 0")
            a(f"s_waitcnt lgkmcnt({2-i})")
            a(f"buffer_store_dwordx4 {vr(28+4*i,4)}, v{12+i}, {SOUT}, s77 offen")

    def build(self):
        a = self.a
        self.prologue()
        self.phase0()
        a(f"""s_mov_b32 {sXA}, {X0}
        s_mov_b32 {sXB}, {X0+XSZ}
        s_mov_b32 {sKV}, {KV0}
        s_mov_b32 {sO}, {OM0}
        s_mov_b32 {sSS}, {SS0}
        s_mov_b32 s35, 0
        Llayer:""")
        idle, cdone, l0, l1, l2, l3, l4, l5, l6, l7, l8, last = (a.lab("Lm") for _ in range(12))
        a(f"s_cmp_ge_u32 {sR}, 20\ns_cbranch_scc1 {idle}")
        self.x_look()
        self.col_consts()
        self.col_main()
        a(f"""s_branch {cdone}
        {idle}:
        s_cmp_lg_u32 {sLAYER}, 0
        s_cbranch_scc1 {l0}""")
        self.job_woh()
        a(f"s_branch {l1}\n{l0}:")
        self.job_images()
        a(f"s_add_u32 s72, {sSH}, {(F_IMG+1)*FSTRIDE}\ns_barrier")
        self.push("s72", 11, wave=0)
        a(f"{l1}:\nv_mov_b32 v19, 0\n{cdone}:")
        self.stamp(5)
        self.if_hi(l2)
        self.pre_flags()
        a(f"s_waitcnt vmcnt(2)\ns_mov_b64 exec, 15\nv_cmp_gt_u32 vcc, s89, v19\ns_mov_b64 exec, -1\ns_cbranch_vccz {l2}")
        self.wait_lines("s72", 4, "s89")
        a(f"{l2}:\ns_mov_b32 s14, 0\ns_cmp_lt_u32 {sR}, 20\ns_waitcnt lgkmcnt(0)\ns_cbranch_scc1 Lqkv\ns_barrier\nLqkv:")
        self.if_lo(l3)
        self.qkv_compute()
        a(f"s_branch {l4}\n{l3}:")
        self.qkv_helper()
        a(f"{l4}:")
        self.attention()
        self.stamp(11)
        a("s_barrier")
        self.fstamp("a", 15)
        a(f"s_cmp_lg_u32 {sLAYER}, 0\ns_cbranch_scc1 {last}")
        self.if_lo(l5)
        self.x_store_setup()
        a(f"s_cmp_ge_u32 {sR}, 20\ns_cbranch_scc1 {l6}")
        self.col_tables(sWM, 4)
        self.col_early()
        a(f"{l6}:")
        a(f"s_add_u32 s76, {sSH}, {FLAGS+4*FSTRIDE}\ns_waitcnt lgkmcnt(0)\ns_barrier")
        if self.hk is None:
            self.push("s76", 11, wave=3)
        self.x_store("s0")
        self.stamp(13)
        a(f"s_branch {l7}\n{l5}:\ns_setprio 2")
        self.o_look()
        self.unpack(GLO, GA, 10)
        self.col_early()
        self.ep_setup()
        self.o_loads()
        a(f"s_mov_b32 s76, {sWV}\ns_add_u32 s77, {sSH}, {FLAGS+4*FSTRIDE}\nv_lshlrev_b32 v19, 11, {vL}\nv_mov_b32 v143, 1")
        self.o_proj(False)
        self.ep_write(False)
        self.fstamp("p", 3)
        a(f"""s_lshl_b32 s85, {sT}, 11
        s_lshl_b32 s86, {sCB}, 8
        s_add_u32 s85, s85, s86
        s_lshl_b32 s86, {sHALF}, 7
        s_add_u32 s85, s85, s86
        s_add_u32 s85, s85, {SS0+65536}
        s_waitcnt lgkmcnt(0)
        s_barrier""")
        self.ss_store(sCB, "s85")
        a("s_setprio 0")
        self.stamp(13)
        a(f"{l7}:")
        a(f"""s_mov_b32 {sLAYER}, 1
        s_mov_b32 {sXA}, {X0+2*XSZ}
        s_mov_b32 {sXB}, {X0+3*XSZ}
        s_mov_b32 {sKV}, {KV0+KVSZ}
        s_mov_b32 {sO}, {OM0+OSZ}
        s_mov_b32 {sSS}, {SS0+65536}
        s_mov_b32 {sFL}, {FLAGS+4*FSTRIDE}
        """)
        a(f"s_branch Llayer\n{last}:")
        self.if_hi("Lfin")
        self.o_look()
        self.final_setup()
        self.o_loads()
        self.o_proj(True)
        self.final_store()
        self.fstamp("p", 3)
        if self.stamps or self.probe is not None:
            a("s_mov_b64 exec, -1\ns_waitcnt vmcnt(0)")
            self.stamp(13)
        if self.probe is not None:
            a("""s_memrealtime s[90:91]
            s_sub_u32 s98, s98, s100
            Lspin:
            s_memrealtime s[92:93]
            s_waitcnt lgkmcnt(0)
            s_sub_u32 s92, s92, s90
            s_cmp_lt_u32 s92, s98
            s_cbranch_scc1 Lspin""")
        a("Lfin:")
        self.stamp_dump()
        a("s_endpgm")
        self.col_early_body()
        a("Lend:\ns_endpgm")
        slow, done = self.slow_labels
        a(f"{slow}:")
        self.att_slow()
        a(f"s_barrier\ns_branch {done}")
        for blk in self.cold:
            a(blk)
        return a.finalize()


def wrap(body):
    ref = open("cdna_kernels/" + NAME + ".s.ref").read()
    head = ref[:ref.index("; @launch")]
    out = head + "; @launch grid=(256,1,1) block=(512,1,1) lds=163840\n"
    out += f""".amdgcn_target "amdgcn-amd-amdhsa--gfx950"
.text
.globl {NAME}_kernel
.p2align 8
.type {NAME}_kernel,@function
{NAME}_kernel:
"""
    out += body
    out += ref[ref.index(".section .rodata"):]
    return out


if __name__ == "__main__":
    stamps = "--stamps" in sys.argv
    path = sys.argv[1]
    opts = [x[2:] for x in sys.argv[2:] if x.startswith("--")]
    g = Gen(stamps=stamps, opts=opts)
    txt = wrap(g.build())
    if "nosc1lds" in opts:
        txt = txt.replace(" sc1 lds", " lds")
    open(path, "w").write(txt)
    print("wrote", path, len(txt), "bytes; padded wait states", g.a.padded)
```

```python
import math, struct, sys
from asmlib import *
import attn as A
from attn import AR
from layout import *

NAME = "interleave_layers__spectral_gfnet__mha_block__prompt"


def fbits(x):
    return "0x%08x" % struct.unpack("<I", struct.pack("<f", x))[0]


WS, SX, SWF, SWQ, SWO, SOUT, SDBG = "s[20:23]", "s[24:27]", "s[28:31]", "s[36:39]", "s[40:43]", "s[44:47]", "s[48:51]"
sB, sWV, sX, sR, sT, sH, sHALF, sCB, sLAYER, sCB0, sTB0 = "s2", "s3", "s52", "s53", "s54", "s55", "s56", "s57", "s58", "s59", "s60"
sXA, sXB, sKV, sO, sSS, sFL, sSTAMP, sWM, sHI = "s61", "s62", "s63", "s64", "s65", "s66", "s67", "s68", "s69"
vTID, vL, vN, vG, vL16 = "v0", "v1", "v2", "v3", "v4"

AMP = math.sqrt(2.0 / 640)
QS = 20 ** -0.5 * math.log2(math.e)
SPIN = 1 << 16

XS, FI, EP, TB, TRS = 0, 81920, 133120, 145408, 157696
GA, GB, GLO, GHI = 164, 60, 144, 120
F_X, F_COL, F_KV, F_O, F_WQ, F_IMG, F_KMAX = 0, 1, 2, 3, 8, 9, 11
sSH, sREP, sTT = "s32", "s33", "s94"


class Gen:
    def __init__(self, stamps=False, opts=()):
        self.opts = set(opts)
        self.a = Asm()
        self.stamps = stamps
        self.olead = next((int(o[2:]) for o in self.opts if o.startswith("ol")), 10)
        self.cold = []
        self.hc = next((int(o[2:]) for o in self.opts if o.startswith("hc")), 0)
        self.jit = next((int(o[3:]) for o in self.opts if o.startswith("jit")), None)
        self.ft_early = {} if "ft0" in self.opts else ({17: 0, 19: 1} if "ft2" in self.opts else {17: 0, 18: 1, 19: 3})
        self.hk = next((int(o[2:]) for o in self.opts if o.startswith("hk")), 19)
        self.hk = None if self.hk > 19 else self.hk
        self.ho = next((int(o[2:]) for o in self.opts if o.startswith("ho")), None)
        self.wg = next((int(o[2:]) for o in self.opts if o.startswith("wg")), 5)
        self.probe = next((int(o[5:]) for o in self.opts if o.startswith("probe")), None)
        self.stw = next((int(o[3:]) for o in self.opts if o.startswith("stw")), 0)
        self.pub = next((int(o[3:]) for o in self.opts if o.startswith("pub")), 1)

    def stamp(self, k):
        if self.jit is not None:
            l, e = self.a.lab("Lj"), self.a.lab("Lj")
            self.a(f"""s_cselect_b32 s91, 1, 0
            s_mul_i32 s92, {sB}, {2654435761 % 65521}
            s_mul_i32 s93, {sWV}, {40503 if self.jit % 2 else 0}
            s_add_u32 s92, s92, s93
            s_mul_i32 s92, s92, {7919 + 104729 * (k + 1) * (self.jit + 1) % 99991}
            s_bfe_u32 s92, s92, 0x5000b
            s_cmp_lt_u32 s92, 24
            s_cbranch_scc1 {e}
            {l}:
            s_sleep 12
            s_sub_u32 s92, s92, 1
            s_cmp_gt_u32 s92, 23
            s_cbranch_scc1 {l}
            {e}:
            s_cmp_lg_u32 s91, 0""")
        if self.probe is not None and k == self.probe % 16:
            l = self.a.lab("Lpb")
            self.a(f"""s_cselect_b32 s91, 1, 0
            s_cmp_lg_u32 {sLAYER}, {self.probe//16}
            s_cbranch_scc1 {l}
            s_memrealtime s[98:99]
            s_waitcnt lgkmcnt(0)
            {l}:
            s_cmp_lg_u32 s91, 0""")
        if not self.stamps:
            return
        a = self.a
        a(f"""s_memrealtime s[90:91]
        s_memtime s[96:97]
        s_mov_b32 s93, m0
        s_mul_i32 s92, {sLAYER}, 16
        s_bitset0_b32 s92, 31
        s_waitcnt lgkmcnt(0)
        s_cselect_b32 s91, 1, 0
        s_add_u32 m0, s92, {k}
        s_cmp_lg_u32 s91, 0
        v_writelane_b32 v252, s90, m0
        v_writelane_b32 v253, s96, m0
        s_mov_b32 m0, s93""")

    def stamp_dump(self):
        if not self.stamps:
            return
        a = self.a
        l = a.lab("Lst")
        a(f"""s_cmp_lg_u32 {sWM}, {self.stw}
        s_cbranch_scc1 {l}
        s_mov_b64 exec, -1
        v_lshlrev_b32 v254, 3, {vL}
        s_getreg_b32 s90, hwreg(HW_REG_XCC_ID)
        s_getreg_b32 s91, hwreg(HW_REG_HW_ID)
        v_writelane_b32 v252, s90, 32
        v_writelane_b32 v253, s91, 32
        s_mov_b32 exec_hi, 1
        buffer_store_dwordx2 v[252:253], v254, {WS}, {sSTAMP} offen
        {l}:""")

    def fstamp(self, grp, k):
        if "fine" + grp in self.opts or self.jit is not None:
            self.stamp(k)

    def count(self, word):
        if "count" in self.opts:
            self.a(self.count_text(word))

    def count_text(self, word):
        if "count" not in self.opts:
            return ""
        return f"v_mov_b32 v254, 1\ns_mov_b64 exec, 1\nbuffer_atomic_add v254, {vL16}, {SDBG}, 0 offen offset:{4*word} sc1\ns_mov_b64 exec, -1"

    def if_lo(self, lab):
        self.a(f"s_cmp_lg_u32 {sHI}, 0\ns_cbranch_scc1 {lab}")

    def if_hi(self, lab):
        self.a(f"s_cmp_eq_u32 {sHI}, 0\ns_cbranch_scc1 {lab}")

    def prologue(self):
        a = self.a
        l0, l1, lp = a.lab("Lp"), a.lab("Lp"), a.lab("Lp")
        a(f"""s_cmp_ge_u32 {sB}, 256
        s_cbranch_scc1 Lend
        {"s_memrealtime s[100:101]" if self.probe is not None else ""}
        {"s_memrealtime s[98:99]" if self.probe is not None else ""}
        {"s_memrealtime s[90:91]" if self.stamps else ""}
        {"s_memtime s[96:97]" if self.stamps else ""}
        s_load_dwordx16 s[4:19], s[0:1], 0
        s_load_dwordx2 s[20:21], s[0:1], 64
        s_getpc_b64 s[72:73]
        Lpc:
        s_lshr_b32 {sR}, {sB}, 3
        v_lshlrev_b32 v6, 5, v0
        v_add_lshl_u32 v6, v6, {sR}, 7
        v_cmp_gt_u32 vcc, Lend-Lpc, v6
        s_and_saveexec_b64 s[74:75], vcc
        s_cbranch_execz {l0}
        v_mov_b32 v7, s73
        v_add_co_u32 v6, vcc, s72, v6
        v_addc_co_u32 v7, vcc, 0, v7, vcc
        global_load_dword v251, v[6:7], off
        {l0}:
        s_mov_b64 exec, s[74:75]
        v_lshrrev_b32 v5, 6, v0
        v_and_b32 {vL}, 63, v0
        v_readfirstlane_b32 {sWV}, v5
        v_and_b32 {vN}, 15, v0
        v_lshrrev_b32 {vG}, 4, {vL}
        s_and_b32 {sX}, {sB}, 7
        s_add_u32 s70, {sR}, {sX}
        s_and_b32 {sCB0}, s70, 7
        s_lshl_b32 s70, {sX}, 2
        s_lshr_b32 s71, {sR}, 3
        s_add_u32 {sTB0}, s70, s71
        s_lshr_b32 s80, {sTB0}, 1
        s_and_b32 s81, {sTB0}, 1
        s_mov_b32 s26, {XSZ}
        s_mov_b32 s27, 0x20000
        s_lshr_b32 {sHI}, {sWV}, 2
        s_cbranch_scc0 {l1}
        s_and_b32 s82, s80, 7
        s_lshl_b32 s82, s82, 5
        s_lshr_b32 s83, s80, 3
        s_lshl_b32 s83, s83, 1
        s_add_u32 s82, s82, s83
        s_add_u32 s82, s82, s81
        s_lshl_b32 s86, s82, 3
        s_add_u32 s84, {sWV}, {sCB0}
        s_and_b32 s84, s84, 7
        s_mov_b32 s85, 0""")
        self.dma_rows_setup(32 * 1280, 128 * 1280, "s84")
        a("s_waitcnt lgkmcnt(0)\ns_mov_b64 s[24:25], s[4:5]")
        a(f"""{lp}:
        s_add_u32 s82, s86, s84
        s_mul_i32 s82, s82, 1280""")
        self.dma_rows_issue(SX, "s82", "s84")
        a(f"""s_xor_b32 s84, s84, 4
        s_xor_b32 s85, s85, 1
        s_cbranch_scc1 {lp}
        {l1}:
        v_lshlrev_b32 {vL16}, 4, {vL}
        v_mov_b32 v11, 0
        s_and_b32 s70, {sX}, 3
        s_lshl_b32 s70, s70, 1
        s_and_b32 s71, {sR}, 1
        s_add_u32 {sTT}, s70, s71
        s_lshr_b32 s70, {sX}, 2
        s_lshl_b32 {sT}, {sTT}, 1
        s_add_u32 {sT}, {sT}, s70
        s_lshl_b32 s70, s70, 4
        s_lshr_b32 s71, {sR}, 1
        s_add_u32 {sH}, s70, s71
        s_lshr_b32 {sHALF}, {sR}, 4
        s_and_b32 {sCB}, s71, 7
        s_mov_b32 {sLAYER}, 0
        s_and_b32 {sWM}, {sWV}, 3
        s_mov_b32 {sFL}, {FLAGS}
        s_and_b32 {sSH}, {sB}, 15
        s_lshl_b32 {sREP}, {sSH}, 11
        s_lshl_b32 {sSH}, {sSH}, 7
        s_mov_b32 s22, {WSEND}
        s_mov_b32 s23, 0x20000
        s_mov_b32 s30, {2048*642}
        s_mov_b32 s31, 0x20000
        s_mov_b32 s38, {640*3840}
        s_mov_b32 s39, 0x20000
        s_mov_b32 s42, {640*1280}
        s_mov_b32 s43, 0x20000
        s_mov_b32 s46, {XSZ}
        s_mov_b32 s47, 0x20000
        s_mov_b32 s50, 256
        s_mov_b32 s51, 0x20000
        s_waitcnt lgkmcnt(0)
        s_cmp_lt_u32 {sX}, 4
        s_cselect_b32 s28, s6, s8
        s_cselect_b32 s29, s7, s9
        s_mov_b64 s[36:37], s[12:13]
        s_mov_b64 s[40:41], s[14:15]
        s_mov_b64 s[44:45], s[16:17]
        s_mov_b64 s[48:49], s[18:19]""")
        if self.stamps:
            a(f"""s_lshl_b32 {sSTAMP}, {sB}, 1
            s_add_u32 {sSTAMP}, {sSTAMP}, {sHI}
            s_lshl_b32 {sSTAMP}, {sSTAMP}, 9
            s_add_u32 {sSTAMP}, {sSTAMP}, {STAMP}
            v_mov_b32 v252, -1
            v_mov_b32 v253, -1
            v_writelane_b32 v252, s90, 0
            v_writelane_b32 v253, s96, 0""")

    def poll(self, srd, vaddr, soff, nlanes, target, atomic=True):
        a = self.a
        lp, dn = a.lab("Lp"), a.lab("Ld")
        if atomic:
            ld = f"v_mov_b32 v6, 0\nbuffer_atomic_add v6, {vaddr}, {srd}, {soff} offen sc0 sc1"
        else:
            ld = f"buffer_load_dword v6, {vaddr}, {srd}, {soff} offen sc1"
        a(f"""s_mov_b32 s88, {SPIN}
        s_mov_b64 exec, {hex((1 << nlanes) - 1)}
        {lp}:
        {ld}
        s_sub_u32 s88, s88, 1
        s_cbranch_scc1 {dn}
        s_waitcnt vmcnt(0)
        v_cmpx_gt_u32 vcc, {target}, v6
        {f"s_cbranch_execnz {lp}" if atomic else f"s_cbranch_execz {dn}"}
        {"" if atomic else "s_sleep 12"}
        {"" if atomic else f"s_branch {lp}"}
        {dn}:
        s_waitcnt vmcnt(0)
        s_mov_b64 exec, -1""")

    def wait_lines(self, s_off, nlanes, target):
        self.a(f"v_lshlrev_b32 v5, 7, {vL}")
        self.poll(WS, "v5", s_off, nlanes, target)

    def push(self, s_off, shift, wave=None, n=16):
        a = self.a
        l = a.lab("Lsg")
        if wave is not None:
            a(f"s_cmp_lg_u32 {sWV}, {wave}\ns_cbranch_scc1 {l}")
        a(f"""v_lshlrev_b32 v5, {shift}, {vL}
        v_mov_b32 v6, 1
        s_bfm_b64 exec, {n}, 0
        buffer_atomic_add v6, v5, {WS}, {s_off} offen sc1
        s_mov_b64 exec, -1
        {l}:""")

    def gen_F(self, s_ct):
        a = self.a
        a(f"""s_mov_b32 s72, {s_ct}
        s_mul_i32 s73, {sCB0}, 80
        s_lshl_b32 s74, s72, 4
        s_add_u32 s73, s73, s74
        v_add_u32 v12, s73, {vN}
        v_lshrrev_b32 v14, 1, v12
        v_and_b32 v15, 1, v12
        v_cmp_ne_u32 vcc, 0, v12
        v_cndmask_b32 v14, 0x140, v14, vcc
        v_cmp_ne_u32 vcc, 1, v12
        v_cndmask_b32 v15, 0, v15, vcc
        v_cvt_f32_u32 v14, v14
        v_cvt_f32_u32 v15, v15
        v_lshlrev_b32 v13, 3, {vG}
        v_cvt_f32_u32 v13, v13
        v_mul_f32 v10, {fbits(1/640)}, v14
        v_mul_f32 v14, {fbits(1/20)}, v14
        v_mul_f32 v15, 0.25, v15
        v_fma_f32 v16, v13, v10, v15
        s_lshl_b32 s72, s72, 10
        s_add_u32 s72, s72, {FI}
        v_add_u32 v12, s72, {vL16}""".replace("0.25", fbits(0.25)))
        for e in range(1, 8):
            a(f"v_add_f32 v{16+e}, v{15+e}, v10")
        for h in range(4):
            a(f"v_pk_add_f32 {vr(24+2*h,2)}, {vr(16+2*h,2)}, v[14:15] op_sel_hi:[1,0]")
        a("v_cos_f32 v14, v14")
        for e in range(16):
            a(f"v_cos_f32 v{16+e}, v{16+e}")
        a("v_add_f32 v14, v14, v14")
        for ks in range(10):
            x, y, p = 16 + 8 * (ks % 2), 16 + 8 * ((ks + 1) % 2), 32 + 4 * (ks % 2)
            if ks >= 2:
                for h in range(4):
                    a(f"v_pk_fma_f32 {vr(x+2*h,2)}, {vr(y+2*h,2)}, v[14:15], {vr(x+2*h,2)} "
                      f"op_sel_hi:[1,0,1] neg_lo:[0,0,1] neg_hi:[0,0,1]")
            for h in range(4):
                a(f"v_cvt_pk_bf16_f32 v{p+h}, v{x+2*h}, v{x+2*h+1}")
            a(f"ds_write_b128 v12, {vr(p,4)} offset:{5120*ks}")

    def gcore(self, base, nks, dual, swap, init, await_a=None, hook=None, order=None, feed=None):
        a = self.a
        a(f"v_add_u32 v6, {base}, {vL16}")
        if nks > 12:
            a(f"v_add_u32 v7, {base+61440}, {vL16}")

        order = list(order or range(nks))

        def rd(j, ct):
            ks = order[j]
            reg, off = ("v6", ks * 5120) if ks < 12 else ("v7", (ks - 12) * 5120)
            return f"ds_read_b128 {vr(GB+20*(j%3)+4*ct,4)}, {reg} offset:{off+ct*1024}"

        def mf(acc, ka, j, ct, first):
            x, y = vr(GA + 4 * ka, 4), vr(GB + 20 * (j % 3) + 4 * ct, 4)
            if swap:
                x, y = y, x
            d = vr(acc + 4 * ct, 4)
            return f"v_mfma_f32_16x16x32_bf16 {d}, {x}, {y}, {'0' if first else d}"
        n = len(order)
        for j in range(2):
            for ct in range(5):
                a(rd(j, ct))
        for j, ks in enumerate(order):
            w = f"lgkmcnt({5 if j + 1 < n else 0})"
            if await_a:
                w = f"vmcnt({await_a(ks)}) " + w
            a("s_waitcnt " + w)
            if hook and hook[0] == ks:
                hook[1]()
            for ct in range(5):
                a(mf(GLO, ks, j, ct, j == 0 and not init))
                if ct == 0 and feed:
                    feed(ks)
                if j + 2 < n:
                    a(rd(j + 2, ct))
                if dual:
                    a(mf(GHI, ks + 10, j, ct, j == 0))

    def dual_setup(self, s_cb):
        a = self.a
        a(f"""v_mov_b32 v52, {fbits(AMP)}
        v_lshlrev_b32 v5, 30, {vN}
        v_and_b32 v5, 0x80000000, v5
        v_xor_b32 v54, v5, v52
        s_cmp_eq_u32 {s_cb}, 0
        s_cselect_b32 s72, 2, 0
        v_cmp_le_u32 vcc, s72, {vN}
        v_cndmask_b32 v56, {fbits(AMP/math.sqrt(2))}, v52, vcc
        v_xor_b32 v58, v5, v56""")

    def ep_setup(self):
        a = self.a
        a(f"""v_mul_u32_u24 v5, 144, {vN}
        v_lshl_add_u32 v5, {vG}, 3, v5
        s_lshl_b32 s72, {sWM}, 5
        s_add_u32 s72, s72, {EP}
        v_add_u32 v140, s72, v5""")

    def ep_write(self, dual):
        a = self.a
        for ct in range(5):
            if dual:
                p, q = (56, 58) if ct == 0 else (52, 54)
                for h in range(2):
                    lo, hi = vr(GLO + 4 * ct + 2 * h, 2), vr(GHI + 4 * ct + 2 * h, 2)
                    a(f"v_pk_mul_f32 {lo}, {lo}, {vr(p,2)} op_sel_hi:[1,0]")
                    a(f"v_pk_fma_f32 {lo}, {hi}, {vr(q,2)}, {lo} op_sel_hi:[1,0,1]")
            a(f"v_cvt_pk_bf16_f32 v{GB+2*ct}, v{GLO+4*ct}, v{GLO+4*ct+1}")
            a(f"v_cvt_pk_bf16_f32 v{GB+1+2*ct}, v{GLO+4*ct+2}, v{GLO+4*ct+3}")
            self.clean(GB + 2 * ct, 2)
            a(f"ds_write_b64 v140, {vr(GB+2*ct,2)} offset:{ct*16*144}")

    def ss_store(self, s_cb, s_ss):
        a = self.a
        R = GB + 16
        a(f"""s_cmp_eq_u32 {s_cb}, 0
        s_cselect_b32 s72, 1, 99
        v_cmp_ne_u32 vcc, s72, {vN}""")
        for h in range(2):
            x = vr(GLO + 4 + 2 * h, 2)
            a(f"v_pk_mul_f32 {vr(R+2*h,2)}, {x}, {x}")
        for r in range(4):
            a(f"v_cndmask_b32 v{GLO+r}, 0, v{GLO+r}, vcc")
        for ct in (2, 3, 4, 0):
            for h in range(2):
                x = vr(GLO + 4 * ct + 2 * h, 2)
                a(f"v_pk_fma_f32 {vr(R+2*h,2)}, {x}, {x}, {vr(R+2*h,2)}")
        for sh in (8, 4, 2, 1):
            for r in range(4):
                a(f"v_add_f32 v{R+r}, v{R+r}, v{R+r} row_ror:{sh} row_mask:0xf bank_mask:0xf")
        a(f"v_cvt_pk_bf16_f32 v{R}, v{R}, v{R+1}\nv_cvt_pk_bf16_f32 v{R+1}, v{R+2}, v{R+3}\nv_lshlrev_b32 v5, 3, {vG}")
        self.clean(R, 2)
        a(f"""s_lshl_b32 s72, {sWM}, 5
        s_add_u32 s72, s72, {s_ss}
        s_mov_b32 exec_lo, 0x00010001
        s_mov_b32 exec_hi, 0x00010001
        buffer_store_dwordx2 {vr(R,2)}, v5, {WS}, s72 offen sc1
        s_mov_b64 exec, -1""")

    def x_store_setup(self):
        a = self.a
        a(f"""s_movk_i32 s79, 144
        v_lshrrev_b32 v5, 3, {vTID}
        v_and_b32 v6, 7, {vTID}
        v_lshlrev_b32 v6, 4, v6
        v_mad_u32_u24 v141, v5, s79, v6
        v_lshl_add_u32 v142, v5, 8, v6
        v_add_u32 v141, {EP}, v141""")

    def x_store(self, s_dst):
        a = self.a
        l1 = a.lab("Le")
        R = GB + 24
        for i in range(3):
            a(f"ds_read_b128 {vr(R+4*i,4)}, v141 offset:{32*144*i}")
        a(f"s_add_u32 s72, {s_dst}, 8192\ns_add_u32 s73, {s_dst}, 16384")
        a(f"s_waitcnt lgkmcnt(2)\nbuffer_store_dwordx4 {vr(R,4)}, v142, {WS}, {s_dst} offen sc1")
        a(f"s_waitcnt lgkmcnt(1)\nbuffer_store_dwordx4 {vr(R+4,4)}, v142, {WS}, s72 offen sc1")
        a(f"""s_cmp_gt_u32 {sWV}, 1
        s_waitcnt lgkmcnt(0)
        s_cbranch_scc1 {l1}
        buffer_store_dwordx4 {vr(R+8,4)}, v142, {WS}, s73 offen sc1
        {l1}:""")

    def dma_rows(self, srd, rg, s_rh, s_base, s_set):
        self.dma_rows_setup(rg, s_rh, s_set)
        self.dma_rows_issue(srd, s_base, s_set)

    def dma_rows_setup(self, rg, s_rh, s_set):
        a = self.a
        a(f"""s_and_b32 s72, {s_set}, 1
        s_lshl_b32 s72, s72, 3
        v_add_u32 v5, s72, {vG}
        v_xor_b32 v5, v5, {vN}
        v_mul_u32_u24 v6, {rg}, {vG}
        v_lshl_add_u32 v8, v5, 4, v6
        v_xor_b32 v5, 4, v5
        v_lshl_add_u32 v9, v5, 4, v6
        v_add_u32 v9, {s_rh}, v9""")

    def dma_rows_issue(self, srd, s_base, s_set):
        a = self.a
        a(f"s_lshl_b32 s72, {s_set}, 11")
        for blk in range(5):
            for h in range(2):
                a(f"s_add_u32 m0, s72, {XS + blk*(16384-256) + h*1024}")
                a(f"buffer_load_dwordx4 v{8+h}, {srd}, {s_base} offen offset:{blk*256} lds")

    def read_rows_frags(self):
        a = self.a
        a(f"""s_lshl_b32 s72, {sWM}, 12
        v_xor_b32 v5, {vG}, {vN}
        v_lshlrev_b32 v5, 4, v5
        v_lshl_add_u32 v5, {vN}, 8, v5
        v_add_u32 v60, s72, v5""")
        for c in range(1, 4):
            a(f"v_xor_b32 v{60+c}, {64*c}, v60")
        for ks in range(20):
            if ks == 16:
                for c in range(4):
                    a(f"v_add_u32 v{64+c}, 0x10000, v{60+c}")
            if ks < 16:
                a(f"ds_read_b128 {vr(GA+4*ks,4)}, v{60+ks%4} offset:{XS+(ks//4)*16384}")
            else:
                a(f"ds_read_b128 {vr(GA+4*ks,4)}, v{64+ks%4} offset:{XS}")

    def wf_setup(self):
        a = self.a
        a(f"""s_lshl_b32 s19, {sX}, 5
        s_add_u32 s19, s19, {sR}
        s_bfe_u32 s72, s19, 0x20005
        s_and_b32 s76, s72, 1
        s_lshl_b32 s76, s76, 5
        s_and_b32 s73, s19, 16
        s_add_u32 s76, s76, s73
        s_lshr_b32 s73, s72, 1
        s_add_u32 s76, s76, s73
        s_and_b32 s73, s19, 12
        s_lshl_b32 s73, s73, 7
        s_add_u32 s76, s76, s73
        s_mul_i32 s76, s76, 642
        s_and_b32 s75, s19, 3
        s_mul_i32 s75, s75, 160
        s_lshl_b32 s73, {sWM}, 4
        s_add_u32 s13, s75, s73
        s_and_b32 s73, s72, 2
        s_add_u32 s13, s13, s73
        s_add_u32 s76, s76, s13
        v_lshrrev_b32 v5, 3, {vL}
        v_and_b32 v6, 7, {vL}
        v_lshl_add_u32 v5, v6, 5, v5
        v_mul_u32_u24 v244, 1284, v5
        s_mov_b32 s18, s76""")

    def wf_touch(self):
        return f"""s_sub_u32 s73, s18, s13
        s_and_b32 s74, {sR}, 3
        s_mul_i32 s74, s74, {2*1284}
        s_add_u32 s73, s73, s74
        s_lshl_b32 s74, {sWM}, 8
        s_add_u32 s73, s73, s74
        v_and_b32 v5, 7, {vL}
        v_bfe_u32 v6, {vL}, 3, 1
        v_lshl_add_u32 v5, v5, 5, v6
        v_mul_u32_u24 v5, 1284, v5
        v_lshl_add_u32 v5, {vG}, 7, v5
        v_add_u32 v5, s73, v5
        v_and_b32 v5, 0xffffff80, v5
        s_mov_b32 exec_hi, 0
        buffer_load_dword v251, v5, {SWF}, 0 offen sc1
        s_mov_b32 exec_hi, -1"""

    def wf_loads(self):
        a = self.a
        skip = a.lab("Lw")
        a(f"""buffer_load_dwordx4 v[164:167], v244, {SWF}, s18 offen
        buffer_load_dwordx4 v[168:171], v244, {SWF}, s18 offen offset:64
        s_cmp_gt_u32 {sWM}, 1
        s_cbranch_scc1 {skip}
        buffer_load_dwordx4 v[172:175], v244, {SWF}, s18 offen offset:128
        s_cmp_lg_u32 s13, 0
        s_cbranch_scc1 {skip}
        buffer_load_ushort v176, v244, {SWF}, s18 offen offset:640
        {skip}:""")

    def wf_setup2(self):
        a = self.a
        a(f"""s_bfe_u32 s72, s19, 0x20005
        s_lshl_b32 s72, s72, 11
        s_lshr_b32 s73, s19, 7
        s_lshl_b32 s73, s73, 10
        s_add_u32 s72, s72, s73
        s_bfe_u32 s73, s19, 0x20002
        s_lshl_b32 s73, s73, 8
        s_add_u32 s72, s72, s73
        s_bfe_u32 s73, s19, 0x10004
        s_lshl_b32 s73, s73, 7
        s_add_u32 s72, s72, s73
        s_add_u32 s72, s72, {WF}
        s_lshl_b32 s74, {sWM}, 10
        s_add_u32 s74, s74, {TRS}
        v_lshrrev_b32 v5, 3, {vL}
        v_and_b32 v6, 7, {vL}
        v_xor_b32 v7, v5, v6
        v_lshl_add_u32 v7, v7, 4, s74
        v_lshl_add_u32 v245, v6, 7, v7
        v_lshl_add_u32 v250, v5, 7, v7
        v_add_u32 v246, s74, {vL16}
        v_lshlrev_b32 v247, 4, v6
        s_lshr_b32 s73, s13, 1
        v_add_u32 v5, s73, v5
        v_cmp_ne_u32 vcc, 0x100, v5
        v_lshl_add_u32 v247, v5, 13, v247
        v_subrev_u32 v249, {320*8192}, v247
        v_cndmask_b32 v249, v249, v247, vcc
        v_add_u32 v249, {64*8192}, v249""")
        a(f"""v_bfe_u32 v5, {vL}, 1, 1
        v_lshl_add_u32 v5, {vG}, 1, v5
        v_bfe_u32 v6, {vL}, 2, 2
        v_lshl_add_u32 v5, v5, 3, v6
        v_and_b32 v6, 1, {vL}
        v_lshlrev_b32 v6, 3, v6
        v_lshl_add_u32 v5, v5, 4, v6
        v_add_u32 v248, s74, v5
        s_mov_b32 s17, s72""")

    def wf_stores(self):
        a = self.a
        nop = a.lab("Lw")
        a(f"""s_cmp_lg_u32 s13, 0
        s_cbranch_scc1 {nop}
        v_and_b32 v164, 0xffff0000, v164
        v_or_b32 v164, v164, v176
        {nop}:""")
        for rnd in range(3):
            a(f"ds_write_b128 v246, {vr(164+4*rnd,4)}")
            for i in range(2):
                a(f"ds_read_b64_tr_b16 {vr(164+4*rnd+2*i,2)}, v248 offset:{64*i}")
        for rnd in range(3):
            a(f"s_waitcnt lgkmcnt({(6, 5, 4)[rnd]})")
            a(f"ds_write_b128 v245, {vr(164+4*rnd,4)}")
            a(f"ds_read_b128 {vr(164+4*rnd,4)}, v250")
        skip = a.lab("Lw")
        a("s_waitcnt lgkmcnt(0)")
        for rnd in range(3):
            if rnd == 2:
                a(f"s_cmp_gt_u32 {sWM}, 1\ns_cbranch_scc1 {skip}")
            a(f"buffer_store_dwordx4 {vr(164+4*rnd,4)}, {'v249' if rnd == 2 else 'v247'}, {WS}, {'s74' if rnd == 1 else 's17'} offen sc1")
            a(f"s_add_u32 s74, s17, {32*8192}")
        a(f"{skip}:")

    def wq_setup(self):
        a = self.a
        a(f"""v_lshrrev_b32 v5, 3, {vL}
        v_bfe_u32 v6, {vL}, 4, 1
        s_and_b32 s72, {sWV}, 1
        s_lshl_b32 s72, s72, 1
        v_or_b32 v6, s72, v6
        v_lshlrev_b32 v6, 1, v6
        v_and_b32 v7, 7, {vL}
        v_xor_b32 v6, v6, v7
        v_mul_u32_u24 v5, 3840, v5
        v_lshl_add_u32 v58, v6, 4, v5
        s_mul_i32 s72, {sWM}, {8*3840}
        s_lshl_b32 s73, {sTB0}, 7
        s_add_u32 s72, s72, s73
        s_lshl_b32 s73, {sWM}, 10""")

    def wq_dma(self, first, last):
        a = self.a
        for it in range(first, last):
            a(f"s_add_u32 m0, s73, {XS + it*4096}")
            a(f"buffer_load_dwordx4 v58, {SWQ}, s72 offen lds")
            a(f"s_add_u32 s72, s72, {32*3840}")

    def arrive(self, last, s_off, slot=0):
        a = self.a
        l = a.lab("Lar")
        a(f"""v_mov_b32 v5, {TRS+4096+4*slot}
        v_mov_b32 v6, 1
        s_mov_b64 exec, 1
        ds_add_rtn_u32 v7, v5, v6
        s_waitcnt lgkmcnt(0)
        v_cmp_eq_u32 vcc, {last}, v7
        s_mov_b64 exec, -1
        s_cbranch_vccz {l}""")
        self.push(s_off, 11)
        a(f"{l}:")

    def fill_cols(self, s0, s1, r):
        a = self.a
        for i in range(4):
            a(f"v_mov_b32 v{r+i}, -1")
        for so in (s0, s1):
            for i in range(2):
                a(f"buffer_store_dwordx4 {vr(r,4)}, v11, {WS}, {so} offen offset:{512*i} sc1")

    def clean(self, r, n):
        for i in range(n):
            self.a(f"v_min_u32 v{r+i}, -2, v{r+i}")

    def umax(self, dst, regs):
        out, regs = [], list(regs)
        out.append(f"v_max3_u32 v{dst}, v{regs[0]}, v{regs[1]}, v{regs[2]}")
        regs = regs[3:]
        while regs:
            if len(regs) == 1:
                out.append(f"v_max_u32 v{dst}, v{dst}, v{regs[0]}")
            else:
                out.append(f"v_max3_u32 v{dst}, v{dst}, v{regs[0]}, v{regs[1]}")
            regs = regs[2:]
        return out

    def half_sync(self, slot, add=True, addr=TRS + 4096):
        a = self.a
        lp = a.lab("Lhs")
        a(f"""v_mov_b32 v5, {addr+4*slot}
        v_mov_b32 v6, 1
        s_mov_b64 exec, 1
        {"ds_add_u32 v5, v6" if add else ""}
        {lp}:
        ds_read_b32 v6, v5
        s_waitcnt lgkmcnt(0)
        v_cmp_gt_u32 vcc, 4, v6
        s_cbranch_vccnz {lp}
        s_mov_b64 exec, -1""")

    def phase0(self):
        a = self.a
        z0, z1, z2, z3, z4, z5, l1, l2, l3, l5, l6, l7, l8, l9, l10 = (a.lab("Lq") for _ in range(15))
        dest = f"""s_mul_i32 s84, s80, 163840
        s_mul_i32 s85, {sCB0}, 20480
        s_add_u32 s84, s84, s85
        s_lshl_b32 s85, s81, 7
        s_add_u32 s84, s84, s85
        s_add_u32 s84, s84, {X0}
        s_lshl_b32 s85, s80, 11
        s_lshl_b32 s86, {sCB0}, 8
        s_add_u32 s85, s85, s86
        s_lshl_b32 s86, s81, 7
        s_add_u32 s85, s85, s86
        s_add_u32 s85, s85, {SS0}"""
        self.if_hi(z0)
        self.fstamp("0", 14)
        a(f"""s_mul_i32 s72, {sCB0}, 80
        s_mul_i32 s73, {sWM}, 20
        s_add_u32 s72, s72, s73
        s_mul_i32 s72, s72, 3840
        s_lshl_b32 s73, {sTB0}, 7
        s_add_u32 s72, s72, s73
        v_mul_u32_u24 v5, 3840, {vL}
        s_mov_b64 exec, 0xfffff
        s_waitcnt vmcnt(6)
        buffer_load_dword v251, v5, {SWQ}, s72 offen
        s_mov_b64 exec, -1""")
        self.fstamp("0", 15)
        a(f"""s_branch {l3}
        {z0}:
        s_cmp_lg_u32 {sWV}, 3
        s_cbranch_scc1 {z4}
        {dest}
        s_lshl_b32 s70, {sB}, 7
        v_lshrrev_b32 v5, 2, {vL}
        v_and_b32 v6, 3, {vL}
        v_lshlrev_b32 v6, 4, v6
        v_lshl_add_u32 v5, v5, 15, v6
        v_mov_b32 v60, 0
        v_mov_b32 v61, 0
        v_mov_b32 v62, 0
        v_mov_b32 v63, 0
        v_mov_b32 v6, {TRS+4096}
        s_lshl_b32 s71, {sB}, 10
        s_add_u32 s71, s71, {SQ0}
        buffer_store_dwordx4 v[60:63], {vL16}, {WS}, s71 offen sc1
        s_bfm_b64 exec, {4*NFLAG}, 0
        buffer_store_dwordx4 v[60:63], v5, {WS}, s70 offen sc1
        s_lshl_b32 s71, {sB}, 7
        s_add_u32 s71, s71, {SS0+65536}
        v_mov_b32 v64, -1
        v_mov_b32 v65, -1
        v_mov_b32 v66, -1
        v_mov_b32 v67, -1
        s_mov_b64 exec, 0xff
        buffer_store_dwordx4 v[64:67], {vL16}, {WS}, s71 offen sc1
        buffer_store_dwordx4 v[64:67], {vL16}, {WS}, s85 offen sc1
        ds_write_b128 v6, v[60:63]
        ds_write_b128 v6, v[60:63] offset:16
        s_mov_b64 exec, -1
        {z4}:""")
        a(f"s_mov_b32 s15, {sWV}\n{z5}:")
        self.gen_F("s15")
        a(f"""s_add_u32 s15, s15, 4
        s_cmp_eq_u32 s15, 4
        s_cbranch_scc1 {z5}
        s_cmp_ge_u32 {sR}, 20
        s_cbranch_scc1 {l9}
        s_sub_u32 s15, {sWV}, 1
        s_cmp_ge_u32 s15, 2
        s_cbranch_scc1 {l9}""")
        self.col_tables("s15", 2)
        a(f"""{l9}:
        {dest}
        """)
        self.fstamp("0", 15)
        a(f"""s_cmp_lg_u32 {sWV}, 3
        s_cbranch_scc1 {z3}
        s_and_b32 s70, {sB}, 1
        s_lshl_b32 s70, s70, 7
        v_mov_b32 v60, 0
        v_mov_b32 v61, 1
        s_mov_b64 exec, 1
        s_waitcnt vmcnt(0)
        buffer_atomic_add v61, v60, {SDBG}, s70 offen sc1
        s_mov_b64 exec, -1
        {z3}:
        s_waitcnt lgkmcnt(0)
        s_barrier""")
        self.stamp(1)
        self.read_rows_frags()
        self.dual_setup(sCB0)
        self.ep_setup()
        self.x_store_setup()
        a("s_waitcnt lgkmcnt(0)\ns_barrier")
        self.fstamp("0", 16)
        a(f"v_lshlrev_b32 v143, 7, {vL}\ns_movk_i32 s89, 128")
        self.gcore(FI, 10, True, False, False)
        self.fstamp("0", 17)
        self.ep_write(True)
        self.fstamp("0", 18)
        self.half_sync(1)
        self.x_store("s84")
        self.ss_store(sCB0, "s85")
        self.fstamp("0", 19)
        self.fstamp("1", 19)
        self.wf_setup()
        lw, lh = a.lab("Lq"), a.lab("Lq")
        lk = a.lab("Lq")
        a(f"s_cmp_lg_u32 {sWV}, 3\ns_cbranch_scc1 {lk}\ns_mov_b64 exec, 3\nbuffer_load_dword v251, v143, {SDBG}, 0 offen sc1\ns_mov_b64 exec, -1\n{lk}:")
        self.fstamp("1", 14)
        self.wf_loads()
        self.wf_setup2()
        self.fstamp("1", 15)
        a(f"s_cmp_lt_u32 {sWV}, 2\ns_cbranch_scc1 {lw}\ns_waitcnt vmcnt(2)\n{lw}:\ns_waitcnt vmcnt(3)")
        a(f"s_cmp_lg_u32 {sWV}, 3\ns_cbranch_scc1 {lh}\ns_mov_b64 exec, 3\nv_cmp_gt_u32 vcc, s89, v251\ns_mov_b64 exec, -1\ns_cbranch_vccz {lh}")
        self.fstamp("1", 18)
        self.poll(SDBG, "v143", "0", 2, "s89", atomic=False)
        a(f"{lh}:")
        self.fstamp("1", 16)
        self.arrive(3, sSH)
        self.stamp(2)
        self.half_sync(3)
        self.col_early()
        a("s_waitcnt vmcnt(0)")
        self.fstamp("1", 17)
        self.wf_stores()
        self.stamp(3)
        a(f"s_branch {l8}\n{l3}:")
        a("s_waitcnt vmcnt(1)\ns_barrier")
        self.stamp(1)
        def touch():
            lt, lu = a.lab("Lq"), a.lab("Lq")
            a(f"""s_cmp_eq_u32 {sWM}, 3
            s_cbranch_scc1 {lt}
            {self.wf_touch()}
            s_branch {lu}
            {lt}:
            s_mul_i32 s72, {sB}, 3200
            v_lshlrev_b32 v5, 7, {vL}
            s_bfm_b64 exec, 25, 0
            buffer_load_dword v251, v5, {SWO}, s72 offen
            s_mov_b64 exec, -1
            {lu}:""")
        self.wf_setup()
        self.wq_setup()
        a("s_barrier")
        self.wq_dma(0, 20)
        touch()
        self.fstamp("0", 17)
        self.job_wq_setup()
        a("s_mov_b32 s78, s72")
        self.col_early()
        a("s_mov_b32 s72, s78")
        a("s_waitcnt vmcnt(1)")
        self.fstamp("0", 18)
        self.half_sync(2)
        self.stamp(2)
        self.job_wq()
        self.half_sync(3, add=False)
        self.stamp(3)
        a(f"{l8}:")

    def job_wq_setup(self):
        a = self.a
        a(f"""v_bfe_u32 v5, {vL}, 2, 2
        v_lshl_add_u32 v6, {vG}, 3, v5
        v_lshlrev_b32 v6, 7, v6
        v_lshrrev_b32 v5, 1, v5
        v_and_b32 v7, 1, {vG}
        v_lshl_add_u32 v5, v7, 1, v5
        v_xor_b32 v5, {sWM}, v5
        v_lshl_add_u32 v6, v5, 5, v6
        v_and_b32 v5, 3, {vL}
        v_lshl_add_u32 v56, v5, 3, v6
        v_add_u32 v57, 0xa000, v56""")
        a(f"""s_lshl_b32 s72, {sTB0}, 6
        s_lshl_b32 s73, {sWM}, 4
        s_add_u32 s72, s72, s73
        v_add_u32 v5, s72, {vN}
        s_cmp_ge_u32 {sTB0}, 10
        s_cselect_b32 s74, 1, 0
        s_cmp_ge_u32 {sTB0}, 20
        s_cselect_b32 s74, 2, s74
        s_mul_i32 s73, s74, 640
        v_subrev_u32 v5, s73, v5
        v_mul_u32_u24 v6, 3277, v5
        v_lshrrev_b32 v6, 16, v6
        v_mul_u32_u24 v7, 20, v6
        v_sub_u32 v7, v5, v7
        s_mov_b32 s73, 81920
        v_mul_lo_u32 v52, v6, s73
        s_lshl_b32 s75, s74, 4
        v_add_u32 v53, s75, v7
        s_lshl_b32 s75, s74, 2
        s_add_u32 s75, s75, 48
        v_add_u32 v55, s75, v7
        v_cmp_gt_u32 vcc, 16, v7
        v_cndmask_b32 v53, v55, v53, vcc
        v_add_u32 v55, 72, v7
        s_cmp_eq_u32 s74, 2
        s_cselect_b64 vcc, -1, 0
        v_cndmask_b32 v53, v53, v55, vcc
        v_lshl_add_u32 v52, v53, 4, v52
        v_subrev_u32 v5, 640, v5
        v_lshrrev_b32 v6, 2, v5
        v_mul_lo_u32 v6, v6, s73
        v_and_b32 v5, 3, v5
        v_lshl_add_u32 v6, v5, 4, v6
        v_add_u32 v6, {92*16}, v6
        s_cmp_ge_u32 {sTB0}, 30
        s_cselect_b64 vcc, -1, 0
        v_cndmask_b32 v52, v52, v6, vcc
        v_lshrrev_b32 v5, 1, {vG}
        v_lshl_add_u32 v52, v5, 9, v52
        v_and_b32 v5, 1, {vG}
        v_lshl_add_u32 v52, v5, 11, v52
        s_cmp_eq_u32 s74, 0
        s_cselect_b32 s75, {fbits(AMP*QS)}, s87
        s_mul_i32 s72, {sCB0}, 10240
        s_add_u32 s72, s72, {WQ}
        v_mov_b32 v54, s75""".replace("s_cmp_eq_u32 s74, 0", f"s_mov_b32 s87, {fbits(AMP)}\ns_cmp_eq_u32 s74, 0"))

    def job_wq(self):
        a = self.a
        end = a.lab("Lb")
        for ks in range(20):
            for i in range(2):
                reg, off = ("v56", ks * 4096) if ks < 10 else ("v57", (ks - 10) * 4096)
                a(f"ds_read_b64_tr_b16 {vr(GA+4*ks+2*i,2)}, {reg} offset:{XS+off+i*512}")
        a(f"v_mov_b32 v5, {TRS+4096+16}\nv_mov_b32 v6, 1\ns_mov_b64 exec, 1\nds_add_u32 v5, v6\ns_mov_b64 exec, -1")
        pad, st = a.lab("Lb"), a.lab("Lb")
        a(f"s_cmp_ge_u32 {sTB0}, 30\ns_cbranch_scc1 {pad}")
        self.cold.append("\n".join([f"{pad}:"] + [f"v_mov_b32 v{GB+i}, 0" for i in range(12)] + [f"s_branch {st}"]))
        self.gcore(FI, 10, True, True, False)
        for ct in range(5):
            lo, hi = GLO + 4 * ct, GHI + 4 * ct
            a(f"v_pk_add_f32 {vr(lo,2)}, {vr(lo,2)}, {vr(hi,2)}")
            a(f"v_pk_add_f32 {vr(lo+2,2)}, {vr(lo+2,2)}, {vr(hi+2,2)} neg_lo:[0,1] neg_hi:[0,1]")
            for h in range(2):
                a(f"v_pk_mul_f32 {vr(lo+2*h,2)}, {vr(lo+2*h,2)}, v[54:55] op_sel_hi:[1,0]")
        a(f"""s_cmp_eq_u32 {sCB0}, 0
        s_cselect_b32 s73, 16, 0
        v_cmp_le_u32 vcc, s73, {vL}
        v_mul_f32 v5, {fbits(1/math.sqrt(2))}, v{GLO}
        v_cndmask_b32 v{GLO}, v5, v{GLO}, vcc
        v_cndmask_b32 v{GLO+1}, 0, v{GLO+1}, vcc""")
        for ct in range(5):
            a(f"v_cvt_pk_bf16_f32 v{GB+2*ct}, v{GLO+4*ct}, v{GLO+4*ct+1}")
            a(f"v_cvt_pk_bf16_f32 v{GB+1+2*ct}, v{GLO+4*ct+2}, v{GLO+4*ct+3}")
        a(f"{st}:")
        for p in range(3):
            a(f"v_permlane16_swap_b32 v{GB+4*p}, v{GB+2+4*p}")
            a(f"v_permlane16_swap_b32 v{GB+1+4*p}, v{GB+3+4*p}")
            if p == 2:
                a("s_mov_b32 exec_lo, 0xffff\ns_mov_b32 exec_hi, 0xffff")
            a(f"buffer_store_dwordx4 {vr(GB+4*p,4)}, v52, {WS}, s72 offen sc1")
            a("s_add_u32 s72, s72, 4096")
        a(f"s_mov_b64 exec, -1\n{end}:")

    def job_images(self):
        a = self.a
        l3 = a.lab("Lc")
        a(f"""s_sub_u32 s80, {sR}, 20
        s_lshl_b32 s80, s80, 3
        s_add_u32 s80, s80, {sX}
        s_lshl_b32 s80, s80, 3
        s_add_u32 s80, s80, {sWV}
        s_mov_b32 s77, {fbits(1/640)}
        {l3}:
        s_mul_i32 s81, s80, 656
        s_lshr_b32 s81, s81, 16
        s_mul_i32 s82, s81, 100
        s_sub_u32 s82, s80, s82
        s_mul_i32 s83, s82, 205
        s_lshr_b32 s83, s83, 10
        s_mul_i32 s84, s83, 5
        s_sub_u32 s84, s82, s84
        s_mul_i32 s81, s81, 80
        s_lshl_b32 s84, s84, 4
        s_add_u32 s81, s81, s84
        v_add_u32 v8, s81, {vN}
        s_mul_i32 s84, s83, 40
        s_sub_u32 s85, s83, 16
        s_mul_i32 s85, s85, 160
        s_add_u32 s85, s85, 16
        s_cmp_lt_u32 s83, 16
        s_cselect_b32 s84, s84, s85
        s_cselect_b32 s85, 8, 20
        s_cselect_b64 vcc, -1, 0
        v_lshrrev_b32 v5, 1, {vG}
        v_mul_u32_u24 v5, 20, v5
        v_and_b32 v6, 1, {vG}
        v_lshl_add_u32 v5, v6, 2, v5
        v_mul_u32_u24 v6, 40, {vG}
        v_cndmask_b32 v5, v6, v5, vcc
        v_mul_u32_u24 v5, 1280, v5
        v_lshl_add_u32 v5, v8, 1, v5
        s_mul_i32 s84, s84, 1280
        s_mul_i32 s85, s85, 1280
        s_add_u32 s85, s85, s84""")
        for e in range(8):
            a(f"buffer_load_ushort v{32+e}, v5, {SWO}, {'s84' if e < 4 else 's85'} offen offset:{1280*(e%4)}")
        a(f"""v_and_b32 v5, 1, {vG}
        v_lshrrev_b32 v6, 1, {vG}
        v_lshlrev_b32 v5, 3, v5
        v_lshl_add_u32 v5, v6, 2, v5
        s_lshl_b32 s84, s83, 4
        v_add_u32 v5, s84, v5
        v_cmp_ne_u32 vcc, 0, v5
        v_cndmask_b32 v12, 0x140, v5, vcc""")
        for e in range(1, 4):
            a(f"v_add_u32 v{12+e}, {e}, v5")
        for e in range(4):
            a(f"v_mul_u32_u24 v{12+e}, v{12+e}, v8")
            a(f"v_cvt_f32_u32 v{12+e}, v{12+e}")
            a(f"v_mul_f32 v{12+e}, s77, v{12+e}")
            a(f"v_fract_f32 v{12+e}, v{12+e}")
            a(f"v_cos_f32 v{16+2*e}, v{12+e}")
            a(f"v_sin_f32 v{17+2*e}, -v{12+e}")
        a(f"""v_mul_f32 v5, {fbits(1/math.sqrt(2))}, v16
        v_cndmask_b32 v16, v5, v16, vcc
        v_cndmask_b32 v17, {fbits(1/math.sqrt(2))}, v17, vcc""")
        for e in range(4):
            a(f"v_cvt_pk_bf16_f32 v{24+e}, v{16+2*e}, v{17+2*e}")
        a(f"""s_lshl_b32 s84, s80, 10
        s_add_u32 s85, s84, {FT}
        s_add_u32 s84, s84, {WOT}
        buffer_store_dwordx4 v[24:27], {vL16}, {WS}, s85 offen sc1
        s_waitcnt vmcnt(1)
        v_lshl_or_b32 v28, v33, 16, v32
        v_lshl_or_b32 v29, v35, 16, v34
        v_lshl_or_b32 v30, v37, 16, v36
        v_lshl_or_b32 v31, v39, 16, v38
        buffer_store_dwordx4 v[28:31], {vL16}, {WS}, s84 offen sc1
        s_add_u32 s80, s80, 768
        s_cmp_lt_u32 s80, 800
        s_waitcnt vmcnt(0)
        s_cbranch_scc1 {l3}""")

    def job_woh(self):
        a = self.a
        l0, l1, l2, l3, l4 = (a.lab("Lc") for _ in range(5))
        self.wq_done()
        self.if_lo(l0)
        a(f"""s_sub_u32 s80, {sR}, 12
        s_cmp_ge_u32 {sR}, 24
        s_cselect_b32 s80, {sX}, s80
        s_cmp_ge_u32 s80, 10
        s_cbranch_scc1 {l0}""")
        self.half_sync(4, add=False)
        a(f"""s_mov_b32 s14, {sWV}
        {l3}:
        s_lshl_b32 s81, s80, 1
        s_lshr_b32 s82, s14, 2
        s_add_u32 s81, s81, s82
        s_and_b32 s82, s14, 3
        s_lshl_b32 s83, s81, 1
        s_lshr_b32 s84, s82, 1
        s_add_u32 s83, s83, s84
        s_mul_i32 s83, s83, 20
        s_and_b32 s84, s82, 1
        s_lshl_b32 s84, s84, 2
        s_add_u32 s83, s83, s84
        s_sub_u32 s84, s81, 16
        s_lshl_b32 s84, s84, 3
        s_lshl_b32 s85, s82, 1
        s_add_u32 s84, s84, s85
        s_mul_i32 s84, s84, 20
        s_add_u32 s84, s84, 16
        s_cmp_lt_u32 s80, 8
        s_cselect_b32 s82, s83, s84
        s_cselect_b32 s83, 8, 20
        s_mul_i32 s82, s82, 1280
        s_mul_i32 s83, s83, 1280""")
        self.dma_rows(SWO, 1280, "s83", "s82", "s14")
        a(f"s_add_u32 s14, s14, 4\ns_cmp_lt_u32 s14, 8\ns_cbranch_scc1 {l3}\ns_waitcnt vmcnt(0)")
        self.half_sync(5)
        self.read_rows_frags()
        self.gcore(FI, 10, True, False, False)
        self.ep_write(True)
        self.half_sync(6)
        a(f"""s_mul_i32 s81, {sCB0}, 102400
        s_mul_i32 s82, s80, 10240
        s_add_u32 s81, s81, s82
        s_add_u32 s81, s81, {WOH}
        v_mul_u32_u24 v5, 144, {vN}
        v_lshl_add_u32 v5, {vG}, 4, v5
        s_mov_b32 s82, {sWV}
        {l2}:
        s_cmp_ge_u32 s82, 5
        s_cselect_b32 s83, {64 - 5*16*144}, 0
        s_mul_i32 s84, s82, {16*144}
        s_add_u32 s83, s83, s84
        s_add_u32 s83, s83, {EP}
        v_add_u32 v6, s83, v5
        ds_read_b128 v[8:11], v6
        s_lshl_b32 s84, s82, 10
        s_add_u32 s84, s84, s81
        s_add_u32 s82, s82, 4
        s_cmp_lt_u32 s82, 10
        s_waitcnt lgkmcnt(0)
        buffer_store_dwordx4 v[8:11], {vL16}, {WS}, s84 offen sc1
        s_cbranch_scc1 {l2}
        {l0}:""")

    def wq_done(self, pending=0):
        self.a(f"s_add_u32 s72, {sSH}, {F_WQ*FSTRIDE}\ns_waitcnt vmcnt({pending})")
        self.arrive(7, "s72", 7)

    def unpack(self, dst, src, n):
        for i in range(n):
            self.a(f"v_lshlrev_b32 v{dst+2*i}, 16, v{src+i}")
            self.a(f"v_and_b32 v{dst+2*i+1}, 0xffff0000, v{src+i}")

    def cmul_pack(self, c, s):
        a = self.a
        for e in range(8 if "plain" in self.opts else 0):
            dr, di, tr, ti = (f"v{x+e}" for x in (self.DR, self.DI, self.TR, self.TI))
            a(f"v_mul_f32 {tr}, {dr}, v{c+e}\nv_mul_f32 {ti}, {di}, v{c+e}")
            a(f"v_fma_f32 {tr}, -{di}, v{s+e}, {tr}\nv_fmac_f32 {ti}, {dr}, v{s+e}")
        for h in range(0 if "plain" in self.opts else 4):
            dr, di, tr, ti = (vr(x + 2 * h, 2) for x in (self.DR, self.DI, self.TR, self.TI))
            cc, ss = vr(c + 2 * h, 2), vr(s + 2 * h, 2)
            a(f"v_pk_mul_f32 {tr}, {dr}, {cc}")
            a(f"v_pk_mul_f32 {ti}, {di}, {cc}")
            a(f"v_pk_fma_f32 {tr}, {di}, {ss}, {tr} neg_lo:[1,0,0] neg_hi:[1,0,0]")
            a(f"v_pk_fma_f32 {ti}, {dr}, {ss}, {ti}")
        for h in range(4):
            a(f"v_cvt_pk_bf16_f32 v{self.BR+h}, v{self.TR+2*h}, v{self.TR+2*h+1}")
            a(f"v_cvt_pk_bf16_f32 v{self.BI+h}, v{self.TI+2*h}, v{self.TI+2*h+1}")

    def mm(self, d, x, y, first):
        self.a(f"v_mfma_f32_16x16x32_bf16 {vr(d,4)}, {vr(x,4)}, {vr(y,4)}, {'0' if first else vr(d,4)}")

    ZS, EX, RW, SEL = 81920, 98304, 114688, 232
    T1C, T1S, T2C, T2S = 20, 28, 36, 44
    C1, S1, N1, C2, S2, N2, S4E, C4O, S4O = 52, 56, 60, 64, 72, 80, 88, 96, 104
    WRAW, WR, WI = 112, 120, 128
    URAW, R0, R1, RS0, RS1, DR, DI, TR, TI, BR, BI, AF = 136, 144, 152, 160, 168, 176, 184, 192, 200, 208, 212, 216

    def col_tables(self, s_first, step):
        a = self.a
        lp = a.lab("Lk")
        a(f"""v_and_b32 v5, 31, {vL}
        v_lshrrev_b32 v6, 5, {vL}
        s_mov_b32 s74, {s_first}
        {lp}:
        v_lshl_add_u32 v7, v5, 1, v6
        s_lshl_b32 s72, s74, 3
        v_mul_u32_u24 v8, s72, v7
        s_lshl_b32 s72, s74, 5
        s_sub_u32 s72, s72, 127
        v_lshl_add_u32 v9, v6, 4, s72
        v_mul_u32_u24 v9, v9, v5
        v_lshlrev_b32 v10, 1, v5
        s_cmp_lt_u32 s74, 4
        s_cselect_b64 vcc, -1, 0
        v_cndmask_b32 v8, v9, v8, vcc
        v_cndmask_b32 v7, v10, v7, vcc
        v_cvt_f32_u32 v8, v8
        v_cvt_f32_u32 v7, v7
        v_mul_f32 v60, {fbits(1/64)}, v8
        v_mul_f32 v7, {fbits(1/64)}, v7
        s_lshl_b32 s73, s74, 10
        s_add_u32 s73, s73, {TB}""")
        for e in range(1, 8):
            a(f"v_add_f32 v{60+e}, v{59+e}, v7")
        for e in range(8):
            a(f"v_sin_f32 v{68+e}, v{60+e}")
            a(f"v_cos_f32 v{60+e}, v{60+e}")
        a(f"v_add_u32 v9, s73, {vL16}")
        for e in range(4):
            a(f"v_cvt_pk_bf16_f32 v{76+e}, v{60+2*e}, v{61+2*e}")
            a(f"v_cvt_pk_bf16_f32 v{80+e}, v{68+2*e}, v{69+2*e}")
        a(f"""s_add_u32 s74, s74, {step}
        s_cmp_lt_u32 s74, 6
        ds_write_b128 v9, v[76:79]
        ds_write_b128 v9, v[80:83] offset:6144
        s_cbranch_scc1 {lp}""")

    def col_twiddles(self):
        a = self.a
        a(f"""s_lshr_b32 s72, {sWM}, 1
        s_and_b32 s73, {sWM}, 1
        s_lshl_b32 s74, s73, 5
        s_add_u32 s74, s74, s72
        v_lshl_add_u32 v5, {vN}, 1, s74
        v_cvt_f32_u32 v5, v5
        v_mul_f32 v5, {fbits(1/2048)}, v5
        v_lshlrev_b32 v6, 3, {vG}
        v_cvt_f32_u32 v7, v6
        v_mul_f32 v{self.T1C}, v7, v5""")
        for e in range(1, 8):
            a(f"v_add_f32 v{self.T1C+e}, v{self.T1C+e-1}, v5")
        for e in range(8):
            a(f"v_sin_f32 v{self.T1S+e}, -v{self.T1C+e}")
            a(f"v_cos_f32 v{self.T1C+e}, v{self.T1C+e}")
        a(f"""v_add_u32 v6, s74, v6
        v_cvt_f32_u32 v6, v6
        v_lshrrev_b32 v7, 2, {vN}
        v_and_b32 v8, 3, {vN}
        v_lshl_add_u32 v8, v7, 3, v8
        v_cvt_f32_u32 v7, v8
        v_mul_f32 v9, {fbits(1/2048)}, v7
        v_add_f32 v10, {fbits(4/2048)}, v9""")
        for t in range(2):
            a(f"v_mul_f32 v{self.T2C+4*t}, v6, v{9+t}")
            a(f"v_add_f32 v{9+t}, v{9+t}, v{9+t}")
            for r in range(1, 4):
                a(f"v_add_f32 v{self.T2C+4*t+r}, v{self.T2C+4*t+r-1}, v{9+t}")
        for e in range(8):
            a(f"v_sin_f32 v{self.T2S+e}, v{self.T2C+e}")
            a(f"v_cos_f32 v{self.T2C+e}, v{self.T2C+e}")

    def pre_flags(self):
        self.a(f"""s_cmp_eq_u32 {sLAYER}, 0
        s_cselect_b32 s89, 16, 6
        s_cselect_b32 s72, 0, {2*FSTRIDE}
        s_add_u32 s72, s72, {F_WQ*FSTRIDE}
        s_add_u32 s72, s72, {sREP}
        s_lshl_b32 s73, {sWM}, 9
        s_add_u32 s72, s72, s73""")

    def col_hint(self, wave=0):
        self.a(f"""s_lshl_b32 s72, s4, 5
        s_and_b32 s72, s72, 0x780
        s_add_u32 s72, s72, {sFL}
        s_add_u32 s72, s72, {F_COL*FSTRIDE}""")
        self.push("s72", 11, wave=wave)

    def col_wload(self):
        a = self.a
        a(f"buffer_load_dwordx4 {vr(self.WRAW,4)}, {vL16}, {WS}, s10 offen sc1")
        a(f"buffer_load_dwordx4 {vr(self.WRAW+4,4)}, {vL16}, {WS}, s10 offen offset:1024 sc1")

    def col_early(self):
        l = self.a.lab("Lk")
        self.a(f"s_cmp_ge_u32 {sR}, 20\ns_cbranch_scc1 {l}\ns_call_b64 s[70:71], Lcolearly\n{l}:")

    def col_early_body(self):
        a = self.a
        a("Lcolearly:\ns_nop 4")
        self.col_twiddles()
        a(f"""s_lshr_b32 s72, {sWM}, 1
        s_and_b32 s73, {sWM}, 1
        v_and_b32 v8, 3, {vN}
        s_mul_i32 s77, {sX}, 20
        s_add_u32 s77, s77, {sR}
        s_lshl_b32 s77, s77, 1
        s_add_u32 s77, s77, {sHI}
        s_lshl_b32 s4, s77, 1
        s_add_u32 s4, s4, s73
        s_lshl_b32 s5, s4, 8
        s_mul_i32 s74, s72, {8*163840}
        s_add_u32 s5, s5, s74
        s_lshl_b32 s10, s77, 13
        s_lshl_b32 s74, {sWM}, 11
        s_add_u32 s10, s10, s74
        s_add_u32 s10, s10, {WF}
        s_mov_b32 s74, 163840
        v_mul_lo_u32 v11, {vG}, s74
        v_lshl_add_u32 v11, {vN}, 4, v11
        s_lshl_b32 s74, {sHI}, 11
        s_lshl_b32 s76, {sWM}, 8
        s_add_u32 s74, s74, s76
        s_add_u32 s74, s74, {self.RW}
        v_lshlrev_b32 v5, 12, {vG}
        v_lshl_add_u32 v5, {vN}, 4, v5
        v_add_u32 v12, s74, v5
        s_lshl_b32 s75, {sHI}, 13
        s_lshl_b32 s74, s73, 12
        s_add_u32 s74, s74, s75
        s_lshl_b32 s76, s72, 11
        s_add_u32 s74, s74, s76
        s_add_u32 s74, s74, {self.RW}
        v_add_u32 v13, s74, {vL16}
        s_lshl_b32 s74, {sHI}, 7
        s_lshl_b32 s76, {sWM}, 8
        s_add_u32 s74, s74, s76
        s_add_u32 s74, s74, {self.ZS}
        v_bfe_u32 v5, {vN}, 2, 1
        v_lshlrev_b32 v5, 10, v5
        v_lshrrev_b32 v6, 1, {vG}
        v_lshl_add_u32 v5, v6, 13, v5
        v_and_b32 v6, 1, {vG}
        v_lshl_add_u32 v5, v6, 11, v5
        v_lshrrev_b32 v6, 3, {vN}
        v_lshl_add_u32 v5, v6, 6, v5
        v_lshl_add_u32 v5, v8, 4, v5
        v_add_u32 v14, s74, v5
        v_and_b32 v5, 1, {vN}
        v_lshlrev_b32 v5, 4, v5
        s_movk_i32 s74, 0x3f80
        v_lshlrev_b32 v5, v5, s74
        v_cmp_gt_u32 vcc, 2, v8
        v_cndmask_b32 v16, 0, v5, vcc
        v_sub_u32 v17, v5, v16
        s_lshl_b32 s74, s72, 12
        s_add_u32 s74, s74, s75
        s_add_u32 s74, s74, {self.ZS}
        v_add_u32 v15, s74, {vL16}
        s_lshl_b32 s76, s73, 9
        s_add_u32 s74, s74, s76
        v_lshlrev_b32 v5, 10, v6
        v_lshl_add_u32 v5, v8, 4, v5
        v_bfe_u32 v6, {vN}, 2, 1
        v_lshl_add_u32 v5, v6, 7, v5
        v_lshrrev_b32 v6, 1, {vG}
        v_lshl_add_u32 v5, v6, 8, v5
        v_and_b32 v6, 1, {vG}
        v_lshl_add_u32 v5, v6, 3, v5
        v_add_u32 v8, s74, v5
        s_lshl_b32 s74, s72, 10
        s_add_u32 s74, s74, s75
        s_lshl_b32 s76, s73, 11
        s_add_u32 s74, s74, s76
        s_add_u32 s74, s74, {self.EX}
        v_add_u32 v9, s74, {vL16}
        v_xor_b32 v10, 0x800, v9
        v_mov_b32 v18, {fbits(1e-5)}
        s_nop 4
        s_setpc_b64 s[70:71]""")

    def x_look(self):
        self.a(f"""s_lshl_b32 s72, {sWV}, 8
        s_add_u32 s72, s72, {sREP}
        s_add_u32 s72, s72, {sFL}
        v_lshlrev_b32 v5, 7, {vL}
        v_mov_b32 v240, 0
        s_mov_b64 exec, 3
        buffer_atomic_add v240, v5, {WS}, s72 offen sc0 sc1
        s_mov_b64 exec, -1""")

    def col_consts(self):
        a = self.a
        a(f"""s_lshl_b32 s74, {sWM}, 8
        s_add_u32 s74, s74, {TB}
        v_lshrrev_b32 v7, 2, {vN}
        v_and_b32 v6, 3, {vN}
        v_lshl_add_u32 v7, v7, 3, v6
        v_lshlrev_b32 v5, 10, {vG}
        v_lshl_add_u32 v6, {vN}, 4, v5
        v_add_u32 v6, s74, v6
        v_lshl_add_u32 v5, v7, 4, v5
        v_add_u32 v5, {TB}, v5
        v_lshlrev_b32 v19, 9, {vG}
        v_lshl_add_u32 v19, v7, 4, v19
        v_add_u32 v19, {TB+4096}, v19
        ds_read_b128 {vr(self.S1,4)}, v6 offset:6144""")
        for t in range(2):
            a(f"ds_read_b128 {vr(self.S2+4*t,4)}, v5 offset:{6144+64*t}")
            a(f"ds_read_b128 {vr(self.S4O+4*t,4)}, v19 offset:{6144+64*t}")
        a(f"ds_read_b128 {vr(self.C1,4)}, v6")
        for t in range(2):
            a(f"ds_read_b128 {vr(self.C2+4*t,4)}, v5 offset:{64*t}")
            a(f"ds_read_b128 {vr(self.C4O+4*t,4)}, v19 offset:{64*t}")
        a(f"""s_bitcmp0_b32 {sWM}, 0
        s_cselect_b32 s75, 0x80008000, 0
        s_mov_b32 s74, 0x80008000
        s_mov_b32 s76, {fbits(1/640)}
        s_mov_b32 s87, {fbits(1/2048)}
        s_lshl_b32 s72, {sHI}, 3
        s_add_u32 s72, s72, {sWM}
        s_mul_i32 s84, s72, 163840
        s_lshr_b32 s73, s4, 2
        s_lshl_b32 s73, s73, 10
        s_add_u32 s84, s84, s73
        s_add_u32 s84, s84, {sXA}
        s_add_u32 s85, s84, {4*163840}
        s_lshl_b32 s77, s72, 11
        s_add_u32 s77, s77, {sSS}
        s_add_u32 s86, s77, 8192
        s_cmp_eq_u32 s4, 1
        s_cselect_b32 s87, 0, s87
        v_mov_b32 v{self.SEL}, 0
        v_mov_b32 v{self.SEL+1}, 0
        v_mov_b32 v{self.SEL+2}, v16
        v_mov_b32 v{self.SEL+3}, v17
        v_mov_b32 v{self.SEL+4}, 0
        v_mov_b32 v{self.SEL+5}, 0
        s_add_u32 s82, s5, {sXB}
        s_add_u32 s83, s82, {4*163840}
        s_waitcnt lgkmcnt(5)""")
        for i in range(4):
            a(f"v_xor_b32 v{self.N1+i}, s74, v{self.S1+i}")
        for i in range(8):
            a(f"v_xor_b32 v{self.N2+i}, s74, v{self.S2+i}")
            a(f"v_xor_b32 v{self.S4E+i}, s75, v{self.S2+i}")
            a(f"v_xor_b32 v{self.S4O+i}, s75, v{self.S4O+i}")

    def wmid(self, slot):
        a = self.a
        if "cp" in self.opts and slot < 4:
            a(f"s_setprio {3-slot}")
        slots = {5: (0, 1, 2, 3, 4), 4: (1, 2, 3, 4), 3: (1, 3, 4), 2: (3, 4), 1: (4,), 0: ()}[self.wg]
        if slot not in slots:
            return
        j = slots.index(slot)
        self.wm_issued += 2
        a(f"s_add_u32 m0, s80, {2048*j}\ns_add_u32 s72, s81, {2048*j}")
        for i in range(2):
            a(f"buffer_load_dwordx4 {vL16}, {WS}, s72 offen offset:{1024*i} sc1 lds")

    def col_main(self):
        a = self.a
        nz, l1 = a.lab("Lnz"), a.lab("Lk")
        EXO = self.EX - self.ZS
        T, U = self.TR, self.URAW
        lp, dn, l2, l4, l5 = (a.lab("Lk") for _ in range(5))
        a(f"""s_mov_b32 s35, 1
        s_lshl_b32 s78, {sWM}, 12
        s_mul_i32 s79, {sH}, 81920
        s_add_u32 s79, s79, {WQ}
        s_mul_i32 s80, {sWV}, {2048*self.wg}
        s_add_u32 s81, s79, s80
        s_add_u32 s79, s79, s78
        s_cmp_eq_u32 {sLAYER}, 0
        s_cbranch_scc1 {l1}""")
        self.col_wload()
        a(f"s_branch {l2}\n{l1}:")
        self.if_lo(l2)
        self.fill_cols("s82", "s83", T)
        a(f"""{l2}:
        s_lshl_b32 s72, {sWV}, 8
        s_add_u32 s72, s72, {sREP}
        s_add_u32 s73, s72, {F_WQ*FSTRIDE}
        s_add_u32 s72, s72, {sFL}""")
        lg = a.lab("Lk")
        a(f"v_lshlrev_b32 v5, 7, {vL}\ns_waitcnt vmcnt(0)\ns_mov_b64 exec, 3\nv_cmp_gt_u32 vcc, 16, v240\ns_mov_b64 exec, -1\ns_cbranch_vccz {lg}")
        self.wait_lines("s72", 2, 16)
        a(f"{lg}:\ns_barrier\ns_cmp_lg_u32 {sLAYER}, 0\ns_cbranch_scc1 {l4}\ns_add_u32 s72, {sSH}, {F_WQ*FSTRIDE}")
        self.push("s72", 11, wave=0)
        a(f"v_lshlrev_b32 v5, 7, {vL}\n{l4}:")
        self.fstamp("c", 0)
        if "cq" in self.opts:
            a("s_setprio 3")
        a(f"s_mov_b32 s88, {SPIN}\n{lp}:")
        for k in range(4):
            a(f"buffer_load_dwordx4 {vr(T+4*k,4)}, {vL16}, {WS}, {'s77' if k < 2 else 's86'} offen offset:{1024*(k%2)} sc1")
        a(f"""buffer_load_dwordx4 {vr(U,4)}, {vL16}, {WS}, s84 offen sc1
        buffer_load_dwordx4 {vr(U+4,4)}, {vL16}, {WS}, s85 offen sc1
        s_mov_b64 exec, 3
        v_mov_b32 v19, 0
        buffer_atomic_add v19, v5, {WS}, s73 offen sc0 sc1
        s_mov_b64 exec, -1""")
        for p in range(2):
            a(f"s_waitcnt vmcnt({5-2*p})")
            for k in range(2):
                for j in range(2):
                    self.mm(self.RS0 + 8 * p + 4 * j, self.SEL + 2 - 2 * j, T + 8 * p + 4 * k, k == 0)
        if "cq" in self.opts:
            a("s_setprio 2")
        for x in self.umax(6, range(T, T + 16)):
            a(x)
        for i in range(16):
            a(f"v_fma_f32 v{self.RS0+i}, v{self.RS0+i}, s76, v18")
        for i in range(16):
            a(f"v_rsq_f32 v{self.RS0+i}, v{self.RS0+i}")
        if "cq" in self.opts:
            a("s_setprio 1")
        a("s_waitcnt vmcnt(1)")
        for x in self.umax(6, [6] + list(range(U, U + 8))):
            a(x)
        a("v_cmp_eq_u32 vcc, -1, v6")
        a(f"ds_write_b128 v12, {vr(U,4)}\nds_write_b128 v12, {vr(U+4,4)} offset:1024")
        self.unpack(self.R0, U, 8)
        a(f"s_cbranch_vccz {dn}")
        self.count(8)
        a(f"""s_waitcnt vmcnt(0)
        s_sub_u32 s88, s88, 1
        s_cbranch_scc0 {lp}
        {dn}:""")
        if "cq" in self.opts:
            a("s_setprio 0")
        self.stamp(4)
        a(f"s_cmp_gt_u32 s4, 3\ns_cbranch_scc1 {nz}\ns_mov_b32 exec_lo, 0xffff0000\ns_mov_b32 exec_hi, 0")
        for i in range(16):
            a(f"v_mov_b32 v{self.RS0+i}, 0")
        a(f"s_mov_b64 exec, -1\n{nz}:")
        for h in range(4):
            p, r0, r1, x1 = vr(self.DR + 2 * h, 2), vr(self.RS0 + 2 * h, 2), vr(self.RS1 + 2 * h, 2), vr(self.R1 + 2 * h, 2)
            a(f"v_pk_mul_f32 {p}, {vr(self.R0+2*h,2)}, {r0}")
            a(f"v_pk_fma_f32 {vr(self.TR+2*h,2)}, {x1}, {r1}, {p}")
            a(f"v_pk_fma_f32 {vr(self.TI+2*h,2)}, {x1}, {r1}, {p} neg_lo:[1,0,0] neg_hi:[1,0,0]")
        for h in range(4):
            a(f"v_cvt_pk_bf16_f32 v{self.BR+h}, v{self.TR+2*h}, v{self.TR+2*h+1}")
        a(f"ds_write_b128 v14, {vr(self.BR,4)}")
        for h in range(4):
            a(f"v_cvt_pk_bf16_f32 v{self.BI+h}, v{self.TI+2*h}, v{self.TI+2*h+1}")
        a(f"ds_write_b128 v14, {vr(self.BI,4)} offset:4096")
        a(f"s_waitcnt vmcnt(0)\ns_mov_b64 exec, 3\nv_cmp_gt_u32 vcc, 16, v19\ns_mov_b64 exec, -1\ns_cbranch_vccz {l5}")
        self.poll(WS, "v5", "s73", 2, 16)
        a(f"{l5}:\ns_waitcnt lgkmcnt(0)\ns_barrier")
        AF, DR, DI, BR, BI = self.AF, self.DR, self.DI, self.BR, self.BI
        self.fstamp("c", 2)
        for i in range(4):
            a(f"ds_read_b128 {vr(AF+4*i,4)}, v15 offset:{1024*i}")
        lv = a.lab("Lk")
        a(f"s_cmp_lg_u32 {sLAYER}, 0\ns_cbranch_scc1 {lv}")
        self.col_wload()
        a(f"{lv}:")
        self.wm_issued = 0
        self.wmid(0)
        a("s_waitcnt lgkmcnt(2)")
        for t in range(2):
            self.mm(DR + 4 * t, AF + 4 * t, self.C1, True)
            self.mm(DI + 4 * t, AF + 4 * t, self.N1, True)
        a("s_waitcnt lgkmcnt(0)")
        for t in range(2):
            self.mm(DR + 4 * t, AF + 8 + 4 * t, self.S1, False)
            self.mm(DI + 4 * t, AF + 8 + 4 * t, self.C1, False)
        self.wmid(1)
        self.cmul_pack(self.T1C, self.T1S)
        for t in range(2):
            self.mm(DR + 4 * t, self.C2 + 4 * t, BR, True)
            self.mm(DI + 4 * t, self.N2 + 4 * t, BR, True)
        for t in range(2):
            self.mm(DR + 4 * t, self.S2 + 4 * t, BI, False)
            self.mm(DI + 4 * t, self.C2 + 4 * t, BI, False)
        self.wmid(2)
        a(f"s_waitcnt vmcnt({self.wm_issued})")
        self.fstamp("c", 3)
        self.unpack(self.WR, self.WRAW, 8)
        self.cmul_pack(self.WR, self.WI)
        for t in range(2):
            self.mm(DR + 4 * t, BR, self.C2 + 4 * t, True)
            self.mm(DI + 4 * t, BR, self.S2 + 4 * t, True)
        for t in range(2):
            self.mm(DR + 4 * t, BI, self.N2 + 4 * t, False)
            self.mm(DI + 4 * t, BI, self.C2 + 4 * t, False)
        a(f"ds_read_b128 {vr(U,4)}, v13\nds_read_b128 {vr(U+4,4)}, v13 offset:1024")
        self.wmid(3)
        self.cmul_pack(self.T2C, self.T2S)
        for t in range(2):
            a(f"ds_write_b64 v8, {vr(BR+2*t,2)} offset:{EXO+64*t}")
            a(f"ds_write_b64 v8, {vr(BI+2*t,2)} offset:{EXO+2048+64*t}")
        self.wmid(4)
        self.fstamp("c", 14)
        l3 = a.lab("Lk")
        self.if_hi(l3)
        self.pre_flags()
        a(f"""v_lshlrev_b32 v5, 7, {vL}
        v_mov_b32 v19, 0
        s_mov_b64 exec, 15
        buffer_atomic_add v19, v5, {WS}, s72 offen sc0 sc1
        s_mov_b64 exec, -1
        {l3}:
        s_waitcnt lgkmcnt(0)
        s_barrier""")
        self.fstamp("c", 15)
        for p in range(2):
            a(f"ds_read_b128 {vr(AF+8*p,4)}, v9 offset:{4096*p}")
        for p in range(2):
            a(f"ds_read_b128 {vr(AF+8*p+4,4)}, v10 offset:{4096*p}")
        if self.hc == 0:
            self.col_hint()
        self.fstamp("j", 1)
        self.unpack(self.R0, U, 8)
        a("v_mov_b32 v6, s87\ns_waitcnt lgkmcnt(2)")
        for t in range(2):
            self.mm(DR + 4 * t, self.C2 + 4 * t, AF, True)
            self.mm(DI + 4 * t, self.C4O + 4 * t, AF + 8, True)
        a("s_waitcnt lgkmcnt(0)")
        for t in range(2):
            self.mm(DR + 4 * t, self.S4E + 4 * t, AF + 4, False)
            self.mm(DI + 4 * t, self.S4O + 4 * t, AF + 12, False)
        for neg, t, r, b, so in (("", self.TR, self.R0, BR, "s82"), (" neg_lo:[0,1] neg_hi:[0,1]", self.TI, self.R1, BI, "s83")):
            for h in range(4):
                x = vr(t + 2 * h, 2)
                a(f"v_pk_add_f32 {x}, {vr(DR+2*h,2)}, {vr(DI+2*h,2)}{neg}")
                a(f"v_pk_fma_f32 {x}, {x}, v[6:7], {vr(r+2*h,2)} op_sel_hi:[1,0,1]")
            for h in range(4):
                a(f"v_cvt_pk_bf16_f32 v{b+h}, v{t+2*h}, v{t+2*h+1}")
            self.clean(b, 4)
            a(f"buffer_store_dwordx4 {vr(b,4)}, v11, {WS}, {so} offen sc1")
        if self.hc == 1:
            self.col_hint()

    XR = 81920
    NREG = 244
    QH, NRM, SSP, VSCR = 102400, 112640, 32768, 143360
    QACC, QF, QAD = 60, 144, 192

    XB = (0, 81920, 131072)

    def retry(self, chk, loads):
        a = self.a
        bad, ok, lp = a.lab("Lbad"), a.lab("Lok"), a.lab("Lbad")
        a(f"s_cbranch_vccnz {bad}\n{ok}:")
        body = [f"{bad}:", f"s_mov_b32 s88, {SPIN}", f"{lp}:"] + loads
        body += ["s_sub_u32 s88, s88, 1", "s_waitcnt vmcnt(0)", f"s_cbranch_scc1 {ok}"] + chk + [f"s_cbranch_vccnz {lp}", f"s_branch {ok}"]
        self.cold.append("\n".join(body))

    def ft_part(self, q):
        a = self.a
        a(f"s_add_u32 m0, s78, {q*16384}\ns_add_u32 s83, s82, {q*16384}")
        for i in range(4):
            a(f"buffer_load_dwordx4 {vL16}, {WS}, s83 offen offset:{1024*i} sc1 lds")

    def ss_sched(self):
        k0 = next((int(o[2:]) for o in self.opts if o.startswith("ks")), 6)
        n = -(-72 // sum(self.ss_dens()))
        return k0, k0 + 2 * (n // 2) + 2

    def ss_dens(self):
        return {"d4": (0, 0, 2, 2), "d6": (1, 1, 2, 2), "d8": (1, 1, 3, 3), "d12": (2, 2, 4, 4), "d18": (4, 4, 5, 5)}[
            next((o for o in self.opts if o in ("d4", "d6", "d8", "d12", "d18")), "d18")]

    def x_base(self, addr):
        return max(i for i in range(3) if self.XB[i] <= addr)

    def x_plan(self):
        free = [self.XR + 16384 * i for i in range(5)]
        extra = {5: 0}
        nx = next((int(o[2:]) for o in self.opts if o.startswith("nx")), 0)
        pre = next((int(o[2:]) for o in self.opts if o.startswith("pr")), 3)
        slot, plan, g = {}, {}, 0
        for q in range(-1, 20):
            if q >= 2:
                free.append(slot[q - 2])
            if q in extra and list(extra).index(q) < nx:
                free.append(extra[q])
            plan[q] = []
            while free and g < 20 and len(plan[q]) < (pre if q < 0 else 2):
                slot[g] = free.pop(0)
                plan[q].append(g)
                g += 1
        return slot, plan

    def w_prefetch(self, entry):
        a = self.a
        a(f"""s_lshl_b32 s78, {sWM}, 12
        s_mul_i32 s79, {sH}, 81920
        s_add_u32 s79, s79, {WQ}
        s_add_u32 s79, s79, s78""")
        for q in range(6):
            if q == self.wg:
                a(f"{entry}:")
            if q < 5:
                a(f"s_add_u32 m0, s78, {q*16384}\ns_add_u32 s72, s79, {q*16384}")
                for i in range(4):
                    a(f"buffer_load_dwordx4 {vL16}, {WS}, s72 offen offset:{1024*i} sc1 lds")

    def qkv_helper(self):
        a = self.a
        XR = self.XR
        lw = a.lab("Lh")
        a(f"s_cmp_eq_u32 s35, 1\ns_cbranch_scc1 {lw}")
        self.w_prefetch(lw)
        lg = a.lab("Lh")
        a(f"""s_mov_b32 s35, 0
        s_setprio 3
        s_lshl_b32 s75, {sWM}, 9
        s_add_u32 s75, s75, {sREP}
        s_add_u32 s75, s75, {sFL}
        s_add_u32 s75, s75, {F_COL*FSTRIDE}""")
        a(f"""s_lshl_b32 s80, {sTT}, 1
        s_lshr_b32 s74, {sWM}, 1
        s_add_u32 s80, s80, s74
        s_lshl_b32 s13, s80, 13
        s_mul_i32 s80, s80, 163840
        s_add_u32 s80, s80, {sXB}
        s_and_b32 s74, {sWM}, 1
        s_lshl_b32 s74, s74, 12
        s_add_u32 s80, s80, s74
        s_add_u32 s13, s13, s74
        s_mul_i32 s82, {sCB}, 102400
        s_add_u32 s82, s82, {FT}
        s_add_u32 s82, s82, s78
        s_and_b32 s74, {sWM}, 1
        s_lshl_b32 s74, s74, 1
        v_lshlrev_b32 v5, 2, {vG}
        v_xor_b32 v5, s74, v5
        v_xor_b32 v5, v5, {vL}
        v_lshlrev_b32 v8, 4, v5""")
        self.wait_lines("s75", 4, 10)
        a("s_barrier\ns_setprio 0")
        self.stamp(6)
        ACC, RAW = 140, 60
        order = []
        slot, plan = self.x_plan()

        def dma(g):
            r = [[f"buffer_load_dwordx4 v8, {WS}, s83 offen offset:{1024*i} sc1 lds"] for i in range(4)]
            r[0] = [f"s_add_u32 m0, s78, {slot[g]}", f"s_add_u32 s83, s80, {g*8192}"] + r[0]
            return [(f"X{g}", x) for x in r]

        def emit(items):
            for tag, x in items:
                order.append(tag)
                for y in x:
                    a(y)

        def allow(*tags):
            last = max((i for i, t in enumerate(order) if t in tags), default=-1)
            return len(order) - 1 - last

        def qloads():
            return [("Q", [f"buffer_load_dwordx4 {vr(RAW+4*i,4)}, {vL16}, {WS}, s13 offen offset:{1024*i} sc1"]) for i in range(4)]

        QQ = next((int(o[2:]) for o in self.opts if o.startswith("qq")), 15)
        QC = self.ss_sched()[1] // 2 + 2
        for g in plan[-1]:
            emit(dma(g))
        a(f"""v_bfe_u32 v5, {vL}, 2, 2
        v_and_b32 v7, 1, {vG}
        v_lshrrev_b32 v6, 1, {vG}
        v_lshl_add_u32 v6, v6, 3, v5
        v_lshlrev_b32 v6, 8, v6
        v_lshl_add_u32 v6, v7, 12, v6
        s_lshl_b32 s74, {sHALF}, 2
        s_add_u32 s74, s74, {sWM}
        v_lshlrev_b32 v5, 1, v5
        v_xor_b32 v5, v5, v7
        v_xor_b32 v5, s74, v5
        v_lshl_add_u32 v6, v5, 5, v6
        v_and_b32 v7, 3, {vL}
        v_lshl_add_u32 v6, v7, 3, v6
        s_and_b32 s74, {sT}, 1
        s_lshl_b32 s74, s74, 13
        v_add_u32 v13, s74, v6
        v_add_u32 v14, {self.XB[1]}, v13
        v_add_u32 v15, {self.XB[2]}, v13
        s_and_b32 s81, {sH}, 15
        s_lshl_b32 s15, {sLAYER}, 17
        s_add_u32 s15, s15, {SQ0}
        s_add_u32 s13, s13, s15
        s_lshl_b32 s74, {sT}, 13
        s_add_u32 s15, s15, s74
        s_lshl_b32 s74, s81, 9
        s_add_u32 s15, s15, s74
        v_lshlrev_b32 v9, 5, {vN}
        v_lshl_add_u32 v9, {vG}, 3, v9
        s_lshl_b32 s74, {sWM}, 9
        v_and_b32 v5, 31, {vL}
        v_lshrrev_b32 v6, 5, {vL}
        v_lshl_add_u32 v5, v5, 1, v6
        v_lshl_add_u32 v12, v5, 3, s74""")
        for q in range(20):
            n = allow(f"X{q}", *(("Q",) if q >= 18 else ()))
            extra = 4 * sum(1 for e in self.ft_early if e < q)
            if extra:
                l = a.lab("Lh")
                a(f"s_cmp_lg_u32 {sLAYER}, 0\ns_cbranch_scc1 {l}\ns_waitcnt vmcnt({n})\n{l}:")
            a(f"s_waitcnt vmcnt({n+extra}) lgkmcnt(0)\ns_barrier")
            if q in (2, 4, 6, 10, 14, 18):
                self.fstamp("q", {2: 0, 4: 1, 6: 2, 10: 3, 14: 14, 18: 15}[q])
            if q == 0:
                l = a.lab("Lh")
                a(f"s_cmp_lt_u32 {sR}, 20\ns_cbranch_scc1 {l}\ns_or_b32 s72, {sLAYER}, s14\ns_cbranch_scc1 {l}")
                a(f"s_add_u32 s72, {sSH}, {F_IMG*FSTRIDE}")
                self.push("s72", 11, wave=7)
                a(f"{l}:")
            if q == QC:
                for i in range(4):
                    a(f"ds_read_b64 {vr(ACC+2*i,2)}, v9 offset:{16384+512*i}")
            emit([x for g in plan[q] for x in dma(g)] + (qloads() if q == QQ else []))
            if q == QC:
                l = a.lab("Lh")
                a(f"s_cmp_lg_u32 {sWM}, 0\ns_waitcnt lgkmcnt(0)\ns_cbranch_scc1 {l}")
                for i in range(2):
                    a(f"v_add_f32 v{ACC+i}, v{ACC+i}, v{ACC+2+i}\nv_add_f32 v{ACC+4+i}, v{ACC+4+i}, v{ACC+6+i}")
                for i in range(2):
                    a(f"v_add_f32 v{ACC+i}, v{ACC+i}, v{ACC+4+i}")
                for i in range(2):
                    a(f"v_or_b32 v{ACC+i}, 1, v{ACC+i}")
                a(f"buffer_store_dwordx2 {vr(ACC,2)}, v9, {WS}, s15 offen sc1\n{l}:")
            if q == 18:
                chk = [x.replace("max", "min") for x in self.umax(5, range(RAW, RAW + 16))] + ["v_cmp_eq_u32 vcc, 0, v5"]
                for x in chk:
                    a(x)
                self.retry(chk, [x[0] for _, x in qloads()])
                for i in range(8):
                    a(f"v_add_f32 v{RAW+i}, v{RAW+i}, v{RAW+8+i}")
            if q == 18:
                for i in range(4):
                    a(f"v_add_f32 v{RAW+i}, v{RAW+i}, v{RAW+4+i}")
                a(f"""v_permlane32_swap_b32 v{RAW}, v{RAW+2}
                v_permlane32_swap_b32 v{RAW+1}, v{RAW+3}
                v_add_f32 v{RAW}, v{RAW}, v{RAW+2}
                v_add_f32 v{RAW+1}, v{RAW+1}, v{RAW+3}
                ds_write_b64 v12, {vr(RAW,2)} offset:{self.SSP}""")
            l = a.lab("Lh")
            a(f"s_cmp_eq_u32 {sLAYER}, 0\ns_cbranch_scc1 {l}")
            b = self.x_base(slot[q])
            for i in range(2):
                a(f"ds_read_b64_tr_b16 {vr(GA+4*q+2*i,2)}, v{13+b} offset:{slot[q]-self.XB[b]+1024*i}")
            if q in self.ft_early:
                self.ft_part(self.ft_early[q])
            a(f"{l}:")
        a("s_waitcnt lgkmcnt(0)\ns_barrier")
        l0, l1 = a.lab("Lh"), a.lab("Lh")
        self.att_setup()
        a(f"""s_mul_i32 s72, {sWM}, 2560
        s_add_u32 s72, s72, {self.QH}
        v_add_u32 v5, s72, {vL16}
        v_xor_b32 v6, 32, {vL}
        v_lshl_add_u32 v6, v6, 3, s72
        s_barrier
        ds_read_b128 {vr(AR.Q1,4)}, v5 offset:1024
        ds_read_b128 {vr(AR.Q1+4,4)}, v5
        ds_read_b64 v[6:7], v6 offset:2048
        v_lshlrev_b32 v5, 3, {vN}
        v_add_u32 v5, {self.NRM}, v5
        ds_read_b64 {vr(self.NREG,2)}, v5
        s_waitcnt lgkmcnt(1)""")
        for j in range(4):
            a(f"v_mov_b32 v{AR.Q2+6*(j//2)+j%2}, v{6+j%2}")
        self.q2_spread()

    def q2_spread(self):
        for i in range(4):
            self.a(f"v_permlane32_swap_b32 v{AR.Q2+i}, v{AR.Q2+4+i}")

    def att_setup(self):
        a = self.a
        A.setup_addr(a, vL, vL16, sHI, "s72", 5)
        a(f"""s_mul_i32 s85, {sWV}, 2560
        s_mul_i32 s86, {sH}, {8*A.CHUNK}
        s_add_u32 s86, s86, {sKV}
        s_add_u32 s86, s86, s85
        s_add_u32 s85, s85, {A.SLOT0}""")
        for i in range(2, 6):
            a(f"v_mov_b32 v{AR.Q2+i}, 0")
        for i in range(32):
            a(f"v_mov_b32 v{AR.O+i}, 0")
        self.o_prepare()

    def qkv_compute(self):
        a = self.a
        XR, AD = self.XR, self.QAD
        own = A.SLOT0 + A.slot_off(0)
        EA = AD + 14
        self.att_setup()
        a(f"""s_lshr_b32 s72, {sWM}, 1
        s_and_b32 s73, {sWM}, 1
        v_mov_b32 v{AD}, {vL16}
        v_add_u32 v{AD+1}, 0xa000, {vL16}
        v_bfe_u32 v5, {vL}, 2, 2
        v_lshrrev_b32 v6, 5, {vL}
        v_lshl_add_u32 v6, v6, 3, v5
        v_mul_u32_u24 v{EA+1}, 48, v6
        v_lshlrev_b32 v6, 8, v6
        v_and_b32 v7, 3, {vL}
        v_lshl_add_u32 v6, v7, 3, v6
        s_lshl_b32 s74, s73, 1
        v_xor_b32 v7, s74, v5
        v_lshl_add_u32 v6, v7, 6, v6
        v_and_b32 v7, 1, {vG}
        v_lshl_add_u32 v6, v7, 5, v6
        s_lshl_b32 s74, s72, 13
        v_add_u32 v{AD+2}, s74, v6""")
        for i in range(1, 4):
            a(f"v_xor_b32 v{AD+2+i}, {32*i}, v{AD+2}")
        for i in range(8):
            a(f"v_add_u32 v{AD+6+i}, {self.XB[1+i//4]}, v{AD+2+i%4}")
        a(f"""s_mul_i32 s75, {sWM}, 3072
        s_add_u32 s75, s75, {self.VSCR}
        v_and_b32 v5, 3, {vL}
        v_lshl_add_u32 v5, v7, 2, v5
        v_min_u32 v5, 4, v5
        v_and_b32 v6, 1, v5
        v_mul_u32_u24 v6, 24, v6
        v_lshrrev_b32 v5, 1, v5
        v_lshl_add_u32 v5, v5, 3, v6
        v_add3_u32 v{EA+1}, v{EA+1}, v5, s75
        v_and_b32 v5, 31, {vL}
        v_lshrrev_b32 v6, 5, {vL}
        v_lshl_add_u32 v7, v5, 1, v6
        v_mul_u32_u24 v7, 24, v7
        v_add_u32 v{EA}, s75, v7
        v_mul_u32_u24 v6, 20, v6
        v_add_lshl_u32 v{EA+2}, v6, v5, 4
        s_lshl_b32 s75, s73, 8
        s_lshl_b32 s76, s72, 10
        s_add_u32 s75, s75, s76
        s_add_u32 s75, s75, {self.SSP}
        v_lshl_add_u32 v{EA+3}, v5, 2, s75
        s_mul_i32 s76, s72, {A.HEADB}
        s_mul_i32 s77, s73, {2*A.TILE}
        s_add_u32 s77, s77, s76
        s_lshl_b32 s75, s73, 9
        s_add_u32 s76, s76, s75
        s_add_u32 s76, s76, {A.K2OFF}
        s_add_u32 s75, s77, {own}
        v_add_u32 v{EA+4}, s75, {vL16}
        v_add_u32 v{EA+5}, s75, v{EA+2}
        v_lshlrev_b32 v{EA+6}, 3, {vL}
        s_add_u32 s75, s76, {own}
        v_add_u32 v{EA+7}, s75, v{EA+6}
        s_lshl_b32 s75, {sH}, 3
        s_add_u32 s75, s75, {sTT}
        s_mul_i32 s75, s75, {A.CHUNK}
        s_add_u32 s75, s75, {sKV}
        s_add_u32 s76, s76, s75
        s_add_u32 s77, s77, s75
        s_mul_i32 s75, {sWM}, 2560
        s_add_u32 s75, s75, {self.QH}
        v_add_u32 v{EA+8}, s75, {vL16}
        v_add_u32 v{EA+9}, s75, v{EA+6}
        s_mov_b32 s78, {fbits(1/640)}
        v_mov_b32 v{EA+10}, {fbits(1e-5)}
        s_lshl_b32 s75, {sWM}, 5
        s_add_u32 s75, s75, {self.NRM}
        v_lshl_add_u32 v{EA+11}, {vG}, 3, s75
        v_lshlrev_b32 v5, 3, {vN}
        v_add_u32 v{EA+12}, {self.NRM}, v5
        v_lshlrev_b32 v{EA+13}, 2, {vG}
        s_lshl_b32 s79, {sH}, 3
        s_add_u32 s79, s79, {sTT}
        s_lshl_b32 s79, s79, 7
        s_lshl_b32 s75, {sWM}, 4
        s_add_u32 s79, s79, s75
        s_lshl_b32 s75, {sLAYER}, 15
        s_add_u32 s79, s79, s75
        s_add_u32 s79, s79, {F_KMAX*FSTRIDE}
        s_and_b32 s81, {sH}, 15
        s_or_b32 s74, s81, {sWM}
        s_cselect_b32 s74, 99, 1
        v_cmp_ne_u32 s[6:7], s74, {vG}
        s_mul_i32 s16, {sWM}, 3
        s_min_u32 s16, s16, 7
        s_mul_i32 s74, s81, 10
        s_add_u32 s16, s16, s74
        s_lshl_b32 s16, s16, 10
        s_mul_i32 s74, {sT}, 163840
        s_add_u32 s16, s16, s74
        s_add_u32 s16, s16, {sXB}
        s_mov_b32 s17, 0xffff0000
        v_lshlrev_b32 v5, 5, {vN}
        v_lshl_add_u32 v5, {vG}, 3, v5
        s_lshl_b32 s74, {sWM}, 9
        v_add_u32 v240, s74, v5
        s_cmp_eq_u32 {sWM}, 2
        s_cselect_b64 s[74:75], 0, -1
        s_barrier
        s_waitcnt vmcnt(0)
        s_barrier""")
        RAW, UN, ACC = 220, 8, 232
        sl = [f"buffer_load_dwordx4 {vr(RAW+4*i,4)}, {vL16}, {WS}, s16 offen offset:{1024*i} sc1" for i in range(3)]
        chk = self.umax(5, range(RAW, RAW + 12)) + ["v_cmp_eq_u32 vcc, -1, v5"]
        self.stamp(6)
        slot, _ = self.x_plan()
        work = [f"v_cndmask_b32 v{RAW+k}, 0, v{RAW+k}, {'s[6:7]' if k < 4 else 's[74:75]'}" for k in range(12)]
        for i in range(3):
            for k in range(4):
                work += [f"v_lshlrev_b32 v{UN+2*k}, 16, v{RAW+4*i+k}", f"v_and_b32 v{UN+2*k+1}, s17, v{RAW+4*i+k}"]
            work += [f"{'v_mul_f32' if i == 0 else 'v_fmac_f32'} v{ACC+h}, v{UN+h}, v{UN+h}" for h in range(8)]
        work += [f"v_permlane32_swap_b32 v{ACC+k}, v{ACC+4+k}" for k in range(4)]
        work += [f"v_add_f32 v{ACC+k}, v{ACC+k}, v{ACC+4+k}" for k in range(4)]
        work += [f"v_permlane16_swap_b32 v{ACC+k}, v{ACC+2+k}" for k in range(2)]
        work += [f"v_add_f32 v{ACC+k}, v{ACC+k}, v{ACC+2+k}" for k in range(2)]
        K0, KW = self.ss_sched()

        def reads(k):
            f = self.QF + 16 * (k % 3)
            b = self.x_base(slot[k // 2])
            off = slot[k // 2] - self.XB[b] + 4096 * (k % 2)
            r = []
            for j in range(2):
                r.append(f"ds_read_b128 {vr(f+4*j,4)}, v{AD+k//20} offset:{(k%20)*2048+1024*j}")
                for i in range(2):
                    r.append(f"ds_read_b64_tr_b16 {vr(f+8+4*j+2*i,2)}, v{AD+2+4*b+2*j+k%2} offset:{off+1024*i}")
            return r
        for r in reads(0) + reads(1) + sl:
            a(r)
        SSR = 8
        KR, K2R, VR, Q2T, VT, RSD, N, W = 144, 152, 154, 166, 168, 220, self.NREG, 224
        for k in range(40):
            a(f"s_waitcnt lgkmcnt({6 if k < 39 else 0})")
            rr = reads(k + 2) if k + 2 < 40 else []
            per = (2, 2, 1, 1)
            if k == 38:
                rr = [f"ds_read_b32 v{SSR+2*nt+w}, v{EA+3} offset:{512*w+128*nt}" for nt in range(2) for w in range(2)]
            if k == 39:
                rr = [f"v_add_f32 v{SSR+2*nt}, v{SSR+2*nt}, v{SSR+2*nt+1}" for nt in range(2)]
                rr += [f"v_fma_f32 v{RSD+2*nt}, v{SSR+2*nt}, s78, v{EA+10}" for nt in range(2)]
                rr += [f"v_rsq_f32 v{RSD+2*nt}, v{RSD+2*nt}" for nt in range(2)]
                per = (2, 2, 2, 0)
            f = self.QF + 16 * (k % 3)
            for j, (mt, nt) in enumerate(((0, 0), (1, 0), (1, 1), (0, 1)) if k < 39 else ((1, 0), (1, 1), (0, 0), (0, 1))):
                d = vr(self.QACC + 32 * nt + 16 * mt, 16)
                a(f"v_mfma_f32_32x32x16_bf16 {d}, {vr(f+4*mt,4)}, {vr(f+8+4*nt,4)}, {'0' if k == 0 else d}")
                if j == 0 and (k == 39 or (k % 2 == 0 and k + 2 < 40)):
                    a("s_barrier")
                    if k == KW:
                        assert not work
                        a(f"ds_write_b64 v240, {vr(ACC,2)} offset:16384")
                for _ in range(per[j]):
                    if rr:
                        a(rr.pop(0))
                if k == K0:
                    for x in (["s_waitcnt vmcnt(0)"] + chk[:2], chk[2:4], chk[4:], [])[j]:
                        a(x)
                    if j == 3:
                        self.retry(chk, sl)
                if k > K0:
                    for _ in range(self.ss_dens()[j]):
                        if work:
                            a(work.pop(0))
        self.stamp(7)

        def sc(dst, src, n, nt):
            for h in range(n):
                r = vr(src + 2 * h, 2)
                if "eplain" in self.opts:
                    a(f"v_mul_f32 v{src+2*h}, v{src+2*h}, v{RSD+2*nt}\nv_mul_f32 v{src+2*h+1}, v{src+2*h+1}, v{RSD+2*nt}")
                else:
                    a(f"v_pk_mul_f32 {r}, {r}, {vr(RSD+2*nt,2)} op_sel_hi:[1,0]")
            for h in range(n):
                a(f"v_cvt_pk_bf16_f32 v{dst+h}, v{src+2*h}, v{src+2*h+1}")

        def sq(acc, srcs):
            for j, r in enumerate(srcs):
                if j == 0:
                    a(f"v_pk_mul_f32 {vr(acc,2)}, {vr(r,2)}, {vr(r,2)}")
                else:
                    a(f"v_pk_fma_f32 {vr(acc,2)}, {vr(r,2)}, {vr(r,2)}, {vr(acc,2)}")
        PB = [self.QACC + 32 * nt for nt in range(2)]
        self.fstamp("e", 0)
        for nt in range(2):
            sc(VR + 6 * nt, PB[nt] + 20, 6, nt)
            for i in range(3):
                a(f"ds_write_b64 v{EA}, {vr(VR+6*nt+2*i,2)} offset:{8*i+1536*nt}")
            for i in range(4):
                a(f"ds_read_b64_tr_b16 {vr(VT+8*nt+2*i,2)}, v{EA+1} offset:{(i//2)*768+(i%2)*192+1536*nt}")
        self.fstamp("e", 1)
        for nt in range(2):
            sc(KR + 4 * nt, PB[nt] + 8, 4, nt)
            a(f"buffer_store_dwordx4 {vr(KR+4*nt,4)}, {vL16}, {WS}, s77 offen offset:{A.TILE*nt} sc1")
            sc((Q2T, K2R)[nt], PB[nt] + 16, 2, nt)
        for i in range(2):
            a(f"v_permlane32_swap_b32 v{Q2T+i}, v{K2R+i}")
        a(f"""buffer_store_dwordx2 {vr(K2R,2)}, v{EA+6}, {WS}, s76 offen sc1
        s_mov_b64 exec, {A.VMASK}
        s_waitcnt lgkmcnt(0)""")
        for nt in range(2):
            for i in range(2):
                a(f"buffer_store_dwordx4 {vr(VT+8*nt+4*i,4)}, v{EA+2}, {WS}, s77 offen offset:{A.TILE*nt+1024+A.VFR*i} sc1")
        self.fstamp("e", 2)
        for nt in range(2):
            for i in range(2):
                a(f"ds_write_b128 v{EA+5}, {vr(VT+8*nt+4*i,4)} offset:{A.TILE*nt+1024+A.VFR*i}")
        a("s_mov_b64 exec, -1")
        for nt in range(2):
            sc(AR.Q1 + 4 * nt, PB[nt], 4, nt)
            a(f"ds_write_b128 v{EA+4}, {vr(KR+4*nt,4)} offset:{A.TILE*nt}")
            a(f"ds_write_b128 v{EA+8}, {vr(AR.Q1+4*nt,4)} offset:{1024*nt}")
        a(f"ds_write_b64 v{EA+7}, {vr(K2R,2)}")
        a(f"ds_write_b64 v{EA+9}, {vr(Q2T,2)} offset:2048")
        self.fstamp("e", 3)
        for nt in range(2):
            sq(W + 4 * nt, [PB[nt] + 2 * h for h in (0, 1, 2, 3)])
            sq(W + 4 * nt + 2, [PB[nt] + 2 * h for h in (4, 5, 6, 7)])
        for half, ex in enumerate(("exec_hi", "exec_lo")):
            a(f"s_mov_b32 {ex}, 0")
            for nt in range(2):
                for h in (8, 9):
                    r, c = vr(PB[nt] + 2 * h, 2), vr(W + 4 * nt + 2 * half, 2)
                    a(f"v_pk_fma_f32 {c}, {r}, {r}, {c}")
            a(f"s_mov_b32 {ex}, -1")
        for j in range(4):
            a(f"v_add_f32 v{N+j}, v{W+2*j}, v{W+2*j+1}")
        a(f"v_max3_f32 v{W}, abs(v{PB[0]+20}), abs(v{PB[0]+21}), abs(v{PB[1]+20})")
        rest = [PB[1] + 21] + [PB[nt] + h for nt in range(2) for h in range(22, 28)]
        rest.append(rest[-1])
        for j in range(0, len(rest), 2):
            a(f"v_max3_f32 v{W}, v{W}, abs(v{rest[j]}), abs(v{rest[j+1]})")
        a(f"v_permlane32_swap_b32 v{N}, v{N+2}\nv_permlane32_swap_b32 v{N+1}, v{N+3}\ns_mov_b32 exec_hi, 0")
        for nt in range(2):
            for h in (28, 30):
                a(f"v_max3_f32 v{W}, v{W}, abs(v{PB[nt]+h}), abs(v{PB[nt]+h+1})")
        a(f"""s_mov_b32 exec_hi, -1
        v_pk_add_f32 {vr(N,2)}, {vr(N,2)}, {vr(N+2,2)}
        v_cmp_gt_f32 vcc, {fbits(2.0**50)}, v{W}
        v_cndmask_b32 v{N+1}, 0x7f800000, v{N+1}, vcc""")
        for j, sh in enumerate((8, 4, 2, 1)):
            a(f"v_mov_b32 v{AR.Q2+6*(j//2)+j%2}, v{Q2T+j%2}")
            for r in (N, N + 1):
                a(f"v_max_u32 v{r}, v{r}, v{r} row_ror:{sh} row_mask:0xf bank_mask:0xf")
        a(f"""v_or_b32 v{N+1}, 1, v{N+1}
        s_mov_b32 exec_lo, 0x10001
        s_mov_b32 exec_hi, 0x10001
        ds_write_b64 v{EA+11}, {vr(N,2)}
        buffer_store_dword v{N+1}, v{EA+13}, {WS}, s79 offen sc1
        s_mov_b64 exec, -1""")
        self.q2_spread()
        self.fstamp("e", 14)
        a(f"""s_waitcnt lgkmcnt(0)
        s_barrier
        ds_read_b64 {vr(N,2)}, v{EA+12}""")

    def kv_dma(self):
        return [f"buffer_load_dwordx4 {vL16}, {WS}, s81 offen sc1 lds",
                f"buffer_load_dwordx4 {vL16}, {WS}, s81 offen offset:1024 sc1 lds",
                "s_mov_b32 exec_hi, 0",
                f"buffer_load_dwordx4 {vL16}, {WS}, s81 offen offset:2048 sc1 lds",
                "s_mov_b32 exec_hi, -1"]

    def att_dma(self, c):
        a = self.a
        a(f"s_mul_i32 s81, s80, {A.CHUNK}\ns_add_u32 m0, s85, {A.slot_off(c)}\ns_add_u32 s81, s81, s86")
        for x in self.kv_dma():
            a(x)
        a("s_add_u32 s80, s80, 1\ns_and_b32 s80, s80, 7")

    def att_slow(self):
        a = self.a
        M = 140
        for i in range(32):
            a(f"v_mov_b32 v{AR.O+i}, 0")
        for x in self.o_fill() + sum(self.x_fill() + self.res_load(), []):
            a(x)
        a(f"v_mov_b32 v{M}, 0xff800000\nv_mov_b32 v{M+1}, 0xff800000\ns_waitcnt vmcnt(0)")
        for ps in range(2):
            lp = a.lab("Lsl")
            a(f"s_mov_b32 s80, 0\n{lp}:\ns_barrier")
            self.att_dma(0)
            a("s_waitcnt vmcnt(0)\ns_barrier")
            for n in range(8):
                if n % 2 == 0:
                    for r in A.rd_k(n // 2) + (A.rd_v(n // 2) if ps else []):
                        a(r)
                    a("s_waitcnt lgkmcnt(0)")
                a(A.qk1(n))
                a(A.qk2(n))
                s = AR.S + 16 * (n % 3)
                if ps == 0:
                    for i in range(8):
                        a(f"v_max3_f32 v{M+n%2}, v{M+n%2}, v{s+2*i}, v{s+2*i+1}")
                else:
                    for i in range(16):
                        a(f"v_sub_f32 v{s+i}, v{s+i}, v{M+n%2}")
                    for i in range(16):
                        a(A.ex(n, i))
                    a(A.pv(n, 0))
                    a(A.pv(n, 1))
            a(f"s_cmp_lg_u32 s80, 0\ns_cbranch_scc1 {lp}")
            if ps == 0:
                off = A.SLOT0 + A.slot_off(1)
                a(f"""v_lshlrev_b32 v5, 3, {vTID}
                v_xor_b32 v6, 0x800, v5
                v_add_u32 v5, {off}, v5
                v_add_u32 v6, {off}, v6
                ds_write_b64 v5, {vr(M,2)}
                s_waitcnt lgkmcnt(0)
                s_barrier
                ds_read_b64 {vr(M+2,2)}, v6
                s_waitcnt lgkmcnt(0)""")
                for q in range(2):
                    a(f"""v_max_f32 v{M+q}, v{M+q}, v{M+3-q}
                    v_mov_b32 v5, v{M+q}
                    v_permlane32_swap_b32 v5, v{M+q}
                    v_max_f32 v{M+q}, v5, v{M+q}""")
        for i in range(13):
            for x in self.img_piece(i == 12):
                a(x)

    def img_piece(self, half=False):
        ld = f"buffer_load_dwordx4 {vL16}, {WS}, s9 offen sc1 lds"
        step = 512 if half else 1024
        mid = ["s_mov_b32 exec_hi, 0", ld, "s_mov_b32 exec_hi, -1"] if half else [ld]
        return ["s_mov_b32 m0, s8", f"s_add_u32 s8, s8, {step}"] + mid + [f"s_add_u32 s9, s9, {step}"]

    def attention(self):
        a = self.a
        N = self.NREG
        l0, l1, l2, l3, l4, l5, slow, done, loop = (a.lab("La") for _ in range(9))
        a(f"""s_lshl_b32 s11, {sH}, 10
        s_add_u32 s11, s11, {sFL}
        s_add_u32 s11, s11, {F_KV*FSTRIDE}
        s_lshl_b32 s12, {sTT}, 7
        s_add_u32 s12, s12, s11
        s_mul_i32 s8, {sWV}, 12800
        s_mov_b32 s9, {WOT}
        s_cmp_eq_u32 {sLAYER}, 0
        s_cselect_b32 s9, {WOH}, s9
        s_mul_i32 s72, {sCB}, 102400
        s_add_u32 s9, s9, s72
        s_add_u32 s9, s9, s8""")
        self.stamp(8)
        A.start(a, 0)
        redo, back, lo, li = (a.lab("Lredo") for _ in range(4))
        a(f"v_cmp_lt_u32 vcc, 0x7f800000, v{N}\ns_cbranch_vccnz {redo}\n{back}:")
        chk = "\n".join(self.umax(5, [5, 60, 61, 62, 63]))
        self.cold.append(f"""{redo}:
        s_cmp_lg_u32 s14, 0
        s_cbranch_scc1 {back}
        s_mov_b32 s14, 1
        {self.count_text(10)}
        s_mov_b32 s88, {SPIN >> 4}
        {lo}:
        s_mul_i32 s72, {sTT}, 327680
        s_add_u32 s72, s72, {sXB}
        s_mul_i32 s73, {sWV}, 40960
        s_add_u32 s72, s72, s73
        s_add_u32 s73, s72, 40960
        v_mov_b32 v5, 0
        {li}:
        buffer_load_dwordx4 v[60:63], {vL16}, {WS}, s72 offen sc1
        s_add_u32 s72, s72, 1024
        s_cmp_lt_u32 s72, s73
        s_waitcnt vmcnt(0)
        {chk}
        s_cbranch_scc1 {li}
        v_cmp_eq_u32 vcc, -1, v5
        s_sub_u32 s88, s88, 1
        s_cselect_b64 vcc, 0, vcc
        s_cbranch_vccnz {lo}
        s_waitcnt lgkmcnt(0)
        s_barrier
        s_branch Lqkv""")

        def publish():
            lw = a.lab("La")
            self.if_lo(lw)
            a(f"s_waitcnt vmcnt(1)\ns_cmp_eq_u32 s14, 0\ns_cbranch_scc1 {lw}\ns_waitcnt vmcnt(0)\n{lw}:\ns_barrier")
            self.push("s11", 7, wave=4, n=8)
            lf, lr = a.lab("La"), a.lab("La")
            self.if_hi(lf)
            a(f"s_cmp_lg_u32 {sLAYER}, 0\ns_cbranch_scc1 {lr}")
            a(f"""s_lshl_b32 s76, {sWM}, 9
            s_add_u32 s76, s76, {sREP}
            s_add_u32 s76, s76, {F_IMG*FSTRIDE}
            v_lshlrev_b32 v5, 7, {vL}
            v_mov_b32 v143, 0
            s_mov_b64 exec, 15
            buffer_atomic_add v143, v5, {WS}, s76 offen sc0 sc1
            s_mov_b64 exec, -1""")
            a(f"s_branch {lf}\n{lr}:")
            for q in range(6):
                if q not in self.ft_early.values():
                    self.ft_part(q)
            a(f"""s_lshl_b32 s74, {sWM}, 10
            s_add_u32 m0, s74, 98304
            s_sub_u32 s83, s82, s78
            s_add_u32 s83, s83, m0
            buffer_load_dwordx4 {vL16}, {WS}, s83 offen sc1 lds""")
            a(f"{lf}:")

        def early():
            lm = a.lab("La")
            a(f"s_or_b32 s72, {sHI}, {sLAYER}\ns_cbranch_scc1 {lm}")
            fetch()
            a(f"{lm}:")

        def late():
            lm, ln = a.lab("La"), a.lab("La")
            a(f"s_cmp_eq_u32 {sLAYER}, 0\ns_cbranch_scc1 {ln}")
            self.if_hi(lm)
            a(f"s_waitcnt vmcnt(0)\ns_barrier\ns_branch {ln}\n{lm}:\ns_barrier")
            fetch()
            a(f"{ln}:")

        def fetch():
            l2 = a.lab("La")
            a(f"""v_bfe_u32 v5, {vL}, 2, 3
            v_and_b32 v6, 3, {vL}
            v_lshlrev_b32 v6, 4, v6
            v_lshl_add_u32 v{N+1}, v5, 7, v6
            s_lshl_b32 s76, {sH}, 10
            s_lshl_b32 s75, {sLAYER}, 15
            s_add_u32 s76, s76, s75
            s_add_u32 s76, s76, {F_KMAX*FSTRIDE}
            s_mul_i32 s72, {sWM}, 2560
            s_add_u32 s73, s85, s72
            s_add_u32 s74, s86, s72
            s_movk_i32 s75, 2560""")
            for c in (1, 2):
                a(f"""s_or_b32 s80, {sTT}, 1
                s_add_u32 s80, s80, {c}
                s_and_b32 s80, s80, 7
                s_mul_i32 s81, s80, {A.CHUNK}
                s_add_u32 s{76+c}, s81, s74""")
            a(f"s_add_u32 m0, s73, {A.slot_off(1)}")
            self.wait_lines("s12", 1, 8)
            self.fstamp("a", 14)
            a(f"s_cmp_lg_u32 {sWV}, 0\ns_cbranch_scc1 {l2}\nbuffer_load_dwordx4 v[140:143], v{N+1}, {WS}, s76 offen sc1\n{l2}:")
            for c in (1, 2):
                if c == 2:
                    a(f"s_add_u32 m0, s73, {A.slot_off(c)}")
                for i in range(4):
                    a(f"buffer_load_dwordx4 {vL16}, {WS}, s{76+c} offen offset:{1024*i} sc1 lds")
                a(f"s_add_u32 m0, m0, 4096\ns_add_u32 s81, s{76+c}, 4096")
                a(f"buffer_load_dwordx4 {vL16}, {WS}, s81 offen sc1 lds")
        pi = next((int(o[2:]) for o in self.opts if o.startswith("pi")), 5)
        for n in range(8):
            A.iteration(a, n, 8, {self.pub: publish, pi: early, 6: late}.get(n), first=(n == 0))
        a(A.pv(7, 1))
        self.stamp(9)
        self.if_lo(l1)
        a(f"s_cmp_lg_u32 {sLAYER}, 0\ns_cbranch_scc1 {l0}\ns_barrier\n{l0}:")
        for sh in (8, 4, 2, 1):
            a(f"v_max_u32 v{N}, v{N}, v{N} row_ror:{sh} row_mask:0xf bank_mask:0xf")
        kb, ko = a.lab("Lbad"), a.lab("Lok")
        self.cold.append(f"""{kb}:
        buffer_load_dwordx4 v[140:143], v{N+1}, {WS}, s76 offen sc1
        s_sub_u32 s88, s88, 1
        s_waitcnt vmcnt(0)
        s_cbranch_scc1 {ko}
        v_min3_u32 v7, v140, v141, v142
        v_min_u32 v7, v7, v143
        v_cmp_eq_u32 vcc, 0, v7
        s_cbranch_vccnz {kb}
        s_branch {ko}""")
        a(f"""s_mov_b32 s88, {SPIN}
        s_cmp_lg_u32 {sWV}, 0
        s_cbranch_scc1 {l5}
        s_waitcnt vmcnt(10)
        v_min3_u32 v7, v140, v141, v142
        v_min_u32 v7, v7, v143
        v_cmp_eq_u32 vcc, 0, v7
        s_cbranch_vccnz {kb}
        {ko}:
        v_max3_u32 v7, v140, v141, v142
        v_max_u32 v7, v7, v143
        v_mul_f32 v7, v7, v{N}
        v_cmp_nge_f32 vcc, {fbits(3600.0)}, v7
        s_or_b32 s72, vcc_lo, vcc_hi
        v_mov_b32 v5, {A.SLOT0 + A.slot_off(0)}
        v_mov_b32 v6, s72
        v_mad_u32_u24 v5, {vL}, s75, v5
        s_mov_b64 exec, 0xff
        ds_write_b32 v5, v6
        s_mov_b64 exec, -1
        {l5}:""")
        self.fstamp("b", 2)
        a("s_waitcnt vmcnt(5)")
        self.fstamp("b", 3)
        a(f"""s_branch {l3}
        {l1}:
        s_cmp_lg_u32 {sLAYER}, 0
        s_waitcnt vmcnt(0)
        s_cbranch_scc1 {l4}""")
        lg = a.lab("La")
        a(f"s_mov_b64 exec, 15\nv_cmp_gt_u32 vcc, 6, v143\ns_mov_b64 exec, -1\ns_cbranch_vccz {lg}")
        self.wait_lines("s76", 4, 6)
        a(f"{lg}:\ns_barrier\ns_branch {l3}\n{l4}:")
        self.gcore(0, 20, False, True, False)
        a(f"v_mov_b32 v6, {fbits(AMP)}")
        for h in range(10):
            a(f"v_pk_mul_f32 {vr(GLO+2*h,2)}, {vr(GLO+2*h,2)}, v[6:7] op_sel_hi:[1,0]")
        a(f"""{l3}:
        v_mov_b32 v5, s85
        s_or_b32 s80, {sTT}, 1
        s_add_u32 s80, s80, 3
        s_and_b32 s80, s80, 7
        s_waitcnt lgkmcnt(0)
        s_barrier
        ds_read_b32 v6, v5 offset:{A.slot_off(0)}""")
        self.stamp(10)
        A.start(a, 8)
        self.att_dma(0)
        a(f"""v_readfirstlane_b32 s72, v6
        s_cmp_lg_u32 s72, 0
        s_cbranch_scc1 {slow}""")
        NT = 64
        prio = {"pa": ((4, 0), (5, 0), (5, 3)), "pb": ((3, 0), (5, 0), (5, 3)), "pc": ((2, 0), (4, 2), (5, 2)),
                "pd": ((1, 0), (3, 0), (5, 0))}[next((o for o in self.opts if o in ("pa", "pb", "pc", "pd")), "pb")]
        order = ["K3"] * 3
        imgs = [n for n in range(10, 62) if n % 8 in (2, 3)][:13]

        of = self.o_fill()
        jobs = self.res_load() + [of[:4], of[4:5], of[5:]] + self.x_fill()
        spots = [n for n in range(16, 60) if n % 8 in (0, 1, 4)]
        extra = dict(zip(spots, jobs))
        assert len(extra) == len(jobs)

        def bnd(c):
            def f():
                last = max((i for i, t in enumerate(order) if t == f"K{c+1}"), default=-1)
                a(f"s_waitcnt vmcnt({len(order)-1-last}) lgkmcnt(0)\ns_barrier\ns_setprio 3")
            return f

        def hooks(n):
            h = {}

            def add(k, xs):
                h.setdefault(k, []).extend(xs)
            for lvl, (t, k) in zip((2, 1, 0), prio):
                if n % 8 == t:
                    add(k, [f"s_setprio {lvl}"])
            c = (n + 2) // 8 - 1
            d = self.kv_dma()
            if 1 <= c <= 4:
                if n % 8 == 6:
                    add(2, [f"s_mul_i32 s81, s80, {A.CHUNK}", f"s_add_u32 m0, s85, {A.slot_off(c)}"])
                    add(3, ["s_add_u32 s81, s81, s86"])
                if n % 8 == 7:
                    add(0, d[:1])
                    add(2, ["s_add_u32 s80, s80, 1", "s_and_b32 s80, s80, 7"] + d[1:2])
                    add(3, d[2:])
                    order.extend([f"K{c+3}"] * 3)
                if n % 8 == 0:
                    add(2, [f"s_cmp_eq_u32 s80, {sTT}", "s_addc_u32 s80, s80, 0"])
            if n in imgs:
                add(3, self.img_piece(n == imgs[-1]))
                order.append("I")
            if n in extra:
                add(3, extra[n])
                order.extend(["F"] * sum(x.startswith("buffer") for x in extra[n]))
            return h
        for n in range(8, 64):
            c = n // 8
            A.iteration(a, n, NT, bnd(c) if (n % 8 == 6 and c < 7) else None, first=(n == 8), hooks=hooks(n))
        a(A.pv(63, 1))
        a(f"{done}:")
        for x in self.o_send():
            a(x)
        self.fstamp("a", 2)
        self.slow_labels = (slow, done)
        O, X = AR.O + 16, AR.S + 16
        a(f"""s_setprio 0
        s_lshl_b32 s72, {sTT}, 12
        s_add_u32 s72, s72, {sFL}
        s_add_u32 s72, s72, {F_O*FSTRIDE}
        s_lshl_b32 s34, {sH}, 7
        s_add_u32 s34, s34, s72
        s_waitcnt vmcnt(0) lgkmcnt(0)
        s_barrier""")
        for i in (2, 0, 1):
            a(f"ds_read_b128 {vr(X+4*i,4)}, v{N+5} offset:{1024*i}")
        self.push("s72", 7, wave=0, n=32)
        a("s_waitcnt lgkmcnt(2)")
        for h in (4, 5):
            a(f"v_pk_add_f32 {vr(O+2*h,2)}, {vr(O+2*h,2)}, {vr(X+2*h,2)}")
        a(f"v_mov_b32 v6, v{O+8}\nv_mov_b32 v7, v{O+8}\ns_waitcnt lgkmcnt(0)")
        for h in range(2):
            a(f"v_pk_add_f32 {vr(O+2*h,2)}, {vr(O+2*h,2)}, {vr(X+2*h,2)}")
        a("v_permlane32_swap_b32 v7, v6\nv_rcp_f32 v6, v6")
        for h in range(2, 4):
            a(f"v_pk_add_f32 {vr(O+2*h,2)}, {vr(O+2*h,2)}, {vr(X+2*h,2)}")
        self.fstamp("a", 3)
        for h in range(4):
            a(f"v_pk_mul_f32 {vr(O+2*h,2)}, {vr(O+2*h,2)}, v[6:7] op_sel_hi:[1,0]")
        for h in range(4):
            a(f"v_cvt_pk_bf16_f32 v{8+h}, v{O+2*h}, v{O+2*h+1}")
        self.clean(8, 4)
        a(f"buffer_store_dwordx4 v[8:11], v{N+6}, {WS}, s18 offen sc1")
        for h in range(4, 6):
            a(f"v_pk_mul_f32 {vr(O+2*h,2)}, {vr(O+2*h,2)}, v[6:7] op_sel_hi:[1,0]")
        for h in range(4, 6):
            a(f"v_cvt_pk_bf16_f32 v{8+h}, v{O+2*h}, v{O+2*h+1}")
        self.clean(12, 2)
        a(f"""s_mov_b32 exec_hi, 0
        buffer_store_dwordx2 v[12:13], v{N+7}, {WS}, s19 offen sc1
        s_mov_b64 exec, -1""")

    def o_send(self):
        return [f"ds_write_b128 v{self.NREG+4}, {vr(AR.O+4*i,4)} offset:{1024*i}" for i in range(3)]

    def o_prepare(self):
        a = self.a
        N = self.NREG
        a(f"""s_mul_i32 s72, {sWM}, 3072
        s_add_u32 s72, s72, {A.SLOT0}
        s_mul_i32 s73, {sHI}, {A.CHUNK}
        s_add_u32 s74, s72, s73
        v_add_u32 v{N+4}, s74, {vL16}
        s_sub_u32 s74, s72, s73
        s_add_u32 s74, s74, {A.CHUNK}
        v_add_u32 v{N+5}, s74, {vL16}
        s_lshl_b32 s72, {sTT}, 1
        s_lshr_b32 s73, {sWM}, 1
        s_add_u32 s72, s72, s73
        s_lshl_b32 s72, s72, 5
        s_add_u32 s72, s72, {sH}
        s_and_b32 s73, {sWM}, 1
        s_lshl_b32 s73, s73, 1
        s_add_u32 s73, s73, 1
        s_sub_u32 s73, s73, {sHI}
        s_lshl_b32 s18, s72, 12
        s_lshl_b32 s74, s73, 9
        s_add_u32 s18, s18, s74
        s_add_u32 s18, s18, {sO}
        s_lshl_b32 s19, s72, 10
        s_lshl_b32 s74, s73, 8
        s_add_u32 s19, s19, s74
        s_add_u32 s19, s19, {sO}
        s_add_u32 s19, s19, {OXOFF}
        v_lshrrev_b32 v5, 5, {vL}
        v_mul_u32_u24 v5, 1536, v5
        v_add_u32 v{N+6}, v5, {vL16}
        v_lshlrev_b32 v{N+7}, 3, {vL}
        s_mul_i32 s0, {sT}, 163840
        s_mul_i32 s72, {sCB}, 20480
        s_add_u32 s0, s0, s72
        s_lshl_b32 s72, {sHALF}, 7
        s_add_u32 s0, s0, s72
        s_add_u32 s0, s0, {X0+2*XSZ}
        s_mul_i32 s1, {sWV}, {2*163840}
        s_mul_i32 s72, {sX}, 20
        s_add_u32 s72, s72, {sR}
        s_lshl_b32 s72, s72, 10
        s_add_u32 s1, s1, s72
        s_add_u32 s1, s1, {X0+3*XSZ}
        s_cmp_ge_u32 {sR}, 20
        s_cselect_b32 s1, s22, s1""")

    def x_fill(self):
        st = "buffer_store_dwordx4 v[140:143]"
        return [[f"v_lshrrev_b32 v5, 3, {vTID}", "v_lshlrev_b32 v5, 7, v5", f"v_lshl_add_u32 v5, {vTID}, 4, v5",
                 f"s_cmp_eq_u32 {sLAYER}, 0", "s_cselect_b32 s15, s0, s22", "s_cselect_b32 s16, s1, s22"],
                [f"{st}, v5, {WS}, s15 offen sc1", "s_add_u32 s15, s15, 16384", f"s_cmp_gt_u32 {sWV}, 1", "s_cselect_b32 s15, s22, s15"],
                [f"{st}, v5, {WS}, s15 offen sc1"],
                [f"{st}, {vL16}, {WS}, s16 offen sc1", "s_add_u32 s16, s16, 163840"],
                [f"{st}, {vL16}, {WS}, s16 offen sc1"]]

    def o_fill(self):
        N = self.NREG
        r = [f"v_mov_b32 v{140+i}, -1" for i in range(4)]
        r += [f"buffer_store_dwordx4 v[140:143], v{N+6}, {WS}, s18 offen sc1", "s_mov_b32 exec_hi, 0"]
        r += [f"buffer_store_dwordx2 v[140:141], v{N+7}, {WS}, s19 offen sc1", "s_mov_b32 exec_hi, -1"]
        return r

    def o_look(self):
        self.a(f"v_mov_b32 v19, 0\ns_mov_b64 exec, 1\nbuffer_atomic_add v19, {vL16}, {WS}, s34 offen sc0 sc1\ns_mov_b64 exec, -1")

    def o_loads(self):
        a = self.a
        a(f"""s_lshl_b32 s72, {sHALF}, 6
        s_lshl_b32 s73, {sWM}, 4
        s_add_u32 s72, s72, s73
        v_add_u32 v5, s72, {vN}
        v_lshlrev_b32 v6, 11, {vG}
        v_lshl_add_u32 v141, v5, 4, v6
        v_lshl_add_u32 v142, v5, 3, v6
        s_lshl_b32 s72, {sT}, 17
        s_add_u32 s72, s72, {sO}
        s_lshl_b32 s73, {sT}, 15
        s_add_u32 s73, s73, {sO}
        s_add_u32 s73, s73, {OXOFF}
        s_mov_b32 s78, s72
        s_mov_b32 s79, s73""")
        for i in range(20):
            a(f"v_mov_b32 v{GHI+i}, v{GLO+i}")
        if "nogate" not in self.opts:
            l = a.lab("Lo")
            a(f"s_waitcnt vmcnt(0)\nv_readfirstlane_b32 s74, v19\ns_cmp_ge_u32 s74, 32\ns_cbranch_scc1 {l}")
            self.wait_lines("s34", 1, 32)
            a(f"{l}:")
        self.stamp(12)

    def o_proj(self, swap):
        a = self.a
        top, bad, ok = a.lab("Lo"), a.lab("Lbad"), a.lab("Lok")
        a(f"s_mov_b32 s88, {SPIN >> 3}\n{top}:")
        for ks in range(self.olead):
            self.o_load(ks)
        self.fstamp("p", 0)
        hook = None
        if not swap and self.hk is not None:
            def early():
                l = a.lab("Lo")
                a(f"""s_cmp_lg_u32 s76, 4
                s_cbranch_scc1 {l}
                s_mov_b64 exec, 0xffff
                buffer_atomic_add v143, v19, {WS}, s77 offen sc1
                s_mov_b64 exec, -1
                s_mov_b32 s76, 0
                {l}:""")
            hook = (self.hk, early)
        self.gcore(0, 20, False, swap, True, self.o_wait, feed=self.o_feed, hook=hook)
        a(f"v_cmp_u_f32 vcc, v{GLO}, v{GLO+1}\nv_cmp_u_f32 s[74:75], v{GLO+2}, v{GLO+3}\ns_or_b64 vcc, vcc, s[74:75]")
        a(f"s_cbranch_scc1 {bad}\n{ok}:")
        self.fstamp("p", 2)
        body = [f"{bad}:"] + self.umax(5, range(GA, GA + 80)) + ["v_cmp_eq_u32 vcc, -1, v5", f"s_cbranch_vccz {ok}"]
        body += [self.count_text(9), "s_sub_u32 s88, s88, 1", f"s_cbranch_scc1 {ok}", "s_mov_b32 s72, s78", "s_mov_b32 s73, s79"]
        body += [f"v_mov_b32 v{GLO+i}, v{GHI+i}" for i in range(20)] + [f"s_branch {top}"]
        self.cold.append("\n".join(body))

    def o_load(self, ks):
        a = self.a
        if ks < 16:
            a(f"buffer_load_dwordx4 {vr(GA+4*ks,4)}, v141, {WS}, s72 offen sc1")
            a("s_add_u32 s72, s72, 8192")
        elif ks < 20:
            for i in range(2):
                a(f"buffer_load_dwordx2 {vr(GA+4*ks+2*i,2)}, v142, {WS}, s73 offen offset:{1024*i} sc1")
            a("s_add_u32 s73, s73, 8192")

    def o_feed(self, ks):
        self.o_load(ks + self.olead)

    def o_wait(self, ks):
        return sum(1 if k < 16 else 2 for k in range(ks + 1, min(20, ks + self.olead)))

    def res_load(self):
        r = [[f"s_lshl_b32 s73, {sWM}, 5", "s_add_u32 s13, s0, s73", f"s_sub_u32 s13, s13, {XSZ}", f"s_cmp_gt_u32 {sHI}, {sLAYER}",
              "s_cselect_b32 s13, s13, s22", f"v_lshlrev_b32 v7, 8, {vN}", f"v_lshl_add_u32 v7, {vG}, 3, v7"]]
        for ct in range(5):
            r.append([f"buffer_load_dwordx2 {vr(GA+2*ct,2)}, v7, {WS}, s13 offen sc1", "s_add_u32 s13, s13, 4096"])
        return r

    def final_setup(self):
        a = self.a
        a(f"""s_mul_i32 s72, {sWM}, {16*176}
        s_add_u32 s72, s72, {EP}
        v_mul_u32_u24 v5, 176, {vN}
        v_lshl_add_u32 v5, {vG}, 3, v5
        v_add_u32 v11, s72, v5""")
        a(f"""s_and_b32 s73, {sT}, 7
        s_lshl_b32 s73, s73, 8
        s_lshr_b32 s74, {sT}, 3
        s_lshl_b32 s74, s74, 4
        s_add_u32 s73, s73, s74
        s_lshl_b32 s74, {sHALF}, 3
        s_add_u32 s73, s73, s74
        s_lshl_b32 s74, {sWM}, 1
        s_add_u32 s73, s73, s74
        s_mul_i32 s73, s73, 1280
        s_mul_i32 s74, {sCB}, 160
        s_add_u32 s73, s73, s74
        s_movk_i32 s74, 176
        s_movk_i32 s75, 1280""")
        for i in range(3):
            a(f"""v_add_u32 v5, {64*i}, {vL}
            v_mul_u32_u24 v6, 205, v5
            v_lshrrev_b32 v6, 11, v6
            v_mul_u32_u24 v7, 10, v6
            v_sub_u32 v5, v5, v7
            v_lshlrev_b32 v5, 4, v5
            v_mad_u32_u24 v{8+i}, v6, s74, v5
            v_add_u32 v{8+i}, s72, v{8+i}
            v_and_b32 v7, 7, v6
            v_lshrrev_b32 v6, 3, v6
            v_lshl_add_u32 v6, v7, 5, v6
            v_mad_u32_u24 v{12+i}, v6, s75, v5""")
        a("s_mov_b32 s77, s73")

    def final_store(self):
        a = self.a
        for ct in range(5):
            a(f"v_cvt_pk_bf16_f32 v{16+2*ct}, v{GLO+4*ct}, v{GLO+4*ct+1}")
            a(f"v_cvt_pk_bf16_f32 v{17+2*ct}, v{GLO+4*ct+2}, v{GLO+4*ct+3}")
            a(f"ds_write_b64 v11, {vr(16+2*ct,2)} offset:{ct*32}")
        for i in range(3):
            a(f"ds_read_b128 {vr(28+4*i,4)}, v{8+i}")
        for i in range(3):
            if i == 2:
                a("s_mov_b32 exec_hi, 0")
            a(f"s_waitcnt lgkmcnt({2-i})")
            a(f"buffer_store_dwordx4 {vr(28+4*i,4)}, v{12+i}, {SOUT}, s77 offen")

    def build(self):
        a = self.a
        self.prologue()
        self.phase0()
        a(f"""s_mov_b32 {sXA}, {X0}
        s_mov_b32 {sXB}, {X0+XSZ}
        s_mov_b32 {sKV}, {KV0}
        s_mov_b32 {sO}, {OM0}
        s_mov_b32 {sSS}, {SS0}
        s_mov_b32 s35, 0
        Llayer:""")
        idle, cdone, l0, l1, l2, l3, l4, l5, l6, l7, l8, last = (a.lab("Lm") for _ in range(12))
        a(f"s_cmp_ge_u32 {sR}, 20\ns_cbranch_scc1 {idle}")
        self.x_look()
        self.col_consts()
        self.col_main()
        a(f"""s_branch {cdone}
        {idle}:
        s_cmp_lg_u32 {sLAYER}, 0
        s_cbranch_scc1 {l0}""")
        self.job_woh()
        a(f"s_branch {l1}\n{l0}:")
        self.job_images()
        a(f"s_add_u32 s72, {sSH}, {(F_IMG+1)*FSTRIDE}\ns_barrier")
        self.push("s72", 11, wave=0)
        a(f"{l1}:\nv_mov_b32 v19, 0\n{cdone}:")
        self.stamp(5)
        self.if_hi(l2)
        self.pre_flags()
        a(f"s_waitcnt vmcnt(2)\ns_mov_b64 exec, 15\nv_cmp_gt_u32 vcc, s89, v19\ns_mov_b64 exec, -1\ns_cbranch_vccz {l2}")
        self.wait_lines("s72", 4, "s89")
        a(f"{l2}:\ns_mov_b32 s14, 0\ns_cmp_lt_u32 {sR}, 20\ns_waitcnt lgkmcnt(0)\ns_cbranch_scc1 Lqkv\ns_barrier\nLqkv:")
        self.if_lo(l3)
        self.qkv_compute()
        a(f"s_branch {l4}\n{l3}:")
        self.qkv_helper()
        a(f"{l4}:")
        self.attention()
        self.stamp(11)
        a("s_barrier")
        self.fstamp("a", 15)
        a(f"s_cmp_lg_u32 {sLAYER}, 0\ns_cbranch_scc1 {last}")
        self.if_lo(l5)
        self.x_store_setup()
        a(f"s_cmp_ge_u32 {sR}, 20\ns_cbranch_scc1 {l6}")
        self.col_tables(sWM, 4)
        self.col_early()
        a(f"{l6}:")
        a(f"s_add_u32 s76, {sSH}, {FLAGS+4*FSTRIDE}\ns_waitcnt lgkmcnt(0)\ns_barrier")
        if self.hk is None:
            self.push("s76", 11, wave=3)
        self.x_store("s0")
        self.stamp(13)
        a(f"s_branch {l7}\n{l5}:\ns_setprio 2")
        self.o_look()
        self.unpack(GLO, GA, 10)
        self.col_early()
        self.ep_setup()
        self.o_loads()
        a(f"s_mov_b32 s76, {sWV}\ns_add_u32 s77, {sSH}, {FLAGS+4*FSTRIDE}\nv_lshlrev_b32 v19, 11, {vL}\nv_mov_b32 v143, 1")
        self.o_proj(False)
        self.ep_write(False)
        self.fstamp("p", 3)
        a(f"""s_lshl_b32 s85, {sT}, 11
        s_lshl_b32 s86, {sCB}, 8
        s_add_u32 s85, s85, s86
        s_lshl_b32 s86, {sHALF}, 7
        s_add_u32 s85, s85, s86
        s_add_u32 s85, s85, {SS0+65536}
        s_waitcnt lgkmcnt(0)
        s_barrier""")
        self.ss_store(sCB, "s85")
        a("s_setprio 0")
        self.stamp(13)
        a(f"{l7}:")
        a(f"""s_mov_b32 {sLAYER}, 1
        s_mov_b32 {sXA}, {X0+2*XSZ}
        s_mov_b32 {sXB}, {X0+3*XSZ}
        s_mov_b32 {sKV}, {KV0+KVSZ}
        s_mov_b32 {sO}, {OM0+OSZ}
        s_mov_b32 {sSS}, {SS0+65536}
        s_mov_b32 {sFL}, {FLAGS+4*FSTRIDE}
        """)
        a(f"s_branch Llayer\n{last}:")
        self.if_hi("Lfin")
        self.o_look()
        self.final_setup()
        self.o_loads()
        self.o_proj(True)
        self.final_store()
        self.fstamp("p", 3)
        if self.stamps or self.probe is not None:
            a("s_mov_b64 exec, -1\ns_waitcnt vmcnt(0)")
            self.stamp(13)
        if self.probe is not None:
            a("""s_memrealtime s[90:91]
            s_sub_u32 s98, s98, s100
            Lspin:
            s_memrealtime s[92:93]
            s_waitcnt lgkmcnt(0)
            s_sub_u32 s92, s92, s90
            s_cmp_lt_u32 s92, s98
            s_cbranch_scc1 Lspin""")
        a("Lfin:")
        self.stamp_dump()
        a("s_endpgm")
        self.col_early_body()
        a("Lend:\ns_endpgm")
        slow, done = self.slow_labels
        a(f"{slow}:")
        self.att_slow()
        a(f"s_barrier\ns_branch {done}")
        for blk in self.cold:
            a(blk)
        return a.finalize()


def wrap(body):
    ref = open("cdna_kernels/" + NAME + ".s.ref").read()
    head = ref[:ref.index("; @launch")]
    out = head + "; @launch grid=(256,1,1) block=(512,1,1) lds=163840\n"
    out += f""".amdgcn_target "amdgcn-amd-amdhsa--gfx950"
.text
.globl {NAME}_kernel
.p2align 8
.type {NAME}_kernel,@function
{NAME}_kernel:
"""
    out += body
    out += ref[ref.index(".section .rodata"):]
    return out


if __name__ == "__main__":
    stamps = "--stamps" in sys.argv
    path = sys.argv[1]
    opts = [x[2:] for x in sys.argv[2:] if x.startswith("--")]
    g = Gen(stamps=stamps, opts=opts)
    txt = wrap(g.build())
    if "nosc1lds" in opts:
        txt = txt.replace(" sc1 lds", " lds")
    open(path, "w").write(txt)
    print("wrote", path, len(txt), "bytes; padded wait states", g.a.padded)
```
